```python
import torch

def _softmax(x, axis=-1):
    return torch.softmax(x, dim=axis)

def _gelu(x):
    return torch.nn.functional.gelu(x, approximate='tanh')

def _silu(x):
    return torch.nn.functional.silu(x)

def _sigmoid(x):
    return torch.sigmoid(x)

def _layernorm(x, axis=-1, eps=1e-05):
    m = x.mean(dim=axis, keepdim=True)
    v = x.var(dim=axis, keepdim=True, unbiased=False)
    return (x - m) / torch.sqrt(v + eps)

def _scatter_add(tgt, idx, src, axis=0):
    return tgt.clone().index_add_(axis, idx, src)

def _segment_sum(src, seg, n):
    out = torch.zeros((n,) + src.shape[1:], dtype=src.dtype)
    return out.index_add_(0, seg, src)

def _pad(x, pw):
    flat = tuple((v for pair in reversed(pw) for v in pair))
    return torch.nn.functional.pad(x, flat)
kernel_name = 'adaLN_cond__sliding_local_dilated__swiglu_ffn__prompt'

def setup_inputs():

    _w = lambda a: (lambda t: t.to(torch.bfloat16) if t.is_floating_point() else t)(torch.as_tensor(a))

    def _A_setup():
        B, S, D = (1, 2048, 1024)
        return {'x': _w((lambda *s: torch.randn(*s, dtype=torch.bfloat16) * 0.05)(B, S, D)), 'wqkv': _w((lambda *s: torch.randn(*s, dtype=torch.bfloat16) * 0.05)(D, 3 * D)), 'wo': _w((lambda *s: torch.randn(*s, dtype=torch.bfloat16) * 0.05)(D, D))}
    _A_in = _A_setup()

    def _B_setup():
        B, S, D, F = (1, 2048, 1024, 3584)
        return {'x': _w((lambda *s: torch.randn(*s, dtype=torch.bfloat16) * 0.05)(B, S, D)), 'w_gate': _w((lambda *s: torch.randn(*s, dtype=torch.bfloat16) * 0.05)(D, F)), 'w_up': _w((lambda *s: torch.randn(*s, dtype=torch.bfloat16) * 0.05)(D, F)), 'w_down': _w((lambda *s: torch.randn(*s, dtype=torch.bfloat16) * 0.05)(F, D))}
    _B_in = _B_setup()
    return {'A_x': _A_in['x'], 'A_wqkv': _A_in['wqkv'], 'A_wo': _A_in['wo'], 'B_x': _B_in['x'], 'B_w_gate': _B_in['w_gate'], 'B_w_up': _B_in['w_up'], 'B_w_down': _B_in['w_down'], 'c': _w((lambda *s: torch.randn(*s, dtype=torch.bfloat16) * 0.1)(1, 1024) * 8.0), 'w_mod': _w((lambda *s: torch.randn(*s, dtype=torch.bfloat16) * 0.1)(1024, 6 * 1024) * 1024 ** (-0.5) * 8.0)}

def reference(A_x, A_wqkv, A_wo, B_x, B_w_gate, B_w_up, B_w_down, c, w_mod):

    def _A_ref(x, wqkv, wo):
        B, S, D = x.shape
        H = 32
        Dh = D // H
        W, dil = (8, 2)
        qkv = (lambda x, *d: x.permute(*d))((x @ wqkv).reshape(B, S, 3, H, Dh), 2, 0, 3, 1, 4)
        q, k, v = (qkv[0], qkv[1], qkv[2])
        scale = Dh ** (-0.5)
        pos = torch.arange(S)
        off = torch.arange(W) * dil
        idx = pos[:, None] - off[None, :]
        mask = idx >= 0
        idx_c = torch.where(mask, idx, 0).reshape(-1)
        kg = k[:, :, idx_c, :].reshape(B, H, S, W, Dh)
        vg = v[:, :, idx_c, :].reshape(B, H, S, W, Dh)
        logits = torch.einsum('bhsd,bhswd->bhsw', q, kg) * scale
        logits = torch.where(mask[None, None, :, :], logits, -1000000000.0)
        attn = _softmax(logits, axis=-1)
        o = torch.einsum('bhsw,bhswd->bhsd', attn, vg)
        return (lambda x, *d: x.permute(*d))(o, 0, 2, 1, 3).reshape(B, S, D) @ wo

    def _B_ref(x, w_gate, w_up, w_down):
        g = _silu(x @ w_gate)
        u = x @ w_up
        return g * u @ w_down
    x = A_x
    mod = (_silu(c) @ w_mod).reshape(c.shape[0], 6, 1, -1)
    sa, ca, ga, sb, cb, gb = (mod[:, 0].clone(), mod[:, 1].clone(), mod[:, 2].clone(), mod[:, 3].clone(), mod[:, 4].clone(), mod[:, 5].clone())
    h = _layernorm(x, axis=-1) * (1 + ca) + sa
    x = x + ga * _A_ref(h, A_wqkv, A_wo)
    h = _layernorm(x, axis=-1) * (1 + cb) + sb
    x = x + gb * _B_ref(h, B_w_gate, B_w_up, B_w_down)
    return x
```

```python
class Regs:
    def __init__(self, prefix, start, limit):
        self.prefix, self.next, self.limit = prefix, start, limit
        self.names = {}
    def alloc(self, name, n=1, align=1):
        a = self.next
        a = (a + align - 1) // align * align
        assert a + n <= self.limit, f'out of {self.prefix} regs allocating {name} ({a}+{n})'
        self.next = a + n
        self.names[name] = (a, n)
        return a

AOFF = 1000
def vr(a, n=1):
    c = 'v'
    if a >= AOFF:
        c, a = 'a', a - AOFF
    return f'{c}{a}' if n == 1 else f'{c}[{a}:{a+n-1}]'
def sr(a, n=1):
    return f's{a}' if n == 1 else f's[{a}:{a+n-1}]'

class Prog:
    def __init__(self):
        self.items = []
    def ins(self, text):
        for t in text.split('\n'):
            t = t.strip()
            if t:
                self.items.append(('ins', t))
    def vm(self, text, tag=None):
        self.items.append(('vm', text, tag))
    def lg(self, text, tag=None):
        self.items.append(('lg', text, tag))
    def wait(self, vm=None, lg=None):
        self.items.append(['wait', vm, lg, None, None])
    def check_issued(self, tag):
        self.items.append(('chk', tag))
    def label(self, name):
        self.items.append(('label', name))
    def loop_begin(self, name, n):
        self.items.append(('lb', name, n))
    def loop_end(self, text):
        self.items.append(('le', text))

    @staticmethod
    def _ev(tag, it):
        return tag(it) if callable(tag) else tag

    def resolve(self):
        vmq, lgq = [], []
        vmpos, lgpos = {}, {}
        def need(spec, it, q, pos):
            if spec is None:
                return None
            if spec == 'all':
                return 0
            spec = self._ev(spec, it)
            latest = -1
            for t in spec:
                t = self._ev(t, it)
                if t is None:
                    continue
                assert t in pos, f'wait on never-issued tag {t}'
                latest = max(latest, pos[t])
            if latest < 0:
                return None
            return len(q) - 1 - latest
        def run(items, it):
            for x in items:
                k = x[0]
                if k == 'vm':
                    t = self._ev(x[2], it); vmq.append(t)
                    if t is not None: vmpos[t] = len(vmq) - 1
                elif k == 'lg':
                    t = self._ev(x[2], it); lgq.append(t)
                    if t is not None: lgpos[t] = len(lgq) - 1
                elif k == 'vmark':
                    vmpos[x[1]] = len(vmq) - 1
                elif k == 'chk':
                    assert self._ev(x[1], it) in vmpos, ('not issued yet', self._ev(x[1], it))
                elif k == 'wait':
                    a = need(x[1], it, vmq, vmpos); b = need(x[2], it, lgq, lgpos)
                    if a is not None: x[3] = a if x[3] is None else min(x[3], a)
                    if b is not None: x[4] = b if x[4] is None else min(x[4], b)
                    if hasattr(self, 'trace'):
                        self.trace.append((id(x), it, a, b))
        i = 0
        n = len(self.items)
        while i < n:
            x = self.items[i]
            if x[0] == 'lb':
                j = i + 1
                while self.items[j][0] != 'le':
                    j += 1
                for it in range(x[2]):
                    run(self.items[i+1:j], it)
                i = j + 1
            else:
                run([x], 0)
                i += 1

    def text(self):
        self.resolve()
        out = []
        for x in self.items:
            k = x[0]
            if k == 'ins': out.append('  ' + x[1])
            elif k in ('vm', 'lg'): out.append('  ' + x[1])
            elif k == 'label': out.append(x[1] + ':')
            elif k == 'lb': out.append(x[1] + ':')
            elif k == 'le': out.append('\n'.join('  ' + t.strip() for t in x[1].split('\n') if t.strip()))
            elif k == 'wait':
                parts = []
                if x[3] is not None: parts.append(f'vmcnt({min(x[3], 63)})')
                if x[4] is not None: parts.append(f'lgkmcnt({min(x[4], 15)})')
                if parts: out.append('  s_waitcnt ' + ' '.join(parts))
        return '\n'.join(out) + '\n'

def kdesc(name, nvgpr, nsgpr, accum=None):
    if accum is None:
        accum = (nvgpr + 3) // 4 * 4
    return f'''.p2align 6
.amdhsa_kernel {name}
  .amdhsa_next_free_vgpr {nvgpr}
  .amdhsa_next_free_sgpr {nsgpr}
  .amdhsa_accum_offset {accum}
  .amdhsa_group_segment_fixed_size 0
  .amdhsa_kernarg_size 96
  .amdhsa_user_sgpr_count 2
  .amdhsa_user_sgpr_kernarg_segment_ptr 1
  .amdhsa_system_sgpr_workgroup_id_x 1
  .amdhsa_float_denorm_mode_32 3
.end_amdhsa_kernel
'''
```

```python
import re
from asmlib import *
MFMA = 'v_mfma_f32_16x16x32_bf16'
A0 = AOFF

def regs(tok):
    tok = tok.strip().lstrip('-')
    m = re.fullmatch(r'([vsa])(\d+)', tok)
    if m: return {(m.group(1), int(m.group(2)))}
    m = re.fullmatch(r'([vsa])\[(\d+):(\d+)\]', tok)
    if m: return {(m.group(1), i) for i in range(int(m.group(2)), int(m.group(3)) + 1)}
    if tok == 'vcc': return {('s', 106), ('s', 107)}
    if tok == 'vcc_lo': return {('s', 106)}
    if tok == 'vcc_hi': return {('s', 107)}
    if tok == 'm0': return {('m', 0)}
    if tok in ('exec', 'exec_lo', 'exec_hi'): return {('e', 0)}
    return set()
TRANS = ('v_exp_f32', 'v_rcp_f32', 'v_sqrt_f32', 'v_rsq_f32', 'v_log_f32')
_pc = {}
def parse(line):
    if line in _pc: return _pc[line]
    I = _parse(line); _pc[line] = I
    return I
def _parse(line):
    line = line.split(';')[0].strip()
    if not line or line.endswith(':') or line.startswith('.'): return None
    op, _, rest = line.partition(' ')
    ops = [o.strip() for o in re.split(r',(?![^\[]*\])', rest)] if rest else []
    if ops:
        last = ops[-1].split(' ')
        ops[-1] = last[0]; mods = last[1:]
    else: mods = []
    I = dict(op=op, txt=line, w=set(), r=set(), kind='other', mods=mods)
    R = [regs(o) for o in ops]
    U = lambda x: set().union(*x) if x else set()
    if op.startswith('v_mfma'):
        I.update(kind='mfma', w=R[0], a=R[1] | R[2], c=R[3], r=R[1] | R[2] | R[3])
    elif op.startswith('v_'):
        I['kind'] = 'valu'
        if op.startswith('v_cmp'): I['w'] = R[0]; I['r'] = U(R[1:])
        elif op.startswith('v_permlane'): I['w'] = R[0] | R[1]; I['r'] = R[0] | R[1]
        elif op in ('v_add_co_u32', 'v_addc_co_u32'): I['w'] = R[0] | R[1]; I['r'] = U(R[2:])
        else:
            I['w'] = R[0]; I['r'] = U(R[1:])
            if op.startswith('v_fmac') or op.startswith('v_writelane') or op.startswith('v_dot2c') or 'dpp' in op: I['r'] |= R[0]
    elif op.startswith('buffer_') or op.startswith('global_'):
        I['kind'] = 'vmem'
        lds = 'lds' in mods
        I['lds'] = lds
        if 'store' in op or 'atomic' in op:
            I['r'] = U(R); I['data'] = R[0] if op.startswith('buffer_') else R[1]
            I['wide'] = 'x4' in op or 'x3' in op
        elif lds: I['r'] = U(R) | {('m', 0)}
        else: I['w'] = R[0]; I['r'] = U(R[1:])
    elif op.startswith('ds_'):
        I['kind'] = 'ds'
        if 'read' in op: I['w'] = R[0]; I['r'] = R[1]
        else: I['r'] = U(R)
    elif op.startswith('s_'):
        I['kind'] = 'salu'
        if op.startswith(('s_cmp', 's_bitcmp', 's_cbranch', 's_branch', 's_waitcnt', 's_barrier', 's_nop', 's_setprio', 's_endpgm', 's_sleep')):
            I['r'] = U(R)
            if op in ('s_cbranch_vccz', 's_cbranch_vccnz'): I['r'] = regs('vcc')
        else:
            I['w'] = R[0] if R else set(); I['r'] = U(R[1:])
    I['ws'] = int(ops[0]) + 1 if op == 's_nop' else 1
    return I

def need(p, c):
    n = 0
    vw = {x for x in p['w'] if x[0] in 'va'}; sw = {x for x in p['w'] if x[0] == 's'}
    if p['kind'] == 'valu':
        if c['kind'] == 'mfma' and vw & c['r']: n = 2
        if c['kind'] == 'valu' and (c['op'].startswith('v_permlane') or 'dpp' in c['op']) and vw & c['r']: n = 2
        if c['op'].startswith(('v_readfirstlane', 'v_readlane')) and vw & c['r']: n = max(n, 1)
        if p['op'] in TRANS and c['kind'] in ('valu',) and c['op'] not in TRANS and vw & c['r']: n = max(n, 1)
        if p['op'].startswith('v_dot2') and c['kind'] in ('valu', 'vmem', 'ds', 'mfma') and c['op'] != p['op'] and vw & (c['r'] | c['w']): n = max(n, 3)
        if sw & c['r']:
            if c['kind'] == 'valu': n = max(n, 4 if c['op'].startswith(('v_readlane', 'v_writelane')) else 2)
            if c['kind'] == 'vmem': n = 5
            if c['kind'] == 'salu': n = max(n, 5 if c['op'].startswith('s_cbranch_vcc') else 1)
    if p['kind'] == 'mfma':
        if c['kind'] == 'mfma':
            if p['w'] & c['a']: n = 8
            elif p['w'] & c['c'] and p['w'] != c['c']: n = 6
            elif p['w'] & c['w'] and p['w'] != c['c']: n = 6
        elif c['kind'] in ('valu', 'vmem', 'ds') and p['w'] & (c['r'] | c['w']): n = 8
        if c['kind'] == 'valu' and p['c'] & c['w']: n = max(n, 3)
    if p['kind'] == 'salu' and ('m', 0) in p['w'] and c['kind'] == 'vmem' and c.get('lds'): n = 1
    if p['kind'] == 'vmem' and p.get('wide') and p['data'] & c['w']: n = 2 if c['kind'] in ('valu', 'mfma') else 1
    return n

def fix_hazards(lines, report=None):
    out = []
    hist = [[]]
    pend = {}
    nins = 0
    for l in lines:
        s = l.strip()
        if s.endswith(':') and not s.startswith(';'):
            hist = hist + pend.pop(s[:-1], [])
            out.append(l); continue
        c = parse(l)
        if c is None:
            out.append(l); continue
        short = 0
        for h in hist:
            d = 0
            for p in reversed(h):
                short = max(short, need(p, c) - d)
                d += p['ws']
                if d >= 8: break
        if short > 0:
            nop = f'  s_nop {short - 1}'
            out.append(nop); nins += short
            if report is not None: report.append((short, s))
            for h in hist: h.append(parse(nop))
        out.append(l)
        for h in hist: h.append(c)
        hist = [h[-9:] for h in hist]
        if len(hist) > 1:
            k = {}
            for h in hist: k[tuple(x['txt'] for x in h)] = h
            hist = list(k.values())
        if c['op'].startswith('s_cbranch') or c['op'] == 's_branch':
            t = s.split()[-1]
            pend.setdefault(t, []).extend([list(h) for h in hist])
            if c['op'] == 's_branch': hist = [[]]
    return out, nins

class Prog2(Prog):
    def vm(self, text, tag=None, w=None, priv=False, grp=None):
        self.items.append(('vm', text, tag, None, w, priv, grp))
    def lg(self, text, tag=None, r=None, w=None, priv=False):
        self.items.append(('lg', text, tag, r, w, priv))
    def bar(self):
        self.ins('s_barrier')
    def T(self, name):
        self.ins(f';@T {name}')
    chains = None
    def check_chains(self):
        errs = []; own = {}; last = {}
        for i, x in enumerate(self.items):
            if x[0] not in ('ins', 'vm', 'lg'): continue
            I = parse(x[1])
            if I is None: continue
            c = (self.chains or {}).get(i)
            R = set(I['r'])
            if I['op'].startswith(('s_cselect', 's_cbranch_scc', 's_addc')): R.add(('c', 0))
            Wr = set(I['w'])
            if I['kind'] == 'salu' and not I['op'].startswith(('s_mov', 's_mul', 's_cselect', 's_cbranch', 's_branch', 's_wait', 's_barrier', 's_nop', 's_load', 's_getpc', 's_bfm')): Wr.add(('c', 0))
            if c is not None:
                for r in R:
                    if (c, r) in own and last[r] != c: errs.append(f'chain {c}: {r} of [{x[1]}] was overwritten by chain {last[r]}')
            if x[1].endswith('; M') and I['c']: continue
            for r in Wr:
                last[r] = c
                if c is not None: own[(c, r)] = i
        return errs
    def events(self):
        ev = []; q = {'vm': [], 'lg': []}; ep = 0
        pendreg = {}; lastw = {}
        errs = []
        def retire(k, n, i):
            while len(q[k]) > n:
                o = q[k].pop(0)
                for e in o['ev']: e[5] = ep; e[7] = i
                for r in o['w']:
                    if pendreg.get(r) is o: del pendreg[r]
        for i, x in enumerate(self.items):
            k = x[0]
            if k == 'wait':
                if len(x) > 5: continue
                if x[3] is not None: retire('vm', min(x[3], 63), i)
                if x[4] is not None: retire('lg', min(x[4], 15), i)
                continue
            if k not in ('ins', 'vm', 'lg'): continue
            I = parse(x[1])
            if I is None or (k == 'ins' and '; cond' in x[1]): continue
            if I['op'] == 's_waitcnt':
                if 'cond' in x[1]: continue
                m = re.search(r'vmcnt\((\d+)\)', x[1]);  m and retire('vm', int(m.group(1)), i)
                m = re.search(r'lgkmcnt\((\d+)\)', x[1]); m and retire('lg', int(m.group(1)), i)
                continue
            if I['op'] == 's_barrier': ep += 1; continue
            for r in (I['r'] | I['w']):
                if r in pendreg and not (k in ('vm', 'lg') and r in I['w'] and r not in I['r'] and 'dummy' in str(x[2])):
                    errs.append(f'register {r} still pending from [{pendreg[r]["t"]}] at [{x[1]}]')
            if x[1].endswith('; M'):
                for r in I['a']:
                    t = lastw.get(r)
                    if not (isinstance(t, tuple) and t[0] in ('W', 'w', 'wo', 'A')): errs.append(f'operand {r} of [{x[1]}] last written by {t}')
                for r in I['c']:
                    if lastw.get(r) not in ('M', 'v_fmac_f32'): errs.append(f'accumulator {r} of [{x[1]}] last written by {lastw.get(r)}')
            for r in I['w']: lastw[r] = x[2] if k in ('vm', 'lg') else 'M' if x[1].endswith('; M') else I['op']
            if k in ('vm', 'lg'):
                o = dict(ev=[], w=I['w'], t=x[1])
                if len(x) > 3:
                    for kind, rg in (('r', x[3]), ('w', x[4])):
                        if rg:
                            e = [kind, rg[0], rg[1], x[5], ep, None, i, None, x[1], k, x[6] if len(x) > 6 else None]; o['ev'].append(e); ev.append(e)
                for r in I['w']: pendreg[r] = o
                q[k].append(o)
        return ev, errs, ep

def check_lds(evs):
    errs = []
    for pa, A in enumerate(evs):
        for pb, B in enumerate(evs):
            for b in B:
                for a in A:
                    if a is b or (a[0] == 'r' and b[0] == 'r'): continue
                    if a[2] <= b[1] or b[2] <= a[1]: continue
                    if a[3] and b[3]:
                        if pa == pb and a[6] < b[6] and (a[9] == 'vm' or b[9] == 'vm') and not (a[7] is not None and a[7] < b[6]):
                            errs.append(f'private LDS order [{a[8]}] -> [{b[8]}]')
                        continue
                    ok = (a[5] is not None and a[5] < b[4]) or (b[5] is not None and b[5] < a[4])
                    if not ok and a[0] == 'w' and b[0] == 'w' and a[10] is not None and a[10] == b[10]: ok = True
                    if not ok and (pa, a[6]) < (pb, b[6]):
                        errs.append(f'LDS race {a[0]}[{a[1]},{a[2]}) ep {a[4]}..{a[5]} [{a[8]}]  vs {b[0]}[{b[1]},{b[2]}) ep {b[4]}..{b[5]} [{b[8]}]')
    return errs

def cost_of(o):
    if isinstance(o, str):
        return sum(2 if t.strip().split(' ')[0] in TRANS else 1 for t in o.split('\n') if t.strip() and not t.strip().startswith(';'))
    return getattr(o, 'cost', 1)
def op(f, cost=1):
    f.cost = cost
    return f

class Stream:
    def __init__(self, p):
        self.p = p
        self.m = []
        self.pre = {}
        self.post = {}
        self.end = {}
        self.load = {}
        self.touched = set()
    def n(self): return len(self.m)
    def mfma(self, c, a, b, zero=None):
        if zero is None:
            zero = c not in self.touched
        self.touched.add(c)
        self.m.append(f'{MFMA} {vr(c,4)}, {vr(a,4)}, {vr(b,4)}, {0 if zero else vr(c,4)} ; M')
        return len(self.m) - 1
    def before(self, i, o):
        self.pre.setdefault(i, []).append(o); self.load[i - 1] = self.load.get(i - 1, 0) + cost_of(o)
    def at(self, i, o):
        self.post.setdefault(i, []).append(o); self.load[i] = self.load.get(i, 0) + cost_of(o)
    def last(self, i, o):
        self.end.setdefault(i, []).append(o); self.load[i] = self.load.get(i, 0) + cost_of(o)
    nchain = [0]
    def chain(self, ops):
        self.nchain[0] += 1; c = self.nchain[0]; p = self.p
        def wrap(o):
            def f():
                a = len(p.items)
                p.ins(o) if isinstance(o, str) else o()
                if p.chains is None: p.chains = {}
                for j in range(a, len(p.items)): p.chains[j] = c
            f.cost = cost_of(o)
            return f
        return [o if isinstance(o, tuple) else wrap(o) for o in ops]
    def fill(self, ops, start, cap=2, stop=None):
        i = start
        stop = stop if stop is not None else len(self.m) - 1
        ops = self.chain(ops)
        for o in ops:
            if isinstance(o, tuple):
                if o[0] == 'gap': i += o[1]
                elif o[0] == 'from': i = max(i, o[1])
                elif o[0] == 'cap': cap = o[1]
                continue
            c = cost_of(o)
            L = lambda j: self.load.get(j, 0)
            while i < stop and not (L(i) + c <= cap or (c > 1 and L(i) < cap and L(i) + L(i - 1) + min(c, 2) <= 2 * cap)): i += 1
            i = min(i, stop)
            self.at(i, o)
        return i
    def fit(self, ops, start, stop):
        tot = sum(cost_of(o) for o in ops if not isinstance(o, tuple)) + sum(self.load.get(i, 0) for i in range(start, stop + 1))
        avg = max(2.0, tot / (stop + 1 - start))
        i = start; budget = 0.0; ops = self.chain(ops)
        while ops:
            if i <= stop: budget = min(budget, 1.0) + avg - self.load.get(i, 0)
            while ops and not isinstance(ops[0], tuple) and (min(cost_of(ops[0]), 2) <= budget + 0.5 or i >= stop):
                o = ops.pop(0); budget -= cost_of(o); self.at(min(i, stop), o)
            if ops and isinstance(ops[0], tuple):
                o = ops.pop(0)
                if o[0] == 'gap': i += o[1]
                elif o[0] == 'from': i = max(i + 1, o[1])
                continue
            i += 1
        return min(i, stop)
    def vmem(self, ops, gap, start=0):
        pend = sorted(ops, key=lambda o: (o['dl'], o['e']))
        t = float(start); lastu = None
        while pend:
            i = int(t + 0.999)
            av = [o for o in pend if o['e'] <= i]
            if not av:
                t = min(o['e'] for o in pend); continue
            if i + 1 >= len(self.m):
                assert all(o['dl'] >= len(self.m) for o in pend), 'vmem op after the end of the stream'
                return pend
            same = [x for x in av if x['id'] != 'x' and isinstance(x['id'][0], tuple) and x['id'][0] == lastu]
            o = same[0] if same else av[0]; pend.remove(o)
            if o['id'] != 'x': lastu = o['id'][0]
            assert i + 1 <= o['dl'], ('vmem op misses its deadline', i, o)
            o['t'] = i
            pm = self.chain([x for x in (o.get('pre'), o['main']) if x])
            if len(pm) > 1: self.at(i, pm[0])
            self.at(i + 1, pm[-1])
            t = max(t, i - 0.999) + max(gap(i) * o.get('wt', 1), 1)
        return []
    def emit(self, a=0, b=None):
        p = self.p
        def run(o): p.ins(o) if isinstance(o, str) else o()
        for i in range(a, len(self.m) if b is None else b):
            for o in self.pre.get(i, []): run(o)
            p.ins(self.m[i])
            for o in self.post.get(i, []): run(o)
            for o in self.end.get(i, []): run(o)
```

```python
from asmlib import *

MFMA = 'v_mfma_f32_16x16x32_bf16'

class Gemm:
    def __init__(self, p, V, S, name, NW, KS, WM, K, BK, NS, D, R, DAS, ldw, RB, segs, tiles, nareg, scheme=1,
                 lds_base=0, P=0, spread=0.75, prio=True, ramp=2, wflags='', aflags='', amode='dir', BM=0,
                 extra=(), alead=3, AG=None, pig=False, spig=0, amod=None):
        self.p, self.V, self.S, self.name = p, V, S, name
        self.NW, self.KS, self.WM, self.K, self.BK, self.NS, self.D, self.R, self.DAS = NW, KS, WM, K, BK, NS, D, R, DAS
        self.ldw, self.RB, self.segs, self.scheme = ldw, RB, segs, scheme
        self.wflags, self.aflags, self.amode, self.extra, self.alead = wflags, aflags, amode, list(extra), alead
        self.tiles, self.nareg = tiles, nareg
        self.KPS = BK // 32 // KS
        self.KB = BK // 32
        self.NT = len(tiles)
        self.F = self.KPS * self.NT
        self.nst = K // BK
        self.rpi = 1024 // RB
        self.nq = BK // self.rpi
        assert self.nq % NW == 0
        self.qpw = self.nq // NW
        self.segbytes = BK * RB
        self.a_off = self.segbytes * len(segs)
        self.a_bytes = (BM // 16) * self.KB * 1024 if amode == 'lds' else 0
        self.x_bytes = self.KB * 1024 if self.extra else 0
        self.stagebytes = self.a_off + self.a_bytes
        self.x_base = lds_base + NS * self.stagebytes
        self.lds_end = self.x_base + NS * self.x_bytes
        self.lds_base = lds_base
        self.U = NS
        self.npre = NS - 1 if scheme == 1 else NS
        assert self.nst % self.U == 0
        assert (self.U * self.F) % R == 0, (self.U, self.F, R)
        assert R >= D + 1
        self.nsets = (lds_base + NS * self.stagebytes + 65535) // 65536
        self.astep = self.KB * 1024
        self.kstep = BK * ldw
        self.dmas = [('W', si, jq) for si in range(len(segs)) for jq in range(self.qpw)]
        if amode == 'lds':
            na = self.a_bytes // 1024
            assert na % NW == 0
            self.apw = na // NW
            assert self.apw == self.KB, 'one m-block per wave'
            self.dmas += [('A', i, 0) for i in range(self.apw)]
            self.DA = 2
        else:
            assert (self.U % DAS) == 0
            self.DA = DAS * self.KPS
        if self.extra:
            assert self.x_bytes % (NW * 256) == 0
            self.dmas += [('X', i, 0) for i in range(self.x_bytes // (NW * 256))]
        self.PD = len(self.dmas)
        self.usesAsrc = amode == 'lds' or bool(self.extra)
        self.acc = V.alloc('acc', self.NT * WM * 4, 4)
        B = AG or V
        self.abuf = B.alloc('abuf', self.DA * WM * 4, 4)
        self.wbuf = B.alloc('wbuf', R * 4, 4)
        self.waddr = V.alloc('waddr', nareg * self.nsets)
        self.vdma = V.alloc('vdma', 1)
        if amode == 'dir':
            self.va = V.alloc('va', WM)
        else:
            self.va = V.alloc('va', 1)
            self.aaddr = V.alloc('aaddr', self.nsets)
        if self.extra:
            self.xacc = V.alloc('xacc', 4 * len(self.extra), 4)
            self.xbuf = V.alloc('xbuf', 8, 4)
            self.vx = V.alloc('vx', 1)
            self.xaddr = V.alloc('xaddr', 1)
            self.sWX = S.alloc('sWX')
        self.sK = S.alloc('sK'); self.sKn = S.alloc('sKn'); self.sWL = S.alloc('sWL')
        if amode == 'dir':
            self.sA = S.alloc('sA'); self.sAc = S.alloc('sAc')
        if self.usesAsrc:
            self.sB = S.alloc('sB'); self.sBn = S.alloc('sBn')
        if amode == 'lds':
            self.sWA = S.alloc('sWA')
        self.sT = S.alloc('sT'); self.sIt = S.alloc('sIt')
        self.P = P
        self.spread, self.prio, self.ramp = spread, prio, ramp
        if P:
            assert self.U % P == 0 and self.nst % P == 0
            self.sLead = S.alloc('sLead')
        self.amod = amod
        if amod:
            self.tab = V.alloc('tab', 16, 4); self.mtmp = V.alloc('mtmp', 4); self.vtab = V.alloc('vtab', 2)
            self.sCh = S.alloc('sCh', 4)
            if amod == 'norm':
                self.vstat = V.alloc('vstat', 2 * WM)
        self.pig = pig
        self.spig_skip = 1
        self.spig = spig
        if spig:
            self.sSB = S.alloc('spb', 2, 2); self.sSO = S.alloc('spo'); self.sSM = S.alloc('spm'); self.sSD = S.alloc('spd')
            self.spig_slots = [int((i + 0.5) * self.F / spig) for i in range(spig)]
        if pig:
            self.sPigSrd = S.alloc('pigsrd', 4, 4); self.sPig = S.alloc('pig'); self.sPig2 = S.alloc('pig2')
            self.vpig = V.alloc('vpig', 2)
        self.make_sched()

    def accr(self, t, m):
        return self.acc + (t * self.WM + m) * 4

    def ldsop(self, op, dst, n, areg0, nper, ai, off, tag):
        st, off = divmod(off, 65536)
        self.p.lg(f'{op} {vr(dst, n)}, {vr(areg0 + st * nper + ai)} offset:{off}', tag)

    def rd(self, u, f, h, tagbase):
        j, t = divmod(f, self.NT)
        ai, imm = self.tiles[t]
        buf = self.wbuf + ((u * self.F + f) % self.R) * 4
        off = self.lds_base + u * self.stagebytes + imm + (j * self.KS * 32 + 16 * h) * self.RB
        self.ldsop('ds_read_b64_tr_b16', buf + 2 * h, 2, self.waddr, self.nareg, ai, off, (lambda it: ('W', tagbase(it), h)))

    def rda(self, u, j, m, tagk):
        ring = (u * self.KPS + j) % self.DA
        buf = self.abuf + (ring * self.WM + m) * 4
        off = self.lds_base + u * self.stagebytes + self.a_off + (m * self.KB + j * self.KS) * 1024
        self.ldsop('ds_read_b128', buf, 4, self.aaddr, 1, 0, off, (lambda it: ('AL', tagk(it), m)))

    def rdx(self, u, j, tagk):
        ring = (u * self.KPS + j) % 2
        off = u * self.x_bytes + j * self.KS * 1024
        self.ldsop('ds_read_b128', self.xbuf + ring * 4, 4, self.xaddr, 1, 0, off, (lambda it: ('XL', tagk(it))))

    def dma(self, ts, n, tagstage):
        p = self.p
        base = self.lds_base + (ts % self.NS) * self.stagebytes
        kind, i, jq = self.dmas[n]
        tag = (lambda it: ('D', tagstage(it), n))
        if self.pig and n == 0 and (ts >= self.P or not self.in_ramp):
            p.ins(f's_cmp_eq_u32 {sr(self.sLead)}, {ts % self.P}')
            p.ins(f's_cselect_b32 {sr(self.sPig2)}, {sr(self.sPig)}, 0x40000000')
            p.ins(f's_cselect_b32 {sr(self.sT)}, {256 * 8192}, 0')
            p.vm(f'buffer_load_dword {vr(self.vpig + 1)}, {vr(self.vpig)}, {sr(self.sPigSrd, 4)}, {sr(self.sPig2)} offen')
            p.ins(f's_add_u32 {sr(self.sPig)}, {sr(self.sPig)}, {sr(self.sT)}')
        if kind == 'W':
            s = self.segs[i]
            goff = s['col'] + jq * self.NW * self.rpi * self.ldw
            p.ins(f's_add_u32 m0, {sr(self.sWL)}, {base + i * self.segbytes + jq * self.NW * 1024}')
            if goff:
                p.ins(f's_add_u32 {sr(self.sT)}, {sr(self.sK)}, {goff}')
                so = self.sT
            else:
                p.ins('s_nop 0')
                so = self.sK
            p.vm(f'buffer_load_dwordx4 {vr(self.vdma)}, {sr(s["srd"], 4)}, {sr(so)} offen {self.wflags} lds', tag)
        elif kind == 'A':
            p.ins(f's_add_u32 m0, {sr(self.sWA)}, {base + self.a_off}')
            p.ins('s_nop 0')
            o = f'offset:{i * 1024} ' if i else ''
            p.vm(f'buffer_load_dwordx4 {vr(self.va)}, {sr(self.srdA, 4)}, {sr(self.sB)} offen {o}{self.aflags} lds', tag)
        else:
            p.ins(f's_add_u32 m0, {sr(self.sWX)}, {self.x_base + (ts % self.NS) * self.x_bytes}')
            p.ins('s_nop 0')
            o = f'offset:{i * self.NW * 256} ' if i else ''
            p.vm(f'buffer_load_dword {vr(self.vx)}, {sr(self.srdA, 4)}, {sr(self.sB)} offen {o}{self.aflags} lds', tag)
        lastW = max(i2 for i2, d in enumerate(self.dmas) if d[0] == 'W')
        if n == lastW:
            self.adv(self.sKn, self.sK, self.kstep, ts + 1)
        if self.usesAsrc and n == self.PD - 1:
            self.adv(self.sBn, self.sB, self.astep, ts + 1)

    def lda(self, ts, j, m, tagstage):
        ring = (ts * self.KPS + j) % self.DA
        buf = self.abuf + (ring * self.WM + m) * 4
        off = j * self.KS * 1024
        o = f' offset:{off}' if off else ''
        if self.amod and j == 0 and m == 0:
            self.p.ins(f's_bfe_u32 {sr(self.sCh + ts % 4)}, {sr(self.sAc)}, 0xd0002')
        self.p.vm(f'buffer_load_dwordx4 {vr(buf, 4)}, {vr(self.va + m)}, {sr(self.srdA, 4)}, {sr(self.sAc)} offen{o} {self.aflags}',
                  (lambda it: ('A', tagstage(it) * self.KPS + j, m)))
        if j == self.KPS - 1 and m == self.WM - 1:
            self.adv(self.sA, self.sAc, self.astep, ts + 1)

    def adv(self, sn, sc, step, t):
        self.p.ins(f's_add_u32 {sr(sn)}, {sr(sn)}, {step}')
        self.cur(sn, sc, step, t)

    def cur(self, sn, sc, step, t):
        p = self.p
        tot = self.nst * step
        if self.P:
            T = self.sT
            p.ins(f's_cmp_eq_u32 {sr(self.sLead)}, {t % self.P}')
            p.ins(f's_cselect_b32 {sr(T)}, {self.P * step}, 0')
            p.ins(f's_add_u32 {sr(sc)}, {sr(sn)}, {sr(T)}')
            p.ins(f's_cmp_ge_u32 {sr(sc)}, {tot}')
            p.ins(f's_cselect_b32 {sr(T)}, {tot}, 0')
            p.ins(f's_sub_u32 {sr(sc)}, {sr(sc)}, {sr(T)}')
            p.ins(f's_cmp_lt_u32 {sr(sn)}, {tot}')
            p.ins(f's_cselect_b32 {sr(sc)}, {sr(sc)}, 0x40000000')
        else:
            p.ins(f's_cmp_lt_u32 {sr(sn)}, {tot}')
            p.ins(f's_cselect_b32 {sr(sc)}, {sr(sn)}, 0x40000000')

    def make_sched(self):
        F, D, NT, WM, KPS, U = self.F, self.D, self.NT, self.WM, self.KPS, self.U
        dirA = self.amode == 'dir'
        b = F - max(D, self.alead if (not dirA or self.extra) else 0)
        self.bslot = b
        nops = self.PD + (KPS * WM if dirA else 0)
        span = max(1.0, self.spread * F)
        pos = [int(i * span / nops) for i in range(nops)]
        def oplist(S):
            o = [(S * F + b + 1, 1, 'D', n, S + self.npre) for n in range(self.PD)]
            if dirA:
                o += [(S * F + (j + 1) * NT, 0, 'A', (j, m), S + self.DAS) for j in range(KPS) for m in range(WM)]
            return o
        NP = U + 4
        pend = sorted(sum((oplist(S) for S in range(NP)), []), key=lambda o: (o[0], o[1]))
        done = {}
        for S in range(-1, NP):
            for r in pos:
                tabs = S * F + b + 1 + r
                av = sorted((o for o in pend if o[0] <= tabs), key=lambda o: (o[1], o[0]))
                if av:
                    pend.remove(av[0]); done[av[0][2:]] = tabs
        self.sched = {}
        items = []
        for o in oplist(2):
            k, idx, ts = o[2:]
            tabs = done[(k, idx, ts)]
            assert done[(k, idx, ts + 1)] == tabs + F, 'schedule not periodic'
            cs, f = divmod(tabs, F)
            items.append((tabs, k, idx, ts - cs, f))
        for tabs, k, idx, dts, f in sorted(items, key=lambda x: (x[0], x[1], x[2])):
            self.sched.setdefault(f, []).append((k, idx, dts))
        st_time = {(k, idx): (f, dts) for f, l in self.sched.items() for (k, idx, dts) in l}
        self.pre_ops = [('D', n, 0) for n in range(self.PD)]
        if dirA:
            self.pre_ops += [('A', (0, m), 0) for m in range(WM)]
            if self.amod:
                a1, b1 = divmod(1, KPS)
                self.pre_ops += [('A', (b1, m), a1) for m in range(WM)]
        todo = []
        for ts in range(0, U + max(self.npre, self.DAS) + 2):
            for n in range(self.PD):
                f, dts = st_time[('D', n)]
                tst = (ts - dts) * F + f
                if tst < U * F and ('D', n, ts) not in self.pre_ops:
                    earliest = 0 if ts < self.npre else tst
                    todo.append(dict(k='D', idx=n, ts=ts, e=earliest, dl=(ts - 1) * F + b, ord=(ts, n)))
            if dirA:
                for j in range(KPS):
                    for m in range(WM):
                        f, dts = st_time[('A', (j, m))]
                        tst = (ts - dts) * F + f
                        if tst < U * F and ('A', (j, m), ts) not in self.pre_ops:
                            earliest = 0 if ts < self.DAS else tst
                            todo.append(dict(k='A', idx=(j, m), ts=ts, e=earliest, dl=ts * F + j * NT - (2 * NT - NT // 2 + 2 if self.amod else 0), ord=(ts, j, m)))
        ramp = self.ramp
        while True:
            qs = {k: sorted((o for o in todo if o['k'] == k), key=lambda o: o['ord']) for k in 'DA'}
            self.rsched = {}
            nextok = 0.0
            ok = True
            for tabs in range(U * F):
                while tabs >= nextok - 1e-9:
                    c = [q[0] for q in qs.values() if q and q[0]['e'] <= tabs]
                    if not c:
                        break
                    o = min(c, key=lambda o: o['dl'])
                    if not (tabs < o['dl'] or (o['k'] == 'D' and tabs <= o['dl'])):
                        ok = False
                    qs[o['k']].pop(0)
                    self.rsched.setdefault(tabs, []).append((o['k'], o['idx'], o['ts']))
                    nextok = max(nextok, tabs - 0.999) + ramp
            if ok and not qs['D'] and not qs['A']:
                break
            ramp *= 0.9
            assert ramp > 0.05
        self.ramp_used = ramp

    def tabrd(self, ts, j, h, tagk):
        ops = []
        if j == 0 and h == 0:
            ops.append(lambda: (self.p.check_issued(lambda it: ('A', tagk(it), 0)),
                                self.p.ins(f'v_add_u32 {vr(self.vtab + 1)}, {sr(self.sCh + ts % 4)}, {vr(self.vtab)}')))
        for q in range(2):
            ops.append(lambda q=q: self.p.lg(f'ds_read_b128 {vr(self.tab + 8 * q + 4 * h, 4)}, {vr(self.vtab + 1)} offset:{j * self.KS * 256 + 32 * q + 16 * h}',
                                             (lambda it: ('T', tagk(it), h, q))))
        return ops

    def mod_half(self, buf, h, m):
        t, c, s_ = self.mtmp, self.tab + 4 * h, self.tab + 8 + 4 * h
        L = []
        for d in range(2):
            L += [f'v_lshlrev_b32 {vr(t + 2 * d)}, 16, {vr(buf + 2 * h + d)}', f'v_and_b32 {vr(t + 2 * d + 1)}, 0xffff0000, {vr(buf + 2 * h + d)}']
        if self.amod == 'norm':
            L += [f'v_fma_f32 {vr(t + e)}, {vr(t + e)}, {vr(self.vstat + 2 * m)}, {vr(self.vstat + 2 * m + 1)}' for e in range(4)]
        L += [f'v_fma_f32 {vr(t + e)}, {vr(t + e)}, {vr(c + e)}, {vr(s_ + e)}' for e in range(4)]
        L += [f'v_cvt_pk_bf16_f32 {vr(buf + 2 * h + d)}, {vr(t + 2 * d)}, {vr(t + 2 * d + 1)}' for d in range(2)]
        return L

    def mod_ops(self, ts, j, tagk, nts, nj, ntagk, xfirst):
        p = self.p
        ks = ts * self.KPS + j
        ops = []
        for h in range(2):
            ops.append(lambda h=h: p.wait(lg=[(lambda it: ('T', tagk(it), h, 0)), (lambda it: ('T', tagk(it), h, 1))],
                                          vm=((lambda it: [('A', tagk(it), m) for m in range(self.WM)]) if h == 0 else None)))
            for m in range(self.WM):
                buf = self.abuf + ((ks % self.DA) * self.WM + m) * 4
                ops += [(lambda i=i: p.ins(i)) for i in self.mod_half(buf, h, m)]
            if not self.extra:
                ops += self.tabrd(nts, nj, h, ntagk)
        if self.extra:
            ops.append('X')
            ops.append(lambda: p.wait(lg=[(lambda it: ('XL', tagk(it)))]))
            for h in range(2):
                ops += [(lambda i=i: p.ins(i)) for i in self.mod_half(self.xbuf + (ks % 2) * 4, h, 0)]
                ops += self.tabrd(nts, nj, h, ntagk)
        return ops

    def spig_op(self):
        p = self.p
        p.ins(f's_load_dword {sr(self.sSD)}, {sr(self.sSB, 2)}, {sr(self.sSO)}')
        p.ins(f's_add_u32 {sr(self.sSO)}, {sr(self.sSO)}, {getattr(self, "spig_stride", 2048 * 128)}')
        p.ins(f's_min_u32 {sr(self.sSO)}, {sr(self.sSO)}, {sr(self.sSM)}')

    def emit_op(self, k, idx, ts, tagstage):
        if k == 'D':
            self.dma(ts, idx, tagstage)
        else:
            self.lda(ts, idx[0], idx[1], tagstage)

    def prologue(self, srdA):
        p = self.p
        self.srdA = srdA
        self.in_ramp = True
        p.ins(f's_mov_b32 {sr(self.sKn)}, 0')
        self.cur(self.sKn, self.sK, self.kstep, 0)
        if self.amode == 'dir':
            p.ins(f's_mov_b32 {sr(self.sA)}, 0')
            self.cur(self.sA, self.sAc, self.astep, 0)
        if self.usesAsrc:
            p.ins(f's_mov_b32 {sr(self.sBn)}, 0')
            self.cur(self.sBn, self.sB, self.astep, 0)
        for k, idx, ts in self.pre_ops:
            self.emit_op(k, idx, ts, (lambda it, ts=ts: ts))

    def first_reads(self, pre_barrier=None):
        p = self.p
        if pre_barrier: pre_barrier()
        p.wait(vm=[('D', 0, n) for n in range(self.PD)], lg='all' if pre_barrier else None)
        p.ins('s_barrier')
        if self.amode == 'lds':
            for m in range(self.WM):
                self.rda(0, 0, m, (lambda it: 0))
        for f in range(self.D):
            for h in range(2):
                self.rd(0, f, h, (lambda it, f=f: f))
        if self.extra:
            self.rdx(0, 0, (lambda it: 0))
        if self.amod:
            for h in range(2):
                for o in self.tabrd(0, 0, h, (lambda it: 0)): o()
            n1 = divmod(1, self.KPS)
            for o in self.mod_ops(0, 0, (lambda it: 0), n1[0], n1[1], (lambda it: 1), True):
                if o != 'X': o()
            self.p.ins('s_nop 1')

    def stage(self, u, SI, peeled=False):
        p = self.p
        F, D, NT, WM, KPS = self.F, self.D, self.NT, self.WM, self.KPS
        bslot = self.bslot
        first = peeled and u == 0
        mods = {}
        if self.amod:
            for j in range(KPS):
                a1, b1 = divmod(j + 1, KPS); a2, b2 = divmod(j + 2, KPS)
                ops = self.mod_ops(u + a1, b1, (lambda it, j=j: SI(it) * KPS + j + 1), u + a2, b2, (lambda it, j=j: SI(it) * KPS + j + 2), False)
                if 'X' in ops:
                    xi = ops.index('X'); p1, p2 = ops[:xi], ops[xi + 1:]
                    x0 = NT - self.alead + 1
                    for i, o in enumerate(p1): mods.setdefault(j * NT + i * x0 // len(p1), []).append(o)
                    for i, o in enumerate(p2): mods.setdefault(j * NT + x0 + i * (NT - x0) // len(p2), []).append(o)
                else:
                    for i, o in enumerate(ops): mods.setdefault(j * NT + i * NT // len(ops), []).append(o)
        for f in range(F):
            j, t = divmod(f, NT)
            nf = f + D
            nu, nff = (u, nf) if nf < F else ((u + 1) % self.NS, nf - F)
            rds = [(lambda h=h, nu=nu, nff=nff, nf=nf: self.rd(nu, nff, h, (lambda it: SI(it) * F + nf))) for h in range(2)]
            nj = j + 1
            xu, xj = (u, nj) if nj < KPS else ((u + 1) % self.NS, 0)
            tagk = (lambda it, nj=nj: SI(it) * KPS + nj)
            lrd = []
            lst = []
            if self.amode == 'lds':
                lst += [(lambda m=m, xu=xu, xj=xj, tagk=tagk: self.rda(xu, xj, m, tagk)) for m in range(WM)]
            if self.extra:
                lst += [(lambda xu=xu, xj=xj, tagk=tagk: self.rdx(xu, xj, tagk))]
            for i, o in enumerate(lst):
                if t == min(NT - self.alead + i, NT - 1):
                    lrd.append(o)
            if peeled:
                ops = [(lambda o=o: self.emit_op(o[0], o[1], o[2], (lambda it: o[2]))) for o in self.rsched.get(u * F + f, [])]
            else:
                ops = [(lambda o=o: self.emit_op(o[0], o[1], u + o[2], (lambda it: SI(it) + o[2]))) for o in self.sched.get(f, [])]
            if self.spig and not (peeled and u < self.spig_skip):
                ops += [self.spig_op] * self.spig_slots.count(f)
            needs_vm = None
            lgn = [(lambda it, f=f: ('W', SI(it) * F + f, 0)), (lambda it, f=f: ('W', SI(it) * F + f, 1))]
            if t == 0:
                if self.amod:
                    pass
                elif self.amode == 'dir':
                    needs_vm = (lambda it, j=j: [('A', SI(it) * KPS + j, m) for m in range(WM)])
                else:
                    lgn += [(lambda it, j=j, m=m: ('AL', SI(it) * KPS + j, m)) for m in range(WM)]
            if t in self.extra and t == self.extra[0] and not self.amod:
                lgn += [(lambda it, j=j: ('XL', SI(it) * KPS + j))]
            p.wait(vm=needs_vm, lg=lgn)
            wb = self.wbuf + ((u * F + f) % self.R) * 4
            ring = (u * KPS + j) % self.DA
            mf = []
            for m in range(WM):
                ab = self.abuf + (ring * WM + m) * 4
                c = self.accr(t, m)
                mf.append((c, ab))
            if t in self.extra:
                mf.append((self.xacc + 4 * self.extra.index(t), self.xbuf + ((u * KPS + j) % 2) * 4))
            nm = len(mf)
            sh = [[] for _ in range(nm)]
            late = []
            lds_ops = rds + lrd
            if f == bslot:
                late = ([] if nf < F else rds) + (lrd if nj >= KPS else [])
                lds_ops = [o for o in lds_ops if o not in late]
            for i, o in enumerate(lds_ops):
                sh[i % nm].append(o)
            for i, o in enumerate(ops):
                sh[(nm - 1 - i) % nm if nm > 2 else i % nm].append(o)
            mo = mods.get(f, [])
            for i, o in enumerate(mo):
                sh[i * nm // len(mo)].append(o)
            if self.amod and t == NT - 1:
                sh[nm - 1].append(lambda: p.ins('s_nop 0'))
            if self.prio:
                rel = (f + 1 - bslot - 1) % F
                q, qp = rel * 4 // F, (rel - 1) * 4 // F
                if rel > 0 and q != qp:
                    sh[nm - 1].append(lambda q=q: p.ins(f's_setprio {3 - q}'))
            for i, (c, ab) in enumerate(mf):
                cin = '0' if (first and j == 0) else vr(c, 4)
                p.ins(f'{MFMA} {vr(c, 4)}, {vr(wb, 4)}, {vr(ab, 4)}, {cin}')
                for o in sh[i]:
                    o()
            if f == bslot:
                p.wait(vm=(lambda it: [('D', SI(it) + 1, n) for n in range(self.PD)]),
                       lg=('all' if self.scheme == 2 else None))
                p.ins('s_barrier')
                if self.prio:
                    p.ins('s_setprio 3')
                for o in late:
                    o()

    def tail_run(self, S0, final, pos_ops, bars, fillers, rate):
        p = self.p
        F, D, NT, WM, KPS = self.F, self.D, self.NT, self.WM, self.KPS
        nat = [(S, j, t) for S in range(S0, self.nst - 2) for j in range(KPS) for t in range(NT)]
        fr = nat + list(final)
        z = len(nat)
        seq0 = S0 * F
        vis = S0
        seenA, seenX = set(), set()
        fillers = list(fillers)
        def rd(i, h):
            S, j, t = fr[i]
            assert S <= vis, ('read before publish', i - z, S, vis)
            ai, imm = self.tiles[t]
            buf = self.wbuf + ((seq0 + i) % self.R) * 4
            off = self.lds_base + (S % self.NS) * self.stagebytes + imm + (j * self.KS * 32 + 16 * h) * self.RB
            self.ldsop('ds_read_b64_tr_b16', buf + 2 * h, 2, self.waddr, self.nareg, ai, off, ('W', seq0 + i, h))
        for i, (S, j, t) in enumerate(fr):
            pos = i - z
            ks = S * KPS + j
            lgn = [('W', seq0 + i, 0), ('W', seq0 + i, 1)]
            vmn = None
            if ks not in seenA:
                seenA.add(ks); vmn = [('A', ks, m) for m in range(WM)]
            if t in self.extra and ks not in seenX:
                seenX.add(ks); lgn.append(('XL', ks))
            p.wait(vm=vmn, lg=lgn)
            wb = self.wbuf + ((seq0 + i) % self.R) * 4
            mf = [(self.accr(t, m), self.abuf + ((ks % self.DA) * WM + m) * 4) for m in range(WM)]
            if t in self.extra:
                mf.append((self.xacc + 4 * self.extra.index(t), self.xbuf + (ks % 2) * 4))
            nm = len(mf)
            sh = [[] for _ in range(nm)]
            if i + D < len(fr):
                sh[0].append(lambda i=i: rd(i + D, 0)); sh[1 % nm].append(lambda i=i: rd(i + D, 1))
            ops = list(pos_ops.get(pos, []))
            Sn, f = divmod(seq0 + i, F)
            for k_, idx, dts in self.sched.get(f, []):
                if Sn + dts < self.nst:
                    ops.append(lambda k_=k_, idx=idx, ts=Sn + dts: self.emit_op(k_, idx, ts, (lambda it: ts)))
            if pos < 0:
                if self.spig:
                    ops += [self.spig_op] * self.spig_slots.count(f)
                if self.extra and t == NT - self.alead:
                    nk = ks + 1
                    assert nk // KPS <= vis
                    ops.append(lambda nk=nk: self.rdx((nk // KPS) % self.NS, nk % KPS, (lambda it: nk)))
                if self.prio:
                    rel = (f + 1 - self.bslot) % F
                    q, qp = rel * 4 // F, (rel - 1) * 4 // F
                    if rel > 0 and q != qp:
                        ops.append(lambda q=q: p.ins(f's_setprio {3 - q}'))
            for n_, o in enumerate(ops):
                sh[n_ % nm].append(o)
            n = 0
            while fillers and fillers[0][0] <= pos and n < (rate if pos >= 0 else 4):
                o = fillers.pop(0)[1]
                sh[n * nm // (rate if pos >= 0 else 4)].append((lambda o=o: p.ins(o)) if isinstance(o, str) else o)
                n += 1
            for n_, (c, ab) in enumerate(mf):
                p.ins(f'{MFMA} {vr(c, 4)}, {vr(wb, 4)}, {vr(ab, 4)}, {vr(c, 4)}')
                for o in sh[n_]:
                    o()
            if pos < 0 and f == self.bslot - 1:
                p.wait(vm=[('D', S + 1, n_) for n_ in range(self.PD)])
                p.ins('s_barrier')
                if self.prio: p.ins('s_setprio 3')
                vis = S + 1
            if pos in bars:
                r = bars[pos]()
                if r is not None: vis = r
        return fillers

    def mainloop(self, stamp=None, tail=None):
        p = self.p
        stamp = stamp or (lambda i: None)
        stamp(1)
        U = self.U
        nit = self.nst // U
        for u in range(U):
            self.stage(u, (lambda it, u=u: u), peeled=True)
        base = U
        nit -= 1
        self.in_ramp = False
        if tail: nit -= 1
        stamp(2)
        if nit > 0:
            p.ins(f's_mov_b32 {sr(self.sIt)}, {nit}')
            p.loop_begin(f'L_{self.name}_loop', nit)
            for u in range(U):
                self.stage(u, (lambda it, u=u: base + it * U + u))
            p.loop_end(f's_sub_u32 {sr(self.sIt)}, {sr(self.sIt)}, 1\ns_cmp_lg_u32 {sr(self.sIt)}, 0\ns_cbranch_scc1 L_{self.name}_loop')
        if tail:
            tail(self.nst - U)
        if self.prio:
            p.ins('s_setprio 0')
```

```python
from asmlib import *
MFMA = 'v_mfma_f32_16x16x32_bf16'

class Gemm2:
    def __init__(self, p, V, S, name, NW, KS, WM, K, BK, NS, D, R, DAS, ldw, RB, segs, tiles, nareg,
                 spread=0.75, ramp=2, extra=(), alead=3, pig_rounds=(), nprio=4, wgrp=2, lead0=True, wflags='', kgrp=1, split0=False, preloaded=0, prew=0, npre=None, aflags='', pre_n=0, small_first=False):
        self.p, self.V, self.S, self.name = p, V, S, name
        self.NW, self.KS, self.WM, self.K, self.BK, self.NS, self.D, self.R, self.DAS = NW, KS, WM, K, BK, NS, D, R, DAS
        self.ldw, self.RB, self.segs, self.tiles, self.nareg = ldw, RB, segs, tiles, nareg
        self.extra, self.alead, self.spread, self.ramp = list(extra), alead, spread, ramp
        self.pig_rounds, self.nprio, self.wgrp, self.lead0, self.wflags = pig_rounds, nprio, wgrp, lead0, wflags
        self.P = 4
        self.kgrp = kgrp
        self.pre_n = pre_n
        self.split0 = split0
        self.KPS = BK // 32 // KS; self.KB = BK // 32
        self.NT = len(tiles); self.F = self.KPS * self.NT; self.nst = K // BK
        self.rpi = 1024 // RB; self.nq = BK // self.rpi
        assert self.nq % NW == 0
        self.qpw = self.nq // NW
        self.segbytes = BK * RB
        self.stagebytes = self.segbytes * len(segs)
        self.x_bytes = self.KB * 1024 if extra else 0
        self.x_base = NS * self.stagebytes
        self.lds_end = self.x_base + NS * self.x_bytes
        self.npre = npre or NS - 1
        if isinstance(preloaded, int): preloaded, prew = set(range(preloaded)), list(range(preloaded, preloaded + prew))
        self.preloaded, self.prew, self.aflags = preloaded, prew, aflags
        assert R >= D + kgrp and (kgrp == 1 or (wgrp == 2 and kgrp == 2 and WM == 2 and self.KPS % 2 == 0))
        self.nsets = (NS * self.stagebytes + 65535) // 65536
        self.astep = self.KB * 1024; self.kstep = BK * ldw
        self.DA = DAS * self.KPS
        self.dmas = [('W', si, jq) for jq in range(self.qpw) for si in range(len(segs))]
        self.goffs = sorted(set(segs[si]['col'] + jq * NW * self.rpi * ldw for _, si, jq in self.dmas))
        if extra:
            assert self.x_bytes % (NW * 256) == 0
            self.dmas += [('X', i, 0) for i in range(self.x_bytes // (NW * 256))]
        self.PD = len(self.dmas)
        def big():
            self.acc = V.alloc('acc', self.NT * WM * 4, 4)
            if small_first: self.wbuf = V.alloc('wbuf', R * 4, 4)
            self.abuf = V.alloc('abuf', self.DA * WM * 4, 4)
            if not small_first: self.wbuf = V.alloc('wbuf', R * 4, 4)
        def small():
            self.waddr = V.alloc('waddr', nareg * self.nsets)
            self.vdma = V.alloc('vdma', len(self.goffs))
            self.va = V.alloc('va', WM)
        self.aoff = 0
        if small_first: small(); big()
        else: big(); small()
        if extra:
            self.xacc = V.alloc('xacc', 4 * len(extra), 4); self.NX = 2; self.xbuf = V.alloc('xbuf', 8, 4)
            self.vx = V.alloc('vx'); self.xaddr = V.alloc('xaddr'); self.sWX = S.alloc('sWX'); self.sB = S.alloc('sB')
        self.sK = S.alloc('sK'); self.sAc = S.alloc('sAc'); self.sWL = S.alloc('sWL'); self.sT = S.alloc('sT')
        self.sLead = S.alloc('sLead'); self.NC = 4 if (NS <= 4 and DAS <= 3) else 16 if (NS > 7 and self.nst > 8) else 8; self.sC = S.alloc('sCh', self.NC, 2)
        if pig_rounds:
            self.sPigSrd = S.alloc('pigsrd', 4, 4); self.sPig = S.alloc('pig'); self.vpig = V.alloc('vpig', 2)
        self.chunk_done = set()
        self.nlab = 0
        self.make_sched()

    def accr(self, t, m):
        return self.acc + (t * self.WM + m) * 4

    def abf(self, ks, m):
        S, j = divmod(ks, self.KPS)
        return self.abuf + ((((S + self.aoff) % self.DAS) * self.KPS + j) * self.WM + m) * 4

    def setup_vdma(self):
        for i, go in enumerate(self.goffs):
            if i:
                self.p.ins(f'v_add_u32 {vr(self.vdma + i)}, {go}, {vr(self.vdma)}')

    def lead_chunk(self, ts):
        P, n = self.P, self.nst
        lf = getattr(self, 'lead_from', 0)
        if lf:
            if ts < lf * P: return ts
            return ts + P if ts + P < n else lf * P + ts % P
        if not self.lead0 and ts % P == 0:
            return ts if ts == 0 else (ts + P if ts + P < n else P)
        return (ts + P) % n

    def chunk(self, ts, pig=False):
        if ts in self.chunk_done:
            return
        self.chunk_done.add(ts)
        p = self.p
        lc = self.lead_chunk(ts)
        c = self.sC + ts % self.NC
        if getattr(self, 'sH8', None) is not None:
            if ts < 8:
                p.ins(f's_add_u32 {sr(c)}, {sr(self.sH8)}, {ts}\ns_and_b32 {sr(c)}, {sr(c)}, 7')
                if ts >= 4:
                    p.ins(f's_cmp_eq_u32 {sr(self.sLead)}, {ts % 4}\ns_cselect_b32 {sr(c)}, {ts + 4}, {sr(c)}')
            elif ts + 4 < self.nst:
                p.ins(f's_cmp_eq_u32 {sr(self.sLead)}, {ts % 4}\ns_cselect_b32 {sr(c)}, {ts + 4}, {ts}')
            else:
                p.ins(f's_cmp_eq_u32 {sr(self.sLead)}, {ts % 4}\ns_cselect_b32 {sr(c)}, {sr(self.sH8 + 1)}, {ts}')
            return
        org = getattr(self, 'sOrg', None)
        def shift():
            if org is None: return
            p.ins(f's_add_u32 {sr(c)}, {sr(c)}, {sr(org)}')
            if self.nst & (self.nst - 1) == 0:
                p.ins(f's_and_b32 {sr(c)}, {sr(c)}, {self.nst - 1}')
            else:
                p.ins(f's_sub_u32 {sr(self.sT)}, {sr(c)}, {self.nst}\ns_cselect_b32 {sr(c)}, {sr(c)}, {sr(self.sT)}')
        if lc == ts:
            p.ins(f's_mov_b32 {sr(c)}, {ts}')
            shift()
            return
        p.ins(f's_cmp_eq_u32 {sr(self.sLead)}, {ts % self.P}')
        p.ins(f's_cselect_b32 {sr(c)}, {lc}, {ts}')
        if org is not None:
            assert not self.pig_rounds
            shift()
        if pig and ts // self.P in self.pig_rounds:
            self.nlab += 1
            L = f'PG{self.nlab}_{self.name}'
            p.ins(f's_cbranch_scc0 {L}')
            p.ins(f'buffer_load_dword {vr(self.vpig + 1)}, {vr(self.vpig)}, {sr(self.sPigSrd, 4)}, {sr(self.sPig)} offen')
            p.ins(f's_add_u32 {sr(self.sPig)}, {sr(self.sPig)}, {getattr(self, "pig_step", 256 * 8192)}')
            if getattr(self, 'pig_extra', None): self.pig_extra(ts // self.P)
            p.label(L)

    def op_parts(self, k, idx, ts):
        p = self.p
        if k == 'D':
            kind, i, jq = self.dmas[idx]
            if kind == 'W':
                s = self.segs[i]
                gi = self.goffs.index(s['col'] + jq * self.NW * self.rpi * self.ldw)
                dst = (ts % self.NS) * self.stagebytes + i * self.segbytes + jq * self.NW * 1024
                def pre():
                    if idx == 0:
                        self.chunk(ts, True)
                        p.ins(f's_mul_i32 {sr(self.sK)}, {sr(self.sC + ts % self.NC)}, {self.kstep}')
                    p.ins(f's_add_u32 m0, {sr(self.sWL)}, {dst}')
                main = lambda: p.vm(f'buffer_load_dwordx4 {vr(self.vdma + gi)}, {sr(s["srd"], 4)}, {sr(self.sK)} offen {self.wflags} lds', ('D', ts, idx))
            else:
                def pre():
                    if i == 0:
                        p.ins(f's_mul_i32 {sr(self.sB)}, {sr(self.sC + ts % self.NC)}, {self.astep}')
                    p.ins(f's_add_u32 m0, {sr(self.sWX)}, {self.x_base + (ts % self.NS) * self.x_bytes}')
                o = f'offset:{i * self.NW * 256} ' if i else ''
                main = lambda: p.vm(f'buffer_load_dword {vr(self.vx)}, {sr(self.srdA, 4)}, {sr(self.sB)} offen {o}{self.aflags} lds', ('D', ts, idx))
            return pre, main
        j, m = idx
        ks = ts * self.KPS + j
        buf = self.abf(ks, m)
        off = j * self.KS * 1024
        o = f' offset:{off}' if off else ''
        def pre():
            if j == 0 and m == 0:
                self.chunk(ts, True)
                p.ins(f's_mul_i32 {sr(self.sAc)}, {sr(self.sC + ts % self.NC)}, {self.astep}')
        main = lambda: p.vm(f'buffer_load_dwordx4 {vr(buf, 4)}, {vr(self.va + m)}, {sr(self.srdA, 4)}, {sr(self.sAc)} offen{o} {self.aflags}', ('A', ks, m))
        return pre, main

    def make_sched(self):
        F, D, NT, WM, KPS, n = self.F, self.D, self.NT, self.WM, self.KPS, self.nst
        b = F - max(D, self.alead if self.extra else 0) - 1
        self.bslot = b
        G = self.kgrp
        nops = self.PD + KPS * WM
        pos = [int(i * max(1.0, self.spread * F) / nops) for i in range(nops)]
        def oplist(S):
            o = [(S * F + b + 1, 1, 'D', i, S + self.npre) for i in range(self.PD)]
            return o + [(S * F + (j // G + 1) * G * NT, 0, 'A', (j, m), S + self.DAS) for j in range(KPS) for m in range(WM)]
        pend = sorted(sum((oplist(S) for S in range(8)), []), key=lambda o: (o[0], o[1]))
        done = {}
        for S in range(-1, 8):
            for r in pos:
                tabs = S * F + b + 1 + r
                av = sorted((o for o in pend if o[0] <= tabs), key=lambda o: (o[1], o[0]))
                if av:
                    pend.remove(av[0]); done[av[0][2:]] = tabs
        rel = {}
        for o in oplist(3):
            k, idx, ts = o[2:]
            assert done[(k, idx, ts + 1)] == done[(k, idx, ts)] + F
            rel[(k, idx)] = done[(k, idx, ts)] - ts * F
        self.pre_ops = [('D', i, 0) for i in range(self.PD)] + [('A', (j, m), 0) for j in range(G) for m in range(WM)]
        if self.split0:
            assert self.qpw == KPS and not self.extra and self.KS == 1
            d0 = [i for i, d in enumerate(self.dmas) if d[2] == 0]
            self.first_d = d0
            self.pre_ops = [('D', i, 0) for i in d0] + [('A', (0, m), 0) for m in range(WM)]
            self.pre2 = [('D', i, 0) for i in range(self.PD) if i not in d0] + [('A', (j, m), 0) for j in range(1, G) for m in range(WM)]
        nw0 = max(1, len(self.preloaded) + len(self.prew))
        if self.preloaded:
            assert set(self.prew) | self.preloaded == set(range(nw0)) and 0 in self.preloaded
            self.pre_w = [('D', i, ts) for ts in self.prew for i in range(self.PD)]
            self.pre_ops = [o for o in self.pre_ops if o[0] == 'A']
        if self.pre_n:
            nw0 = self.pre_n
            self.pre_w = [('D', i, ts) for ts in range(nw0) for i in range(self.PD) if self.dmas[i][0] == 'W']
            X = lambda ts: [('D', i, ts) for i in range(self.PD) if self.dmas[i][0] == 'X']
            self.pre_ops = X(0) + [o for o in self.pre_ops if o[0] == 'A'] + sum((X(ts) for ts in range(1, nw0)), [])
        q = {'D': [], 'A': []}
        for ts in range(n):
            for i in range(self.PD):
                if ts >= nw0: q['D'].append(dict(k='D', idx=i, ts=ts, e=0 if ts < self.npre else ts * F + rel[('D', i)], dl=(ts - 1) * F + b))
            for j in range(KPS):
                for m in range(WM):
                    if ts or j >= G: q['A'].append(dict(k='A', idx=(j, m), ts=ts, e=0 if ts < self.DAS else ts * F + rel[('A', (j, m))], dl=ts * F + (j // G) * G * NT - 1))
        ramp = self.ramp
        while True:
            qq = {k: list(v) for k, v in q.items()}
            vs = {}
            nextok = 0.0
            ok = True
            for t in range(n * F):
                while t >= nextok - 1e-9:
                    c = [x[0] for x in qq.values() if x and x[0]['e'] <= t]
                    if not c: break
                    o = min(c, key=lambda o: o['dl'])
                    if t > o['dl'] or (t >= 5 * F and t > o['e'] + 1): ok = False
                    qq[o['k']].pop(0)
                    vs.setdefault(t, []).append((o['k'], o['idx'], o['ts']))
                    nextok = max(nextok, t - 0.999) + ramp
            if ok and not qq['D'] and not qq['A']: break
            ramp *= 0.9
            assert ramp > 0.02
        self.vs = vs

    def prologue(self, srdA):
        self.srdA = srdA
        for k, idx, ts in self.pre_ops:
            pre, main = self.op_parts(k, idx, ts)
            pre()
            if k == 'D': self.p.ins('s_nop 0')
            main()

    def prologue2(self, ops=None):
        for k, idx, ts in (ops if ops is not None else self.pre2):
            pre, main = self.op_parts(k, idx, ts)
            pre()
            if k == 'D': self.p.ins('s_nop 0')
            main()

    def ldsop(self, op, dst, n, areg0, nper, ai, off, tag):
        st, off = divmod(off, 65536)
        self.p.lg(f'{op} {vr(dst, n)}, {vr(areg0 + st * nper + ai)} offset:{off}', tag)

    def rdx(self, ks):
        S, j = divmod(ks, self.KPS)
        assert S <= self.vis
        self.ldsop('ds_read_b128', self.xbuf + (ks % self.NX) * 4, 4, self.xaddr, 1, 0, (S % self.NS) * self.x_bytes + j * self.KS * 1024, ('XL', ks))

    def run(self, final=None, pos_ops=None, bars=None, fillers=(), rate=10, marks=None, early=None, prate=2, nfin=2, fprio=None):
        p = self.p
        F, D, NT, WM, KPS = self.F, self.D, self.NT, self.WM, self.KPS
        nnat = self.nst - (nfin if final else 0)
        G = self.kgrp
        fr = [(S, jp * G + jj, t) for S in range(nnat) for jp in range(KPS // G) for t in range(NT) for jj in range(G)] + list(final or [])
        if self.split0:
            fr[:G * NT] = [(0, j, t) for j in range(G) for t in range(NT)]
            assert D <= NT - 1
        z = nnat * F
        pos_ops = pos_ops or {}; bars = bars or {}; marks = marks or {}
        fillers = list(fillers)
        vs = {t: list(v) for t, v in self.vs.items()}
        if early:
            late = [o for t in sorted(vs) if t >= z for o in vs.pop(t)]
            for i, o in enumerate(late): vs.setdefault(z + i, []).append(o)
        self.vis = 0
        def rd(i, h):
            S, j, t = fr[i]
            assert S <= self.vis, ('read before publish', i - z, S, self.vis)
            ai, imm = self.tiles[t]
            off = (S % self.NS) * self.stagebytes + imm + (j * self.KS * 32 + 16 * h) * self.RB
            self.ldsop('ds_read_b64_tr_b16', self.wbuf + (i % self.R) * 4 + 2 * h, 2, self.waddr, self.nareg, ai, off, ('W', i, h))
        if self.split0 == 1: self.prologue2()
        if not self.preloaded:
            p.wait(vm=[('D', 0, n) for n in (self.first_d if self.split0 else range(self.PD))])
            p.ins('s_barrier')
        for i in range(D):
            rd(i, 0); rd(i, 1)
        if self.split0 == 2: self.prologue2()
        if self.extra:
            for k_ in range(G): self.rdx(k_)
        seenA, seenX, touched = set(), set(), set()
        carry = []
        for i, (S, j, t) in enumerate(fr):
            pos = i - z
            if i in marks: marks[i]()
            if i == 1: p.ins(f';@T {self.name}_m1')
            if i == 4 * F: p.ins(f';@T {self.name}_s4')
            if final and i == z: p.ins(f';@T {self.name}_fin')
            g0 = i - i % self.wgrp
            if i == g0:
                lgn, vmn = [], []
                for i2 in range(i, min(i + self.wgrp, len(fr))):
                    S2, j2, t2 = fr[i2]; ks2 = S2 * KPS + j2
                    lgn += [('W', i2, 0), ('W', i2, 1)]
                    if ks2 not in seenA:
                        seenA.add(ks2); vmn += [('A', ks2, m) for m in range(WM)]
                    if t2 in self.extra and ks2 not in seenX:
                        seenX.add(ks2); lgn.append(('XL', ks2))
                p.wait(vm=vmn or None, lg=lgn)
            ks = S * KPS + j
            wbf = lambda i_: self.wbuf + (i_ % self.R) * 4
            abf = self.abf
            xbf = lambda ks_: self.xbuf + (ks_ % self.NX) * 4
            io = i ^ 1
            if G == 2 and io < len(fr) and fr[io][2] == t:
                lo, hi = min(i, io), max(i, io)
                kl, kh = fr[lo][0] * KPS + fr[lo][1], fr[hi][0] * KPS + fr[hi][1]
                m0_ = (i // 2) % 2
                if i == lo:
                    mf = [(self.accr(t, m0_), wbf(lo), abf(kl, m0_)), (self.accr(t, m0_), wbf(hi), abf(kh, m0_))]
                else:
                    mf = [(self.accr(t, 1 - m0_), wbf(hi), abf(kh, 1 - m0_)), (self.accr(t, 1 - m0_), wbf(lo), abf(kl, 1 - m0_))]
                    if t in self.extra:
                        xa = self.xacc + 4 * self.extra.index(t)
                        mf = [(xa, wbf(hi), xbf(kh)), (xa, wbf(lo), xbf(kl))][::-1] + mf if False else mf + [(xa, wbf(lo), xbf(kl)), (xa, wbf(hi), xbf(kh))]
            else:
                mf = [(self.accr(t, m), wbf(i), abf(ks, m)) for m in range(WM)]
                if t in self.extra:
                    mf.append((self.xacc + 4 * self.extra.index(t), wbf(i), xbf(ks)))
            nm = len(mf)
            sh = [[] for _ in range(nm)]
            if i + D < len(fr):
                sh[0].append(lambda i=i: rd(i + D, 0)); sh[1 % nm].append(lambda i=i: rd(i + D, 1))
            vo = vs.get(i, [])
            for n_, o in enumerate(vo):
                pre, main = self.op_parts(*o)
                if n_ == 0 and nm > 1:
                    sh[0].append(pre); sh[1].append(main)
                else:
                    sh[nm - 1] += [pre, (lambda: p.ins('s_nop 0')), main] if o[0] == 'D' else [pre, main]
            ops = list(pos_ops.get(pos, []))
            f = i % F
            if pos < 0 or not final:
                if self.extra and G == 1 and t == NT - self.alead and ks + 1 < self.nst * KPS:
                    ops.append(lambda ks=ks: self.rdx(ks + 1))
                if self.extra and G == 2 and t == 1 and i >= F:
                    ops.append(lambda ks=ks: self.rdx(ks))
                if self.nprio:
                    rel = (f - self.bslot) % F
                    q_, qp = rel * self.nprio // F, (rel - 1) * self.nprio // F
                    if rel > 0 and q_ != qp:
                        ops.append(lambda q_=q_: p.ins(f's_setprio {self.nprio - 1 - q_}'))
            if final and fprio and pos in fprio:
                ops.append(lambda v_=fprio[pos]: p.ins(f's_setprio {v_}'))
            for n_, o in enumerate(ops):
                sh[(nm - 1 - n_) % nm].append(o)
            n = 0
            rt = rate if pos >= 0 else prate
            while fillers and fillers[0][0] <= pos and n < rt:
                o = fillers.pop(0)[1]
                sh[n * nm // rt].append((lambda o=o: p.ins(o)) if isinstance(o, str) else o)
                n += 1
            for n_, (c, wb, ab) in enumerate(mf):
                cin = vr(c, 4) if c in touched else '0'
                touched.add(c)
                p.ins(f'{MFMA} {vr(c, 4)}, {vr(wb, 4)}, {vr(ab, 4)}, {cin}')
                for o in sh[n_]:
                    o()
            if (pos < 0 or not final) and f == self.bslot and S + 1 < self.nst:
                if S + 1 not in self.preloaded:
                    p.wait(vm=[('D', S + 1, n_) for n_ in range(self.PD)])
                if S + 1 not in self.preloaded or self.NS <= S + self.npre < self.nst:
                    p.ins('s_barrier')
                if self.nprio: p.ins(f's_setprio {self.nprio - 1}')
                self.vis = S + 1
            if self.split0 and i == NT - D - 1:
                p.wait(vm=[('D', 0, n_) for n_ in range(self.PD)])
                p.ins('s_barrier')
            if pos in bars:
                r = bars[pos]()
                if r is not None: self.vis = r
        if self.nprio: p.ins('s_setprio 0')
        return fillers
```

```python
import sys
from asmlib import *
from gemm import Gemm, MFMA
from gemm2 import Gemm2

A_X, A_WQKV, A_WO, B_X, B_WG, B_WU, B_WD, IN_C, W_MOD, OUT, DBG, WS = [8 * i for i in range(12)]
WS_MODP = 0x0
WS_MODF = 0x20000
WS_H = 0x100000
WS_O = 0x700000
WS_X1 = 0xD00000
WS_H2 = 0x2800000
WS_ACT = 0x1300000
WS_ST = 0x40000
WS_UT = 0x80000
WS_FL = 0xA0000
WS_XC = 0x2800000
WS_Y = 0x2300000
M, DM, FF = 2048, 1024, 3584
LOG2E = 1.4426950408889634

import struct
def f32(x):
    return '0x%08x' % struct.unpack('<I', struct.pack('<f', x))[0]

STAMP = False
FINE = False
WS_STAMP = 0x3000000
class K:
    count = 0
    def __init__(self, name, nwg, nthreads, vlimit=256):
        self.name, self.nwg, self.nthreads = name, nwg, nthreads
        self.p = Prog(); self.V = Regs('v', 1, vlimit); self.S = Regs('s', 4, 100)
        self.lds = 0
        self.srds = []
        p = self.p
        p.label(name)
        p.ins(f's_cmp_ge_u32 s2, {nwg}\ns_cbranch_scc1 X_{name}')
        self.idx = K.count; K.count += 1
        if STAMP:
            p.ins('s_memrealtime s[88:89]\ns_memtime s[90:91]\ns_load_dwordx2 s[96:97], s[0:1], 88\nv_readfirstlane_b32 s98, v0\ns_mov_b32 s99, s2')
            self.S.limit = 80
    def mark(self, i, fine=False):
        if FINE and not fine:
            if i != 0: return
            i = 2
        if STAMP:
            self.p.ins(f's_memtime s[{80+2*i}:{81+2*i}]')
    def srd(self, name, slot, nbytes, off=0):
        s = self.S.alloc(name, 4, 4)
        self.p.ins(f's_load_dwordx2 {sr(s, 2)}, s[0:1], {slot}')
        self.srds.append((s, nbytes, off))
        return s
    def finish_srds(self):
        p = self.p
        for s, nb, off in self.srds:
            p.ins(f's_mov_b32 {sr(s+2)}, {nb}\ns_mov_b32 {sr(s+3)}, 0x20000')
        if FINE: self.mark(0, True)
        p.ins('s_waitcnt lgkmcnt(0)')
        if FINE: self.mark(1, True)
        for s, nb, off in self.srds:
            if off:
                p.ins(f's_add_u32 {sr(s)}, {sr(s)}, {off}\ns_addc_u32 {sr(s+1)}, {sr(s+1)}, 0')
    def end(self):
        self.p.label(f'E_{self.name}')
        if STAMP:
            p = self.p
            p.ins('s_memtime s[86:87]\ns_waitcnt vmcnt(0) lgkmcnt(0)')
            p.ins('s_memrealtime s[92:93]\ns_memtime s[94:95]\ns_waitcnt lgkmcnt(0)')
            p.ins(f's_lshr_b32 s98, s98, 6\ns_lshl_b32 s99, s99, 3\ns_add_u32 s99, s99, s98\ns_lshl_b32 s99, s99, 6\ns_add_u32 s99, s99, {WS_STAMP + self.idx * 0x40000}')
            p.ins('s_mov_b64 exec, 1\nv_mov_b32 v0, s99')
            for i, r in enumerate((88, 90, 92, 94, 80, 82, 84, 84, 86)):
                p.ins(f'v_mov_b32 v1, s{r}\nglobal_store_dword v0, v1, s[96:97] offset:{4*i}')
        self.p.label(f'X_{self.name}')
        self.p.ins('s_endpgm')
    def new_phase(self):
        self.done = getattr(self, 'done', []) + [self.p]
        self.maxv = max(getattr(self, 'maxv', 0), self.V.next); self.maxs = max(getattr(self, 'maxs', 0), self.S.next)
        self.lds0 = max(getattr(self, 'lds0', 0), self.lds)
        self.p = Prog(); self.V = Regs('v', 1, self.V.limit); self.S = Regs('s', 4, self.S.limit); self.srds = []
        for a in ('tmp_s', 'tmp_v', 'vdummy'):
            if hasattr(self, a): delattr(self, a)
    def text(self):
        return '.p2align 8\n' + ''.join(q.text() for q in getattr(self, 'done', [])) + self.p.text()
    def desc(self, minv=0):
        nv = max(self.V.next, minv, getattr(self, 'maxv', 0))
        self.S.next = max(self.S.next, getattr(self, 'maxs', 0))
        return kdesc(self.name, nv, 102 if (STAMP or TOK[0]) else min(102, self.S.next + 2), min(256, (nv + 3) // 4 * 4))
    def launch(self):
        return f'; @launch kernel={self.name} grid=({self.nwg},1,1) block=({self.nthreads},1,1) lds={max(self.lds, getattr(self, "lds0", 0))}'

def round_bf16(p, d, s, tmp=None):
    p.ins(f'v_cvt_pk_bf16_f32 {vr(d)}, {vr(s)}, {vr(s)}\nv_lshlrev_b32 {vr(d)}, 16, {vr(d)}')

def xrow_reduce(p, op, x, t, steps=(16, 32)):
    for s in steps:
        p.ins(f'v_mov_b32 {vr(t)}, {vr(x)}\ns_nop 1\nv_permlane{s}_swap_b32 {vr(x)}, {vr(t)}\ns_nop 0\n{op} {vr(x)}, {vr(x)}, {vr(t)}')

NPART = 4
TOK = [None]
MBS = [32768, 114688]
MODNT = ['nt', 'nt']
H2_IS_Y = False
def tmps(k):
    if not hasattr(k, 'tmp_s'):
        k.tmp_s = k.S.alloc('tmps', 4, 2); k.tmp_v = k.V.alloc('tmpv', 2, 2)
    if not hasattr(k, 'vdummy'):
        k.vdummy = k.V.alloc('dummy')
    return k.tmp_s, k.tmp_v

def touch(k, srd, voff, soff, imms, flags=''):
    if not hasattr(k, 'vdummy'):
        k.vdummy = k.V.alloc('dummy')
    for im in imms:
        o = f' offset:{im}' if im else ''
        k.p.vm(f'buffer_load_dword {vr(k.vdummy)}, {vr(voff)}, {sr(srd,4)}, {sr(soff)} offen{o} {flags}', 'touch')
        k.touched = True

def gemv_acc(p, n, vw, vs, va, vu, tag):
    for i in range(n):
        p.wait(vm=[tag(i)])
        for d in range(4):
            w = vw + 4 * i + d
            p.ins(f'v_lshlrev_b32 {vr(vu)}, 16, {vr(w)}\nv_and_b32 {vr(vu+1)}, 0xffff0000, {vr(w)}')
            if i == 0:
                p.ins(f'v_mul_f32 {vr(va+2*d)}, {vr(vs)}, {vr(vu)}\nv_mul_f32 {vr(va+2*d+1)}, {vr(vs)}, {vr(vu+1)}')
            else:
                p.ins(f'v_fmac_f32 {vr(va+2*d)}, {vr(vs+i)}, {vr(vu)}\nv_fmac_f32 {vr(va+2*d+1)}, {vr(vs+i)}, {vr(vu+1)}')

def gemv_reduce(p, va):
    p.ins('s_nop 1')
    for i in range(4):
        p.ins(f'v_permlane32_swap_b32 {vr(va+i)}, {vr(va+i+4)}')
    p.ins('s_nop 0')
    for i in range(4):
        p.ins(f'v_add_f32 {vr(va+i)}, {vr(va+i)}, {vr(va+i+4)}')
    p.ins('s_nop 1')
    for i in range(2):
        p.ins(f'v_permlane16_swap_b32 {vr(va+i)}, {vr(va+i+2)}')
    p.ins('s_nop 0')
    for i in range(2):
        p.ins(f'v_add_f32 {vr(va+i)}, {vr(va+i)}, {vr(va+i+2)}')
    p.ins('s_nop 1')
    for i in range(2):
        p.ins(f'v_add_f32_dpp {vr(va+i)}, {vr(va+i)}, {vr(va+i)} row_ror:8 row_mask:0xf bank_mask:0xf')

def mod_body(k, sW, sC, sP, sunit, strip0, sw, vl, after_loads=None, sD=None):
    p, V, S = k.p, k.V, k.S
    s0 = S.alloc('m0'); s1 = S.alloc('m1'); sst = S.alloc('strip'); skh = S.alloc('kh')
    vt = V.alloc('mt', 4); vo = V.alloc('moff'); vc = V.alloc('mc', 4, 4); vs = V.alloc('ms', 8)
    vw = V.alloc('mw', 32, 4); va = V.alloc('macc', 8, 2); vu = V.alloc('mu', 2)
    p.ins(f's_lshr_b32 {sr(sst)}, {sr(sunit)}, 2\ns_add_u32 {sr(sst)}, {sr(sst)}, {strip0}\ns_and_b32 {sr(skh)}, {sr(sunit)}, 3')
    p.ins(f's_lshl_b32 {sr(s0)}, {sr(skh)}, 8\ns_lshl_b32 {sr(s1)}, {sr(sw)}, 6\ns_add_u32 {sr(s0)}, {sr(s0)}, {sr(s1)}')
    p.ins(f'v_and_b32 {vr(vt)}, 0x38, {vr(vl)}\nv_add_u32 {vr(vt)}, {sr(s0)}, {vr(vt)}')
    p.ins(f'v_lshlrev_b32 {vr(vt+1)}, 1, {vr(vt)}')
    p.ins(f'v_mul_u32_u24 {vr(vo)}, 12288, {vr(vt)}\nv_and_b32 {vr(vt+2)}, 7, {vr(vl)}\nv_lshl_add_u32 {vr(vo)}, {vr(vt+2)}, 4, {vr(vo)}')
    p.ins(f's_lshl_b32 {sr(s1)}, {sr(sst)}, 7')
    p.vm(f'buffer_load_dwordx4 {vr(vc,4)}, {vr(vt+1)}, {sr(sC,4)}, 0 offen', 'mc')
    for i in range(8):
        p.vm(f'buffer_load_dwordx4 {vr(vw+4*i,4)}, {vr(vo)}, {sr(sW,4)}, {sr(s1)} offen {MODNT[0]}', ('mw', i))
        if i < 7:
            p.ins(f's_add_u32 {sr(s1)}, {sr(s1)}, 12288')
    if after_loads: after_loads()
    p.wait(vm=['mc'])
    for i in range(8):
        src = vc + i // 2
        p.ins(f'v_lshlrev_b32 {vr(vs+i)}, 16, {vr(src)}' if i % 2 == 0 else f'v_and_b32 {vr(vs+i)}, 0xffff0000, {vr(src)}')
    for i in range(8):
        p.ins(f'v_mul_f32 {vr(va+i)}, {f32(-LOG2E)}, {vr(vs+i)}')
    for i in range(8):
        p.ins(f'v_exp_f32 {vr(va+i)}, {vr(va+i)}')
    for i in range(8):
        p.ins(f'v_add_f32 {vr(va+i)}, 1.0, {vr(va+i)}')
    for i in range(8):
        p.ins(f'v_rcp_f32 {vr(va+i)}, {vr(va+i)}')
    for i in range(8):
        p.ins(f'v_mul_f32 {vr(vs+i)}, {vr(vs+i)}, {vr(va+i)}')
    for i in range(0, 8, 2):
        p.ins(f'v_cvt_pk_bf16_f32 {vr(vu)}, {vr(vs+i)}, {vr(vs+i+1)}\nv_lshlrev_b32 {vr(vs+i)}, 16, {vr(vu)}\nv_and_b32 {vr(vs+i+1)}, 0xffff0000, {vr(vu)}')
    p.ins(f'v_and_b32 {vr(vt)}, 7, {vr(vl)}\nv_lshlrev_b32 {vr(vt)}, 5, {vr(vt)}\nv_lshrrev_b32 {vr(vt+1)}, 4, {vr(vl)}\nv_lshl_add_u32 {vr(vt)}, {vr(vt+1)}, 3, {vr(vt)}')
    p.ins(f's_lshl_b32 {sr(s0)}, {sr(sw)}, 8\nv_add_u32 {vr(vt)}, {sr(s0)}, {vr(vt)}\nv_lshlrev_b32 {vr(vt+1)}, 2, {vr(vl)}')
    p.ins(f's_mul_i32 {sr(s0)}, {sr(skh)}, {6144*4}\ns_lshl_b32 {sr(s1)}, {sr(sst)}, 8\ns_add_u32 {sr(s0)}, {sr(s0)}, {sr(s1)}')
    gemv_acc(p, 8, vw, vs, va, vu, lambda i: ('mw', i))
    gemv_reduce(p, va)
    p.lg(f'ds_write_b64 {vr(vt)}, {vr(va,2)}')
    p.wait(lg='all')
    p.ins('s_barrier')
    p.ins(f's_cmp_lg_u32 {sr(sw)}, 0\ns_cbranch_scc1 E_{k.name}')
    for i in range(4):
        p.lg(f'ds_read_b32 {vr(va+i)}, {vr(vt+1)} offset:{256*i}')
    p.wait(lg='all')
    for a, b in ((0, 1), (2, 3), (0, 2)):
        p.ins(f'v_add_f32 {vr(va+a)}, {vr(va+a)}, {vr(va+b)}')
    if sD is None:
        p.vm(f'buffer_store_dword {vr(va)}, {vr(vt+1)}, {sr(sP,4)}, {sr(s0)} offen')
    else:
        p.vm(f'buffer_store_dword {vr(va)}, {vr(vt+1)}, {sr(sP,4)}, {sr(s0)} offen sc1')
        p.ins(f's_bfe_u32 {sr(s1)}, {sr(sst)}, 0x20002\ns_lshl_b32 {sr(s1)}, {sr(s1)}, 6\nv_mov_b32 {vr(va+1)}, 1\nv_mov_b32 {vr(va+2)}, 0\ns_mov_b64 exec, 1')
        p.ins('s_waitcnt vmcnt(0)')
        p.vm(f'buffer_atomic_add {vr(va+1)}, {vr(va+2)}, {sr(sD,4)}, {sr(s1)} offen sc1')
        p.ins('s_mov_b64 exec, -1')
    p.ins(f's_branch E_{k.name}')

def touch_x(k, sX, swg, sw, vl, flags):
    p = k.p
    s, v = tmps(k)
    p.ins(f'v_lshlrev_b32 {vr(v)}, 7, {vr(vl)}\ns_lshl_b32 {sr(s)}, {sr(swg)}, 1\ns_add_u32 {sr(s)}, {sr(s)}, {sr(sw)}\ns_lshl_b32 {sr(s)}, {sr(s)}, 13')
    p.ins(f's_cmp_lt_u32 {sr(sw)}, 2\ns_cselect_b32 {sr(s)}, {sr(s)}, 0x40000000')
    touch(k, sX, v, s, [0], flags)

def touch_cols(k, srd, ld, swg, sw, vl, nw, colgrp_bits, grp_lines, segs, nrows, split, flags, row0=0):
    p = k.p
    nshare = 8 >> colgrp_bits if split else 1
    rows = nrows // nshare
    nb = rows // 64
    lines = [sg + 128 * j for sg in segs for j in range(grp_lines)]
    nun = 32 * nw
    assert nun >= nb
    s, v = tmps(k); t = s + 1; u = s + 2
    p.ins(f'v_mul_u32_u24 {vr(v)}, {ld}, {vr(vl)}')
    p.ins(f's_lshr_b32 {sr(u)}, {sr(swg)}, 3\ns_and_b32 {sr(u)}, {sr(u)}, 31\ns_mul_i32 {sr(u)}, {sr(u)}, {nw}\ns_add_u32 {sr(u)}, {sr(u)}, {sr(sw)}')
    p.ins(f's_and_b32 {sr(s)}, {sr(swg)}, {(1 << colgrp_bits) - 1}\ns_mul_i32 {sr(s)}, {sr(s)}, {grp_lines * 128}')
    if row0:
        p.ins(f's_add_u32 {sr(s)}, {sr(s)}, {row0 * ld}')
    if nshare > 1:
        p.ins(f's_and_b32 {sr(t)}, {sr(swg)}, 7\ns_lshr_b32 {sr(t)}, {sr(t)}, {colgrp_bits}\ns_mul_i32 {sr(t)}, {sr(t)}, {rows * ld}\ns_add_u32 {sr(s)}, {sr(s)}, {sr(t)}')
    nsub = nun // nb
    per = -(-len(lines) // nsub)
    magic = (1 << 16) // nb + 1
    p.ins(f's_mul_i32 {sr(t)}, {sr(u)}, {magic}\ns_lshr_b32 {sr(t)}, {sr(t)}, 16')
    p.ins(f's_mul_i32 vcc_lo, {sr(t)}, {nb}\ns_sub_u32 {sr(u)}, {sr(u)}, vcc_lo\ns_mul_i32 {sr(u)}, {sr(u)}, {64 * ld}\ns_add_u32 {sr(s)}, {sr(s)}, {sr(u)}')
    segstep = segs[1] - segs[0] if len(segs) > 1 else 0
    m2 = (1 << 16) // grp_lines + 1
    for i in range(per):
        p.ins(f's_mul_i32 {sr(u)}, {sr(t)}, {per}\ns_add_u32 {sr(u)}, {sr(u)}, {i}')
        p.ins(f's_cmp_lt_u32 {sr(u)}, {len(lines)}\ns_cselect_b32 vcc_hi, {sr(s)}, 0x40000000')
        if segstep:
            p.ins(f's_mul_i32 vcc_lo, {sr(u)}, {m2}\ns_lshr_b32 vcc_lo, vcc_lo, 16\ns_mul_i32 vcc_lo, vcc_lo, {segstep - grp_lines * 128}\ns_add_u32 vcc_hi, vcc_hi, vcc_lo')
        p.ins(f's_lshl_b32 {sr(u)}, {sr(u)}, 7\ns_add_u32 {sr(u)}, {sr(u)}, vcc_hi')
        touch(k, srd, v, u, [0], flags)

def zero_flags(k, sF, sw, vl, vz, s1, s2_, wave=0):
    p = k.p
    L = f'F_z{k.name}'
    p.ins(f's_cmp_lg_u32 {sr(sw)}, {wave}\ns_cbranch_scc1 {L}')
    p.ins(f's_lshl_b32 {sr(s1)}, s2, 7\ns_lshr_b32 {sr(s2_)}, s2, 2\ns_lshl_b32 {sr(s2_)}, {sr(s2_)}, 7')
    p.ins(f'v_lshrrev_b32 {vr(vz+4)}, 3, {vr(vl)}\nv_mov_b32 {vr(vz)}, {sr(s1)}\nv_mov_b32 {vr(vz+1)}, {sr(s2_)}\nv_cmp_eq_u32 vcc, 2, {vr(vz+4)}\nv_and_b32 {vr(vz+5)}, 7, {vr(vl)}\nv_lshlrev_b32 {vr(vz+4)}, 15, {vr(vz+4)}')
    p.ins(f'v_cndmask_b32 {vr(vz)}, {vr(vz)}, {vr(vz+1)}, vcc\nv_lshl_add_u32 {vr(vz+4)}, {vr(vz+5)}, 4, {vr(vz+4)}\nv_add_u32 {vr(vz+4)}, {vr(vz+4)}, {vr(vz)}')
    p.ins('\n'.join(f'v_mov_b32 {vr(vz+i)}, 0' for i in range(4)))
    p.ins(f'buffer_store_dwordx4 {vr(vz,4)}, {vr(vz+4)}, {sr(sF,4)}, 0 offen\ns_nop 1')
    p.label(L)

def touch_strip(k, srd, ld, swg, sw, vl, col_expr, segs, nrows, cond_even=False, row0=0, flags=''):
    p = k.p
    s, v = tmps(k); t = s + 1; u = s + 2
    nb = nrows // 64
    nit = nb * len(segs)
    nw = k.nthreads // 64
    p.ins(f'v_mul_u32_u24 {vr(v)}, {ld}, {vr(vl)}')
    col_expr(s, t)
    for rep in range(-(-nit // (32 * nw))):
        p.ins(f's_lshl_b32 {sr(u)}, {sr(sw)}, 5\ns_bfe_u32 {sr(t)}, {sr(swg)}, 0x50003\ns_add_u32 {sr(u)}, {sr(u)}, {sr(t)}')
        if rep: p.ins(f's_add_u32 {sr(u)}, {sr(u)}, {rep * 32 * nw}')
        if len(segs) > 1:
            n = len(segs); mg = (1 << 16) // n + 1
            p.ins(f's_mul_i32 {sr(t)}, {sr(u)}, {mg}\ns_lshr_b32 {sr(t)}, {sr(t)}, 16\ns_mul_i32 vcc_lo, {sr(t)}, {n}\ns_sub_u32 vcc_lo, {sr(u)}, vcc_lo\ns_mul_i32 vcc_lo, vcc_lo, {segs[1] - segs[0]}\ns_mul_i32 {sr(t)}, {sr(t)}, {64 * ld}\ns_add_u32 {sr(t)}, {sr(t)}, vcc_lo')
        else:
            p.ins(f's_mul_i32 {sr(t)}, {sr(u)}, {64 * ld}')
        p.ins(f's_add_u32 {sr(t)}, {sr(t)}, {sr(s)}')
        if row0: p.ins(f's_add_u32 {sr(t)}, {sr(t)}, {row0 * ld}')
        p.ins(f's_cmp_lt_u32 {sr(u)}, {nit}\ns_cselect_b32 {sr(t)}, {sr(t)}, 0x40000000')
        if cond_even:
            p.ins(f's_bitcmp0_b32 {sr(swg)}, 0\ns_cselect_b32 {sr(t)}, {sr(t)}, 0x40000000')
        touch(k, srd, v, t, [0], flags)

def touch_lin(k, srd, swg, sw, vl, nw, off, nbytes, flags, nwg=256):
    p = k.p
    s, v = tmps(k); t = s + 1
    nun = nwg * nw
    npieces = -(-nbytes // 8192)
    p.ins(f'v_lshlrev_b32 {vr(v)}, 7, {vr(vl)}')
    p.ins(f's_mul_i32 {sr(s)}, {sr(sw)}, {nwg}\ns_add_u32 {sr(s)}, {sr(s)}, {sr(swg)}\ns_lshl_b32 {sr(s)}, {sr(s)}, 13')
    for i in range(-(-npieces // nun)):
        p.ins(f's_add_u32 {sr(t)}, {sr(s)}, {i * nun * 8192}\ns_cmp_lt_u32 {sr(t)}, {nbytes}\ns_cselect_b32 {sr(t)}, {sr(t)}, 0x40000000')
        if off:
            p.ins(f's_add_u32 {sr(t)}, {sr(t)}, {off}')
        touch(k, srd, v, t, [0], flags)

def touch_code(k, swg, sw, vl, first_label, last_label, wave):
    p = k.p
    k.ncode = getattr(k, 'ncode', 0) + 1
    k.code_touched = True
    L = f'TC{k.ncode}_{k.name}'
    s, v = tmps(k); t = s + 2
    p.ins(f's_lshr_b32 {sr(t)}, {sr(swg)}, 3\ns_lshl_b32 {sr(t)}, {sr(t)}, 13')
    p.ins(f's_cmp_lg_u32 {sr(sw)}, {wave}\ns_cbranch_scc1 {L}')
    p.ins(f's_cmp_ge_u32 {sr(t)}, {last_label}-{first_label}\ns_cbranch_scc1 {L}')
    p.ins(f's_getpc_b64 {sr(s,2)}')
    p.label(L + 'p')
    p.ins(f's_add_u32 {sr(t)}, {sr(t)}, {first_label}-{L}p')
    p.ins(f's_ashr_i32 vcc_hi, {sr(t)}, 31\ns_add_u32 {sr(s)}, {sr(s)}, {sr(t)}\ns_addc_u32 {sr(s+1)}, {sr(s+1)}, vcc_hi')
    p.ins(f'v_lshlrev_b32 {vr(v)}, 7, {vr(vl)}\nv_mov_b32 {vr(v+1)}, {sr(s+1)}\nv_add_co_u32 {vr(v)}, vcc, {sr(s)}, {vr(v)}\ns_nop 1\nv_addc_co_u32 {vr(v+1)}, vcc, 0, {vr(v+1)}, vcc')
    p.ins(f'global_load_dword {vr(k.vdummy)}, {vr(v,2)}, off')
    p.label(L)

def k_mod(cfg={}):
    nu = cfg.get('units', 128)
    k = K('k1_mod_kernel', max(256, nu), 256, 128); p, V, S = k.p, k.V, k.S
    sW = k.srd('wmod', W_MOD, 1024 * 6144 * 2); sC = k.srd('c', IN_C, 2048); sP = k.srd('modp', WS, NPART * 6144 * 4, WS_MODP)
    sX = k.srd('x', A_X, M * DM * 2); sQ = k.srd('wqkv', A_WQKV, DM * 3072 * 2)
    pre = cfg.get('pre', lambda k: None)(k)
    if cfg.get('zero'): sF = k.srd('fl', WS, 6 * 32768, WS_FL); sz = S.alloc('sz', 2); vz = V.alloc('vz', 6, 4)
    sw = S.alloc('w'); swg = S.alloc('wg')
    vl = V.alloc('lane'); vt = V.alloc('t')
    p.ins(f'v_lshrrev_b32 {vr(vt)}, 6, v0\nv_and_b32 {vr(vl)}, 63, v0\nv_readfirstlane_b32 {sr(sw)}, {vr(vt)}\ns_mov_b32 {sr(swg)}, s2')
    if cfg.get('xmap'):
        sxr = S.alloc('xr', 4); tilemap(k, 'g1', sxr, sxr + 1, sxr + 2, sxr + 3)
        p.ins(f's_lshl_b32 {sr(sxr)}, {sr(sxr)}, 4\ns_add_u32 {sr(sxr)}, {sr(sxr)}, {sr(sxr+1)}')
    k.finish_srds()
    if cfg.get('zero'): zero_flags(k, sF, sw, vl, vz, sz, sz + 1, 2)
    def touches():
        if cfg.get('code'): touch_code(k, swg, sw, vl, cfg['code'][0], cfg['code'][1], 3)
        if cfg.get('tx') is not None:
            touch_x(k, sX, sxr if cfg.get('xmap') else swg, sw, vl, cfg['tx'])
        if cfg.get('tq') is not None:
            touch_cols(k, sQ, 6144, swg, sw, vl, 4, 2, 4, [0, 2048, 4096], cfg.get('tq_rows', 1024), cfg.get('tq_split', True), cfg['tq'])
        if cfg.get('lq') is not None:
            touch_lin(k, sQ, swg, sw, vl, 4, 0, cfg.get('tq_rows', 1024) * 6144, cfg['lq'])
        if cfg.get('mid'): cfg['mid'](k, pre, swg, sw, vl)
    p.ins(f's_cmp_ge_u32 s2, {nu}\ns_cbranch_scc1 T_{k.name}')
    mod_body(k, sW, sC, sP, swg, 0, sw, vl, touches)
    p.label(f'T_{k.name}')
    touches()
    if cfg.get('lq2'):
        p.ins(f's_sub_u32 {sr(swg)}, {sr(swg)}, 128')
        touch_lin(k, sQ, swg, sw, vl, 4, cfg['lq2'][0] * 6144, cfg['lq2'][1] * 6144, '', nwg=128)
    k.end()
    k.lds = 1024
    return k

X1_AF = True
def k_ln(name, src_slot, src_off, dst_off, chunk_shift, chunk_scale, finalize_mod, af_in=False, cfg={}):
    plain = cfg.get('plain')
    k = K(name, 384 if plain else 256, 256, 256); p, V, S = k.p, k.V, k.S
    if plain:
        sWm = k.srd('wmod', W_MOD, 1024 * 6144 * 2); sC = k.srd('c', IN_C, 2048)
        swg0 = S.alloc('wg0')
        p.ins(f's_mov_b32 {sr(swg0)}, s2\ns_sub_u32 s2, s2, 128')
    if not af_in:
        sQ = k.srd('wqkv', A_WQKV, DM * 3072 * 2); sWo = k.srd('wo', A_WO, DM * DM * 2)
    sX = k.srd('x', src_slot, M * DM * 2, src_off); sP = k.srd('mod', WS, 0x40000, WS_MODP); sH = k.srd('h', WS, 128 * MBS[0], dst_off)
    pre = cfg.get('pre', lambda k: None)(k)
    if cfg.get('zero'): sF = k.srd('fl', WS, 6 * 32768, WS_FL)
    sw = S.alloc('w'); s0 = S.alloc('t0'); s1 = S.alloc('t1'); s2_ = S.alloc('t2'); s3_ = S.alloc('t3')
    vl = V.alloc('lane'); vt = V.alloc('t', 6, 2); vo = V.alloc('off'); vm_ = V.alloc('moff'); vtid16 = V.alloc('tid16')
    vx = V.alloc('x', 16, 4); vf = V.alloc('f', 32, 4)
    vc = V.alloc('c', 32, 4); vs = V.alloc('s', 32, 4)
    p.ins(f'v_lshrrev_b32 {vr(vt)}, 6, v0\nv_and_b32 {vr(vl)}, 63, v0\nv_readfirstlane_b32 {sr(sw)}, {vr(vt)}')
    def af_off(gexpr_swapped):
        if gexpr_swapped:
            p.ins(f'v_bfe_u32 {vr(vt+5)}, {vr(vl)}, 3, 1\nv_lshlrev_b32 {vr(vo)}, 9, {vr(vt+5)}\nv_bfe_u32 {vr(vt+5)}, {vr(vl)}, 4, 1\nv_lshl_add_u32 {vr(vo)}, {vr(vt+5)}, 8, {vr(vo)}')
            p.ins(f'v_lshrrev_b32 {vr(vt+5)}, 5, {vr(vl)}\nv_lshl_add_u32 {vr(vo)}, {vr(vt+5)}, 10, {vr(vo)}\nv_lshl_add_u32 {vr(vo)}, {vr(vt)}, 4, {vr(vo)}')
        else:
            p.ins(f'v_lshlrev_b32 {vr(vo)}, 8, {vr(vt+1)}\nv_lshl_add_u32 {vr(vo)}, {vr(vt)}, 4, {vr(vo)}')
        p.ins(f's_lshr_b32 {sr(s0)}, s2, 1\ns_mul_i32 {sr(s0)}, {sr(s0)}, {MBS[0]}\ns_and_b32 {sr(s1)}, s2, 1\ns_lshl_b32 {sr(s1)}, {sr(s1)}, 7\ns_add_u32 {sr(s0)}, {sr(s0)}, {sr(s1)}')
        p.ins(f's_lshl_b32 {sr(s1)}, {sr(sw)}, 13\ns_add_u32 {sr(s0)}, {sr(s0)}, {sr(s1)}\ns_add_u32 {sr(s3_)}, {sr(s0)}, 4096')
    p.ins(f'v_and_b32 {vr(vt)}, 7, {vr(vl)}\nv_lshrrev_b32 {vr(vt+1)}, 3, {vr(vl)}')
    if af_in:
        af_off(False)
        p.ins(f'v_lshrrev_b32 {vr(vm_)}, 5, {vr(vl)}\nv_lshlrev_b32 {vr(vm_)}, 7, {vr(vm_)}\nv_and_b32 {vr(vt+5)}, 3, {vr(vt+1)}\nv_lshl_add_u32 {vr(vm_)}, {vr(vt+5)}, 4, {vr(vm_)}\ns_lshl_b32 {sr(s1)}, {sr(sw)}, 10\nv_add_u32 {vr(vm_)}, {sr(s1)}, {vr(vm_)}')
    else:
        p.ins(f'v_lshlrev_b32 {vr(vo)}, 11, {vr(vt)}\nv_lshl_add_u32 {vr(vo)}, {vr(vt+1)}, 4, {vr(vo)}')
        p.ins(f's_lshl_b32 {sr(s0)}, s2, 14\ns_lshl_b32 {sr(s1)}, {sr(sw)}, 9\ns_add_u32 {sr(s0)}, {sr(s0)}, {sr(s1)}')
        p.ins(f'v_lshlrev_b32 {vr(vm_)}, 5, {vr(vt+1)}\ns_lshl_b32 {sr(s1)}, {sr(sw)}, 10\nv_add_u32 {vr(vm_)}, {sr(s1)}, {vr(vm_)}')
    hstep = 64 if af_in else 16
    p.ins(f'v_lshlrev_b32 {vr(vtid16)}, 4, v0')
    k.finish_srds()
    if plain:
        p.ins(f's_cmp_ge_u32 {sr(swg0)}, 128\ns_cbranch_scc1 L_{k.name}')
        save = V.next; V.next = vx
        mod_body(k, sWm, sC, sP, swg0, 0, sw, vl, (lambda: touch_code(k, swg0, sw, vl, cfg['code'][0], cfg['code'][1], 3)) if cfg.get('code') else None)
        assert V.next <= save
        V.next = save
        p.label(f'L_{k.name}')
    for i in range(4):
        if af_in:
            p.vm(f'buffer_load_dwordx4 {vr(vx+4*i,4)}, {vr(vo)}, {sr(sX,4)}, {sr(s0 if i < 2 else s3_)} offen offset:{2048*(i&1)}', ('x', i))
        else:
            p.vm(f'buffer_load_dwordx4 {vr(vx+4*i,4)}, {vr(vo)}, {sr(sX,4)}, {sr(s0)} offen offset:{128*i}', ('x', i))
    def ldm(dst, off, tag):
        p.ins(f's_mov_b32 {sr(s1)}, {off}')
        p.vm(f'buffer_load_dwordx4 {vr(dst,4)}, {vr(vtid16)}, {sr(sP,4)}, {sr(s1)} offen', tag)
    if finalize_mod:
        for q in range(0 if plain else NPART):
            ldm(vc + 4 * q, q * 6144 * 4 + chunk_scale * 4096, None)
            ldm(vs + 4 * q, q * 6144 * 4 + chunk_shift * 4096, 's1')
        swg = S.alloc('wg')
        p.ins(f's_mov_b32 {sr(swg)}, s2')
        if cfg.get('tq') is not None:
            touch_cols(k, sQ, 6144, swg, sw, vl, 4, 2, 4, [0, 2048, 4096], cfg.get('tq_rows', 1024), cfg.get('tq_split', True), cfg['tq'], cfg.get('tq_row0', 0))
        if cfg.get('lq') is not None:
            touch_lin(k, sQ, swg, sw, vl, 4, cfg.get('tq_row0', 0) * 6144, cfg.get('tq_rows', 1024) * 6144, cfg['lq'])
        if cfg.get('q3') == 'g4':
            ce = lambda d, t_: p.ins(f's_and_b32 {sr(d)}, {sr(swg)}, 1\ns_lshl_b32 {sr(d)}, {sr(d)}, 10\ns_add_u32 {sr(d)}, {sr(d)}, 384')
            touch_strip(k, sQ, 6144, swg, sw, vl, ce, [0, 2048, 4096], 1024, False)
        elif cfg.get('q3'):
            ce = lambda d, t_: p.ins(f's_and_b32 {sr(d)}, {sr(swg)}, 3\ns_lshl_b32 {sr(d)}, {sr(d)}, 9\ns_add_u32 {sr(d)}, {sr(d)}, 384')
            touch_strip(k, sQ, 6144, swg, sw, vl, ce, [0, 2048, 4096], 1024, True)
        if cfg.get('lo') is not None:
            touch_lin(k, sWo, swg, sw, vl, 4, 0, DM * DM * 2, cfg['lo'])
        if cfg.get('to') is not None:
            touch_cols(k, sWo, 2048, swg, sw, vl, 4, 1, 8, [0], 1024, True, cfg['to'])
        if cfg.get('mid'): cfg['mid'](k, pre, swg, sw, vl)
    else:
        ldm(vc, WS_MODF - WS_MODP + chunk_scale * 4096, 'c0'); ldm(vs, WS_MODF - WS_MODP + chunk_shift * 4096, 's1')
        if cfg.get('mid'):
            swg = S.alloc('wg'); p.ins(f's_mov_b32 {sr(swg)}, s2')
            cfg['mid'](k, pre, swg, sw, vl)
    if cfg.get('zero'):
        zero_flags(k, sF, sw, vl, vf, s1, s2_, 3)
    for i in range(4):
        p.wait(vm=[('x', i)])
        for d in range(4):
            p.ins(f'v_lshlrev_b32 {vr(vf+8*i+2*d)}, 16, {vr(vx+4*i+d)}\nv_and_b32 {vr(vf+8*i+2*d+1)}, 0xffff0000, {vr(vx+4*i+d)}')
    def fold(n):
        while n > 1:
            n //= 2
            for i in range(n):
                p.ins(f'v_add_f32 {vr(vx+i)}, {vr(vx+i)}, {vr(vx+n+i)}')
    def wg_reduce(x, ldsoff, mid=None):
        p.ins(f's_nop 1\nv_add_f32_dpp {vr(x)}, {vr(vx)}, {vr(vx)} row_ror:8 row_mask:0xf bank_mask:0xf')
        xrow_reduce(p, 'v_add_f32', x, vt + 5)
        p.lg(f'ds_write_b32 {vr(vt+2)}, {vr(x)} offset:{ldsoff}')
        if mid: mid()
        p.wait(lg='all')
        p.ins('s_barrier')
        p.lg(f'ds_read_b128 {vr(vx,4)}, {vr(vt+3)} offset:{ldsoff}', ('red', ldsoff))
    def wg_reduce_fin(x, ldsoff):
        p.wait(lg=[('red', ldsoff)])
        p.ins(f'v_add_f32 {vr(vx)}, {vr(vx)}, {vr(vx+1)}\nv_add_f32 {vr(vx+2)}, {vr(vx+2)}, {vr(vx+3)}\nv_add_f32 {vr(x)}, {vr(vx)}, {vr(vx+2)}')
    p.ins(f'v_lshlrev_b32 {vr(vt+3)}, 4, {vr(vt)}\ns_lshl_b32 {sr(s1)}, {sr(sw)}, 2\nv_add_u32 {vr(vt+2)}, {sr(s1)}, {vr(vt+3)}')
    for i in range(16):
        p.ins(f'v_add_f32 {vr(vx+i)}, {vr(vf+i)}, {vr(vf+16+i)}')
    fold(16)
    def rnd2(a):
        p.ins(f'v_cvt_pk_bf16_f32 {vr(vt+5)}, {vr(a)}, {vr(a+1)}\nv_lshlrev_b32 {vr(a)}, 16, {vr(vt+5)}\nv_and_b32 {vr(a+1)}, 0xffff0000, {vr(vt+5)}')
    def modstage():
        p.wait(vm=['s1'])
        if finalize_mod:
            for i in range(8):
                p.ins(f'v_add_f32 {vr(vc+i)}, {vr(vc+i)}, {vr(vc+8+i)}\nv_add_f32 {vr(vs+i)}, {vr(vs+i)}, {vr(vs+8+i)}')
            for i in range(4):
                p.ins(f'v_add_f32 {vr(vc+i)}, {vr(vc+i)}, {vr(vc+4+i)}\nv_add_f32 {vr(vs+i)}, {vr(vs+i)}, {vr(vs+4+i)}')
            for a in (vc, vc + 2, vs, vs + 2):
                rnd2(a)
            for i in range(4):
                p.ins(f'v_add_f32 {vr(vc+i)}, 1.0, {vr(vc+i)}')
            rnd2(vc); rnd2(vc + 2)
        p.lg(f'ds_write_b128 {vr(vtid16)}, {vr(vc,4)}')
        p.lg(f'ds_write_b128 {vr(vtid16)}, {vr(vs,4)} offset:4096')
    wg_reduce(vt + 4, 8192, None if plain else modstage)
    for i in range(0 if plain else 4):
        for h in range(2):
            p.lg(f'ds_read_b128 {vr(vc+8*i+4*h,4)}, {vr(vm_)} offset:{256*i+hstep*h}')
    wg_reduce_fin(vt + 4, 8192)
    p.ins(f'v_mul_f32 {vr(vt+4)}, {f32(1.0/1024)}, {vr(vt+4)}')
    for i in range(0 if plain else 4):
        for h in range(2):
            p.lg(f'ds_read_b128 {vr(vs+8*i+4*h,4)}, {vr(vm_)} offset:{4096+256*i+hstep*h}')
    for i in range(16):
        p.ins(f'v_sub_f32 {vr(vx+i)}, {vr(vf+i)}, {vr(vt+4)}')
    for i in range(16):
        p.ins(f'v_mul_f32 {vr(vx+i)}, {vr(vx+i)}, {vr(vx+i)}')
    for i in range(16):
        p.ins(f'v_sub_f32 {vr(vt+1)}, {vr(vf+16+i)}, {vr(vt+4)}\nv_fmac_f32 {vr(vx+i)}, {vr(vt+1)}, {vr(vt+1)}')
    fold(16)
    wg_reduce(vt + 1, 8192 + 128)
    if not af_in:
        af_off(True)
    round_bf16(p, vt + 4, vt + 4)
    wg_reduce_fin(vt + 1, 8192 + 128)
    p.ins(f'v_mul_f32 {vr(vt+1)}, {f32(1.0/1024)}, {vr(vt+1)}')
    round_bf16(p, vt + 1, vt + 1)
    p.ins(f'v_add_f32 {vr(vt+1)}, {f32(1e-5)}, {vr(vt+1)}')
    round_bf16(p, vt + 1, vt + 1)
    p.ins(f'v_sqrt_f32 {vr(vt+1)}, {vr(vt+1)}\ns_nop 0')
    round_bf16(p, vt + 1, vt + 1)
    p.ins(f'v_rcp_f32 {vr(vt+1)}, {vr(vt+1)}\ns_nop 0')
    p.ins(f'v_mul_f32 {vr(vt+4)}, {vr(vt+4)}, {vr(vt+1)}')
    for i in range(4):
        for e in range(8):
            a = 8 * i + e
            p.ins(f'v_fma_f32 {vr(vf+a)}, {vr(vf+a)}, {vr(vt+1)}, -{vr(vt+4)}')
        for e in range(0 if plain else 8):
            a = 8 * i + e
            p.ins(f'v_fma_f32 {vr(vf+a)}, {vr(vf+a)}, {vr(vc+a)}, {vr(vs+a)}')
        for d in range(4):
            p.ins(f'v_cvt_pk_bf16_f32 {vr(vx+4*i+d)}, {vr(vf+8*i+2*d)}, {vr(vf+8*i+2*d+1)}')
        if not af_in:
            p.ins('s_nop 1')
            p.ins(f'v_permlane16_swap_b32 {vr(vx+4*i)}, {vr(vx+4*i+2)}\nv_permlane16_swap_b32 {vr(vx+4*i+1)}, {vr(vx+4*i+3)}')
        p.vm(f'buffer_store_dwordx4 {vr(vx+4*i,4)}, {vr(vo)}, {sr(sH,4)}, {sr(s0 if i < 2 else s3_)} offen offset:{2048*(i&1)} {cfg.get("sflags", "")}')
    k.end()
    k.lds = 8192 + 256
    return k

def gemm_common(k, g, sw, skg, sn_colbytes, vl, vt):
    p, S = k.p, k.S
    RB, ldw = g.RB, g.ldw
    s0 = g.sT
    p.ins(f's_lshl_b32 {sr(g.sWL)}, {sr(sw)}, 10')
    if RB == 256:
        p.ins(f'v_lshrrev_b32 {vr(vt)}, 4, {vr(vl)}\ns_lshl_b32 {sr(s0)}, {sr(sw)}, 2\nv_add_u32 {vr(vt)}, {sr(s0)}, {vr(vt)}')
        p.ins(f'v_and_b32 {vr(vt+1)}, 7, {vr(vt)}\nv_bfe_u32 {vr(vt+2)}, {vr(vl)}, 1, 3\nv_xor_b32 {vr(vt+1)}, {vr(vt+1)}, {vr(vt+2)}')
    else:
        p.ins(f'v_lshrrev_b32 {vr(vt)}, 3, {vr(vl)}\nv_bfe_u32 {vr(vt+1)}, {vr(vt)}, 1, 2\nv_bfe_u32 {vr(vt+2)}, {vr(vl)}, 1, 2\nv_xor_b32 {vr(vt+1)}, {vr(vt+1)}, {vr(vt+2)}')
        p.ins(f's_lshl_b32 {sr(s0)}, {sr(sw)}, 3\nv_add_u32 {vr(vt)}, {sr(s0)}, {vr(vt)}')
    p.ins(f'v_lshlrev_b32 {vr(vt+1)}, 5, {vr(vt+1)}\nv_and_b32 {vr(vt+2)}, 1, {vr(vl)}\nv_lshl_add_u32 {vr(vt+1)}, {vr(vt+2)}, 4, {vr(vt+1)}')
    p.ins(f'v_mul_u32_u24 {vr(vt)}, {ldw}, {vr(vt)}\nv_add3_u32 {vr(g.vdma)}, {vr(vt)}, {vr(vt+1)}, {sr(sn_colbytes)}')

def gemm_rdbase(k, g, skg, vl, vt):
    p = k.p
    RB = g.RB
    p.ins(f'v_lshrrev_b32 {vr(vt+1)}, 2, {vr(vl)}')
    if RB == 256:
        p.ins(f'v_and_b32 {vr(vt)}, 7, {vr(vt+1)}')
    else:
        p.ins(f'v_bfe_u32 {vr(vt)}, {vr(vt+1)}, 1, 2')
    p.ins(f'v_lshlrev_b32 {vr(vt)}, 5, {vr(vt)}\nv_lshl_add_u32 {vr(vt)}, {vr(vt+1)}, {RB.bit_length()-1}, {vr(vt)}\nv_and_b32 {vr(vt+1)}, 3, {vr(vl)}\nv_lshl_add_u32 {vr(vt)}, {vr(vt+1)}, 3, {vr(vt)}')
    if skg is not None:
        p.ins(f's_mul_i32 {sr(g.sT)}, {sr(skg)}, {32*RB}\nv_add_u32 {vr(vt)}, {sr(g.sT)}, {vr(vt)}')

def gemm_sets(k, g):
    for st in range(1, g.nsets):
        for t in range(g.nareg):
            k.p.ins(f'v_add_u32 {vr(g.waddr+st*g.nareg+t)}, {65536*st}, {vr(g.waddr+t)}')

def tilemap(k, kind, sm, sn, s0, s1):
    p = k.p
    p.ins(f's_and_b32 {sr(s0)}, s2, 7\ns_lshr_b32 {sr(s1)}, s2, 3')
    if kind == 'g3':
        p.ins(f's_and_b32 {sr(sn)}, {sr(s1)}, 3\ns_lshl_b32 {sr(s0)}, {sr(s0)}, 2\ns_add_u32 {sr(sn)}, {sr(sn)}, {sr(s0)}\ns_lshr_b32 {sr(sm)}, {sr(s1)}, 2')
    elif kind == 'g1':
        p.ins(f's_and_b32 {sr(sn)}, {sr(s0)}, 3\ns_lshl_b32 {sr(sn)}, {sr(sn)}, 2\ns_and_b32 {sr(sm)}, {sr(s1)}, 3\ns_add_u32 {sr(sn)}, {sr(sn)}, {sr(sm)}')
        p.ins(f's_lshr_b32 {sr(sm)}, {sr(s0)}, 2\ns_lshl_b32 {sr(sm)}, {sr(sm)}, 3\ns_lshr_b32 {sr(s1)}, {sr(s1)}, 2\ns_add_u32 {sr(sm)}, {sr(sm)}, {sr(s1)}')
    else:
        p.ins(f's_and_b32 {sr(sn)}, {sr(s0)}, 1\ns_lshl_b32 {sr(sn)}, {sr(sn)}, 3\ns_and_b32 {sr(sm)}, {sr(s1)}, 7\ns_add_u32 {sr(sn)}, {sr(sn)}, {sr(sm)}')
        p.ins(f's_lshr_b32 {sr(sm)}, {sr(s0)}, 1\ns_lshl_b32 {sr(sm)}, {sr(sm)}, 2\ns_lshr_b32 {sr(s1)}, {sr(s1)}, 3\ns_add_u32 {sr(sm)}, {sr(sm)}, {sr(s1)}')

PIGTAB = dict(wo=(A_WO, DM * DM * 2), wg=(B_WG, DM * FF * 2), wu=(B_WU, DM * FF * 2), wd=(B_WD, FF * DM * 2), x=(A_X, M * DM * 2), wm=(W_MOD, 1024 * 6144 * 2))
def pig_load(k, plan):
    ptr = {}
    for name, _, _, _ in plan:
        if name not in ptr:
            ptr[name] = k.S.alloc('pp_' + name, 2, 2)
            k.p.ins(f's_load_dwordx2 {sr(ptr[name], 2)}, s[0:1], {PIGTAB[name][0]}')
    return ptr
def pig_setup(k, g, plan, ptr, swg, sw, vl):
    p = k.p
    R = g.sPigSrd
    n0 = plan[0][0]
    p.ins(f's_mov_b64 {sr(R,2)}, {sr(ptr[n0],2)}\ns_mov_b32 {sr(R+2)}, 0\ns_mov_b32 {sr(R+3)}, 0x20000\ns_mov_b32 {sr(g.sPig)}, 0')
    p.ins(f's_mov_b32 {sr(g.sT)}, 0')
    for w, (name, off, nb, slot0) in enumerate(plan):
        assert off + nb <= PIGTAB[name][1]
        p.ins(f's_cmp_eq_u32 {sr(sw)}, {w}')
        if name != n0: p.ins(f's_cselect_b64 {sr(R,2)}, {sr(ptr[name],2)}, {sr(R,2)}')
        p.ins(f's_cselect_b32 {sr(R+2)}, {nb}, {sr(R+2)}')
        if off: p.ins(f's_cselect_b32 {sr(g.sT)}, {off}, {sr(g.sT)}')
        if slot0: p.ins(f's_cselect_b32 {sr(g.sPig)}, {(-slot0 * 256 * 8192) & 0xffffffff}, {sr(g.sPig)}')
    p.ins(f's_add_u32 {sr(R)}, {sr(R)}, {sr(g.sT)}\ns_addc_u32 {sr(R+1)}, {sr(R+1)}, 0')
    p.ins(f's_lshl_b32 {sr(g.sT)}, {sr(swg)}, 13\ns_add_u32 {sr(g.sPig)}, {sr(g.sPig)}, {sr(g.sT)}')
    p.ins(f'v_lshlrev_b32 {vr(g.vpig)}, 7, {vr(vl)}')

def pig_setup_x(k, g, ptr, swg, sw, vl, vt):
    p = k.p
    R = g.sPigSrd
    RS = 9 * 7168; W = 1024 * 7168
    g.pig_step = 32 * RS
    p.ins(f's_mov_b64 {sr(R,2)}, {sr(ptr["wg"],2)}\ns_mov_b32 {sr(R+2)}, 0\ns_mov_b32 {sr(R+3)}, 0x20000\ns_mov_b32 {sr(g.sPig)}, 0\ns_mov_b32 {sr(g.sT)}, 0')
    for w, (name, off, nb, slot0) in enumerate([('wg', 0, 96 * RS, 0), ('wu', 0, 96 * RS, 0), ('wo', 0, 2048 * 1024, 0), ('wg', 96 * RS, W - 96 * RS, 1), ('wu', 96 * RS, W - 96 * RS, 2)]):
        p.ins(f's_cmp_eq_u32 {sr(sw)}, {w}')
        if name != 'wg': p.ins(f's_cselect_b64 {sr(R,2)}, {sr(ptr[name],2)}, {sr(R,2)}')
        p.ins(f's_cselect_b32 {sr(R+2)}, {nb}, {sr(R+2)}')
        if off: p.ins(f's_cselect_b32 {sr(g.sT)}, {off}, {sr(g.sT)}')
        if slot0: p.ins(f's_cselect_b32 {sr(g.sPig)}, {(-slot0 * g.pig_step) & 0xffffffff}, {sr(g.sPig)}')
    p.ins(f's_add_u32 {sr(R)}, {sr(R)}, {sr(g.sT)}\ns_addc_u32 {sr(R+1)}, {sr(R+1)}, 0')
    p.ins(f's_lshr_b32 {sr(g.sT)}, {sr(swg)}, 3\ns_mul_i32 {sr(g.sT)}, {sr(g.sT)}, {RS}\ns_and_b32 vcc_lo, {sr(swg)}, 7\ns_mul_i32 vcc_lo, vcc_lo, 896\ns_add_u32 {sr(g.sT)}, {sr(g.sT)}, vcc_lo\ns_lshl_b32 vcc_lo, {sr(swg)}, 13')
    p.ins(f's_cmp_eq_u32 {sr(sw)}, 2\ns_cselect_b32 {sr(g.sT)}, vcc_lo, {sr(g.sT)}\ns_cselect_b64 vcc, -1, 0\ns_add_u32 {sr(g.sPig)}, {sr(g.sPig)}, {sr(g.sT)}')
    p.ins(f'v_min_u32 {vr(vt)}, 62, {vr(vl)}\nv_mul_u32_u24 {vr(vt+1)}, 37, {vr(vt)}\nv_lshrrev_b32 {vr(vt+1)}, 8, {vr(vt+1)}\nv_mul_u32_u24 {vr(vt+1)}, {7168 - 896}, {vr(vt+1)}\nv_lshl_add_u32 {vr(vt)}, {vr(vt)}, 7, {vr(vt+1)}\nv_lshlrev_b32 {vr(vt+1)}, 7, {vr(vl)}\nv_cndmask_b32 {vr(g.vpig)}, {vr(vt)}, {vr(vt+1)}, vcc')

def spig_setup(k, g, plan, ptr, swg, sw):
    p = k.p
    if len(plan) == 1:
        name, off, nb, _ = plan[0]
        p.ins(f's_mov_b64 {sr(g.sSB,2)}, {sr(ptr[name],2)}')
        p.ins(f's_lshl_b32 {sr(g.sSO)}, {sr(swg)}, 3\ns_add_u32 {sr(g.sSO)}, {sr(g.sSO)}, {sr(sw)}\ns_lshl_b32 {sr(g.sSO)}, {sr(g.sSO)}, 7')
        if off: p.ins(f's_add_u32 {sr(g.sSO)}, {sr(g.sSO)}, {off}')
        p.ins(f's_mov_b32 {sr(g.sSM)}, {off + nb - 128}')
    else:
        (n0, off, nb, _), (n1, off1, nb1, _) = plan
        assert (off, nb) == (off1, nb1)
        g.spig_stride = 1024 * 128
        p.ins(f's_bitcmp1_b32 {sr(sw)}, 0\ns_cselect_b64 {sr(g.sSB,2)}, {sr(ptr[n1],2)}, {sr(ptr[n0],2)}')
        p.ins(f's_lshl_b32 {sr(g.sSO)}, {sr(swg)}, 2\ns_lshr_b32 {sr(g.sT)}, {sr(sw)}, 1\ns_add_u32 {sr(g.sSO)}, {sr(g.sSO)}, {sr(g.sT)}\ns_lshl_b32 {sr(g.sSO)}, {sr(g.sSO)}, 7')
        if off: p.ins(f's_add_u32 {sr(g.sSO)}, {sr(g.sSO)}, {off}')
        p.ins(f's_mov_b32 {sr(g.sSM)}, {off + nb - 128}')

def tab_load(k, g, sP, sq, chunk_scale, chunk_shift, vtmp, s0):
    p = k.p
    p.ins(f'v_and_b32 {vr(vtmp)}, 255, v0\nv_lshlrev_b32 {vr(vtmp)}, 4, {vr(vtmp)}')
    p.ins(f's_cmp_eq_u32 {sr(sq)}, 0\ns_cselect_b32 {sr(s0)}, {chunk_scale}, {chunk_shift}\ns_lshl_b32 {sr(s0)}, {sr(s0)}, 12')
    for q in range(NPART):
        p.vm(f'buffer_load_dwordx4 {vr(g.acc+4*q,4)}, {vr(vtmp)}, {sr(sP,4)}, {sr(s0)} offen', ('tp', q))
        if q < NPART - 1: p.ins(f's_add_u32 {sr(s0)}, {sr(s0)}, {6144*4}')
def tab_build(k, g, sq, TAB, vt, s0):
    p = k.p
    a = g.acc
    p.ins(f'v_bfe_u32 {vr(vt)}, v0, 3, 5\nv_lshlrev_b32 {vr(vt)}, 8, {vr(vt)}\nv_and_b32 {vr(vt+1)}, 3, v0\nv_lshl_add_u32 {vr(vt)}, {vr(vt+1)}, 6, {vr(vt)}\nv_bfe_u32 {vr(vt+1)}, v0, 2, 1\nv_lshl_add_u32 {vr(vt)}, {vr(vt+1)}, 4, {vr(vt)}')
    p.ins(f's_lshl_b32 {sr(s0)}, {sr(sq)}, 5\ns_add_u32 {sr(s0)}, {sr(s0)}, {TAB}\nv_add_u32 {vr(vt)}, {sr(s0)}, {vr(vt)}')
    p.ins(f's_cmp_eq_u32 {sr(sq)}, 0\ns_cselect_b32 {sr(s0)}, 1.0, 0')
    p.wait(vm=[('tp', NPART - 1)])
    for i in range(8): p.ins(f'v_add_f32 {vr(a+i)}, {vr(a+i)}, {vr(a+8+i)}')
    for i in range(4): p.ins(f'v_add_f32 {vr(a+i)}, {vr(a+i)}, {vr(a+4+i)}')
    for rep in range(2):
        for i in (0, 2):
            p.ins(f'v_cvt_pk_bf16_f32 {vr(a+4)}, {vr(a+i)}, {vr(a+i+1)}\nv_lshlrev_b32 {vr(a+i)}, 16, {vr(a+4)}\nv_and_b32 {vr(a+i+1)}, 0xffff0000, {vr(a+4)}')
        if rep == 0:
            for i in range(4): p.ins(f'v_add_f32 {vr(a+i)}, {sr(s0)}, {vr(a+i)}')
    p.lg(f'ds_write_b128 {vr(vt)}, {vr(a,4)}')

def lanemask(f):
    m = 0
    for l in range(64):
        if f(l): m |= 1 << l
    return m
def smov64(p, s, m):
    p.ins(f's_mov_b32 {sr(s)}, 0x{m & 0xffffffff:08x}\ns_mov_b32 {sr(s+1)}, 0x{m >> 32:08x}')

def k_g1(cfg):
    k = K('k3_qkv_kernel', 256, 512); p, V, S = k.p, k.V, k.S
    sW = k.srd('w', A_WQKV, DM * 3072 * 2); sA = k.srd('a', WS, M * DM * 2, WS_H); sWm = k.srd('wmod', W_MOD, 1024 * 6144 * 2); sC = k.srd('c', IN_C, 2048)
    sP = k.srd('mod', WS, NPART * 6144 * 4, WS_MODP); sO = k.srd('o', WS, M * DM * 2, WS_O)
    pre = cfg.get('pre', lambda k: None)(k)
    plan = cfg.get('pig'); splan = cfg.get('spig'); pptr = pig_load(k, (plan or []) + (splan or []))
    sw = S.alloc('w'); sm = S.alloc('mt'); sn = S.alloc('nt'); s0 = S.alloc('t0'); s1 = S.alloc('t1'); skg = S.alloc('kg'); swm = S.alloc('wm'); swg = S.alloc('wg'); sjo = S.alloc('jo')
    vl = V.alloc('lane'); vl16 = V.alloc('lane16'); vt = V.alloc('t', 4)
    p.ins(f's_mov_b32 {sr(swg)}, s2')
    BK, RB = 64, 128
    seg = BK * RB
    segs = [dict(srd=sW, col=0), dict(srd=sW, col=2048), dict(srd=sW, col=4096)]
    tiles = [(t, 0) for t in range(12)]
    c2 = cfg.get('core2')
    if c2:
        g = Gemm2(p, V, S, 'g1', 8, 2, 2, DM, BK, cfg['NS'], cfg['D'], cfg['R'], cfg['DAS'], 6144, RB, segs, tiles, 12,
                  spread=cfg['spread'], ramp=cfg['ramp'], extra=(2, 8), pig_rounds=(cfg.get('pig_rounds', (1, 2, 3)) if plan else ()),
                  nprio=cfg.get('nprio', 4), wgrp=cfg.get('wgrp', 2), lead0=cfg.get('lead0', True), alead=cfg.get('alead', 3))
        g.amod = None
    else:
        g = Gemm(p, V, S, 'g1', 8, 2, 2, DM, BK, cfg['NS'], cfg['D'], cfg['R'], cfg['DAS'], 6144, RB, segs, tiles, 12,
                 P=4, spread=cfg['spread'], ramp=cfg['ramp'], BM=128, extra=(2, 8), wflags=cfg.get('wflags', ''), amod=cfg.get('amod'), alead=cfg.get('alead', 3), pig=bool(plan), spig=(cfg.get('spn', 2) if splan else 0))
    p.ins(f'v_lshrrev_b32 {vr(vt)}, 6, v0\nv_and_b32 {vr(vl)}, 63, v0\nv_readfirstlane_b32 {sr(sw)}, {vr(vt)}')
    tilemap(k, 'g1', sm, sn, s0, s1)
    p.ins(f's_add_u32 {sr(g.sLead)}, {sr(sm)}, {sr(sn)}\ns_and_b32 {sr(g.sLead)}, {sr(g.sLead)}, 3')
    p.ins(f's_and_b32 {sr(swm)}, {sr(sw)}, 3\ns_lshr_b32 {sr(skg)}, {sr(sw)}, 2')
    p.ins(f's_lshl_b32 {sr(s1)}, {sr(sn)}, 7')
    gemm_common(k, g, sw, skg, s1, vl, vt)
    if c2: g.setup_vdma()
    p.ins(f'v_lshlrev_b32 {vr(vl16)}, 4, {vr(vl)}')
    p.ins(f's_lshl_b32 {sr(s0)}, {sr(sm)}, 3\ns_lshl_b32 {sr(s1)}, {sr(swm)}, 1\ns_add_u32 {sr(s0)}, {sr(s0)}, {sr(s1)}\ns_lshl_b32 {sr(s0)}, {sr(s0)}, 5\ns_add_u32 {sr(s0)}, {sr(s0)}, {sr(skg)}\ns_lshl_b32 {sr(s0)}, {sr(s0)}, 10')
    p.ins(f'v_add_u32 {vr(g.va)}, {sr(s0)}, {vr(vl16)}\nv_add_u32 {vr(g.va+1)}, 32768, {vr(g.va)}')
    p.ins(f's_lshl_b32 {sr(g.sWX)}, {sr(sw)}, 8')
    p.ins(f's_lshl_b32 {sr(s0)}, {sr(sm)}, 3\ns_max_u32 {sr(s0)}, {sr(s0)}, 1\ns_sub_u32 {sr(s0)}, {sr(s0)}, 1\ns_lshl_b32 {sr(s0)}, {sr(s0)}, 15\ns_add_u32 {sr(s0)}, {sr(s0)}, {sr(g.sWX)}')
    p.ins(f'v_lshl_add_u32 {vr(g.vx)}, {vr(vl)}, 2, {sr(s0)}')
    k.finish_srds()
    if g.amod: tab_load(k, g, sP, skg, 1, 0, vt, s0)
    g.prologue(sA)
    if plan: pig_setup(k, g, plan, pptr, swg, sw, vl)
    if splan: spig_setup(k, g, splan, pptr, swg, sw)
    gemm_rdbase(k, g, skg, vl, vt)
    p.ins(f's_lshl_b32 {sr(s0)}, {sr(skg)}, 6\nv_xor_b32 {vr(g.waddr)}, {sr(s0)}, {vr(vt)}\nv_xor_b32 {vr(g.waddr+1)}, 32, {vr(g.waddr)}')
    for s_ in range(4):
        p.ins(f's_xor_b32 {sr(s0)}, {sr(swm)}, {s_}\ns_and_b32 {sr(s1)}, {sr(s0)}, 1\ns_lshl_b32 {sr(s1)}, {sr(s1)}, 5\ns_lshr_b32 {sr(s0)}, {sr(s0)}, 1\ns_add_u32 {sr(s0)}, {sr(s0)}, 1\ns_mul_i32 {sr(s0)}, {sr(s0)}, {seg}')
        p.ins(f'v_xor_b32 {vr(g.waddr+2+s_)}, {sr(s1)}, {vr(g.waddr)}\nv_add_u32 {vr(g.waddr+2+s_)}, {sr(s0)}, {vr(g.waddr+2+s_)}')
    for t in range(6):
        p.ins(f'v_xor_b32 {vr(g.waddr+6+t)}, 64, {vr(g.waddr+t)}')
    gemm_sets(k, g)
    p.ins(f's_lshl_b32 {sr(s0)}, {sr(skg)}, 10\ns_add_u32 {sr(s0)}, {sr(s0)}, {g.x_base}\nv_add_u32 {vr(g.xaddr)}, {sr(s0)}, {vr(vl16)}')
    if g.amod:
        TAB = g.lds_end
        p.ins(f's_lshl_b32 {sr(s0)}, {sr(skg)}, 8\ns_add_u32 {sr(s0)}, {sr(s0)}, {TAB}\nv_lshrrev_b32 {vr(vt)}, 4, {vr(vl)}\nv_lshl_add_u32 {vr(g.vtab)}, {vr(vt)}, 6, {sr(s0)}')
        g.first_reads(lambda: tab_build(k, g, skg, TAB, vt, s0))
    elif not c2:
        g.first_reads()
    def hook(i):
        k.mark(i - 1)
        if i == 2 and cfg.get('mid'): cfg['mid'](k, pre, swg, sw, vl)
    if c2: g.run(marks={0: lambda: hook(1), 4 * g.F: lambda: hook(2)})
    else: g.mainloop(stamp=hook)
    k.mark(2)
    R1 = 13 * 1024
    KV = 8 * R1
    k.lds = max(g.lds_end, KV + 36 * 1024)
    va_ = g.waddr
    JL = KV + 36 * 1024
    k.lds = max(k.lds, JL + 2048)
    jw = g.wbuf; jc = g.wbuf + 16; js = g.wbuf + 18; ju = g.wbuf + 22; ja = g.abuf; jt = g.abuf + 8
    p.ins(f's_and_b32 {sr(s0)}, {sr(swg)}, 3\ns_lshl_b32 {sr(s0)}, {sr(s0)}, 8\ns_lshl_b32 {sr(s1)}, {sr(sw)}, 5\ns_add_u32 {sr(s0)}, {sr(s0)}, {sr(s1)}')
    p.ins(f'v_lshrrev_b32 {vr(vt)}, 3, {vr(vl)}\nv_lshl_add_u32 {vr(vt)}, {vr(vt)}, 2, {sr(s0)}\nv_lshlrev_b32 {vr(vt+1)}, 1, {vr(vt)}')
    p.ins(f'v_mul_u32_u24 {vr(vt)}, 12288, {vr(vt)}\nv_and_b32 {vr(vt+2)}, 7, {vr(vl)}\nv_lshl_add_u32 {vr(vt)}, {vr(vt+2)}, 4, {vr(vt)}')
    p.ins(f's_lshr_b32 {sr(sjo)}, {sr(swg)}, 2\ns_add_u32 {sr(sjo)}, {sr(sjo)}, 32\ns_lshl_b32 {sr(s1)}, {sr(sjo)}, 7')
    p.wait(vm='all', lg='all')
    p.vm(f'buffer_load_dwordx2 {vr(jc,2)}, {vr(vt+1)}, {sr(sC,4)}, 0 offen', 'jc')
    for i in range(4):
        p.vm(f'buffer_load_dwordx4 {vr(jw+4*i,4)}, {vr(vt)}, {sr(sWm,4)}, {sr(s1)} offen nt', ('jw', i))
        if i < 3:
            p.ins(f's_add_u32 {sr(s1)}, {sr(s1)}, 12288')
    p.ins(f's_lshl_b32 {sr(sjo)}, {sr(sjo)}, 8\ns_and_b32 {sr(s0)}, {sr(swg)}, 3\ns_mul_i32 {sr(s0)}, {sr(s0)}, {6144*4}\ns_add_u32 {sr(sjo)}, {sr(sjo)}, {sr(s0)}')
    p.ins('s_barrier')
    p.ins(f's_mul_i32 {sr(s0)}, {sr(sw)}, {R1}\nv_add_u32 {vr(va_)}, {sr(s0)}, {vr(vl16)}')
    p.ins(f's_xor_b32 {sr(s0)}, {sr(sw)}, 4\ns_mul_i32 {sr(s0)}, {sr(s0)}, {R1}\nv_add_u32 {vr(va_+1)}, {sr(s0)}, {vr(vl16)}')
    send = [g.accr(t, m) for t in range(6, 12) for m in range(2)] + [g.xacc + 4]
    keep = [g.accr(t, m) for t in range(6) for m in range(2)] + [g.xacc]
    for i, r in enumerate(send):
        p.lg(f'ds_write_b128 {vr(va_)}, {vr(r,4)} offset:{1024*i}')
    if cfg.get('tail'): cfg['tail'](k, pre, swg, sw, vl)
    mA = sW
    assert sC == sW + 12
    q = lambda l: l & 15
    gg = lambda l: l >> 4
    for r in range(4):
        smov64(p, mA + 2 * r, lanemask(lambda l: 4 * gg(l) + r <= q(l)))
    smov64(p, mA + 8, lanemask(lambda l: l & 1))
    smov64(p, mA + 10, lanemask(lambda l: not (4 * gg(l) + (l & 1) <= q(l))))
    smov64(p, mA + 12, lanemask(lambda l: not (4 * gg(l) + 2 + (l & 1) <= q(l))))
    vM = V.alloc('pm', 4)
    vH = vt
    p.ins(f'v_mov_b32 {vr(vH)}, 0xffff\nv_mov_b32 {vr(vH+1)}, 0xffff0000\nv_cndmask_b32 {vr(vH)}, {vr(vH)}, {vr(vH+1)}, {sr(mA+8,2)}')
    p.ins(f'v_cndmask_b32 {vr(vM)}, 0, {vr(vH)}, {sr(mA+10,2)}\nv_cndmask_b32 {vr(vM+1)}, 0, {vr(vH)}, {sr(mA+12,2)}')
    p.ins(f'v_xor_b32 {vr(vM+2)}, {vr(vM)}, {vr(vH)}\nv_xor_b32 {vr(vM+3)}, {vr(vM+1)}, {vr(vH)}')
    p.ins(f's_or_b32 {sr(s0)}, {sr(sm)}, {sr(swm)}\ns_cmp_eq_u32 {sr(s0)}, 0\ns_cselect_b64 {sr(mA+10,2)}, {sr(mA+10,2)}, 0\ns_cselect_b64 {sr(mA+12,2)}, {sr(mA+12,2)}, 0')
    for s_ in range(4):
        p.ins(f's_xor_b32 {sr(s0)}, {sr(swm)}, {s_}\ns_lshr_b32 {sr(s1)}, {sr(s0)}, 1\ns_lshl_b32 {sr(g.sT)}, {sr(skg)}, 1\ns_add_u32 {sr(s1)}, {sr(s1)}, {sr(g.sT)}\ns_mul_i32 {sr(s1)}, {sr(s1)}, 9216')
        p.ins(f's_and_b32 {sr(s0)}, {sr(s0)}, 1\ns_lshl_b32 {sr(s0)}, {sr(s0)}, 3\ns_add_u32 {sr(s1)}, {sr(s1)}, {sr(s0)}\ns_add_u32 {sr(s1)}, {sr(s1)}, {KV}')
        if s_ == 0:
            p.ins(f'v_add_u32 {vr(va_+6)}, {sr(s1)}, {vr(vl16)}')
        p.ins(f's_lshl_b32 {sr(s0)}, {sr(swm)}, 11\ns_add_u32 {sr(s1)}, {sr(s1)}, {sr(s0)}')
        p.ins(f'v_add_u32 {vr(va_+2+s_)}, {sr(s1)}, {vr(vl16)}')
    p.ins(f's_mul_i32 {sr(s1)}, {sr(skg)}, {18*1024}\ns_lshl_b32 {sr(s0)}, {sr(swm)}, 11\ns_add_u32 {sr(s1)}, {sr(s1)}, {sr(s0)}\ns_add_u32 {sr(s1)}, {sr(s1)}, {KV}')
    p.ins(f'v_add_u32 {vr(va_+7)}, {sr(s1)}, {vr(vl16)}')
    p.ins(f'v_lshrrev_b32 {vr(vt+2)}, 2, {vr(vl)}\nv_and_b32 {vr(vt+3)}, 3, {vr(vl)}\nv_lshl_add_u32 {vr(vt+2)}, {vr(vt+3)}, 4, {vr(vt+2)}\ns_add_u32 {sr(s1)}, {sr(s1)}, 9216\nv_lshl_add_u32 {vr(va_+8)}, {vr(vt+2)}, 4, {sr(s1)}')
    p.wait(lg='all')
    p.ins('s_barrier')
    order = [4, 5, 6, 7, 8, 9, 10, 11, 12, 0, 1, 2, 3]
    for i in order:
        p.lg(f'ds_read_b128 {vr(send[i],4)}, {vr(va_+1)} offset:{1024*i}', ('r1', i))
    for i in order:
        p.wait(lg=[('r1', i)])
        r, o = keep[i], send[i]
        for e in range(4):
            p.ins(f'v_add_f32 {vr(r+e)}, {vr(r+e)}, {vr(o+e)}')
        if i >= 4:
            p.ins(f'v_cvt_pk_bf16_f32 {vr(r)}, {vr(r)}, {vr(r+1)}\nv_cvt_pk_bf16_f32 {vr(r+1)}, {vr(r+2)}, {vr(r+3)}')
            if i == 12:
                p.lg(f'ds_write_b64 {vr(va_+6)}, {vr(r,2)}')
            else:
                s_, m = divmod(i - 4, 2)
                p.lg(f'ds_write_b64 {vr(va_+2+s_)}, {vr(r,2)} offset:{1024*(1+m)}')
    vQ = V.alloc('Q', 8, 4)
    for m in range(2):
        for d in range(2):
            r = g.accr(d, m)
            p.ins(f'v_cvt_pk_bf16_f32 {vr(vQ+4*m+2*d)}, {vr(r)}, {vr(r+1)}\nv_cvt_pk_bf16_f32 {vr(vQ+4*m+2*d+1)}, {vr(r+2)}, {vr(r+3)}')
    p.wait(lg='all')
    p.ins('s_barrier')
    vK = g.acc; vVd = g.acc + 12; vS = g.acc + 24; vP = g.acc + 40; vOo = g.acc + 48; vw = g.acc + 64
    for b in range(3):
        p.lg(f'ds_read_b128 {vr(vK+4*b,4)}, {vr(va_+7)} offset:{1024*b}', ('K', b))
    for b in range(3):
        for d in range(2):
            p.lg(f'ds_read_b64_tr_b16 {vr(vVd+6*d+2*b,2)}, {vr(va_+8)} offset:{1024*b+8*d}', ('V', b, d))
    p.ins(f's_lshl_b32 {sr(s0)}, {sr(sm)}, 3\ns_lshl_b32 {sr(s1)}, {sr(swm)}, 1\ns_add_u32 {sr(s0)}, {sr(s0)}, {sr(s1)}\ns_lshl_b32 {sr(s0)}, {sr(s0)}, 5\ns_lshl_b32 {sr(s1)}, {sr(sn)}, 1\ns_add_u32 {sr(s0)}, {sr(s0)}, {sr(s1)}\ns_add_u32 {sr(s0)}, {sr(s0)}, {sr(skg)}\ns_lshl_b32 {sr(s0)}, {sr(s0)}, 10\ns_add_u32 {sr(s1)}, {sr(s0)}, 32768')
    for m in range(2):
        p.wait(lg=[('K', m + 1)])
        for h in range(2):
            p.ins(f'{MFMA} {vr(vS+8*m+4*h,4)}, {vr(vK+4*(m+h),4)}, {vr(vQ+4*m,4)}, 0')
    p.ins('s_nop 7')
    SC = (32 ** -0.5) * LOG2E
    def both(f):
        for m in range(2):
            f(m, vS + 8 * m, vw + 8 * m)
    for r in range(4):
        both(lambda m, s, w: p.ins(f'v_cndmask_b32 {vr(w+r)}, {vr(s+r)}, {vr(s+4+r)}, {sr(mA+2*r,2)}'))
    both(lambda m, s, w: p.ins(f'v_cndmask_b32 {vr(w)}, {vr(w)}, {vr(w+1)}, {sr(mA+8,2)}\nv_cndmask_b32 {vr(w+1)}, {vr(w+2)}, {vr(w+3)}, {sr(mA+8,2)}'))
    both(lambda m, s, w: p.ins(f'v_mul_f32 {vr(w)}, {f32(SC)}, {vr(w)}\nv_mul_f32 {vr(w+1)}, {f32(SC)}, {vr(w+1)}'))
    p.ins(f'v_mov_b32 {vr(vt)}, {f32(-1e9)}')
    p.ins(f'v_cndmask_b32 {vr(vw)}, {vr(vw)}, {vr(vt)}, {sr(mA+10,2)}\nv_cndmask_b32 {vr(vw+1)}, {vr(vw+1)}, {vr(vt)}, {sr(mA+12,2)}')
    both(lambda m, s, w: p.ins(f'v_max_f32 {vr(w+2)}, {vr(w)}, {vr(w+1)}'))
    def xred(op, off):
        for st in (16, 32):
            both(lambda m, s, w: p.ins(f'v_mov_b32 {vr(w+3)}, {vr(w+off)}'))
            p.ins('s_nop 0')
            both(lambda m, s, w: p.ins(f'v_permlane{st}_swap_b32 {vr(w+off)}, {vr(w+3)}'))
            both(lambda m, s, w: p.ins(f'{op} {vr(w+off)}, {vr(w+off)}, {vr(w+3)}'))
    xred('v_max_f32', 2)
    both(lambda m, s, w: p.ins(f'v_sub_f32 {vr(w)}, {vr(w)}, {vr(w+2)}\nv_sub_f32 {vr(w+1)}, {vr(w+1)}, {vr(w+2)}'))
    both(lambda m, s, w: p.ins(f'v_exp_f32 {vr(w)}, {vr(w)}\nv_exp_f32 {vr(w+1)}, {vr(w+1)}'))
    p.ins('s_nop 0')
    both(lambda m, s, w: p.ins(f'v_add_f32 {vr(w+2)}, {vr(w)}, {vr(w+1)}'))
    xred('v_add_f32', 2)
    both(lambda m, s, w: p.ins(f'v_rcp_f32 {vr(w+2)}, {vr(w+2)}'))
    p.ins('s_nop 0')
    both(lambda m, s, w: p.ins(f'v_mul_f32 {vr(w)}, {vr(w)}, {vr(w+2)}\nv_mul_f32 {vr(w+1)}, {vr(w+1)}, {vr(w+2)}'))
    both(lambda m, s, w: p.ins(f'v_cvt_pk_bf16_f32 {vr(w)}, {vr(w)}, {vr(w)}\nv_cvt_pk_bf16_f32 {vr(w+1)}, {vr(w+1)}, {vr(w+1)}'))
    both(lambda m, s, w: p.ins('\n'.join(f'v_and_b32 {vr(vP+4*m+i)}, {vr(vM+i)}, {vr(w+(i&1))}' for i in range(4))))
    p.wait(lg='all')
    p.ins('s_nop 0')
    for m in range(2):
        for d in range(2):
            p.ins(f'{MFMA} {vr(vOo+8*m+4*d,4)}, {vr(vVd+6*d+2*m,4)}, {vr(vP+4*m,4)}, 0')
    p.ins('s_nop 7')
    for m in range(2):
        o = vOo + 8 * m
        for i in range(4):
            p.ins(f'v_cvt_pk_bf16_f32 {vr(vS+4*m+i)}, {vr(o+2*i)}, {vr(o+2*i+1)}')
        p.vm(f'buffer_store_dwordx4 {vr(vS+4*m,4)}, {vr(vl16)}, {sr(sO,4)}, {sr(s0 if m == 0 else s1)} offen {cfg.get("sflags", "")}')
    p.wait(vm=['jc'])
    for i in range(4):
        src = jc + i // 2
        p.ins(f'v_lshlrev_b32 {vr(js+i)}, 16, {vr(src)}' if i % 2 == 0 else f'v_and_b32 {vr(js+i)}, 0xffff0000, {vr(src)}')
    for op in ('mul', 'exp', 'add', 'rcp', 'fin'):
        for i in range(4):
            p.ins({'mul': f'v_mul_f32 {vr(ja+i)}, {f32(-LOG2E)}, {vr(js+i)}', 'exp': f'v_exp_f32 {vr(ja+i)}, {vr(ja+i)}',
                   'add': f'v_add_f32 {vr(ja+i)}, 1.0, {vr(ja+i)}', 'rcp': f'v_rcp_f32 {vr(ja+i)}, {vr(ja+i)}',
                   'fin': f'v_mul_f32 {vr(js+i)}, {vr(js+i)}, {vr(ja+i)}'}[op])
    for i in range(0, 4, 2):
        p.ins(f'v_cvt_pk_bf16_f32 {vr(ju)}, {vr(js+i)}, {vr(js+i+1)}\nv_lshlrev_b32 {vr(js+i)}, 16, {vr(ju)}\nv_and_b32 {vr(js+i+1)}, 0xffff0000, {vr(ju)}')
    p.ins(f'v_and_b32 {vr(jt)}, 7, {vr(vl)}\nv_lshlrev_b32 {vr(jt)}, 5, {vr(jt)}\nv_lshrrev_b32 {vr(jt+1)}, 4, {vr(vl)}\nv_lshl_add_u32 {vr(jt)}, {vr(jt+1)}, 3, {vr(jt)}')
    p.ins(f's_lshl_b32 {sr(s0)}, {sr(sw)}, 8\ns_add_u32 {sr(s0)}, {sr(s0)}, {JL}\nv_add_u32 {vr(jt)}, {sr(s0)}, {vr(jt)}\nv_lshlrev_b32 {vr(jt+1)}, 2, {vr(vl)}\nv_add_u32 {vr(jt+2)}, {JL}, {vr(jt+1)}')
    gemv_acc(p, 4, jw, js, ja, ju, lambda i: ('jw', i))
    gemv_reduce(p, ja)
    p.lg(f'ds_write_b64 {vr(jt)}, {vr(ja,2)}')
    p.wait(lg='all')
    p.ins('s_barrier')
    p.ins(f's_cmp_lg_u32 {sr(sw)}, 0\ns_cbranch_scc1 E_{k.name}')
    for i in range(8):
        p.lg(f'ds_read_b32 {vr(ja+i)}, {vr(jt+2)} offset:{256*i}')
    p.wait(lg='all')
    for a, b in ((0, 1), (2, 3), (4, 5), (6, 7), (0, 2), (4, 6), (0, 4)):
        p.ins(f'v_add_f32 {vr(ja+a)}, {vr(ja+a)}, {vr(ja+b)}')
    p.vm(f'buffer_store_dword {vr(ja)}, {vr(jt+1)}, {sr(sP,4)}, {sr(sjo)} offen')
    k.end()
    return k

def k_gres(name, cfg, KK, wslot, a_off, gchunk, first):
    NW = cfg.get('NW', 8); WM = 8 // NW
    k = K(name, 256, 64 * NW); p, V, S = k.p, k.V, k.S
    fold = first and cfg.get('fold')
    sW = k.srd('w', wslot, KK * DM * 2); sA = k.srd('a', WS, M * KK * 2, a_off)
    sRM = k.srd('rm', A_X if first else OUT, M * DM * 2)
    sAF = k.srd('af', WS, M * DM * 2, WS_X1); sG = k.srd('g', WS, NPART * 6144 * 4, WS_MODP)
    plan = cfg.get('pig'); splan = None; pptr = pig_load(k, plan or [])
    if fold:
        sY = k.srd('y', WS, M * DM * 2 + 32768, WS_Y); sST = k.srd('st', WS, 128 * 2048, WS_ST)
    pre = cfg.get('pre', lambda k: None)(k)
    swg = S.alloc('wg'); p.ins(f's_mov_b32 {sr(swg)}, s2')
    sw = S.alloc('w'); sm = S.alloc('mt'); sn = S.alloc('nt'); s0 = S.alloc('t0'); s1 = S.alloc('t1'); sro = S.alloc('ro', WM); saf = S.alloc('afo', WM); sxl = S.alloc('xl')
    vl = V.alloc('lane'); vl16 = V.alloc('l16'); vt = V.alloc('t', 4); vro = V.alloc('ro', 2); vgo = V.alloc('go'); vxa = V.alloc('xa', 4); vl4 = V.alloc('l4', 2)
    vx = V.alloc('x', 8 * WM, 4); vg = V.alloc('g', 16, 4)
    if fold:
        vc = V.alloc('c', 16, 4); vsb = V.alloc('sb', 16, 4); vy = V.alloc('y', 8 * WM, 4)
    RB = 128
    g = Gemm(p, V, S, name, NW, 1, WM, KK, cfg['BK'], cfg['NS'], cfg['D'], cfg['R'], cfg['DAS'], 2048, RB, [dict(srd=sW, col=0)],
             [(t, 0) for t in range(4)], 4, P=4, spread=cfg['spread'], ramp=cfg['ramp'], wflags=cfg.get('wflags', ''), pig=bool(plan), prio=(NW == 8))
    XL = g.NS * g.stagebytes
    GL = XL + 16384
    k.lds = max(GL + 8192, 82 * 1024)
    p.ins(f'v_lshrrev_b32 {vr(vt)}, 6, v0\nv_and_b32 {vr(vl)}, 63, v0\nv_readfirstlane_b32 {sr(sw)}, {vr(vt)}')
    tilemap(k, 'g4', sm, sn, s0, s1)
    p.ins(f's_add_u32 {sr(g.sLead)}, {sr(sm)}, {sr(sn)}\ns_and_b32 {sr(g.sLead)}, {sr(g.sLead)}, 3')
    p.ins(f's_lshl_b32 {sr(s1)}, {sr(sn)}, 7')
    gemm_common(k, g, sw, None, s1, vl, vt)
    p.ins(f's_lshl_b32 {sr(s0)}, {sr(sm)}, 3\ns_mul_i32 {sr(sro)}, {sr(sw)}, {WM}\ns_add_u32 {sr(s0)}, {sr(s0)}, {sr(sro)}\ns_lshl_b32 {sr(sro)}, {sr(s0)}, 15\ns_mul_i32 {sr(s0)}, {sr(s0)}, {KK//32*1024}')
    p.ins(f'v_lshlrev_b32 {vr(vl16)}, 4, {vr(vl)}\nv_add_u32 {vr(g.va)}, {sr(s0)}, {vr(vl16)}')
    for m in range(1, WM):
        p.ins(f'v_add_u32 {vr(g.va+m)}, {m*KK//32*1024}, {vr(g.va)}')
    k.finish_srds()
    g.prologue(sA)
    if plan: pig_setup(k, g, plan, pptr, swg, sw, vl)
    gemm_rdbase(k, g, None, vl, vt)
    for t in range(4):
        p.ins(f'v_xor_b32 {vr(g.waddr+t)}, {t<<5}, {vr(vt)}')
    gemm_sets(k, g)
    p.ins(f's_lshl_b32 {sr(s1)}, {sr(sn)}, 11\ns_add_u32 {sr(saf)}, {sr(sro)}, {sr(s1)}')
    p.ins(f's_lshl_b32 {sr(s1)}, {sr(sn)}, 7\ns_add_u32 {sr(sro)}, {sr(sro)}, {sr(s1)}\ns_lshl_b32 {sr(s1)}, {sr(sn)}, 8\ns_add_u32 {sr(s1)}, {sr(s1)}, {gchunk*4096}')
    for m in range(1, WM):
        p.ins(f's_add_u32 {sr(saf+m)}, {sr(saf)}, {32768*m}\ns_add_u32 {sr(sro+m)}, {sr(sro)}, {32768*m}')
    p.ins(f's_mul_i32 {sr(sxl)}, {sr(sw)}, {2048*WM}\ns_add_u32 {sr(sxl)}, {sr(sxl)}, {XL}')
    p.ins(f's_lshl_b32 {sr(s0)}, {sr(sw)}, 10\ns_add_u32 {sr(s0)}, {sr(s0)}, {GL}\nv_lshrrev_b32 {vr(vt+1)}, 4, {vr(vl)}\nv_lshl_add_u32 {vr(vgo)}, {vr(vt+1)}, 4, {sr(s0)}\nv_lshlrev_b32 {vr(vl4)}, 2, {vr(vl)}\nv_add_u32 {vr(vl4+1)}, {sr(s0)}, {vr(vl4)}')
    p.ins(f'v_lshrrev_b32 {vr(vt)}, 3, {vr(vl)}\nv_and_b32 {vr(vt+2)}, 7, {vr(vl)}\nv_xor_b32 {vr(vt+2)}, {vr(vt+2)}, {vr(vt+1)}\nv_lshlrev_b32 {vr(vt+2)}, 4, {vr(vt+2)}\nv_lshl_add_u32 {vr(vro)}, {vr(vt)}, 11, {vr(vt+2)}')
    p.ins(f'v_xor_b32 {vr(vro+1)}, 64, {vr(vro)}\nv_add_u32 {vr(vro+1)}, 16384, {vr(vro+1)}')
    p.ins(f'v_and_b32 {vr(vt)}, 15, {vr(vl)}\nv_lshrrev_b32 {vr(vt+2)}, 1, {vr(vt)}\nv_lshrrev_b32 {vr(vt+3)}, 5, {vr(vl)}\nv_xor_b32 {vr(vt+2)}, {vr(vt+2)}, {vr(vt+3)}\nv_lshlrev_b32 {vr(vt+2)}, 4, {vr(vt+2)}\nv_lshl_add_u32 {vr(vt+2)}, {vr(vt)}, 7, {vr(vt+2)}')
    p.ins(f'v_and_b32 {vr(vt+1)}, 1, {vr(vt+1)}\nv_lshl_add_u32 {vr(vt+2)}, {vr(vt+1)}, 3, {vr(vt+2)}')
    for t in range(4):
        p.ins(f'v_xor_b32 {vr(vxa+t)}, {t<<5}, {vr(vt+2)}\nv_add_u32 {vr(vxa+t)}, {sr(sxl)}, {vr(vxa+t)}')
    g.first_reads()
    def hook(i):
        k.mark(i-1)
        if i == 2:
            for m in range(WM):
                for q in range(2):
                    if first:
                        p.ins(f's_add_u32 m0, {sr(sxl)}, {2048*m+1024*q}\ns_nop 0')
                        p.vm(f'buffer_load_dwordx4 {vr(vro+q)}, {sr(sRM,4)}, {sr(sro+m)} offen lds')
                    else:
                        p.vm(f'buffer_load_dwordx4 {vr(vx+8*m+4*q,4)}, {vr(vl16)}, {sr(sAF,4)}, {sr(saf+m)} offen offset:{1024*q}')
            for q in range(NPART):
                if fold:
                    p.ins(f's_add_u32 {sr(s0)}, {sr(s1)}, 4096')
                    p.vm(f'buffer_load_dword {vr(vsb+q)}, {vr(vl4)}, {sr(sG,4)}, {sr(s0)} offen')
                    p.ins(f's_add_u32 {sr(s0)}, {sr(s1)}, 8192')
                    p.vm(f'buffer_load_dword {vr(vc+q)}, {vr(vl4)}, {sr(sG,4)}, {sr(s0)} offen')
                p.vm(f'buffer_load_dword {vr(vg+q)}, {vr(vl4)}, {sr(sG,4)}, {sr(s1)} offen', ('g', q))
                if q < NPART - 1:
                    p.ins(f's_add_u32 {sr(s1)}, {sr(s1)}, {6144*4}')
            if cfg.get('mid'): cfg['mid'](k, pre, swg, sw, vl)
    g.mainloop(stamp=hook)
    k.mark(2)
    if cfg.get('tail'): cfg['tail'](k, pre, swg, sw, vl)
    p.wait(vm=[('g', 3)])
    p.ins(f'v_add_f32 {vr(vg)}, {vr(vg)}, {vr(vg+1)}\nv_add_f32 {vr(vg+2)}, {vr(vg+2)}, {vr(vg+3)}\nv_add_f32 {vr(vg)}, {vr(vg)}, {vr(vg+2)}')
    round_bf16(p, vt, vg)
    p.lg(f'ds_write_b32 {vr(vl4+1)}, {vr(vt)}')
    if fold:
        for i, r in enumerate((vc, vsb)):
            p.ins(f'v_add_f32 {vr(r)}, {vr(r)}, {vr(r+1)}\nv_add_f32 {vr(r+2)}, {vr(r+2)}, {vr(r+3)}\nv_add_f32 {vr(r)}, {vr(r)}, {vr(r+2)}')
            round_bf16(p, vt + 1 + i, r)
            if i == 0:
                p.ins(f'v_add_f32 {vr(vt+1)}, 1.0, {vr(vt+1)}')
                round_bf16(p, vt + 1, vt + 1)
            p.lg(f'ds_write_b32 {vr(vl4+1)}, {vr(vt+1+i)} offset:{256*(i+1)}')
    if first:
        for m in range(WM):
            for t in range(4):
                p.lg(f'ds_read_b64 {vr(vx+8*m+2*t,2)}, {vr(vxa+t)} offset:{2048*m}')
    for t in range(4):
        p.lg(f'ds_read_b128 {vr(vg+4*t,4)}, {vr(vgo)} offset:{64*t}', ('gl', t))
    if fold:
        for t in range(4):
            p.lg(f'ds_read_b128 {vr(vc+4*t,4)}, {vr(vgo)} offset:{256+64*t}', ('cl', t))
        for t in range(4):
            p.lg(f'ds_read_b128 {vr(vsb+4*t,4)}, {vr(vgo)} offset:{512+64*t}', ('sl', t))
    p.wait(lg=[('gl', 3)])
    sf = cfg.get('sflags', '')
    assert g.R * 4 >= 16 * WM
    for m in range(WM):
        vf = g.wbuf + 16 * m; xm = vx + 8 * m
        for t in range(4):
            for d in range(2):
                p.ins(f'v_lshlrev_b32 {vr(vf+4*t+2*d)}, 16, {vr(xm+2*t+d)}\nv_and_b32 {vr(vf+4*t+2*d+1)}, 0xffff0000, {vr(xm+2*t+d)}')
        for t in range(4):
            c = g.accr(t, m)
            for e in range(4):
                p.ins(f'v_fmac_f32 {vr(vf+4*t+e)}, {vr(vg+4*t+e)}, {vr(c+e)}')
            if fold:
                if m == 0 and t == 0: p.wait(lg=[('cl', 3)])
                for e in range(4):
                    p.ins(f'v_mul_f32 {vr(c+e)}, {vr(vf+4*t+e)}, {vr(vc+4*t+e)}')
                ym = vy + 8 * m
                p.ins(f'v_cvt_pk_bf16_f32 {vr(ym+2*t)}, {vr(c)}, {vr(c+1)}\nv_cvt_pk_bf16_f32 {vr(ym+2*t+1)}, {vr(c+2)}, {vr(c+3)}')
                if t % 2:
                    p.vm(f'buffer_store_dwordx4 {vr(ym+2*t-2,4)}, {vr(vl16)}, {sr(sY,4)}, {sr(saf+m)} offen offset:{1024*(t//2)} {sf}')
            p.ins(f'v_cvt_pk_bf16_f32 {vr(xm+2*t)}, {vr(vf+4*t)}, {vr(vf+4*t+1)}\nv_cvt_pk_bf16_f32 {vr(xm+2*t+1)}, {vr(vf+4*t+2)}, {vr(vf+4*t+3)}')
            if first:
                if t % 2:
                    p.vm(f'buffer_store_dwordx4 {vr(xm+2*t-2,4)}, {vr(vl16)}, {sr(sAF,4)}, {sr(saf+m)} offen offset:{1024*(t//2)} {cfg.get("x1flags", sf)}')
            else:
                p.lg(f'ds_write_b64 {vr(vxa+t)}, {vr(xm+2*t,2)} offset:{2048*m}')
        if not first:
            if m == 0: p.ins(f'v_add_u32 {vr(vt)}, {sr(sxl)}, {vr(vl16)}')
            for q in range(2):
                p.lg(f'ds_read_b128 {vr(vf+4*q,4)}, {vr(vt)} offset:{2048*m+1024*q}', ('o', m, q))
    if not first:
        for m in range(WM):
            for q in range(2):
                p.wait(lg=[('o', m, q)])
                p.vm(f'buffer_store_dwordx4 {vr(g.wbuf+16*m+4*q,4)}, {vr(vro+q)}, {sr(sRM,4)}, {sr(sro+m)} offen {sf}')
    if fold:
        for m in range(WM):
            vf = g.wbuf + 16 * m; vq = g.acc + 4 * m
            p.ins(f'v_add_f32 {vr(vq)}, {vr(vf)}, {vr(vf+1)}\nv_mul_f32 {vr(vq+1)}, {vr(vf)}, {vr(vf)}\nv_add_f32 {vr(vq+2)}, {vr(vf+2)}, {vr(vf+3)}\nv_mul_f32 {vr(vq+3)}, {vr(vf+1)}, {vr(vf+1)}')
            for i in range(2, 16):
                p.ins(f'v_fmac_f32 {vr(vq+1+2*(i&1))}, {vr(vf+i)}, {vr(vf+i)}')
                if i >= 4:
                    p.ins(f'v_add_f32 {vr(vq+2*(i&1))}, {vr(vq+2*(i&1))}, {vr(vf+i)}')
            p.ins(f'v_add_f32 {vr(vq)}, {vr(vq)}, {vr(vq+2)}\nv_add_f32 {vr(vq+1)}, {vr(vq+1)}, {vr(vq+3)}')
        for st in (16, 32):
            for m in range(WM):
                vq = g.acc + 4 * m
                p.ins(f'v_mov_b32 {vr(vq+2)}, {vr(vq)}\nv_mov_b32 {vr(vq+3)}, {vr(vq+1)}')
            p.ins('s_nop 0')
            for m in range(WM):
                vq = g.acc + 4 * m
                p.ins(f'v_permlane{st}_swap_b32 {vr(vq)}, {vr(vq+2)}\nv_permlane{st}_swap_b32 {vr(vq+1)}, {vr(vq+3)}')
            for m in range(WM):
                vq = g.acc + 4 * m
                p.ins(f'v_add_f32 {vr(vq)}, {vr(vq)}, {vr(vq+2)}\nv_add_f32 {vr(vq+1)}, {vr(vq+1)}, {vr(vq+3)}')
        sodd = S.alloc('oddm', 2, 2)
        smov64(p, sodd, lanemask(lambda l: l & 1))
        p.ins(f's_lshr_b32 {sr(s0)}, {sr(saf)}, 4')
        p.ins(f'v_lshlrev_b32 {vr(vt)}, 3, {vr(vl)}\ns_mov_b64 exec, 0xffff')
        for m in range(WM):
            p.vm(f'buffer_store_dwordx2 {vr(g.acc+4*m,2)}, {vr(vt)}, {sr(sST,4)}, {sr(s0)} offen offset:{2048*m} {sf}')
        p.ins('s_mov_b64 exec, -1')
        p.ins(f's_or_b32 {sr(s0)}, {sr(sm)}, {sr(sw)}\ns_cmp_lg_u32 {sr(s0)}, 0\ns_cbranch_scc1 E_{k.name}')
        p.wait(lg='all')
        for i in range(16):
            p.ins(f'v_cndmask_b32 {vr(vc+i)}, {vr(vc+i)}, {vr(vsb+i)}, {sr(sodd,2)}')
        for i in range(8):
            p.ins(f'v_cvt_pk_bf16_f32 {vr(vsb+i)}, {vr(vc+2*i)}, {vr(vc+2*i+1)}')
        p.ins(f's_add_u32 {sr(s0)}, {sr(saf)}, {M * DM * 2}')
        for q in range(2):
            p.vm(f'buffer_store_dwordx4 {vr(vsb+4*q,4)}, {vr(vl16)}, {sr(sY,4)}, {sr(s0)} offen offset:{1024*q} {sf}')
    k.end()
    return k

def k_g3(cfg):
    k = K('k6_ffn_kernel', 256, 512); p, V, S = k.p, k.V, k.S
    sW0 = k.srd('wg', B_WG, DM * FF * 2); sW1 = k.srd('wu', B_WU, DM * FF * 2)
    sA = k.srd('a', WS, M * DM * 2, WS_H2); sO = k.srd('o', WS, M * FF * 2, WS_ACT)
    plan = cfg.get('pig'); splan = cfg.get('spig'); pptr = pig_load(k, (plan or []) + (splan or []))
    pre = cfg.get('pre', lambda k: None)(k)
    swg = S.alloc('wg'); p.ins(f's_mov_b32 {sr(swg)}, s2')
    sw = S.alloc('w'); sm = S.alloc('mt'); sn = S.alloc('nt'); s0 = S.alloc('t0'); s1 = S.alloc('t1'); sodd = S.alloc('odd')
    vl = V.alloc('lane'); vl16 = V.alloc('l16'); vt = V.alloc('t', 4)
    BK, RB = 64, 256
    tiles = [(t, s * BK * RB) for s in range(2) for t in range(7)]
    g = Gemm(p, V, S, 'g3', 8, 1, 2, DM, BK, cfg['NS'], cfg['D'], cfg['R'], cfg['DAS'], 7168, RB,
             [dict(srd=sW0, col=0), dict(srd=sW1, col=0)], tiles, 7, P=4, spread=cfg['spread'], ramp=cfg['ramp'], wflags=cfg.get('wflags', ''), pig=bool(plan), spig=(cfg.get('spn', 2) if splan else 0))
    p.ins(f'v_lshrrev_b32 {vr(vt)}, 6, v0\nv_and_b32 {vr(vl)}, 63, v0\nv_readfirstlane_b32 {sr(sw)}, {vr(vt)}')
    tilemap(k, 'g3', sm, sn, s0, s1)
    p.ins(f's_add_u32 {sr(g.sLead)}, {sr(sm)}, {sr(sn)}\ns_and_b32 {sr(g.sLead)}, {sr(g.sLead)}, 3')
    p.ins(f's_and_b32 {sr(sodd)}, {sr(sn)}, 1\ns_mul_i32 {sr(s1)}, {sr(sn)}, 224\ns_lshl_b32 {sr(s0)}, {sr(sodd)}, 5\ns_sub_u32 {sr(s1)}, {sr(s1)}, {sr(s0)}')
    gemm_common(k, g, sw, None, s1, vl, vt)
    p.ins(f'v_lshlrev_b32 {vr(vl16)}, 4, {vr(vl)}')
    p.ins(f's_lshl_b32 {sr(s0)}, {sr(sm)}, 3\ns_add_u32 {sr(s0)}, {sr(s0)}, {sr(sw)}\ns_lshl_b32 {sr(s0)}, {sr(s0)}, 16')
    p.ins(f'v_add_u32 {vr(g.va)}, {sr(s0)}, {vr(vl16)}\nv_add_u32 {vr(g.va+1)}, 32768, {vr(g.va)}')
    k.finish_srds()
    g.prologue(sA)
    if plan: pig_setup(k, g, plan, pptr, swg, sw, vl)
    if splan: spig_setup(k, g, splan, pptr, swg, sw)
    gemm_rdbase(k, g, None, vl, vt)
    for t in range(7):
        p.ins(f's_cmp_eq_u32 {sr(sodd)}, 0\ns_cselect_b32 {sr(s0)}, {t}, {(t+2) if t < 6 else 1}\ns_lshl_b32 {sr(s0)}, {sr(s0)}, 5')
        p.ins(f'v_xor_b32 {vr(g.waddr+t)}, {sr(s0)}, {vr(vt)}')
    gemm_sets(k, g)
    g.first_reads()
    def hook(i):
        k.mark(i - 1)
        if i == 2 and cfg.get('mid'): cfg['mid'](k, pre, swg, sw, vl)
    g.mainloop(stamp=hook)
    k.mark(2)
    k.lds = g.NS * g.stagebytes
    p.ins(f's_lshl_b32 {sr(s0)}, {sr(sm)}, 3\ns_add_u32 {sr(s0)}, {sr(s0)}, {sr(sw)}\ns_mul_i32 {sr(s0)}, {sr(s0)}, 224\ns_mul_i32 {sr(s1)}, {sr(sn)}, 7\ns_add_u32 {sr(s1)}, {sr(s1)}, {sr(sodd)}\ns_lshr_b32 {sr(s1)}, {sr(s1)}, 1\ns_add_u32 {sr(s0)}, {sr(s0)}, {sr(s1)}\ns_lshl_b32 {sr(s0)}, {sr(s0)}, 10')
    p.ins(f's_mul_i32 {sr(s1)}, {sr(sodd)}, 4088\ns_sub_u32 {sr(s1)}, {sr(s0)}, {sr(s1)}\ns_add_u32 {sr(s1)}, {sr(s1)}, 3072')
    tmp = g.wbuf
    pk = g.abuf
    p.wait(lg='all', vm='all')
    if cfg.get('tail'): cfg['tail'](k, pre, swg, sw, vl)
    sf = cfg.get('sflags', '')
    for m in range(2):
        for t in range(7):
            gt, ut = g.accr(t, m), g.accr(7 + t, m)
            w = tmp + 4 * (t % 2)
            for e in range(4):
                p.ins(f'v_mul_f32 {vr(w+e)}, {f32(-LOG2E)}, {vr(gt+e)}')
            for e in range(4):
                p.ins(f'v_exp_f32 {vr(w+e)}, {vr(w+e)}')
            for e in range(4):
                p.ins(f'v_mul_f32 {vr(gt+e)}, {vr(gt+e)}, {vr(ut+e)}')
            for e in range(4):
                p.ins(f'v_add_f32 {vr(w+e)}, 1.0, {vr(w+e)}')
            for e in range(4):
                p.ins(f'v_rcp_f32 {vr(w+e)}, {vr(w+e)}')
            p.ins('s_nop 0')
            for e in range(4):
                p.ins(f'v_mul_f32 {vr(gt+e)}, {vr(gt+e)}, {vr(w+e)}')
            o = pk + 16 * m + 2 * t
            p.ins(f'v_cvt_pk_bf16_f32 {vr(o)}, {vr(gt)}, {vr(gt+1)}\nv_cvt_pk_bf16_f32 {vr(o+1)}, {vr(gt+2)}, {vr(gt+3)}')
            if t % 2 == 1:
                p.vm(f'buffer_store_dwordx4 {vr(o-2,4)}, {vr(vl16)}, {sr(sO,4)}, {sr(s0)} offen offset:{1024*(t//2)} {sf}')
            elif t == 6:
                p.vm(f'buffer_store_dwordx2 {vr(o,2)}, {vr(vl16)}, {sr(sO,4)}, {sr(s1)} offen {sf}')
        if m == 0:
            p.ins(f's_add_u32 {sr(s0)}, {sr(s0)}, {112*1024}\ns_add_u32 {sr(s1)}, {sr(s1)}, {112*1024}')
    k.end()
    return k

def k_g3f(cfg):
    k = K('k6_ffn_kernel', 256, 512); p, V, S = k.p, k.V, k.S
    sW0 = k.srd('wg', B_WG, DM * FF * 2); sW1 = k.srd('wu', B_WU, DM * FF * 2)
    sA = k.srd('a', WS, M * DM * 2 + 32768, WS_Y); sO = k.srd('o', WS, M * FF * 2, WS_ACT); sST = k.srd('st', WS, 128 * 2048, WS_ST)
    plan = cfg.get('pig'); splan = cfg.get('spig'); pptr = pig_load(k, (plan or []) + (splan or []))
    pre = cfg.get('pre', lambda k: None)(k)
    swg = S.alloc('wg'); p.ins(f's_mov_b32 {sr(swg)}, s2')
    sw = S.alloc('w'); sm = S.alloc('mt'); sn = S.alloc('nt'); s0 = S.alloc('t0'); s1 = S.alloc('t1'); sodd = S.alloc('odd')
    sc = S.alloc('cp', 7); so = S.alloc('so', 7); sb0 = S.alloc('b0')
    comb = cfg.get('comb')
    if comb: sm6 = S.alloc('m6', 2, 2); sme = S.alloc('me', 2, 2)
    vl = V.alloc('lane'); vl16 = V.alloc('l16'); vt = V.alloc('t', 3)
    BK, RB = 64, 256
    tiles = [(t, s * BK * RB) for s in range(2) for t in range(7)]
    c2 = cfg.get('core2')
    if c2:
        g = Gemm2(p, V, S, 'g3', 8, 1, 2, DM, BK, cfg['NS'], cfg['D'], cfg['R'], cfg['DAS'], 7168, RB,
                  [dict(srd=sW0, col=0), dict(srd=sW1, col=0)], tiles, 7, spread=cfg['spread'], ramp=cfg['ramp'], extra=(6, 13),
                  pig_rounds=(cfg.get('pig_rounds', (1, 2, 3)) if plan else ()), nprio=cfg.get('nprio', 4), wgrp=cfg.get('wgrp', 2),
                  lead0=cfg.get('lead0', True), alead=cfg.get('alead', 4), kgrp=cfg.get('kgrp', 1))
    else:
        g = Gemm(p, V, S, 'g3', 8, 1, 2, DM, BK, cfg['NS'], cfg['D'], cfg['R'], cfg['DAS'], 7168, RB,
                 [dict(srd=sW0, col=0), dict(srd=sW1, col=0)], tiles, 7, P=4, spread=cfg['spread'], ramp=cfg['ramp'],
                 wflags=cfg.get('wflags', ''), pig=bool(plan), extra=(6, 13))
    a3 = c2 and cfg['DAS'] == 3
    if a3:
        g.aoff = 1; ut = g.abuf + 32
    else:
        ut = V.alloc('ut', 16, 4)
    ve = V.alloc('e', 8, 4); vs = V.alloc('stat', 6); vub = V.alloc('utb', 2)
    UT = g.lds_end
    k.lds = UT + 2048
    k.tmp_s = sST; k.tmp_v = V.alloc('tmpv', 2, 2)
    p.ins(f'v_lshrrev_b32 {vr(vt)}, 6, v0\nv_and_b32 {vr(vl)}, 63, v0\nv_readfirstlane_b32 {sr(sw)}, {vr(vt)}')
    tilemap(k, 'g3', sm, sn, s0, s1)
    p.ins(f's_add_u32 {sr(g.sLead)}, {sr(sm)}, {sr(sn)}\ns_and_b32 {sr(g.sLead)}, {sr(g.sLead)}, 3')
    p.ins(f's_and_b32 {sr(sodd)}, {sr(sn)}, 1\ns_mul_i32 {sr(s1)}, {sr(sn)}, 224\ns_lshl_b32 {sr(s0)}, {sr(sodd)}, 5\ns_sub_u32 {sr(s1)}, {sr(s1)}, {sr(s0)}')
    gemm_common(k, g, sw, None, s1, vl, vt)
    if c2: g.setup_vdma()
    p.ins(f'v_lshlrev_b32 {vr(vl16)}, 4, {vr(vl)}')
    p.ins(f's_lshl_b32 {sr(sb0)}, {sr(sm)}, 3\ns_add_u32 {sr(sb0)}, {sr(sb0)}, {sr(sw)}\ns_lshl_b32 {sr(s0)}, {sr(sb0)}, 16')
    p.ins(f'v_add_u32 {vr(g.va)}, {sr(s0)}, {vr(vl16)}\nv_add_u32 {vr(g.va+1)}, 32768, {vr(g.va)}')
    p.ins(f's_lshl_b32 {sr(g.sWX)}, {sr(sw)}, 8\ns_add_u32 {sr(s0)}, {sr(g.sWX)}, {M * DM * 2}\nv_lshl_add_u32 {vr(g.vx)}, {vr(vl)}, 2, {sr(s0)}')
    def stat_loads(base):
        p.ins(f's_lshl_b32 {sr(s0)}, {sr(sb0)}, 12')
        for m in range(2):
            for h in range(2):
                p.vm(f'buffer_load_dwordx4 {vr(base+8*m+4*h,4)}, {vr(vl16)}, {sr(sST,4)}, {sr(s0)} offen offset:{2048*m+1024*h}', ('st', m, 2 * h + 1))
    LN2 = 0.6931471805599453
    def stat_ops(base):
        L = [lambda: p.wait(vm=[('st', 1, 3)])]
        for m in range(2):
            b = base + 8 * m
            for a_, c_ in ((0, 2), (1, 3), (4, 6), (5, 7), (0, 4), (1, 5)):
                L.append(f'v_add_f32 {vr(b+a_)}, {vr(b+a_)}, {vr(b+c_)}')
        for st in (16, 32):
            for m in range(2):
                b = base + 8 * m
                L.append(f'v_mov_b32 {vr(b+2)}, {vr(b)}\nv_mov_b32 {vr(b+3)}, {vr(b+1)}')
            L.append('s_nop 0')
            for m in range(2):
                b = base + 8 * m
                L.append(f'v_permlane{st}_swap_b32 {vr(b)}, {vr(b+2)}\nv_permlane{st}_swap_b32 {vr(b+1)}, {vr(b+3)}')
            for m in range(2):
                b = base + 8 * m
                L.append(f'v_add_f32 {vr(b)}, {vr(b)}, {vr(b+2)}\nv_add_f32 {vr(b+1)}, {vr(b+1)}, {vr(b+3)}')
        rb = lambda r: f'v_cvt_pk_bf16_f32 {vr(r)}, {vr(r)}, {vr(r)}\nv_lshlrev_b32 {vr(r)}, 16, {vr(r)}'
        for m in range(2):
            b = base + 8 * m; o = vs + 3 * m
            L += [f'v_mul_f32 {vr(b)}, {f32(1/1024)}, {vr(b)}', f'v_mul_f32 {vr(b+1)}, {f32(1/1024)}, {vr(b+1)}',
                  f'v_fma_f32 {vr(b+1)}, -{vr(b)}, {vr(b)}, {vr(b+1)}', f'v_max_f32 {vr(b+1)}, 0, {vr(b+1)}', rb(b+1),
                  f'v_add_f32 {vr(b+1)}, {f32(1e-5)}, {vr(b+1)}', rb(b+1), f'v_sqrt_f32 {vr(b+1)}, {vr(b+1)}\ns_nop 0', rb(b+1),
                  f'v_rcp_f32 {vr(b+1)}, {vr(b+1)}', rb(b),
                  f'v_mul_f32 {vr(o)}, {f32(-LOG2E)}, {vr(b+1)}', f'v_mul_f32 {vr(o+1)}, {f32(-LN2)}, {vr(b+1)}',
                  f'v_mul_f32 {vr(o+2)}, -{vr(b)}, {vr(b+1)}']
        return L
    late_st = cfg.get('late_st')
    early_st = (a3 or cfg.get('early_st')) and not late_st
    k.finish_srds()
    if early_st: stat_loads(g.acc)
    g.prologue(sA)
    if plan: pig_setup(k, g, plan, pptr, swg, sw, vl)
    if splan: spig_setup(k, g, splan, pptr, swg, sw)
    gemm_rdbase(k, g, None, vl, vt)
    p.ins(f'v_add_u32 {vr(g.xaddr)}, {g.x_base}, {vr(vl16)}')
    e = sc + 6
    p.ins(f's_min_u32 {sr(e)}, {sr(sw)}, 6')
    p.ins(f's_cmp_lt_u32 {sr(e)}, 2\ns_cselect_b32 {sr(sc)}, 2, 0\ns_add_u32 {sr(sc+1)}, {sr(sc)}, 1')
    p.ins(f's_cmp_ge_u32 {sr(e)}, 4\ns_cselect_b32 {sr(sc+2)}, 2, 4\ns_add_u32 {sr(sc+3)}, {sr(sc+2)}, 1')
    p.ins(f's_xor_b32 {sr(s0)}, {sr(e)}, 1\ns_cmp_eq_u32 {sr(e)}, 6\ns_cselect_b32 {sr(sc+4)}, 4, {sr(s0)}\ns_cselect_b32 {sr(sc+5)}, 5, 6')
    p.ins(f's_lshl_b32 {sr(s1)}, {sr(sodd)}, 1')
    for t in range(7):
        p.ins(f's_add_u32 {sr(s0)}, {sr(sc+t)}, {sr(s1)}')
        if t >= 5:
            p.ins(f's_cmp_eq_u32 {sr(s0)}, 8\ns_cselect_b32 {sr(s0)}, 1, {sr(s0)}')
        p.ins(f's_lshl_b32 {sr(s0)}, {sr(s0)}, 5\nv_xor_b32 {vr(g.waddr+t)}, {sr(s0)}, {vr(vt)}')
    gemm_sets(k, g)
    if early_st:
        for o in stat_ops(g.acc): p.ins(o) if isinstance(o, str) else o()
    if not c2: g.first_reads()

    def setup2():
        p.ins(f's_mul_i32 {sr(s0)}, {sr(sb0)}, 224\ns_mul_i32 {sr(s1)}, {sr(sn)}, 7\ns_add_u32 {sr(s1)}, {sr(s1)}, {sr(sodd)}\ns_lshr_b32 {sr(s1)}, {sr(s1)}, 1\ns_add_u32 {sr(s0)}, {sr(s0)}, {sr(s1)}\ns_lshl_b32 {sr(s0)}, {sr(s0)}, 10')
        for t in (0, 2, 4, 5, 6):
            p.ins(f's_lshr_b32 {sr(so+t)}, {sr(sc+t)}, 1\ns_lshl_b32 {sr(so+t)}, {sr(so+t)}, 10\ns_add_u32 {sr(so+t)}, {sr(so+t)}, {sr(s0)}')
            if t >= 4:
                p.ins(f's_and_b32 {sr(s1)}, {sr(sc+t)}, 1\ns_lshl_b32 {sr(s1)}, {sr(s1)}, 3\ns_add_u32 {sr(so+t)}, {sr(so+t)}, {sr(s1)}')
            if t >= 5:
                p.ins(f's_cmp_eq_u32 {sr(sc+t)}, 6\ns_cselect_b32 {sr(s1)}, {sr(sodd)}, 0\ns_mul_i32 {sr(s1)}, {sr(s1)}, 4088\ns_sub_u32 {sr(so+t)}, {sr(so+t)}, {sr(s1)}')
        if comb:
            p.ins(f's_cmp_eq_u32 {sr(sc+6)}, 6\ns_cselect_b64 {sr(sm6,2)}, -1, 0\ns_cselect_b32 {sr(so+5)}, {sr(so+6)}, {sr(so+5)}')
            p.ins(f's_bitcmp1_b32 {sr(sc+4)}, 0\ns_cselect_b64 {sr(sme,2)}, -1, 0\ns_andn2_b32 {sr(so+4)}, {sr(so+4)}, 8')
        for t in range(7):
            p.ins(f's_lshl_b32 {sr(sc+t)}, {sr(sc+t)}, 7')
        if not early_st and not late_st: stat_loads(ut)
        p.ins(f'v_lshrrev_b32 {vr(vub)}, 4, {vr(vl)}\nv_lshlrev_b32 {vr(vub)}, 4, {vr(vub)}\nv_add_u32 {vr(vub)}, {UT}, {vr(vub)}')
    def hook(i):
        k.mark(i - 1)
        if i == 2:
            setup2()
            if cfg.get('mid'): cfg['mid'](k, pre, swg, sw, vl)
    sf = cfg.get('sflags', '')

    def tail(S0):
        n1, n2 = g.nst - 2, g.nst - 1
        ks4 = [(n1, 0), (n1, 1), (n2, 0), (n2, 1)]
        kg2 = c2 and g.kgrp == 2
        def pair(t, kss):
            if kg2: return [(S, j, t + 7 * sgm) for h in range(0, len(kss), 2) for sgm in range(2) for (S, j) in kss[h:h+2]]
            return [(S, j, t + 7 * sgm) for (S, j) in kss for sgm in range(2)]
        order = [6, 4, 5, 0, 1, 2, 3] if comb else [6, 0, 1, 2, 3, 4, 5]
        final = pair(order[1], ks4[:2]) + pair(6, ks4[:2]) + pair(6, ks4[2:]) + pair(order[1], ks4[2:])
        for t in order[2:]: final += pair(t, ks4)
        K0 = n1 * 2
        rx = (lambda ks: (lambda: g.rdx(ks))) if c2 else (lambda ks: (lambda: g.rdx((ks // 2) % g.NS, ks % 2, (lambda it: ks))))
        pos_ops = {0: [rx(K0 + 1)], 6: [rx(K0 + 2)], 8: [rx(K0 + 3)]}
        if kg2:
            final = pair(order[1], ks4[:2]) + pair(6, ks4[:2]) + pair(order[1], ks4[2:]) + pair(6, ks4[2:]) + final[16:]
            pos_ops = {0: [rx(K0)], 1: [rx(K0 + 1)], 8: [rx(K0 + 2)], 9: [rx(K0 + 3)]}
        if cfg.get('fjob'): pos_ops.setdefault(cfg.get('fpos', 3), []).append(lambda: cfg['fjob'](k, pre, swg, sw, vl))
        def bar1():
            p.wait(vm=[('D', n2, n_) for n_ in range(g.PD)])
            p.ins('s_barrier')
            return n2
        def utw():
            for sgm, cst in ((0, -LOG2E), (1, -LN2)):
                for e_ in range(4):
                    p.ins(f'v_mul_f32 {vr(g.xacc+4*sgm+e_)}, {f32(cst)}, {vr(g.xacc+4*sgm+e_)}')
            p.ins(f'v_and_b32 {vr(vt)}, 1, {vr(vl)}\nv_lshl_add_u32 {vr(vt)}, {vr(vt)}, 6, {vr(vub)}\nv_add_u32 {vr(vt)}, {sr(sc+6)}, {vr(vt)}')
            for sgm in range(2):
                p.lg(f'ds_write_b128 {vr(vt)}, {vr(g.xacc+4*sgm,4)} offset:{896*sgm}', ('utw', sgm))
        def bar2():
            p.wait(lg=[('utw', 1)])
            p.ins('s_barrier')
        ub = 4 if kg2 else 0
        bars = {7 - g.D: bar1, 13 + ub: utw, 14 + ub: bar2}
        fl = []
        e0 = -60 if c2 else -40
        if late_st:
            pos_ops.setdefault(0, []).append(lambda: stat_loads(ut)); e0 = late_st
        if not early_st:
            for o in stat_ops(ut): fl.append((e0, o))
        done = {t: (11 if i == 0 else 7 + 8 * i) for i, t in enumerate(order)}
        sf2 = cfg.get('sflags2', sf)
        def utread(t):
            def f():
                p.ins(f'v_add_u32 {vr(vub+1)}, {sr(sc+t)}, {vr(vub)}')
                for i, off in enumerate((0, 64, 896, 960)):
                    p.lg(f'ds_read_b128 {vr(ut+4*i,4)}, {vr(vub+1)} offset:{off}', ('ut', t, i))
            return f
        fl.append((15 + ub, utread(6)))
        for oi, t in enumerate(order):
            e_ = max(done[t] + 2, 16 + ub)
            fl.append((e_, lambda t=t: p.wait(lg=[('ut', t, 3)])))
            for m in range(2):
                st_ = vs + 3 * m
                for sgm in range(2):
                    a = g.accr(t + 7 * sgm, m)
                    for x in range(4):
                        fl.append((e_, f'v_fma_f32 {vr(ve+4*sgm+x)}, {vr(st_+2)}, {vr(ut+8*sgm+x)}, {vr(ut+8*sgm+4+x)}'))
                    for x in range(4):
                        fl.append((e_, f'v_fma_f32 {vr(a+x)}, {vr(a+x)}, {vr(st_+sgm)}, {vr(ve+4*sgm+x)}'))
            if oi + 1 < 7:
                fl.append((e_, utread(order[oi + 1])))
            for m in range(2):
                a = g.accr(t, m)
                for x in range(4):
                    fl.append((e_, f'v_exp_f32 {vr(ve+4*m+x)}, {vr(a+x)}'))
            for m in range(2):
                a, u_ = g.accr(t, m), g.accr(t + 7, m)
                for x in range(4):
                    fl.append((e_, f'v_mul_f32 {vr(u_+x)}, {vr(a+x)}, {vr(u_+x)}'))
                    fl.append((e_, f'v_add_f32 {vr(ve+4*m+x)}, 1.0, {vr(ve+4*m+x)}'))
            for m in range(2):
                for x in range(4):
                    fl.append((e_, f'v_rcp_f32 {vr(ve+4*m+x)}, {vr(ve+4*m+x)}'))
            for m in range(2):
                u_ = g.accr(t + 7, m)
                for x in range(4):
                    fl.append((e_, f'v_mul_f32 {vr(u_+x)}, {vr(u_+x)}, {vr(ve+4*m+x)}'))
            for m in range(2):
                u_ = g.accr(t + 7, m)
                o = g.accr(t & ~1, m) + 2 * (t & 1) if t < 4 else g.accr(t, m)
                fl.append((e_, f'v_cvt_pk_bf16_f32 {vr(o)}, {vr(u_)}, {vr(u_+1)}'))
                fl.append((e_, f'v_cvt_pk_bf16_f32 {vr(o+1)}, {vr(u_+2)}, {vr(u_+3)}'))
                va_ = vl16 if m == 0 else vt + 2
                if t < 4 and t & 1:
                    fl.append((e_, lambda o=o, va_=va_, t=t: p.vm(f'buffer_store_dwordx4 {vr(o-2,4)}, {vr(va_)}, {sr(sO,4)}, {sr(so+t-1)} offen {sf}')))
                elif t >= 4 and not comb:
                    fl.append((e_, lambda o=o, va_=va_, t=t: p.vm(f'buffer_store_dwordx2 {vr(o,2)}, {vr(va_)}, {sr(sO,4)}, {sr(so+t)} offen {sf2}')))
                elif t == 5:
                    P4, P5, P6, Q = g.accr(4, m), g.accr(5, m), g.accr(6, m), g.accr(11, m)
                    for x in range(2):
                        fl.append((e_, f'v_cndmask_b32 {vr(Q+x)}, {vr(P4+x)}, {vr(P6+x)}, {sr(sme,2)}'))
                        fl.append((e_, f'v_cndmask_b32 {vr(Q+2+x)}, {vr(P6+x)}, {vr(P4+x)}, {sr(sme,2)}'))
                        fl.append((e_, f'v_cndmask_b32 {vr(Q+2+x)}, {vr(Q+2+x)}, {vr(P5+x)}, {sr(sm6,2)}'))
                        fl.append((e_, f'v_cndmask_b32 {vr(P5+2+x)}, {vr(P5+x)}, {vr(P6+x)}, {sr(sm6,2)}'))
                    fl.append((e_, lambda Q=Q, va_=va_: p.vm(f'buffer_store_dwordx4 {vr(Q,4)}, {vr(va_)}, {sr(sO,4)}, {sr(so+4)} offen {sf}')))
                    fl.append((e_, lambda P5=P5, va_=va_: p.vm(f'buffer_store_dwordx2 {vr(P5+2,2)}, {vr(va_)}, {sr(sO,4)}, {sr(so+5)} offen {sf2}')))
        p.ins(f'v_add_u32 {vr(vt+2)}, {112*1024}, {vr(vl16)}')
        if cfg.get('fm'):
            k.mark(0); bars[-1] = lambda: k.mark(1)
        if c2:
            left = g.run(final, pos_ops, bars, fl, cfg.get('rate', 10), marks={0: lambda: hook(1), 4 * g.F: lambda: hook(2)}, early=True)
        else:
            left = g.tail_run(S0, final, pos_ops, bars, fl, cfg.get('rate', 10))
        k.mark(2)
        if cfg.get('tail'): cfg['tail'](k, pre, swg, sw, vl)
        p.ins('s_nop 7')
        for _, o in left:
            p.ins(o) if isinstance(o, str) else o()
        k.nleft = len(left)
    if c2: tail(0)
    else: g.mainloop(stamp=hook, tail=tail)
    k.end()
    return k

HEADER = open('adaLN_cond__sliding_local_dilated__swiglu_ffn__prompt.s.ref').read().split('; Override launch')[0]

def build(kernels):
    s = HEADER + '; generated by gen/main.py (python generator in this repository)\n'
    s += '\n'.join(k.launch() for k in kernels) + '\n'
    s += '.amdgcn_target "amdgcn-amd-amdhsa--gfx950"\n.text\n'
    seen = {}
    for k in kernels:
        seen.setdefault(k.name, k)
    for k in seen.values():
        s += f'.globl {k.name}\n.type {k.name},@function\n' + k.text()
    s += 'code_end:\n.fill 2048, 4, 0xBF800000\n.section .rodata,"a"\n'
    for k in seen.values():
        s += k.desc(getattr(k, 'minv', 0))
    return s

def pre_srds(*names):
    tab = dict(wo=(A_WO, DM * DM * 2), wg=(B_WG, DM * FF * 2), wu=(B_WU, DM * FF * 2), wd=(B_WD, FF * DM * 2), x=(A_X, M * DM * 2), h=(WS, M * DM * 2, WS_H))
    return lambda k: {n: k.srd('pf_' + n, *tab[n]) for n in names}
def job(*items):
    def f(k, pre, swg, sw, vl):
        nw = k.nthreads // 64
        for name, row0, nrows, split, flags in items:
            if name == 'code':
                touch_code(k, swg, sw, vl, row0, nrows, split)
                continue
            if split == 'x3':
                ce = lambda d, t_: k.p.ins(f's_and_b32 {sr(d)}, {sr(swg)}, 1\ns_lshl_b32 {sr(d)}, {sr(d)}, 10\ns_add_u32 {sr(d)}, {sr(d)}, 384\ns_bfe_u32 {sr(t_)}, {sr(swg)}, 0x20001\ns_lshl_b32 {sr(t_)}, {sr(t_)}, 20\ns_add_u32 {sr(d)}, {sr(d)}, {sr(t_)}')
                touch_strip(k, pre[name], 2048, swg, sw, vl, ce, [0], 512, False, 0, flags)
            elif split == 's3':
                ce = lambda d, t_: k.p.ins(f's_and_b32 {sr(d)}, {sr(swg)}, 1\ns_lshl_b32 {sr(d)}, {sr(d)}, 10\ns_add_u32 {sr(d)}, {sr(d)}, 384')
                touch_strip(k, pre[name], 2048, swg, sw, vl, ce, [0], nrows, False, row0, flags)
            elif split == 'lin':
                ld = 2048 if name in ('wo', 'wd', 'h') else 7168
                touch_lin(k, pre[name], swg, sw, vl, nw, row0 * ld, nrows * ld, flags)
            elif name in ('wo', 'wd'):
                touch_cols(k, pre[name], 2048, swg, sw, vl, nw, 1, 8, [0], nrows, split, flags, row0)
            else:
                touch_cols(k, pre[name], 7168, swg, sw, vl, nw, 3, 7, [0], nrows, False, flags, row0)
    return f
```

```python
import sys
sys.path.insert(0, 'gen')
import kernels
from n12 import *
def make4(opts=None):
    o = dict(k1=dict(zero=True, xmap=1, lq2=(0, 1024), tx='', code=('k3_qkv_kernel', 'code_end')), g12=dict(mid=44,rot=10,quiet={(('j',0),3):8,(('j',1),3):8},hx=1,ab2=10,ab3=13,wos=((8,1),(11,1),(11,1),(31,1),(51,1),(56,0),(92,1),(112,1)),acap=(2.0,2.0,6.6,7.0),opub=(0,47,5,28),jpd=26,su2=220,gaps=(4.0,5.0,2.2,3.4,1.9,6.0),pdo=(22,41,35),hd=614,LA3=13,b0=(43,75,107,139,171,187,235,331,397,523,547,571,599,619,636),b2=(-98,-78,-55,-37,-17,63,47,79,111,143,175,207),plo=(-78,47,143)), g34=dict(nolead3=1,from2=(1000,),yb=40,ub=(118,185,260,350),th=(300,470),tu=280,FS4=7,xt=((85,150,178),(85,151,183),(48,52,78)),pc=((1366,0,0,6),(1582,1,0,8)),pb1=55,pb2=60))
    for kk, v in (opts or {}).items(): o[kk].update(v)
    K.count = 0
    kernels.MBS[:] = [32768, 131072]
    return [k_g12(o['g12'], nxt=lambda k: k_g34(o['g34'], k))]
if __name__ == '__main__':
    import traceback
    for a in sys.argv[1:]:
        n, e = a.split('=', 1)
        open(f'x_{n}.s', 'w').write('')
        try:
            ks = make4(eval(e)); t = build(ks)
        except Exception as ex:
            print(n, 'FAILED', traceback.format_exc().strip().split('\n')[-3:]); continue
        open(f'x_{n}.s', 'w').write(t)
        k = ks[-1]
        print(n, 'nops', sum(x[0] for x in k.nops), 'bars', len(k.bars1), len(k.bars), 'left', len(k.left), 'inj', k.injend, k.dbg)
```

```python
from n3 import *
def k_g12(cfg, nxt=None):
    k = K4(cfg.get('name', 'k3_qkv_kernel')); p, S = k.p, k.S
    sX = k.srd('x', A_X, M * DM * 2); sWS = k.srd('ws', WS, WSZ); sWq = k.srd('wq', A_WQKV, DM * 3072 * 2)
    sWo = k.srd('wo', A_WO, DM * DM * 2); sWm = k.srd('wm', W_MOD, 1024 * 6144 * 2); sC = k.srd('c', IN_C, 2048)
    sWg = k.srd('wg', B_WG, DM * FF * 2); sWu = k.srd('wu', B_WU, DM * FF * 2); sWd = k.srd('wd', B_WD, FF * DM * 2); sOut = k.srd('out', OUT, M * DM * 2)
    sw = S.alloc('w'); sWL = S.alloc('wl'); sTok = k.tok = S.alloc('tok')
    k.common = dict(sWS=sWS, sWg=sWg, sWu=sWu, sWd=sWd, sOut=sOut, sw=sw, sWL=sWL, dead=(sWq, sWo))
    assert sWm == sWo + 4
    sy = S.alloc('y', 3)
    smark = S.next
    sm = S.alloc('mt'); sn = S.alloc('nt'); s0 = S.alloc('t0'); s1 = S.alloc('t1'); s2_ = S.alloc('t2'); sv = S.alloc('vm', 2); scnt = S.alloc('cnt')
    sR = S.alloc('R', 4); sR2 = S.alloc('R2', 4); srot = S.alloc('rot', 2); svw = S.alloc('vw'); sva = S.alloc('va'); sW4 = S.alloc('w4', 2); sHalo = S.alloc('halo'); soo = S.alloc('oo'); sfl = S.alloc('fl', 4); sjo = S.alloc('jo', 2); sy2 = sfl + 2
    mA = S.alloc('mask', 14, 2)
    vl16, trA, vdW, vdO, vdJ, vA, vp, vpb, vkw, vqw, vrd, vvt, vt, vM, ACC, RING, TMP = 1, 3, 9, 10, 11, 12, 13, 15, 17, 18, 19, 20, 21, 24, 28, 76, 116
    wreg = lambda b: A0 + 4 * b if b < 63 else 124 + 4 * (b - 63)
    vl = 0
    rtab = lambda T_, r_=srot: F(f's_and_b32 {sr(s0)}, {sr(sw)}, 1\ns_add_u32 {sr(s0)}, {sr(s0)}, {sr(r_)}') + [x for c in range(4) for x in F(f's_add_u32 {sr(T_+c)}, {sr(s0)}, {2*c}\ns_and_b32 {sr(T_+c)}, {sr(T_+c)}, 7\ns_lshl_b32 {sr(T_+c)}, {sr(T_+c)}, 12')]
    curw = [None, None]
    def dmaw(u, srd, vo_, lo_, c, ld, add, fl=''):
        out = []
        for jq in range(4):
            def pre(jq=jq):
                p.ins(f's_add_u32 m0, {sr(sWL)}, {lo_ + jq * 4096}')
                if jq == 0:
                    curw[0] = u
                    if c is None: p.ins(f's_mov_b32 {sr(svw)}, {add}')
                    else: p.ins(f's_add_u32 {sr(svw)}, {sr(srot + (u[0] == "wo"))}, {c}\ns_and_b32 {sr(svw)}, {sr(svw)}, 7\ns_mul_i32 {sr(svw)}, {sr(svw)}, {128 * ld}' + (f'\ns_add_u32 {sr(svw)}, {sr(svw)}, {add}' if add else ''))
                else: p.ins(f's_add_u32 {sr(svw)}, {sr(svw)}, {32 * ld}')
                assert curw[0] == u
            main = lambda jq=jq: p.vm(f'buffer_load_dwordx4 v{vo_}, {sr(srd,4)}, {sr(svw)} offen {fl} lds'.replace('  ', ' '), ('D', u, jq), w=(lo_ + jq * 4096, lo_ + jq * 4096 + 4096))
            out.append((op(pre, 2 if jq else 4), main))
        return out
    lastm0 = [None]
    def dmaa(u, vo_, lo_, n, sbase, add, swl):
        out = []
        for i in range(n):
            def pre(i=i):
                m = f's_add_u32 m0, {sr(swl)}, {lo_}'
                prev = [x[1] for x in p.items if x[0] == 'ins' and ' m0,' in x[1]]
                if prev[-1] != m: p.ins(m)
                if i == 0: curw[1] = u; p.ins(f's_add_u32 {sr(sva)}, {sr(sbase)}, {add}')
                assert curw[1] == u
            main = lambda i=i: p.vm(f'buffer_load_dwordx4 v{vo_}, {sr(sWS,4)}, {sr(sva)} offen offset:{1024 * i} sc1 lds', ('D', u, i), w=(lo_, lo_ + 4096 * n), grp=u)
            out.append((op(pre, 0 if i else 2), main))
        return out
    DBL = [x for c in range(4) for x in ((('q', 2 * c), ('q', 2 * c + 1)), (('k', 2 * c), ('v', 2 * c)), (('k', 2 * c + 1), ('v', 2 * c + 1)))]
    nf = cfg.get('nf', 6)
    LA1, LA2 = cfg.get('LA1', 20), cfg.get('LA2', 16)
    acc = lambda ps, t, e: ACC + 24 * (ps % 2) + (t * 2 + e) * 4
    acch = lambda t: ACC + 24 + (t * 2) * 4
    acc2 = lambda j, t: 128 + 8 * (j % 2) + 4 * t
    jp = cfg.get('jpos', 358); JS = 10
    jw, jb, ja = TMP, None, None
    def plan(al):
        st = Stream(p); W = WS_(st, [RING + 4 * i for i in range(12)])
        lo = lambda u: al.get(u, 1 if u[0] == 'v' else 0) * 16384
        def U(u, dm, **kw): W.unit(u, lo(u), lo(u) + 16384, dm, **kw)
        for c in range(8):
            for si, sg in enumerate('qkv'):
                u = (sg, c); U(u, dmaw(u, sWq, vdW, lo(u), c, 6144, si * 2048))
            u = ('wo', c); U(u, dmaw(u, sWo, vdO, lo(u), c, 2048, 0))
        for ps in range(4):
            for c in range(4):
                u = ('a', ps, c); U(u, dmaa(u, vA, lo(u), 4, sR + c, (2 * ps + 1) * 32768, sW4))
                u = ('o', ps, c); U(u, dmaa(u, vdW, lo(u), 4, sR2 + c, 2 * ps * 32768, sW4))
        for hf in range(2):
            u = ('j', hf); U(u, dmaw(u, sWm, vdJ, lo(u), None, 12288, hf * 128 * 12288, MODNT[1]), wt=cfg.get('jwt', 1))
        HB = [QKV + 8192 * c for c in range(4)]
        for c in range(4):
            u = ('h', c); W.unit(u, HB[c], HB[c] + 8192, dmaa(u, vl16, HB[c], 2, sR + c, sr(sHalo), sW4 + 1))
        def trs(us, t_reg, dst, off, s, lr, tag, span=2048):
            b = lo(us[0]) // 65536
            for h in range(2):
                o = lo(us[0]) % 65536 + off + 2048 * h
                W.rd(us, s + h, lr, f'ds_read_b64_tr_b16 {vr(dst + 2 * h,2)}, v{t_reg + 3 * b} offset:{o}', tag + (h,), (65536 * b + o, 65536 * b + o + span))
        def wreads(d, s, step=2):
            a_, b_ = DBL[d]
            L = [([u], 0, 4 * u[1] + jj, jj) for u in (a_, b_) for jj in range(4)] if a_[0] == 'q' else [([a_, b_], t, 4 * a_[1] + jj, jj) for jj in range(4) for t in (1, 2)]
            for i, (us, t, j, jj) in enumerate(L):
                trs(us, trA + t, wreg(3 * j + t), jj * 4096, s + step * i, s + step * 8 + 6, ('w', j, t), 2048 if t == 0 else 2048 + 16384)
            if s >= 0: W.units[a_]['force'] = ('w', j, t, 1)
        I = dict(P=[], done={})
        for d in range(nf): wreads(d, -10000 + 100 * d)
        for d, s in zip(range(nf, 12), cfg.get('wsl', {8: (0, 44, 92, 140), 6: (0, 44, 76, 108, 140, 188), 7: (0, 44, 92, 140, 182)}.get(nf))):
            assert s + 30 <= 32 * DBL[d][0][1]
            wreads(d, s)
        def afr(u, off, areg=vl16, span=1024):
            b = lo(u) // 65536
            return (u, areg + b, 65536 * b, lo(u) % 65536 + off, span)
        for ps in range(4):
            I['P'].append(st.n())
            for r_ in range(ACC + 24 * (ps % 2), ACC + 24 * (ps % 2) + 24, 4): st.touched.discard(r_)
            if ps == 1:
                for r_ in (RING + 40, RING + 44): W.until[r_] = st.n()
            for j0 in range(0, 32, 2):
                fr = [afr(('a', ps, j0 // 8), e * 8192 + ((j0 + jj) % 8) * 1024) for e in range(2) for jj in range(2)]
                seq = [(0, 0), (0, 1), (1, 1), (1, 0), (2, 0), (2, 1)]
                if ps == 0:
                    fr += [(('h', j0 // 8), vp, 131072, HB[j0 // 8] - 131072 + ((j0 + jj) % 8) * 1024) for jj in range(2)]
                    seq = [(0, 0), (0, 1), (1, 1), (1, 0), (2, 0), (2, 1), (2, 2), (1, 2)]
                mf = [(acc(ps, t, e) if e < 2 else acch(t), wreg(3 * (j0 + jj) + t), ('f', 2 * e + jj)) for i, (t, e) in enumerate(seq) for jj in ((0, 1) if i % 2 == 0 else (1, 0))]
                W.group(fr, mf, LA1, kind='b', lg=[('w', j0 + jj, t, 1) for jj in range(2) for t in range(3)] if ps == 0 else [])
        T0 = st.n(); I['T0'] = T0
        for c, (s, stp) in enumerate(cfg.get('wos', ((24, 2.5), (53, 2.5), (84, 1.5), (96, 1.5), (115, 1.5), (127, 1.5), (145, 1.5), (157, 1.5)))):
            s += I['P'][3]
            for i in range(8):
                b = 8 * c + i; j, t = divmod(b, 2)
                assert s + int(stp * i) >= I['P'][3] + 12 * (b // 6) + 12
                trs([('wo', c)], trA + 1 + t, wreg(b), (j % 4) * 4096, s + int(stp * i), s + int(stp * 7) + 6, ('wo', j, t))
            W.units[('wo', c)]['force'] = ('wo', 4 * c + 3, 1, 1)
        I['Q'] = []
        for ps in range(4):
            I['Q'].append(st.n())
            for t in range(2): st.touched.discard(acc2(ps, t))
            for j0 in range(0, 32, 2):
                fr = [afr(('o', ps, j0 // 8), ((j0 + jj) % 8) * 1024, vdO2, 1024 + 8192) for jj in range(2)]
                mf = [(acc2(ps, t), wreg(2 * (j0 + jj) + t), ('f', jj)) for t in range(2) for jj in ((0, 1) if t == 0 else (1, 0))]
                W.group(fr, mf, LA2, kind='b', wait=j0 % 4 == 0, lg=[('wo', j0 + jj, t, 1) for jj in range(2) for t in range(2)] if ps == 0 else [])
        for ks in range(8):
            s = jp + JS * ks
            trs([('j', ks // 4)], trA, TMP + 4 * (ks % 2), (ks % 4) * 4096, s, s + 12, ('jw', ks))
        if nxt:
            for i, (_, ts, g) in enumerate(k.early3):
                u, lo_, hi_, dm = dm3(ts, g); W.unit(u, lo_, hi_, dm); W.units[u].update(fr=st.n() + 10 + i, lr=st.n() + 10 + i)
        W.finish_waits()
        return st, W, I
    k.perm = [[0, 1, 2, 3], [0, 1, 2, 3]]; k.early3 = [(3, ts, g) for ts in range(4) for g in (1, 0)][:cfg.get('ne3', 4)]
    su3, dm3 = g3_early(k, s0, s1, sv, TMP)
    vdO2 = 22
    st, W, I = plan({})
    P, T0 = I['P'], I['T0']
    ab = [P[1] + 24, P[2] + 21, P[3] + 21, T0 + cfg.get('ab3', 8)]
    bars = sorted(set(ab) | set(cfg.get('b0', ((43, 75, 107, 139, 171, 187) if nf == 6 else (43, 91, 139, 181)) + (235, 331, 397, 523, 571, 619))) | {T0 + x for x in cfg.get('b2', (-140, -109, -78, -48, -17, 47, 79, 111, 143, 175, 207))})
    k.bars = bars
    rel = lambda u: min([b_ for b_ in bars if b_ >= W.units[u]['lr']] + [10**6]) + W.units[u]['lr'] * 1e-4
    al = {}; ft = [0] * 8
    for d in range(nf):
        for i, u in enumerate(DBL[d]): al[u] = 2 * (d % 4) + i; ft[al[u]] = -1000 + d
    chk_it = nf - cfg.get('chk', 2)
    front = {}
    rest = sorted((u for u in W.units if u not in al and u[0] not in ('h', 3)), key=lambda u: W.units[u]['fr'])
    for d in range(nf - 3, nf):
        sl = 2 * ((d - 1) % 4)
        if d < chk_it: us = [u for u in rest if u in [x for D_ in DBL for x in D_]][:2]; assert tuple(us) in DBL
        elif d == chk_it: us = [u for u in rest if u[0] == 'a'][:2]
        else: ft[sl] = ft[sl + 1] = -1000; front[d] = []; continue
        for i, u in enumerate(us): al[u] = sl + i; ft[sl + i] = rel(u); rest.remove(u)
        front[d] = us if d < chk_it else [us[0], ('h', 0), us[1], ('h', 1)]
    for u in rest:
        if u in al: continue
        if u[0] == 'k':
            sl = min((0, 1, 2, 4, 5, 6), key=lambda x: max(ft[x], ft[x + 1])); al[('v', u[1])] = sl + 1; ft[sl + 1] = rel(u)
        elif u[0] == 'o' and u[1] >= cfg.get('oforce', 9): sl = ((4, 0, 5, 1), (6, 2, 7, 3))[u[1] % 2][u[2]]
        else: sl = min(range(8), key=lambda x: ft[x])
        if ft[sl] == -1000 and u[0] in 'qka': front[nf - 1] += [u] + ([('v', u[1])] if u[0] == 'k' else [])
        al[u] = sl; ft[sl] = rel(u)
    k.perm = [sorted(range(4), key=lambda x: ft[4 * g + x]) for g in range(2)]
    st, W, I = plan(al)
    if cfg.get('dbg'):
        for u in sorted(W.units, key=lambda u: W.units[u]['fr']): print(u, al.get(u), W.units[u]['fr'], W.units[u]['lr'])
        print(front)
    k.al = al
    P, Q, T0, N = I['P'], I['Q'], I['T0'], st.n()
    def issue(us):
        for u in us:
            for pre, main in W.units[u]['dmas']: pre(); main()
    lt, vx, vf, vq, vjc = 28, 44, 60, 92, 23
    vo, vpo, vsw, vsr, vpw, vmr, vone, vm_, q0 = lt, lt + 1, lt + 2, lt + 3, lt + 4, lt + 5, lt + 6, lt + 7, lt + 8
    sx_, sfm, smp, sho, sms = sWg + 2, sWg + 3, sWu + 2, sWd + 2, sOut + 2
    late = [x for x in k.srds if x[0] in (sWg, sWu, sWd, sOut)]; k.srds = [x for x in k.srds if x not in late]
    if cfg.get('body', 1) == 0: p.ins(';@BODY\n;@FROM')
    p.ins(f'v_lshrrev_b32 v{vt}, 6, v0\nv_and_b32 v0, 63, v0\nv_readfirstlane_b32 {sr(sw)}, v{vt}\nv_lshrrev_b32 v{vt+1}, 3, v{vl}')
    p.ins(f'v_bfe_u32 v{vdJ}, v{vt+1}, 1, 2\nv_bfe_u32 v{vt+2}, v{vl}, 1, 2\nv_xor_b32 v{vdJ}, v{vdJ}, v{vt+2}\nv_lshlrev_b32 v{vdJ}, 5, v{vdJ}\nv_and_b32 v{vt+2}, 1, v{vl}\nv_lshl_add_u32 v{vdJ}, v{vt+2}, 4, v{vdJ}')
    p.ins(f's_lshl_b32 {sr(sWL)}, {sr(sw)}, 10\ns_lshl_b32 {sr(s0)}, {sr(sw)}, 3\nv_add_u32 v{vdO}, {sr(s0)}, v{vt+1}')
    p.ins(f's_and_b32 {sr(s0)}, s2, 7\ns_lshl_b32 {sr(s0)}, {sr(s0)}, 7\nv_add_u32 v{vm_}, {sr(s0)}, v{vdO}\nv_mul_u32_u24 v{vm_}, 12288, v{vm_}\ns_lshr_b32 {sr(s1)}, s2, 3\ns_lshl_b32 {sr(s1)}, {sr(s1)}, 7\nv_add3_u32 v{vm_}, v{vm_}, v{vdJ}, {sr(s1)}')
    p.ins(f's_and_b32 {sr(s1)}, {sr(sw)}, 1\ns_lshl_b32 {sr(s1)}, {sr(s1)}, 6\ns_add_u32 {sr(s0)}, {sr(s0)}, {sr(s1)}\nv_add_lshl_u32 v{vpb+1}, {sr(s0)}, v{vl}, 1')
    m16 = cfg.get('m16')
    if m16: p.ins(f's_and_b32 {sr(sn)}, s2, 7\ns_lshl_b32 {sr(sn)}, {sr(sn)}, 1\ns_bfe_u32 {sr(s0)}, s2, 0x10003\ns_add_u32 {sr(sn)}, {sr(sn)}, {sr(s0)}\ns_lshr_b32 {sr(sm)}, s2, 4')
    else: tilemap(k, 'g1', sm, sn, s0, s1)
    p.ins(f's_lshl_b32 {sr(s2_)}, {sr(sm)}, 4\ns_add_u32 {sr(s2_)}, {sr(s2_)}, {sr(sn)}')
    p.ins(f'v_and_b32 v{vt}, 7, v{vl}\nv_lshlrev_b32 v{vo}, 11, v{vt}\nv_lshl_add_u32 v{vo}, v{vt+1}, 4, v{vo}\nv_mov_b32 v{vpo}, {WS_TOK}')
    p.ins(f's_lshr_b32 {sr(sho)}, {sr(s2_)}, 1\ns_lshl_b32 {sr(sho)}, {sr(sho)}, 15\ns_and_b32 {sr(s1)}, {sr(s2_)}, 1\ns_lshl_b32 {sr(s1)}, {sr(s1)}, 2\ns_add_u32 {sr(s1)}, {sr(s1)}, {sr(sw)}\ns_lshl_b32 {sr(s0)}, {sr(s1)}, 8\ns_add_u32 {sr(sx_)}, {sr(sho)}, {sr(s0)}')
    k.finish_srds()
    p.T('f_k')
    p.vm(f'buffer_load_ushort v{vpb}, v{vpb+1}, {sr(sC,4)}, 0 offen', 'mc')
    for pre, main in dmaw('m', sWm, vm_, QKV, None, 12288, 0, MODNT[0]): pre(); main()
    p.vm(f'buffer_load_dword v{q0}, v{vpo}, {sr(sWS,4)}, 0 offen sc1', 'tok')
    p.ins(f's_and_b32 {sr(s0)}, s2, 3\ns_lshl_b32 {sr(s0)}, {sr(s0)}, 2\ns_add_u32 {sr(s0)}, {sr(s0)}, {sr(sw)}\ns_lshl_b32 {sr(s0)}, {sr(s0)}, 7\nv_lshlrev_b32 v{vjc}, 1, v{vl}')
    p.vm(f'buffer_load_ushort v{vjc}, v{vjc}, {sr(sC,4)}, {sr(s0)} offen', 'jc')
    def xload(oth):
        for rh in range(2):
            if oth and rh == 0: p.ins(f's_xor_b32 {sr(sx_)}, {sr(sx_)}, 1024')
            p.ins(f's_add_u32 {sr(s0)}, {sr(sx_)}, {16384 * rh}')
            for i in range(2):
                p.vm(f'buffer_load_dwordx4 {vr((vq if oth else vx)+8*rh+4*i,4)}, v{vo}, {sr(sX,4)}, {sr(s0)} offen offset:{128*i}', ('x', oth))
    xload(0)
    if cfg.get('body', 1) == 1: p.ins(';@BODY\n;@FROM')
    p.ins(f'v_lshlrev_b32 v{vl16}, 4, v{vl}\nv_add_u32 v{vl16+1}, 65536, v{vl16}\nv_add_u32 v{vp}, 131072, v{vl16}')
    p.ins(f's_lshl_b32 {sr(srot)}, {sr(sn)}, {2 if m16 else 1}\ns_add_u32 {sr(srot)}, {sr(srot)}, {sr(sm)}' if cfg.get('rot', 1) else f's_mov_b32 {sr(srot)}, 0')
    p.ins(f'v_mul_u32_u24 v{vdW}, 6144, v{vdO}\ns_lshl_b32 {sr(s0)}, {sr(sn)}, 7\nv_add3_u32 v{vdW}, v{vdW}, v{vdJ}, {sr(s0)}')
    p.ins(f's_lshl_b32 {sr(s0)}, {sr(s1)}, 12\ns_add_u32 {sr(sho)}, {sr(sho)}, {sr(s0)}\ns_add_u32 {sr(sho+1)}, {sr(sho)}, {WS_XA}\ns_add_u32 {sr(sho)}, {sr(sho)}, {WS_H}\ns_lshl_b32 {sr(smp)}, {sr(s1)}, 9\ns_add_u32 {sr(smp)}, {sr(smp)}, {WS_MP8}\ns_lshl_b32 {sr(smp+1)}, {sr(s1)}, 11\ns_add_u32 {sr(smp+1)}, {sr(smp+1)}, {FL_M}')
    early = sorted(W.early, key=lambda x: x[:2])
    avail = [x for d in range(4) for u in DBL[d] for x in W.units[u]['dmas']]; nit = [0]
    def D(n):
        for _ in range(n):
            if avail: pre, main = avail.pop(0); pre(); main()
    def it():
        d = nit[0]; nit[0] += 1
        p.wait(vm=[('D', u, i) for u in DBL[d] for i in range(4)], lg='all'); p.bar()
        if cfg.get('fm'): p.T(f'it{d}')
        for s, _, f in early:
            if -10000 + 100 * d <= s < -10000 + 100 * d + 100: f()
        if d >= 1 and d != chk_it: avail.extend(x for u in (front[d] if d in front else DBL[d + 3]) for x in W.units[u]['dmas'])
    def addr():
        t_ = q0 + 4
        p.ins(f'v_lshrrev_b32 v{t_+1}, 2, v{vl}\nv_bfe_u32 v{t_}, v{t_+1}, 1, 2\nv_lshlrev_b32 v{t_}, 5, v{t_}\nv_lshl_add_u32 v{t_}, v{t_+1}, 7, v{t_}\nv_and_b32 v{t_+1}, 3, v{vl}\nv_lshl_add_u32 v{t_}, v{t_+1}, 3, v{t_}')
        p.ins(f's_lshl_b32 {sr(s0)}, {sr(sw)}, 5\nv_xor_b32 v{trA}, {sr(s0)}, v{t_}\ns_and_b32 {sr(s0)}, {sr(s0)}, 64\ns_and_b32 {sr(s1)}, {sr(sw)}, 1\ns_lshl_b32 {sr(s1)}, {sr(s1)}, 14\ns_add_u32 {sr(s0)}, {sr(s0)}, {sr(s1)}\nv_xor_b32 v{trA+1}, {sr(s0)}, v{t_}\nv_xor_b32 v{trA+2}, 32, v{trA+1}')
        for t in range(3): p.ins(f'v_add_u32 v{trA+3+t}, 65536, v{trA+t}')
        p.ins(f'v_add_u32 v{vm_}, {QKV}, v{trA}')
        p.ins(f'v_lshrrev_b32 v{vsw}, 5, v{vl}\nv_lshlrev_b32 v{vsw}, 6, v{vsw}\nv_bfe_u32 v{t_}, v{vl}, 2, 2\nv_lshl_add_u32 v{vsw}, v{t_}, 4, v{vsw}\nv_bfe_u32 v{t_}, v{vl}, 4, 1\nv_lshl_add_u32 v{vsw}, v{t_}, 3, v{vsw}\nv_lshl_add_u32 v{vsw}, v{t_+1}, 1, v{vsw}\ns_lshl_b32 {sr(s0)}, {sr(sw)}, 7\ns_add_u32 {sr(s0)}, {sr(s0)}, {JT}\nv_add_u32 v{vsw}, {sr(s0)}, v{vsw}')
        p.ins(f'v_lshrrev_b32 v{vpw}, 4, v{vl}\nv_lshlrev_b32 v{vpw}, 4, v{vpw}\nv_add_u32 v{vsr}, {JT}, v{vpw}\nv_and_b32 v{t_}, 15, v{vl}\nv_lshl_add_u32 v{vpw}, v{t_}, 27, v{vpw}')
        p.ins(f's_and_b32 {sr(s0)}, s2, 7\ns_lshl_b32 {sr(s0)}, {sr(s0)}, 13\ns_lshr_b32 {sr(s1)}, s2, 3\ns_lshl_b32 {sr(s1)}, {sr(s1)}, 8\ns_add_u32 {sr(s0)}, {sr(s0)}, {sr(s1)}\ns_lshl_b32 {sr(s1)}, {sr(sw)}, 6\ns_add_u32 {sr(s0)}, {sr(s0)}, {sr(s1)}\ns_add_u32 {sr(sms)}, {sr(s0)}, {WS_MP8}')
        p.ins(f's_lshl_b32 {sr(s1)}, {sr(sw)}, 28\ns_lshl_b32 {sr(sfm)}, s2, 7\ns_add_u32 {sr(sfm)}, {sr(sfm)}, {sr(s1)}\ns_add_u32 {sr(sfm)}, {sr(sfm)}, {FL_M}')
        p.ins(f's_lshl_b32 {sr(sfl)}, {sr(s2_)}, 7\ns_add_u32 {sr(sfl)}, {sr(sfl)}, {sr(s1)}\ns_add_u32 {sr(sfl+1)}, {sr(sfl)}, {FL_H}\ns_add_u32 {sr(sfl)}, {sr(sfl)}, {FL_O}')
    def gemv():
        g_ = vf
        p.wait(vm=['mc'])
        p.ins(f'v_lshlrev_b32 v{vpb}, 16, v{vpb}\nv_mul_f32 v{vpb+1}, {f32(-LOG2E)}, v{vpb}\nv_exp_f32 v{vpb+1}, v{vpb+1}\nv_add_f32 v{vpb+1}, 1.0, v{vpb+1}\nv_rcp_f32 v{vpb+1}, v{vpb+1}\nv_mul_f32 v{vpb}, v{vpb}, v{vpb+1}\nv_cvt_pk_bf16_f32 v{vpb}, v{vpb}, v{vpb}')
        p.lg(f'ds_write_b16 v{vsw}, v{vpb}', None, w=(JT, JT + 512))
        p.wait(vm=[('D', 'm', i) for i in range(4)], lg='all'); p.bar(); p.T('f_m')
        for ks in range(4):
            for h in range(2): p.lg(f'ds_read_b64_tr_b16 {vr(g_+4*ks+2*h,2)}, v{vm_} offset:{4096*ks+2048*h}', None, r=(QKV, QKV + 16384))
            p.lg(f'ds_read_b128 {vr(g_+16+4*ks,4)}, v{vsr} offset:{64*ks}', ('mr', ks), r=(JT, JT + 512))
        p.wait(vm=['tok']); p.ins(f'v_readfirstlane_b32 {sr(sTok)}, v{q0}\ns_add_u32 {sr(sTok)}, {sr(sTok)}, 8')
        for ks in range(4):
            p.wait(lg=[('mr', ks)])
            p.ins(f'{MFMA} {vr(q0+4,4)}, {vr(g_+4*ks,4)}, {vr(g_+16+4*ks,4)}, {vr(q0+4,4) if ks else 0}')
        p.vm(f'buffer_store_dwordx4 {vr(q0+4,4)}, v{vpw}, {sr(sWS,4)}, {sr(sms)} offen sc1', 'ms'); p.T('f_ms')
    def stats():
        p.ins(f's_lshl_b32 {sr(s1)}, {sr(sw)}, 4\nv_lshlrev_b32 v{vsr}, 6, v{vt}\nv_add_u32 v{vsr}, {LS}, v{vsr}\nv_add_u32 v{vsw}, {sr(s1)}, v{vsr}\nv_mov_b32 v{vone}, 0x3f803f80')
        for i in range(4): p.ins(f'v_mov_b32 v{q0+i}, 0')
        for oth in range(2):
            p.wait(vm=[('x', oth)])
            for d in range(8):
                for rh in range(2):
                    x_ = (vq if oth else vx) + 8 * rh + d
                    p.ins(f'v_dot2c_f32_bf16 v{q0+2*rh}, v{x_}, v{vone}\nv_dot2c_f32_bf16 v{q0+2*rh+1}, v{x_}, v{x_}')
        p.ins('s_nop 2')
        for i in range(4): p.ins(f'v_add_f32_dpp v{q0+i}, v{q0+i}, v{q0+i} row_ror:8 row_mask:0xf bank_mask:0xf')
        for sw_ in (16, 32):
            for i in range(4): p.ins(f'v_mov_b32 v{q0+4+i}, v{q0+i}')
            for i in range(4): p.ins(f'v_permlane{sw_}_swap_b32 v{q0+i}, v{q0+4+i}')
            for i in range(4): p.ins(f'v_add_f32 v{q0+i}, v{q0+i}, v{q0+4+i}')
        p.lg(f'ds_write_b128 v{vsw}, {vr(q0,4)}', None, w=(LS, LS + 512))
    def stats2():
        for d in range(16): p.ins(f'v_lshlrev_b32 v{vf+2*d}, 16, v{vx+d}\nv_and_b32 v{vf+2*d+1}, 0xffff0000, v{vx+d}')
        p.wait(lg='all'); p.bar()
        for i in range(4): p.lg(f'ds_read_b128 {vr(vq+4*i,4)}, v{vsr} offset:{16*i}', None, r=(LS, LS + 512))
        for i in range(0, 16, 4): p.ins(f'v_permlane16_swap_b32 v{vx+i}, v{vx+i+2}\nv_permlane16_swap_b32 v{vx+i+1}, v{vx+i+3}')
        t_ = q0
        p.ins(f'v_bfe_u32 v{t_}, v{vl}, 3, 1\nv_lshlrev_b32 v{vo}, 9, v{t_}\nv_bfe_u32 v{t_}, v{vl}, 4, 1\nv_lshl_add_u32 v{vo}, v{t_}, 8, v{vo}\nv_lshrrev_b32 v{vone}, 5, v{vl}\nv_lshl_add_u32 v{vo}, v{vone}, 10, v{vo}\nv_lshl_add_u32 v{vo}, v{vt}, 4, v{vo}')
        p.ins(f'v_and_b32 v{vpo}, 31, v{vl}\nv_lshlrev_b32 v{vpo}, 4, v{vpo}\nv_lshl_add_u32 v{vpo}, v{vone}, 12, v{vpo}\nv_cvt_f32_u32 v{vone}, v{vone}')
        p.ins(f's_add_u32 {sr(s1)}, {sr(sWL)}, {LB}\nv_add_u32 v{vpw}, {sr(s1)}, v{vl16}\nv_lshl_add_u32 v{vmr}, v{vt+1}, 5, {sr(s1)}')
        p.ins(f'v_lshlrev_b32 v{t_}, 14, v{t_}\nv_and_b32 v{vm_}, 15, v{vl}\nv_lshl_add_u32 v{vm_}, v{vm_}, 7, v{t_}')
        p.wait(lg='all')
        for n_ in (8, 4):
            for x in range(n_): p.ins(f'v_add_f32 v{vq+x}, v{vq+x}, v{vq+n_+x}')
        Ls = []
        for rh in range(2):
            m_, v_ = vq + 2 * rh, vq + 2 * rh + 1
            Ls.append(F(f'v_mul_f32 v{m_}, {f32(1/1024)}, v{m_}\nv_mul_f32 v{v_}, {f32(1/1024)}, v{v_}\nv_fma_f32 v{v_}, -v{m_}, v{m_}, v{v_}\nv_max_f32 v{v_}, 0, v{v_}') + rb(v_) + [f'v_add_f32 v{v_}, {f32(1e-5)}, v{v_}'] + rb(v_)
                      + [f'v_sqrt_f32 v{v_}, v{v_}'] + rb(m_) + rb(v_) + F(f'v_rcp_f32 v{v_}, v{v_}\nv_mul_f32 v{m_}, v{m_}, v{v_}'))
        for x, y in zip(*Ls): p.ins(x + '\n' + y)
        for e in range(32): p.ins(f'v_fma_f32 v{vf+e}, v{vf+e}, v{vq+2*(e//16)+1}, -v{vq+2*(e//16)}')
    def xa():
        for i in range(4): p.vm(f'buffer_store_dwordx4 {vr(vx+4*i,4)}, v{vo}, {sr(sWS,4)}, {sr(sho+1)} offen offset:{2048*(i&1)+128*(i>>1)} sc1')
    im, cm = poll_ops(k, sWS, q0, smp + 1, 'plm', scnt, wg=False, va=vm_)
    def mchk():
        p.T('m_a'); cm(); p.T('m_b')
        for q in range(8):
            if q: p.ins(f's_add_u32 {sr(smp)}, {sr(smp)}, 8192')
            p.vm(f'buffer_load_dwordx4 {vr(vq+4*q,4)}, v{vpo}, {sr(sWS,4)}, {sr(smp)} offen sc1', ('part', q))
    def mod():
        for q in range(1, 8):
            p.wait(vm=[('part', q)])
            for i in (0, 2): p.ins(f'v_pk_add_f32 {vr(vq+i,2)}, {vr(vq+i,2)}, {vr(vq+4*q+i,2)}')
        p.T('f_p')
        for rep in range(2):
            p.ins(f'v_cvt_pk_bf16_f32 v{vq+4}, v{vq}, v{vq+1}\nv_cvt_pk_bf16_f32 v{vq+5}, v{vq+2}, v{vq+3}')
            for i in (0, 2): p.ins(f'v_lshlrev_b32 v{vq+i}, 16, v{vq+4+i//2}\nv_and_b32 v{vq+i+1}, 0xffff0000, v{vq+4+i//2}')
            if rep == 0:
                for i in range(4): p.ins(f'v_add_f32 v{vq+i}, v{vone}, v{vq+i}')
        p.lg(f'ds_write_b128 v{vpw}, {vr(vq,4)}', None, w=(LB, LB + 4096), priv=True)
        for i in range(2):
            for h in range(2):
                p.lg(f'ds_read_b128 {vr(vq+8*i+4*h,4)}, v{vmr} offset:{256*i+16*h+512}', None, r=(LB, LB + 4096), priv=True)
                p.lg(f'ds_read_b128 {vr(vq+16+8*i+4*h,4)}, v{vmr} offset:{256*i+16*h}', ('mv', i), r=(LB, LB + 4096), priv=True)
        for i in range(2):
            p.wait(lg=[('mv', i)])
            for rh in range(2):
                f_ = vf + 16 * rh + 8 * i
                for e in range(0, 8, 2): p.ins(f'v_pk_fma_f32 {vr(f_+e,2)}, {vr(f_+e,2)}, {vr(vq+8*i+e,2)}, {vr(vq+16+8*i+e,2)}')
            for rh in range(2):
                f_ = vf + 16 * rh + 8 * i
                for d in range(4): p.ins(f'v_cvt_pk_bf16_f32 v{f_+d}, v{f_+2*d}, v{f_+2*d+1}')
            for rh in range(2):
                f_ = vf + 16 * rh + 8 * i
                p.ins(f'v_permlane16_swap_b32 v{f_}, v{f_+2}\nv_permlane16_swap_b32 v{f_+1}, v{f_+3}')
                p.vm(f'buffer_store_dwordx4 {vr(f_,4)}, v{vo}, {sr(sWS,4)}, {sr(sho)} offen offset:{2048*i+128*rh} sc1', ('hs', 2 * i + rh))
        p.T('f_hs')
    def addr2():
        p.ins(f's_lshl_b32 {sr(s0)}, {sr(sm)}, 18\ns_add_u32 {sr(s0)}, {sr(s0)}, {WS_H - 32768}\ns_max_u32 {sr(sHalo)}, {sr(s0)}, {WS_H}\ns_lshr_b32 {sr(s1)}, {sr(sw)}, 1\ns_lshl_b32 {sr(sW4)}, {sr(s1)}, 15\ns_add_u32 {sr(s0)}, {sr(s0)}, {sr(sW4)}\nv_add_u32 v{vA}, {sr(s0)}, v{vl16}')
        p.ins(f's_lshl_b32 {sr(s1)}, {sr(s1)}, 11\ns_add_u32 {sr(sHalo)}, {sr(sHalo)}, {sr(s1)}\ns_lshl_b32 {sr(sW4)}, {sr(sw)}, 12\ns_and_b32 {sr(s0)}, {sr(sW4)}, 4096\ns_add_u32 {sr(sW4+1)}, {sr(s0)}, {sr(s1)}')
        p.ins('\n'.join(rtab(sR)))
        p.ins(f's_lshl_b32 {sr(s0)}, {sr(sm)}, 4\ns_sub_u32 {sr(s0)}, {sr(s0)}, 2\nv_min_u32 v{vp+1}, 17, v{vl}\nv_add_u32 v{vp+1}, {sr(s0)}, v{vp+1}\nv_max_i32 v{vp+1}, 0, v{vp+1}\nv_lshlrev_b32 v{vp+1}, 7, v{vp+1}\nv_add_u32 v{vp+1}, {FL_H}, v{vp+1}')
    ih, ch = poll_ops(k, sWS, q0, None, 'plh', scnt, va=vp + 1)
    def hchk():
        assert nit[0] == chk_it + 1 and not avail
        p.T('h_a'); ch(); p.T('h_b'); issue(front[chk_it])
    def code():
        p.ins(f's_lshr_b32 {sr(mA+3)}, s2, 3\ns_lshl_b32 {sr(mA+3)}, {sr(mA+3)}, 2\ns_add_u32 {sr(mA+3)}, {sr(mA+3)}, {sr(sw)}\ns_lshl_b32 {sr(mA+3)}, {sr(mA+3)}, 10')
        code_op(k, vM, vl16, mA)
    T = TMP if False else vt
    q_ = lambda l: l & 15
    gg = lambda l: l >> 4
    vccm = lambda m: f's_mov_b32 vcc_lo, 0x{m & 0xffffffff:08x}\ns_mov_b32 vcc_hi, 0x{m >> 32:08x}'
    m64 = lambda s_, m: F(f's_mov_b32 {sr(s_)}, 0x{m & 0xffffffff:08x}\ns_mov_b32 {sr(s_+1)}, 0x{m >> 32:08x}')
    mpa = lanemask(lambda l: not (4 * gg(l) + (l & 1) <= q_(l))); mpb = lanemask(lambda l: not (4 * gg(l) + 2 + (l & 1) <= q_(l)))
    sb, sn2 = sjo + 1, sms + 1
    su = []
    su += F(f's_and_b32 {sr(s0)}, s2, 3\ns_lshl_b32 {sr(s0)}, {sr(s0)}, 8\nv_add_u32 v{q0+4}, {sr(s0)}, v{vdO}\nv_mul_u32_u24 v{q0+4}, 12288, v{q0+4}\ns_lshr_b32 {sr(s1)}, s2, 2\ns_add_u32 {sr(s1)}, {sr(s1)}, 32\ns_lshl_b32 {sr(s1)}, {sr(s1)}, 7')
    su += F(f'v_lshl_add_u32 v{vdO}, v{vdO}, 11, v{vdJ}\nv_add3_u32 v{vdJ}, v{q0+4}, v{vdJ}, {sr(s1)}')
    su += F(f's_and_b32 {sr(s0)}, {sr(sw)}, 1\ns_lshl_b32 {sr(s1)}, {sr(sm)}, 3\ns_add_u32 {sr(s1)}, {sr(s1)}, {sr(s0)}\ns_lshl_b32 {sr(soo)}, {sr(s1)}, 15\ns_lshl_b32 {sr(s1)}, {sr(sn)}, 1\ns_lshr_b32 {sr(scnt)}, {sr(sw)}, 1\ns_add_u32 {sr(s1)}, {sr(s1)}, {sr(scnt)}\ns_lshl_b32 {sr(s1)}, {sr(s1)}, 10\ns_add_u32 {sr(soo)}, {sr(soo)}, {sr(s1)}\ns_add_u32 {sr(soo)}, {sr(soo)}, {WS_O}')
    su += F(f's_mul_i32 {sr(scnt)}, {sr(scnt)}, 3072\ns_add_u32 {sr(scnt)}, {sr(scnt)}, {QKV}\nv_add_u32 v{vrd}, {sr(scnt)}, v{vl16}\ns_lshl_b32 {sr(s1)}, {sr(s0)}, 3\nv_add_u32 v{vqw}, {sr(s1)}, v{vrd}\ns_lshl_b32 {sr(s1)}, {sr(s0)}, 10\nv_add_u32 v{vkw}, {sr(s1)}, v{vrd}')
    su += F(f'v_lshrrev_b32 v{q0+4}, 2, v{vl}\nv_and_b32 v{vvt}, 3, v{vl}\nv_lshl_add_u32 v{q0+4}, v{vvt}, 4, v{q0+4}\nv_lshl_add_u32 v{vvt}, v{q0+4}, 4, {sr(scnt)}')
    for r_ in range(4): su += m64(mA + 2 * r_, lanemask(lambda l: 4 * gg(l) + r_ <= q_(l)))
    su += m64(mA + 8, lanemask(lambda l: l & 1)) + m64(mA + 10, mpa) + m64(mA + 12, mpb)
    su += F(f'v_mov_b32 v{q0+5}, 0xffff\nv_mov_b32 v{vM}, 0xffff0000\nv_cndmask_b32 v{q0+5}, v{q0+5}, v{vM}, {sr(mA+8,2)}\nv_cndmask_b32 v{vM}, 0, v{q0+5}, {sr(mA+10,2)}\nv_cndmask_b32 v{vM+1}, 0, v{q0+5}, {sr(mA+12,2)}\nv_xor_b32 v{vM+2}, v{vM}, v{q0+5}\nv_xor_b32 v{vM+3}, v{vM+1}, v{q0+5}')
    su.append(f's_or_b32 {sr(s0)}, {sr(s0)}, {sr(sm)}\ns_cmp_eq_u32 {sr(s0)}, 0\ns_cselect_b64 {sr(mA+10,2)}, {sr(mA+10,2)}, 0\ns_cselect_b64 {sr(mA+12,2)}, {sr(mA+12,2)}, 0')
    sus = [lambda: p.wait(vm=['jc'])]
    sus += F(f'v_lshlrev_b32 v{vpb}, 16, v{vjc}\nv_mul_f32 v{vpb+1}, {f32(-LOG2E)}, v{vpb}\nv_exp_f32 v{vpb+1}, v{vpb+1}\nv_lshrrev_b32 v{vt}, 5, v{vl}\nv_add_f32 v{vpb+1}, 1.0, v{vpb+1}\nv_rcp_f32 v{vpb+1}, v{vpb+1}\nv_lshlrev_b32 v{vt}, 6, v{vt}\nv_mul_f32 v{vpb}, v{vpb}, v{vpb+1}\nv_cvt_pk_bf16_f32 v{vpb+1}, v{vpb}, v{vpb}')
    sus += F(f'v_bfe_u32 v{vpb}, v{vl}, 2, 2\nv_lshl_add_u32 v{vt}, v{vpb}, 4, v{vt}\nv_bfe_u32 v{vpb}, v{vl}, 4, 1\nv_lshl_add_u32 v{vt}, v{vpb}, 3, v{vt}\nv_and_b32 v{vpb}, 3, v{vl}\nv_lshl_add_u32 v{vt}, v{vpb}, 1, v{vt}\ns_lshl_b32 {sr(s1)}, {sr(sw)}, 7\ns_add_u32 {sr(s1)}, {sr(s1)}, {JT}\nv_add_u32 v{vt}, {sr(s1)}, v{vt}')
    jtp = min(b_ for b_ in bars if b_ >= W.units[('h', 2)]['lr']) + 1
    st.at(jtp, lambda: p.lg(f'ds_write_b16 v{vt}, v{vpb+1}', 'jtw', w=(JT, JT + 512)))
    su2 = F(f's_bfe_u32 {sr(s1)}, s2, 0x30003\ns_lshl_b32 {sr(sn2)}, {sr(s1)}, 1\ns_and_b32 {sr(s0)}, s2, 1\ns_add_u32 {sr(sn2)}, {sr(sn2)}, {sr(s0)}\ns_and_b32 {sr(sb)}, s2, 4\ns_lshr_b32 {sr(s0)}, s2, 6\ns_add_u32 {sr(sb)}, {sr(sb)}, {sr(s0)}\ns_lshl_b32 {sr(sb)}, {sr(sb)}, 1')
    su2 += F(f's_add_u32 {sr(srot+1)}, {sr(sb)}, {sr(s1)}' if cfg.get('rot2', 1) else f's_mov_b32 {sr(srot+1)}, 0') + F(f's_bfe_u32 {sr(s0)}, s2, 0x10001\ns_add_u32 {sr(sb)}, {sr(sb)}, {sr(s0)}') + rtab(sR2, srot + 1)
    su2 += F(f's_lshl_b32 {sr(s0)}, {sr(sn2)}, 7\nv_add_u32 v{vdO}, {sr(s0)}, v{vdO}')
    su2 += F(f's_lshl_b32 {sr(s0)}, {sr(sb)}, 18\ns_lshr_b32 {sr(s1)}, {sr(sw)}, 1\ns_lshl_b32 {sr(s1)}, {sr(s1)}, 15\ns_add_u32 {sr(s1)}, {sr(s0)}, {sr(s1)}\ns_add_u32 {sr(sjo)}, {sr(s1)}, {WS_O}')
    su2v = [f's_mov_b32 {sr(x[0]+2+i)}, {(x[1], 0x20000)[i]}' for x in late for i in range(2)] + [f'v_add_u32 v{vdW}, {sr(sjo)}, v{vl16}'] + [f'v_and_b32 v{trA+t}, 0xffffbfff, v{trA+t}' for t in (1, 2, 4, 5)]
    su2 += F(f's_and_b32 {sr(s1)}, {sr(sw)}, 1')
    su2v += F(f's_lshl_b32 {sr(s0)}, {sr(sw)}, 13\ns_and_b32 {sr(s0)}, {sr(s0)}, 8192\nv_add_u32 v{vdO2}, {sr(s0)}, v{vl16}\nv_add_u32 v{vdO2+1}, {sr(s0)}, v{vl16+1}')
    su2 += F(f's_lshl_b32 {sr(s1)}, {sr(s1)}, 15\ns_add_u32 {sr(s0)}, {sr(s0)}, {sr(s1)}\ns_lshl_b32 {sr(s1)}, {sr(sn2)}, 1\ns_lshr_b32 {sr(scnt)}, {sr(sw)}, 1\ns_add_u32 {sr(s1)}, {sr(s1)}, {sr(scnt)}\ns_lshl_b32 {sr(sy2)}, {sr(s1)}, 7\ns_lshl_b32 {sr(s1)}, {sr(s1)}, 10\ns_add_u32 {sr(sy)}, {sr(s0)}, {sr(s1)}')
    su2 += F(f's_lshr_b32 {sr(s1)}, {sr(s1)}, 1\ns_lshl_b32 {sr(s0)}, {sr(sb)}, 1\ns_and_b32 {sr(scnt)}, {sr(sw)}, 1\ns_add_u32 {sr(s0)}, {sr(s0)}, {sr(scnt)}\ns_lshl_b32 {sr(s0)}, {sr(s0)}, 14\ns_add_u32 {sr(s0)}, {sr(s0)}, {sr(s1)}\ns_add_u32 {sr(sy+1)}, {sr(s0)}, {WS_ST2}')
    su2 += F(f's_lshl_b32 {sr(s0)}, {sr(sb)}, 11\ns_lshl_b32 {sr(s1)}, {sr(sn2)}, 7\ns_add_u32 {sr(s1)}, {sr(s1)}, {sr(s0)}\ns_lshl_b32 {sr(scnt)}, {sr(sw)}, 28\ns_add_u32 {sr(s1)}, {sr(s1)}, {sr(scnt)}\ns_add_u32 {sr(sy+2)}, {sr(s1)}, {FL_Y}')
    su2 += F(f's_add_u32 {sr(sfl+3)}, {sr(s0)}, {FL_O}')
    su2v += F(f'v_and_b32 v{vp+1}, 15, v{vl}\nv_lshlrev_b32 v{vp+1}, 7, v{vp+1}')
    def run(L):
        for o in L: p.ins(o) if isinstance(o, str) else o()
    def tw(i0, n):
        p.ins(f's_add_u32 {sr(s0)}, {sr(sw)}, {i0}\ns_lshr_b32 {sr(s1)}, {sr(s0)}, 1\ns_lshl_b32 {sr(s1)}, {sr(s1)}, 11\ns_and_b32 {sr(s0)}, {sr(s0)}, 1\ns_and_b32 {sr(scnt)}, {sr(srot)}, 7\ns_lshl_b32 {sr(scnt)}, {sr(scnt)}, 1\ns_add_u32 {sr(s0)}, {sr(s0)}, {sr(scnt)}\ns_mul_i32 {sr(s0)}, {sr(s0)}, {64 * 6144}\ns_add_u32 {sr(s0)}, {sr(s0)}, {sr(s1)}')
        p.ins(f's_lshl_b32 {sr(s1)}, {sr(sn)}, 7\ns_add_u32 {sr(s0)}, {sr(s0)}, {sr(s1)}\ns_cmp_lt_u32 {sr(sw)}, {n}\ns_cselect_b32 {sr(s0)}, {sr(s0)}, {OOB}\nv_mul_u32_u24 v{vpb+1}, 6144, v{vl}')
        p.vm(f'buffer_load_dword a252, v{vpb+1}, {sr(sWq,4)}, {sr(s0)} offen', 'dummy')
    def tw16():
        p.ins(f's_lshl_b32 {sr(s1)}, {sr(sw)}, 11\ns_mul_i32 {sr(s0)}, {sr(sm)}, {64 * 6144}\ns_add_u32 {sr(s0)}, {sr(s0)}, {sr(s1)}\ns_lshl_b32 {sr(s1)}, {sr(sn)}, 7\ns_add_u32 {sr(s0)}, {sr(s0)}, {sr(s1)}\ns_cmp_lt_u32 {sr(sw)}, 3\ns_cselect_b32 {sr(s0)}, {sr(s0)}, {OOB}\nv_mul_u32_u24 v{vpb+1}, 6144, v{vl}')
        p.vm(f'buffer_load_dword a252, v{vpb+1}, {sr(sWq,4)}, {sr(s0)} offen', 'dummy')
    steps = dict(tw=tw16, sus=lambda: run(sus), su=lambda: run(su), su2=lambda: run(su2), twa=lambda: tw(0, 2), twb=lambda: tw(2, 4), twc=lambda: tw(0, 4), twd=lambda: tw(4, 2), stats2=stats2, x1=lambda: xload(1), addr=addr, gemv=gemv, stats=stats, xa=xa, mpoll=im, mchk=mchk, mod=mod, addr2=addr2, hpoll=ih, hchk=hchk, it=it, code=code,
                 warm=lambda: p.ins(f';@WARM {sr(sw)} 0 4'),
                 mpub=lambda: (pub_op(k, sWS, vpb, sfm, ['ms'])(), p.T('m_pub')),
                 hpub=lambda: (pub_op(k, sWS, vpb, sfl + 1, [('hs', i) for i in range(4)])(), p.T('h_pub')))
    for x in cfg.get('script', 'code addr addr2 su su2 gemv x1 twa mpub twb stats stats2 sus warm mpoll mchk D8 mod xa D8 hpub it+8 D8 it+8 it+8 hpoll it+8 it hchk it+8').split():
        if x[0] == 'D': D(int(x[1:]))
        elif '+' in x:
            nm, n_ = x.split('+'); a_ = len(p.items); steps[nm](); body = p.items[a_:]; del p.items[a_:]
            def scc_dead(i):
                for y in body[i:]:
                    if y[0] == 'label': return False
                    if y[0] != 'ins': continue
                    o_ = y[1].split()[0]
                    if o_.startswith(('s_cselect', 's_cbranch', 's_addc')) or 'exec' in y[1]: return False
                    if o_.startswith('s_') and not o_.startswith(('s_mov', 's_mul', 's_wait', 's_barrier', 's_nop')): return True
                return True
            first_ = max([i + 1 for i, y in enumerate(body) if y == ('ins', 's_barrier')] + [0]) if nm == 'it' else 0
            n_ = int(n_); done_ = 0
            for i, y in enumerate(body):
                if i >= first_ and done_ < n_ and (i - first_) * n_ >= done_ * (len(body) - first_) and scc_dead(i): D(1); done_ += 1
                p.items.append(y)
            D(n_ - done_)
        else: steps[x]()
    assert nit[0] == nf and not avail
    first = [u for u in W.units if -100 < W.units[u]['fr'] <= bars[0]]
    for u in first: W.units[u]['vis'] = True
    pre_done = [u for d in front for u in front[d]]
    assert all(u in pre_done for u in first), first
    su2_beg = cfg.get('su2', 215)
    for hf in range(2): W.units[('j', hf)]['e'] = cfg.get('je', (150, 250))[hf]
    PD = cfg.get('pd', 35)
    pls = [T0 + x for x in cfg.get('plo', (-150, 5, 105))]
    for i, s in enumerate(pls):
        i_, c_ = poll_ops(k, sWS, vp, sfl + 3, ('plo', i), scnt, cmp=f'v_subrev_u32 v{vp}, {sr(sTok)}, v{vp}\nv_subrev_u32 v{vp}, {i + 1}, v{vp}\nv_cmp_lt_u32 vcc, 3, v{vp}')
        st.at(s, i_); st.at(s + PD, f';@T o{i}a'); st.at(s + PD, c_); st.at(s + PD, f';@T o{i}b')
    for ps in range(4):
        for c in range(4): W.units[('o', ps, c)]['e'] = pls[max(ps - 1, 0)] + PD + 1
    su3_beg = P[2] + cfg.get('su3', 110); su3_end = P[3]
    for u in W.units:
        if u[0] == 3: W.units[u]['e'] = max(su3_end, T0 + cfg.get('w3e', 150))
    ops = W.dma_ops(bars, pre_done)
    extra = []
    def X(e, dl, main, pre=None, wt=1): extra.append(dict(e=e, dl=dl, main=main, pre=pre, id='x', wt=wt))
    vxa, vg, vc2, vone2, vst, vgo, f2, d2, Y2, D1 = 144, 160, 168, 176, 180, 181, 184, 192, 196, 224
    tj = T0 - cfg.get('tj', 34)
    tx = T0 + cfg.get('tx', -10)
    ij, cj = poll4_ops(k, sWS, TMP, vt, 'plj', scnt)
    st.at(tj - 62, f'v_lshlrev_b32 v{vt}, 7, v{vl}\nv_add_u32 v{vt}, {FL_J}, v{vt}'); st.at(tj - 60, ij); st.at(tj - 60 + PD, cj)
    st.at(tj - 58 + PD, op(lambda: (p.ins(f's_or_b32 {sr(scnt)}, s2, {sr(sw)}\ns_mov_b32 {sr(scnt)}, {WS_TOK}\ns_cselect_b32 {sr(scnt)}, {OOB}, {sr(scnt)}'), pub_op(k, sWS, vpb, scnt, [])()), 7))
    st.at(tj - 1, f'v_and_b32 v{vt}, 31, v{vl}\nv_lshlrev_b32 v{vt}, 2, v{vt}\nv_lshrrev_b32 v{vgo}, 5, v{vl}\nv_lshl_add_u32 v{vt}, v{vgo}, 13, v{vt}')
    for q in range(NPART):
        pre = op(lambda q=q: p.ins(f's_add_u32 {sr(sv+1)}, {sr(sy2)}, {6144 * 4 * q + 2 * 4096}'), 1)
        X(tx, tx + 30, lambda q=q: p.vm(f'buffer_load_dword v{vg+q}, v{vt}, {sr(sWS,4)}, {sr(sv+1)} offen sc1', ('g', q)), pre, 0.5)
    assert tj > pls[0] + PD
    for j in range(4):
        pre = op(lambda j=j: p.ins(f's_add_u32 {sr(sv+1)}, {sr(sy)}, {WS_XA + 65536 * j}'), 1)
        X(tx, tx + 30, lambda j=j: p.vm(f'buffer_load_dwordx4 {vr(vxa+4*j,4)}, v{vl16}, {sr(sWS,4)}, {sr(sv+1)} offen sc1', ('xa', j)), pre, 0.6)
    vtb = k.vtb = 212
    st.at(T0 + 2, f's_lshr_b32 {sr(sjo+1)}, s2, 6\ns_lshl_b32 {sr(sjo+1)}, {sr(sjo+1)}, 2\ns_add_u32 {sr(sjo+1)}, {sr(sjo+1)}, {sr(sw)}\ns_lshl_b32 {sr(sjo+1)}, {sr(sjo+1)}, 8')
    st.at(T0 + 60, f'v_lshrrev_b32 v{vtb+8}, 5, v{vl}\nv_xor_b32 v{vtb+8}, 1, v{vtb+8}\nv_lshlrev_b32 v{vtb+8}, 12, v{vtb+8}')
    st.at(T0 + 62, f'v_and_b32 v{vtb+9}, 31, v{vl}\nv_lshl_add_u32 v{vtb+8}, v{vtb+9}, 3, v{vtb+8}')
    for q in range(NPART):
        pre = op(lambda q=q: p.ins(f's_add_u32 {sr(sv+1)}, {sr(sjo+1)}, {6144 * 4 * q + 3 * 4096}'), 1)
        X(T0 + cfg.get('tt', 190), T0 + cfg.get('tt', 190) + 60, lambda q=q: p.vm(f'buffer_load_dwordx2 {vr(vtb+2*q,2)}, v{vtb+8}, {sr(sWS,4)}, {sr(sv+1)} offen sc1', ('tb', q)), pre, 0.5)
    def touch_op(kind, j, nsel):
        def f():
            L = k.lab('TP')
            p.ins(f's_lshr_b32 {sr(scnt)}, s2, 3\ns_add_u32 {sr(scnt)}, {sr(scnt)}, s2\ns_and_b32 {sr(scnt)}, {sr(scnt)}, {nsel - 1}\ns_cmp_lg_u32 {sr(scnt)}, {j}\ns_cbranch_scc1 {L}')
            ld, srd = {'wo': (2048, sWo), 'wg': (7168, sWg), 'wu': (7168, sWu)}[kind]
            p.ins(f's_lshr_b32 {sr(scnt)}, s2, 3\ns_lshl_b32 {sr(scnt)}, {sr(scnt)}, 2\ns_add_u32 {sr(scnt)}, {sr(scnt)}, {sr(sw)}\ns_mul_i32 {sr(scnt)}, {sr(scnt)}, {8 * ld}')
            p.ins(f's_and_b32 vcc_lo, s2, {1 if kind == "wo" else 7}\ns_mul_i32 vcc_lo, vcc_lo, {1024 if kind == "wo" else 896}\ns_add_u32 {sr(scnt)}, {sr(scnt)}, vcc_lo')
            p.ins(f'v_lshrrev_b32 v{vpb}, 3, v{vl}\nv_mul_u32_u24 v{vpb}, {ld - 1024}, v{vpb}\nv_lshl_add_u32 v{vpb}, v{vl}, 7, v{vpb}')
            if kind != 'wo': p.ins('s_mov_b32 exec_lo, 0x7f7f7f7f\ns_mov_b32 exec_hi, 0x7f7f7f7f')
            p.ins(f'buffer_load_dword a253, v{vpb}, {sr(srd,4)}, {sr(scnt)} offen ; cond')
            if kind != 'wo': p.ins('s_mov_b64 exec, -1')
            p.label(L)
        return op(f, 6)
    def head_op():
        L = k.lab('TH')
        p.ins(f's_cmp_gt_u32 {sr(sw)}, 1\ns_cbranch_scc1 {L}\ns_cmp_eq_u32 {sr(sw)}, 0\ns_cselect_b64 {sr(sX,2)}, {sr(sWg,2)}, {sr(sWu,2)}')
        p.ins(f's_lshr_b32 {sr(scnt)}, s2, 3\ns_mul_i32 {sr(scnt)}, {sr(scnt)}, {8 * 7168}\ns_and_b32 vcc_lo, s2, 7\ns_mul_i32 vcc_lo, vcc_lo, 896\ns_add_u32 {sr(scnt)}, {sr(scnt)}, vcc_lo')
        p.ins(f'v_lshrrev_b32 v{vpb}, 3, v{vl}\nv_mul_u32_u24 v{vpb}, {7168 - 1024}, v{vpb}\nv_lshl_add_u32 v{vpb}, v{vl}, 7, v{vpb}\ns_mov_b32 exec_lo, 0x7f7f7f7f\ns_mov_b32 exec_hi, 0x7f7f7f7f')
        p.ins(f'buffer_load_dword a253, v{vpb}, {sr(sX,4)}, {sr(scnt)} offen ; cond\ns_mov_b64 exec, -1')
        p.label(L)
    if cfg.get('hd', 530): st.at(cfg.get('hd', 530), op(head_op, 6))
    for kind, pos in cfg.get('tp', {}).items():
        for j, s in enumerate(pos): st.at(s, touch_op(kind, j, len(pos)))
    gp = cfg.get('gaps', (4, 5, 3.5, 3, 1.5, 6))
    left = st.vmem(ops + extra, lambda i: gp[0] if i < P[1] else gp[1] if i < P[3] - 60 else gp[2] if i < T0 else gp[3] if i < pls[2] + PD else gp[4] if i < pls[2] + PD + 16 * gp[4] else gp[5])
    k.left = left
    k.vops = [o for o in ops if 't' in o]
    lastw = max(o['t'] for o in ops if o['id'][0][0] in ('q', 'k', 'v', 'h'))
    assert lastw + 1 < su2_beg and max(U_['lr'] for u, U_ in W.units.items() if u[0] in ('k', 'v')) < su2_beg, lastw
    W.bw[min(b_ for b_ in bars if b_ > jtp)].append(('lg', 'jtw'))
    e_ = st.fill(su2v, su2_beg); assert e_ < P[1]
    SC = (32 ** -0.5) * LOG2E
    mf_ = lambda d, a_, b_, c='0': op(lambda: p.ins(f'{MFMA} {vr(d,4)}, {vr(a_,4)}, {vr(b_,4)}, {c}'), 2)
    for ps in range(4):
        s0_ = (P + [T0])[ps + 1]; L = []; tags = []
        for e in ((0, 1, 2) if ps == 0 else (0, 1)):
            sl = ((2 * ps + e + 1) % 3 if e < 2 else 0) * 6144
            c1, c2 = (acc(ps, 1, e), acc(ps, 2, e)) if e < 2 else (acch(1), acch(2))
            X_ = F(f'v_cvt_pk_bf16_f32 v{c1}, v{c1}, v{c1+1}\nv_cvt_pk_bf16_f32 v{c1+1}, v{c1+2}, v{c1+3}\nv_cvt_pk_bf16_f32 v{c1+2}, v{c2}, v{c2+1}\nv_cvt_pk_bf16_f32 v{c1+3}, v{c2+2}, v{c2+3}')
            X_.append(lambda c1=c1, sl=sl, t=('kw', ps, e): p.lg(f'ds_write_b128 v{vkw}, {vr(c1,4)} offset:{sl+1024}', t, w=(QKV + sl + 1024, QKV + sl + 1025)))
            tags.append(('kw', ps, e))
            if e < 2:
                c0 = acc(ps, 0, e)
                X_ = F(f'v_cvt_pk_bf16_f32 v{c0}, v{c0}, v{c0+1}\nv_cvt_pk_bf16_f32 v{c0+1}, v{c0+2}, v{c0+3}') + [lambda c0=c0, sl=sl: p.lg(f'ds_write_b64 v{vqw}, {vr(c0,2)} offset:{sl}', None, w=(QKV + sl, QKV + sl + 1))] + X_
                L += X_
            else: LH = X_
        if ps == 0:
            for o in LH: st.at(s0_ + 2, o)
        cur = [((2 * ps + e + 1) % 3) * 6144 for e in range(2)]; prv = [((2 * ps + e) % 3) * 6144 for e in range(2)]
        B = ACC + 24 * (ps % 2); vQ, vK, vV, w_, vS = B, B + 4, B + 12, B + 20, TMP
        L.append(f's_bitcmp1_b32 {sr(sw)}, 0\ns_mov_b32 {sr(s0)}, {cur[0]}\ns_cselect_b32 {sr(s0)}, {cur[1]}, {sr(s0)}\ns_mov_b32 {sr(s1)}, {prv[0]}\ns_cselect_b32 {sr(s1)}, {prv[1]}, {sr(s1)}')
        L += F(f'v_add_u32 v{vS}, {sr(s0)}, v{vrd}\nv_add_u32 v{vS+1}, {sr(s1)}, v{vrd}\nv_add_u32 v{vS+2}, {sr(s0)}, v{vvt}\nv_add_u32 v{vS+3}, {sr(s1)}, v{vvt}')
        e_ = st.fit(L, s0_ + 3, ab[ps])
        W.bw[ab[ps]] += [('lg', t) for t in tags]
        R_ = (QKV, QKV + 18432)
        L = [lambda vQ=vQ, vS=vS: p.lg(f'ds_read_b128 {vr(vQ,4)}, v{vS}', None, r=R_),
             lambda vK=vK, vS=vS: p.lg(f'ds_read_b128 {vr(vK,4)}, v{vS+1} offset:1024', None, r=R_),
             lambda vK=vK, vS=vS, ps=ps: p.lg(f'ds_read_b128 {vr(vK+4,4)}, v{vS} offset:1024', ('K', ps), r=R_)]
        for d in range(2):
            for h in range(2):
                L.append(lambda d=d, h=h, vV=vV, vS=vS, ps=ps: p.lg(f'ds_read_b64_tr_b16 {vr(vV+4*d+2*h,2)}, v{vS+3-h} offset:{2048+8*d}', ('V', ps), r=R_))
        L += [('gap', 5), lambda ps=ps: p.wait(lg=[('K', ps), ('V', ps)]), mf_(vS, vK, vQ), mf_(vS + 4, vK + 4, vQ), ('gap', 4)]
        L += [f'v_cndmask_b32 v{w_+r_}, v{vS+r_}, v{vS+4+r_}, {sr(mA+2*r_,2)}' for r_ in range(4)]
        L += F(f'v_cndmask_b32 v{w_}, v{w_}, v{w_+1}, {sr(mA+8,2)}\nv_cndmask_b32 v{w_+1}, v{w_+2}, v{w_+3}, {sr(mA+8,2)}\nv_mul_f32 v{w_}, {f32(SC)}, v{w_}\nv_mul_f32 v{w_+1}, {f32(SC)}, v{w_+1}')
        if ps == 0: L += F(f'v_mov_b32 v{w_+2}, {f32(-1e9)}\nv_cndmask_b32 v{w_}, v{w_}, v{w_+2}, {sr(mA+10,2)}\nv_cndmask_b32 v{w_+1}, v{w_+1}, v{w_+2}, {sr(mA+12,2)}')
        def xred(o_):
            R2 = []
            for sw_ in (16, 32): R2 += [f'v_mov_b32 v{w_+3}, v{w_+2}', ('gap', 1), f'v_permlane{sw_}_swap_b32 v{w_+2}, v{w_+3}', f'{o_} v{w_+2}, v{w_+2}, v{w_+3}']
            return R2
        L += [f'v_max_f32 v{w_+2}, v{w_}, v{w_+1}'] + xred('v_max_f32')
        L += F(f'v_sub_f32 v{w_}, v{w_}, v{w_+2}\nv_sub_f32 v{w_+1}, v{w_+1}, v{w_+2}\nv_exp_f32 v{w_}, v{w_}\nv_exp_f32 v{w_+1}, v{w_+1}') + [('gap', 1), f'v_add_f32 v{w_+2}, v{w_}, v{w_+1}'] + xred('v_add_f32')
        L += [f'v_rcp_f32 v{w_+2}, v{w_+2}', ('gap', 1)] + F(f'v_mul_f32 v{w_}, v{w_}, v{w_+2}\nv_mul_f32 v{w_+1}, v{w_+1}, v{w_+2}\nv_cvt_pk_bf16_f32 v{w_}, v{w_}, v{w_}\nv_cvt_pk_bf16_f32 v{w_+1}, v{w_+1}, v{w_+1}')
        L += [f'v_and_b32 v{vQ+i}, v{vM+i}, v{w_+(i&1)}' for i in range(4)] + [('gap', 1), mf_(vK, vV, vQ), mf_(vK + 4, vV + 4, vQ), ('gap', 4)]
        L += [f'v_cvt_pk_bf16_f32 v{vS+i}, v{vK+2*i}, v{vK+2*i+1}' for i in range(4)]
        L.append(lambda vS=vS, ps=ps: p.vm(f'buffer_store_dwordx4 {vr(vS,4)}, v{vl16}, {sr(sWS,4)}, {sr(soo)} offen sc1', ('os', ps)))
        L.append(f's_add_u32 {sr(soo)}, {sr(soo)}, 65536')
        e_ = st.fill(L, ab[ps] + 1, cap=cfg.get('acap', (2, 2, 3, 7))[ps])
        I[('ae', ps)] = e_
        if ps: st.at(e_ + cfg.get('opub', (0, 70, 45, 28))[ps], pub_op(k, sWS, vpb, sfl, [('os', ps)], add=ps))
    assert I[('ae', 0)] + 2 < jp and jp + 7 * JS + 18 < P[2] or I[('ae', 1)] + 2 < jp and jp + 7 * JS + 18 < P[3], (I, jp)
    assert I[('ae', 2)] + 2 < tj - 62, (I, tj)
    JB = ACC + 24 * (0 if jp < P[2] else 1)
    st.at(jp - 2, f'v_lshrrev_b32 v{JB+12}, 4, v{vl}\nv_lshlrev_b32 v{JB+12}, 4, v{JB+12}')
    st.at(jp - 1, f'v_add_u32 v{JB+13}, {JT}, v{JB+12}')
    for ks in range(8):
        s = jp + JS * ks
        st.at(s + 2, lambda ks=ks: p.lg(f'ds_read_b128 {vr(JB+4*(ks%2),4)}, v{JB+13} offset:{64*ks}', ('jb', ks), r=(JT, JT + 512)))
        st.at(s + 11, lambda ks=ks: (p.wait(lg=[('jb', ks)]), p.ins(f'{MFMA} {vr(JB+8,4)}, {vr(TMP+4*(ks%2),4)}, {vr(JB+4*(ks%2),4)}, {vr(JB+8,4) if ks else 0}')))
    L = F(f'v_and_b32 v{JB+14}, 15, v{vl}\nv_lshl_add_u32 v{JB+12}, v{JB+14}, 27, v{JB+12}')
    L += F(f's_lshr_b32 {sr(s0)}, s2, 2\ns_lshl_b32 {sr(s2_)}, {sr(s0)}, 7\ns_lshl_b32 {sr(s0)}, {sr(s0)}, 8\ns_and_b32 {sr(s1)}, s2, 3\ns_mul_i32 {sr(sjo+1)}, {sr(s1)}, {6144*4}\ns_add_u32 {sr(s0)}, {sr(s0)}, {sr(sjo+1)}\ns_lshl_b32 {sr(sjo+1)}, {sr(sw)}, 6\ns_add_u32 {sr(s0)}, {sr(s0)}, {sr(sjo+1)}\ns_add_u32 {sr(s0)}, {sr(s0)}, {32*256}')
    L += F(f's_lshl_b32 {sr(s1)}, {sr(s1)}, 2\ns_add_u32 {sr(s2_)}, {sr(s2_)}, {sr(s1)}\ns_add_u32 {sr(s2_)}, {sr(s2_)}, {FL_J}')
    L.append(f's_cmp_eq_u32 {sr(sw)}, 0\ns_cselect_b32 {sr(sjo+1)}, {sr(s2_)}, {OOB}')
    L += [('from', jp + 7 * JS + 15), lambda: p.vm(f'buffer_store_dwordx4 {vr(JB+8,4)}, v{JB+12}, {sr(sWS,4)}, {sr(s0)} offen sc1', 'js')]
    e_ = st.fill(L, jp + 20)
    jbar = min(b_ for b_ in bars if b_ > e_ + 50)
    W.bw[jbar].append('js'); st.at(jbar + 1, pub_op(k, sWS, vpb, sjo + 1, []))
    L = [lambda: p.wait(vm=[('g', q) for q in range(NPART)])]
    L += F(f'v_add_f32 v{vg}, v{vg}, v{vg+1}\nv_add_f32 v{vg+2}, v{vg+2}, v{vg+3}\nv_add_f32 v{vg}, v{vg}, v{vg+2}') + rb(vg) + F(f'v_cvt_f32_u32 v{vgo}, v{vgo}\nv_add_f32 v{vg}, v{vg}, v{vgo}') + rb(vg)
    L += F(f's_lshl_b32 {sr(s2_)}, {sr(sw)}, 8\ns_add_u32 {sr(s2_)}, {sr(s2_)}, {GL2}\nv_lshl_add_u32 v{vst}, v{vl}, 2, {sr(s2_)}\nv_lshrrev_b32 v{vg+1}, 4, v{vl}\nv_lshl_add_u32 v{vgo}, v{vg+1}, 4, {sr(s2_)}')
    L.append(lambda: p.lg(f'ds_write_b32 v{vst}, v{vg}', None, w=(GL2, GL2 + 1024), priv=True))
    L += F(f'v_bfe_u32 v{vst}, v{vl}, 2, 2\nv_xor_b32 v{vst}, v{vst}, v{vg+1}\nv_lshlrev_b32 v{vst}, 27, v{vst}\nv_and_b32 v{vg+2}, 15, v{vl}\nv_lshl_add_u32 v{vst}, v{vg+2}, 4, v{vst}')
    L += F(f's_and_b32 {sr(s2_)}, {sr(sw)}, 1\ns_lshl_b32 {sr(s2_)}, {sr(s2_)}, 11\nv_add_u32 v{vst+2}, {sr(s2_)}, v{vl16}\ns_and_b32 {sr(s2_)}, {sr(sw)}, 2\ns_lshl_b32 {sr(s2_)}, {sr(s2_)}, 9\ns_add_u32 {sr(s2_)}, {sr(s2_)}, {XST}\nv_add_u32 v{vst+2}, {sr(s2_)}, v{vst+2}')
    L += [lambda i=i: p.lg(f'ds_read_b128 {vr(vg+4*i,4)}, v{vgo} offset:{64*i}', ('gl', i), r=(GL2, GL2 + 1024), priv=True) for i in range(4)]
    L += [f'v_mov_b32 v{vone2+i}, 0x3f803f80' for i in range(4)] + m64(mA + 10, lanemask(lambda l: l & 2))
    e_ = st.fill(L, max(tx + 50, I[('ae', 3)] + 1), cap=3); assert e_ < Q[1] + 25, e_
    dst_ = []
    def epi2(j):
        xa = vxa + 4 * j; y2 = Y2 + 4 * j; d1 = D1 + 2 * j
        ST = (lambda o: L.append(o)) if j == 3 or not cfg.get('defer', 0) else dst_.append
        L = [lambda: p.wait(vm=[('xa', j)], lg=[('gl', 3)])]
        for i in range(4): L += F(f'v_lshlrev_b32 v{f2+2*i}, 16, v{xa+i}\nv_and_b32 v{f2+2*i+1}, 0xffff0000, v{xa+i}')
        L.append(('from', (Q + [N])[j + 1] + 2))
        L += [f'v_fmac_f32 v{f2+i}, v{vg+i}, v{acc2(j,0)+i}' for i in range(8)]
        a2 = acc2(j, 0)
        L += [f'v_mul_f32 v{a2+i}, v{f2+i}, v{vc2+i}' for i in range(8)]
        L += [f'v_cvt_pk_bf16_f32 v{y2+i}, v{a2+2*i}, v{a2+2*i+1}' for i in range(4)]
        ST(op(lambda: (p.ins(f's_add_u32 {sr(s2_)}, {sr(sy)}, {WS_Y + 65536 * j}'), p.vm(f'buffer_store_dwordx4 {vr(y2,4)}, v{vl16}, {sr(sWS,4)}, {sr(s2_)} offen sc1', ('ys', j, 0))), 2))
        L += [f'v_cvt_pk_bf16_f32 v{xa+i}, v{f2+2*i}, v{f2+2*i+1}' for i in range(4)] + [('gap', 1), mf_(d1, vone2, xa), mf_(d2, xa, xa), ('gap', 3)]
        L += F(f'v_cndmask_b32 v{d2}, v{d2}, v{d2+1}, {sr(mA+8,2)}\nv_cndmask_b32 v{d2+2}, v{d2+2}, v{d2+3}, {sr(mA+8,2)}\nv_cndmask_b32 v{d1+1}, v{d2}, v{d2+2}, {sr(mA+10,2)}')
        if j & 1: L.append(lambda: p.vm(f'buffer_store_dwordx4 {vr(d1-2,4)}, v{vst}, {sr(sWS,4)}, {sr(sy+1)} offen offset:{256*(j//2)} sc1', 'y2'))
        k.stash = getattr(k, 'stash', []) + [lambda: p.lg(f'ds_write_b128 v{vst+2}, {vr(xa,4)} offset:{4096*j}', None, w=(XST + 4096 * j, XST + 4096 * j + 4096))]
        return L
    for j in range(3):
        e_ = st.fill(epi2(j), max(e_ + 1, Q[j + 1] - 12), cap=cfg.get('ecap', (3, 3, 3))[j]); assert e_ < (Q + [N])[j + 2] - (10 if j == 2 else 0), (j, e_)
    e3 = st.fill(su3, su3_beg); assert e3 < su3_end and su3_beg > I[('ae', 1)] + 2, e3
    d0, dstp = cfg.get('dst', (-8, 4))
    for i, o in enumerate(dst_): st.at(max(Q[3] + d0 + dstp * i, e_ + 1 if i >= 2 else 0), o)
    L3 = epi2(3); st.fill(L3[:9], max(e_ + 1, N - 20))
    p.wait(vm=[('D', u, i) for u in first for i in range(len(W.units[u]['dmas']))], lg='all'); p.bar()
    for s, _, f in early:
        if s > -100: f()
    for i, nm in tuple(cfg.get('marks', ())) + ((1, 'g1_m1'), (P[1], 'g1_p1'), (P[2], 'g1_p2'), (P[3], 'g1_p3'), (T0, 'g2_q0'), (Q[1], 'g2_q1'), (Q[2], 'g2_q2'), (Q[3], 'g2_q3')):
        st.pre.setdefault(i, []).insert(0, f';@T {nm}')
    st.emit()
    p.T('g2_end')
    for o in L3[10:]:
        if not isinstance(o, tuple): p.ins(o) if isinstance(o, str) else o()
    k.st = st; k.I = I
    if nxt:
        k.ypub = pub_op(k, sWS, vpb, sy + 2, [('ys', j, 0) for j in range(4)] + ['y2'])
        k.st1 = st; k.vops1 = k.vops; k.bars1 = bars
        S.next = smark
        return nxt(k)
    k.end()
    return k
```

```python
from kernels import *
from eng import *
LN2C = 0.6931471805599453
WS_XC4 = 0x4000000
WSZ = 0x8000000
OOB = 0x40000000
FL_A = WS_FL + 32768
FL_X = 0xE0000
FL_M = WS_FL + 5 * 32768; FL_U = 0xD8000; FL_A2 = 0x30000
WS_XA = 0x2800000
WS_ST2 = 0x600000
WS_UT3 = 0x2C00000
FL_O = WS_FL; FL_J = WS_FL + 2 * 32768; FL_Y = WS_FL + 3 * 32768; FL_H = WS_FL + 4 * 32768
WS_MP8 = 0x20000; WS_TOK = WS_FL + 6 * 32768
XST = 132 * 1024
QKV = 128 * 1024; JT = 146 * 1024; GL2 = 147 * 1024; LB = 148 * 1024; LS = 156 * 1024
F = lambda txt: txt.split('\n')
rb = lambda r: F(f'v_cvt_pk_bf16_f32 {vr(r)}, {vr(r)}, {vr(r)}\nv_lshlrev_b32 {vr(r)}, 16, {vr(r)}')

class K4(K):
    def __init__(self, name):
        K.__init__(self, name, 256, 256, 256)
        it = self.p.items
        self.p = Prog2(); self.p.items = it
        self.S = Regs('s', 4, 94)
        self.lds = 160 * 1024
        self.nlab = 0
    def lab(self, s):
        self.nlab += 1
        return f'{s}{self.nlab}_{self.name}'
    def text(self):
        t = self.p.text()
        ev, errs, ep = self.p.events()
        errs += check_lds([ev]) + self.p.check_chains()
        for e in errs[:20]: print('VERIFY:', e)
        assert not errs, f'{len(errs)} verifier errors'
        rep = []
        out, n = fix_hazards(t.split('\n'), rep)
        self.nops = rep
        return '.p2align 8\n' + '\n'.join(out).replace(' ; M\n', '\n').replace(' ; cond\n', '\n')
    def desc(self, minv=0):
        return kdesc(self.name, 512, 102, 256)

def poll_gen(k, ld, tst, tag, scnt, wg):
    p = k.p; sw = k.common['sw']
    def issue():
        if not wg: return p.vm(ld, tag)
        L = k.lab('PI')
        p.ins(f's_cmp_lg_u32 {sr(sw)}, 0\ns_cbranch_scc1 {L}\n{ld} ; cond')
        p.label(L); p.items.append(('vmark', tag))
    def check():
        L = k.lab('PL')
        if wg: p.ins(f's_cmp_lg_u32 {sr(sw)}, 0\ns_cbranch_scc1 {L}x')
        p.wait(vm=[tag])
        if wg: p.items[-1].append('cond')
        p.ins(f'{tst}\ns_cbranch_vccz {L}x\ns_mov_b32 {sr(scnt)}, 60000')
        p.label(L)
        p.ins(f'{ld} ; cond\ns_sub_u32 {sr(scnt)}, {sr(scnt)}, 1\ns_cmp_eq_u32 {sr(scnt)}, 0\ns_waitcnt vmcnt(0) ; cond\ns_cbranch_scc1 {L}x\n{tst}\ns_cbranch_vccnz {L}')
        p.label(L + 'x')
        if wg: p.bar()
    return op(issue, 3 if wg else 1), op(check, 7)

def poll_ops(k, sWS, vp, soff, tag, scnt, cmp=None, wg=True, va=None):
    ld = f'buffer_load_dword {vr(vp)}, {vr(va or vp+1)}, {sr(sWS,4)}, {sr(soff) if soff is not None else 0} offen sc1'
    return poll_gen(k, ld, cmp or f'v_cmp_ne_u32 vcc, {sr(k.tok)}, {vr(vp)}', tag, scnt, wg)

def poll4_ops(k, sWS, vd, va, tag, scnt):
    ld = f'buffer_load_dwordx4 {vr(vd,4)}, {vr(va)}, {sr(sWS,4)}, 0 offen sc1'
    tst = f'v_bitop3_b32 v{vd}, v{vd}, v{vd+1}, {sr(k.tok)} bitop3:0x7e\nv_bitop3_b32 v{vd+2}, v{vd+2}, v{vd+3}, {sr(k.tok)} bitop3:0x7e\nv_or_b32 v{vd}, v{vd}, v{vd+2}\nv_cmp_ne_u32 vcc, 0, v{vd}'
    return poll_gen(k, ld, tst, tag, scnt, True)

def pub_op(k, sWS, vt, soff, tags, imm=0, add=0, wg=True):
    p = k.p
    def f():
        p.ins(f'v_add_u32 {vr(vt)}, {sr(k.tok)}, v0' + (f'\nv_add_u32 {vr(vt)}, {add}, {vr(vt)}' if add else ''))
        if tags: p.wait(vm=tags)
        if tags and wg: p.bar()
        p.ins('s_mov_b64 exec, 1')
        p.vm(f'buffer_store_dword {vr(vt)}, v0, {sr(sWS,4)}, {sr(soff)} offen offset:{imm} sc1')
        p.ins('s_mov_b64 exec, -1')
    return op(f, 6)

def code_op(k, vt, vl16, sp):
    p = k.p
    L = k.lab('CT')
    p.ins(f's_getpc_b64 {sr(sp,2)}')
    p.label(L)
    p.ins(f's_min_u32 {sr(sp+2)}, {sr(sp+3)}, code_end-{L}\ns_add_u32 {sr(sp)}, {sr(sp)}, {sr(sp+2)}\ns_addc_u32 {sr(sp+1)}, {sr(sp+1)}, 0')
    p.ins(f'v_and_b32 v{vt}, 0x70, v{vl16}\nv_lshlrev_b32 v{vt}, 3, v{vt}')
    p.vm(f'global_load_dword a253, v{vt}, {sr(sp,2)}', 'dummy')

class WS_:
    def __init__(self, st, pool):
        self.st, self.p = st, st.p
        self.pool = {r: -10**6 for r in pool}; self.until = {}
        self.units = {}; self.nf = 0; self.early = []; self.groups = []
    def unit(self, u, lo, hi, dmas, e=0, wt=1):
        self.units[u] = dict(lo=lo, hi=hi, dmas=dmas, fr=None, lr=None, e=e, wt=wt)
    def rd(self, us, s, lr, text, tag, rng):
        f = lambda: self.p.lg(text, tag, r=rng)
        if s < 0: self.early.append((s, len(self.early), f))
        else: self.st.at(s, f)
        assert min(self.units[u]['lo'] for u in us) <= rng[0] and rng[1] <= max(self.units[u]['hi'] for u in us), (us, rng)
        for u in us:
            U = self.units[u]
            U['fr'] = s if U['fr'] is None else min(U['fr'], s)
            U['lr'] = lr if U['lr'] is None else max(U['lr'], lr)
    def group(self, frags, mf, LA, wait=True, vm=(), lg=(), kind='tr'):
        st, p = self.st, self.p
        s0 = st.n(); ids = [self.nf + i for i in range(len(frags))]; self.nf += len(frags)
        n = len(mf); per = 2 if kind == 'tr' else 1; nr = per * len(frags)
        reg = []
        for i in range(len(frags)):
            s = s0 - LA + per * i * n // nr
            lu = s0 + max(x for x, m in enumerate(mf) if ('f', i) in m[1:])
            c = [r for r in self.pool if self.pool[r] <= s and lu < self.until.get(r, 10**9)]
            assert c, ('fragment pool too small', s0, i)
            r = min(c, key=lambda r: self.pool[r]); self.pool[r] = lu; reg.append(r)
        for c, a, b in mf:
            st.mfma(c, reg[a[1]] if isinstance(a, tuple) else a, reg[b[1]] if isinstance(b, tuple) else b)
        for i, fr in enumerate(frags):
            u, ar, base, off = fr[:4]
            for h in range(per):
                s = s0 - LA + (per * i + h) * n // nr
                o = off + 2048 * h
                assert 0 <= o < 65536
                if kind == 'tr': self.rd([u], s, s0, f'ds_read_b64_tr_b16 {vr(reg[i] + 2 * h,2)}, {vr(ar)} offset:{o}', ('W', ids[i], h), (base + o, base + o + 2048))
                else: self.rd([u], s, s0, f'ds_read_b128 {vr(reg[i],4)}, {vr(ar)} offset:{o}', ('W', ids[i], 1), (base + o, base + o + (fr[4] if len(fr) > 4 else 1024)))
        self.groups.append(dict(s0=s0, ids=ids, wait=wait, vm=list(vm), lg=list(lg)))
        return s0
    def finish_waits(self):
        g = self.groups; i = 0
        while i < len(g):
            j = i + 1
            while j < len(g) and not g[j]['wait']: j += 1
            lg = [('W', f, 1) for x in g[i:j] for f in x['ids']] + [t for x in g[i:j] for t in x['lg']]; vm = [t for x in g[i:j] for t in x['vm']]
            self.st.before(g[i]['s0'], lambda lg=lg, vm=vm: self.p.wait(vm=vm or None, lg=lg))
            i = j
    def dma_ops(self, bars, pre_done=()):
        st, p = self.st, self.p
        ops = []; bw = {b: [] for b in bars}
        order = sorted(self.units, key=lambda u: self.units[u]['fr'])
        for n_, u in enumerate(order):
            U = self.units[u]
            tags = [('D', u, i) for i in range(len(U['dmas']))]
            if U['fr'] < 0 or U.get('vis'): continue
            if U['fr'] >= st.n(): dl = U['fr']
            else:
                dl = max(b for b in bars if b < U['fr'])
                bw[dl] += tags
            if u in pre_done: continue
            e = U['e']
            for v in order[:n_]:
                X = self.units[v]
                if X['lo'] < U['hi'] and U['lo'] < X['hi'] and X['lr'] >= 0:
                    e = max(e, min([b for b in bars if b >= X['lr']] + [st.n()]) + 1)
            for i, (pre, main) in enumerate(U['dmas']):
                ops.append(dict(e=e, dl=dl, pre=pre, main=main, id=(u, i), wt=U['wt']))
        for U in self.units.values():
            if U.get('force'): bw[min(b for b in bars if b >= U['lr'])].append(('lg', U['force']))
        self.bw = bw
        for b in bars:
            def f(b=b):
                x = self.bw[b]
                lgs = [t[1] for t in x if t[0] == 'lg']; vms = [t for t in x if t[0] != 'lg']
                if x: p.wait(vm=vms or None, lg=lgs or None)
                p.bar()
            st.last(b, op(f, 2))
        return ops
    def place_bars(self, bars, pre_done, target):
        bars = set(bars); n = self.st.n()
        order = sorted(self.units, key=lambda u: self.units[u]['fr'])
        for n_, u in enumerate(order):
            U = self.units[u]
            if U['fr'] < 0 or U.get('vis') or U['fr'] >= n: continue
            pl = max([X['lr'] for X in (self.units[v] for v in order[:n_]) if X['lo'] < U['hi'] and U['lo'] < X['hi']] + [-1])
            def win(B):
                e = -20 if u in pre_done else max(U['e'], min([b for b in B if b >= pl] + [10**6]) + 1 if pl >= 0 else 0)
                return max([b for b in B if b < U['fr']] + [-10**6]) - e
            for _ in range(2):
                if win(bars) >= target(U['fr']): break
                c = [x for x in (U['fr'] - 1, pl) if x >= 0 and x not in bars]
                if not c: break
                x = max(c, key=lambda x: win(bars | {x}))
                if win(bars | {x}) >= win(bars) + 8 or win(bars) < 16: bars.add(x)
        return sorted(bars)
    def emit_early(self):
        for _, _, f in sorted(self.early, key=lambda x: x[:2]): f()

def zig(n, nm, flip):
    out = []
    for mi in range(nm):
        m = nm - 1 - mi if flip else mi
        out += [(m, j) for j in (range(n) if mi % 2 == 0 else range(n - 1, -1, -1))]
    return out

def g3_early(k, s0, s1, sv, T):
    p = k.p; C = k.common; sw = C['sw']; vl = 0; vdA, vdB = 16, 11
    L = F(f'v_lshrrev_b32 v{T}, 3, v{vl}\nv_bfe_u32 v{T+1}, v{T}, 1, 2\nv_bfe_u32 v{T+2}, v{vl}, 1, 2\nv_xor_b32 v{T+1}, v{T+1}, v{T+2}')
    L += F(f's_lshl_b32 {sr(s0)}, {sr(sw)}, 3\nv_add_u32 v{T}, {sr(s0)}, v{T}\nv_mul_u32_u24 v{T}, 7168, v{T}\nv_and_b32 v{T+2}, 1, v{vl}\nv_lshl_add_u32 v{T}, v{T+2}, 4, v{T}')
    L += F(f's_and_b32 {sr(s0)}, s2, 7\ns_mul_i32 {sr(s0)}, {sr(s0)}, 896\nv_add_u32 v{T}, {sr(s0)}, v{T}\nv_lshlrev_b32 v{T+2}, 5, v{T+1}')
    L += F(f's_and_b32 {sr(s1)}, s2, 24\ns_lshl_b32 {sr(s0)}, {sr(s1)}, 5\nv_add3_u32 v{vdA}, v{T}, v{T+2}, {sr(s0)}')
    L += F(f's_lshr_b32 {sr(s0)}, 0x0b070602, {sr(s1)}\ns_and_b32 {sr(s0)}, {sr(s0)}, 15\ns_lshl_b32 {sr(s0)}, {sr(s0)}, 6\nv_add_u32 v{T+2}, {sr(s0)}, v{T+2}')
    L += F(f's_lshr_b32 {sr(s0)}, 0x15140706, {sr(s1)}\ns_and_b32 {sr(s0)}, {sr(s0)}, 31\ns_lshl_b32 {sr(s0)}, {sr(s0)}, 5\nv_mov_b32 v{T+3}, {sr(s0)}')
    L += [f'v_cmp_gt_u32 vcc, 2, v{T+1}\nv_cndmask_b32 v{T+2}, v{T+3}, v{T+2}, vcc', f'v_add_u32 v{vdB}, v{T}, v{T+2}']
    def dmas(ts, g):
        u = (3, ts, g); lo = 65536 * g + k.perm[g][ts] * 16384; out = []
        for jq in range(2):
            for mat in range(2):
                dst = lo + mat * 8192 + jq * 4096
                pre = lambda dst=dst, jq=jq: p.ins(f's_mov_b32 {sr(sv)}, {(2 * ts + jq) * 32 * 7168}\ns_add_u32 m0, {sr(C["sWL"])}, {dst}')
                main = lambda dst=dst, mat=mat, i=2 * jq + mat: p.vm(f'buffer_load_dwordx4 v{(vdA, vdB)[g]}, {sr((C["sWg"], C["sWu"])[mat],4)}, {sr(sv)} offen lds', ('D', u, i), w=(dst, dst + 4096))
                out.append((op(pre, 2), main))
        return u, lo, lo + 16384, out
    return L, dmas

def k_g34(cfg, k):
    p, S = k.p, k.S
    sWS, sWg, sWu, sWd, sOut, sw, sWL = (k.common[x] for x in ('sWS', 'sWg', 'sWu', 'sWd', 'sOut', 'sw', 'sWL'))
    sm = S.alloc('mt'); sq = S.alloc('q'); sx = S.alloc('xcd'); s0 = S.alloc('t0'); s1 = S.alloc('t1'); s2_ = S.alloc('t2')
    sLead = S.alloc('lead'); sAb = S.alloc('ab'); sO = S.alloc('so', 3); sv = S.alloc('vm', 2); sst = S.alloc('st')
    NC = 8; sCW = S.alloc('cw', NC); sCA = S.alloc('ca', NC); sfl = S.alloc('fl', 4)
    vl16, wa, vdA, vdB, vub, vt, vs, ut, ACC = 1, 2, 10, 11, 12, 13, 16, 24, 32
    POS = {6: 0, 4: 1, 5: 2, 0: 3, 1: 4, 2: 5, 3: 6}
    accr = lambda s_, g, m: ACC + 32 * POS[s_] + 16 * g + 4 * m
    DAS = 5; AB = A0; WB = A0 + 160; R = 6
    UT = 128 * 1024; GL = UT + 2048; XL = XST
    lf = 'sc1'
    vl = 0
    assert MBS[0] == 32768
    st = Stream(p); W = WS_(st, [WB + 4 * i for i in range(R)])
    n3 = 16; FS = 4
    done3 = set()
    def lead3(ts):
        if ts < 4 or cfg.get('nolead3'): return ts
        return ts + 4 if ts + 4 < n3 else 4 + ts % 4
    def chunk3(ts):
        if ts in done3: return
        done3.add(ts)
        cw, ca = sCW + ts % NC, sCA + ts % NC; lc = lead3(ts)
        if lc == ts: p.ins(f's_mov_b32 {sr(cw)}, {ts * 64 * 7168}\ns_add_u32 {sr(ca)}, {sr(sAb)}, {ts * 2048}')
        else: p.ins(f's_cmp_eq_u32 {sr(sLead)}, {ts % 4}\ns_cselect_b32 {sr(ca)}, {lc}, {ts}\ns_mul_i32 {sr(cw)}, {sr(ca)}, {64 * 7168}\ns_lshl_b32 {sr(ca)}, {sr(ca)}, 11\ns_add_u32 {sr(ca)}, {sr(ca)}, {sr(sAb)}')
    def dma(u, i, chunk, ts, cw, srd, vo, dst, goff):
        def pre():
            chunk(ts)
            p.ins(f's_add_u32 m0, {sr(sWL)}, {dst}')
            if goff: p.ins(f's_add_u32 {sr(sv)}, {sr(cw)}, {goff}')
        main = lambda: p.vm(f'buffer_load_dwordx4 v{vo}, {sr(srd,4)}, {sr(sv if goff else cw)} offen lds', ('D', u, i), w=(dst, dst + 4096))
        return op(pre, 2 if goff else 1), main
    for ts in range(n3):
        for g, (vo, base) in enumerate(((vdA, 0), (vdB, 65536))):
            u = (3, ts, g); lo = base + k.perm[g][ts % 4] * 16384
            W.unit(u, lo, lo + 16384, [dma(u, 2 * jq + mat, chunk3, ts, sCW + ts % NC, (sWg, sWu)[mat], vo, lo + mat * 8192 + jq * 4096, jq * 32 * 7168) for jq in range(2) for mat in range(2)])
    ab3 = lambda ts, j, m: AB + (((ts % DAS) * 2 + j) * 4 + m) * 4
    seenA = set(); firstA = {}; lastA = {}
    LA = cfg.get('LA', 18)
    def grp(ph, ts, u, ar, base, off, acc, ab, ms=(0, 1, 2, 3), la=None):
        fr = [(u, ar, base, off + j * 4096) for j in range(2)]
        mf = [(acc(ms[m]), ('f', j), ab(ts, j, ms[m])) for m, j in zig(2, len(ms), len(W.groups) % 2)]
        vm = [] if (ph, ts) in seenA else [('A', ph, ts, j, m) for j in range(2) for m in range(4)]
        seenA.add((ph, ts))
        s = W.group(fr, mf, la or LA, vm=vm)
        firstA.setdefault((ph, ts), s); lastA[(ph, ts)] = s + len(mf) - 1
        return s
    def grp3(ts, s_, mat):
        g = 0 if s_ < 4 else 1
        return grp(3, ts, (3, ts, g), wa + s_, 65536 * g, k.perm[g][ts % 4] * 16384 + mat * 8192, lambda m: accr(s_, mat, m), ab3)
    visit = {}
    def part(ts, slots):
        for s_ in slots:
            for mat in range(2): visit[(ts, s_, mat)] = grp3(ts, s_, mat)
    for ts in range(n3 - FS - 1): part(ts, (4, 5, 6, 0, 1, 2, 3))
    part(n3 - FS - 1, (4, 5, 6))
    Ss = list(range(n3 - FS, n3))
    done = {}
    def pair(s_, sts):
        for ts in sts:
            for mat in range(2): e = grp3(ts, s_, mat)
        done[s_] = e + 7
    def late(a_, b_):
        pair(a_, Ss[:-1]); pair(b_, Ss[:-1]); pair(a_, Ss[-1:]); pair(b_, Ss[-1:])
    if not cfg.get('mvA', 1): part(n3 - FS - 1, (0, 1, 2, 3))
    z3 = st.n()
    late(6, 4); pair(5, Ss)
    if cfg.get('mvA', 1):
        part(n3 - FS - 1, (0, 1, 2, 3)); late(0, 1)
    else:
        pair(0, Ss); pair(1, Ss)
    pair(2, Ss); pair(3, Ss)
    z4 = st.n()
    n4 = 14; FS4 = cfg.get('FS4', 4); NE = 6
    acc4 = lambda t, m: 64 + (t * 4 + m) * 4
    vd4, vp, vpx, vro, vxa, vgo, vl4, vsel, vg = 32, 36, 38, 40, 42, 46, 47, 56, 240
    sA4 = S.alloc('a4'); sro = S.alloc('ro'); sxo = S.alloc('xo', 2); sg4 = S.alloc('g4'); sst4 = S.alloc('st4'); sxl = S.alloc('xl'); sL4 = S.alloc('l4'); spf = S.alloc('pf')
    E = [7 * g + c for g in range(2) for c in (1, 3, 5)]; Lt = [7 * g + c for g in range(2) for c in (0, 2, 4, 6)]
    def lead4(ts):
        lst, i, P_ = (E, ts, 3) if ts < NE else (Lt, ts - NE, 4)
        if cfg.get('nolead4'): return lst[i], lst[i], 0
        return lst[i], lst[(i + P_) % len(lst)], i % P_
    done4 = set()
    def chunk4(ts):
        if ts in done4: return
        done4.add(ts)
        cw, ca = sCW + ts % NC, sCA + ts % NC; nat, lc, ld = lead4(ts)
        if nat == lc: p.ins(f's_mov_b32 {sr(cw)}, {nat << 17}\ns_add_u32 {sr(ca)}, {sr(sA4)}, {nat << 11}')
        else: p.ins(f's_cmp_eq_u32 {sr(sL4)}, {ld}\ns_cselect_b32 {sr(ca)}, {lc}, {nat}\ns_lshl_b32 {sr(cw)}, {sr(ca)}, 17\ns_lshl_b32 {sr(ca)}, {sr(ca)}, 11\ns_add_u32 {sr(ca)}, {sr(ca)}, {sr(sA4)}')
    slot4 = lambda ts: (65536 if ts % 8 < 4 else 0) + k.perm[1 if ts % 8 < 4 else 0][ts % 4] * 16384
    for ts in range(n4):
        for g in range(2):
            u = (4, ts, g); lo = slot4(ts) + g * 8192
            W.unit(u, lo, lo + 8192, [dma(u, jq, chunk4, ts, sCW + ts % NC, sWd, vd4 + g, lo + jq * 4096, jq * 32 * 2048) for jq in range(2)])
    bufs = [(A0 + 188, 0), (A0 + 220, 0)] + [(AB + 32 * (ts % DAS), lastA[(3, ts)] + 1) for ts in range(n3 - DAS, n3)]
    NB = len(bufs)
    ab4 = lambda ts, j, m: bufs[ts % NB][0] + (j * 4 + m) * 4
    def grp4(ts, t, ms=(0, 1, 2, 3), la=None):
        g = t // 4; base = 65536 if ts % 8 < 4 else 0
        return grp(4, ts, (4, ts, g), wa + (4 if base else 0) + t % 4, base, slot4(ts) - base + g * 8192, lambda m: acc4(t, m), ab4, ms, la)
    for r_ in range(64, 192, 4): st.touched.discard(r_)
    for ts in range(n4 - FS4):
        for t in range(8): grp4(ts, t)
    zf = st.n()
    d4 = {}
    for ts in range(n4 - FS4, n4):
        for t in range(4): d4[(0, t)] = grp4(ts, t) + 7
    for r_ in range(16, 32, 4): W.pool[r_] = zf
    for ps, ms in ((1, (2, 3)), (2, (0, 1))):
        for ts in range(n4 - FS4, n4):
            for t in range(4, 8): d4[(ps, t)] = grp4(ts, t, ms, cfg.get('LAh', 14)) + 3
    N = st.n()
    W.finish_waits()
    bars = set()
    fr_ = lambda *u: W.units[u]['fr'] - 1
    for ts in range(1, n3 - FS): bars.add(fr_(3, ts, 1))
    bars |= {z3, fr_(3, n3 - 1, 1), fr_(3, n3 - 1, 0), done[5] + 1, z4 + 1}
    if cfg.get('mvA', 1): bars.add(lastA[(3, n3 - FS - 1)] + 1)
    else: bars.add(fr_(3, n3 - FS, 1))
    for ts in range(0, n4 - FS4, cfg.get('BS4', 2)): bars.add(fr_(4, ts, 0))
    for u in cfg.get('fb4', ((n4 - FS4, 0), (n4 - FS4 + 2, 0), (n4 - FS4, 1))): bars.add(fr_(4, *u))
    bars = sorted(bars)
    k.bars = bars
    extra = []
    def X(e, dl, main, pre=None): extra.append(dict(e=e, dl=dl, main=main, pre=pre, id='x'))
    PD = cfg.get('pd', 40)
    setup = F(f's_lshl_b32 {sr(sO)}, {sr(sq)}, 12\ns_lshl_b32 {sr(s1)}, {sr(sq)}, 3\ns_lshr_b32 {sr(s0)}, 0x0b070602, {sr(s1)}\ns_and_b32 {sr(s0)}, {sr(s0)}, 15\ns_lshl_b32 {sr(sO+1)}, {sr(s0)}, 10')
    setup += F(f's_lshr_b32 {sr(s0)}, {sr(sq)}, 1\ns_mul_i32 {sr(s0)}, {sr(s0)}, {7 * 1024}\ns_and_b32 {sr(s1)}, {sr(s1)}, 8\ns_add_u32 {sr(s0)}, {sr(s0)}, {sr(s1)}\ns_add_u32 {sr(sO+2)}, {sr(s0)}, {3 * 1024}')
    setup += F(f's_mul_i32 {sr(s0)}, {sr(sx)}, {14*1024}\ns_mul_i32 {sr(s1)}, {sr(sst)}, {MBS[1]}\ns_add_u32 {sr(s0)}, {sr(s0)}, {sr(s1)}\ns_add_u32 {sr(s0)}, {sr(s0)}, {WS_ACT}') + [f's_add_u32 {sr(sO+i)}, {sr(sO+i)}, {sr(s0)}' for i in range(3)]
    setup += F(f's_lshl_b32 {sr(sst)}, {sr(sm)}, 2\ns_add_u32 {sr(sst)}, {sr(sst)}, {sr(sw)}\ns_lshl_b32 {sr(sst)}, {sr(sst)}, 14\ns_add_u32 {sr(sst)}, {sr(sst)}, {WS_ST2}\nv_and_b32 v{vub}, 0x300, v{vl16}\nv_add_u32 v{vub}, v{vub}, v{vl16}')
    SA = A0 + 188
    th = cfg.get('th', (50, 250)); tb_ = cfg.get('ub', (105, 205, 320, 425)); UD = cfg.get('ud', 95)
    def stat(hf):
        for i in range(4):
            for h in range(2):
                pre = op(lambda i=i: p.ins(f's_add_u32 {sr(sv+1)}, {sr(sst)}, {8192 * hf + 2048 * i}'), 1)
                X(th[hf], th[hf] + 50, lambda i=i, h=h: p.vm(f'buffer_load_dwordx4 {vr(SA+8*i+4*h,4)}, v{vub}, {sr(sWS,4)}, {sr(sv+1)} offen offset:{256*h} {lf}', ('st', hf, i, h)), pre)
        fl = [lambda: p.wait(vm=[('st', hf, i, h) for i in range(4) for h in range(2)])]
        for i in range(4):
            if hf == 0 and i == 0: fl += [f'v_accvgpr_read_b32 v{vs+x}, {vr(SA+x)}' for x in range(8)]
            else: fl += [f'v_accvgpr_read_b32 v{ut+x}, {vr(SA+8*i+x)}' for x in range(8)] + [f'v_add_f32 v{vs+x}, v{vs+x}, v{ut+x}' for x in range(8)]
        if hf == 0: return fl
        for sw_ in (16, 32):
            fl += [f'v_mov_b32 v{ut+x}, v{vs+x}' for x in range(8)] + [f'v_permlane{sw_}_swap_b32 v{vs+x}, v{ut+x}' for x in range(8)] + [f'v_add_f32 v{vs+x}, v{vs+x}, v{ut+x}' for x in range(8)]
        Ls = []
        for m in range(4):
            b = vs + 2 * m
            Ls.append(F(f'v_mul_f32 v{b}, {f32(1/1024)}, v{b}\nv_mul_f32 v{b+1}, {f32(1/1024)}, v{b+1}\nv_fma_f32 v{b+1}, -v{b}, v{b}, v{b+1}\nv_max_f32 v{b+1}, 0, v{b+1}') + rb(b + 1)
                      + [f'v_add_f32 v{b+1}, {f32(1e-5)}, v{b+1}'] + rb(b + 1) + [f'v_sqrt_f32 v{b+1}, v{b+1}'] + rb(b) + rb(b + 1) + [f'v_sub_f32 v{b}, 0, v{b}'])
        fl += [y for x in zip(*Ls) for y in x]
        return fl + F(f'v_lshrrev_b32 v{vub}, 8, v{vl16}\nv_lshlrev_b32 v{vub}, 4, v{vub}\nv_add_u32 v{vub}, {UT}, v{vub}')
    sJ, sMk, uc, UDR = k.common['dead'][0], k.common['dead'][1], A0 + 184, A0 + 220
    mf_ = lambda d, a_, b_, c='0': op(lambda: p.ins(f'{MFMA} {vr(d,4)}, {vr(a_,4)}, {vr(b_,4)}, {c}'), 2)
    def burst(bi):
        for i in range(4):
            pre = op(lambda i=i: p.ins(f's_mov_b32 {sr(sv+1)}, {7168 * (4 * bi + i)}'), 1)
            X(tb_[bi], tb_[bi] + 30, lambda i=i: p.vm(f'buffer_load_dwordx4 {vr(UDR+16*(bi&1)+4*i,4)}, v{vt}, {sr(sJ,4)}, {sr(sv+1)} offen', ('ud', bi, i)), pre)
            extra[-1]['wt'] = cfg.get('uwt', 6) if i == 3 else 0.4
        L = [lambda: p.lg(f'ds_read_b128 {vr(ut,4)}, v{vt+1} offset:{16*bi}', ('uv', bi), r=(LB, LB + 4096), priv=True), ('gap', 6), lambda: p.wait(vm=[('ud', bi, 3)], lg=[('uv', bi)])]
        for i in range(4):
            L += [f'v_cndmask_b32 v{ut+4+r_}, 0, v{ut+i}, {sr(sMk+2*r_,2)}' for r_ in range(4)] + [('gap', 1), mf_(uc, ut + 4, UDR + 16 * (bi & 1) + 4 * i, vr(uc, 4) if bi or i else '0')]
        return L
    chains = sorted([(th[hf] + cfg.get('sd', 76), stat(hf), f's{hf}') for hf in range(2)] + [(tb_[bi] + UD, burst(bi), f'b{bi}') for bi in range(4)], key=lambda x: x[0])
    ufin = F(f's_bfe_u32 {sr(s0)}, s2, 0x20004\ns_lshl_b32 {sr(s0)}, {sr(s0)}, 9\nv_and_b32 v{vt+1}, 15, v{vl}\nv_lshl_add_u32 v{vt+1}, v{vt+1}, 5, {sr(s0)}')
    ufin += [f'v_cmp_gt_u32 vcc, {448 * 4}, v{vt+1}\nv_mov_b32 v{vt+2}, {WSZ}\nv_bfe_u32 v{vt}, v{vl}, 4, 1\nv_cndmask_b32 v{vt+1}, v{vt+2}, v{vt+1}, vcc']
    ufin += F(f'v_lshl_add_u32 v{vt+1}, v{vt}, 4, v{vt+1}\nv_lshrrev_b32 v{vt}, 5, v{vl}\nv_mul_u32_u24 v{vt}, {FF*4}, v{vt}\nv_add_u32 v{vt+1}, v{vt+1}, v{vt}')
    ufin += F(f's_lshr_b32 {sr(s0)}, s2, 6\ns_lshl_b32 {sr(s0)}, {sr(s0)}, 2\ns_add_u32 {sr(s0)}, {sr(s0)}, {sr(sw)}\ns_lshl_b32 {sr(s0)}, {sr(s0)}, 1\ns_bfe_u32 {sr(s1)}, s2, 0x10003\ns_add_u32 {sr(s0)}, {sr(s0)}, {sr(s1)}\ns_mul_i32 {sr(s0)}, {sr(s0)}, {2*FF*4}\ns_mul_i32 {sr(s1)}, {sr(sx)}, {448*4}\ns_add_u32 {sr(s0)}, {sr(s0)}, {sr(s1)}\ns_add_u32 {sr(s0)}, {sr(s0)}, {WS_UT3}')
    ufin.append(lambda: p.vm(f'buffer_store_dwordx4 {vr(uc,4)}, v{vt+1}, {sr(sWS,4)}, {sr(s0)} offen sc1', 'us'))
    ufin += F(f's_lshl_b32 {sr(s0)}, {sr(sx)}, 7\ns_add_u32 {sr(s0)}, {sr(s0)}, {FL_U}\nv_and_b32 v{vt}, 31, v{vl}\nv_min_u32 v{vt+2}, 27, v{vt}\nv_lshl_add_u32 v{vt}, v{vt}, 10, {sr(s0)}\nv_lshlrev_b32 v{vt+2}, 4, v{vt+2}')
    ufin += F(f's_lshl_b32 {sr(s0)}, {sr(sq)}, 9\nv_mov_b32 v{vt+1}, {sr(s0)}\ns_lshl_b32 {sr(s2_)}, {sr(sq)}, 3\ns_lshr_b32 {sr(s0)}, 0x0b070602, {sr(s2_)}\ns_and_b32 {sr(s0)}, {sr(s0)}, 15\ns_lshl_b32 {sr(s0)}, {sr(s0)}, 7\ns_sub_u32 {sr(s0)}, {sr(s0)}, 256\nv_mov_b32 v{ut}, {sr(s0)}')
    ufin += [f'v_cmp_gt_u32 vcc, 256, v{vt+2}\nv_cndmask_b32 v{vt+1}, v{ut}, v{vt+1}, vcc']
    ufin += F(f's_lshr_b32 {sr(s0)}, 0x15140706, {sr(s2_)}\ns_and_b32 {sr(s0)}, {sr(s0)}, 31\ns_lshl_b32 {sr(s0)}, {sr(s0)}, 6\ns_sub_u32 {sr(s0)}, {sr(s0)}, 384\nv_mov_b32 v{ut}, {sr(s0)}')
    ufin += [f'v_cmp_gt_u32 vcc, 384, v{vt+2}\nv_cndmask_b32 v{vt+1}, v{ut}, v{vt+1}, vcc']
    ufin += F(f'v_lshrrev_b32 v{ut}, 5, v{vl}\nv_mul_u32_u24 v{ut}, {4*FF*4}, v{ut}\nv_add3_u32 v{vt+1}, v{vt+1}, v{vt+2}, v{ut}\ns_mul_i32 {sr(s0)}, {sr(sw)}, {FF*4}\ns_add_u32 {sr(s0)}, {sr(s0)}, {sr(s1)}\ns_add_u32 {sr(s0)}, {sr(s0)}, {WS_UT3}\nv_add_u32 v{vt+1}, {sr(s0)}, v{vt+1}')
    ufin += F(f's_lshl_b32 {sr(s0)}, {sr(sw)}, 9\ns_add_u32 {sr(s0)}, {sr(s0)}, {UT}\nv_add_u32 v{vt+2}, {sr(s0)}, v{vt+2}')
    tu = tb_[3] + UD + cfg.get('tu', 185)
    iu, cu = poll_ops(k, sWS, 9, None, 'plu', sfl + 3, va=vt)
    st.at(tu, iu); st.at(tu + PD, ';@T ua'); st.at(tu + PD, cu); st.at(tu + PD, ';@T ub')
    for i in range(8):
        pre = op(lambda i=i: p.ins(f's_mov_b32 {sr(sv+1)}, {8 * FF * 4 * i}'), 1)
        X(tu + PD + 1, tu + PD + 45, lambda i=i: p.vm(f'buffer_load_dwordx4 {vr(UDR+4*i,4)}, v{vt+1}, {sr(sWS,4)}, {sr(sv+1)} offen {lf}', ('u', i)), pre)
        extra[-1]['wt'] = 0.5
    fl = [lambda: p.wait(vm=[('u', i) for i in range(8)])] + [f'v_accvgpr_read_b32 {vr(ut+i)}, {vr(UDR+i)}' for i in range(4)]
    for h in range(1, 8): fl += [f'v_accvgpr_read_b32 {vr(ut+4+i)}, {vr(UDR+4*h+i)}' for i in range(4)] + [f'v_add_f32 {vr(ut+i)}, {vr(ut+i)}, {vr(ut+4+i)}' for i in range(4)]
    fl += [f'v_mov_b32 v{ut+4+i}, v{ut+i}' for i in range(4)] + [f'v_permlane32_swap_b32 v{ut+i}, v{ut+4+i}' for i in range(4)] + [f'v_add_f32 v{ut+i}, v{ut+i}, v{ut+4+i}' for i in range(4)]
    fl.append(lambda: p.lg(f'ds_write_b128 v{vt+2}, {vr(ut,4)}', 'utw', w=(UT, UT + 2048)))
    utb = tu + PD + cfg.get('auxd', 65) + 62
    bars = sorted(set(bars) | {utb}); k.bars = bars
    sb, sn, skq = sm, sq, sx
    T = 48; l_ = vl
    su4s = F(f's_and_b32 {sr(sb)}, s2, 4\ns_lshr_b32 {sr(s0)}, s2, 6\ns_add_u32 {sr(sb)}, {sr(sb)}, {sr(s0)}\ns_bfe_u32 {sr(sn)}, s2, 0x30003\ns_and_b32 {sr(skq)}, s2, 3')
    su4s += F(f's_add_u32 {sr(sL4)}, {sr(sb)}, {sr(sn)}\ns_and_b32 {sr(sL4)}, {sr(sL4)}, 3')
    su4s += F(f's_lshl_b32 {sr(s0)}, {sr(sb)}, 4\ns_and_b32 {sr(s1)}, {sr(skq)}, 2\ns_mul_i32 {sr(sst4)}, {sr(s1)}, {-8 * MBS[1] & 0xffffffff}\ns_add_u32 {sr(sst4)}, {sr(sst4)}, {7 * MBS[1]}\ns_lshl_b32 {sr(s1)}, {sr(s1)}, 2\ns_add_u32 {sr(s0)}, {sr(s0)}, {sr(s1)}\ns_lshl_b32 {sr(s1)}, {sr(sw)}, 1\ns_add_u32 {sr(s0)}, {sr(s0)}, {sr(s1)}')
    su4s += F(f's_mul_i32 {sr(sA4)}, {sr(s0)}, {MBS[1]}\ns_mul_i32 {sr(s1)}, {sr(skq)}, {28 * 1024}\ns_add_u32 {sr(sA4)}, {sr(sA4)}, {sr(s1)}\ns_add_u32 {sr(sA4)}, {sr(sA4)}, {WS_ACT}')
    su4s += F(f's_lshl_b32 {sr(sro)}, {sr(s0)}, 15\ns_lshl_b32 {sr(sn)}, {sr(sn)}, 1\ns_and_b32 {sr(s1)}, {sr(skq)}, 1\ns_add_u32 {sr(sn)}, {sr(sn)}, {sr(s1)}')
    su4s += F(f's_lshl_b32 {sr(s0)}, {sr(sn)}, 7\ns_add_u32 {sr(sro)}, {sr(sro)}, {sr(s0)}\ns_lshl_b32 {sr(sg4)}, {sr(sn)}, 8\ns_add_u32 {sr(sg4)}, {sr(sg4)}, {WS_MODP + 5 * 4096}')
    su4s += F(f's_lshl_b32 {sr(s0)}, {sr(sb)}, 12\ns_lshl_b32 {sr(s1)}, {sr(skq)}, 8\ns_add_u32 {sr(s0)}, {sr(s0)}, {sr(s1)}\ns_add_u32 {sr(sfl+2)}, {sr(s0)}, {FL_A}')
    su4s += F(f's_lshl_b32 {sr(sxl)}, {sr(sw)}, 12\ns_add_u32 {sr(sxl)}, {sr(sxl)}, {XL}\ns_lshl_b32 {sr(sxo)}, s2, 16\ns_lshl_b32 {sr(s0)}, {sr(sw)}, 14\ns_add_u32 {sr(sxo)}, {sr(sxo)}, {sr(s0)}\ns_add_u32 {sr(sxo)}, {sr(sxo)}, {WS_XC4}')
    su4s += F(f's_lshr_b32 {sr(s0)}, s2, 3\ns_lshl_b32 {sr(s0)}, {sr(s0)}, 2\ns_add_u32 {sr(s0)}, {sr(s0)}, {sr(sw)}\ns_mul_i32 {sr(spf)}, {sr(s0)}, {14 * 1024}\ns_mul_i32 {sr(s0)}, {sr(skq)}, {896 * 2048}\ns_add_u32 {sr(spf)}, {sr(spf)}, {sr(s0)}')
    su4s += F(f's_nop 0')
    pfs = F(f'v_lshrrev_b32 v{vt}, 8, v{vl16}\nv_lshlrev_b32 v{vt}, 28, v{vt}\nv_lshl_add_u32 v{vt}, v{vl16}, 3, v{vt}\nv_xor_b32 v{wa+7}, {3<<5}, v{wa+4}')
    st.fill(pfs, utb - 8, cap=3)
    su4 = F(f'v_lshrrev_b32 v{T}, 3, v{l_}\nv_bfe_u32 v{T+1}, v{T}, 1, 2\nv_bfe_u32 v{T+2}, v{l_}, 1, 2\nv_xor_b32 v{T+1}, v{T+1}, v{T+2}\nv_lshlrev_b32 v{T+1}, 5, v{T+1}\nv_and_b32 v{T+2}, 1, v{l_}\nv_lshl_add_u32 v{T+1}, v{T+2}, 4, v{T+1}')
    su4 += F(f's_lshl_b32 {sr(s0)}, {sr(sw)}, 3\nv_add_u32 v{T}, {sr(s0)}, v{T}\nv_lshl_add_u32 v{T}, v{T}, 11, v{T+1}')
    su4 += F(f's_mul_i32 {sr(s0)}, {sr(skq)}, {896 * 2048}\ns_lshl_b32 {sr(s1)}, {sr(sn)}, 7\ns_add_u32 {sr(s0)}, {sr(s0)}, {sr(s1)}\nv_add_u32 v{vd4+1}, {sr(s0)}, v{T}\nv_xor_b32 v{vd4}, 128, v{vd4+1}')
    su4 += F(f'v_and_b32 v{T}, 3, v{l_}\nv_bfe_u32 v{T+1}, v{l_}, 2, 1\nv_lshl_add_u32 v{T}, v{T}, 3, v{T+1}\nv_lshlrev_b32 v{vp+1}, 7, v{T}')
    su4b = F(f's_lshl_b32 {sr(s0)}, {sr(sw)}, 8\ns_add_u32 {sr(s0)}, {sr(s0)}, {GL}\nv_lshrrev_b32 v{T+1}, 4, v{l_}\nv_lshl_add_u32 v{vgo}, v{T+1}, 4, {sr(s0)}\nv_lshlrev_b32 v{vl4}, 2, v{l_}\nv_add_u32 v{vgo-1}, {sr(s0)}, v{vl4}')
    su4b += F(f'v_lshrrev_b32 v{T}, 3, v{l_}\nv_and_b32 v{T+2}, 7, v{l_}\nv_xor_b32 v{T+3}, v{T+2}, v{T}\nv_lshlrev_b32 v{T+3}, 4, v{T+3}\nv_lshl_add_u32 v{vro}, v{T}, 11, v{T+3}')
    su4b += F(f'v_bfe_u32 v{T}, v{l_}, 4, 1\nv_lshrrev_b32 v{T+3}, 5, v{l_}\nv_lshl_add_u32 v{T}, v{T}, 1, v{T+3}\nv_xor_b32 v{T}, v{T}, v{T+2}\nv_lshlrev_b32 v{T}, 4, v{T}\nv_and_b32 v{T+2}, 15, v{l_}\nv_lshl_add_u32 v{T}, v{T+2}, 7, v{T}\nv_add_u32 v{vxa}, {sr(sxl)}, v{T}\nv_xor_b32 v{vxa+1}, 64, v{vxa}\nv_add_u32 v{vxa+2}, {sr(sxl)}, v{vl16}')
    su4b += F(f'v_bfe_u32 v{T}, v{l_}, 2, 2\nv_lshrrev_b32 v{T+1}, 4, v{l_}\nv_and_b32 v{T+2}, 1, v{l_}\nv_lshlrev_b32 v{T+2}, 4, v{T+2}\nv_mov_b32 v{T+3}, 0x3f80\nv_lshlrev_b32 v{T+2}, v{T+2}, v{T+3}') + [f'v_cmp_eq_u32 vcc, v{T}, v{T+1}\nv_mov_b32 v{vsel+4}, 0\nv_mov_b32 v{vsel+5}, 0\nv_cndmask_b32 v{T}, 0, v{T+2}, vcc']
    su4b += [f'v_and_b32 v{T+1}, 2, v{l_}', f'v_cmp_eq_u32 vcc, 0, v{T+1}\nv_mov_b32 v{vsel}, 0\nv_mov_b32 v{vsel+1}, 0\nv_cndmask_b32 v{vsel+2}, 0, v{T}, vcc', f'v_sub_u32 v{vsel+3}, v{T}, v{vsel+2}']
    def epi(s_):
        L = []
        for mp in (0, 2):
            ms = [(m, x) for m in (mp, mp + 1) for x in range(4)]
            e = lambda m, x: ut + 4 * (m & 1) + x
            L += [f'v_mul_f32 v{e(m,x)}, v{vs+2*m}, v{accr(s_,0,m)+x}' for m, x in ms]
            ex = [f'v_exp_f32 v{e(m,x)}, v{e(m,x)}' for m, x in ms]
            mu = [f'v_mul_f32 v{accr(s_,1,m)+x}, v{accr(s_,0,m)+x}, v{accr(s_,1,m)+x}' for m, x in ms]
            L += [y for ab in zip(ex, mu) for y in ab]
            L += [f'v_fma_f32 v{e(m,x)}, v{e(m,x)}, v{vs+2*m+1}, v{vs+2*m+1}' for m, x in ms]
            L += [f'v_rcp_f32 v{e(m,x)}, v{e(m,x)}' for m, x in ms]
            L += [f'v_mul_f32 v{accr(s_,1,m)+x}, v{accr(s_,1,m)+x}, v{e(m,x)}' for m, x in ms]
            for m in (mp, mp + 1):
                u_ = accr(s_, 1, m); o = accr(s_ & ~1, 0, m) + 2 * (s_ & 1)
                L += F(f'v_cvt_pk_bf16_f32 v{o}, v{u_}, v{u_+1}\nv_cvt_pk_bf16_f32 v{o+1}, v{u_+2}, v{u_+3}')
                if s_ & 1 or s_ == 6:
                    so = sO + {1: 0, 3: 0, 5: 1, 6: 2}[s_]
                    def f(m=m, o=o, so=so):
                        if m: p.ins(f's_add_u32 {sr(s2_)}, {sr(so)}, {2 * MBS[1] * m}')
                        so_ = sr(s2_) if m else sr(so)
                        if s_ == 6: p.vm(f'buffer_store_dwordx2 {vr(o,2)}, v{vl16}, {sr(sWS,4)}, {so_} offen sc1', ('as', s_, m))
                        else: p.vm(f'buffer_store_dwordx4 {vr(o-2,4)}, v{vl16}, {sr(sWS,4)}, {so_} offen offset:{1024 if s_ == 3 else 0} sc1', ('as', s_, m))
                    L.append(op(f, 2))
        return L
    order = [6, 4, 5, 0, 1, 2, 3]
    win = {}
    a_ = 0
    wl = cfg.get('wl', (50, 56, 50, 64, 64, 64, 64))
    for i, s_ in enumerate(order):
        a_ = max(a_, done[s_] + 3)
        win[s_] = (a_, a_ + wl[i] - 1); a_ += wl[i]
    k.win = win; k.z = (z3, z4, zf, N)
    assert win[1][1] + 3 < z4 + 32, 'accumulators of G4 (tiles 4..7) overlap pairs 0/1'
    su4_end = win[4][1]
    pre_done = k.early3
    W.units[(3, 0, 0)]['vis'] = True
    for ts in range(n4):
        for g in range(2): W.units[(4, ts, g)]['e'] = su4_end + 1
    ops = W.dma_ops(bars, pre_done)
    def aop(ph, ts, j, m):
        ch, ab, stp = (chunk3, ab3, 65536) if ph == 3 else (chunk4, ab4, sr(sst4) if m == 2 else MBS[1])
        def pre():
            ch(ts)
            if m and j == 0: p.ins(f's_add_u32 {sr(sCA + ts % NC)}, {sr(sCA + ts % NC)}, {stp}')
        main = lambda: p.vm(f'buffer_load_dwordx4 {vr(ab(ts,j,m),4)}, v{vl16}, {sr(sWS,4)}, {sr(sCA + ts % NC)} offen offset:{1024*j} {lf}', ('A', ph, ts, j, m))
        return op(pre, 1 if j == 0 else 0), main
    pl1 = z4 - cfg.get('pl1', 130); pl2 = firstA[(4, NE)] - cfg.get('pl2', 150)
    i1, c1 = poll_ops(k, sWS, vp, sfl + 2, 'pl1', sfl + 3)
    i2, c2 = poll_ops(k, sWS, vp, sfl + 2, 'pl2', sfl + 3)
    assert pl1 > su4_end
    st.at(pl1, i1); st.at(pl1 + PD, c1)
    st.at(pl2 - 1, f's_sub_u32 {sr(sfl+2)}, {sr(sfl+2)}, {FL_A - FL_A2}'); st.at(pl2, i2); st.at(pl2 + PD, c2)
    for ph, n_ in ((3, n3), (4, n4)):
        for ts in range(cfg.get('a0', 2) if ph == 3 else 0, n_):
            if ph == 3: e = lastA[(3, ts - DAS)] + 1 if ts >= DAS else 0
            else: e = max(bufs[ts][1] if ts < NB else lastA[(4, ts - NB)] + 1, (pl1 if ts < NE else pl2) + PD + 1)
            for m in range(4):
                for j in range(2):
                    pre, main = aop(ph, ts, j, m)
                    ops.append(dict(e=e, dl=firstA[(ph, ts)] - 1, pre=pre, main=main, id=('A', ph, ts)))
    vx1 = 192; vf = 208
    tg = win[3][1] + 110
    for q in range(NPART):
        pre = op(lambda q=q: p.ins(f's_add_u32 {sr(sv+1)}, {sr(sg4)}, {6144 * 4 * q}'), 1)
        X(tg, tg + 60, lambda q=q: p.vm(f'buffer_load_dword v{vg+q}, v{vl4}, {sr(sWS,4)}, {sr(sv+1)} offen {lf}', ('g', q)), pre)
    for i, tp in enumerate(cfg.get('pf', range(500, 1280, 112))):
        pre = op(lambda i=i: p.ins(f's_add_u32 {sr(sv+1)}, {sr(spf)}, {2048 * i}'), 1)
        assert tp > utb
        X(tp, tp + 20, lambda i=i: p.vm(f'buffer_load_dword a253, v{vt}, {sr(sWd,4)}, {sr(sv+1)} offen', ('dummy', i)), pre)
        extra[-1]['wt'] = cfg.get('pfw', 2)
    g3gap, g4gap = cfg.get('gap3', 5), cfg.get('gap4', 4.5)
    st.vmem(ops + extra, lambda i: cfg.get('gap0', 4) if i < 112 else g3gap if i < z3 else cfg.get('gapf', 4) if i < z4 else g4gap)
    k.vops = ops
    e_ = st.fill(setup, 20); assert e_ < th[0], e_
    for t0_, L, nm in chains:
        e_ = st.fill(L, max(t0_, e_ + 1))
        k.dbg = getattr(k, 'dbg', []) + [(nm, t0_, e_)]
        if nm == 'b3':
            st.at(e_ + cfg.get('upub', 95), pub_op(k, sWS, 9, sfl, ['us']))
            st.at(e_ + cfg.get('upub', 95), f's_sub_u32 {sr(sfl)}, {sr(sfl)}, {FL_U - FL_A}')
            assert e_ + cfg.get('upub', 95) < tu
            e_ = st.fill([('gap', 3)] + ufin, e_ + 1); assert e_ < tu, (e_, tu)
    e_ = st.fill(su4s, e_ + 1); assert e_ < utb - 62
    e_ = st.fit(fl, utb - 62, utb - 2)
    W.bw[utb].append(('lg', 'utw'))
    w = utb + 1; todo = [(s_, mat) for s_ in (6, 4, 5, 0, 1, 2, 3) for mat in range(2)]
    rdu = lambda x, i: (lambda: p.lg(f'ds_read_b128 {vr(ut+4*i,4)}, v{vub} offset:{512*(2*x[1]+i)+64*x[0]}', ('iu', x, i), r=(UT, UT + 2048)))
    allv = {x: [v for key, v in visit.items() if key[1:] == x] for x in todo}
    def pick(w_):
        while True:
            ok = [x for x in todo if all(v + 10 <= w_ or v >= w_ + cfg.get('injw', 34) for v in allv[x])]
            if ok: todo.remove(ok[0]); return ok[0], w_
            w_ += 1
    cur, w2 = pick(w + 8)
    st.fill([rdu(cur, 0), rdu(cur, 1)], w); w = w2
    while cur:
        fm_ = lambda i: [lambda x=cur, i=i: p.wait(lg=[('iu', x, i)])] + [f'v_fmac_f32 v{accr(cur[0],cur[1],m)+x}, v{vs+2*m+i}, v{ut+4*i+x}' for m in range(4) for x in range(4)]
        nx, w2 = pick(w + 30) if todo else (None, 0)
        w = st.fill(fm_(0) + ([rdu(nx, 0)] if nx else []) + fm_(1) + ([rdu(nx, 1)] if nx else []), w, cap=cfg.get('injcap', 2)) + 1
        assert w < (z3 if cur[0] >= 4 else done[6] - 12), (cur, w, z3)
        cur = nx; w = max(w, w2)
    L = [f'v_rcp_f32 v{vs+2*m}, v{vs+2*m+1}' for m in range(4)] + [f'v_mul_f32 v{vs+2*m+1}, v{vs+2*m+1}, v{vs+2*m+1}' for m in range(4)] + [f'v_mul_f32 v{vs+2*m}, {f32(-LOG2E)}, v{vs+2*m}' for m in range(4)]
    st.fill(L, w)
    k.injend = w
    st.at(win[5][1] + cfg.get('pb1', 40), pub_op(k, sWS, vpx, sfl, [('as', 6, m) for m in range(4)] + [('as', 5, m) for m in range(4)]))
    for s_ in order:
        L = epi(s_)
        if s_ == 4: L = L[:20] + su4 + L[20:]
        st.fit(L, *win[s_])
    e_ = st.fill([f's_sub_u32 {sr(sfl)}, {sr(sfl)}, {FL_A - FL_A2}', ('gap', cfg.get('pb2', 40)), pub_op(k, sWS, vpx, sfl, [('as', s_, m) for s_ in (1, 3) for m in range(4)])] + su4b, win[3][1] + 1)
    assert e_ < tg, (e_, tg)
    L = [lambda i=i: p.lg(f'ds_read_b128 {vr(vx1+4*i,4)}, v{vxa+2} offset:{1024*i}', 'x1', r=(XL, XL + 16384), priv=True) for i in range(4)]
    L += [lambda: p.wait(vm=[('g', q) for q in range(NPART)])]
    L += F(f'v_add_f32 v{vg}, v{vg}, v{vg+1}\nv_add_f32 v{vg+2}, v{vg+2}, v{vg+3}\nv_add_f32 v{vg}, v{vg}, v{vg+2}') + rb(vg)
    L += [lambda: p.lg(f'ds_write_b32 v{vgo-1}, v{vg}', None, w=(GL, GL + 1024), priv=True)]
    L += [lambda t=t: p.lg(f'ds_read_b128 {vr(vg+4*t,4)}, v{vgo} offset:{64*t}', ('gl', t), r=(GL, GL + 1024), priv=True) for t in range(4)]
    L += [lambda: p.wait(lg=['x1'])]
    for i in range(16): L += F(f'v_lshlrev_b32 v{vf+2*i}, 16, v{vx1+i}\nv_and_b32 v{vf+2*i+1}, 0xffff0000, v{vx1+i}')
    L += F(f'v_mov_b32 v{vp+1}, 0')
    e_ = st.fill(L, max(tg + 130, pl2 + PD + 1)); assert e_ < zf
    XJ = (3, 1, 2); XP = (0, 0, 1); XT = (0, 0, 4); XM = (2, 0, 2)
    tail = []
    def put(slot, o):
        if slot < N: st.at(slot, o)
        else: tail.append((slot, len(tail), o))
    xr = lambda x, i: acc4(XT[x] + 2 * (i & 1) + 1, XM[x] + (i >> 1))
    def addp(x, i):
        return [f'{MFMA} {vr(acc4(4+2*(i&1)+t,i>>1),4)}, {vr(vsel+2-2*t,4)}, {vr(xr(x,i),4)}, {vr(acc4(4+2*(i&1)+t,i>>1),4)}' for t in range(2)]
    xt = cfg.get('xt', ((75, 130, 165), (75, 132, 167), (50, 90, 97)))
    for ps in range(2):
        L = []
        for t in range(4):
            L.append(('from', d4[(ps, 4 * ps + t)] + 3))
            for x in range(3):
                if XP[x] != ps: continue
                for m in range(2):
                    c = acc4(XT[x] + t, XM[x] + m); o = acc4(XT[x] + (t & ~1), XM[x] + m)
                    L += F(f'v_cvt_pk_bf16_f32 v{o+2*(t&1)}, v{c}, v{c+1}\nv_cvt_pk_bf16_f32 v{o+2*(t&1)+1}, v{c+2}, v{c+3}')
                    if t & 1:
                        L.append(op(lambda x=x, i=2 * m + t // 2, o=o: (p.ins(f's_add_u32 {sr(sxo+1)}, {sr(sxo)}, {4096 * x}'), p.vm(f'buffer_store_dwordx4 {vr(o,4)}, v{vl16}, {sr(sWS,4)}, {sr(sxo+1)} offen offset:{1024 * i} sc1', ('xs', x, i))), 2))
                        L.append(('gap', cfg.get('xgap', 2)))
        e_ = st.fill(L, d4[(ps, 4 * ps)] + 3); assert e_ < d4[(ps, 4 * ps + 3)] + xt[2 * ps][0]
    for x in range(3):
        e0 = d4[(XP[x], 4 * XP[x] + 3)]; vq_ = vp if x != 1 else vpx + 1
        if x != 1: put(e0 + xt[x][0], pub_op(k, sWS, vpx, sfl + 1, [('xs', y, i) for y in range(3) if XP[y] == XP[x] for i in range(4)], 16 * XP[x], wg=False))
        sq_ = sfl + 2 if x != 1 else sL4
        i3, c3 = poll_ops(k, sWS, vq_, sq_, ('pl3', x), sfl + 3, wg=False, va=vp + 1)
        put(e0 + xt[x][1], op(lambda x=x, i3=i3, sq_=sq_: (p.ins(f's_xor_b32 {sr(sq_)}, {sr(sfl+1)}, {XJ[x] << 9}\ns_add_u32 {sr(sq_)}, {sr(sq_)}, {16 * XP[x]}'), i3()), 3))
        put(e0 + xt[x][2], f';@T xa{x}')
        put(e0 + xt[x][2], c3)
        put(e0 + xt[x][2], f';@T xb{x}')
        for i in range(4):
            f = lambda x=x, i=i: (p.ins(f's_xor_b32 {sr(s2_)}, {sr(sxo)}, {XJ[x] << 16}\ns_add_u32 {sr(s2_)}, {sr(s2_)}, {4096 * x}'), p.vm(f'buffer_load_dwordx4 {vr(xr(x,i),4)}, v{vl16}, {sr(sWS,4)}, {sr(s2_)} offen offset:{1024 * i} sc1', ('xc', x, i)))
            put(e0 + xt[x][2] + (1 + 4 * i if e0 + xt[x][2] + 15 < N else 0), op(f, 3))
    T = ACC
    p.wait(lg='all'); p.bar()
    for o in k.left: o['pre'](); o['main']()
    for f in k.stash: f()
    p.ins(f'v_mov_b32 v{vdA}, v16')
    if cfg.get('warm3') == 0: p.ins(f';@WARM {sr(sw)} 0 4\n;@FROM')
    k.ypub(); p.T('y_pub')
    if cfg.get('warm3', 2) == 1: p.ins(f';@WARM {sr(sw)} 0 4\n;@FROM')
    if cfg.get('warm3', 2) == 2: p.ins(f';@WARM {sr(sw)} 1 3\n;@FROM')
    p.ins(f's_and_b32 {sr(sx)}, s2, 7\ns_bfe_u32 {sr(sq)}, s2, 0x20003\ns_lshr_b32 {sr(sm)}, s2, 5\ns_add_u32 {sr(sLead)}, {sr(sq)}, {sr(sm)}\ns_and_b32 {sr(sLead)}, {sr(sLead)}, 3\ns_lshl_b32 {sr(s0)}, {sr(sm)}, 1')
    p.ins(f's_lshr_b32 {sr(s1)}, {sr(sw)}, 1\ns_add_u32 {sr(s0)}, {sr(s0)}, {sr(s1)}\ns_lshl_b32 {sr(sst)}, {sr(s0)}, 3\ns_and_b32 {sr(s2_)}, {sr(sw)}, 1\ns_add_u32 {sr(sst)}, {sr(sst)}, {sr(s2_)}')
    p.ins(f's_lshl_b32 {sr(sAb)}, {sr(sst)}, 15\ns_add_u32 {sr(sAb)}, {sr(sAb)}, {WS_Y}')
    p.ins(f's_lshl_b32 {sr(s0)}, {sr(sm)}, 12\ns_add_u32 {sr(sfl+2)}, {sr(s0)}, {FL_Y}')
    p.ins(f'v_and_b32 v{vt+2}, 31, v{vl}\nv_lshlrev_b32 v{vt+2}, 7, v{vt+2}')
    iy, cy = poll_ops(k, sWS, vt, sfl + 2, 'ply', sfl + 3, va=vt + 2)
    p.ins(f'v_lshrrev_b32 v{T+1}, 2, v{vl}\nv_bfe_u32 v{T}, v{T+1}, 1, 2\nv_lshlrev_b32 v{T}, 5, v{T}\nv_lshl_add_u32 v{T}, v{T+1}, 7, v{T}\nv_and_b32 v{T+1}, 3, v{vl}\nv_lshl_add_u32 v{wa}, v{T+1}, 3, v{T}')
    for t in range(1, 4): p.ins(f'v_xor_b32 v{wa+t}, {t<<5}, v{wa}')
    for t in range(3): p.ins(f'v_add_u32 v{wa+4+t}, 65536, v{wa+t}')
    p.ins(f's_lshl_b32 {sr(sfl)}, s2, 7\ns_lshl_b32 {sr(s0)}, {sr(sw)}, 28\ns_add_u32 {sr(sfl)}, {sr(sfl)}, {sr(s0)}\ns_add_u32 {sr(sfl)}, {sr(sfl)}, {FL_U}\ns_lshl_b32 {sr(s0)}, s2, 2\ns_add_u32 {sr(s0)}, {sr(s0)}, {sr(sw)}\ns_lshl_b32 {sr(s0)}, {sr(s0)}, 7\ns_add_u32 {sr(sfl+1)}, {sr(s0)}, {FL_X}')
    vtb = k.vtb
    p.wait(vm=[('tb', q) for q in range(NPART)])
    for i in range(2): p.ins(f'v_add_f32 v{vtb+i}, v{vtb+i}, v{vtb+2+i}\nv_add_f32 v{vtb+4+i}, v{vtb+4+i}, v{vtb+6+i}\nv_add_f32 v{vtb+i}, v{vtb+i}, v{vtb+4+i}')
    p.ins(f'v_lshrrev_b32 v{T}, 5, v{vl}\nv_xor_b32 v{T+1}, 1, v{T}\nv_cvt_f32_u32 v{T+1}, v{T+1}')
    for rep in range(2):
        p.ins(f'v_cvt_pk_bf16_f32 v{vtb+2}, v{vtb}, v{vtb+1}\nv_lshlrev_b32 v{vtb}, 16, v{vtb+2}\nv_and_b32 v{vtb+1}, 0xffff0000, v{vtb+2}')
        if rep == 0: p.ins(f'v_add_f32 v{vtb}, v{vtb}, v{T+1}\nv_add_f32 v{vtb+1}, v{vtb+1}, v{T+1}')
    p.ins(f'v_lshrrev_b32 v{vtb+3}, 16, v{vtb+2}\nv_and_b32 v{vtb+2}, 0xffff, v{vtb+2}\ns_add_u32 {sr(s0)}, {sr(sWL)}, {LB}\nv_lshlrev_b32 v{T}, 8, v{T}\nv_lshl_add_u32 v{T}, v{vl}, 3, v{T}\nv_add_u32 v{T}, {sr(s0)}, v{T}')
    p.lg(f'ds_write_b64 v{T}, {vr(vtb+2,2)}', None, w=(LB, LB + 4096), priv=True)
    p.lg(f'ds_write_b64 v{T}, {vr(vtb,2)} offset:256', None, w=(LB, LB + 4096), priv=True)
    p.ins(f's_bitcmp1_b32 s2, 3\ns_cselect_b64 {sr(sJ,2)}, {sr(sWu,2)}, {sr(sWg,2)}\ns_mov_b32 {sr(sJ+2)}, {DM * FF * 2}')
    for r_ in range(4): smov64(p, sMk + 2 * r_, lanemask(lambda l: ((l & 7) >> 1) == r_))
    iy()
    p.wait(vm=[('D', (3, 0, g), i) for g in range(2) for i in range(4)])
    p.T('y_a'); cy(); p.T('y_b')
    for ts in range(cfg.get('a0', 2)):
        for m in range(4):
            for j in range(2):
                pre, main = aop(3, ts, j, m); pre(); main()
    p.ins(f'v_bfe_u32 v{T}, v{vl}, 3, 1\nv_lshlrev_b32 v{T}, 9, v{T}\nv_and_b32 v{T+1}, 1, v{vl}\nv_lshl_add_u32 v{T}, v{T+1}, 8, v{T}\nv_lshrrev_b32 v{T+1}, 4, v{vl}\nv_lshl_add_u32 v{T}, v{T+1}, 6, v{T}\nv_add_u32 v{vt+1}, {sr(s0)}, v{T}')
    p.ins(f's_bfe_u32 {sr(s0)}, s2, 0x20004\ns_lshl_b32 {sr(s0)}, {sr(s0)}, 8\nv_and_b32 v{T}, 15, v{vl}\nv_lshl_add_u32 v{T}, v{T}, 4, {sr(s0)}\nv_cmp_gt_u32 vcc, 896, v{T}\nv_mov_b32 v{T+2}, {OOB}\nv_mul_u32_u24 v{T+1}, {16 * 7168}, v{T+1}\nv_cndmask_b32 v{T}, v{T+2}, v{T}, vcc')
    p.ins(f's_lshr_b32 {sr(s0)}, s2, 6\ns_lshl_b32 {sr(s0)}, {sr(s0)}, 2\ns_add_u32 {sr(s0)}, {sr(s0)}, {sr(sw)}\ns_mul_i32 {sr(s0)}, {sr(s0)}, {64 * 7168}\ns_mul_i32 {sr(s1)}, {sr(sx)}, 896\ns_add_u32 {sr(s0)}, {sr(s0)}, {sr(s1)}\nv_add3_u32 v{vt}, v{T}, v{T+1}, {sr(s0)}')
    W.emit_early()
    for i, nm in tuple(cfg.get('marks', ())) + ((1, 'g3_m1'), (4 * 112, 'g3_s4'), (z3, 'g3_fin'), (pl1 + PD, 'p1a'), (pl1 + PD + 1, 'p1b'), (z4, 'g4_m1'), (pl2 + PD, 'p2a'), (pl2 + PD + 1, 'p2b'), (z4 + NE * 64, 'g4_L'), (zf, 'g4_fin')):
        st.pre.setdefault(i, []).insert(0, f';@T {nm}')
    st.emit()
    p.T('g4_end')
    for _, _, o in sorted(tail, key=lambda x: x[:2]): p.ins(o) if isinstance(o, str) else o()
    p.wait(vm=[('xc', x, i) for x in range(2) for i in range(4)])
    for x in range(3):
        for i in range(4):
            if x == 2: p.wait(vm=[('xc', x, i)])
            for o in addp(x, i): p.ins(o)
    for i in range(4):
        m, q = divmod(i, 2); f_ = vf + 8 * i; x_ = vx1 + 4 * i
        for t in range(2):
            for e in range(4): p.ins(f'v_fmac_f32 v{f_+4*t+e}, v{vg+8*q+4*t+e}, v{acc4(4+2*q+t,m)+e}')
        for d in range(4): p.ins(f'v_cvt_pk_bf16_f32 v{x_+d}, v{f_+2*d}, v{f_+2*d+1}')
        p.ins(f'v_permlane16_swap_b32 v{x_}, v{x_+2}\nv_permlane16_swap_b32 v{x_+1}, v{x_+3}')
        p.lg(f'ds_write_b128 v{vxa+q}, {vr(x_,4)} offset:{2048*m}', None, w=(XL, XL + 16384), priv=True)
        if q:
            for h in range(2): p.lg(f'ds_read_b128 {vr(vf+16*m+4*h,4)}, v{vxa+2} offset:{2048*m+1024*h}', ('o', 2 * m + h), r=(XL, XL + 16384), priv=True)
    for i in range(4):
        if i: p.ins(f's_add_u32 {sr(sro)}, {sr(sro)}, 16384')
        p.wait(lg=[('o', i)])
        p.vm(f'buffer_store_dwordx4 {vr(vf+16*(i>>1)+4*(i&1),4)}, v{vro}, {sr(sOut,4)}, {sr(sro)} offen {cfg.get("ofl", "")}')
    k.st = st
    k.end()
    return k
```

```python
import sys
sys.path.insert(0, 'gen')
import main4
from kernels import build
from pagehop import pagehop
NAME = 'adaLN_cond__sliding_local_dilated__swiglu_ffn__prompt'
out = sys.argv[1] if len(sys.argv) > 1 else f'cdna_kernels/{NAME}.s'
o = eval(sys.argv[2]) if len(sys.argv) > 2 else {}
o.setdefault('g12', {})['name'] = NAME + '_kernel'
t = pagehop(build(main4.make4(o)))
t = t.replace(f'; @launch kernel={NAME}_kernel ', '; @launch ').replace('gen/main.py', 'gen/final4.py')
t = '\n'.join(l for l in t.split('\n') if not l.strip().startswith(';@'))
open(out, 'w').write(t)
print(len(t), pagehop.info)
```

```python
import re
from asmlib import *
MFMA = 'v_mfma_f32_16x16x32_bf16'
A0 = AOFF

def regs(tok):
    tok = tok.strip().lstrip('-')
    m = re.fullmatch(r'([vsa])(\d+)', tok)
    if m: return {(m.group(1), int(m.group(2)))}
    m = re.fullmatch(r'([vsa])\[(\d+):(\d+)\]', tok)
    if m: return {(m.group(1), i) for i in range(int(m.group(2)), int(m.group(3)) + 1)}
    if tok == 'vcc': return {('s', 106), ('s', 107)}
    if tok == 'vcc_lo': return {('s', 106)}
    if tok == 'vcc_hi': return {('s', 107)}
    if tok == 'm0': return {('m', 0)}
    if tok in ('exec', 'exec_lo', 'exec_hi'): return {('e', 0)}
    return set()
TRANS = ('v_exp_f32', 'v_rcp_f32', 'v_sqrt_f32', 'v_rsq_f32', 'v_log_f32')
_pc = {}
def parse(line):
    if line in _pc: return _pc[line]
    I = _parse(line); _pc[line] = I
    return I
def _parse(line):
    line = line.split(';')[0].strip()
    if not line or line.endswith(':') or line.startswith('.'): return None
    op, _, rest = line.partition(' ')
    ops = [o.strip() for o in re.split(r',(?![^\[]*\])', rest)] if rest else []
    if ops:
        last = ops[-1].split(' ')
        ops[-1] = last[0]; mods = last[1:]
    else: mods = []
    I = dict(op=op, txt=line, w=set(), r=set(), kind='other', mods=mods)
    R = [regs(o) for o in ops]
    U = lambda x: set().union(*x) if x else set()
    if op.startswith('v_mfma'):
        I.update(kind='mfma', w=R[0], a=R[1] | R[2], c=R[3], r=R[1] | R[2] | R[3])
    elif op.startswith('v_'):
        I['kind'] = 'valu'
        if op.startswith('v_cmp'): I['w'] = R[0]; I['r'] = U(R[1:])
        elif op.startswith('v_permlane'): I['w'] = R[0] | R[1]; I['r'] = R[0] | R[1]
        elif op in ('v_add_co_u32', 'v_addc_co_u32'): I['w'] = R[0] | R[1]; I['r'] = U(R[2:])
        else:
            I['w'] = R[0]; I['r'] = U(R[1:])
            if op.startswith('v_fmac') or op.startswith('v_writelane') or op.startswith('v_dot2c') or 'dpp' in op: I['r'] |= R[0]
    elif op.startswith('buffer_') or op.startswith('global_'):
        I['kind'] = 'vmem'
        lds = 'lds' in mods
        I['lds'] = lds
        if 'store' in op or 'atomic' in op:
            I['r'] = U(R); I['data'] = R[0] if op.startswith('buffer_') else R[1]
            I['wide'] = 'x4' in op or 'x3' in op
        elif lds: I['r'] = U(R) | {('m', 0)}
        else: I['w'] = R[0]; I['r'] = U(R[1:])
    elif op.startswith('ds_'):
        I['kind'] = 'ds'
        if 'read' in op: I['w'] = R[0]; I['r'] = R[1]
        else: I['r'] = U(R)
    elif op.startswith('s_'):
        I['kind'] = 'salu'
        if op.startswith(('s_cmp', 's_bitcmp', 's_cbranch', 's_branch', 's_waitcnt', 's_barrier', 's_nop', 's_setprio', 's_endpgm', 's_sleep')):
            I['r'] = U(R)
            if op in ('s_cbranch_vccz', 's_cbranch_vccnz'): I['r'] = regs('vcc')
        else:
            I['w'] = R[0] if R else set(); I['r'] = U(R[1:])
    I['ws'] = int(ops[0]) + 1 if op == 's_nop' else 1
    return I

def need(p, c):
    n = 0
    vw = {x for x in p['w'] if x[0] in 'va'}; sw = {x for x in p['w'] if x[0] == 's'}
    if p['kind'] == 'valu':
        if c['kind'] == 'mfma' and vw & c['r']: n = 2
        if c['kind'] == 'valu' and (c['op'].startswith('v_permlane') or 'dpp' in c['op']) and vw & c['r']: n = 2
        if c['op'].startswith(('v_readfirstlane', 'v_readlane')) and vw & c['r']: n = max(n, 1)
        if p['op'] in TRANS and c['kind'] in ('valu',) and c['op'] not in TRANS and vw & c['r']: n = max(n, 1)
        if p['op'].startswith('v_dot2') and c['kind'] in ('valu', 'vmem', 'ds', 'mfma') and c['op'] != p['op'] and vw & (c['r'] | c['w']): n = max(n, 3)
        if sw & c['r']:
            if c['kind'] == 'valu': n = max(n, 4 if c['op'].startswith(('v_readlane', 'v_writelane')) else 2)
            if c['kind'] == 'vmem': n = 5
            if c['kind'] == 'salu': n = max(n, 5 if c['op'].startswith('s_cbranch_vcc') else 1)
    if p['kind'] == 'mfma':
        if c['kind'] == 'mfma':
            if p['w'] & c['a']: n = 8
            elif p['w'] & c['c'] and p['w'] != c['c']: n = 6
            elif p['w'] & c['w'] and p['w'] != c['c']: n = 6
        elif c['kind'] in ('valu', 'vmem', 'ds') and p['w'] & (c['r'] | c['w']): n = 8
        if c['kind'] == 'valu' and p['c'] & c['w']: n = max(n, 3)
    if p['kind'] == 'salu' and ('m', 0) in p['w'] and c['kind'] == 'vmem' and c.get('lds'): n = 1
    if p['kind'] == 'vmem' and p.get('wide') and p['data'] & c['w']: n = 2 if c['kind'] in ('valu', 'mfma') else 1
    return n

def fix_hazards(lines, report=None):
    out = []
    hist = [[]]
    pend = {}
    nins = 0
    for l in lines:
        s = l.strip()
        if s.endswith(':') and not s.startswith(';'):
            hist = hist + pend.pop(s[:-1], [])
            out.append(l); continue
        c = parse(l)
        if c is None:
            out.append(l); continue
        short = 0
        for h in hist:
            d = 0
            for p in reversed(h):
                short = max(short, need(p, c) - d)
                d += p['ws']
                if d >= 8: break
        if short > 0:
            nop = f'  s_nop {short - 1}'
            out.append(nop); nins += short
            if report is not None: report.append((short, s))
            for h in hist: h.append(parse(nop))
        out.append(l)
        for h in hist: h.append(c)
        hist = [h[-9:] for h in hist]
        if len(hist) > 1:
            k = {}
            for h in hist: k[tuple(x['txt'] for x in h)] = h
            hist = list(k.values())
        if c['op'].startswith('s_cbranch') or c['op'] == 's_branch':
            t = s.split()[-1]
            pend.setdefault(t, []).extend([list(h) for h in hist])
            if c['op'] == 's_branch': hist = [[]]
    return out, nins

class Prog2(Prog):
    def vm(self, text, tag=None, w=None, priv=False, grp=None):
        self.items.append(('vm', text, tag, None, w, priv, grp))
    def lg(self, text, tag=None, r=None, w=None, priv=False):
        self.items.append(('lg', text, tag, r, w, priv))
    def bar(self):
        self.ins('s_barrier')
    def T(self, name):
        self.ins(f';@T {name}')
    chains = None
    def check_chains(self):
        errs = []; own = {}; last = {}
        for i, x in enumerate(self.items):
            if x[0] not in ('ins', 'vm', 'lg'): continue
            I = parse(x[1])
            if I is None: continue
            c = (self.chains or {}).get(i)
            R = set(I['r'])
            if I['op'].startswith(('s_cselect', 's_cbranch_scc', 's_addc')): R.add(('c', 0))
            Wr = set(I['w'])
            if I['kind'] == 'salu' and not I['op'].startswith(('s_mov', 's_mul', 's_cselect', 's_cbranch', 's_branch', 's_wait', 's_barrier', 's_nop', 's_load', 's_getpc', 's_bfm')): Wr.add(('c', 0))
            if c is not None:
                for r in R:
                    if (c, r) in own and last[r] != c: errs.append(f'chain {c}: {r} of [{x[1]}] was overwritten by chain {last[r]}')
            if x[1].endswith('; M') and I['c']: continue
            for r in Wr:
                last[r] = c
                if c is not None: own[(c, r)] = i
        return errs
    def events(self):
        ev = []; q = {'vm': [], 'lg': []}; ep = 0
        pendreg = {}; lastw = {}
        errs = []
        def retire(k, n, i):
            while len(q[k]) > n:
                o = q[k].pop(0)
                for e in o['ev']: e[5] = ep; e[7] = i
                for r in o['w']:
                    if pendreg.get(r) is o: del pendreg[r]
        for i, x in enumerate(self.items):
            k = x[0]
            if k == 'wait':
                if len(x) > 5: continue
                if x[3] is not None: retire('vm', min(x[3], 63), i)
                if x[4] is not None: retire('lg', min(x[4], 15), i)
                continue
            if k not in ('ins', 'vm', 'lg'): continue
            I = parse(x[1])
            if I is None or (k == 'ins' and '; cond' in x[1]): continue
            if I['op'] == 's_waitcnt':
                if 'cond' in x[1]: continue
                m = re.search(r'vmcnt\((\d+)\)', x[1]);  m and retire('vm', int(m.group(1)), i)
                m = re.search(r'lgkmcnt\((\d+)\)', x[1]); m and retire('lg', int(m.group(1)), i)
                continue
            if I['op'] == 's_barrier': ep += 1; continue
            for r in (I['r'] | I['w']):
                if r in pendreg and not (k in ('vm', 'lg') and r in I['w'] and r not in I['r'] and 'dummy' in str(x[2])):
                    errs.append(f'register {r} still pending from [{pendreg[r]["t"]}] at [{x[1]}]')
            if x[1].endswith('; M'):
                for r in I['a']:
                    t = lastw.get(r)
                    if not (isinstance(t, tuple) and t[0] in ('W', 'w', 'wo', 'A')): errs.append(f'operand {r} of [{x[1]}] last written by {t}')
                for r in I['c']:
                    if lastw.get(r) not in ('M', 'v_fmac_f32'): errs.append(f'accumulator {r} of [{x[1]}] last written by {lastw.get(r)}')
            for r in I['w']: lastw[r] = x[2] if k in ('vm', 'lg') else 'M' if x[1].endswith('; M') else I['op']
            if k in ('vm', 'lg'):
                o = dict(ev=[], w=I['w'], t=x[1])
                if len(x) > 3:
                    for kind, rg in (('r', x[3]), ('w', x[4])):
                        if rg:
                            e = [kind, rg[0], rg[1], x[5], ep, None, i, None, x[1], k, x[6] if len(x) > 6 else None]; o['ev'].append(e); ev.append(e)
                for r in I['w']: pendreg[r] = o
                q[k].append(o)
        return ev, errs, ep

def check_lds(evs):
    errs = []
    for pa, A in enumerate(evs):
        for pb, B in enumerate(evs):
            for b in B:
                for a in A:
                    if a is b or (a[0] == 'r' and b[0] == 'r'): continue
                    if a[2] <= b[1] or b[2] <= a[1]: continue
                    if a[3] and b[3]:
                        if pa == pb and a[6] < b[6] and (a[9] == 'vm' or b[9] == 'vm') and not (a[7] is not None and a[7] < b[6]):
                            errs.append(f'private LDS order [{a[8]}] -> [{b[8]}]')
                        continue
                    ok = (a[5] is not None and a[5] < b[4]) or (b[5] is not None and b[5] < a[4])
                    if not ok and a[0] == 'w' and b[0] == 'w' and a[10] is not None and a[10] == b[10]: ok = True
                    if not ok and (pa, a[6]) < (pb, b[6]):
                        errs.append(f'LDS race {a[0]}[{a[1]},{a[2]}) ep {a[4]}..{a[5]} [{a[8]}]  vs {b[0]}[{b[1]},{b[2]}) ep {b[4]}..{b[5]} [{b[8]}]')
    return errs

def kind(t):
    o = t.strip().split(' ')[0]
    if not o or o.startswith(';') or o.endswith(':'): return ''
    if o.startswith('v_mfma'): return 'M'
    if o.startswith('v_'): return 't' if o in TRANS or o.startswith(('v_permlane', 'v_pk_', 'v_dot')) else 'v'
    if o.startswith('ds_read'): return 'd'
    if o.startswith('ds_write'): return 'W' if '128' in o else 'w' if '64' in o else 'd'
    if o.startswith(('buffer_store', 'global_store')): return 'W' if 'x4' in o else 'w' if 'x2' in o else 'd'
    if o.startswith(('buffer_', 'global_')): return 'm'
    if o.startswith(('s_cbranch', 's_branch')): return 'b'
    if o == 's_nop': return 's' * (int(t.split()[1]) // 4 + 1)
    return 's'
def slot_time(ks):
    t = 4; tot = 0; prev = 'M'
    for c in ks:
        if c == 'M': tot += max(16, t); t = 4
        elif c in 'vt': t = max(t, 8) + (4 if c == 'v' else 8)
        else: t += {'d': 8, 'W': 24, 'w': 16, 'b': 13}.get(c, 4) + (8 if c == 'm' and prev in 'vt' else 0)
        prev = c
    return t, tot + max(16, t)
def op(f, cost=1):
    f.kinds = 's' * cost if isinstance(cost, int) else cost
    return f

class Stream:
    def __init__(self, p):
        self.p = p
        self.m = []
        self.pre = {}
        self.post = {}
        self.end = {}
        self.touched = set()
    def n(self): return len(self.m)
    def kinds(self, o):
        if isinstance(o, str): return ''.join(kind(t) for t in o.split('\n'))
        if not hasattr(o, 'kinds'):
            p = self.p; a = len(p.items); o(); o.kinds = ''.join('s' if x[0] == 'wait' else kind(x[1]) for x in p.items[a:] if x[0] in ('ins', 'vm', 'lg', 'wait')); del p.items[a:]
        return o.kinds
    def mfma(self, c, a, b, zero=None):
        if zero is None:
            zero = c not in self.touched
        self.touched.add(c)
        self.m.append(f'{MFMA} {vr(c,4)}, {vr(a,4)}, {vr(b,4)}, {0 if zero else vr(c,4)} ; M')
        return len(self.m) - 1
    def before(self, i, o):
        if i == 0: self.pre.setdefault(0, []).append(o)
        else: self.post.setdefault(i - 1, []).insert(0, (o, self.kinds(o), None))
    def where(self, i, ks, c):
        L = self.post.get(i, []); j = len(L)
        if ks and ks[0] not in 'vtM':
            while j and L[j - 1][2] is not None and L[j - 1][2] != c and L[j - 1][1] and set(L[j - 1][1]) <= set('vt'): j -= 1
        return j
    def time(self, i, ks='', c=None):
        L = [x[1] for x in self.post.get(i, [])]
        L.insert(self.where(i, ks, c), ks)
        return slot_time(''.join(L) + ''.join(self.kinds(o) for o in self.end.get(i, [])))
    def at(self, i, o, c=None):
        ks = self.kinds(o)
        self.post.setdefault(i, []).insert(self.where(i, ks, c) if c is not None else len(self.post.get(i, [])), (o, ks, c))
    def last(self, i, o):
        self.end.setdefault(i, []).append(o)
    nchain = [0]
    def fill(self, ops, start, cap=2, stop=None, dry=False):
        i = start; last = len(self.m) - 1
        self.nchain[0] += 1; c = self.nchain[0]; placed = []
        bud = lambda j: 8 + 4 * (int(cap * (j + 1)) - int(cap * j))
        for o in ops:
            if isinstance(o, tuple):
                if o[0] == 'gap': i += o[1]
                elif o[0] == 'from': i = max(i, o[1])
                continue
            ks = self.kinds(o); alone = slot_time(ks)[0]; i0 = i
            while i < last:
                t = self.time(i, ks, c)[0]
                if 'M' in ks or t <= bud(i): break
                if alone > 16 and (t <= alone + 4 or i >= i0 + 3): break
                if i >= i0 + 5 and t <= bud(i) + 4: break
                i += 1
            i = min(i, last)
            self.at(i, o, c); placed.append(i)
        if dry:
            for j in set(placed): self.post[j] = [x for x in self.post[j] if x[2] != c]
        return i
    def fit(self, ops, start, stop):
        cap = 2.0
        while self.fill(ops, start, cap, dry=True) > stop:
            cap += 0.125; assert cap < 30
        return self.fill(ops, start, cap)
    def vmem(self, ops, gap, start=0):
        pend = sorted(ops, key=lambda o: (o['dl'], o['e']))
        t = float(start); lastu = None; lastm = -1
        while pend:
            i = int(t + 0.999)
            av = [o for o in pend if o['e'] <= i]
            if not av:
                t = min(o['e'] for o in pend); continue
            if i + 2 >= len(self.m):
                assert all(o['dl'] >= len(self.m) for o in pend), 'vmem op after the end of the stream'
                return pend
            same = [x for x in av if x['id'] != 'x' and isinstance(x['id'][0], tuple) and x['id'][0] == lastu]
            o = same[0] if same else av[0]; pend.remove(o)
            if o['id'] != 'x': lastu = o['id'][0]
            self.nchain[0] += 1; c = self.nchain[0]
            j = max(i + 1, lastm)
            if gap(i) * o.get('wt', 1) >= 3 and j + 1 <= o['dl'] and self.time(j + 1)[0] < self.time(j)[0]: j += 1
            assert j <= o['dl'], ('vmem op misses its deadline', i, o)
            o['t'] = j
            if o.get('pre'):
                cand = [x for x in (j - 1, j - 2) if x >= max(lastm, o['e'], 0)] or [j]
                self.at(min(cand, key=lambda x: self.time(x, self.kinds(o['pre']))[0]), o['pre'], -c)
            self.at(j, o['main'], -c); lastm = j
            t = max(t, i - 0.999) + max(gap(i) * o.get('wt', 1), 1)
        return []
    def emit(self, a=0, b=None):
        p = self.p
        if p.chains is None: p.chains = {}
        def run(o, c=None):
            a_ = len(p.items)
            p.ins(o) if isinstance(o, str) else o()
            if c is not None:
                for j in range(a_, len(p.items)): p.chains[j] = c
        self.est = []; lastt = 0
        for i in range(a, len(self.m) if b is None else b):
            for o in self.pre.get(i, []):
                if isinstance(o, str) and o.startswith(';@T t'):
                    o += f'e{sum(self.est[lastt:])}'; lastt = i
                run(o)
            p.ins(self.m[i]); a_ = len(p.items)
            for o, _, c in self.post.get(i, []): run(o, c)
            for o in self.end.get(i, []): run(o)
            self.est.append(slot_time(''.join('s' if x[0] == 'wait' else kind(x[1]) for x in p.items[a_:] if x[0] in ('ins', 'vm', 'lg', 'wait') and 'cond' not in str(x[1])))[1])
```

```python
from n3 import *
def k_g12(cfg, nxt=None):
    k = K4(cfg.get('name', 'k3_qkv_kernel')); p, S = k.p, k.S
    sX = k.srd('x', A_X, M * DM * 2); sWS = k.srd('ws', WS, WSZ); sWq = k.srd('wq', A_WQKV, DM * 3072 * 2)
    sWo = k.srd('wo', A_WO, DM * DM * 2); sWm = k.srd('wm', W_MOD, 1024 * 6144 * 2); sC = k.srd('c', IN_C, 2048)
    sWg = k.srd('wg', B_WG, DM * FF * 2); sWu = k.srd('wu', B_WU, DM * FF * 2); sWd = k.srd('wd', B_WD, FF * DM * 2); sOut = k.srd('out', OUT, M * DM * 2)
    sw = S.alloc('w'); sWL = S.alloc('wl'); sTok = k.tok = S.alloc('tok')
    k.common = dict(sWS=sWS, sWg=sWg, sWu=sWu, sWd=sWd, sOut=sOut, sw=sw, sWL=sWL, dead=(sWq, sWo))
    assert sWm == sWo + 4
    sy = S.alloc('y', 3)
    smark = S.next
    sm = S.alloc('mt'); sn = S.alloc('nt'); s0 = S.alloc('t0'); s1 = S.alloc('t1'); s2_ = S.alloc('t2'); sv = S.alloc('vm', 2); scnt = S.alloc('cnt')
    sR = S.alloc('R', 4); sR2 = S.alloc('R2', 4); srot = S.alloc('rot', 2); svw = S.alloc('vw'); sva = S.alloc('va'); sW4 = S.alloc('w4', 2); sHalo = S.alloc('halo'); soo = S.alloc('oo'); sfl = S.alloc('fl', 4); sjo = S.alloc('jo', 2); sy2 = sfl + 2
    mA = S.alloc('mask', 14, 2)
    vl16, trA, vdW, vdO, vdJ, vA, vp, vpb, vkw, vqw, vrd, vvt, vt, vM, ACC, RING, TMP = 1, 3, 9, 10, 11, 12, 13, 15, 17, 18, 19, 20, 21, 24, 28, 76, 116
    wreg = lambda b: A0 + 4 * b if b < 63 else 124 + 4 * (b - 63)
    vl = 0
    rtab = lambda T_, r_=srot: F(f's_and_b32 {sr(s0)}, {sr(sw)}, 1\ns_add_u32 {sr(s0)}, {sr(s0)}, {sr(r_)}') + [x for c in range(4) for x in F(f's_add_u32 {sr(T_+c)}, {sr(s0)}, {2*c}\ns_and_b32 {sr(T_+c)}, {sr(T_+c)}, 7\ns_lshl_b32 {sr(T_+c)}, {sr(T_+c)}, 12')]
    curw = [None, None]
    def dmaw(u, srd, vo_, lo_, c, ld, add, fl=''):
        out = []
        for jq in range(4):
            def pre(jq=jq):
                p.ins(f's_add_u32 m0, {sr(sWL)}, {lo_ + jq * 4096}')
                if jq == 0:
                    curw[0] = u
                    if c is None: p.ins(f's_mov_b32 {sr(svw)}, {add}')
                    else: p.ins(f's_add_u32 {sr(svw)}, {sr(srot + (u[0] == "wo"))}, {c}\ns_and_b32 {sr(svw)}, {sr(svw)}, 7\ns_mul_i32 {sr(svw)}, {sr(svw)}, {128 * ld}' + (f'\ns_add_u32 {sr(svw)}, {sr(svw)}, {add}' if add else ''))
                else: p.ins(f's_add_u32 {sr(svw)}, {sr(svw)}, {32 * ld}')
                assert curw[0] == u
            main = lambda jq=jq: p.vm(f'buffer_load_dwordx4 v{vo_}, {sr(srd,4)}, {sr(svw)} offen {fl} lds'.replace('  ', ' '), ('D', u, jq), w=(lo_ + jq * 4096, lo_ + jq * 4096 + 4096))
            out.append((op(pre, 2 if jq else 4), main))
        return out
    lastm0 = [None]
    def dmaa(u, vo_, lo_, n, sbase, add, swl):
        out = []
        for i in range(n):
            def pre(i=i):
                m = f's_add_u32 m0, {sr(swl)}, {lo_}'
                prev = [x[1] for x in p.items if x[0] == 'ins' and ' m0,' in x[1]]
                if prev[-1] != m: p.ins(m)
                if i == 0: curw[1] = u; p.ins(f's_add_u32 {sr(sva)}, {sr(sbase)}, {add}')
                assert curw[1] == u
            main = lambda i=i: p.vm(f'buffer_load_dwordx4 v{vo_}, {sr(sWS,4)}, {sr(sva)} offen offset:{1024 * i} sc1 lds', ('D', u, i), w=(lo_, lo_ + 4096 * n), grp=u)
            out.append((op(pre, 0 if i else 2), main))
        return out
    DBL = [x for c in range(4) for x in ((('q', 2 * c), ('q', 2 * c + 1)), (('k', 2 * c), ('v', 2 * c)), (('k', 2 * c + 1), ('v', 2 * c + 1)))]
    nf = cfg.get('nf', 6)
    LA1, LA2 = cfg.get('LA1', 20), cfg.get('LA2', 16)
    acc = lambda ps, t, e: ACC + 24 * (ps % 2) + (t * 2 + e) * 4
    acch = lambda t: ACC + 24 + (t * 2) * 4
    acc2 = lambda j, t: 128 + 8 * (j % 2) + 4 * t
    jp = cfg.get('jpos', 358); JS = 10
    jw, jb, ja = TMP, None, None
    def plan(al):
        st = Stream(p); W = WS_(st, [RING + 4 * i for i in range(12)])
        lo = lambda u: al.get(u, 1 if u[0] == 'v' else 0) * 16384
        def U(u, dm, **kw): W.unit(u, lo(u), lo(u) + 16384, dm, **kw)
        for c in range(8):
            for si, sg in enumerate('qkv'):
                u = (sg, c); U(u, dmaw(u, sWq, vdW, lo(u), c, 6144, si * 2048))
            u = ('wo', c); U(u, dmaw(u, sWo, vdO, lo(u), c, 2048, 0, cfg.get('wofl', '')))
        for ps in range(4):
            for c in range(4):
                u = ('a', ps, c); U(u, dmaa(u, vA, lo(u), 4, sR + c, (2 * ps + 1) * 32768, sW4))
                u = ('o', ps, c); U(u, dmaa(u, vdW, lo(u), 4, sR2 + c, 2 * ps * 32768, sW4))
        for hf in range(2):
            u = ('j', hf); U(u, dmaw(u, sWm, vdJ, lo(u), None, 12288, hf * 128 * 12288, MODNT[1]), wt=cfg.get('jwt', 1))
        HB = [QKV + 8192 * c for c in range(4)]
        for c in range(4):
            u = ('h', c); W.unit(u, HB[c], HB[c] + 8192, dmaa(u, vl16, HB[c], 2, sR + c, sr(sHalo), sW4 + 1))
        def trs(us, t_reg, dst, off, s, lr, tag, span=2048, lim=None):
            b = lo(us[0]) // 65536
            for h in range(2):
                while lim and 0 <= s < lim and 'd' in ''.join(x[1] for x in st.post.get(s, [])): s += 1
                o = lo(us[0]) % 65536 + off + 2048 * h
                W.rd(us, s, lr if lr else s + 6, f'ds_read_b64_tr_b16 {vr(dst + 2 * h,2)}, v{t_reg + 3 * b} offset:{o}', tag + (h,), (65536 * b + o, 65536 * b + o + span))
                s += 1
            return s
        def wreads(d, s):
            a_, b_ = DBL[d]
            L = [([u], 0, 4 * u[1] + jj, jj) for u in (a_, b_) for jj in range(4)] if a_[0] == 'q' else [([a_, b_], t, 4 * a_[1] + jj, jj) for jj in range(4) for t in (1, 2)]
            for i, (us, t, j, jj) in enumerate(L):
                s = trs(us, trA + t, wreg(3 * j + t), jj * 4096, s, None, ('w', j, t), 2048 if t == 0 else 2048 + 16384, 10**6)
                if s >= 0: W.units[us[0]]['force'] = ('w', j, t, 1)
        I = dict(P=[], done={})
        for d in range(nf): wreads(d, -10000 + 100 * d)
        def afr(u, off, areg=vl16, span=1024):
            b = lo(u) // 65536
            return (u, areg + b, 65536 * b, lo(u) % 65536 + off, span)
        for ps in range(4):
            I['P'].append(st.n())
            for r_ in range(ACC + 24 * (ps % 2), ACC + 24 * (ps % 2) + 24, 4): st.touched.discard(r_)
            if ps == 1:
                for r_ in (RING + 40, RING + 44): W.until[r_] = st.n()
            for j0 in range(0, 32, 2):
                fr = [afr(('a', ps, j0 // 8), e * 8192 + ((j0 + jj) % 8) * 1024) for e in range(2) for jj in range(2)]
                seq = [(0, 0), (0, 1), (1, 1), (1, 0), (2, 0), (2, 1)]
                if ps == 0:
                    fr += [(('h', j0 // 8), vp, 131072, HB[j0 // 8] - 131072 + ((j0 + jj) % 8) * 1024) for jj in range(2)]
                    seq = [(0, 0), (0, 1), (1, 1), (1, 0), (2, 0), (2, 1), (2, 2), (1, 2)]
                mf = [(acc(ps, t, e) if e < 2 else acch(t), wreg(3 * (j0 + jj) + t), ('f', 2 * e + jj)) for i, (t, e) in enumerate(seq) for jj in ((0, 1) if i % 2 == 0 else (1, 0))]
                W.group(fr, mf, LA1, kind='b', lg=[('w', j0 + jj, t, 1) for jj in range(2) for t in range(3)] if ps == 0 else [])
        T0 = st.n(); I['T0'] = T0
        I['Q'] = []
        for ps in range(4):
            I['Q'].append(st.n())
            for t in range(2): st.touched.discard(acc2(ps, t))
            for j0 in range(0, 32, 2):
                fr = [afr(('o', ps, j0 // 8), ((j0 + jj) % 8) * 1024, vdO2, 1024 + 8192) for jj in range(2)]
                mf = [(acc2(ps, t), wreg(2 * (j0 + jj) + t), ('f', jj)) for t in range(2) for jj in ((0, 1) if t == 0 else (1, 0))]
                W.group(fr, mf, LA2, kind='b', wait=j0 % 4 == 0, lg=[('wo', j0 + jj, t, 1) for jj in range(2) for t in range(2)] if ps == 0 else [])
        for d, s in zip(range(nf, 12), cfg.get('wsl', {8: (0, 44, 92, 140), 6: (0, 44, 76, 108, 140, 188), 7: (0, 44, 92, 140, 182)}.get(nf))):
            assert s + 30 <= 32 * DBL[d][0][1]
            wreads(d, s)
        s = 0
        for c, (s_, dbl) in enumerate(cfg.get('wos', ((24, 0), (53, 0), (84, 1), (84, 1), (115, 1), (115, 1), (145, 1), (145, 1)))):
            s = max(s, s_ + I['P'][3])
            for i in range(8):
                b = 8 * c + i; j, t = divmod(b, 2)
                s = max(s, I['P'][3] + 12 * (b // 6) + 12)
                s = trs([('wo', c)], trA + 1 + t, wreg(b), (j % 4) * 4096, s, None, ('wo', j, t), lim=None if dbl else 10**6)
                if dbl and i % 2: s -= 1
            W.units[('wo', c)]['force'] = ('wo', 4 * c + 3, 1, 1)
        for ks in range(8):
            s = jp + JS * ks
            trs([('j', ks // 4)], trA, TMP + 4 * (ks % 2), (ks % 4) * 4096, s, s + 12, ('jw', ks))
        if nxt:
            for i, (_, ts, g) in enumerate(k.early3):
                u, lo_, hi_, dm = dm3(ts, g); W.unit(u, lo_, hi_, dm); W.units[u].update(fr=st.n() + 10 + i, lr=st.n() + 10 + i)
        W.finish_waits()
        return st, W, I
    k.perm = [[0, 1, 2, 3], [0, 1, 2, 3]]; k.early3 = [(3, ts, g) for ts in range(4) for g in (1, 0)][:cfg.get('ne3', 4)]
    su3, dm3 = g3_early(k, s0, s1, sv, TMP)
    vdO2 = 22
    st, W, I = plan({})
    P, T0 = I['P'], I['T0']
    ab = [P[1] + 24, P[2] + 21, P[3] + 21, T0 + cfg.get('ab3', 8)]
    bars = sorted(set(ab) | set(cfg.get('b0', ((43, 75, 107, 139, 171, 187) if nf == 6 else (43, 91, 139, 181)) + (235, 331, 397, 523, 571, 619))) | {T0 + x for x in cfg.get('b2', (-140, -109, -78, -48, -17, 47, 79, 111, 143, 175, 207))})
    k.bars = bars
    rel = lambda u: min([b_ for b_ in bars if b_ >= W.units[u]['lr']] + [10**6]) + W.units[u]['lr'] * 1e-4
    al = {}; ft = [0] * 8
    for d in range(nf):
        for i, u in enumerate(DBL[d]): al[u] = 2 * (d % 4) + i; ft[al[u]] = -1000 + d
    chk_it = nf - cfg.get('chk', 2)
    front = {}
    rest = sorted((u for u in W.units if u not in al and u[0] not in ('h', 3)), key=lambda u: W.units[u]['fr'])
    for d in range(nf - 3, nf):
        sl = 2 * ((d - 1) % 4)
        if d < chk_it: us = [u for u in rest if u in [x for D_ in DBL for x in D_]][:2]; assert tuple(us) in DBL
        elif d == chk_it: us = [u for u in rest if u[0] == 'a'][:2]
        else: ft[sl] = ft[sl + 1] = -1000; front[d] = []; continue
        for i, u in enumerate(us): al[u] = sl + i; ft[sl + i] = rel(u); rest.remove(u)
        front[d] = us if d < chk_it else [us[0], ('h', 0), us[1], ('h', 1)]
    for u in rest:
        if u in al: continue
        if u[0] == 'k':
            sl = min((0, 1, 2, 4, 5, 6), key=lambda x: max(ft[x], ft[x + 1])); al[('v', u[1])] = sl + 1; ft[sl + 1] = rel(u)
        elif u[0] == 'o' and u[1] >= cfg.get('oforce', 9): sl = ((4, 0, 5, 1), (6, 2, 7, 3))[u[1] % 2][u[2]]
        else: sl = min(range(8), key=lambda x: ft[x])
        if ft[sl] == -1000 and u[0] in 'qka': front[nf - 1] += [u] + ([('v', u[1])] if u[0] == 'k' else [])
        al[u] = sl; ft[sl] = rel(u)
    k.perm = [sorted(range(4), key=lambda x: ft[4 * g + x]) for g in range(2)]
    st, W, I = plan(al)
    if cfg.get('dbg'):
        for u in sorted(W.units, key=lambda u: W.units[u]['fr']): print(u, al.get(u), W.units[u]['fr'], W.units[u]['lr'])
        print(front)
    k.al = al
    P, Q, T0, N = I['P'], I['Q'], I['T0'], st.n()
    def issue(us):
        for u in us:
            for pre, main in W.units[u]['dmas']: pre(); main()
    lt, vx, vf, vq, vjc = 28, 44, 60, 92, 23
    vo, vpo, vsw, vsr, vpw, vmr, vone, vm_, q0 = lt, lt + 1, lt + 2, lt + 3, lt + 4, lt + 5, lt + 6, lt + 7, lt + 8
    sx_, sfm, smp, sho, sms = sWg + 2, sWg + 3, sWu + 2, sWd + 2, sOut + 2
    late = [x for x in k.srds if x[0] in (sWg, sWu, sWd, sOut)]; k.srds = [x for x in k.srds if x not in late]
    if cfg.get('body', 1) == 0: p.ins(';@BODY\n;@FROM')
    p.ins(f'v_lshrrev_b32 v{vt}, 6, v0\nv_and_b32 v0, 63, v0\nv_readfirstlane_b32 {sr(sw)}, v{vt}\nv_lshrrev_b32 v{vt+1}, 3, v{vl}')
    p.ins(f'v_bfe_u32 v{vdJ}, v{vt+1}, 1, 2\nv_bfe_u32 v{vt+2}, v{vl}, 1, 2\nv_xor_b32 v{vdJ}, v{vdJ}, v{vt+2}\nv_lshlrev_b32 v{vdJ}, 5, v{vdJ}\nv_and_b32 v{vt+2}, 1, v{vl}\nv_lshl_add_u32 v{vdJ}, v{vt+2}, 4, v{vdJ}')
    p.ins(f's_lshl_b32 {sr(sWL)}, {sr(sw)}, 10\ns_lshl_b32 {sr(s0)}, {sr(sw)}, 3\nv_add_u32 v{vdO}, {sr(s0)}, v{vt+1}')
    p.ins(f's_and_b32 {sr(s0)}, s2, 7\ns_lshl_b32 {sr(s0)}, {sr(s0)}, 7\nv_add_u32 v{vm_}, {sr(s0)}, v{vdO}\nv_mul_u32_u24 v{vm_}, 12288, v{vm_}\ns_lshr_b32 {sr(s1)}, s2, 3\ns_lshl_b32 {sr(s1)}, {sr(s1)}, 7\nv_add3_u32 v{vm_}, v{vm_}, v{vdJ}, {sr(s1)}')
    p.ins(f's_and_b32 {sr(s1)}, {sr(sw)}, 1\ns_lshl_b32 {sr(s1)}, {sr(s1)}, 6\ns_add_u32 {sr(s0)}, {sr(s0)}, {sr(s1)}\nv_add_lshl_u32 v{vpb+1}, {sr(s0)}, v{vl}, 1')
    m16 = cfg.get('m16')
    if m16: p.ins(f's_and_b32 {sr(sn)}, s2, 7\ns_lshl_b32 {sr(sn)}, {sr(sn)}, 1\ns_bfe_u32 {sr(s0)}, s2, 0x10003\ns_add_u32 {sr(sn)}, {sr(sn)}, {sr(s0)}\ns_lshr_b32 {sr(sm)}, s2, 4')
    else: tilemap(k, 'g1', sm, sn, s0, s1)
    p.ins(f's_lshl_b32 {sr(s2_)}, {sr(sm)}, 4\ns_add_u32 {sr(s2_)}, {sr(s2_)}, {sr(sn)}')
    p.ins(f'v_and_b32 v{vt}, 7, v{vl}\nv_lshlrev_b32 v{vo}, 11, v{vt}\nv_lshl_add_u32 v{vo}, v{vt+1}, 4, v{vo}\nv_mov_b32 v{vpo}, {WS_TOK}')
    p.ins(f's_lshr_b32 {sr(sho)}, {sr(s2_)}, 1\ns_lshl_b32 {sr(sho)}, {sr(sho)}, 15\ns_and_b32 {sr(s1)}, {sr(s2_)}, 1\ns_lshl_b32 {sr(s1)}, {sr(s1)}, 2\ns_add_u32 {sr(s1)}, {sr(s1)}, {sr(sw)}\ns_lshl_b32 {sr(s0)}, {sr(s1)}, 8\ns_add_u32 {sr(sx_)}, {sr(sho)}, {sr(s0)}')
    k.finish_srds()
    p.T('f_k')
    p.vm(f'buffer_load_ushort v{vpb}, v{vpb+1}, {sr(sC,4)}, 0 offen', 'mc')
    for pre, main in dmaw('m', sWm, vm_, QKV, None, 12288, 0, MODNT[0]): pre(); main()
    p.vm(f'buffer_load_dword v{q0}, v{vpo}, {sr(sWS,4)}, 0 offen sc1', 'tok')
    p.ins(f's_and_b32 {sr(s0)}, s2, 3\ns_lshl_b32 {sr(s0)}, {sr(s0)}, 2\ns_add_u32 {sr(s0)}, {sr(s0)}, {sr(sw)}\ns_lshl_b32 {sr(s0)}, {sr(s0)}, 7\nv_lshlrev_b32 v{vjc}, 1, v{vl}')
    p.vm(f'buffer_load_ushort v{vjc}, v{vjc}, {sr(sC,4)}, {sr(s0)} offen', 'jc')
    def xload(oth):
        for rh in range(2):
            if oth and rh == 0: p.ins(f's_xor_b32 {sr(sx_)}, {sr(sx_)}, 1024')
            p.ins(f's_add_u32 {sr(s0)}, {sr(sx_)}, {16384 * rh}')
            for i in range(2):
                p.vm(f'buffer_load_dwordx4 {vr((vq if oth else vx)+8*rh+4*i,4)}, v{vo}, {sr(sX,4)}, {sr(s0)} offen offset:{128*i} {cfg.get("xfl", "nt")}', ('x', oth))
    xload(0)
    if cfg.get('body', 1) == 1: p.ins(';@BODY\n;@FROM')
    p.ins(f'v_lshlrev_b32 v{vl16}, 4, v{vl}\nv_add_u32 v{vl16+1}, 65536, v{vl16}\nv_add_u32 v{vp}, 131072, v{vl16}')
    p.ins(f's_lshl_b32 {sr(srot)}, {sr(sn)}, {2 if m16 else 1}\ns_add_u32 {sr(srot)}, {sr(srot)}, {sr(sm)}' if cfg.get('rot', 1) == 1 else f's_lshl_b32 {sr(srot)}, {sr(sn)}, 2\ns_add_u32 {sr(srot)}, {sr(srot)}, {sr(sm)}' if cfg.get('rot') == 2 else f's_mov_b32 {sr(srot)}, {sr(sm)}')
    p.ins(f'v_mul_u32_u24 v{vdW}, 6144, v{vdO}\ns_lshl_b32 {sr(s0)}, {sr(sn)}, 7\nv_add3_u32 v{vdW}, v{vdW}, v{vdJ}, {sr(s0)}')
    p.ins(f's_lshl_b32 {sr(s0)}, {sr(s1)}, 12\ns_add_u32 {sr(sho)}, {sr(sho)}, {sr(s0)}\ns_add_u32 {sr(sho+1)}, {sr(sho)}, {WS_XA}\ns_add_u32 {sr(sho)}, {sr(sho)}, {WS_H}\ns_lshl_b32 {sr(smp)}, {sr(s1)}, 9\ns_add_u32 {sr(smp)}, {sr(smp)}, {WS_MP8}\ns_lshl_b32 {sr(smp+1)}, {sr(s1)}, 11\ns_add_u32 {sr(smp+1)}, {sr(smp+1)}, {FL_M}')
    early = sorted(W.early, key=lambda x: x[:2])
    avail = [x for d in range(4) for u in DBL[d] for x in W.units[u]['dmas']]; nit = [0]
    def D(n):
        for _ in range(n):
            if avail: pre, main = avail.pop(0); pre(); main()
    def it():
        d = nit[0]; nit[0] += 1
        p.wait(vm=[('D', u, i) for u in DBL[d] for i in range(4)], lg='all'); p.bar()
        if cfg.get('fm'): p.T(f'it{d}')
        for s, _, f in early:
            if -10000 + 100 * d <= s < -10000 + 100 * d + 100: f()
        if d >= 1 and d != chk_it: avail.extend(x for u in (front[d] if d in front else DBL[d + 3]) for x in W.units[u]['dmas'])
    def addr():
        t_ = q0 + 4
        p.ins(f'v_lshrrev_b32 v{t_+1}, 2, v{vl}\nv_bfe_u32 v{t_}, v{t_+1}, 1, 2\nv_lshlrev_b32 v{t_}, 5, v{t_}\nv_lshl_add_u32 v{t_}, v{t_+1}, 7, v{t_}\nv_and_b32 v{t_+1}, 3, v{vl}\nv_lshl_add_u32 v{t_}, v{t_+1}, 3, v{t_}')
        p.ins(f's_lshl_b32 {sr(s0)}, {sr(sw)}, 5\nv_xor_b32 v{trA}, {sr(s0)}, v{t_}\ns_and_b32 {sr(s0)}, {sr(s0)}, 64\ns_and_b32 {sr(s1)}, {sr(sw)}, 1\ns_lshl_b32 {sr(s1)}, {sr(s1)}, 14\ns_add_u32 {sr(s0)}, {sr(s0)}, {sr(s1)}\nv_xor_b32 v{trA+1}, {sr(s0)}, v{t_}\nv_xor_b32 v{trA+2}, 32, v{trA+1}')
        for t in range(3): p.ins(f'v_add_u32 v{trA+3+t}, 65536, v{trA+t}')
        p.ins(f'v_add_u32 v{vm_}, {QKV}, v{trA}')
        p.ins(f'v_lshrrev_b32 v{vsw}, 5, v{vl}\nv_lshlrev_b32 v{vsw}, 6, v{vsw}\nv_bfe_u32 v{t_}, v{vl}, 2, 2\nv_lshl_add_u32 v{vsw}, v{t_}, 4, v{vsw}\nv_bfe_u32 v{t_}, v{vl}, 4, 1\nv_lshl_add_u32 v{vsw}, v{t_}, 3, v{vsw}\nv_lshl_add_u32 v{vsw}, v{t_+1}, 1, v{vsw}\ns_lshl_b32 {sr(s0)}, {sr(sw)}, 7\ns_add_u32 {sr(s0)}, {sr(s0)}, {JT}\nv_add_u32 v{vsw}, {sr(s0)}, v{vsw}')
        p.ins(f'v_lshrrev_b32 v{vpw}, 4, v{vl}\nv_lshlrev_b32 v{vpw}, 4, v{vpw}\nv_add_u32 v{vsr}, {JT}, v{vpw}\nv_and_b32 v{t_}, 15, v{vl}\nv_lshl_add_u32 v{vpw}, v{t_}, 27, v{vpw}')
        p.ins(f's_and_b32 {sr(s0)}, s2, 7\ns_lshl_b32 {sr(s0)}, {sr(s0)}, 13\ns_lshr_b32 {sr(s1)}, s2, 3\ns_lshl_b32 {sr(s1)}, {sr(s1)}, 8\ns_add_u32 {sr(s0)}, {sr(s0)}, {sr(s1)}\ns_lshl_b32 {sr(s1)}, {sr(sw)}, 6\ns_add_u32 {sr(s0)}, {sr(s0)}, {sr(s1)}\ns_add_u32 {sr(sms)}, {sr(s0)}, {WS_MP8}')
        p.ins(f's_lshl_b32 {sr(s1)}, {sr(sw)}, 28\ns_lshl_b32 {sr(sfm)}, s2, 7\ns_add_u32 {sr(sfm)}, {sr(sfm)}, {sr(s1)}\ns_add_u32 {sr(sfm)}, {sr(sfm)}, {FL_M}')
        p.ins(f's_lshl_b32 {sr(sfl)}, {sr(s2_)}, 7\ns_add_u32 {sr(sfl)}, {sr(sfl)}, {sr(s1)}\ns_add_u32 {sr(sfl+1)}, {sr(sfl)}, {FL_H}\ns_add_u32 {sr(sfl)}, {sr(sfl)}, {FL_O}')
    def gemv():
        g_ = vf
        p.wait(vm=['mc'])
        p.ins(f'v_lshlrev_b32 v{vpb}, 16, v{vpb}\nv_mul_f32 v{vpb+1}, {f32(-LOG2E)}, v{vpb}\nv_exp_f32 v{vpb+1}, v{vpb+1}\nv_add_f32 v{vpb+1}, 1.0, v{vpb+1}\nv_rcp_f32 v{vpb+1}, v{vpb+1}\nv_mul_f32 v{vpb}, v{vpb}, v{vpb+1}\nv_cvt_pk_bf16_f32 v{vpb}, v{vpb}, v{vpb}')
        p.lg(f'ds_write_b16 v{vsw}, v{vpb}', None, w=(JT, JT + 512))
        p.wait(vm=[('D', 'm', i) for i in range(4)], lg='all'); p.bar(); p.T('f_m')
        for ks in range(4):
            for h in range(2): p.lg(f'ds_read_b64_tr_b16 {vr(g_+4*ks+2*h,2)}, v{vm_} offset:{4096*ks+2048*h}', None, r=(QKV, QKV + 16384))
            p.lg(f'ds_read_b128 {vr(g_+16+4*ks,4)}, v{vsr} offset:{64*ks}', ('mr', ks), r=(JT, JT + 512))
        p.wait(vm=['tok']); p.ins(f'v_readfirstlane_b32 {sr(sTok)}, v{q0}\ns_add_u32 {sr(sTok)}, {sr(sTok)}, 8')
        for ks in range(4):
            p.wait(lg=[('mr', ks)])
            p.ins(f'{MFMA} {vr(q0+4,4)}, {vr(g_+4*ks,4)}, {vr(g_+16+4*ks,4)}, {vr(q0+4,4) if ks else 0}')
        p.vm(f'buffer_store_dwordx4 {vr(q0+4,4)}, v{vpw}, {sr(sWS,4)}, {sr(sms)} offen sc1', 'ms'); p.T('f_ms')
    def stats():
        p.ins(f's_lshl_b32 {sr(s1)}, {sr(sw)}, 4\nv_lshlrev_b32 v{vsr}, 6, v{vt}\nv_add_u32 v{vsr}, {LS}, v{vsr}\nv_add_u32 v{vsw}, {sr(s1)}, v{vsr}\nv_mov_b32 v{vone}, 0x3f803f80')
        for i in range(4): p.ins(f'v_mov_b32 v{q0+i}, 0')
        for oth in range(2):
            p.wait(vm=[('x', oth)])
            for d in range(8):
                for rh in range(2):
                    x_ = (vq if oth else vx) + 8 * rh + d
                    p.ins(f'v_dot2c_f32_bf16 v{q0+2*rh}, v{x_}, v{vone}\nv_dot2c_f32_bf16 v{q0+2*rh+1}, v{x_}, v{x_}')
        p.ins('s_nop 2')
        for i in range(4): p.ins(f'v_add_f32_dpp v{q0+i}, v{q0+i}, v{q0+i} row_ror:8 row_mask:0xf bank_mask:0xf')
        for sw_ in (16, 32):
            for i in range(4): p.ins(f'v_mov_b32 v{q0+4+i}, v{q0+i}')
            for i in range(4): p.ins(f'v_permlane{sw_}_swap_b32 v{q0+i}, v{q0+4+i}')
            for i in range(4): p.ins(f'v_add_f32 v{q0+i}, v{q0+i}, v{q0+4+i}')
        p.lg(f'ds_write_b128 v{vsw}, {vr(q0,4)}', None, w=(LS, LS + 512))
    def stats2():
        for d in range(16): p.ins(f'v_lshlrev_b32 v{vf+2*d}, 16, v{vx+d}\nv_and_b32 v{vf+2*d+1}, 0xffff0000, v{vx+d}')
        p.wait(lg='all'); p.bar()
        for i in range(4): p.lg(f'ds_read_b128 {vr(vq+4*i,4)}, v{vsr} offset:{16*i}', None, r=(LS, LS + 512))
        for i in range(0, 16, 4): p.ins(f'v_permlane16_swap_b32 v{vx+i}, v{vx+i+2}\nv_permlane16_swap_b32 v{vx+i+1}, v{vx+i+3}')
        t_ = q0
        p.ins(f'v_bfe_u32 v{t_}, v{vl}, 3, 1\nv_lshlrev_b32 v{vo}, 9, v{t_}\nv_bfe_u32 v{t_}, v{vl}, 4, 1\nv_lshl_add_u32 v{vo}, v{t_}, 8, v{vo}\nv_lshrrev_b32 v{vone}, 5, v{vl}\nv_lshl_add_u32 v{vo}, v{vone}, 10, v{vo}\nv_lshl_add_u32 v{vo}, v{vt}, 4, v{vo}')
        p.ins(f'v_and_b32 v{vpo}, 31, v{vl}\nv_lshlrev_b32 v{vpo}, 4, v{vpo}\nv_lshl_add_u32 v{vpo}, v{vone}, 12, v{vpo}\nv_cvt_f32_u32 v{vone}, v{vone}')
        p.ins(f's_add_u32 {sr(s1)}, {sr(sWL)}, {LB}\nv_add_u32 v{vpw}, {sr(s1)}, v{vl16}\nv_lshl_add_u32 v{vmr}, v{vt+1}, 5, {sr(s1)}')
        p.ins(f'v_lshlrev_b32 v{t_}, 14, v{t_}\nv_and_b32 v{vm_}, 15, v{vl}\nv_lshl_add_u32 v{vm_}, v{vm_}, 7, v{t_}')
        p.wait(lg='all')
        for n_ in (8, 4):
            for x in range(n_): p.ins(f'v_add_f32 v{vq+x}, v{vq+x}, v{vq+n_+x}')
        Ls = []
        for rh in range(2):
            m_, v_ = vq + 2 * rh, vq + 2 * rh + 1
            Ls.append(F(f'v_mul_f32 v{m_}, {f32(1/1024)}, v{m_}\nv_mul_f32 v{v_}, {f32(1/1024)}, v{v_}\nv_fma_f32 v{v_}, -v{m_}, v{m_}, v{v_}\nv_max_f32 v{v_}, 0, v{v_}') + rb(v_) + [f'v_add_f32 v{v_}, {f32(1e-5)}, v{v_}'] + rb(v_)
                      + [f'v_sqrt_f32 v{v_}, v{v_}'] + rb(m_) + rb(v_) + F(f'v_rcp_f32 v{v_}, v{v_}\nv_mul_f32 v{m_}, v{m_}, v{v_}'))
        for x, y in zip(*Ls): p.ins(x + '\n' + y)
        for e in range(32): p.ins(f'v_fma_f32 v{vf+e}, v{vf+e}, v{vq+2*(e//16)+1}, -v{vq+2*(e//16)}')
    def xa():
        for i in range(4): p.vm(f'buffer_store_dwordx4 {vr(vx+4*i,4)}, v{vo}, {sr(sWS,4)}, {sr(sho+1)} offen offset:{2048*(i&1)+128*(i>>1)} sc1')
    im, cm = poll_ops(k, sWS, q0, smp + 1, 'plm', scnt, wg=False, va=vm_)
    def mchk():
        p.T('m_a'); cm(); p.T('m_b')
        for q in range(8):
            if q: p.ins(f's_add_u32 {sr(smp)}, {sr(smp)}, 8192')
            p.vm(f'buffer_load_dwordx4 {vr(vq+4*q,4)}, v{vpo}, {sr(sWS,4)}, {sr(smp)} offen sc1', ('part', q))
    def mod():
        for q in range(1, 8):
            p.wait(vm=[('part', q)])
            for i in (0, 2): p.ins(f'v_pk_add_f32 {vr(vq+i,2)}, {vr(vq+i,2)}, {vr(vq+4*q+i,2)}')
        p.T('f_p')
        for rep in range(2):
            p.ins(f'v_cvt_pk_bf16_f32 v{vq+4}, v{vq}, v{vq+1}\nv_cvt_pk_bf16_f32 v{vq+5}, v{vq+2}, v{vq+3}')
            for i in (0, 2): p.ins(f'v_lshlrev_b32 v{vq+i}, 16, v{vq+4+i//2}\nv_and_b32 v{vq+i+1}, 0xffff0000, v{vq+4+i//2}')
            if rep == 0:
                for i in range(4): p.ins(f'v_add_f32 v{vq+i}, v{vone}, v{vq+i}')
        p.lg(f'ds_write_b128 v{vpw}, {vr(vq,4)}', None, w=(LB, LB + 4096), priv=True)
        for i in range(2):
            for h in range(2):
                p.lg(f'ds_read_b128 {vr(vq+8*i+4*h,4)}, v{vmr} offset:{256*i+16*h+512}', None, r=(LB, LB + 4096), priv=True)
                p.lg(f'ds_read_b128 {vr(vq+16+8*i+4*h,4)}, v{vmr} offset:{256*i+16*h}', ('mv', i), r=(LB, LB + 4096), priv=True)
        for i in range(2):
            p.wait(lg=[('mv', i)])
            for rh in range(2):
                f_ = vf + 16 * rh + 8 * i
                for e in range(0, 8, 2): p.ins(f'v_pk_fma_f32 {vr(f_+e,2)}, {vr(f_+e,2)}, {vr(vq+8*i+e,2)}, {vr(vq+16+8*i+e,2)}')
            for rh in range(2):
                f_ = vf + 16 * rh + 8 * i
                for d in range(4): p.ins(f'v_cvt_pk_bf16_f32 v{f_+d}, v{f_+2*d}, v{f_+2*d+1}')
            for rh in range(2):
                f_ = vf + 16 * rh + 8 * i
                p.ins(f'v_permlane16_swap_b32 v{f_}, v{f_+2}\nv_permlane16_swap_b32 v{f_+1}, v{f_+3}')
                p.vm(f'buffer_store_dwordx4 {vr(f_,4)}, v{vo}, {sr(sWS,4)}, {sr(sho)} offen offset:{2048*i+128*rh} sc1', ('hs', 2 * i + rh))
        p.T('f_hs')
    def addr2():
        p.ins(f's_lshl_b32 {sr(s0)}, {sr(sm)}, 18\ns_add_u32 {sr(s0)}, {sr(s0)}, {WS_H - 32768}\ns_max_u32 {sr(sHalo)}, {sr(s0)}, {WS_H}\ns_lshr_b32 {sr(s1)}, {sr(sw)}, 1\ns_lshl_b32 {sr(sW4)}, {sr(s1)}, 15\ns_add_u32 {sr(s0)}, {sr(s0)}, {sr(sW4)}\nv_add_u32 v{vA}, {sr(s0)}, v{vl16}')
        p.ins(f's_lshl_b32 {sr(s1)}, {sr(s1)}, 11\ns_add_u32 {sr(sHalo)}, {sr(sHalo)}, {sr(s1)}\ns_lshl_b32 {sr(sW4)}, {sr(sw)}, 12\ns_and_b32 {sr(s0)}, {sr(sW4)}, 4096\ns_add_u32 {sr(sW4+1)}, {sr(s0)}, {sr(s1)}')
        p.ins('\n'.join(rtab(sR)))
        p.ins(f's_lshl_b32 {sr(s0)}, {sr(sm)}, 4\ns_sub_u32 {sr(s0)}, {sr(s0)}, 2\nv_min_u32 v{vp+1}, 17, v{vl}\nv_add_u32 v{vp+1}, {sr(s0)}, v{vp+1}\nv_max_i32 v{vp+1}, 0, v{vp+1}\nv_lshlrev_b32 v{vp+1}, 7, v{vp+1}\nv_add_u32 v{vp+1}, {FL_H}, v{vp+1}')
    ih, ch = poll_ops(k, sWS, q0, None, 'plh', scnt, va=vp + 1)
    def hchk():
        assert nit[0] == chk_it + 1 and not avail
        p.T('h_a'); ch(); p.T('h_b'); issue(front[chk_it])
    def code():
        p.ins(f's_lshr_b32 {sr(mA+3)}, s2, 3\ns_lshl_b32 {sr(mA+3)}, {sr(mA+3)}, 2\ns_add_u32 {sr(mA+3)}, {sr(mA+3)}, {sr(sw)}\ns_lshl_b32 {sr(mA+3)}, {sr(mA+3)}, 10')
        code_op(k, vM, vl16, mA)
    T = TMP if False else vt
    q_ = lambda l: l & 15
    gg = lambda l: l >> 4
    vccm = lambda m: f's_mov_b32 vcc_lo, 0x{m & 0xffffffff:08x}\ns_mov_b32 vcc_hi, 0x{m >> 32:08x}'
    m64 = lambda s_, m: F(f's_mov_b32 {sr(s_)}, 0x{m & 0xffffffff:08x}\ns_mov_b32 {sr(s_+1)}, 0x{m >> 32:08x}')
    mpa = lanemask(lambda l: not (4 * gg(l) + (l & 1) <= q_(l))); mpb = lanemask(lambda l: not (4 * gg(l) + 2 + (l & 1) <= q_(l)))
    sb, sn2 = sjo + 1, sms + 1
    su = []
    su += F(f's_and_b32 {sr(s0)}, s2, 3\ns_lshl_b32 {sr(s0)}, {sr(s0)}, 8\nv_add_u32 v{q0+4}, {sr(s0)}, v{vdO}\nv_mul_u32_u24 v{q0+4}, 12288, v{q0+4}\ns_lshr_b32 {sr(s1)}, s2, 2\ns_add_u32 {sr(s1)}, {sr(s1)}, 32\ns_lshl_b32 {sr(s1)}, {sr(s1)}, 7')
    su += F(f'v_lshl_add_u32 v{vdO}, v{vdO}, 11, v{vdJ}\nv_add3_u32 v{vdJ}, v{q0+4}, v{vdJ}, {sr(s1)}')
    su += F(f's_and_b32 {sr(s0)}, {sr(sw)}, 1\ns_lshl_b32 {sr(s1)}, {sr(sm)}, 3\ns_add_u32 {sr(s1)}, {sr(s1)}, {sr(s0)}\ns_lshl_b32 {sr(soo)}, {sr(s1)}, 15\ns_lshl_b32 {sr(s1)}, {sr(sn)}, 1\ns_lshr_b32 {sr(scnt)}, {sr(sw)}, 1\ns_add_u32 {sr(s1)}, {sr(s1)}, {sr(scnt)}\ns_lshl_b32 {sr(s1)}, {sr(s1)}, 10\ns_add_u32 {sr(soo)}, {sr(soo)}, {sr(s1)}\ns_add_u32 {sr(soo)}, {sr(soo)}, {WS_O}')
    su += F(f's_mul_i32 {sr(scnt)}, {sr(scnt)}, 3072\ns_add_u32 {sr(scnt)}, {sr(scnt)}, {QKV}\nv_add_u32 v{vrd}, {sr(scnt)}, v{vl16}\ns_lshl_b32 {sr(s1)}, {sr(s0)}, 3\nv_add_u32 v{vqw}, {sr(s1)}, v{vrd}\ns_lshl_b32 {sr(s1)}, {sr(s0)}, 10\nv_add_u32 v{vkw}, {sr(s1)}, v{vrd}')
    su += F(f'v_lshrrev_b32 v{q0+4}, 2, v{vl}\nv_and_b32 v{vvt}, 3, v{vl}\nv_lshl_add_u32 v{q0+4}, v{vvt}, 4, v{q0+4}\nv_lshl_add_u32 v{vvt}, v{q0+4}, 4, {sr(scnt)}')
    for r_ in range(4): su += m64(mA + 2 * r_, lanemask(lambda l: 4 * gg(l) + r_ <= q_(l)))
    su += m64(mA + 8, lanemask(lambda l: l & 1)) + m64(mA + 10, mpa) + m64(mA + 12, mpb)
    su += F(f'v_mov_b32 v{q0+5}, 0xffff\nv_mov_b32 v{vM}, 0xffff0000\nv_cndmask_b32 v{q0+5}, v{q0+5}, v{vM}, {sr(mA+8,2)}\nv_cndmask_b32 v{vM}, 0, v{q0+5}, {sr(mA+10,2)}\nv_cndmask_b32 v{vM+1}, 0, v{q0+5}, {sr(mA+12,2)}\nv_xor_b32 v{vM+2}, v{vM}, v{q0+5}\nv_xor_b32 v{vM+3}, v{vM+1}, v{q0+5}')
    su.append(f's_or_b32 {sr(s0)}, {sr(s0)}, {sr(sm)}\ns_cmp_eq_u32 {sr(s0)}, 0\ns_cselect_b64 {sr(mA+10,2)}, {sr(mA+10,2)}, 0\ns_cselect_b64 {sr(mA+12,2)}, {sr(mA+12,2)}, 0')
    sus = [lambda: p.wait(vm=['jc'])]
    sus += F(f'v_lshlrev_b32 v{vpb}, 16, v{vjc}\nv_mul_f32 v{vpb+1}, {f32(-LOG2E)}, v{vpb}\nv_exp_f32 v{vpb+1}, v{vpb+1}\nv_lshrrev_b32 v{vt}, 5, v{vl}\nv_add_f32 v{vpb+1}, 1.0, v{vpb+1}\nv_rcp_f32 v{vpb+1}, v{vpb+1}\nv_lshlrev_b32 v{vt}, 6, v{vt}\nv_mul_f32 v{vpb}, v{vpb}, v{vpb+1}\nv_cvt_pk_bf16_f32 v{vpb+1}, v{vpb}, v{vpb}')
    sus += F(f'v_bfe_u32 v{vpb}, v{vl}, 2, 2\nv_lshl_add_u32 v{vt}, v{vpb}, 4, v{vt}\nv_bfe_u32 v{vpb}, v{vl}, 4, 1\nv_lshl_add_u32 v{vt}, v{vpb}, 3, v{vt}\nv_and_b32 v{vpb}, 3, v{vl}\nv_lshl_add_u32 v{vt}, v{vpb}, 1, v{vt}\ns_lshl_b32 {sr(s1)}, {sr(sw)}, 7\ns_add_u32 {sr(s1)}, {sr(s1)}, {JT}\nv_add_u32 v{vt}, {sr(s1)}, v{vt}')
    jtp = min(b_ for b_ in bars if b_ >= W.units[('h', 2)]['lr']) + 1
    st.at(jtp, lambda: p.lg(f'ds_write_b16 v{vt}, v{vpb+1}', 'jtw', w=(JT, JT + 512)))
    su2 = F(f's_bfe_u32 {sr(s1)}, s2, 0x30003\ns_lshl_b32 {sr(sn2)}, {sr(s1)}, 1\ns_and_b32 {sr(s0)}, s2, 1\ns_add_u32 {sr(sn2)}, {sr(sn2)}, {sr(s0)}\ns_and_b32 {sr(sb)}, s2, 4\ns_lshr_b32 {sr(s0)}, s2, 6\ns_add_u32 {sr(sb)}, {sr(sb)}, {sr(s0)}\ns_lshl_b32 {sr(sb)}, {sr(sb)}, 1')
    su2 += F(f's_add_u32 {sr(srot+1)}, {sr(sb)}, {sr(s1)}' if cfg.get('rot2', 1) else f's_mov_b32 {sr(srot+1)}, 0') + F(f's_bfe_u32 {sr(s0)}, s2, 0x10001\ns_add_u32 {sr(sb)}, {sr(sb)}, {sr(s0)}') + rtab(sR2, srot + 1)
    su2 += F(f's_lshl_b32 {sr(s0)}, {sr(sn2)}, 7\nv_add_u32 v{vdO}, {sr(s0)}, v{vdO}')
    su2 += F(f's_lshl_b32 {sr(s0)}, {sr(sb)}, 18\ns_lshr_b32 {sr(s1)}, {sr(sw)}, 1\ns_lshl_b32 {sr(s1)}, {sr(s1)}, 15\ns_add_u32 {sr(s1)}, {sr(s0)}, {sr(s1)}\ns_add_u32 {sr(sjo)}, {sr(s1)}, {WS_O}')
    su2v = [f's_mov_b32 {sr(x[0]+2+i)}, {(x[1], 0x20000)[i]}' for x in late for i in range(2)] + [f'v_add_u32 v{vdW}, {sr(sjo)}, v{vl16}'] + [f'v_and_b32 v{trA+t}, 0xffffbfff, v{trA+t}' for t in (1, 2, 4, 5)]
    su2 += F(f's_and_b32 {sr(s1)}, {sr(sw)}, 1')
    su2v += F(f's_lshl_b32 {sr(s0)}, {sr(sw)}, 13\ns_and_b32 {sr(s0)}, {sr(s0)}, 8192\nv_add_u32 v{vdO2}, {sr(s0)}, v{vl16}\nv_add_u32 v{vdO2+1}, {sr(s0)}, v{vl16+1}')
    su2 += F(f's_lshl_b32 {sr(s1)}, {sr(s1)}, 15\ns_add_u32 {sr(s0)}, {sr(s0)}, {sr(s1)}\ns_lshl_b32 {sr(s1)}, {sr(sn2)}, 1\ns_lshr_b32 {sr(scnt)}, {sr(sw)}, 1\ns_add_u32 {sr(s1)}, {sr(s1)}, {sr(scnt)}\ns_lshl_b32 {sr(sy2)}, {sr(s1)}, 7\ns_lshl_b32 {sr(s1)}, {sr(s1)}, 10\ns_add_u32 {sr(sy)}, {sr(s0)}, {sr(s1)}')
    su2 += F(f's_lshr_b32 {sr(s1)}, {sr(s1)}, 1\ns_lshl_b32 {sr(s0)}, {sr(sb)}, 1\ns_and_b32 {sr(scnt)}, {sr(sw)}, 1\ns_add_u32 {sr(s0)}, {sr(s0)}, {sr(scnt)}\ns_lshl_b32 {sr(s0)}, {sr(s0)}, 14\ns_add_u32 {sr(s0)}, {sr(s0)}, {sr(s1)}\ns_add_u32 {sr(sy+1)}, {sr(s0)}, {WS_ST2}')
    su2 += F(f's_lshl_b32 {sr(s0)}, {sr(sb)}, 11\ns_lshl_b32 {sr(s1)}, {sr(sn2)}, 7\ns_add_u32 {sr(s1)}, {sr(s1)}, {sr(s0)}\ns_lshl_b32 {sr(scnt)}, {sr(sw)}, 28\ns_add_u32 {sr(s1)}, {sr(s1)}, {sr(scnt)}\ns_add_u32 {sr(sy+2)}, {sr(s1)}, {FL_Y}')
    su2 += F(f's_add_u32 {sr(sfl+3)}, {sr(s0)}, {FL_O}')
    su2v += F(f'v_and_b32 v{vp+1}, 15, v{vl}\nv_lshlrev_b32 v{vp+1}, 7, v{vp+1}')
    def run(L):
        for o in L: p.ins(o) if isinstance(o, str) else o()
    def tw(i0, n):
        p.ins(f's_add_u32 {sr(s0)}, {sr(sw)}, {i0}\ns_lshr_b32 {sr(s1)}, {sr(s0)}, 1\ns_lshl_b32 {sr(s1)}, {sr(s1)}, 11\ns_and_b32 {sr(s0)}, {sr(s0)}, 1\ns_and_b32 {sr(scnt)}, {sr(sm if cfg.get("rot", 1) != 1 else srot)}, 7\ns_lshl_b32 {sr(scnt)}, {sr(scnt)}, 1\ns_add_u32 {sr(s0)}, {sr(s0)}, {sr(scnt)}\ns_mul_i32 {sr(s0)}, {sr(s0)}, {64 * 6144}\ns_add_u32 {sr(s0)}, {sr(s0)}, {sr(s1)}')
        p.ins(f's_lshl_b32 {sr(s1)}, {sr(sn)}, 7\ns_add_u32 {sr(s0)}, {sr(s0)}, {sr(s1)}\ns_cmp_lt_u32 {sr(sw)}, {n}\ns_cselect_b32 {sr(s0)}, {sr(s0)}, {OOB}\nv_mul_u32_u24 v{vpb+1}, 6144, v{vl}')
        p.vm(f'buffer_load_dword a252, v{vpb+1}, {sr(sWq,4)}, {sr(s0)} offen {cfg.get("tfl", "")}', 'dummy')
    def tw16():
        p.ins(f's_lshl_b32 {sr(s1)}, {sr(sw)}, 11\ns_mul_i32 {sr(s0)}, {sr(sm)}, {64 * 6144}\ns_add_u32 {sr(s0)}, {sr(s0)}, {sr(s1)}\ns_lshl_b32 {sr(s1)}, {sr(sn)}, 7\ns_add_u32 {sr(s0)}, {sr(s0)}, {sr(s1)}\ns_cmp_lt_u32 {sr(sw)}, 3\ns_cselect_b32 {sr(s0)}, {sr(s0)}, {OOB}\nv_mul_u32_u24 v{vpb+1}, 6144, v{vl}')
        p.vm(f'buffer_load_dword a252, v{vpb+1}, {sr(sWq,4)}, {sr(s0)} offen {cfg.get("tfl", "")}', 'dummy')
    def tq(i0, n):
        p.ins(f's_add_u32 {sr(s0)}, {sr(sw)}, {i0}\ns_sub_u32 {sr(s1)}, 5, {sr(s0)}\ns_bitcmp1_b32 s2, 2\ns_cselect_b32 {sr(s0)}, {sr(s1) if cfg.get("trev", 1) else sr(s0)}, {sr(s0)}')
        p.ins(f's_lshr_b32 {sr(s1)}, {sr(s0)}, 1\ns_lshl_b32 {sr(s1)}, {sr(s1)}, 11\ns_and_b32 {sr(s0)}, {sr(s0)}, 1\ns_lshr_b32 {sr(scnt)}, s2, 3\ns_lshl_b32 {sr(scnt)}, {sr(scnt)}, 1\ns_add_u32 {sr(s0)}, {sr(s0)}, {sr(scnt)}\ns_mul_i32 {sr(s0)}, {sr(s0)}, {16 * 6144}\ns_add_u32 {sr(s0)}, {sr(s0)}, {sr(s1)}')
        p.ins(f's_and_b32 {sr(s1)}, s2, 3\ns_lshl_b32 {sr(s1)}, {sr(s1)}, 9\ns_add_u32 {sr(s0)}, {sr(s0)}, {sr(s1)}\ns_cmp_lt_u32 {sr(sw)}, {n}\ns_cselect_b32 {sr(s0)}, {sr(s0)}, {OOB}\nv_lshrrev_b32 v{vpb+1}, 2, v{vl}\nv_mul_u32_u24 v{vpb+1}, {6144 - 512}, v{vpb+1}\nv_lshl_add_u32 v{vpb+1}, v{vl}, 7, v{vpb+1}')
        p.vm(f'buffer_load_dword a252, v{vpb+1}, {sr(sWq,4)}, {sr(s0)} offen', 'dummy')
    def tl():
        p.ins(f's_mul_i32 {sr(s0)}, s2, 3\ns_add_u32 {sr(s0)}, {sr(s0)}, {sr(sw)}\ns_lshl_b32 {sr(s0)}, {sr(s0)}, 13\ns_cmp_lt_u32 {sr(sw)}, 3\ns_cselect_b32 {sr(s0)}, {sr(s0)}, {OOB}\nv_lshlrev_b32 v{vpb+1}, 7, v{vl}')
        p.vm(f'buffer_load_dword a252, v{vpb+1}, {sr(sWq,4)}, {sr(s0)} offen', 'dummy')
    def tlb(sh):
        p.ins(f's_cmp_eq_u32 {sr(sw)}, 1\ns_cselect_b64 {sr(mA,2)}, {sr(sWq,2)}, {sr(sWS,2)}\ns_cselect_b32 {sr(mA+2)}, {sr(sWq+2)}, 0x5000000\ns_cmp_eq_u32 {sr(sw)}, 2\ns_cselect_b64 {sr(mA,2)}, {sr(sWo,2)}, {sr(mA,2)}\ns_cselect_b32 {sr(mA+2)}, {sr(sWo+2)}, {sr(mA+2)}')
        p.ins(f's_cmp_eq_u32 {sr(sw)}, 3\ns_cselect_b64 {sr(mA,2)}, {sr(sWg,2)}, {sr(mA,2)}\ns_cselect_b32 {sr(mA+2)}, {DM * FF * 2}, {sr(mA+2)}\ns_mov_b32 {sr(mA+3)}, 0x20000\nv_lshlrev_b32 v{vpb+1}, 21, v{vl}')
        p.ins(f's_lshr_b32 {sr(s0)}, s2, 3\ns_lshl_b32 {sr(s0)}, {sr(s0)}, {sh}')
        p.vm(f'buffer_load_dword a252, v{vpb+1}, {sr(mA,4)}, {sr(s0)} offen', 'dummy')
    assert mA % 4 == 0
    steps = dict(tlb=lambda: tlb(16), tlb0=lambda: tlb(7), tqa=lambda: tq(0, 2), tqb=lambda: tq(2, 4), tqc=lambda: tq(0, 3), tqd=lambda: tq(3, 3), tl=tl, tw=tw16, sus=lambda: run(sus), su=lambda: run(su), su2=lambda: run(su2), twa=lambda: tw(0, 2), twb=lambda: tw(2, 4), twc=lambda: tw(0, 4), twd=lambda: tw(4, 2), stats2=stats2, x1=lambda: xload(1), addr=addr, gemv=gemv, stats=stats, xa=xa, mpoll=im, mchk=mchk, mod=mod, addr2=addr2, hpoll=ih, hchk=hchk, it=it, code=code,
                 warm=lambda: p.ins(f';@WARM {sr(sw)} 0 4'),
                 mpub=lambda: (pub_op(k, sWS, vpb, sfm, ['ms'])(), p.T('m_pub')),
                 hpub=lambda: (pub_op(k, sWS, vpb, sfl + 1, [('hs', i) for i in range(4)])(), p.T('h_pub')))
    for x in cfg.get('script', 'code addr addr2 su su2 gemv x1 tqc mpub tqd stats stats2 sus warm mpoll mchk D8 mod xa D8 hpub it+8 D8 it+8 it+8 hpoll it+8 it hchk it+8').split():
        if x[0] == 'D': D(int(x[1:]))
        elif '+' in x:
            nm, n_ = x.split('+'); a_ = len(p.items); steps[nm](); body = p.items[a_:]; del p.items[a_:]
            def scc_dead(i):
                for y in body[i:]:
                    if y[0] == 'label': return False
                    if y[0] != 'ins': continue
                    o_ = y[1].split()[0]
                    if o_.startswith(('s_cselect', 's_cbranch', 's_addc')) or 'exec' in y[1]: return False
                    if o_.startswith('s_') and not o_.startswith(('s_mov', 's_mul', 's_wait', 's_barrier', 's_nop')): return True
                return True
            first_ = max([i + 1 for i, y in enumerate(body) if y == ('ins', 's_barrier')] + [0]) if nm == 'it' else 0
            n_ = int(n_); done_ = 0
            for i, y in enumerate(body):
                if i >= first_ and done_ < n_ and (i - first_) * n_ >= done_ * (len(body) - first_) and scc_dead(i): D(1); done_ += 1
                p.items.append(y)
            D(n_ - done_)
        else: steps[x]()
    assert nit[0] == nf and not avail
    first = [u for u in W.units if -100 < W.units[u]['fr'] <= bars[0]]
    for u in first: W.units[u]['vis'] = True
    pre_done = [u for d in front for u in front[d]]
    assert all(u in pre_done for u in first), first
    su2_beg = cfg.get('su2', 222)
    for hf in range(2): W.units[('j', hf)]['e'] = cfg.get('je', (150, 250))[hf]
    PD = cfg.get('pd', 35)
    pls = [T0 + x for x in cfg.get('plo', (-150, 5, 105))]
    for i, s in enumerate(pls):
        i_, c_ = poll_ops(k, sWS, vp, sfl + 3, ('plo', i), scnt, cmp=f'v_subrev_u32 v{vp}, {sr(sTok)}, v{vp}\nv_subrev_u32 v{vp}, {i + 1}, v{vp}\nv_cmp_lt_u32 vcc, 3, v{vp}')
        st.at(s, i_); st.at(s + PD, f';@T o{i}a'); st.at(s + PD, c_); st.at(s + PD, f';@T o{i}b')
    for ps in range(4):
        for c in range(4): W.units[('o', ps, c)]['e'] = pls[max(ps - 1, 0)] + PD + 1
    su3_beg = P[2] + cfg.get('su3', 110); su3_end = P[3]
    for u in W.units:
        if u[0] == 3: W.units[u]['e'] = max(su3_end, T0 + cfg.get('w3e', 150))
    ops = W.dma_ops(bars, pre_done)
    extra = []
    def X(e, dl, main, pre=None, wt=1): extra.append(dict(e=e, dl=dl, main=main, pre=pre, id='x', wt=wt))
    vxa, vg, vc2, vone2, vst, vgo, f2, d2, Y2, D1 = 144, 160, 168, 176, 180, 181, 184, 192, 196, 224
    tj = T0 - cfg.get('tj', 20)
    tx = T0 + cfg.get('tx', -10)
    ij, cj = poll4_ops(k, sWS, TMP, vt, 'plj', scnt)
    st.at(tj - 62, f'v_lshlrev_b32 v{vt}, 7, v{vl}\nv_add_u32 v{vt}, {FL_J}, v{vt}'); st.at(tj - 60, ij); st.at(tj - 60 + PD, cj)
    st.at(tj - 58 + PD, op(lambda: (p.ins(f's_or_b32 {sr(scnt)}, s2, {sr(sw)}\ns_mov_b32 {sr(scnt)}, {WS_TOK}\ns_cselect_b32 {sr(scnt)}, {OOB}, {sr(scnt)}'), pub_op(k, sWS, vpb, scnt, [])()), 7))
    st.at(tj - 1, f'v_and_b32 v{vt}, 31, v{vl}\nv_lshlrev_b32 v{vt}, 2, v{vt}\nv_lshrrev_b32 v{vgo}, 5, v{vl}\nv_lshl_add_u32 v{vt}, v{vgo}, 13, v{vt}')
    for q in range(NPART):
        pre = op(lambda q=q: p.ins(f's_add_u32 {sr(sv+1)}, {sr(sy2)}, {6144 * 4 * q + 2 * 4096}'), 1)
        X(tx, tx + 30, lambda q=q: p.vm(f'buffer_load_dword v{vg+q}, v{vt}, {sr(sWS,4)}, {sr(sv+1)} offen sc1', ('g', q)), pre, 0.5)
    assert tj > pls[0] + PD
    for j in range(4):
        pre = op(lambda j=j: p.ins(f's_add_u32 {sr(sv+1)}, {sr(sy)}, {WS_XA + 65536 * j}'), 1)
        X(tx, tx + 30, lambda j=j: p.vm(f'buffer_load_dwordx4 {vr(vxa+4*j,4)}, v{vl16}, {sr(sWS,4)}, {sr(sv+1)} offen sc1', ('xa', j)), pre, 0.6)
    vtb = k.vtb = 212
    st.at(T0 + 2, f's_lshr_b32 {sr(sjo+1)}, s2, 6\ns_lshl_b32 {sr(sjo+1)}, {sr(sjo+1)}, 2\ns_add_u32 {sr(sjo+1)}, {sr(sjo+1)}, {sr(sw)}\ns_lshl_b32 {sr(sjo+1)}, {sr(sjo+1)}, 8')
    st.at(T0 + 60, f'v_lshrrev_b32 v{vtb+8}, 5, v{vl}\nv_xor_b32 v{vtb+8}, 1, v{vtb+8}\nv_lshlrev_b32 v{vtb+8}, 12, v{vtb+8}')
    st.at(T0 + 62, f'v_and_b32 v{vtb+9}, 31, v{vl}\nv_lshl_add_u32 v{vtb+8}, v{vtb+9}, 3, v{vtb+8}')
    for q in range(NPART):
        pre = op(lambda q=q: p.ins(f's_add_u32 {sr(sv+1)}, {sr(sjo+1)}, {6144 * 4 * q + 3 * 4096}'), 1)
        X(T0 + cfg.get('tt', 190), T0 + cfg.get('tt', 190) + 60, lambda q=q: p.vm(f'buffer_load_dwordx2 {vr(vtb+2*q,2)}, v{vtb+8}, {sr(sWS,4)}, {sr(sv+1)} offen sc1', ('tb', q)), pre, 0.5)
    def touch_op(kind, j, nsel):
        def f():
            L = k.lab('TP')
            p.ins(f's_lshr_b32 {sr(scnt)}, s2, 3\ns_add_u32 {sr(scnt)}, {sr(scnt)}, s2\ns_and_b32 {sr(scnt)}, {sr(scnt)}, {nsel - 1}\ns_cmp_lg_u32 {sr(scnt)}, {j}\ns_cbranch_scc1 {L}')
            ld, srd = {'wo': (2048, sWo), 'wg': (7168, sWg), 'wu': (7168, sWu)}[kind]
            p.ins(f's_lshr_b32 {sr(scnt)}, s2, 3\ns_lshl_b32 {sr(scnt)}, {sr(scnt)}, 2\ns_add_u32 {sr(scnt)}, {sr(scnt)}, {sr(sw)}\ns_mul_i32 {sr(scnt)}, {sr(scnt)}, {8 * ld}')
            p.ins(f's_and_b32 vcc_lo, s2, {1 if kind == "wo" else 7}\ns_mul_i32 vcc_lo, vcc_lo, {1024 if kind == "wo" else 896}\ns_add_u32 {sr(scnt)}, {sr(scnt)}, vcc_lo')
            p.ins(f'v_lshrrev_b32 v{vpb}, 3, v{vl}\nv_mul_u32_u24 v{vpb}, {ld - 1024}, v{vpb}\nv_lshl_add_u32 v{vpb}, v{vl}, 7, v{vpb}')
            if kind != 'wo': p.ins('s_mov_b32 exec_lo, 0x7f7f7f7f\ns_mov_b32 exec_hi, 0x7f7f7f7f')
            p.ins(f'buffer_load_dword a253, v{vpb}, {sr(srd,4)}, {sr(scnt)} offen ; cond')
            if kind != 'wo': p.ins('s_mov_b64 exec, -1')
            p.label(L)
        return op(f, 6)
    def head_op():
        L = k.lab('TH')
        p.ins(f's_cmp_gt_u32 {sr(sw)}, 1\ns_cbranch_scc1 {L}\ns_cmp_eq_u32 {sr(sw)}, 0\ns_cselect_b64 {sr(sX,2)}, {sr(sWg,2)}, {sr(sWu,2)}')
        p.ins(f's_lshr_b32 {sr(scnt)}, s2, 3\ns_mul_i32 {sr(scnt)}, {sr(scnt)}, {8 * 7168}\ns_and_b32 vcc_lo, s2, 7\ns_mul_i32 vcc_lo, vcc_lo, 896\ns_add_u32 {sr(scnt)}, {sr(scnt)}, vcc_lo')
        p.ins(f'v_lshrrev_b32 v{vpb}, 3, v{vl}\nv_mul_u32_u24 v{vpb}, {7168 - 1024}, v{vpb}\nv_lshl_add_u32 v{vpb}, v{vl}, 7, v{vpb}\ns_mov_b32 exec_lo, 0x7f7f7f7f\ns_mov_b32 exec_hi, 0x7f7f7f7f')
        p.ins(f'buffer_load_dword a253, v{vpb}, {sr(sX,4)}, {sr(scnt)} offen {cfg.get("hfl", "")} ; cond\ns_mov_b64 exec, -1')
        p.label(L)
    if cfg.get('hd', 530): st.at(cfg.get('hd', 530), op(head_op, 6))
    for kind, pos in cfg.get('tp', {}).items():
        for j, s in enumerate(pos): st.at(s, touch_op(kind, j, len(pos)))
    gp = cfg.get('gaps', (4, 5, 3.5, 3, 1.5, 6))
    left = st.vmem(ops + extra, lambda i: gp[0] if i < P[1] else gp[1] if i < P[3] - 60 else gp[2] if i < T0 else gp[3] if i < pls[2] + PD else gp[4] if i < pls[2] + PD + 16 * gp[4] else gp[5])
    k.left = left
    k.vops = [o for o in ops if 't' in o]
    lastw = max(o['t'] for o in ops if o['id'][0][0] in ('q', 'k', 'v', 'h'))
    assert lastw + 1 < su2_beg and max(U_['lr'] for u, U_ in W.units.items() if u[0] in ('k', 'v')) < su2_beg, lastw
    W.bw[min(b_ for b_ in bars if b_ > jtp)].append(('lg', 'jtw'))
    e_ = st.fill(su2v, su2_beg); assert e_ < P[1]
    SC = (32 ** -0.5) * LOG2E
    mf_ = lambda d, a_, b_, c='0': op(lambda: p.ins(f'{MFMA} {vr(d,4)}, {vr(a_,4)}, {vr(b_,4)}, {c}'), 'M')
    for ps in range(4):
        s0_ = (P + [T0])[ps + 1]; L = []; tags = []
        for e in ((0, 1, 2) if ps == 0 else (0, 1)):
            sl = ((2 * ps + e + 1) % 3 if e < 2 else 0) * 6144
            c1, c2 = (acc(ps, 1, e), acc(ps, 2, e)) if e < 2 else (acch(1), acch(2))
            X_ = F(f'v_cvt_pk_bf16_f32 v{c1}, v{c1}, v{c1+1}\nv_cvt_pk_bf16_f32 v{c1+1}, v{c1+2}, v{c1+3}\nv_cvt_pk_bf16_f32 v{c1+2}, v{c2}, v{c2+1}\nv_cvt_pk_bf16_f32 v{c1+3}, v{c2+2}, v{c2+3}')
            X_.append(lambda c1=c1, sl=sl, t=('kw', ps, e): p.lg(f'ds_write_b128 v{vkw}, {vr(c1,4)} offset:{sl+1024}', t, w=(QKV + sl + 1024, QKV + sl + 1025)))
            tags.append(('kw', ps, e))
            if e < 2:
                c0 = acc(ps, 0, e)
                X_ = F(f'v_cvt_pk_bf16_f32 v{c0}, v{c0}, v{c0+1}\nv_cvt_pk_bf16_f32 v{c0+1}, v{c0+2}, v{c0+3}') + [lambda c0=c0, sl=sl: p.lg(f'ds_write_b64 v{vqw}, {vr(c0,2)} offset:{sl}', None, w=(QKV + sl, QKV + sl + 1))] + X_
                L += X_
            else: LH = X_
        if ps == 0:
            for o in LH: st.at(s0_ + 2, o)
        cur = [((2 * ps + e + 1) % 3) * 6144 for e in range(2)]; prv = [((2 * ps + e) % 3) * 6144 for e in range(2)]
        B = ACC + 24 * (ps % 2); vQ, vK, vV, w_, vS = B, B + 4, B + 12, B + 20, TMP
        L.append(f's_bitcmp1_b32 {sr(sw)}, 0\ns_mov_b32 {sr(s0)}, {cur[0]}\ns_cselect_b32 {sr(s0)}, {cur[1]}, {sr(s0)}\ns_mov_b32 {sr(s1)}, {prv[0]}\ns_cselect_b32 {sr(s1)}, {prv[1]}, {sr(s1)}')
        L += F(f'v_add_u32 v{vS}, {sr(s0)}, v{vrd}\nv_add_u32 v{vS+1}, {sr(s1)}, v{vrd}\nv_add_u32 v{vS+2}, {sr(s0)}, v{vvt}\nv_add_u32 v{vS+3}, {sr(s1)}, v{vvt}')
        e_ = st.fit(L, s0_ + 3, ab[ps])
        W.bw[ab[ps]] += [('lg', t) for t in tags]
        R_ = (QKV, QKV + 18432)
        L = [lambda vQ=vQ, vS=vS: p.lg(f'ds_read_b128 {vr(vQ,4)}, v{vS}', None, r=R_),
             lambda vK=vK, vS=vS: p.lg(f'ds_read_b128 {vr(vK,4)}, v{vS+1} offset:1024', None, r=R_),
             lambda vK=vK, vS=vS, ps=ps: p.lg(f'ds_read_b128 {vr(vK+4,4)}, v{vS} offset:1024', ('K', ps), r=R_)]
        for d in range(2):
            for h in range(2):
                L.append(lambda d=d, h=h, vV=vV, vS=vS, ps=ps: p.lg(f'ds_read_b64_tr_b16 {vr(vV+4*d+2*h,2)}, v{vS+3-h} offset:{2048+8*d}', ('V', ps), r=R_))
        L += [('gap', 5), lambda ps=ps: p.wait(lg=[('K', ps), ('V', ps)]), mf_(vS, vK, vQ), mf_(vS + 4, vK + 4, vQ), ('gap', 4)]
        L += [f'v_cndmask_b32 v{w_+r_}, v{vS+r_}, v{vS+4+r_}, {sr(mA+2*r_,2)}' for r_ in range(4)]
        L += F(f'v_cndmask_b32 v{w_}, v{w_}, v{w_+1}, {sr(mA+8,2)}\nv_cndmask_b32 v{w_+1}, v{w_+2}, v{w_+3}, {sr(mA+8,2)}\nv_mul_f32 v{w_}, {f32(SC)}, v{w_}\nv_mul_f32 v{w_+1}, {f32(SC)}, v{w_+1}')
        if ps == 0: L += F(f'v_mov_b32 v{w_+2}, {f32(-1e9)}\nv_cndmask_b32 v{w_}, v{w_}, v{w_+2}, {sr(mA+10,2)}\nv_cndmask_b32 v{w_+1}, v{w_+1}, v{w_+2}, {sr(mA+12,2)}')
        def xred(o_):
            R2 = []
            for sw_ in (16, 32): R2 += [f'v_mov_b32 v{w_+3}, v{w_+2}', ('gap', 1), f'v_permlane{sw_}_swap_b32 v{w_+2}, v{w_+3}', f'{o_} v{w_+2}, v{w_+2}, v{w_+3}']
            return R2
        L += [f'v_max_f32 v{w_+2}, v{w_}, v{w_+1}'] + xred('v_max_f32')
        L += F(f'v_sub_f32 v{w_}, v{w_}, v{w_+2}\nv_sub_f32 v{w_+1}, v{w_+1}, v{w_+2}\nv_exp_f32 v{w_}, v{w_}\nv_exp_f32 v{w_+1}, v{w_+1}') + [('gap', 1), f'v_add_f32 v{w_+2}, v{w_}, v{w_+1}'] + xred('v_add_f32')
        L += [f'v_rcp_f32 v{w_+2}, v{w_+2}', ('gap', 1)] + F(f'v_mul_f32 v{w_}, v{w_}, v{w_+2}\nv_mul_f32 v{w_+1}, v{w_+1}, v{w_+2}\nv_cvt_pk_bf16_f32 v{w_}, v{w_}, v{w_}\nv_cvt_pk_bf16_f32 v{w_+1}, v{w_+1}, v{w_+1}')
        L += [f'v_and_b32 v{vQ+i}, v{vM+i}, v{w_+(i&1)}' for i in range(4)] + [('gap', 1), mf_(vK, vV, vQ), mf_(vK + 4, vV + 4, vQ), ('gap', 4)]
        L += [f'v_cvt_pk_bf16_f32 v{vS+i}, v{vK+2*i}, v{vK+2*i+1}' for i in range(4)]
        L.append(lambda vS=vS, ps=ps: p.vm(f'buffer_store_dwordx4 {vr(vS,4)}, v{vl16}, {sr(sWS,4)}, {sr(soo)} offen sc1', ('os', ps)))
        L.append(f's_add_u32 {sr(soo)}, {sr(soo)}, 65536')
        e_ = st.fill(L, ab[ps] + 1, cap=cfg.get('acap', (2, 2, 3, 7))[ps])
        I[('ae', ps)] = e_
        if ps: st.at(e_ + cfg.get('opub', (0, 70, 45, 28))[ps], pub_op(k, sWS, vpb, sfl, [('os', ps)], add=ps))
    assert I[('ae', 0)] + 2 < jp and jp + 7 * JS + 18 < P[2] or I[('ae', 1)] + 2 < jp and jp + 7 * JS + 18 < P[3], (I, jp)
    assert I[('ae', 2)] + 2 < tj - 62, (I, tj)
    JB = ACC + 24 * (0 if jp < P[2] else 1)
    st.at(jp - 2, f'v_lshrrev_b32 v{JB+12}, 4, v{vl}\nv_lshlrev_b32 v{JB+12}, 4, v{JB+12}')
    st.at(jp - 1, f'v_add_u32 v{JB+13}, {JT}, v{JB+12}')
    for ks in range(8):
        s = jp + JS * ks
        st.at(s + 2, lambda ks=ks: p.lg(f'ds_read_b128 {vr(JB+4*(ks%2),4)}, v{JB+13} offset:{64*ks}', ('jb', ks), r=(JT, JT + 512)))
        st.at(s + 11, lambda ks=ks: (p.wait(lg=[('jb', ks)]), p.ins(f'{MFMA} {vr(JB+8,4)}, {vr(TMP+4*(ks%2),4)}, {vr(JB+4*(ks%2),4)}, {vr(JB+8,4) if ks else 0}')))
    L = F(f'v_and_b32 v{JB+14}, 15, v{vl}\nv_lshl_add_u32 v{JB+12}, v{JB+14}, 27, v{JB+12}')
    L += F(f's_lshr_b32 {sr(s0)}, s2, 2\ns_lshl_b32 {sr(s2_)}, {sr(s0)}, 7\ns_lshl_b32 {sr(s0)}, {sr(s0)}, 8\ns_and_b32 {sr(s1)}, s2, 3\ns_mul_i32 {sr(sjo+1)}, {sr(s1)}, {6144*4}\ns_add_u32 {sr(s0)}, {sr(s0)}, {sr(sjo+1)}\ns_lshl_b32 {sr(sjo+1)}, {sr(sw)}, 6\ns_add_u32 {sr(s0)}, {sr(s0)}, {sr(sjo+1)}\ns_add_u32 {sr(s0)}, {sr(s0)}, {32*256}')
    L += F(f's_lshl_b32 {sr(s1)}, {sr(s1)}, 2\ns_add_u32 {sr(s2_)}, {sr(s2_)}, {sr(s1)}\ns_add_u32 {sr(s2_)}, {sr(s2_)}, {FL_J}')
    L.append(f's_cmp_eq_u32 {sr(sw)}, 0\ns_cselect_b32 {sr(sjo+1)}, {sr(s2_)}, {OOB}')
    L += [('from', jp + 7 * JS + 15), lambda: p.vm(f'buffer_store_dwordx4 {vr(JB+8,4)}, v{JB+12}, {sr(sWS,4)}, {sr(s0)} offen sc1', 'js')]
    e_ = st.fill(L, jp + 20)
    jbar = min(b_ for b_ in bars if b_ > e_ + 50)
    W.bw[jbar].append('js'); st.at(jbar + 1, pub_op(k, sWS, vpb, sjo + 1, []))
    L = [lambda: p.wait(vm=[('g', q) for q in range(NPART)])]
    L += F(f'v_add_f32 v{vg}, v{vg}, v{vg+1}\nv_add_f32 v{vg+2}, v{vg+2}, v{vg+3}\nv_add_f32 v{vg}, v{vg}, v{vg+2}') + rb(vg) + F(f'v_cvt_f32_u32 v{vgo}, v{vgo}\nv_add_f32 v{vg}, v{vg}, v{vgo}') + rb(vg)
    L += F(f's_lshl_b32 {sr(s2_)}, {sr(sw)}, 8\ns_add_u32 {sr(s2_)}, {sr(s2_)}, {GL2}\nv_lshl_add_u32 v{vst}, v{vl}, 2, {sr(s2_)}\nv_lshrrev_b32 v{vg+1}, 4, v{vl}\nv_lshl_add_u32 v{vgo}, v{vg+1}, 4, {sr(s2_)}')
    L.append(lambda: p.lg(f'ds_write_b32 v{vst}, v{vg}', None, w=(GL2, GL2 + 1024), priv=True))
    L += F(f'v_bfe_u32 v{vst}, v{vl}, 2, 2\nv_xor_b32 v{vst}, v{vst}, v{vg+1}\nv_lshlrev_b32 v{vst}, 27, v{vst}\nv_and_b32 v{vg+2}, 15, v{vl}\nv_lshl_add_u32 v{vst}, v{vg+2}, 4, v{vst}')
    L += F(f's_and_b32 {sr(s2_)}, {sr(sw)}, 1\ns_lshl_b32 {sr(s2_)}, {sr(s2_)}, 11\nv_add_u32 v{vst+2}, {sr(s2_)}, v{vl16}\ns_and_b32 {sr(s2_)}, {sr(sw)}, 2\ns_lshl_b32 {sr(s2_)}, {sr(s2_)}, 9\ns_add_u32 {sr(s2_)}, {sr(s2_)}, {XST}\nv_add_u32 v{vst+2}, {sr(s2_)}, v{vst+2}')
    L += [lambda i=i: p.lg(f'ds_read_b128 {vr(vg+4*i,4)}, v{vgo} offset:{64*i}', ('gl', i), r=(GL2, GL2 + 1024), priv=True) for i in range(4)]
    L += [f'v_mov_b32 v{vone2+i}, 0x3f803f80' for i in range(4)] + m64(mA + 10, lanemask(lambda l: l & 2))
    e_ = st.fill(L, max(tx + 50, I[('ae', 3)] + 1), cap=3); assert e_ < Q[1] + 25, e_
    dst_ = []
    def epi2(j):
        xa = vxa + 4 * j; y2 = Y2 + 4 * j; d1 = D1 + 2 * j
        ST = (lambda o: L.append(o)) if j == 3 or not cfg.get('defer', 0) else dst_.append
        L = [lambda: p.wait(vm=[('xa', j)], lg=[('gl', 3)])]
        for i in range(4): L += F(f'v_lshlrev_b32 v{f2+2*i}, 16, v{xa+i}\nv_and_b32 v{f2+2*i+1}, 0xffff0000, v{xa+i}')
        L.append(('from', (Q + [N])[j + 1] + 2))
        L += [f'v_fmac_f32 v{f2+i}, v{vg+i}, v{acc2(j,0)+i}' for i in range(8)]
        a2 = acc2(j, 0)
        L += [f'v_mul_f32 v{a2+i}, v{f2+i}, v{vc2+i}' for i in range(8)]
        L += [f'v_cvt_pk_bf16_f32 v{y2+i}, v{a2+2*i}, v{a2+2*i+1}' for i in range(4)]
        ST(op(lambda: (p.ins(f's_add_u32 {sr(s2_)}, {sr(sy)}, {WS_Y + 65536 * j}'), p.vm(f'buffer_store_dwordx4 {vr(y2,4)}, v{vl16}, {sr(sWS,4)}, {sr(s2_)} offen sc1', ('ys', j, 0))), 'sW'))
        L += [f'v_cvt_pk_bf16_f32 v{xa+i}, v{f2+2*i}, v{f2+2*i+1}' for i in range(4)] + [('gap', 1), mf_(d1, vone2, xa), mf_(d2, xa, xa), ('gap', 3)]
        L += F(f'v_cndmask_b32 v{d2}, v{d2}, v{d2+1}, {sr(mA+8,2)}\nv_cndmask_b32 v{d2+2}, v{d2+2}, v{d2+3}, {sr(mA+8,2)}\nv_cndmask_b32 v{d1+1}, v{d2}, v{d2+2}, {sr(mA+10,2)}')
        if j & 1: L.append(lambda: p.vm(f'buffer_store_dwordx4 {vr(d1-2,4)}, v{vst}, {sr(sWS,4)}, {sr(sy+1)} offen offset:{256*(j//2)} sc1', 'y2'))
        k.stash = getattr(k, 'stash', []) + [lambda: p.lg(f'ds_write_b128 v{vst+2}, {vr(xa,4)} offset:{4096*j}', None, w=(XST + 4096 * j, XST + 4096 * j + 4096))]
        return L
    for j in range(3):
        e_ = st.fill(epi2(j), max(e_ + 1, Q[j + 1] - 12), cap=cfg.get('ecap', (3, 3, 3))[j]); assert e_ < (Q + [N])[j + 2] - (10 if j == 2 else 0), (j, e_)
    e3 = st.fill(su3, su3_beg); assert e3 < su3_end and su3_beg > I[('ae', 1)] + 2, e3
    d0, dstp = cfg.get('dst', (-8, 4))
    for i, o in enumerate(dst_): st.at(max(Q[3] + d0 + dstp * i, e_ + 1 if i >= 2 else 0), o)
    L3 = epi2(3); st.fill(L3[:9], max(e_ + 1, N - 20))
    p.wait(vm=[('D', u, i) for u in first for i in range(len(W.units[u]['dmas']))], lg='all'); p.bar()
    for s, _, f in early:
        if s > -100: f()
    for i, nm in tuple(cfg.get('marks', ())) + ((1, 'g1_m1'), (P[1], 'g1_p1'), (P[2], 'g1_p2'), (P[3], 'g1_p3'), (T0, 'g2_q0'), (Q[1], 'g2_q1'), (Q[2], 'g2_q2'), (Q[3], 'g2_q3')):
        st.pre.setdefault(i, []).insert(0, f';@T {nm}')
    st.emit()
    p.T('g2_end')
    for o in L3[10:]:
        if not isinstance(o, tuple): p.ins(o) if isinstance(o, str) else o()
    k.st = st; k.I = I
    if nxt:
        k.ypub = pub_op(k, sWS, vpb, sy + 2, [('ys', j, 0) for j in range(4)] + ['y2'])
        k.st1 = st; k.vops1 = k.vops; k.bars1 = bars
        S.next = smark
        return nxt(k)
    k.end()
    return k
```

```python
from kernels import *
from eng import *
LN2C = 0.6931471805599453
WS_XC4 = 0x4000000
WSZ = 0x8000000
OOB = 0x40000000
FL_A = WS_FL + 32768
FL_X = 0xE0000
FL_M = WS_FL + 5 * 32768; FL_U = 0xD8000; FL_A2 = 0x30000
WS_XA = 0x2800000
WS_ST2 = 0x600000
WS_UT3 = 0x2C00000
FL_O = WS_FL; FL_J = WS_FL + 2 * 32768; FL_Y = WS_FL + 3 * 32768; FL_H = WS_FL + 4 * 32768
WS_MP8 = 0x20000; WS_TOK = WS_FL + 6 * 32768
XST = 132 * 1024
QKV = 128 * 1024; JT = 146 * 1024; GL2 = 147 * 1024; LB = 148 * 1024; LS = 156 * 1024
F = lambda txt: txt.split('\n')
rb = lambda r: F(f'v_cvt_pk_bf16_f32 {vr(r)}, {vr(r)}, {vr(r)}\nv_lshlrev_b32 {vr(r)}, 16, {vr(r)}')

class K4(K):
    def __init__(self, name):
        K.__init__(self, name, 256, 256, 256)
        it = self.p.items
        self.p = Prog2(); self.p.items = it
        self.S = Regs('s', 4, 94)
        self.lds = 160 * 1024
        self.nlab = 0
    def lab(self, s):
        self.nlab += 1
        return f'{s}{self.nlab}_{self.name}'
    def text(self):
        t = self.p.text()
        ev, errs, ep = self.p.events()
        errs += check_lds([ev]) + self.p.check_chains()
        for e in errs[:20]: print('VERIFY:', e)
        assert not errs, f'{len(errs)} verifier errors'
        rep = []
        out, n = fix_hazards(t.split('\n'), rep)
        self.nops = rep
        return '.p2align 8\n' + '\n'.join(out).replace(' ; M\n', '\n').replace(' ; cond\n', '\n')
    def desc(self, minv=0):
        return kdesc(self.name, 512, 102, 256)

def poll_gen(k, ld, tst, tag, scnt, wg):
    p = k.p; sw = k.common['sw']
    def issue():
        if not wg: return p.vm(ld, tag)
        L = k.lab('PI')
        p.ins(f's_cmp_lg_u32 {sr(sw)}, 0\ns_cbranch_scc1 {L}\n{ld} ; cond')
        p.label(L); p.items.append(('vmark', tag))
    def check():
        L = k.lab('PL')
        if wg: p.ins(f's_cmp_lg_u32 {sr(sw)}, 0\ns_cbranch_scc1 {L}x')
        p.wait(vm=[tag])
        if wg: p.items[-1].append('cond')
        p.ins(f'{tst}\ns_cbranch_vccz {L}x\ns_mov_b32 {sr(scnt)}, 60000')
        p.label(L)
        p.ins(f'{ld} ; cond\ns_sub_u32 {sr(scnt)}, {sr(scnt)}, 1\ns_cmp_eq_u32 {sr(scnt)}, 0\ns_waitcnt vmcnt(0) ; cond\ns_cbranch_scc1 {L}x\n{tst}\ns_cbranch_vccnz {L}')
        p.label(L + 'x')
        if wg: p.bar()
    return op(issue, 3 if wg else 1), op(check, 7)

def poll_ops(k, sWS, vp, soff, tag, scnt, cmp=None, wg=True, va=None):
    ld = f'buffer_load_dword {vr(vp)}, {vr(va or vp+1)}, {sr(sWS,4)}, {sr(soff) if soff is not None else 0} offen sc1'
    return poll_gen(k, ld, cmp or f'v_cmp_ne_u32 vcc, {sr(k.tok)}, {vr(vp)}', tag, scnt, wg)

def poll4_ops(k, sWS, vd, va, tag, scnt):
    ld = f'buffer_load_dwordx4 {vr(vd,4)}, {vr(va)}, {sr(sWS,4)}, 0 offen sc1'
    tst = f'v_bitop3_b32 v{vd}, v{vd}, v{vd+1}, {sr(k.tok)} bitop3:0x7e\nv_bitop3_b32 v{vd+2}, v{vd+2}, v{vd+3}, {sr(k.tok)} bitop3:0x7e\nv_or_b32 v{vd}, v{vd}, v{vd+2}\nv_cmp_ne_u32 vcc, 0, v{vd}'
    return poll_gen(k, ld, tst, tag, scnt, True)

def pub_op(k, sWS, vt, soff, tags, imm=0, add=0, wg=True):
    p = k.p
    def f():
        p.ins(f'v_add_u32 {vr(vt)}, {sr(k.tok)}, v0' + (f'\nv_add_u32 {vr(vt)}, {add}, {vr(vt)}' if add else ''))
        if tags: p.wait(vm=tags)
        if tags and wg: p.bar()
        p.ins('s_mov_b64 exec, 1')
        p.vm(f'buffer_store_dword {vr(vt)}, v0, {sr(sWS,4)}, {sr(soff)} offen offset:{imm} sc1')
        p.ins('s_mov_b64 exec, -1')
    return op(f, 6)

def code_op(k, vt, vl16, sp):
    p = k.p
    L = k.lab('CT')
    p.ins(f's_getpc_b64 {sr(sp,2)}')
    p.label(L)
    p.ins(f's_min_u32 {sr(sp+2)}, {sr(sp+3)}, code_end-{L}\ns_add_u32 {sr(sp)}, {sr(sp)}, {sr(sp+2)}\ns_addc_u32 {sr(sp+1)}, {sr(sp+1)}, 0')
    p.ins(f'v_and_b32 v{vt}, 0x70, v{vl16}\nv_lshlrev_b32 v{vt}, 3, v{vt}')
    p.vm(f'global_load_dword a253, v{vt}, {sr(sp,2)}', 'dummy')

class WS_:
    def __init__(self, st, pool):
        self.st, self.p = st, st.p
        self.pool = {r: -10**6 for r in pool}; self.until = {}
        self.units = {}; self.nf = 0; self.early = []; self.groups = []
    def unit(self, u, lo, hi, dmas, e=0, wt=1):
        self.units[u] = dict(lo=lo, hi=hi, dmas=dmas, fr=None, lr=None, e=e, wt=wt)
    def rd(self, us, s, lr, text, tag, rng):
        f = lambda: self.p.lg(text, tag, r=rng)
        if s < 0: self.early.append((s, len(self.early), f))
        else: self.st.at(s, f)
        assert min(self.units[u]['lo'] for u in us) <= rng[0] and rng[1] <= max(self.units[u]['hi'] for u in us), (us, rng)
        for u in us:
            U = self.units[u]
            U['fr'] = s if U['fr'] is None else min(U['fr'], s)
            U['lr'] = lr if U['lr'] is None else max(U['lr'], lr)
    def group(self, frags, mf, LA, wait=True, vm=(), lg=(), kind='tr'):
        st, p = self.st, self.p
        s0 = st.n(); ids = [self.nf + i for i in range(len(frags))]; self.nf += len(frags)
        n = len(mf); per = 2 if kind == 'tr' else 1; nr = per * len(frags)
        reg = []
        for i in range(len(frags)):
            s = s0 - LA + per * i * n // nr
            lu = s0 + max(x for x, m in enumerate(mf) if ('f', i) in m[1:])
            c = [r for r in self.pool if self.pool[r] <= s and lu < self.until.get(r, 10**9)]
            assert c, ('fragment pool too small', s0, i)
            r = min(c, key=lambda r: self.pool[r]); self.pool[r] = lu; reg.append(r)
        for c, a, b in mf:
            st.mfma(c, reg[a[1]] if isinstance(a, tuple) else a, reg[b[1]] if isinstance(b, tuple) else b)
        for i, fr in enumerate(frags):
            u, ar, base, off = fr[:4]
            for h in range(per):
                s = s0 - LA + (per * i + h) * n // nr
                o = off + 2048 * h
                assert 0 <= o < 65536
                if kind == 'tr': self.rd([u], s, s0, f'ds_read_b64_tr_b16 {vr(reg[i] + 2 * h,2)}, {vr(ar)} offset:{o}', ('W', ids[i], h), (base + o, base + o + 2048))
                else: self.rd([u], s, s0, f'ds_read_b128 {vr(reg[i],4)}, {vr(ar)} offset:{o}', ('W', ids[i], 1), (base + o, base + o + (fr[4] if len(fr) > 4 else 1024)))
        self.groups.append(dict(s0=s0, ids=ids, wait=wait, vm=list(vm), lg=list(lg)))
        return s0
    def finish_waits(self):
        g = self.groups; i = 0
        while i < len(g):
            j = i + 1
            while j < len(g) and not g[j]['wait']: j += 1
            lg = [('W', f, 1) for x in g[i:j] for f in x['ids']] + [t for x in g[i:j] for t in x['lg']]; vm = [t for x in g[i:j] for t in x['vm']]
            self.st.before(g[i]['s0'], lambda lg=lg, vm=vm: self.p.wait(vm=vm or None, lg=lg))
            i = j
    def dma_ops(self, bars, pre_done=()):
        st, p = self.st, self.p
        ops = []; bw = {b: [] for b in bars}
        order = sorted(self.units, key=lambda u: self.units[u]['fr'])
        for n_, u in enumerate(order):
            U = self.units[u]
            tags = [('D', u, i) for i in range(len(U['dmas']))]
            if U['fr'] < 0 or U.get('vis'): continue
            if U['fr'] >= st.n(): dl = U['fr']
            else:
                dl = max(b for b in bars if b < U['fr'])
                bw[dl] += tags
            if u in pre_done: continue
            e = U['e']
            for v in order[:n_]:
                X = self.units[v]
                if X['lo'] < U['hi'] and U['lo'] < X['hi'] and X['lr'] >= 0:
                    e = max(e, min([b for b in bars if b >= X['lr']] + [st.n()]) + 1)
            for i, (pre, main) in enumerate(U['dmas']):
                ops.append(dict(e=e, dl=dl, pre=pre, main=main, id=(u, i), wt=U['wt']))
        for U in self.units.values():
            if U.get('force'): bw[min(b for b in bars if b >= U['lr'])].append(('lg', U['force']))
        self.bw = bw
        for b in bars:
            def f(b=b):
                x = self.bw[b]
                lgs = [t[1] for t in x if t[0] == 'lg']; vms = [t for t in x if t[0] != 'lg']
                if x: p.wait(vm=vms or None, lg=lgs or None)
                p.bar()
            st.last(b, op(f, 2))
        return ops
    def place_bars(self, bars, pre_done, target):
        bars = set(bars); n = self.st.n()
        order = sorted(self.units, key=lambda u: self.units[u]['fr'])
        for n_, u in enumerate(order):
            U = self.units[u]
            if U['fr'] < 0 or U.get('vis') or U['fr'] >= n: continue
            pl = max([X['lr'] for X in (self.units[v] for v in order[:n_]) if X['lo'] < U['hi'] and U['lo'] < X['hi']] + [-1])
            def win(B):
                e = -20 if u in pre_done else max(U['e'], min([b for b in B if b >= pl] + [10**6]) + 1 if pl >= 0 else 0)
                return max([b for b in B if b < U['fr']] + [-10**6]) - e
            for _ in range(2):
                if win(bars) >= target(U['fr']): break
                c = [x for x in (U['fr'] - 1, pl) if x >= 0 and x not in bars]
                if not c: break
                x = max(c, key=lambda x: win(bars | {x}))
                if win(bars | {x}) >= win(bars) + 8 or win(bars) < 16: bars.add(x)
        return sorted(bars)
    def emit_early(self):
        for _, _, f in sorted(self.early, key=lambda x: x[:2]): f()

def zig(n, nm, flip):
    out = []
    for mi in range(nm):
        m = nm - 1 - mi if flip else mi
        out += [(m, j) for j in (range(n) if mi % 2 == 0 else range(n - 1, -1, -1))]
    return out

def g3_early(k, s0, s1, sv, T):
    p = k.p; C = k.common; sw = C['sw']; vl = 0; vdA, vdB = 16, 11
    L = F(f'v_lshrrev_b32 v{T}, 3, v{vl}\nv_bfe_u32 v{T+1}, v{T}, 1, 2\nv_bfe_u32 v{T+2}, v{vl}, 1, 2\nv_xor_b32 v{T+1}, v{T+1}, v{T+2}')
    L += F(f's_lshl_b32 {sr(s0)}, {sr(sw)}, 3\nv_add_u32 v{T}, {sr(s0)}, v{T}\nv_mul_u32_u24 v{T}, 7168, v{T}\nv_and_b32 v{T+2}, 1, v{vl}\nv_lshl_add_u32 v{T}, v{T+2}, 4, v{T}')
    L += F(f's_and_b32 {sr(s0)}, s2, 7\ns_mul_i32 {sr(s0)}, {sr(s0)}, 896\nv_add_u32 v{T}, {sr(s0)}, v{T}\nv_lshlrev_b32 v{T+2}, 5, v{T+1}')
    L += F(f's_and_b32 {sr(s1)}, s2, 24\ns_lshl_b32 {sr(s0)}, {sr(s1)}, 5\nv_add3_u32 v{vdA}, v{T}, v{T+2}, {sr(s0)}')
    L += F(f's_lshr_b32 {sr(s0)}, 0x0b070602, {sr(s1)}\ns_and_b32 {sr(s0)}, {sr(s0)}, 15\ns_lshl_b32 {sr(s0)}, {sr(s0)}, 6\nv_add_u32 v{T+2}, {sr(s0)}, v{T+2}')
    L += F(f's_lshr_b32 {sr(s0)}, 0x15140706, {sr(s1)}\ns_and_b32 {sr(s0)}, {sr(s0)}, 31\ns_lshl_b32 {sr(s0)}, {sr(s0)}, 5\nv_mov_b32 v{T+3}, {sr(s0)}')
    L += [f'v_cmp_gt_u32 vcc, 2, v{T+1}\nv_cndmask_b32 v{T+2}, v{T+3}, v{T+2}, vcc', f'v_add_u32 v{vdB}, v{T}, v{T+2}']
    def dmas(ts, g):
        u = (3, ts, g); lo = 65536 * g + k.perm[g][ts] * 16384; out = []
        for jq in range(2):
            for mat in range(2):
                dst = lo + mat * 8192 + jq * 4096
                pre = lambda dst=dst, jq=jq: p.ins(f's_mov_b32 {sr(sv)}, {(2 * ts + jq) * 32 * 7168}\ns_add_u32 m0, {sr(C["sWL"])}, {dst}')
                main = lambda dst=dst, mat=mat, i=2 * jq + mat: p.vm(f'buffer_load_dwordx4 v{(vdA, vdB)[g]}, {sr((C["sWg"], C["sWu"])[mat],4)}, {sr(sv)} offen lds', ('D', u, i), w=(dst, dst + 4096))
                out.append((op(pre, 2), main))
        return u, lo, lo + 16384, out
    return L, dmas

def k_g34(cfg, k):
    p, S = k.p, k.S
    sWS, sWg, sWu, sWd, sOut, sw, sWL = (k.common[x] for x in ('sWS', 'sWg', 'sWu', 'sWd', 'sOut', 'sw', 'sWL'))
    sm = S.alloc('mt'); sq = S.alloc('q'); sx = S.alloc('xcd'); s0 = S.alloc('t0'); s1 = S.alloc('t1'); s2_ = S.alloc('t2')
    sLead = S.alloc('lead'); sAb = S.alloc('ab'); sO = S.alloc('so', 3); sv = S.alloc('vm', 2); sst = S.alloc('st')
    NC = 8; sCW = S.alloc('cw', NC); sCA = S.alloc('ca', NC); sfl = S.alloc('fl', 4)
    vl16, wa, vdA, vdB, vub, vt, vs, ut, ACC = 1, 2, 10, 11, 12, 13, 16, 24, 32
    POS = {6: 0, 4: 1, 5: 2, 0: 3, 1: 4, 2: 5, 3: 6}
    accr = lambda s_, g, m: ACC + 32 * POS[s_] + 16 * g + 4 * m
    DAS = 5; AB = A0; WB = A0 + 160; R = 6
    UT = 128 * 1024; GL = UT + 2048; XL = XST
    lf = 'sc1'
    vl = 0
    assert MBS[0] == 32768
    st = Stream(p); W = WS_(st, [WB + 4 * i for i in range(R)])
    n3 = 16; FS = 4
    done3 = set()
    def lead3(ts):
        if ts < 4 or cfg.get('nolead3'): return ts
        return ts + 4 if ts + 4 < n3 else 4 + ts % 4
    def chunk3(ts):
        if ts in done3: return
        done3.add(ts)
        cw, ca = sCW + ts % NC, sCA + ts % NC; lc = lead3(ts)
        if lc == ts: p.ins(f's_mov_b32 {sr(cw)}, {ts * 64 * 7168}\ns_add_u32 {sr(ca)}, {sr(sAb)}, {ts * 2048}')
        else: p.ins(f's_cmp_eq_u32 {sr(sLead)}, {ts % 4}\ns_cselect_b32 {sr(ca)}, {lc}, {ts}\ns_mul_i32 {sr(cw)}, {sr(ca)}, {64 * 7168}\ns_lshl_b32 {sr(ca)}, {sr(ca)}, 11\ns_add_u32 {sr(ca)}, {sr(ca)}, {sr(sAb)}')
    def dma(u, i, chunk, ts, cw, srd, vo, dst, goff):
        def pre():
            chunk(ts)
            p.ins(f's_add_u32 m0, {sr(sWL)}, {dst}')
            if goff: p.ins(f's_add_u32 {sr(sv)}, {sr(cw)}, {goff}')
        main = lambda: p.vm(f'buffer_load_dwordx4 v{vo}, {sr(srd,4)}, {sr(sv if goff else cw)} offen lds', ('D', u, i), w=(dst, dst + 4096))
        return op(pre, 2 if goff else 1), main
    nl = cfg.get('nolate', 1)
    sw3 = lambda g, i: 65536 * g + k.perm[g][i % 4] * 16384
    lo3 = lambda ts, g: sw3(1, 0) if nl and (ts, g) == (n3 - 1, 0) else sw3(g, ts)
    for ts in range(n3):
        for g, (vo, base) in enumerate(((vdA, 0), (vdB, 65536))):
            u = (3, ts, g); lo = lo3(ts, g)
            W.unit(u, lo, lo + 16384, [dma(u, 2 * jq + mat, chunk3, ts, sCW + ts % NC, (sWg, sWu)[mat], vo, lo + mat * 8192 + jq * 4096, jq * 32 * 7168) for jq in range(2) for mat in range(2)])
    ab3 = lambda ts, j, m: (A0 + 188 if nl and ts == n3 - 1 else AB + (ts % DAS) * 32) + (j * 4 + m) * 4
    seenA = set(); firstA = {}; lastA = {}
    LA = cfg.get('LA', 18)
    def grp(ph, ts, u, ar, base, off, acc, ab, ms=(0, 1, 2, 3), la=None):
        fr = [(u, ar, base, off + j * 4096) for j in range(2)]
        mf = [(acc(ms[m]), ('f', j), ab(ts, j, ms[m])) for m, j in zig(2, len(ms), len(W.groups) % 2)]
        vm = [] if (ph, ts) in seenA else [('A', ph, ts, j, m) for j in range(2) for m in range(4)]
        seenA.add((ph, ts))
        s = W.group(fr, mf, la or LA, vm=vm)
        firstA.setdefault((ph, ts), s); lastA[(ph, ts)] = s + len(mf) - 1
        return s
    def grp3(ts, s_, mat):
        g = 0 if s_ < 4 else 1
        hi = lo3(ts, g) // 65536
        return grp(3, ts, (3, ts, g), wa + 4 * hi + s_ % 4, 65536 * hi, lo3(ts, g) % 65536 + mat * 8192, lambda m: accr(s_, mat, m), ab3)
    visit = {}
    def part(ts, slots):
        for s_ in slots:
            for mat in range(2): visit[(ts, s_, mat)] = grp3(ts, s_, mat)
    for ts in range(n3 - FS - 2): part(ts, (4, 5, 6, 0, 1, 2, 3))
    if nl: part(n3 - FS - 2, (4, 5, 6)); part(n3 - FS - 1, (4, 5, 6)); zb = st.n(); part(n3 - FS - 2, (0, 1, 2, 3))
    else: part(n3 - FS - 2, (4, 5, 6, 0, 1, 2, 3)); part(n3 - FS - 1, (4, 5, 6))
    Ss = list(range(n3 - FS, n3))
    done = {}
    def pair(s_, sts):
        for ts in sts:
            for mat in range(2): e = grp3(ts, s_, mat)
        done[s_] = e + 7
    def late(a_, b_):
        if nl: pair(a_, Ss); pair(b_, Ss)
        else: pair(a_, Ss[:-1]); pair(b_, Ss[:-1]); pair(a_, Ss[-1:]); pair(b_, Ss[-1:])
    if not cfg.get('mvA', 1): part(n3 - FS - 1, (0, 1, 2, 3))
    z3 = st.n()
    late(6, 4); pair(5, Ss)
    if cfg.get('mvA', 1):
        part(n3 - FS - 1, (0, 1, 2, 3)); late(0, 1)
    else:
        pair(0, Ss); pair(1, Ss)
    pair(2, Ss); pair(3, Ss)
    z4 = st.n()
    n4 = 14; FS4 = cfg.get('FS4', 4); NE = 6
    acc4 = lambda t, m: 64 + (t * 4 + m) * 4
    vd4, vp, vpx, vro, vxa, vgo, vl4, vsel, vg = 32, 36, 38, 40, 42, 46, 47, 52, 240
    sA4 = S.alloc('a4'); sro = S.alloc('ro'); sxo = S.alloc('xo', 2); sg4 = S.alloc('g4'); sst4 = S.alloc('st4'); sxl = S.alloc('xl'); sL4 = S.alloc('l4'); spf = S.alloc('pf')
    E = [7 * g + c for g in range(2) for c in (1, 3, 5)]; Lt = [7 * g + c for g in range(2) for c in (0, 2, 4, 6)]
    def lead4(ts):
        lst, i, P_ = (E, ts, 3) if ts < NE else (Lt, ts - NE, 4)
        if cfg.get('nolead4'): return lst[i], lst[i], 0
        return lst[i], lst[(i + P_) % len(lst)], i % P_
    done4 = set()
    def chunk4(ts):
        if ts in done4: return
        done4.add(ts)
        cw, ca = sCW + ts % NC, sCA + ts % NC; nat, lc, ld = lead4(ts)
        if nat == lc: p.ins(f's_mov_b32 {sr(cw)}, {nat << 17}\ns_add_u32 {sr(ca)}, {sr(sA4)}, {nat << 11}')
        else: p.ins(f's_cmp_eq_u32 {sr(sL4)}, {ld}\ns_cselect_b32 {sr(ca)}, {lc}, {nat}\ns_lshl_b32 {sr(cw)}, {sr(ca)}, 17\ns_lshl_b32 {sr(ca)}, {sr(ca)}, 11\ns_add_u32 {sr(ca)}, {sr(ca)}, {sr(sA4)}')
    s4t = [(1, 1), (1, 2), (1, 3), (0, 3), (0, 0), (0, 1), (0, 2), (1, 0)] if nl else [(1, i) for i in range(4)] + [(0, i) for i in range(4)]
    slot4 = lambda ts: sw3(*s4t[ts % 8])
    for ts in range(n4):
        for g in range(2):
            u = (4, ts, g); lo = slot4(ts) + g * 8192
            W.unit(u, lo, lo + 8192, [dma(u, jq, chunk4, ts, sCW + ts % NC, sWd, vd4 + g, lo + jq * 4096, jq * 32 * 2048) for jq in range(2)])
    bufs = [(A0 + 220, 0)] + [(ab3(ts, 0, 0), lastA[(3, ts)] + 1) for ts in range(n3 - DAS - 1, n3)] if nl else [(A0 + 188, 0), (A0 + 220, 0)] + [(AB + 32 * (ts % DAS), lastA[(3, ts)] + 1) for ts in range(n3 - DAS, n3)]
    NB = len(bufs)
    ab4 = lambda ts, j, m: bufs[ts % NB][0] + (j * 4 + m) * 4
    def grp4(ts, t, ms=(0, 1, 2, 3), la=None):
        g = t // 4; base = slot4(ts) // 65536 * 65536
        return grp(4, ts, (4, ts, g), wa + (4 if base else 0) + t % 4, base, slot4(ts) - base + g * 8192, lambda m: acc4(t, m), ab4, ms, la)
    for r_ in range(64, 192, 4): st.touched.discard(r_)
    for ts in range(n4 - FS4):
        for t in range(8): grp4(ts, t)
    zf = st.n()
    d4 = {}
    for ts in range(n4 - FS4, n4):
        for t in range(4): d4[(0, t)] = grp4(ts, t) + 7
    for r_ in range(16, 32, 4): W.pool[r_] = zf
    for ps, ms in ((1, (2, 3)), (2, (0, 1))):
        for ts in range(n4 - FS4, n4):
            for t in range(4, 8): d4[(ps, t)] = grp4(ts, t, ms, cfg.get('LAh', 14)) + 3
    N = st.n()
    W.finish_waits()
    bars = set()
    fr_ = lambda *u: W.units[u]['fr'] - 1
    if nl:
        for ts in range(1, n3 - FS - 1): bars.add(fr_(3, ts, 1))
        bars |= {zb - 8, fr_(3, n3 - FS, 1), fr_(3, n3 - 2, 1), fr_(3, n3 - FS - 1, 0), done[5] - 7, fr_(3, n3 - 1, 0), z4 - 7}
    else:
        for ts in range(1, n3 - FS): bars.add(fr_(3, ts, 1))
        bars |= {z3, fr_(3, n3 - 1, 1), fr_(3, n3 - 1, 0), done[5] + 1, z4 + 1, lastA[(3, n3 - FS - 1)] + 1}
    for ts in range(0, n4 - FS4, cfg.get('BS4', 2)): bars.add(fr_(4, ts, 0))
    for u in cfg.get('fb4', ((n4 - FS4, 0), (n4 - FS4 + 2, 0), (n4 - FS4, 1))): bars.add(fr_(4, *u))
    bars = sorted(bars)
    k.bars = bars
    extra = []
    def X(e, dl, main, pre=None): extra.append(dict(e=e, dl=dl, main=main, pre=pre, id='x'))
    PD = cfg.get('pd', 40)
    setup = F(f's_lshl_b32 {sr(sO)}, {sr(sq)}, 12\ns_lshl_b32 {sr(s1)}, {sr(sq)}, 3\ns_lshr_b32 {sr(s0)}, 0x0b070602, {sr(s1)}\ns_and_b32 {sr(s0)}, {sr(s0)}, 15\ns_lshl_b32 {sr(sO+1)}, {sr(s0)}, 10')
    setup += F(f's_lshr_b32 {sr(s0)}, {sr(sq)}, 1\ns_mul_i32 {sr(s0)}, {sr(s0)}, {7 * 1024}\ns_and_b32 {sr(s1)}, {sr(s1)}, 8\ns_add_u32 {sr(s0)}, {sr(s0)}, {sr(s1)}\ns_add_u32 {sr(sO+2)}, {sr(s0)}, {3 * 1024}')
    setup += F(f's_mul_i32 {sr(s0)}, {sr(sx)}, {14*1024}\ns_mul_i32 {sr(s1)}, {sr(sst)}, {MBS[1]}\ns_add_u32 {sr(s0)}, {sr(s0)}, {sr(s1)}\ns_add_u32 {sr(s0)}, {sr(s0)}, {WS_ACT}') + [f's_add_u32 {sr(sO+i)}, {sr(sO+i)}, {sr(s0)}' for i in range(3)]
    setup += F(f's_lshl_b32 {sr(sst)}, {sr(sm)}, 2\ns_add_u32 {sr(sst)}, {sr(sst)}, {sr(sw)}\ns_lshl_b32 {sr(sst)}, {sr(sst)}, 14\ns_add_u32 {sr(sst)}, {sr(sst)}, {WS_ST2}\nv_and_b32 v{vub}, 0x300, v{vl16}\nv_add_u32 v{vub}, v{vub}, v{vl16}')
    SA = A0 + 188
    th = cfg.get('th', (115, 430)); tb_ = cfg.get('ub', (70, 170, 280, 385)); UD = cfg.get('ud', 95)
    def stat(hf):
        for i in range(4):
            for h in range(2):
                pre = op(lambda i=i: p.ins(f's_add_u32 {sr(sv+1)}, {sr(sst)}, {8192 * hf + 2048 * i}'), 1)
                X(th[hf], th[hf] + 50, lambda i=i, h=h: p.vm(f'buffer_load_dwordx4 {vr(SA+8*i+4*h,4)}, v{vub}, {sr(sWS,4)}, {sr(sv+1)} offen offset:{256*h} {lf}', ('st', hf, i, h)), pre)
        fl = [lambda: p.wait(vm=[('st', hf, i, h) for i in range(4) for h in range(2)])]
        for i in range(4):
            if hf == 0 and i == 0: fl += [f'v_accvgpr_read_b32 v{vs+x}, {vr(SA+x)}' for x in range(8)]
            else: fl += [f'v_accvgpr_read_b32 v{ut+x}, {vr(SA+8*i+x)}' for x in range(8)] + [f'v_add_f32 v{vs+x}, v{vs+x}, v{ut+x}' for x in range(8)]
        if hf == 0: return fl
        for sw_ in (16, 32):
            fl += [f'v_mov_b32 v{ut+x}, v{vs+x}' for x in range(8)] + [f'v_permlane{sw_}_swap_b32 v{vs+x}, v{ut+x}' for x in range(8)] + [f'v_add_f32 v{vs+x}, v{vs+x}, v{ut+x}' for x in range(8)]
        Ls = []
        for m in range(4):
            b = vs + 2 * m
            Ls.append(F(f'v_mul_f32 v{b}, {f32(1/1024)}, v{b}\nv_mul_f32 v{b+1}, {f32(1/1024)}, v{b+1}\nv_fma_f32 v{b+1}, -v{b}, v{b}, v{b+1}\nv_max_f32 v{b+1}, 0, v{b+1}') + rb(b + 1)
                      + [f'v_add_f32 v{b+1}, {f32(1e-5)}, v{b+1}'] + rb(b + 1) + [f'v_sqrt_f32 v{b+1}, v{b+1}'] + rb(b) + rb(b + 1) + [f'v_sub_f32 v{b}, 0, v{b}'])
        fl += [y for x in zip(*Ls) for y in x]
        return fl + F(f'v_lshrrev_b32 v{vub}, 8, v{vl16}\nv_lshlrev_b32 v{vub}, 4, v{vub}\nv_add_u32 v{vub}, {UT}, v{vub}')
    sJ, sMk, uc, UDR = k.common['dead'][0], k.common['dead'][1], A0 + 184, A0 + 220
    mf_ = lambda d, a_, b_, c='0': op(lambda: p.ins(f'{MFMA} {vr(d,4)}, {vr(a_,4)}, {vr(b_,4)}, {c}'), 'M')
    def burst(bi):
        for i in range(4):
            pre = op(lambda i=i: p.ins(f's_mov_b32 {sr(sv+1)}, {7168 * (4 * bi + i)}'), 1)
            X(tb_[bi], tb_[bi] + 30, lambda i=i: p.vm(f'buffer_load_dwordx4 {vr(UDR+16*(bi&1)+4*i,4)}, v{vt}, {sr(sJ,4)}, {sr(sv+1)} offen {cfg.get("ufl", "")}', ('ud', bi, i)), pre)
            extra[-1]['wt'] = cfg.get('uwt', 6) if i == 3 else 0.4
        L = [lambda: p.lg(f'ds_read_b128 {vr(ut,4)}, v{vt+1} offset:{16*bi}', ('uv', bi), r=(LB, LB + 4096), priv=True), ('gap', 6), lambda: p.wait(vm=[('ud', bi, 3)], lg=[('uv', bi)])]
        for i in range(4):
            L += [f'v_cndmask_b32 v{ut+4+r_}, 0, v{ut+i}, {sr(sMk+2*r_,2)}' for r_ in range(4)] + [('gap', 1), mf_(uc, ut + 4, UDR + 16 * (bi & 1) + 4 * i, vr(uc, 4) if bi or i else '0')]
        return L
    chains = sorted([(th[hf] + cfg.get('sd', 100), stat(hf), f's{hf}') for hf in range(2)] + [(tb_[bi] + UD, burst(bi), f'b{bi}') for bi in range(4)], key=lambda x: x[0])
    ufin = F(f's_bfe_u32 {sr(s0)}, s2, 0x20004\ns_lshl_b32 {sr(s0)}, {sr(s0)}, 9\nv_and_b32 v{vt+1}, 15, v{vl}\nv_lshl_add_u32 v{vt+1}, v{vt+1}, 5, {sr(s0)}')
    ufin += [f'v_cmp_gt_u32 vcc, {448 * 4}, v{vt+1}\nv_mov_b32 v{vt+2}, {WSZ}\nv_bfe_u32 v{vt}, v{vl}, 4, 1\nv_cndmask_b32 v{vt+1}, v{vt+2}, v{vt+1}, vcc']
    ufin += F(f'v_lshl_add_u32 v{vt+1}, v{vt}, 4, v{vt+1}\nv_lshrrev_b32 v{vt}, 5, v{vl}\nv_mul_u32_u24 v{vt}, {FF*4}, v{vt}\nv_add_u32 v{vt+1}, v{vt+1}, v{vt}')
    ufin += F(f's_lshr_b32 {sr(s0)}, s2, 6\ns_lshl_b32 {sr(s0)}, {sr(s0)}, 2\ns_add_u32 {sr(s0)}, {sr(s0)}, {sr(sw)}\ns_lshl_b32 {sr(s0)}, {sr(s0)}, 1\ns_bfe_u32 {sr(s1)}, s2, 0x10003\ns_add_u32 {sr(s0)}, {sr(s0)}, {sr(s1)}\ns_mul_i32 {sr(s0)}, {sr(s0)}, {2*FF*4}\ns_mul_i32 {sr(s1)}, {sr(sx)}, {448*4}\ns_add_u32 {sr(s0)}, {sr(s0)}, {sr(s1)}\ns_add_u32 {sr(s0)}, {sr(s0)}, {WS_UT3}')
    ufin.append(lambda: p.vm(f'buffer_store_dwordx4 {vr(uc,4)}, v{vt+1}, {sr(sWS,4)}, {sr(s0)} offen sc1', 'us'))
    ufin += F(f's_lshl_b32 {sr(s0)}, {sr(sx)}, 7\ns_add_u32 {sr(s0)}, {sr(s0)}, {FL_U}\nv_and_b32 v{vt}, 31, v{vl}\nv_min_u32 v{vt+2}, 27, v{vt}\nv_lshl_add_u32 v{vt}, v{vt}, 10, {sr(s0)}\nv_lshlrev_b32 v{vt+2}, 4, v{vt+2}')
    ufin += F(f's_lshl_b32 {sr(s0)}, {sr(sq)}, 9\nv_mov_b32 v{vt+1}, {sr(s0)}\ns_lshl_b32 {sr(s2_)}, {sr(sq)}, 3\ns_lshr_b32 {sr(s0)}, 0x0b070602, {sr(s2_)}\ns_and_b32 {sr(s0)}, {sr(s0)}, 15\ns_lshl_b32 {sr(s0)}, {sr(s0)}, 7\ns_sub_u32 {sr(s0)}, {sr(s0)}, 256\nv_mov_b32 v{ut}, {sr(s0)}')
    ufin += [f'v_cmp_gt_u32 vcc, 256, v{vt+2}\nv_cndmask_b32 v{vt+1}, v{ut}, v{vt+1}, vcc']
    ufin += F(f's_lshr_b32 {sr(s0)}, 0x15140706, {sr(s2_)}\ns_and_b32 {sr(s0)}, {sr(s0)}, 31\ns_lshl_b32 {sr(s0)}, {sr(s0)}, 6\ns_sub_u32 {sr(s0)}, {sr(s0)}, 384\nv_mov_b32 v{ut}, {sr(s0)}')
    ufin += [f'v_cmp_gt_u32 vcc, 384, v{vt+2}\nv_cndmask_b32 v{vt+1}, v{ut}, v{vt+1}, vcc']
    ufin += F(f'v_lshrrev_b32 v{ut}, 5, v{vl}\nv_mul_u32_u24 v{ut}, {4*FF*4}, v{ut}\nv_add3_u32 v{vt+1}, v{vt+1}, v{vt+2}, v{ut}\ns_mul_i32 {sr(s0)}, {sr(sw)}, {FF*4}\ns_add_u32 {sr(s0)}, {sr(s0)}, {sr(s1)}\ns_add_u32 {sr(s0)}, {sr(s0)}, {WS_UT3}\nv_add_u32 v{vt+1}, {sr(s0)}, v{vt+1}')
    ufin += F(f's_lshl_b32 {sr(s0)}, {sr(sw)}, 9\ns_add_u32 {sr(s0)}, {sr(s0)}, {UT}\nv_add_u32 v{vt+2}, {sr(s0)}, v{vt+2}')
    tu = tb_[3] + UD + cfg.get('tu', 205)
    iu, cu = poll_ops(k, sWS, 9, None, 'plu', sfl + 3, va=vt)
    st.at(tu, iu); st.at(tu + PD, ';@T ua'); st.at(tu + PD, cu); st.at(tu + PD, ';@T ub')
    for i in range(8):
        pre = op(lambda i=i: p.ins(f's_mov_b32 {sr(sv+1)}, {8 * FF * 4 * i}'), 1)
        X(tu + PD + 1, tu + PD + 45, lambda i=i: p.vm(f'buffer_load_dwordx4 {vr(UDR+4*i,4)}, v{vt+1}, {sr(sWS,4)}, {sr(sv+1)} offen {lf}', ('u', i)), pre)
        extra[-1]['wt'] = 0.5
    fl = [lambda: p.wait(vm=[('u', i) for i in range(8)])] + [f'v_accvgpr_read_b32 {vr(ut+i)}, {vr(UDR+i)}' for i in range(4)]
    for h in range(1, 8): fl += [f'v_accvgpr_read_b32 {vr(ut+4+i)}, {vr(UDR+4*h+i)}' for i in range(4)] + [f'v_add_f32 {vr(ut+i)}, {vr(ut+i)}, {vr(ut+4+i)}' for i in range(4)]
    fl += [f'v_mov_b32 v{ut+4+i}, v{ut+i}' for i in range(4)] + [f'v_permlane32_swap_b32 v{ut+i}, v{ut+4+i}' for i in range(4)] + [f'v_add_f32 v{ut+i}, v{ut+i}, v{ut+4+i}' for i in range(4)]
    fl.append(lambda: p.lg(f'ds_write_b128 v{vt+2}, {vr(ut,4)}', 'utw', w=(UT, UT + 2048)))
    utb = tu + PD + cfg.get('auxd', 65) + 62
    bars = sorted(set(bars) | {utb}); k.bars = bars
    sb, sn, skq = sm, sq, sx
    T = 48; l_ = vl
    su4s = F(f's_and_b32 {sr(sb)}, s2, 4\ns_lshr_b32 {sr(s0)}, s2, 6\ns_add_u32 {sr(sb)}, {sr(sb)}, {sr(s0)}\ns_bfe_u32 {sr(sn)}, s2, 0x30003\ns_and_b32 {sr(skq)}, s2, 3')
    su4s += F(f's_add_u32 {sr(sL4)}, {sr(sb)}, {sr(sn)}\ns_and_b32 {sr(sL4)}, {sr(sL4)}, 3')
    su4s += F(f's_lshl_b32 {sr(s0)}, {sr(sb)}, 4\ns_and_b32 {sr(s1)}, {sr(skq)}, 2\ns_mul_i32 {sr(sst4)}, {sr(s1)}, {-8 * MBS[1] & 0xffffffff}\ns_add_u32 {sr(sst4)}, {sr(sst4)}, {7 * MBS[1]}\ns_lshl_b32 {sr(s1)}, {sr(s1)}, 2\ns_add_u32 {sr(s0)}, {sr(s0)}, {sr(s1)}\ns_lshl_b32 {sr(s1)}, {sr(sw)}, 1\ns_add_u32 {sr(s0)}, {sr(s0)}, {sr(s1)}')
    su4s += F(f's_mul_i32 {sr(sA4)}, {sr(s0)}, {MBS[1]}\ns_mul_i32 {sr(s1)}, {sr(skq)}, {28 * 1024}\ns_add_u32 {sr(sA4)}, {sr(sA4)}, {sr(s1)}\ns_add_u32 {sr(sA4)}, {sr(sA4)}, {WS_ACT}')
    su4s += F(f's_lshl_b32 {sr(sro)}, {sr(s0)}, 15\ns_lshl_b32 {sr(sn)}, {sr(sn)}, 1\ns_and_b32 {sr(s1)}, {sr(skq)}, 1\ns_add_u32 {sr(sn)}, {sr(sn)}, {sr(s1)}')
    su4s += F(f's_lshl_b32 {sr(s0)}, {sr(sn)}, 7\ns_add_u32 {sr(sro)}, {sr(sro)}, {sr(s0)}\ns_lshl_b32 {sr(sg4)}, {sr(sn)}, 8\ns_add_u32 {sr(sg4)}, {sr(sg4)}, {WS_MODP + 5 * 4096}')
    su4s += F(f's_lshl_b32 {sr(s0)}, {sr(sb)}, 12\ns_lshl_b32 {sr(s1)}, {sr(skq)}, 8\ns_add_u32 {sr(s0)}, {sr(s0)}, {sr(s1)}\ns_add_u32 {sr(sfl+2)}, {sr(s0)}, {FL_A}')
    su4s += F(f's_lshl_b32 {sr(sxl)}, {sr(sw)}, 12\ns_add_u32 {sr(sxl)}, {sr(sxl)}, {XL}\ns_lshl_b32 {sr(sxo)}, s2, 16\ns_lshl_b32 {sr(s0)}, {sr(sw)}, 14\ns_add_u32 {sr(sxo)}, {sr(sxo)}, {sr(s0)}\ns_add_u32 {sr(sxo)}, {sr(sxo)}, {WS_XC4}')
    su4s += F(f's_lshr_b32 {sr(s0)}, s2, 3\ns_lshl_b32 {sr(s0)}, {sr(s0)}, 2\ns_add_u32 {sr(s0)}, {sr(s0)}, {sr(sw)}\ns_mul_i32 {sr(spf)}, {sr(s0)}, {14 * 1024}\ns_mul_i32 {sr(s0)}, {sr(skq)}, {896 * 2048}\ns_add_u32 {sr(spf)}, {sr(spf)}, {sr(s0)}')
    su4s += F(f's_nop 0')
    pfs = F(f'v_lshrrev_b32 v{vt}, 8, v{vl16}\nv_lshlrev_b32 v{vt}, 28, v{vt}\nv_lshl_add_u32 v{vt}, v{vl16}, 3, v{vt}\nv_xor_b32 v{wa+7}, {3<<5}, v{wa+4}')
    st.fill(pfs, utb - 8, cap=3)
    su4 = F(f'v_lshrrev_b32 v{T}, 3, v{l_}\nv_bfe_u32 v{T+1}, v{T}, 1, 2\nv_bfe_u32 v{T+2}, v{l_}, 1, 2\nv_xor_b32 v{T+1}, v{T+1}, v{T+2}\nv_lshlrev_b32 v{T+1}, 5, v{T+1}\nv_and_b32 v{T+2}, 1, v{l_}\nv_lshl_add_u32 v{T+1}, v{T+2}, 4, v{T+1}')
    su4 += F(f's_lshl_b32 {sr(s0)}, {sr(sw)}, 3\nv_add_u32 v{T}, {sr(s0)}, v{T}\nv_lshl_add_u32 v{T}, v{T}, 11, v{T+1}')
    su4 += F(f's_mul_i32 {sr(s0)}, {sr(skq)}, {896 * 2048}\ns_lshl_b32 {sr(s1)}, {sr(sn)}, 7\ns_add_u32 {sr(s0)}, {sr(s0)}, {sr(s1)}\nv_add_u32 v{vd4+1}, {sr(s0)}, v{T}\nv_xor_b32 v{vd4}, 128, v{vd4+1}')
    su4 += F(f'v_and_b32 v{T}, 3, v{l_}\nv_bfe_u32 v{T+1}, v{l_}, 2, 1\nv_lshl_add_u32 v{T}, v{T}, 3, v{T+1}\nv_lshlrev_b32 v{vp+1}, 7, v{T}')
    su4b = F(f's_lshl_b32 {sr(s0)}, {sr(sw)}, 8\ns_add_u32 {sr(s0)}, {sr(s0)}, {GL}\nv_lshrrev_b32 v{T+1}, 4, v{l_}\nv_lshl_add_u32 v{vgo}, v{T+1}, 4, {sr(s0)}\nv_lshlrev_b32 v{vl4}, 2, v{l_}\nv_add_u32 v{vgo-1}, {sr(s0)}, v{vl4}')
    su4b += F(f'v_lshrrev_b32 v{T}, 3, v{l_}\nv_and_b32 v{T+2}, 7, v{l_}\nv_xor_b32 v{T+3}, v{T+2}, v{T}\nv_lshlrev_b32 v{T+3}, 4, v{T+3}\nv_lshl_add_u32 v{vro}, v{T}, 11, v{T+3}')
    su4b += F(f'v_bfe_u32 v{T}, v{l_}, 4, 1\nv_lshrrev_b32 v{T+3}, 5, v{l_}\nv_lshl_add_u32 v{T}, v{T}, 1, v{T+3}\nv_xor_b32 v{T}, v{T}, v{T+2}\nv_lshlrev_b32 v{T}, 4, v{T}\nv_and_b32 v{T+2}, 15, v{l_}\nv_lshl_add_u32 v{T}, v{T+2}, 7, v{T}\nv_add_u32 v{vxa}, {sr(sxl)}, v{T}\nv_xor_b32 v{vxa+1}, 64, v{vxa}\nv_add_u32 v{vxa+2}, {sr(sxl)}, v{vl16}')
    su4b += F(f'v_bfe_u32 v{T}, v{l_}, 2, 2\nv_lshrrev_b32 v{T+1}, 4, v{l_}\nv_and_b32 v{T+2}, 1, v{l_}\nv_lshlrev_b32 v{T+2}, 4, v{T+2}\nv_mov_b32 v{T+3}, 0xffff\nv_lshlrev_b32 v{T+2}, v{T+2}, v{T+3}') + [f'v_cmp_eq_u32 vcc, v{T}, v{T+1}\nv_mov_b32 v{vsel+8}, 0\nv_mov_b32 v{vsel+9}, 0\nv_cndmask_b32 v{T}, 0, v{T+2}, vcc']
    su4b += [f'v_and_b32 v{T+1}, 2, v{l_}', f'v_cmp_eq_u32 vcc, 0, v{T+1}\nv_mov_b32 v{vsel+2}, 0\nv_mov_b32 v{vsel+3}, 0\nv_cndmask_b32 v{T+2}, 0, v{T}, vcc', f'v_sub_u32 v{T+3}, v{T}, v{T+2}']
    def epi(s_):
        L = []
        for mp in (0, 2):
            ms = [(m, x) for m in (mp, mp + 1) for x in range(4)]
            e = lambda m, x: ut + 4 * (m & 1) + x
            L += [f'v_mul_f32 v{e(m,x)}, v{vs+2*m}, v{accr(s_,0,m)+x}' for m, x in ms]
            ex = [f'v_exp_f32 v{e(m,x)}, v{e(m,x)}' for m, x in ms]
            mu = [f'v_mul_f32 v{accr(s_,1,m)+x}, v{accr(s_,0,m)+x}, v{accr(s_,1,m)+x}' for m, x in ms]
            L += [y for ab in zip(ex, mu) for y in ab]
            vv = [f'v_fma_f32 v{e(m,x)}, v{e(m,x)}, v{vs+2*m+1}, v{vs+2*m+1}' for m, x in ms] + [f'v_mul_f32 v{accr(s_,1,m)+x}, v{accr(s_,1,m)+x}, v{e(m,x)}' for m, x in ms]
            rc = [f'v_rcp_f32 v{e(m,x)}, v{e(m,x)}' for m, x in ms]
            L += vv[:2] + [y for ab in zip(rc, vv[2:10]) for y in ab] + vv[10:]
            for m in (mp, mp + 1):
                u_ = accr(s_, 1, m); o = accr(s_ & ~1, 0, m) + 2 * (s_ & 1)
                L += F(f'v_cvt_pk_bf16_f32 v{o}, v{u_}, v{u_+1}\nv_cvt_pk_bf16_f32 v{o+1}, v{u_+2}, v{u_+3}')
                if s_ & 1 or s_ == 6:
                    so = sO + {1: 0, 3: 0, 5: 1, 6: 2}[s_]
                    def f(m=m, o=o, so=so):
                        if m: p.ins(f's_add_u32 {sr(s2_)}, {sr(so)}, {2 * MBS[1] * m}')
                        so_ = sr(s2_) if m else sr(so)
                        if s_ == 6: p.vm(f'buffer_store_dwordx2 {vr(o,2)}, v{vl16}, {sr(sWS,4)}, {so_} offen sc1', ('as', s_, m))
                        else: p.vm(f'buffer_store_dwordx4 {vr(o-2,4)}, v{vl16}, {sr(sWS,4)}, {so_} offen offset:{1024 if s_ == 3 else 0} sc1', ('as', s_, m))
                    L.append(op(f, 'sW'))
        return L
    order = [6, 4, 5, 0, 1, 2, 3]
    win = {}
    a_ = 0
    wl = cfg.get('wl', (70, 80, 70, 90, 90, 80, 70))
    for i, s_ in enumerate(order):
        a_ = max(a_, done[s_] + 3)
        win[s_] = (a_, a_ + wl[i] - 1); a_ += wl[i]
    k.win = win; k.z = (z3, z4, zf, N)
    assert win[1][1] + 3 < z4 + 32, 'accumulators of G4 (tiles 4..7) overlap pairs 0/1'
    su4_end = win[4][1]
    pre_done = k.early3
    W.units[(3, 0, 0)]['vis'] = True
    for ts in range(n4):
        for g in range(2): W.units[(4, ts, g)]['e'] = su4_end + 1
    ops = W.dma_ops(bars, pre_done)
    def aop(ph, ts, j, m):
        ch, ab, stp = (chunk3, ab3, 65536) if ph == 3 else (chunk4, ab4, sr(sst4) if m == 2 else MBS[1])
        def pre():
            ch(ts)
            if m and j == 0: p.ins(f's_add_u32 {sr(sCA + ts % NC)}, {sr(sCA + ts % NC)}, {stp}')
        main = lambda: p.vm(f'buffer_load_dwordx4 {vr(ab(ts,j,m),4)}, v{vl16}, {sr(sWS,4)}, {sr(sCA + ts % NC)} offen offset:{1024*j} {lf}', ('A', ph, ts, j, m))
        return op(pre, 1 if j == 0 else 0), main
    pl1 = z4 - cfg.get('pl1', 100); pl2 = firstA[(4, NE)] - cfg.get('pl2', 110)
    i1, c1 = poll_ops(k, sWS, vp, sfl + 2, 'pl1', sfl + 3)
    i2, c2 = poll_ops(k, sWS, vp, sfl + 2, 'pl2', sfl + 3)
    assert pl1 > su4_end
    st.at(pl1, i1); st.at(pl1 + PD, c1)
    st.at(pl2 - 1, f's_sub_u32 {sr(sfl+2)}, {sr(sfl+2)}, {FL_A - FL_A2}'); st.at(pl2, i2); st.at(pl2 + PD, c2)
    for ph, n_ in ((3, n3), (4, n4)):
        for ts in range(cfg.get('a0', 2) if ph == 3 else 0, n_):
            if ph == 3: e = utb if nl and ts == n3 - 1 else lastA[(3, ts - DAS)] + 1 if ts >= DAS else 0
            else: e = max(bufs[ts][1] if ts < NB else lastA[(4, ts - NB)] + 1, (pl1 if ts < NE else pl2) + PD + 1)
            for m in range(4):
                for j in range(2):
                    pre, main = aop(ph, ts, j, m)
                    ops.append(dict(e=e, dl=firstA[(ph, ts)] - 1, pre=pre, main=main, id=('A', ph, ts)))
    vx1 = 192; vf = 208
    tg = win[3][1] + 110
    for q in range(NPART):
        pre = op(lambda q=q: p.ins(f's_add_u32 {sr(sv+1)}, {sr(sg4)}, {6144 * 4 * q}'), 1)
        X(tg, tg + 60, lambda q=q: p.vm(f'buffer_load_dword v{vg+q}, v{vl4}, {sr(sWS,4)}, {sr(sv+1)} offen {lf}', ('g', q)), pre)
    for i, tp in enumerate(cfg.get('pf', range(500, 1280, 112))):
        pre = op(lambda i=i: p.ins(f's_add_u32 {sr(sv+1)}, {sr(spf)}, {2048 * i}'), 1)
        assert tp > utb
        X(tp, tp + 20, lambda i=i: p.vm(f'buffer_load_dword a253, v{vt}, {sr(sWd,4)}, {sr(sv+1)} offen {cfg.get("pfl", "")}', ('dummy', i)), pre)
        extra[-1]['wt'] = cfg.get('pfw', 2)
    g3gap, g4gap = cfg.get('gap3', 5), cfg.get('gap4', 4.5)
    st.vmem(ops + extra, lambda i: cfg.get('gap0', 4) if i < 112 else g3gap if i < z3 else cfg.get('gapf', 4) if i < z4 else g4gap)
    k.vops = ops
    e_ = st.fill(setup, 20); assert e_ < th[0], e_
    for t0_, L, nm in chains:
        e_ = st.fill(L, max(t0_, e_ + 1))
        k.dbg = getattr(k, 'dbg', []) + [(nm, t0_, e_)]
        if nm == 'b3':
            st.at(e_ + cfg.get('upub', 80), pub_op(k, sWS, 9, sfl, ['us']))
            st.at(e_ + cfg.get('upub', 80), f's_sub_u32 {sr(sfl)}, {sr(sfl)}, {FL_U - FL_A}')
            assert e_ + cfg.get('upub', 80) < tu
            e_ = st.fill([('gap', 3)] + ufin, e_ + 1); assert e_ < tu, (e_, tu)
    e_ = st.fill(su4s, e_ + 1); assert e_ < utb - 62
    e_ = st.fit(fl, utb - 62, utb - 2)
    W.bw[utb].append(('lg', 'utw'))
    w = utb + 1; todo = [(s_, mat) for s_ in (6, 4, 5, 0, 1, 2, 3) for mat in range(2)]
    rdu = lambda x, i: (lambda: p.lg(f'ds_read_b128 {vr(ut+4*i,4)}, v{vub} offset:{512*(2*x[1]+i)+64*x[0]}', ('iu', x, i), r=(UT, UT + 2048)))
    allv = {x: [v for key, v in visit.items() if key[1:] == x] for x in todo}
    def pick(w_):
        while True:
            ok = [x for x in todo if all(v + 10 <= w_ or v >= w_ + cfg.get('injw', 34) for v in allv[x])]
            if ok: todo.remove(ok[0]); return ok[0], w_
            w_ += 1
    cur, w2 = pick(w + 8)
    st.fill([rdu(cur, 0), rdu(cur, 1)], w); w = w2
    while cur:
        fm_ = lambda i: [lambda x=cur, i=i: p.wait(lg=[('iu', x, i)])] + [f'v_fmac_f32 v{accr(cur[0],cur[1],m)+x}, v{vs+2*m+i}, v{ut+4*i+x}' for m in range(4) for x in range(4)]
        nx, w2 = pick(w + 30) if todo else (None, 0)
        w = st.fill(fm_(0) + ([rdu(nx, 0)] if nx else []) + fm_(1) + ([rdu(nx, 1)] if nx else []), w, cap=cfg.get('injcap', 2)) + 1
        assert w < (z3 if cur[0] >= 4 else done[6] - 12), (cur, w, z3)
        cur = nx; w = max(w, w2)
    L = [f'v_rcp_f32 v{vs+2*m}, v{vs+2*m+1}' for m in range(4)] + [f'v_mul_f32 v{vs+2*m+1}, v{vs+2*m+1}, v{vs+2*m+1}' for m in range(4)] + [f'v_mul_f32 v{vs+2*m}, {f32(-LOG2E)}, v{vs+2*m}' for m in range(4)]
    st.fill(L, w)
    k.injend = w
    st.at(win[5][1] + cfg.get('pb1', 40), pub_op(k, sWS, vpx, sfl, [('as', 6, m) for m in range(4)] + [('as', 5, m) for m in range(4)]))
    for s_ in order:
        L = epi(s_)
        if s_ == 4: L = L[:20] + su4 + L[20:]
        st.fit(L, *win[s_])
    e_ = st.fill([f's_sub_u32 {sr(sfl)}, {sr(sfl)}, {FL_A - FL_A2}', ('gap', cfg.get('pb2', 40)), pub_op(k, sWS, vpx, sfl, [('as', s_, m) for s_ in (1, 3) for m in range(4)])] + su4b, win[3][1] + 1)
    assert e_ < tg, (e_, tg)
    L = [lambda i=i: p.lg(f'ds_read_b128 {vr(vx1+4*i,4)}, v{vxa+2} offset:{1024*i}', 'x1', r=(XL, XL + 16384), priv=True) for i in range(4)]
    L += [lambda: p.wait(vm=[('g', q) for q in range(NPART)])]
    L += F(f'v_add_f32 v{vg}, v{vg}, v{vg+1}\nv_add_f32 v{vg+2}, v{vg+2}, v{vg+3}\nv_add_f32 v{vg}, v{vg}, v{vg+2}') + rb(vg)
    L += [lambda: p.lg(f'ds_write_b32 v{vgo-1}, v{vg}', None, w=(GL, GL + 1024), priv=True)]
    L += [lambda t=t: p.lg(f'ds_read_b128 {vr(vg+4*t,4)}, v{vgo} offset:{64*t}', ('gl', t), r=(GL, GL + 1024), priv=True) for t in range(4)]
    L += [lambda: p.wait(lg=['x1'])]
    for i in range(16): L += F(f'v_lshlrev_b32 v{vf+2*i}, 16, v{vx1+i}\nv_and_b32 v{vf+2*i+1}, 0xffff0000, v{vx1+i}')
    L += F(f'v_mov_b32 v{vp+1}, 0') + [lambda: p.wait(lg=[('gl', 3)])]
    for t in range(4):
        for h in range(2):
            r_ = vsel + 6 * (t // 2) + 4 * (t & 1) + h
            L += F(f'v_cvt_pk_bf16_f32 v{r_}, v{vg+4*t+2*h}, v{vg+4*t+2*h+1}\nv_and_b32 v{r_}, v{r_}, v{T+2+h}')
    e_ = st.fill(L, max(tg + 130, pl2 + PD + 1)); assert e_ < zf
    XJ = (3, 1, 2); XP = (0, 0, 1); XT = (0, 0, 4); XM = (2, 0, 2)
    tail = []
    def put(slot, o):
        if slot < N: st.at(slot, o)
        else: tail.append((slot, len(tail), o))
    xr = lambda x, i: acc4(XT[x] + 2 * (i & 1) + 1, XM[x] + (i >> 1))
    def addp(x, i):
        return [f'{MFMA} {vr(vf+8*i+4*t,4)}, {vr(vsel+6*(i&1)+2*t,4)}, {vr(xr(x,i),4)}, {vr(vf+8*i+4*t,4)}' for t in range(2)]
    xt = cfg.get('xt', ((75, 130, 165), (75, 132, 167), (50, 90, 97)))
    for ps in range(2):
        L = []
        for t in range(4):
            L.append(('from', d4[(ps, 4 * ps + t)] + 3))
            for x in range(3):
                if XP[x] != ps: continue
                for m in range(2):
                    c = acc4(XT[x] + t, XM[x] + m); o = acc4(XT[x] + (t & ~1), XM[x] + m)
                    L += F(f'v_cvt_pk_bf16_f32 v{o+2*(t&1)}, v{c}, v{c+1}\nv_cvt_pk_bf16_f32 v{o+2*(t&1)+1}, v{c+2}, v{c+3}')
                    if t & 1:
                        L.append(op(lambda x=x, i=2 * m + t // 2, o=o: (p.ins(f's_add_u32 {sr(sxo+1)}, {sr(sxo)}, {4096 * x}'), p.vm(f'buffer_store_dwordx4 {vr(o,4)}, v{vl16}, {sr(sWS,4)}, {sr(sxo+1)} offen offset:{1024 * i} sc1', ('xs', x, i))), 'sW'))
                        L.append(('gap', cfg.get('xgap', (2, 0))[ps]))
        e_ = st.fill(L, d4[(ps, 4 * ps)] + 3, cap=cfg.get('xcap', (2, 5))[ps]); assert e_ < d4[(ps, 4 * ps + 3)] + xt[2 * ps][0]
    for x in range(3):
        e0 = d4[(XP[x], 4 * XP[x] + 3)]; vq_ = (vd4 + 2, vpx + 1, vp)[x]
        if x != 1: put(e0 + xt[x][0], pub_op(k, sWS, vpx, sfl + 1, [('xs', y, i) for y in range(3) if XP[y] == XP[x] for i in range(4)], 16 * XP[x], wg=False))
        sq_ = (sA4, sL4, sfl + 2)[x]
        i3, c3 = poll_ops(k, sWS, vq_, sq_, ('pl3', x), sfl + 3, wg=False, va=vp + 1)
        put(e0 + xt[x][1], op(lambda x=x, i3=i3, sq_=sq_: (p.ins(f's_xor_b32 {sr(sq_)}, {sr(sfl+1)}, {XJ[x] << 9}\ns_add_u32 {sr(sq_)}, {sr(sq_)}, {16 * XP[x]}'), i3()), 3))
        if x == 2:
            lds_ = f's_xor_b32 {sr(s2_)}, {sr(sxo)}, {XJ[x] << 16}\ns_add_u32 {sr(s2_)}, {sr(s2_)}, {4096 * x}\n' + '\n'.join(f'buffer_load_dwordx4 {vr(xr(2,i),4)}, v{vl16}, {sr(sWS,4)}, {sr(s2_)} offen offset:{1024 * i} sc1 ; cond' for i in range(4))
            def look():
                L = k.lab('XL'); p.wait(vm=[('pl3', 2)])
                p.ins(f'v_cmp_ne_u32 vcc, {sr(k.tok)}, v{vp}\ns_mov_b32 {sr(sxo+1)}, 0\ns_cbranch_vccnz {L}\n{lds_}\ns_mov_b32 {sr(sxo+1)}, 1'); p.label(L)
            def again():
                L = k.lab('XA'); p.T('xa2')
                p.ins(f's_cmp_eq_u32 {sr(sxo+1)}, 1\ns_cbranch_scc1 {L}x\ns_mov_b32 {sr(sfl+3)}, 60000'); p.label(L)
                p.ins(f'buffer_load_dword v{vp}, v{vp+1}, {sr(sWS,4)}, {sr(sfl+2)} offen sc1 ; cond\ns_sub_u32 {sr(sfl+3)}, {sr(sfl+3)}, 1\ns_cmp_eq_u32 {sr(sfl+3)}, 0\ns_waitcnt vmcnt(0) ; cond\ns_cbranch_scc1 {L}y\nv_cmp_ne_u32 vcc, {sr(k.tok)}, v{vp}\ns_cbranch_vccnz {L}')
                p.label(L + 'y'); p.ins(lds_); p.label(L + 'x'); p.T('xb2')
            assert d4[(0, 3)] + xt[1][2] + 4 < e0 + xt[x][2] < N and xt[x][0] < xt[x][2]
            put(e0 + xt[x][2], op(look, 8)); put(N, again)
            continue
        put(e0 + xt[x][2], f';@T xa{x}')
        put(e0 + xt[x][2], c3)
        put(e0 + xt[x][2], f';@T xb{x}')
        for i in range(4):
            f = lambda x=x, i=i: (p.ins(f's_xor_b32 {sr(s2_)}, {sr(sxo)}, {XJ[x] << 16}\ns_add_u32 {sr(s2_)}, {sr(s2_)}, {4096 * x}'), p.vm(f'buffer_load_dwordx4 {vr(xr(x,i),4)}, v{vl16}, {sr(sWS,4)}, {sr(s2_)} offen offset:{1024 * i} sc1', ('xc', x, i)))
            put(e0 + xt[x][2] + 1 + i, op(f, 3))
    def add01():
        p.wait(vm=[('xc', x, i) for x in range(2) for i in range(4)])
        for x in range(2):
            for i in range(4):
                for o in addp(x, i): p.ins(o)
    st.at(N - 1, op(add01, 'M'))
    T = ACC
    p.wait(lg='all'); p.bar()
    for o in k.left: o['pre'](); o['main']()
    for f in k.stash: f()
    p.ins(f'v_mov_b32 v{vdA}, v16')
    if cfg.get('warm3') == 0: p.ins(f';@WARM {sr(sw)} 0 4\n;@FROM')
    k.ypub(); p.T('y_pub')
    if cfg.get('warm3', 2) == 1: p.ins(f';@WARM {sr(sw)} 0 4\n;@FROM')
    if cfg.get('warm3', 2) == 2: p.ins(f';@WARM {sr(sw)} 1 3\n;@FROM')
    p.ins(f's_and_b32 {sr(sx)}, s2, 7\ns_bfe_u32 {sr(sq)}, s2, 0x20003\ns_lshr_b32 {sr(sm)}, s2, 5\ns_add_u32 {sr(sLead)}, {sr(sq)}, {sr(sm)}\ns_and_b32 {sr(sLead)}, {sr(sLead)}, 3\ns_lshl_b32 {sr(s0)}, {sr(sm)}, 1')
    p.ins(f's_lshr_b32 {sr(s1)}, {sr(sw)}, 1\ns_add_u32 {sr(s0)}, {sr(s0)}, {sr(s1)}\ns_lshl_b32 {sr(sst)}, {sr(s0)}, 3\ns_and_b32 {sr(s2_)}, {sr(sw)}, 1\ns_add_u32 {sr(sst)}, {sr(sst)}, {sr(s2_)}')
    p.ins(f's_lshl_b32 {sr(sAb)}, {sr(sst)}, 15\ns_add_u32 {sr(sAb)}, {sr(sAb)}, {WS_Y}')
    p.ins(f's_lshl_b32 {sr(s0)}, {sr(sm)}, 12\ns_add_u32 {sr(sfl+2)}, {sr(s0)}, {FL_Y}')
    p.ins(f'v_and_b32 v{vt+2}, 31, v{vl}\nv_lshlrev_b32 v{vt+2}, 7, v{vt+2}')
    iy, cy = poll_ops(k, sWS, vt, sfl + 2, 'ply', sfl + 3, va=vt + 2)
    p.ins(f'v_lshrrev_b32 v{T+1}, 2, v{vl}\nv_bfe_u32 v{T}, v{T+1}, 1, 2\nv_lshlrev_b32 v{T}, 5, v{T}\nv_lshl_add_u32 v{T}, v{T+1}, 7, v{T}\nv_and_b32 v{T+1}, 3, v{vl}\nv_lshl_add_u32 v{wa}, v{T+1}, 3, v{T}')
    for t in range(1, 4): p.ins(f'v_xor_b32 v{wa+t}, {t<<5}, v{wa}')
    for t in range(3): p.ins(f'v_add_u32 v{wa+4+t}, 65536, v{wa+t}')
    p.ins(f's_lshl_b32 {sr(sfl)}, s2, 7\ns_lshl_b32 {sr(s0)}, {sr(sw)}, 28\ns_add_u32 {sr(sfl)}, {sr(sfl)}, {sr(s0)}\ns_add_u32 {sr(sfl)}, {sr(sfl)}, {FL_U}\ns_lshl_b32 {sr(s0)}, s2, 2\ns_add_u32 {sr(s0)}, {sr(s0)}, {sr(sw)}\ns_lshl_b32 {sr(s0)}, {sr(s0)}, 7\ns_add_u32 {sr(sfl+1)}, {sr(s0)}, {FL_X}')
    vtb = k.vtb
    p.wait(vm=[('tb', q) for q in range(NPART)])
    for i in range(2): p.ins(f'v_add_f32 v{vtb+i}, v{vtb+i}, v{vtb+2+i}\nv_add_f32 v{vtb+4+i}, v{vtb+4+i}, v{vtb+6+i}\nv_add_f32 v{vtb+i}, v{vtb+i}, v{vtb+4+i}')
    p.ins(f'v_lshrrev_b32 v{T}, 5, v{vl}\nv_xor_b32 v{T+1}, 1, v{T}\nv_cvt_f32_u32 v{T+1}, v{T+1}')
    for rep in range(2):
        p.ins(f'v_cvt_pk_bf16_f32 v{vtb+2}, v{vtb}, v{vtb+1}\nv_lshlrev_b32 v{vtb}, 16, v{vtb+2}\nv_and_b32 v{vtb+1}, 0xffff0000, v{vtb+2}')
        if rep == 0: p.ins(f'v_add_f32 v{vtb}, v{vtb}, v{T+1}\nv_add_f32 v{vtb+1}, v{vtb+1}, v{T+1}')
    p.ins(f'v_lshrrev_b32 v{vtb+3}, 16, v{vtb+2}\nv_and_b32 v{vtb+2}, 0xffff, v{vtb+2}\ns_add_u32 {sr(s0)}, {sr(sWL)}, {LB}\nv_lshlrev_b32 v{T}, 8, v{T}\nv_lshl_add_u32 v{T}, v{vl}, 3, v{T}\nv_add_u32 v{T}, {sr(s0)}, v{T}')
    p.lg(f'ds_write_b64 v{T}, {vr(vtb+2,2)}', None, w=(LB, LB + 4096), priv=True)
    p.lg(f'ds_write_b64 v{T}, {vr(vtb,2)} offset:256', None, w=(LB, LB + 4096), priv=True)
    p.ins(f's_bitcmp1_b32 s2, 3\ns_cselect_b64 {sr(sJ,2)}, {sr(sWu,2)}, {sr(sWg,2)}\ns_mov_b32 {sr(sJ+2)}, {DM * FF * 2}')
    for r_ in range(4): smov64(p, sMk + 2 * r_, lanemask(lambda l: ((l & 7) >> 1) == r_))
    iy()
    p.wait(vm=[('D', (3, 0, g), i) for g in range(2) for i in range(4)])
    p.T('y_a'); cy(); p.T('y_b')
    for ts in range(cfg.get('a0', 2)):
        for m in range(4):
            for j in range(2):
                pre, main = aop(3, ts, j, m); pre(); main()
    p.ins(f'v_bfe_u32 v{T}, v{vl}, 3, 1\nv_lshlrev_b32 v{T}, 9, v{T}\nv_and_b32 v{T+1}, 1, v{vl}\nv_lshl_add_u32 v{T}, v{T+1}, 8, v{T}\nv_lshrrev_b32 v{T+1}, 4, v{vl}\nv_lshl_add_u32 v{T}, v{T+1}, 6, v{T}\nv_add_u32 v{vt+1}, {sr(s0)}, v{T}')
    p.ins(f's_bfe_u32 {sr(s0)}, s2, 0x20004\ns_lshl_b32 {sr(s0)}, {sr(s0)}, 8\nv_and_b32 v{T}, 15, v{vl}\nv_lshl_add_u32 v{T}, v{T}, 4, {sr(s0)}\nv_cmp_gt_u32 vcc, 896, v{T}\nv_mov_b32 v{T+2}, {OOB}\nv_mul_u32_u24 v{T+1}, {16 * 7168}, v{T+1}\nv_cndmask_b32 v{T}, v{T+2}, v{T}, vcc')
    p.ins(f's_lshr_b32 {sr(s0)}, s2, 6\ns_lshl_b32 {sr(s0)}, {sr(s0)}, 2\ns_add_u32 {sr(s0)}, {sr(s0)}, {sr(sw)}\ns_mul_i32 {sr(s0)}, {sr(s0)}, {64 * 7168}\ns_mul_i32 {sr(s1)}, {sr(sx)}, 896\ns_add_u32 {sr(s0)}, {sr(s0)}, {sr(s1)}\nv_add3_u32 v{vt}, v{T}, v{T+1}, {sr(s0)}')
    W.emit_early()
    for i, nm in tuple(cfg.get('marks', ())) + ((1, 'g3_m1'), (4 * 112, 'g3_s4'), (z3, 'g3_fin'), (pl1 + PD, 'p1a'), (pl1 + PD + 1, 'p1b'), (z4, 'g4_m1'), (pl2 + PD, 'p2a'), (pl2 + PD + 1, 'p2b'), (z4 + NE * 64, 'g4_L'), (zf, 'g4_fin')):
        st.pre.setdefault(i, []).insert(0, f';@T {nm}')
    st.emit()
    p.T('g4_end')
    def own():
        for i in (0, 2, 1, 3):
            m, q = divmod(i, 2)
            for t in range(2):
                for e in range(4): p.ins(f'v_fmac_f32 v{vf+8*i+4*t+e}, v{vg+8*q+4*t+e}, v{acc4(4+2*q+t,m)+e}')
    tail += [(N - 1, 0, own)]
    for _, _, o in sorted(tail, key=lambda x: x[:2]): p.ins(o) if isinstance(o, str) else o()
    for i in range(4):
        p.ins(f's_waitcnt vmcnt({3 - i})')
        for o in addp(2, i): p.ins(o)
    for i in range(4):
        m, q = divmod(i, 2); f_ = vf + 8 * i; x_ = vx1 + 4 * i
        for d in range(4): p.ins(f'v_cvt_pk_bf16_f32 v{x_+d}, v{f_+2*d}, v{f_+2*d+1}')
        p.ins(f'v_permlane16_swap_b32 v{x_}, v{x_+2}\nv_permlane16_swap_b32 v{x_+1}, v{x_+3}')
        p.lg(f'ds_write_b128 v{vxa+q}, {vr(x_,4)} offset:{2048*m}', None, w=(XL, XL + 16384), priv=True)
        if q:
            for h in range(2): p.lg(f'ds_read_b128 {vr(vf+16*m+4*h,4)}, v{vxa+2} offset:{2048*m+1024*h}', ('o', 2 * m + h), r=(XL, XL + 16384), priv=True)
    for i in range(4):
        if i: p.ins(f's_add_u32 {sr(sro)}, {sr(sro)}, 16384')
        p.wait(lg=[('o', i)])
        p.vm(f'buffer_store_dwordx4 {vr(vf+16*(i>>1)+4*(i&1),4)}, v{vro}, {sr(sOut,4)}, {sr(sro)} offen {cfg.get("ofl", "sc1")}')
    k.st = st
    k.end()
    return k
```

```python
import re
from asmlib import *
MFMA = 'v_mfma_f32_16x16x32_bf16'
A0 = AOFF

def regs(tok):
    tok = tok.strip().lstrip('-')
    m = re.fullmatch(r'([vsa])(\d+)', tok)
    if m: return {(m.group(1), int(m.group(2)))}
    m = re.fullmatch(r'([vsa])\[(\d+):(\d+)\]', tok)
    if m: return {(m.group(1), i) for i in range(int(m.group(2)), int(m.group(3)) + 1)}
    if tok == 'vcc': return {('s', 106), ('s', 107)}
    if tok == 'vcc_lo': return {('s', 106)}
    if tok == 'vcc_hi': return {('s', 107)}
    if tok == 'm0': return {('m', 0)}
    if tok in ('exec', 'exec_lo', 'exec_hi'): return {('e', 0)}
    return set()
TRANS = ('v_exp_f32', 'v_rcp_f32', 'v_sqrt_f32', 'v_rsq_f32', 'v_log_f32')
_pc = {}
def parse(line):
    if line in _pc: return _pc[line]
    I = _parse(line); _pc[line] = I
    return I
def _parse(line):
    line = line.split(';')[0].strip()
    if not line or line.endswith(':') or line.startswith('.'): return None
    op, _, rest = line.partition(' ')
    ops = [o.strip() for o in re.split(r',(?![^\[]*\])', rest)] if rest else []
    if ops:
        last = ops[-1].split(' ')
        ops[-1] = last[0]; mods = last[1:]
    else: mods = []
    I = dict(op=op, txt=line, w=set(), r=set(), kind='other', mods=mods)
    R = [regs(o) for o in ops]
    U = lambda x: set().union(*x) if x else set()
    if op.startswith('v_mfma'):
        I.update(kind='mfma', w=R[0], a=R[1] | R[2], c=R[3], r=R[1] | R[2] | R[3])
    elif op.startswith('v_'):
        I['kind'] = 'valu'
        if op.startswith('v_cmp'): I['w'] = R[0]; I['r'] = U(R[1:])
        elif op.startswith('v_permlane'): I['w'] = R[0] | R[1]; I['r'] = R[0] | R[1]
        elif op in ('v_add_co_u32', 'v_addc_co_u32'): I['w'] = R[0] | R[1]; I['r'] = U(R[2:])
        else:
            I['w'] = R[0]; I['r'] = U(R[1:])
            if op.startswith('v_fmac') or op.startswith('v_writelane') or op.startswith('v_dot2c') or 'dpp' in op: I['r'] |= R[0]
    elif op.startswith('buffer_') or op.startswith('global_'):
        I['kind'] = 'vmem'
        lds = 'lds' in mods
        I['lds'] = lds
        if 'store' in op or 'atomic' in op:
            I['r'] = U(R); I['data'] = R[0] if op.startswith('buffer_') else R[1]
            I['wide'] = 'x4' in op or 'x3' in op
        elif lds: I['r'] = U(R) | {('m', 0)}
        else: I['w'] = R[0]; I['r'] = U(R[1:])
    elif op.startswith('ds_'):
        I['kind'] = 'ds'
        if 'read' in op: I['w'] = R[0]; I['r'] = R[1]
        else: I['r'] = U(R)
    elif op.startswith('s_'):
        I['kind'] = 'salu'
        if op.startswith(('s_cmp', 's_bitcmp', 's_cbranch', 's_branch', 's_waitcnt', 's_barrier', 's_nop', 's_setprio', 's_endpgm', 's_sleep')):
            I['r'] = U(R)
            if op in ('s_cbranch_vccz', 's_cbranch_vccnz'): I['r'] = regs('vcc')
        else:
            I['w'] = R[0] if R else set(); I['r'] = U(R[1:])
    I['ws'] = int(ops[0]) + 1 if op == 's_nop' else 1
    return I

def need(p, c):
    n = 0
    vw = {x for x in p['w'] if x[0] in 'va'}; sw = {x for x in p['w'] if x[0] == 's'}
    if p['kind'] == 'valu':
        if c['kind'] == 'mfma' and vw & c['r']: n = 2
        if c['kind'] == 'valu' and (c['op'].startswith('v_permlane') or 'dpp' in c['op']) and vw & c['r']: n = 2
        if c['op'].startswith(('v_readfirstlane', 'v_readlane')) and vw & c['r']: n = max(n, 1)
        if p['op'] in TRANS and c['kind'] in ('valu',) and c['op'] not in TRANS and vw & c['r']: n = max(n, 1)
        if p['op'].startswith('v_dot2') and c['kind'] in ('valu', 'vmem', 'ds', 'mfma') and c['op'] != p['op'] and vw & (c['r'] | c['w']): n = max(n, 3)
        if sw & c['r']:
            if c['kind'] == 'valu': n = max(n, 4 if c['op'].startswith(('v_readlane', 'v_writelane')) else 2)
            if c['kind'] == 'vmem': n = 5
            if c['kind'] == 'salu': n = max(n, 5 if c['op'].startswith('s_cbranch_vcc') else 1)
    if p['kind'] == 'mfma':
        if c['kind'] == 'mfma':
            if p['w'] & c['a']: n = 8
            elif p['w'] & c['c'] and p['w'] != c['c']: n = 6
            elif p['w'] & c['w'] and p['w'] != c['c']: n = 6
        elif c['kind'] in ('valu', 'vmem', 'ds') and p['w'] & (c['r'] | c['w']): n = 8
        if c['kind'] == 'valu' and p['c'] & c['w']: n = max(n, 3)
    if p['kind'] == 'salu' and ('m', 0) in p['w'] and c['kind'] == 'vmem' and c.get('lds'): n = 1
    if p['kind'] == 'vmem' and p.get('wide') and p['data'] & c['w']: n = 2 if c['kind'] in ('valu', 'mfma') else 1
    return n

def fix_hazards(lines, report=None):
    out = []
    hist = [[]]
    pend = {}
    nins = 0
    for l in lines:
        s = l.strip()
        if s.endswith(':') and not s.startswith(';'):
            hist = hist + pend.pop(s[:-1], [])
            out.append(l); continue
        c = parse(l)
        if c is None:
            out.append(l); continue
        short = 0
        for h in hist:
            d = 0
            for p in reversed(h):
                short = max(short, need(p, c) - d)
                d += p['ws']
                if d >= 8: break
        if short > 0:
            nop = f'  s_nop {short - 1}'
            out.append(nop); nins += short
            if report is not None: report.append((short, s))
            for h in hist: h.append(parse(nop))
        out.append(l)
        for h in hist: h.append(c)
        hist = [h[-9:] for h in hist]
        if len(hist) > 1:
            k = {}
            for h in hist: k[tuple(x['txt'] for x in h)] = h
            hist = list(k.values())
        if c['op'].startswith('s_cbranch') or c['op'] == 's_branch':
            t = s.split()[-1]
            pend.setdefault(t, []).extend([list(h) for h in hist])
            if c['op'] == 's_branch': hist = [[]]
    return out, nins

class Prog2(Prog):
    def vm(self, text, tag=None, w=None, priv=False, grp=None):
        self.items.append(('vm', text, tag, None, w, priv, grp))
    def lg(self, text, tag=None, r=None, w=None, priv=False):
        self.items.append(('lg', text, tag, r, w, priv))
    def bar(self):
        self.ins('s_barrier')
    def T(self, name):
        self.ins(f';@T {name}')
    chains = None
    def check_chains(self):
        errs = []; own = {}; last = {}
        for i, x in enumerate(self.items):
            if x[0] not in ('ins', 'vm', 'lg'): continue
            I = parse(x[1])
            if I is None: continue
            c = (self.chains or {}).get(i)
            R = set(I['r'])
            if I['op'].startswith(('s_cselect', 's_cbranch_scc', 's_addc')): R.add(('c', 0))
            Wr = set(I['w'])
            if I['kind'] == 'salu' and not I['op'].startswith(('s_mov', 's_mul', 's_cselect', 's_cbranch', 's_branch', 's_wait', 's_barrier', 's_nop', 's_load', 's_getpc', 's_bfm')): Wr.add(('c', 0))
            if c is not None:
                for r in R:
                    if (c, r) in own and last[r] != c: errs.append(f'chain {c}: {r} of [{x[1]}] was overwritten by chain {last[r]}')
            if x[1].endswith('; M') and I['c']: continue
            for r in Wr:
                last[r] = c
                if c is not None: own[(c, r)] = i
        return errs
    def events(self):
        ev = []; q = {'vm': [], 'lg': []}; ep = 0
        pendreg = {}; lastw = {}
        errs = []
        extra_q = []; nret = [0]
        def retire(k, n, i):
            if k == 'vm':
                tot = len(q[k]) + nret[0]
                for pos, o in [y for y in extra_q if tot - y[0] >= n]:
                    extra_q.remove((pos, o))
                    for r in o['w']:
                        if pendreg.get(r) is o: del pendreg[r]
                nret[0] += max(0, len(q[k]) - n)
            while len(q[k]) > n:
                o = q[k].pop(0)
                for e in o['ev']: e[5] = ep; e[7] = i
                for r in o['w']:
                    if pendreg.get(r) is o: del pendreg[r]
        for i, x in enumerate(self.items):
            k = x[0]
            if k == 'wait':
                if len(x) > 5: continue
                if x[3] is not None: retire('vm', min(x[3], 63), i)
                if x[4] is not None: retire('lg', min(x[4], 15), i)
                continue
            if k == 'def':
                for r in parse(x[1])['w']:
                    lastw[r] = x[2]
                    o = dict(ev=[], w={r}, t=x[1]); pendreg[r] = o; extra_q.append((len(q['vm']) + nret[0], o))
                continue
            if k not in ('ins', 'vm', 'lg'): continue
            I = parse(x[1])
            if I is None or (k == 'ins' and '; cond' in x[1]): continue
            if I['op'] == 's_waitcnt':
                if 'cond' in x[1]: continue
                m = re.search(r'vmcnt\((\d+)\)', x[1]);  m and retire('vm', int(m.group(1)), i)
                m = re.search(r'lgkmcnt\((\d+)\)', x[1]); m and retire('lg', int(m.group(1)), i)
                continue
            if I['op'] == 's_barrier': ep += 1; continue
            for r in (I['r'] | I['w']):
                if r in pendreg and not (k in ('vm', 'lg') and r in I['w'] and r not in I['r'] and 'dummy' in str(x[2])):
                    errs.append(f'register {r} still pending from [{pendreg[r]["t"]}] at [{x[1]}]')
            if x[1].endswith('; M'):
                for r in I['a']:
                    t = lastw.get(r)
                    if not (isinstance(t, tuple) and t[0] in ('W', 'w', 'wo', 'A')): errs.append(f'operand {r} of [{x[1]}] last written by {t}')
                for r in I['c']:
                    if lastw.get(r) not in ('M', 'v_fmac_f32'): errs.append(f'accumulator {r} of [{x[1]}] last written by {lastw.get(r)}')
            for r in I['w']: lastw[r] = x[2] if k in ('vm', 'lg') else 'M' if x[1].endswith('; M') else I['op']
            if k in ('vm', 'lg'):
                o = dict(ev=[], w=I['w'], t=x[1])
                if len(x) > 3:
                    for kind, rg in (('r', x[3]), ('w', x[4])):
                        if rg:
                            e = [kind, rg[0], rg[1], x[5], ep, None, i, None, x[1], k, x[6] if len(x) > 6 else None]; o['ev'].append(e); ev.append(e)
                for r in I['w']: pendreg[r] = o
                q[k].append(o)
        return ev, errs, ep

def check_lds(evs):
    errs = []
    for pa, A in enumerate(evs):
        for pb, B in enumerate(evs):
            for b in B:
                for a in A:
                    if a is b or (a[0] == 'r' and b[0] == 'r'): continue
                    if a[2] <= b[1] or b[2] <= a[1]: continue
                    if a[3] and b[3]:
                        if pa == pb and a[6] < b[6] and (a[9] == 'vm' or b[9] == 'vm') and not (a[7] is not None and a[7] < b[6]):
                            errs.append(f'private LDS order [{a[8]}] -> [{b[8]}]')
                        continue
                    ok = (a[5] is not None and a[5] < b[4]) or (b[5] is not None and b[5] < a[4])
                    if not ok and a[0] == 'w' and b[0] == 'w' and a[10] is not None and a[10] == b[10]: ok = True
                    if not ok and (pa, a[6]) < (pb, b[6]):
                        errs.append(f'LDS race {a[0]}[{a[1]},{a[2]}) ep {a[4]}..{a[5]} [{a[8]}]  vs {b[0]}[{b[1]},{b[2]}) ep {b[4]}..{b[5]} [{b[8]}]')
    return errs

def kind(t):
    o = t.strip().split(' ')[0]
    if not o or o.startswith(';') or o.endswith(':'): return ''
    if o.startswith('v_mfma'): return 'M'
    if o.startswith('v_'): return 't' if o in TRANS or o.startswith(('v_permlane', 'v_pk_', 'v_dot')) else 'v'
    if o.startswith('ds_read'): return 'd'
    if o.startswith('ds_write'): return 'W' if '128' in o else 'w' if '64' in o else 'd'
    if o.startswith(('buffer_store', 'global_store')): return 'W' if 'x4' in o else 'w' if 'x2' in o else 'd'
    if o.startswith(('buffer_', 'global_')): return 'm'
    if o.startswith(('s_cbranch', 's_branch')): return 'b'
    if o == 's_nop': return 's' * (int(t.split()[1]) // 4 + 1)
    return 's'
def slot_time(ks):
    t = 4; tot = 0; prev = 'M'
    for c in ks:
        if c == 'M': tot += max(16, t); t = 4
        elif c in 'vt': t = max(t, 8) + (4 if c == 'v' else 8)
        else: t += {'d': 8, 'W': 24, 'w': 16, 'b': 13}.get(c, 4) + (8 if c == 'm' and prev in 'vt' else 0)
        prev = c
    return t, tot + max(16, t)
def op(f, cost=1):
    f.kinds = 's' * cost if isinstance(cost, int) else cost
    return f

class Stream:
    def __init__(self, p):
        self.p = p
        self.m = []
        self.pre = {}
        self.post = {}
        self.end = {}
        self.touched = set()
    def n(self): return len(self.m)
    def kinds(self, o):
        if isinstance(o, str): return ''.join(kind(t) for t in o.split('\n'))
        if not hasattr(o, 'kinds'):
            p = self.p; a = len(p.items); o(); o.kinds = ''.join('s' if x[0] == 'wait' else kind(x[1]) for x in p.items[a:] if x[0] in ('ins', 'vm', 'lg', 'wait')); del p.items[a:]
        return o.kinds
    def mfma(self, c, a, b, zero=None):
        if zero is None:
            zero = c not in self.touched
        self.touched.add(c)
        self.m.append(f'{MFMA} {vr(c,4)}, {vr(a,4)}, {vr(b,4)}, {0 if zero else vr(c,4)} ; M')
        return len(self.m) - 1
    def before(self, i, o):
        if i == 0: self.pre.setdefault(0, []).append(o)
        else: self.post.setdefault(i - 1, []).insert(0, (o, self.kinds(o), None))
    def where(self, i, ks, c):
        L = self.post.get(i, []); j = len(L)
        if ks and ks[0] not in 'vtM':
            while j and L[j - 1][2] is not None and L[j - 1][2] != c and L[j - 1][1] and set(L[j - 1][1]) <= set('vt'): j -= 1
        return j
    def time(self, i, ks='', c=None):
        L = [x[1] for x in self.post.get(i, [])]
        L.insert(self.where(i, ks, c), ks)
        return slot_time(''.join(L) + ''.join(self.kinds(o) for o in self.end.get(i, [])))
    def at(self, i, o, c=None):
        ks = self.kinds(o)
        self.post.setdefault(i, []).insert(self.where(i, ks, c) if c is not None else len(self.post.get(i, [])), (o, ks, c))
    def last(self, i, o):
        self.end.setdefault(i, []).append(o)
    nchain = [0]
    def fill(self, ops, start, cap=2, stop=None, dry=False):
        i = start; last = len(self.m) - 1
        self.nchain[0] += 1; c = self.nchain[0]; placed = []
        bud = lambda j: 8 + 4 * (int(cap * (j + 1)) - int(cap * j))
        for o in ops:
            if isinstance(o, tuple):
                if o[0] == 'gap': i += o[1]
                elif o[0] == 'from': i = max(i, o[1])
                continue
            ks = self.kinds(o); alone = slot_time(ks)[0]; i0 = i
            while i < last:
                t = self.time(i, ks, c)[0]
                if 'M' in ks or t <= bud(i): break
                if alone > 16 and (t <= alone + 4 or i >= i0 + 3): break
                if i >= i0 + 5 and t <= bud(i) + 4: break
                i += 1
            i = min(i, last)
            self.at(i, o, c); placed.append(i)
        if dry:
            for j in set(placed): self.post[j] = [x for x in self.post[j] if x[2] != c]
        return i
    def fit(self, ops, start, stop):
        cap = 2.0
        while self.fill(ops, start, cap, dry=True) > stop:
            cap += 0.125; assert cap < 30
        return self.fill(ops, start, cap)
    def vmem(self, ops, gap, start=0):
        pend = sorted(ops, key=lambda o: (o['dl'], o['e']))
        t = float(start); lastu = None; lastm = -1
        while pend:
            i = int(t + 0.999)
            av = [o for o in pend if o['e'] <= i]
            if not av:
                t = min(o['e'] for o in pend); continue
            if i + 2 >= len(self.m):
                assert all(o['dl'] >= len(self.m) for o in pend), 'vmem op after the end of the stream'
                return pend
            same = [x for x in av if x['id'] != 'x' and isinstance(x['id'][0], tuple) and x['id'][0] == lastu]
            o = same[0] if same else av[0]; pend.remove(o)
            if o['id'] != 'x': lastu = o['id'][0]
            self.nchain[0] += 1; c = self.nchain[0]
            j = max(i + 1, lastm)
            if gap(i) * o.get('wt', 1) >= 3 and j + 1 <= o['dl'] and self.time(j + 1)[0] < self.time(j)[0]: j += 1
            assert j <= o['dl'], ('vmem op misses its deadline', i, o)
            o['t'] = j
            if o.get('pre'):
                cand = [x for x in (j - 1, j - 2) if x >= max(lastm, o['e'], 0)] or [j]
                self.at(min(cand, key=lambda x: self.time(x, self.kinds(o['pre']))[0]), o['pre'], -c)
            self.at(j, o['main'], -c); lastm = j
            t = max(t, i - 0.999) + max(gap(i) * o.get('wt', 1), 1)
        return []
    def emit(self, a=0, b=None):
        p = self.p
        if p.chains is None: p.chains = {}
        def run(o, c=None):
            a_ = len(p.items)
            p.ins(o) if isinstance(o, str) else o()
            if c is not None:
                for j in range(a_, len(p.items)): p.chains[j] = c
        self.est = []; lastt = 0
        for i in range(a, len(self.m) if b is None else b):
            for o in self.pre.get(i, []):
                if isinstance(o, str) and o.startswith(';@T t'):
                    o += f'e{sum(self.est[lastt:])}'; lastt = i
                run(o)
            p.ins(self.m[i]); a_ = len(p.items)
            for o, _, c in self.post.get(i, []): run(o, c)
            for o in self.end.get(i, []): run(o)
            self.est.append(slot_time(''.join('s' if x[0] == 'wait' else kind(x[1]) for x in p.items[a_:] if x[0] in ('ins', 'vm', 'lg', 'wait') and 'cond' not in str(x[1])))[1])
```

```python
from n3 import *
def k_g12(cfg, nxt=None):
    k = K4(cfg.get('name', 'k3_qkv_kernel')); p, S = k.p, k.S
    sX = k.srd('x', A_X, M * DM * 2); sWS = k.srd('ws', WS, WSZ); sWq = k.srd('wq', A_WQKV, DM * 3072 * 2)
    sWo = k.srd('wo', A_WO, DM * DM * 2); sWm = k.srd('wm', W_MOD, 1024 * 6144 * 2); sC = k.srd('c', IN_C, 2048)
    sWg = k.srd('wg', B_WG, DM * FF * 2); sWu = k.srd('wu', B_WU, DM * FF * 2); sWd = k.srd('wd', B_WD, FF * DM * 2); sOut = k.srd('out', OUT, M * DM * 2)
    sw = S.alloc('w'); sWL = S.alloc('wl'); sTok = k.tok = S.alloc('tok')
    k.common = dict(sWS=sWS, sWg=sWg, sWu=sWu, sWd=sWd, sOut=sOut, sw=sw, sWL=sWL, dead=(sWq, sWo))
    assert sWm == sWo + 4
    sy = S.alloc('y', 3)
    smark = S.next
    sm = S.alloc('mt'); sn = S.alloc('nt'); s0 = S.alloc('t0'); s1 = S.alloc('t1'); s2_ = S.alloc('t2'); sv = S.alloc('vm', 2); scnt = S.alloc('cnt')
    sR = S.alloc('R', 4); sR2 = S.alloc('R2', 4); srot = S.alloc('rot', 2); svw = S.alloc('vw'); sva = S.alloc('va'); sW4 = S.alloc('w4', 2); sHalo = S.alloc('halo'); soo = S.alloc('oo'); sfl = S.alloc('fl', 4); sjo = S.alloc('jo', 2); sy2 = sfl + 2
    mA = S.alloc('mask', 14, 2)
    vl16, trA, vdW, vdO, vdJ, vA, vp, vpb, vkw, vqw, vrd, vvt, vt, vM, ACC, RING, TMP = 1, 3, 9, 10, 11, 12, 13, 15, 17, 18, 19, 20, 21, 24, 28, 76, 116
    wreg = lambda b: A0 + 4 * b if b < 63 else 124 + 4 * (b - 63)
    vl = 0
    rtab = lambda T_, r_=srot: F(f's_and_b32 {sr(s0)}, {sr(sw)}, 1\ns_add_u32 {sr(s0)}, {sr(s0)}, {sr(r_)}') + [x for c in range(4) for x in F(f's_add_u32 {sr(T_+c)}, {sr(s0)}, {2*c}\ns_and_b32 {sr(T_+c)}, {sr(T_+c)}, 7\ns_lshl_b32 {sr(T_+c)}, {sr(T_+c)}, 12')]
    curw = [None, None]
    def dmaw(u, srd, vo_, lo_, c, ld, add, fl=''):
        out = []
        for jq in range(4):
            def pre(jq=jq):
                p.ins(f's_add_u32 m0, {sr(sWL)}, {lo_ + jq * 4096}')
                if jq == 0:
                    curw[0] = u
                    if c is None: p.ins(f's_mov_b32 {sr(svw)}, {add}')
                    else: p.ins(f's_add_u32 {sr(svw)}, {sr(srot + (u[0] == "wo"))}, {c}\ns_and_b32 {sr(svw)}, {sr(svw)}, 7\ns_mul_i32 {sr(svw)}, {sr(svw)}, {128 * ld}' + (f'\ns_add_u32 {sr(svw)}, {sr(svw)}, {add}' if add else ''))
                else: p.ins(f's_add_u32 {sr(svw)}, {sr(svw)}, {32 * ld}')
                assert curw[0] == u
            main = lambda jq=jq: p.vm(f'buffer_load_dwordx4 v{vo_}, {sr(srd,4)}, {sr(svw)} offen {fl} lds'.replace('  ', ' '), ('D', u, jq), w=(lo_ + jq * 4096, lo_ + jq * 4096 + 4096))
            out.append((op(pre, 2 if jq else 4), main))
        return out
    lastm0 = [None]
    def dmaa(u, vo_, lo_, n, sbase, add, swl):
        out = []
        for i in range(n):
            def pre(i=i):
                m = f's_add_u32 m0, {sr(swl)}, {lo_}'
                prev = [x[1] for x in p.items if x[0] == 'ins' and ' m0,' in x[1]]
                if prev[-1] != m: p.ins(m)
                if i == 0: curw[1] = u; p.ins(f's_add_u32 {sr(sva)}, {sr(sbase)}, {add}')
                assert curw[1] == u
            main = lambda i=i: p.vm(f'buffer_load_dwordx4 v{vo_}, {sr(sWS,4)}, {sr(sva)} offen offset:{1024 * i} sc1 lds', ('D', u, i), w=(lo_, lo_ + 4096 * n), grp=u)
            out.append((op(pre, 0 if i else 2), main))
        return out
    DBL = [x for c in range(4) for x in ((('q', 2 * c), ('q', 2 * c + 1)), (('k', 2 * c), ('v', 2 * c)), (('k', 2 * c + 1), ('v', 2 * c + 1)))]
    nf = cfg.get('nf', 6)
    LA1, LA2 = cfg.get('LA1', 20), cfg.get('LA2', 16)
    acc = lambda ps, t, e: ACC + 24 * (ps % 2) + (t * 2 + e) * 4
    il = cfg.get('il', 0)
    acch = lambda t: TMP + 4 * (t - 1) if il else ACC + 24 + (t * 2) * 4
    acc2 = lambda j, t: 128 + 8 * (j % 2) + 4 * t
    jp = cfg.get('jpos', 545 if il else 358); JS = cfg.get('JS', 10)
    jw, jb, ja = TMP, None, None
    def plan(al):
        st = Stream(p); W = WS_(st, [RING + 4 * i for i in range(10 if il else 12)])
        lo = lambda u: al.get(u, 1 if u[0] == 'v' else 0) * 16384
        def U(u, dm, **kw): W.unit(u, lo(u), lo(u) + 16384, dm, **kw)
        for c in range(8):
            for si, sg in enumerate('qkv'):
                u = (sg, c); U(u, dmaw(u, sWq, vdW, lo(u), c, 6144, si * 2048))
            u = ('wo', c); U(u, dmaw(u, sWo, vdO, lo(u), c, 2048, 0, cfg.get('wofl', '')))
        for ps in range(4):
            for c in range(4):
                u = ('a', ps, c); U(u, dmaa(u, vA, lo(u), 4, sR + c, (2 * ps + 1) * 32768, sW4))
                u = ('o', ps, c); U(u, dmaa(u, vdW, lo(u), 4, sR2 + c, 2 * ps * 32768, sW4))
        for hf in range(2):
            u = ('j', hf); U(u, dmaw(u, sWm, vdJ, lo(u), None, 12288, hf * 128 * 12288, MODNT[1]), wt=cfg.get('jwt', 1))
        HB = [QKV + 8192 * c for c in range(4)]
        for c in range(4):
            u = ('h', c); W.unit(u, HB[c], HB[c] + 8192, dmaa(u, vl16, HB[c], 2, sR + c, sr(sHalo), sW4 + 1))
        def trs(us, t_reg, dst, off, s, lr, tag, span=2048, lim=None):
            b = lo(us[0]) // 65536
            for h in range(2):
                while lim and 0 <= s < lim and 'd' in ''.join(x[1] for x in st.post.get(s, [])): s += 1
                o = lo(us[0]) % 65536 + off + 2048 * h
                W.rd(us, s, lr if lr else s + 6, f'ds_read_b64_tr_b16 {vr(dst + 2 * h,2)}, v{t_reg + 3 * b} offset:{o}', tag + (h,), (65536 * b + o, 65536 * b + o + span))
                s += 1
            return s
        def wreads(d, s):
            a_, b_ = DBL[d]
            L = [([u], 0, 4 * u[1] + jj, jj) for u in (a_, b_) for jj in range(4)] if a_[0] == 'q' else [([a_, b_], t, 4 * a_[1] + jj, jj) for jj in range(4) for t in (1, 2)]
            for i, (us, t, j, jj) in enumerate(L):
                s = trs(us, trA + t, wreg(3 * j + t), jj * 4096, s, None, ('w', j, t), 2048 if t == 0 else 2048 + 16384, 10**6)
                if s >= 0: W.units[us[0]]['force'] = ('w', j, t, 1)
        I = dict(P=[], done={})
        for d in range(nf): wreads(d, -10000 + 100 * d)
        def afr(u, off, areg=vl16, span=1024):
            b = lo(u) // 65536
            return (u, areg + b, 65536 * b, lo(u) % 65536 + off, span)
        need = {}
        def g1q(ps, c):
            for j0 in range(8 * c, 8 * c + 8, 2):
                need.setdefault(j0 // 4, st.n())
                fr = [afr(('a', ps, j0 // 8), e * 8192 + ((j0 + jj) % 8) * 1024) for e in range(2) for jj in range(2)]
                fh = [(('h', j0 // 8), vp, 131072, HB[j0 // 8] - 131072 + ((j0 + jj) % 8) * 1024) for jj in range(2)]
                seq = [(0, 0), (0, 1), (1, 1), (1, 0), (2, 0), (2, 1)]
                mk = lambda seq, f0: [(acc(ps, t, e) if e < 2 else acch(t), wreg(3 * (j0 + jj) + t), ('f', 2 * e + jj - f0)) for i, (t, e) in enumerate(seq) for jj in ((0, 1) if i % 2 == 0 else (1, 0))]
                lg = [('w', j0 + jj, t, 1) for jj in range(2) for t in range(3)] if ps == 0 else []
                if ps == 0 and il:
                    W.group(fh, mk([(1, 2), (2, 2)], 4), cfg.get('LAi', (14, 18))[0], kind='b', lg=lg)
                    W.group(fr, mk(seq, 0), cfg.get('LAi', (14, 18))[1], kind='b')
                elif ps == 0: W.group(fr + fh, mk(seq + [(2, 2), (1, 2)], 0), LA1, kind='b', lg=lg)
                else: W.group(fr, mk(seq, 0), LA1 if ps > 1 or not il or c > 1 else cfg.get('LAi', (14, 18))[1], kind='b')
        I['P'].append(0)
        for ps, c in ([(0, 0), (1, 0), (0, 1), (1, 1), (0, 2), (0, 3), (1, 2), (1, 3)] if il else [(ps, c) for ps in range(2) for c in range(4)]) + [(ps, c) for ps in (2, 3) for c in range(4)]:
            if c == 0:
                for r_ in range(ACC + 24 * (ps % 2), ACC + 24 * (ps % 2) + 24, 4): st.touched.discard(r_)
                if ps == 1 and not il:
                    for r_ in (RING + 40, RING + 44): W.until[r_] = st.n()
            g1q(ps, c)
            if c == 3 and ps < 3: I['P'].append(st.n())
        T0 = st.n(); I['T0'] = T0
        I['Q'] = []
        for ps in range(4):
            I['Q'].append(st.n())
            for t in range(2): st.touched.discard(acc2(ps, t))
            for j0 in range(0, 32, 2):
                fr = [afr(('o', ps, j0 // 8), ((j0 + jj) % 8) * 1024, vdO2, 1024 + 8192) for jj in range(2)]
                mf = [(acc2(ps, t), wreg(2 * (j0 + jj) + t), ('f', jj)) for t in range(2) for jj in ((0, 1) if t == 0 else (1, 0))]
                W.group(fr, mf, LA2, kind='b', wait=j0 % 4 == 0, lg=[('wo', j0 + jj, t, 1) for jj in range(2) for t in range(2)] if ps == 0 else [])
        for d, s in zip(range(nf, 12), cfg.get('wsl', {8: (0, 44, 92, 140), 6: (0, 44, 76, 108, 140, 188), 7: (0, 44, 92, 140, 182)}.get(nf))):
            assert s + 30 <= need[DBL[d][0][1]], (d, s, need)
            wreads(d, s)
        s = 0
        for c, (s_, dbl) in enumerate(cfg.get('wos', ((24, 0), (53, 0), (84, 1), (84, 1), (115, 1), (115, 1), (145, 1), (145, 1)))):
            s = max(s, s_ + I['P'][3])
            for i in range(8):
                b = 8 * c + i; j, t = divmod(b, 2)
                s = max(s, I['P'][3] + 12 * (b // 6) + 12)
                s = trs([('wo', c)], trA + 1 + t, wreg(b), (j % 4) * 4096, s, None, ('wo', j, t), lim=None if dbl else 10**6)
                if dbl and i % 2: s -= 1
            W.units[('wo', c)]['force'] = ('wo', 4 * c + 3, 1, 1)
        for ks in range(8):
            s = jp + JS * ks
            trs([('j', ks // 4)], trA, TMP + 4 * (ks % 2), (ks % 4) * 4096, s, s + 12, ('jw', ks))
        if nxt:
            for i, (_, ts, g) in enumerate(k.early3):
                u, lo_, hi_, dm = dm3(ts, g); W.unit(u, lo_, hi_, dm); W.units[u].update(fr=st.n() + 10 + i, lr=st.n() + 10 + i)
        W.finish_waits()
        return st, W, I
    k.perm = [[0, 1, 2, 3], [0, 1, 2, 3]]; k.early3 = [(3, ts, g) for ts in range(4) for g in (1, 0)][:cfg.get('ne3', 4)]
    su3, dm3 = g3_early(k, s0, s1, sv, ACC + 40 if il else TMP)
    vdO2 = 22
    st, W, I = plan({})
    P, T0 = I['P'], I['T0']
    ab = [P[1] + 24, P[2] + 21, P[3] + 21, T0 + cfg.get('ab3', 8)]
    bars = sorted(set(ab) | set(cfg.get('b0', ((43, 75, 107, 139, 171, 187) if nf == 6 else (43, 91, 139, 181)) + (235, 331, 397, 523, 571, 619))) | {T0 + x for x in cfg.get('b2', (-140, -109, -78, -48, -17, 47, 79, 111, 143, 175, 207))})
    k.bars = bars
    rel = lambda u: min([b_ for b_ in bars if b_ >= W.units[u]['lr']] + [10**6]) + W.units[u]['lr'] * 1e-4
    al = {}; ft = [0] * 8
    for d in range(nf):
        for i, u in enumerate(DBL[d]): al[u] = 2 * (d % 4) + i; ft[al[u]] = -1000 + d
    chk_it = nf - cfg.get('chk', 2)
    front = {}
    rest = sorted((u for u in W.units if u not in al and u[0] not in ('h', 3)), key=lambda u: W.units[u]['fr'])
    for d in range(nf - 3, nf):
        sl = 2 * ((d - 1) % 4)
        if d < chk_it: us = [u for u in rest if u in [x for D_ in DBL for x in D_]][:2]; assert tuple(us) in DBL
        elif d == chk_it: us = [u for u in rest if u[0] == 'a'][:2]
        else: ft[sl] = ft[sl + 1] = -1000; front[d] = []; continue
        for i, u in enumerate(us): al[u] = sl + i; ft[sl + i] = rel(u); rest.remove(u)
        front[d] = us if d < chk_it else [('h', 0), us[0], us[1]] if il else [us[0], ('h', 0), us[1], ('h', 1)]
    for u in rest:
        if u in al: continue
        if u[0] == 'k':
            sl = min((0, 1, 2, 4, 5, 6), key=lambda x: max(ft[x], ft[x + 1])); al[('v', u[1])] = sl + 1; ft[sl + 1] = rel(u)
        elif u[0] == 'o' and u[1] >= cfg.get('oforce', 9): sl = ((4, 0, 5, 1), (6, 2, 7, 3))[u[1] % 2][u[2]]
        else: sl = min(range(8), key=lambda x: ft[x])
        if ft[sl] == -1000 and u[0] in 'qka': front[nf - 1] += [u] + ([('v', u[1])] if u[0] == 'k' else [])
        al[u] = sl; ft[sl] = rel(u)
    k.perm = [sorted(range(4), key=lambda x: ft[4 * g + x]) for g in range(2)]
    st, W, I = plan(al)
    if cfg.get('dbg'):
        for u in sorted(W.units, key=lambda u: W.units[u]['fr']): print(u, al.get(u), W.units[u]['fr'], W.units[u]['lr'])
        print(front)
    k.al = al
    P, Q, T0, N = I['P'], I['Q'], I['T0'], st.n()
    def issue(us):
        for u in us:
            for pre, main in W.units[u]['dmas']: pre(); main()
    lt, vx, vf, vq, vjc = 28, 44, 60, 92, 23
    vo, vpo, vsw, vsr, vpw, vmr, vone, vm_, q0 = lt, lt + 1, lt + 2, lt + 3, lt + 4, lt + 5, lt + 6, lt + 7, lt + 8
    sx_, sfm, smp, sho, sms = sWg + 2, sWg + 3, sWu + 2, sWd + 2, sOut + 2
    late = [x for x in k.srds if x[0] in (sWg, sWu, sWd, sOut)]; k.srds = [x for x in k.srds if x not in late]
    if cfg.get('body', 1) == 0: p.ins(';@BODY\n;@FROM')
    p.ins(f'v_lshrrev_b32 v{vt}, 6, v0\nv_and_b32 v0, 63, v0\nv_readfirstlane_b32 {sr(sw)}, v{vt}\nv_lshrrev_b32 v{vt+1}, 3, v{vl}')
    p.ins(f'v_bfe_u32 v{vdJ}, v{vt+1}, 1, 2\nv_bfe_u32 v{vt+2}, v{vl}, 1, 2\nv_xor_b32 v{vdJ}, v{vdJ}, v{vt+2}\nv_lshlrev_b32 v{vdJ}, 5, v{vdJ}\nv_and_b32 v{vt+2}, 1, v{vl}\nv_lshl_add_u32 v{vdJ}, v{vt+2}, 4, v{vdJ}')
    p.ins(f's_lshl_b32 {sr(sWL)}, {sr(sw)}, 10\ns_lshl_b32 {sr(s0)}, {sr(sw)}, 3\nv_add_u32 v{vdO}, {sr(s0)}, v{vt+1}')
    p.ins(f's_and_b32 {sr(s0)}, s2, 7\ns_lshl_b32 {sr(s0)}, {sr(s0)}, 7\nv_add_u32 v{vm_}, {sr(s0)}, v{vdO}\nv_mul_u32_u24 v{vm_}, 12288, v{vm_}\ns_lshr_b32 {sr(s1)}, s2, 3\ns_lshl_b32 {sr(s1)}, {sr(s1)}, 7\nv_add3_u32 v{vm_}, v{vm_}, v{vdJ}, {sr(s1)}')
    p.ins(f's_and_b32 {sr(s1)}, {sr(sw)}, 1\ns_lshl_b32 {sr(s1)}, {sr(s1)}, 6\ns_add_u32 {sr(s0)}, {sr(s0)}, {sr(s1)}\nv_add_lshl_u32 v{vpb+1}, {sr(s0)}, v{vl}, 1')
    m16 = cfg.get('m16')
    if m16: p.ins(f's_and_b32 {sr(sn)}, s2, 7\ns_lshl_b32 {sr(sn)}, {sr(sn)}, 1\ns_bfe_u32 {sr(s0)}, s2, 0x10003\ns_add_u32 {sr(sn)}, {sr(sn)}, {sr(s0)}\ns_lshr_b32 {sr(sm)}, s2, 4')
    else: tilemap(k, 'g1', sm, sn, s0, s1)
    p.ins(f's_lshl_b32 {sr(s2_)}, {sr(sm)}, 4\ns_add_u32 {sr(s2_)}, {sr(s2_)}, {sr(sn)}')
    p.ins(f'v_and_b32 v{vt}, 7, v{vl}\nv_lshlrev_b32 v{vo}, 11, v{vt}\nv_lshl_add_u32 v{vo}, v{vt+1}, 4, v{vo}\nv_mov_b32 v{vpo}, {WS_TOK}')
    p.ins(f's_lshr_b32 {sr(sho)}, {sr(s2_)}, 1\ns_lshl_b32 {sr(sho)}, {sr(sho)}, 15\ns_and_b32 {sr(s1)}, {sr(s2_)}, 1\ns_lshl_b32 {sr(s1)}, {sr(s1)}, 2\ns_add_u32 {sr(s1)}, {sr(s1)}, {sr(sw)}\ns_lshl_b32 {sr(s0)}, {sr(s1)}, 8\ns_add_u32 {sr(sx_)}, {sr(sho)}, {sr(s0)}')
    k.finish_srds()
    p.T('f_k')
    p.vm(f'buffer_load_ushort v{vpb}, v{vpb+1}, {sr(sC,4)}, 0 offen', 'mc')
    for pre, main in dmaw('m', sWm, vm_, QKV, None, 12288, 0, MODNT[0]): pre(); main()
    p.vm(f'buffer_load_dword v{q0}, v{vpo}, {sr(sWS,4)}, 0 offen sc1', 'tok')
    p.ins(f's_and_b32 {sr(s0)}, s2, 3\ns_lshl_b32 {sr(s0)}, {sr(s0)}, 2\ns_add_u32 {sr(s0)}, {sr(s0)}, {sr(sw)}\ns_lshl_b32 {sr(s0)}, {sr(s0)}, 7\nv_lshlrev_b32 v{vjc}, 1, v{vl}')
    p.vm(f'buffer_load_ushort v{vjc}, v{vjc}, {sr(sC,4)}, {sr(s0)} offen', 'jc')
    def xload(oth):
        for rh in range(2):
            if oth and rh == 0: p.ins(f's_xor_b32 {sr(sx_)}, {sr(sx_)}, 1024')
            p.ins(f's_add_u32 {sr(s0)}, {sr(sx_)}, {16384 * rh}')
            for i in range(2):
                p.vm(f'buffer_load_dwordx4 {vr((vq if oth else vx)+8*rh+4*i,4)}, v{vo}, {sr(sX,4)}, {sr(s0)} offen offset:{128*i} {cfg.get("xfl", "nt")}', ('x', oth))
    xload(0)
    if cfg.get('body', 1) == 1: p.ins(';@BODY\n;@FROM')
    p.ins(f'v_lshlrev_b32 v{vl16}, 4, v{vl}\nv_add_u32 v{vl16+1}, 65536, v{vl16}\nv_add_u32 v{vp}, 131072, v{vl16}')
    p.ins(f's_lshl_b32 {sr(srot)}, {sr(sn)}, {2 if m16 else 1}\ns_add_u32 {sr(srot)}, {sr(srot)}, {sr(sm)}' if cfg.get('rot', 1) == 1 else f's_lshl_b32 {sr(srot)}, {sr(sn)}, 2\ns_add_u32 {sr(srot)}, {sr(srot)}, {sr(sm)}' if cfg.get('rot') == 2 else f's_mov_b32 {sr(srot)}, {sr(sm)}')
    p.ins(f'v_mul_u32_u24 v{vdW}, 6144, v{vdO}\ns_lshl_b32 {sr(s0)}, {sr(sn)}, 7\nv_add3_u32 v{vdW}, v{vdW}, v{vdJ}, {sr(s0)}')
    p.ins(f's_lshl_b32 {sr(s0)}, {sr(s1)}, 12\ns_add_u32 {sr(sho)}, {sr(sho)}, {sr(s0)}\ns_add_u32 {sr(sho+1)}, {sr(sho)}, {WS_XA}\ns_add_u32 {sr(sho)}, {sr(sho)}, {WS_H}\ns_lshl_b32 {sr(smp)}, {sr(s1)}, 9\ns_add_u32 {sr(smp)}, {sr(smp)}, {WS_MP8}\ns_lshl_b32 {sr(smp+1)}, {sr(s1)}, 11\ns_add_u32 {sr(smp+1)}, {sr(smp+1)}, {FL_M}')
    script = cfg.get('script', 'code x1 tqc addr gemv tqd addr2 su su2 stats stats2 sus warm mld D8 mod xa D8 hpub it+8 D8 it+8 it+8 hpoll it+8 it hchk it+8').split()
    early = sorted(W.early, key=lambda x: x[:2])
    avail = [x for d in range(4) for u in DBL[d] for x in W.units[u]['dmas']]; nit = [0]
    def D(n):
        for _ in range(n):
            if avail: pre, main = avail.pop(0); pre(); main()
    def it():
        d = nit[0]; nit[0] += 1
        p.wait(vm=[('D', u, i) for u in DBL[d] for i in range(4)], lg='all'); p.bar()
        if cfg.get('fm'): p.T(f'it{d}')
        for s, _, f in early:
            if -10000 + 100 * d <= s < -10000 + 100 * d + 100: f()
        if d >= 1 and d != chk_it: avail.extend(x for u in (front[d] if d in front else DBL[d + 3]) for x in W.units[u]['dmas'])
    def addr():
        t_ = q0 + 4
        p.ins(f'v_lshrrev_b32 v{t_+1}, 2, v{vl}\nv_bfe_u32 v{t_}, v{t_+1}, 1, 2\nv_lshlrev_b32 v{t_}, 5, v{t_}\nv_lshl_add_u32 v{t_}, v{t_+1}, 7, v{t_}\nv_and_b32 v{t_+1}, 3, v{vl}\nv_lshl_add_u32 v{t_}, v{t_+1}, 3, v{t_}')
        p.ins(f's_lshl_b32 {sr(s0)}, {sr(sw)}, 5\nv_xor_b32 v{trA}, {sr(s0)}, v{t_}\ns_and_b32 {sr(s0)}, {sr(s0)}, 64\ns_and_b32 {sr(s1)}, {sr(sw)}, 1\ns_lshl_b32 {sr(s1)}, {sr(s1)}, 14\ns_add_u32 {sr(s0)}, {sr(s0)}, {sr(s1)}\nv_xor_b32 v{trA+1}, {sr(s0)}, v{t_}\nv_xor_b32 v{trA+2}, 32, v{trA+1}')
        for t in range(3): p.ins(f'v_add_u32 v{trA+3+t}, 65536, v{trA+t}')
        p.ins(f'v_add_u32 v{vm_}, {QKV}, v{trA}')
        p.ins(f'v_lshrrev_b32 v{vsw}, 5, v{vl}\nv_lshlrev_b32 v{vsw}, 6, v{vsw}\nv_bfe_u32 v{t_}, v{vl}, 2, 2\nv_lshl_add_u32 v{vsw}, v{t_}, 4, v{vsw}\nv_bfe_u32 v{t_}, v{vl}, 4, 1\nv_lshl_add_u32 v{vsw}, v{t_}, 3, v{vsw}\nv_lshl_add_u32 v{vsw}, v{t_+1}, 1, v{vsw}\ns_lshl_b32 {sr(s0)}, {sr(sw)}, 7\ns_add_u32 {sr(s0)}, {sr(s0)}, {JT}\nv_add_u32 v{vsw}, {sr(s0)}, v{vsw}')
        p.ins(f'v_lshrrev_b32 v{vpw}, 4, v{vl}\nv_lshlrev_b32 v{vpw}, 4, v{vpw}\nv_add_u32 v{vsr}, {JT}, v{vpw}\nv_and_b32 v{t_}, 15, v{vl}\nv_lshl_add_u32 v{vpw}, v{t_}, 27, v{vpw}')
        p.ins(f's_and_b32 {sr(s0)}, s2, 7\ns_lshl_b32 {sr(s0)}, {sr(s0)}, 13\ns_lshr_b32 {sr(s1)}, s2, 3\ns_lshl_b32 {sr(s1)}, {sr(s1)}, 8\ns_add_u32 {sr(s0)}, {sr(s0)}, {sr(s1)}\ns_lshl_b32 {sr(s1)}, {sr(sw)}, 6\ns_add_u32 {sr(s0)}, {sr(s0)}, {sr(s1)}\ns_add_u32 {sr(sms)}, {sr(s0)}, {WS_MP8}')
        p.ins(f's_lshl_b32 {sr(s1)}, {sr(sw)}, 28\ns_lshl_b32 {sr(sfm)}, s2, 7\ns_add_u32 {sr(sfm)}, {sr(sfm)}, {sr(s1)}\ns_add_u32 {sr(sfm)}, {sr(sfm)}, {FL_M}')
        p.ins(f's_lshl_b32 {sr(sfl)}, {sr(s2_)}, 7\ns_add_u32 {sr(sfl)}, {sr(sfl)}, {sr(s1)}\ns_add_u32 {sr(sfl+1)}, {sr(sfl)}, {FL_H}\ns_add_u32 {sr(sfl)}, {sr(sfl)}, {FL_O}')
    tagm = 'mld' in script; stg = (sv, sv + 1, sva, s2_)
    def gemv():
        g_ = vf
        p.wait(vm=['mc'])
        p.ins(f'v_lshlrev_b32 v{vpb}, 16, v{vpb}\nv_mul_f32 v{vpb+1}, {f32(-LOG2E)}, v{vpb}\nv_exp_f32 v{vpb+1}, v{vpb+1}\nv_add_f32 v{vpb+1}, 1.0, v{vpb+1}\nv_rcp_f32 v{vpb+1}, v{vpb+1}\nv_mul_f32 v{vpb}, v{vpb}, v{vpb+1}\nv_cvt_pk_bf16_f32 v{vpb}, v{vpb}, v{vpb}')
        p.lg(f'ds_write_b16 v{vsw}, v{vpb}', None, w=(JT, JT + 512))
        p.wait(vm=[('D', 'm', i) for i in range(4)], lg='all'); p.bar(); p.T('f_m')
        for ks in range(4):
            for h in range(2): p.lg(f'ds_read_b64_tr_b16 {vr(g_+4*ks+2*h,2)}, v{vm_} offset:{4096*ks+2048*h}', None, r=(QKV, QKV + 16384))
            p.lg(f'ds_read_b128 {vr(g_+16+4*ks,4)}, v{vsr} offset:{64*ks}', ('mr', ks), r=(JT, JT + 512))
        p.wait(vm=['tok']); p.ins(f'v_readfirstlane_b32 {sr(sTok)}, v{q0}\ns_add_u32 {sr(sTok)}, {sr(sTok)}, 8')
        if tagm:
            p.ins(f's_mul_i32 {sr(s0)}, {sr(sTok)}, 0x13c6ef37\nv_mov_b32 v{q0}, 0xff\n' + '\n'.join(f's_bfe_u32 {sr(stg[i])}, {sr(s0)}, {hex(0x80000 + 8 * i)}' for i in range(4)))
        for ks in range(4):
            p.wait(lg=[('mr', ks)])
            p.ins(f'{MFMA} {vr(q0+4,4)}, {vr(g_+4*ks,4)}, {vr(g_+16+4*ks,4)}, {vr(q0+4,4) if ks else 0}')
        if tagm:
            for i in range(4): p.ins(f'v_bfi_b32 v{q0+4+i}, v{q0}, {sr(stg[i])}, v{q0+4+i}')
        p.vm(f'buffer_store_dwordx4 {vr(q0+4,4)}, v{vpw}, {sr(sWS,4)}, {sr(sms)} offen sc1', 'ms'); p.T('f_ms')
    def stats():
        p.ins(f's_lshl_b32 {sr(s1)}, {sr(sw)}, 4\nv_lshlrev_b32 v{vsr}, 6, v{vt}\nv_add_u32 v{vsr}, {LS}, v{vsr}\nv_add_u32 v{vsw}, {sr(s1)}, v{vsr}\nv_mov_b32 v{vone}, 0x3f803f80')
        for i in range(4): p.ins(f'v_mov_b32 v{q0+i}, 0')
        for oth in range(2):
            p.wait(vm=[('x', oth)])
            for d in range(8):
                for rh in range(2):
                    x_ = (vq if oth else vx) + 8 * rh + d
                    p.ins(f'v_dot2c_f32_bf16 v{q0+2*rh}, v{x_}, v{vone}\nv_dot2c_f32_bf16 v{q0+2*rh+1}, v{x_}, v{x_}')
        p.ins('s_nop 2')
        for i in range(4): p.ins(f'v_add_f32_dpp v{q0+i}, v{q0+i}, v{q0+i} row_ror:8 row_mask:0xf bank_mask:0xf')
        for sw_ in (16, 32):
            for i in range(4): p.ins(f'v_mov_b32 v{q0+4+i}, v{q0+i}')
            for i in range(4): p.ins(f'v_permlane{sw_}_swap_b32 v{q0+i}, v{q0+4+i}')
            for i in range(4): p.ins(f'v_add_f32 v{q0+i}, v{q0+i}, v{q0+4+i}')
        p.lg(f'ds_write_b128 v{vsw}, {vr(q0,4)}', None, w=(LS, LS + 512))
    def stats2():
        for d in range(16): p.ins(f'v_lshlrev_b32 v{vf+2*d}, 16, v{vx+d}\nv_and_b32 v{vf+2*d+1}, 0xffff0000, v{vx+d}')
        p.wait(lg='all'); p.bar()
        for i in range(4): p.lg(f'ds_read_b128 {vr(vq+4*i,4)}, v{vsr} offset:{16*i}', None, r=(LS, LS + 512))
        for i in range(0, 16, 4): p.ins(f'v_permlane16_swap_b32 v{vx+i}, v{vx+i+2}\nv_permlane16_swap_b32 v{vx+i+1}, v{vx+i+3}')
        t_ = q0
        p.ins(f'v_bfe_u32 v{t_}, v{vl}, 3, 1\nv_lshlrev_b32 v{vo}, 9, v{t_}\nv_bfe_u32 v{t_}, v{vl}, 4, 1\nv_lshl_add_u32 v{vo}, v{t_}, 8, v{vo}\nv_lshrrev_b32 v{vone}, 5, v{vl}\nv_lshl_add_u32 v{vo}, v{vone}, 10, v{vo}\nv_lshl_add_u32 v{vo}, v{vt}, 4, v{vo}')
        p.ins(f'v_and_b32 v{vpo}, 31, v{vl}\nv_lshlrev_b32 v{vpo}, 4, v{vpo}\nv_lshl_add_u32 v{vpo}, v{vone}, 12, v{vpo}\nv_cvt_f32_u32 v{vone}, v{vone}')
        p.ins(f's_add_u32 {sr(s1)}, {sr(sWL)}, {LB}\nv_add_u32 v{vpw}, {sr(s1)}, v{vl16}\nv_lshl_add_u32 v{vmr}, v{vt+1}, 5, {sr(s1)}')
        p.ins(f'v_lshlrev_b32 v{t_}, 14, v{t_}\nv_and_b32 v{vm_}, 15, v{vl}\nv_lshl_add_u32 v{vm_}, v{vm_}, 7, v{t_}')
        p.wait(lg='all')
        for n_ in (8, 4):
            for x in range(n_): p.ins(f'v_add_f32 v{vq+x}, v{vq+x}, v{vq+n_+x}')
        Ls = []
        for rh in range(2):
            m_, v_ = vq + 2 * rh, vq + 2 * rh + 1
            Ls.append(F(f'v_mul_f32 v{m_}, {f32(1/1024)}, v{m_}\nv_mul_f32 v{v_}, {f32(1/1024)}, v{v_}\nv_fma_f32 v{v_}, -v{m_}, v{m_}, v{v_}\nv_max_f32 v{v_}, 0, v{v_}') + rb(v_) + [f'v_add_f32 v{v_}, {f32(1e-5)}, v{v_}'] + rb(v_)
                      + [f'v_sqrt_f32 v{v_}, v{v_}'] + rb(m_) + rb(v_) + F(f'v_rcp_f32 v{v_}, v{v_}\nv_mul_f32 v{m_}, v{m_}, v{v_}'))
        for x, y in zip(*Ls): p.ins(x + '\n' + y)
        for e in range(32): p.ins(f'v_fma_f32 v{vf+e}, v{vf+e}, v{vq+2*(e//16)+1}, -v{vq+2*(e//16)}')
    def xa():
        for i in range(4): p.vm(f'buffer_store_dwordx4 {vr(vx+4*i,4)}, v{vo}, {sr(sWS,4)}, {sr(sho+1)} offen offset:{2048*(i&1)+128*(i>>1)} sc1')
    im, cm = poll_ops(k, sWS, q0, smp + 1, 'plm', scnt, wg=False, va=vm_)
    def mchk():
        p.T('m_a'); cm(); p.T('m_b')
        for q in range(8):
            if q: p.ins(f's_add_u32 {sr(smp)}, {sr(smp)}, 8192')
            p.vm(f'buffer_load_dwordx4 {vr(vq+4*q,4)}, v{vpo}, {sr(sWS,4)}, {sr(smp)} offen sc1', ('part', q))
    pld = lambda q: f's_add_u32 {sr(s0)}, {sr(smp)}, {8192 * q}\nbuffer_load_dwordx4 {vr(vq+4*q,4)}, v{vpo}, {sr(sWS,4)}, {sr(s0)} offen sc1'.split('\n')
    def mld():
        p.T('m_a')
        for q in range(8): p.ins(pld(q)[0]); p.vm(pld(q)[1], ('part', q))
    def mtest():
        L = k.lab('MT')
        p.ins(f's_mov_b32 {sr(scnt)}, 20000\ns_branch {L}t')
        p.label(L)
        for q in range(8): p.ins(pld(q)[0] + '\n' + pld(q)[1] + ' ; cond')
        p.ins('s_waitcnt vmcnt(0) ; cond')
        p.label(L + 't')
        for q in range(8):
            p.wait(vm=[('part', q)])
            for i in range(4): p.ins(f'v_xor_b32 v{vq+4*q+i}, {sr(stg[i])}, v{vq+4*q+i}')
            p.ins(f'v_or3_b32 v{q0}, v{vq+4*q}, v{vq+4*q+1}, {"v%d" % q0 if q else 0}\nv_or3_b32 v{q0}, v{vq+4*q+2}, v{vq+4*q+3}, v{q0}')
        p.ins(f'v_and_b32 v{q0}, 0xff, v{q0}\nv_cmp_ne_u32 vcc, 0, v{q0}\ns_sub_u32 {sr(scnt)}, {sr(scnt)}, 1\ns_cmp_eq_u32 {sr(scnt)}, 0\ns_cbranch_scc1 {L}x\ns_cbranch_vccnz {L}')
        p.label(L + 'x'); p.T('m_b')
    def mod():
        if tagm: mtest()
        for q in range(1, 8):
            p.wait(vm=[('part', q)])
            for i in (0, 2): p.ins(f'v_pk_add_f32 {vr(vq+i,2)}, {vr(vq+i,2)}, {vr(vq+4*q+i,2)}')
        p.T('f_p')
        for rep in range(2):
            p.ins(f'v_cvt_pk_bf16_f32 v{vq+4}, v{vq}, v{vq+1}\nv_cvt_pk_bf16_f32 v{vq+5}, v{vq+2}, v{vq+3}')
            for i in (0, 2): p.ins(f'v_lshlrev_b32 v{vq+i}, 16, v{vq+4+i//2}\nv_and_b32 v{vq+i+1}, 0xffff0000, v{vq+4+i//2}')
            if rep == 0:
                for i in range(4): p.ins(f'v_add_f32 v{vq+i}, v{vone}, v{vq+i}')
        p.lg(f'ds_write_b128 v{vpw}, {vr(vq,4)}', None, w=(LB, LB + 4096), priv=True)
        for i in range(2):
            for h in range(2):
                p.lg(f'ds_read_b128 {vr(vq+8*i+4*h,4)}, v{vmr} offset:{256*i+16*h+512}', None, r=(LB, LB + 4096), priv=True)
                p.lg(f'ds_read_b128 {vr(vq+16+8*i+4*h,4)}, v{vmr} offset:{256*i+16*h}', ('mv', i), r=(LB, LB + 4096), priv=True)
        for i in range(2):
            p.wait(lg=[('mv', i)])
            for rh in range(2):
                f_ = vf + 16 * rh + 8 * i
                for e in range(0, 8, 2): p.ins(f'v_pk_fma_f32 {vr(f_+e,2)}, {vr(f_+e,2)}, {vr(vq+8*i+e,2)}, {vr(vq+16+8*i+e,2)}')
            for rh in range(2):
                f_ = vf + 16 * rh + 8 * i
                for d in range(4): p.ins(f'v_cvt_pk_bf16_f32 v{f_+d}, v{f_+2*d}, v{f_+2*d+1}')
            for rh in range(2):
                f_ = vf + 16 * rh + 8 * i
                p.ins(f'v_permlane16_swap_b32 v{f_}, v{f_+2}\nv_permlane16_swap_b32 v{f_+1}, v{f_+3}')
                p.vm(f'buffer_store_dwordx4 {vr(f_,4)}, v{vo}, {sr(sWS,4)}, {sr(sho)} offen offset:{2048*i+128*rh} sc1', ('hs', 2 * i + rh))
        p.T('f_hs')
    def addr2():
        p.ins(f's_lshl_b32 {sr(s0)}, {sr(sm)}, 18\ns_add_u32 {sr(s0)}, {sr(s0)}, {WS_H - 32768}\ns_max_u32 {sr(sHalo)}, {sr(s0)}, {WS_H}\ns_lshr_b32 {sr(s1)}, {sr(sw)}, 1\ns_lshl_b32 {sr(sW4)}, {sr(s1)}, 15\ns_add_u32 {sr(s0)}, {sr(s0)}, {sr(sW4)}\nv_add_u32 v{vA}, {sr(s0)}, v{vl16}')
        p.ins(f's_lshl_b32 {sr(s1)}, {sr(s1)}, 11\ns_add_u32 {sr(sHalo)}, {sr(sHalo)}, {sr(s1)}\ns_lshl_b32 {sr(sW4)}, {sr(sw)}, 12\ns_and_b32 {sr(s0)}, {sr(sW4)}, 4096\ns_add_u32 {sr(sW4+1)}, {sr(s0)}, {sr(s1)}')
        p.ins('\n'.join(rtab(sR)))
        p.ins(f's_lshl_b32 {sr(s0)}, {sr(sm)}, 4\ns_sub_u32 {sr(s0)}, {sr(s0)}, 2\nv_min_u32 v{vp+1}, 17, v{vl}\nv_add_u32 v{vp+1}, {sr(s0)}, v{vp+1}\nv_max_i32 v{vp+1}, 0, v{vp+1}\nv_lshlrev_b32 v{vp+1}, 7, v{vp+1}\nv_add_u32 v{vp+1}, {FL_H}, v{vp+1}')
    ih, ch = poll_ops(k, sWS, q0, None, 'plh', scnt, va=vp + 1)
    def hchk():
        assert nit[0] == chk_it + 1 and not avail
        p.T('h_a'); ch(); p.T('h_b'); issue(front[chk_it])
    def code():
        p.ins(f's_lshr_b32 {sr(mA+3)}, s2, 3\ns_lshl_b32 {sr(mA+3)}, {sr(mA+3)}, 2\ns_add_u32 {sr(mA+3)}, {sr(mA+3)}, {sr(sw)}\ns_lshl_b32 {sr(mA+3)}, {sr(mA+3)}, 10')
        code_op(k, vM, vl16, mA)
    T = TMP if False else vt
    q_ = lambda l: l & 15
    gg = lambda l: l >> 4
    vccm = lambda m: f's_mov_b32 vcc_lo, 0x{m & 0xffffffff:08x}\ns_mov_b32 vcc_hi, 0x{m >> 32:08x}'
    m64 = lambda s_, m: F(f's_mov_b32 {sr(s_)}, 0x{m & 0xffffffff:08x}\ns_mov_b32 {sr(s_+1)}, 0x{m >> 32:08x}')
    mpa = lanemask(lambda l: not (4 * gg(l) + (l & 1) <= q_(l))); mpb = lanemask(lambda l: not (4 * gg(l) + 2 + (l & 1) <= q_(l)))
    sb, sn2 = sjo + 1, sms + 1
    su = []
    su += F(f's_and_b32 {sr(s0)}, s2, 3\ns_lshl_b32 {sr(s0)}, {sr(s0)}, 8\nv_add_u32 v{q0+4}, {sr(s0)}, v{vdO}\nv_mul_u32_u24 v{q0+4}, 12288, v{q0+4}\ns_lshr_b32 {sr(s1)}, s2, 2\ns_add_u32 {sr(s1)}, {sr(s1)}, 32\ns_lshl_b32 {sr(s1)}, {sr(s1)}, 7')
    su += F(f'v_lshl_add_u32 v{vdO}, v{vdO}, 11, v{vdJ}\nv_add3_u32 v{vdJ}, v{q0+4}, v{vdJ}, {sr(s1)}')
    su += F(f's_and_b32 {sr(s0)}, {sr(sw)}, 1\ns_lshl_b32 {sr(s1)}, {sr(sm)}, 3\ns_add_u32 {sr(s1)}, {sr(s1)}, {sr(s0)}\ns_lshl_b32 {sr(soo)}, {sr(s1)}, 15\ns_lshl_b32 {sr(s1)}, {sr(sn)}, 1\ns_lshr_b32 {sr(scnt)}, {sr(sw)}, 1\ns_add_u32 {sr(s1)}, {sr(s1)}, {sr(scnt)}\ns_lshl_b32 {sr(s1)}, {sr(s1)}, 10\ns_add_u32 {sr(soo)}, {sr(soo)}, {sr(s1)}\ns_add_u32 {sr(soo)}, {sr(soo)}, {WS_O}')
    su += F(f's_mul_i32 {sr(scnt)}, {sr(scnt)}, 3072\ns_add_u32 {sr(scnt)}, {sr(scnt)}, {QKV}\nv_add_u32 v{vrd}, {sr(scnt)}, v{vl16}\ns_lshl_b32 {sr(s1)}, {sr(s0)}, 3\nv_add_u32 v{vqw}, {sr(s1)}, v{vrd}\ns_lshl_b32 {sr(s1)}, {sr(s0)}, 10\nv_add_u32 v{vkw}, {sr(s1)}, v{vrd}')
    su += F(f'v_lshrrev_b32 v{q0+4}, 2, v{vl}\nv_and_b32 v{vvt}, 3, v{vl}\nv_lshl_add_u32 v{q0+4}, v{vvt}, 4, v{q0+4}\nv_lshl_add_u32 v{vvt}, v{q0+4}, 4, {sr(scnt)}')
    for r_ in range(4): su += m64(mA + 2 * r_, lanemask(lambda l: 4 * gg(l) + r_ <= q_(l)))
    su += m64(mA + 8, lanemask(lambda l: l & 1)) + m64(mA + 10, mpa) + m64(mA + 12, mpb)
    su += F(f'v_mov_b32 v{q0+5}, 0xffff\nv_mov_b32 v{vM}, 0xffff0000\nv_cndmask_b32 v{q0+5}, v{q0+5}, v{vM}, {sr(mA+8,2)}\nv_cndmask_b32 v{vM}, 0, v{q0+5}, {sr(mA+10,2)}\nv_cndmask_b32 v{vM+1}, 0, v{q0+5}, {sr(mA+12,2)}\nv_xor_b32 v{vM+2}, v{vM}, v{q0+5}\nv_xor_b32 v{vM+3}, v{vM+1}, v{q0+5}')
    su.append(f's_or_b32 {sr(s0)}, {sr(s0)}, {sr(sm)}\ns_cmp_eq_u32 {sr(s0)}, 0\ns_cselect_b64 {sr(mA+10,2)}, {sr(mA+10,2)}, 0\ns_cselect_b64 {sr(mA+12,2)}, {sr(mA+12,2)}, 0')
    sus = [lambda: p.wait(vm=['jc'])]
    sus += F(f'v_lshlrev_b32 v{vpb}, 16, v{vjc}\nv_mul_f32 v{vpb+1}, {f32(-LOG2E)}, v{vpb}\nv_exp_f32 v{vpb+1}, v{vpb+1}\nv_lshrrev_b32 v{vt}, 5, v{vl}\nv_add_f32 v{vpb+1}, 1.0, v{vpb+1}\nv_rcp_f32 v{vpb+1}, v{vpb+1}\nv_lshlrev_b32 v{vt}, 6, v{vt}\nv_mul_f32 v{vpb}, v{vpb}, v{vpb+1}\nv_cvt_pk_bf16_f32 v{vpb+1}, v{vpb}, v{vpb}')
    sus += F(f'v_bfe_u32 v{vpb}, v{vl}, 2, 2\nv_lshl_add_u32 v{vt}, v{vpb}, 4, v{vt}\nv_bfe_u32 v{vpb}, v{vl}, 4, 1\nv_lshl_add_u32 v{vt}, v{vpb}, 3, v{vt}\nv_and_b32 v{vpb}, 3, v{vl}\nv_lshl_add_u32 v{vt}, v{vpb}, 1, v{vt}\ns_lshl_b32 {sr(s1)}, {sr(sw)}, 7\ns_add_u32 {sr(s1)}, {sr(s1)}, {JT}\nv_add_u32 v{vt}, {sr(s1)}, v{vt}')
    jtp = min(b_ for b_ in bars if b_ >= W.units[('h', 2)]['lr']) + 1
    st.at(jtp, lambda: p.lg(f'ds_write_b16 v{vt}, v{vpb+1}', 'jtw', w=(JT, JT + 512)))
    su2 = F(f's_bfe_u32 {sr(s1)}, s2, 0x30003\ns_lshl_b32 {sr(sn2)}, {sr(s1)}, 1\ns_and_b32 {sr(s0)}, s2, 1\ns_add_u32 {sr(sn2)}, {sr(sn2)}, {sr(s0)}\ns_and_b32 {sr(sb)}, s2, 4\ns_lshr_b32 {sr(s0)}, s2, 6\ns_add_u32 {sr(sb)}, {sr(sb)}, {sr(s0)}\ns_lshl_b32 {sr(sb)}, {sr(sb)}, 1')
    su2 += F(f's_add_u32 {sr(srot+1)}, {sr(sb)}, {sr(s1)}' if cfg.get('rot2', 1) else f's_mov_b32 {sr(srot+1)}, 0') + F(f's_bfe_u32 {sr(s0)}, s2, 0x10001\ns_add_u32 {sr(sb)}, {sr(sb)}, {sr(s0)}') + rtab(sR2, srot + 1)
    su2 += F(f's_lshl_b32 {sr(s0)}, {sr(sn2)}, 7\nv_add_u32 v{vdO}, {sr(s0)}, v{vdO}')
    su2 += F(f's_lshl_b32 {sr(s0)}, {sr(sb)}, 18\ns_lshr_b32 {sr(s1)}, {sr(sw)}, 1\ns_lshl_b32 {sr(s1)}, {sr(s1)}, 15\ns_add_u32 {sr(s1)}, {sr(s0)}, {sr(s1)}\ns_add_u32 {sr(sjo)}, {sr(s1)}, {WS_O}')
    su2v = [f's_mov_b32 {sr(x[0]+2+i)}, {(x[1], 0x20000)[i]}' for x in late for i in range(2)] + [f'v_add_u32 v{vdW}, {sr(sjo)}, v{vl16}'] + [f'v_and_b32 v{trA+t}, 0xffffbfff, v{trA+t}' for t in (1, 2, 4, 5)]
    su2 += F(f's_and_b32 {sr(s1)}, {sr(sw)}, 1')
    su2v += F(f's_lshl_b32 {sr(s0)}, {sr(sw)}, 13\ns_and_b32 {sr(s0)}, {sr(s0)}, 8192\nv_add_u32 v{vdO2}, {sr(s0)}, v{vl16}\nv_add_u32 v{vdO2+1}, {sr(s0)}, v{vl16+1}')
    su2 += F(f's_lshl_b32 {sr(s1)}, {sr(s1)}, 15\ns_add_u32 {sr(s0)}, {sr(s0)}, {sr(s1)}\ns_lshl_b32 {sr(s1)}, {sr(sn2)}, 1\ns_lshr_b32 {sr(scnt)}, {sr(sw)}, 1\ns_add_u32 {sr(s1)}, {sr(s1)}, {sr(scnt)}\ns_lshl_b32 {sr(sy2)}, {sr(s1)}, 7\ns_lshl_b32 {sr(s1)}, {sr(s1)}, 10\ns_add_u32 {sr(sy)}, {sr(s0)}, {sr(s1)}')
    su2 += F(f's_lshr_b32 {sr(s1)}, {sr(s1)}, 1\ns_lshl_b32 {sr(s0)}, {sr(sb)}, 1\ns_and_b32 {sr(scnt)}, {sr(sw)}, 1\ns_add_u32 {sr(s0)}, {sr(s0)}, {sr(scnt)}\ns_lshl_b32 {sr(s0)}, {sr(s0)}, 14\ns_add_u32 {sr(s0)}, {sr(s0)}, {sr(s1)}\ns_add_u32 {sr(sy+1)}, {sr(s0)}, {WS_ST2}')
    su2 += F(f's_lshl_b32 {sr(s0)}, {sr(sb)}, 11\ns_lshl_b32 {sr(s1)}, {sr(sn2)}, 7\ns_add_u32 {sr(s1)}, {sr(s1)}, {sr(s0)}\ns_lshl_b32 {sr(scnt)}, {sr(sw)}, 28\ns_add_u32 {sr(s1)}, {sr(s1)}, {sr(scnt)}\ns_add_u32 {sr(sy+2)}, {sr(s1)}, {FL_Y}')
    su2 += F(f's_add_u32 {sr(sfl+3)}, {sr(s0)}, {FL_O}')
    su2v += F(f'v_and_b32 v{vp+1}, 15, v{vl}\nv_lshlrev_b32 v{vp+1}, 7, v{vp+1}')
    def run(L):
        for o in L: p.ins(o) if isinstance(o, str) else o()
    def tw(i0, n):
        p.ins(f's_add_u32 {sr(s0)}, {sr(sw)}, {i0}\ns_lshr_b32 {sr(s1)}, {sr(s0)}, 1\ns_lshl_b32 {sr(s1)}, {sr(s1)}, 11\ns_and_b32 {sr(s0)}, {sr(s0)}, 1\ns_and_b32 {sr(scnt)}, {sr(sm if cfg.get("rot", 1) != 1 else srot)}, 7\ns_lshl_b32 {sr(scnt)}, {sr(scnt)}, 1\ns_add_u32 {sr(s0)}, {sr(s0)}, {sr(scnt)}\ns_mul_i32 {sr(s0)}, {sr(s0)}, {64 * 6144}\ns_add_u32 {sr(s0)}, {sr(s0)}, {sr(s1)}')
        p.ins(f's_lshl_b32 {sr(s1)}, {sr(sn)}, 7\ns_add_u32 {sr(s0)}, {sr(s0)}, {sr(s1)}\ns_cmp_lt_u32 {sr(sw)}, {n}\ns_cselect_b32 {sr(s0)}, {sr(s0)}, {OOB}\nv_mul_u32_u24 v{vpb+1}, 6144, v{vl}')
        p.vm(f'buffer_load_dword a252, v{vpb+1}, {sr(sWq,4)}, {sr(s0)} offen {cfg.get("tfl", "")}', 'dummy')
    def tw16():
        p.ins(f's_lshl_b32 {sr(s1)}, {sr(sw)}, 11\ns_mul_i32 {sr(s0)}, {sr(sm)}, {64 * 6144}\ns_add_u32 {sr(s0)}, {sr(s0)}, {sr(s1)}\ns_lshl_b32 {sr(s1)}, {sr(sn)}, 7\ns_add_u32 {sr(s0)}, {sr(s0)}, {sr(s1)}\ns_cmp_lt_u32 {sr(sw)}, 3\ns_cselect_b32 {sr(s0)}, {sr(s0)}, {OOB}\nv_mul_u32_u24 v{vpb+1}, 6144, v{vl}')
        p.vm(f'buffer_load_dword a252, v{vpb+1}, {sr(sWq,4)}, {sr(s0)} offen {cfg.get("tfl", "")}', 'dummy')
    def tq(i0, n):
        p.ins(f's_add_u32 {sr(s0)}, {sr(sw)}, {i0}\ns_sub_u32 {sr(s1)}, 5, {sr(s0)}\ns_bitcmp1_b32 s2, 2\ns_cselect_b32 {sr(s0)}, {sr(s1) if cfg.get("trev", 1) else sr(s0)}, {sr(s0)}')
        p.ins(f's_lshr_b32 {sr(s1)}, {sr(s0)}, 1\ns_lshl_b32 {sr(s1)}, {sr(s1)}, 11\ns_and_b32 {sr(s0)}, {sr(s0)}, 1\ns_lshr_b32 {sr(scnt)}, s2, 3\ns_lshl_b32 {sr(scnt)}, {sr(scnt)}, 1\ns_add_u32 {sr(s0)}, {sr(s0)}, {sr(scnt)}\ns_mul_i32 {sr(s0)}, {sr(s0)}, {16 * 6144}\ns_add_u32 {sr(s0)}, {sr(s0)}, {sr(s1)}')
        p.ins(f's_and_b32 {sr(s1)}, s2, 3\ns_lshl_b32 {sr(s1)}, {sr(s1)}, 9\ns_add_u32 {sr(s0)}, {sr(s0)}, {sr(s1)}\ns_cmp_lt_u32 {sr(sw)}, {n}\ns_cselect_b32 {sr(s0)}, {sr(s0)}, {OOB}\nv_lshrrev_b32 v{vpb+1}, 2, v{vl}\nv_mul_u32_u24 v{vpb+1}, {6144 - 512}, v{vpb+1}\nv_lshl_add_u32 v{vpb+1}, v{vl}, 7, v{vpb+1}')
        p.vm(f'buffer_load_dword a252, v{vpb+1}, {sr(sWq,4)}, {sr(s0)} offen', 'dummy'); p.items.append(('vmark', f'tq{i0}'))
    def tl():
        p.ins(f's_mul_i32 {sr(s0)}, s2, 3\ns_add_u32 {sr(s0)}, {sr(s0)}, {sr(sw)}\ns_lshl_b32 {sr(s0)}, {sr(s0)}, 13\ns_cmp_lt_u32 {sr(sw)}, 3\ns_cselect_b32 {sr(s0)}, {sr(s0)}, {OOB}\nv_lshlrev_b32 v{vpb+1}, 7, v{vl}')
        p.vm(f'buffer_load_dword a252, v{vpb+1}, {sr(sWq,4)}, {sr(s0)} offen', 'dummy')
    def tlb(sh, L=None):
        L = L or ((sWS, 0x5000000), (sWq, DM * 6144), (sWo, DM * 2048), (sWg, DM * FF * 2))
        p.ins(f's_mov_b64 {sr(mA,2)}, {sr(L[0][0],2)}\ns_mov_b32 {sr(mA+2)}, {L[0][1]}')
        for w_ in range(1, 4): p.ins(f's_cmp_eq_u32 {sr(sw)}, {w_}\ns_cselect_b64 {sr(mA,2)}, {sr(L[w_][0],2)}, {sr(mA,2)}\ns_cselect_b32 {sr(mA+2)}, {L[w_][1]}, {sr(mA+2)}')
        p.ins(f's_mov_b32 {sr(mA+3)}, 0x20000\nv_lshlrev_b32 v{vpb+1}, 21, v{vl}\ns_lshr_b32 {sr(s0)}, s2, 3\ns_lshl_b32 {sr(s0)}, {sr(s0)}, {sh}')
        p.vm(f'buffer_load_dword a252, v{vpb+1}, {sr(mA,4)}, {sr(s0)} offen', 'dummy')
    assert mA % 4 == 0
    steps = dict(mld=mld, wt=lambda: p.wait(vm=['tq0']), wu=lambda: p.wait(vm=['tq3']), tlb=lambda: tlb(16), tlb2=lambda: tlb(16, ((sWu, DM * FF * 2), (sWd, DM * FF * 2), (sOut, M * DM * 2), (sWm, DM * 12288))), tlb0=lambda: tlb(7), tqa=lambda: tq(0, 2), tqb=lambda: tq(2, 4), tqc=lambda: tq(0, 3), tqd=lambda: tq(3, 3), tl=tl, tw=tw16, sus=lambda: run(sus), su=lambda: run(su), su2=lambda: run(su2), twa=lambda: tw(0, 2), twb=lambda: tw(2, 4), twc=lambda: tw(0, 4), twd=lambda: tw(4, 2), stats2=stats2, x1=lambda: xload(1), addr=addr, gemv=gemv, stats=stats, xa=xa, mpoll=im, mchk=mchk, mod=mod, addr2=addr2, hpoll=ih, hchk=hchk, it=it, code=code,
                 warm=lambda: p.ins(f';@WARM {sr(sw)} 0 4'),
                 mpub=lambda: (pub_op(k, sWS, vpb, sfm, ['ms'])(), p.T('m_pub')),
                 hpub=lambda: (pub_op(k, sWS, vpb, sfl + 1, [('hs', i) for i in range(4)])(), p.T('h_pub')))
    for x in script:
        if x[0] == 'D': D(int(x[1:]))
        elif '+' in x:
            nm, n_ = x.split('+'); a_ = len(p.items); steps[nm](); body = p.items[a_:]; del p.items[a_:]
            def scc_dead(i):
                for y in body[i:]:
                    if y[0] == 'label': return False
                    if y[0] != 'ins': continue
                    o_ = y[1].split()[0]
                    if o_.startswith(('s_cselect', 's_cbranch', 's_addc')) or 'exec' in y[1]: return False
                    if o_.startswith('s_') and not o_.startswith(('s_mov', 's_mul', 's_wait', 's_barrier', 's_nop')): return True
                return True
            first_ = max([i + 1 for i, y in enumerate(body) if y == ('ins', 's_barrier')] + [0]) if nm == 'it' else 0
            n_ = int(n_); done_ = 0
            for i, y in enumerate(body):
                if i >= first_ and done_ < n_ and (i - first_) * n_ >= done_ * (len(body) - first_) and scc_dead(i): D(1); done_ += 1
                p.items.append(y)
            D(n_ - done_)
        else: steps[x]()
    assert nit[0] == nf and not avail
    first = [u for u in W.units if -100 < W.units[u]['fr'] <= bars[0]]
    for u in first: W.units[u]['vis'] = True
    pre_done = [u for d in front for u in front[d]]
    assert all(u in pre_done for u in first), first
    su2_beg = cfg.get('su2', 322 if il else 222)
    for hf in range(2): W.units[('j', hf)]['e'] = cfg.get('je', (380, 430) if il else (150, 250))[hf]
    PD = cfg.get('pd', 35)
    pls = [T0 + x - PD for x in cfg.get('plo', (-109, 47, 143))]
    for i, s in enumerate(pls):
        assert s + PD in bars
        i_, c_ = poll_ops(k, sWS, vp, sfl + 3, ('plo', i), scnt, cmp=f'v_subrev_u32 v{vp}, {sr(sTok)}, v{vp}\nv_subrev_u32 v{vp}, {i + 1}, v{vp}\nv_cmp_lt_u32 vcc, 3, v{vp}', bar=False)
        st.at(s + PD - cfg.get('pdo', (35, 35, 35))[i], i_); st.last(s + PD, f';@T o{i}a'); st.last(s + PD, c_); st.pre.setdefault(s + PD + 1, []).append(f';@T o{i}b')
    for ps in range(4):
        for c in range(4): W.units[('o', ps, c)]['e'] = pls[max(ps - 1, 0)] + PD + 1
    jc = T0 + cfg.get('jchk', -17); assert jc in bars
    ij, cj = poll4_ops(k, sWS, TMP, vt, 'plj', scnt, bar=False)
    st.at(jc - 62, f'v_lshlrev_b32 v{vt}, 7, v{vl}\nv_add_u32 v{vt}, {FL_J}, v{vt}'); st.at(jc - cfg.get('jpd', 45), ij); st.last(jc, cj)
    st.at(T0 + 105, op(lambda: (p.ins(f's_or_b32 {sr(scnt)}, s2, {sr(sw)}\ns_mov_b32 {sr(scnt)}, {WS_TOK}\ns_cselect_b32 {sr(scnt)}, {OOB}, {sr(scnt)}'), pub_op(k, sWS, vpb, scnt, [])()), 7))
    def pub_at(slot, tags, soff, add=0):
        b_ = min(x for x in bars if x >= slot)
        W.bw[b_] += tags; st.pre.setdefault(b_ + 1, []).append(pub_op(k, sWS, vpb, soff, [], add=add)); return b_
    su3_beg = P[2] + cfg.get('su3', 94); su3_end = P[3]
    for u in W.units:
        if u[0] == 3: W.units[u]['e'] = max(su3_end, T0 + cfg.get('w3e', 150))
    ops = W.dma_ops(bars, pre_done)
    for o in ops:
        if o['id'] in cfg.get('quiet', {}): o['wt'] = cfg['quiet'][o['id']]
        if o['id'][0][0] == 'j' and cfg.get('jdl'): o['dl'] = min(o['dl'], cfg['jdl'])
    extra = []
    def X(e, dl, main, pre=None, wt=1): extra.append(dict(e=e, dl=dl, main=main, pre=pre, id='x', wt=wt))
    vxa, vg, vc2, vone2, vst, vgo, f2, d2, Y2, D1 = 144, 160, 168, 176, 180, 181, 184, 192, 196, 224
    tj = max(jc + 3, T0 - 30)
    tx = T0 + cfg.get('tx', -10)
    st.at(tj - 1, f'v_and_b32 v{vt}, 31, v{vl}\nv_lshlrev_b32 v{vt}, 2, v{vt}\nv_lshrrev_b32 v{vgo}, 5, v{vl}\nv_lshl_add_u32 v{vt}, v{vgo}, 13, v{vt}')
    for q in range(NPART):
        pre = op(lambda q=q: p.ins(f's_add_u32 {sr(sv+1)}, {sr(sy2)}, {6144 * 4 * q + 2 * 4096}'), 1)
        X(tx, tx + 30, lambda q=q: p.vm(f'buffer_load_dword v{vg+q}, v{vt}, {sr(sWS,4)}, {sr(sv+1)} offen sc1', ('g', q)), pre, 0.5)
    assert tj > pls[0] + PD
    for j in range(4):
        pre = op(lambda j=j: p.ins(f's_add_u32 {sr(sv+1)}, {sr(sy)}, {WS_XA + 65536 * j}'), 1)
        X(tx, tx + 30, lambda j=j: p.vm(f'buffer_load_dwordx4 {vr(vxa+4*j,4)}, v{vl16}, {sr(sWS,4)}, {sr(sv+1)} offen sc1', ('xa', j)), pre, 0.6)
    vtb = k.vtb = 212
    st.at(T0 + 2, f's_lshr_b32 {sr(sjo+1)}, s2, 6\ns_lshl_b32 {sr(sjo+1)}, {sr(sjo+1)}, 2\ns_add_u32 {sr(sjo+1)}, {sr(sjo+1)}, {sr(sw)}\ns_lshl_b32 {sr(sjo+1)}, {sr(sjo+1)}, 8')
    st.at(T0 + 60, f'v_lshrrev_b32 v{vtb+8}, 5, v{vl}\nv_xor_b32 v{vtb+8}, 1, v{vtb+8}\nv_lshlrev_b32 v{vtb+8}, 12, v{vtb+8}')
    st.at(T0 + 62, f'v_and_b32 v{vtb+9}, 31, v{vl}\nv_lshl_add_u32 v{vtb+8}, v{vtb+9}, 3, v{vtb+8}')
    for q in range(NPART):
        pre = op(lambda q=q: p.ins(f's_add_u32 {sr(sv+1)}, {sr(sjo+1)}, {6144 * 4 * q + 3 * 4096}'), 1)
        X(T0 + cfg.get('tt', 190), T0 + cfg.get('tt', 190) + 60, lambda q=q: p.vm(f'buffer_load_dwordx2 {vr(vtb+2*q,2)}, v{vtb+8}, {sr(sWS,4)}, {sr(sv+1)} offen sc1', ('tb', q)), pre, 0.5)
    def touch_op(kind, j, nsel):
        def f():
            L = k.lab('TP')
            p.ins(f's_lshr_b32 {sr(scnt)}, s2, 3\ns_add_u32 {sr(scnt)}, {sr(scnt)}, s2\ns_and_b32 {sr(scnt)}, {sr(scnt)}, {nsel - 1}\ns_cmp_lg_u32 {sr(scnt)}, {j}\ns_cbranch_scc1 {L}')
            ld, srd = {'wo': (2048, sWo), 'wg': (7168, sWg), 'wu': (7168, sWu)}[kind]
            p.ins(f's_lshr_b32 {sr(scnt)}, s2, 3\ns_lshl_b32 {sr(scnt)}, {sr(scnt)}, 2\ns_add_u32 {sr(scnt)}, {sr(scnt)}, {sr(sw)}\ns_mul_i32 {sr(scnt)}, {sr(scnt)}, {8 * ld}')
            p.ins(f's_and_b32 vcc_lo, s2, {1 if kind == "wo" else 7}\ns_mul_i32 vcc_lo, vcc_lo, {1024 if kind == "wo" else 896}\ns_add_u32 {sr(scnt)}, {sr(scnt)}, vcc_lo')
            p.ins(f'v_lshrrev_b32 v{vpb}, 3, v{vl}\nv_mul_u32_u24 v{vpb}, {ld - 1024}, v{vpb}\nv_lshl_add_u32 v{vpb}, v{vl}, 7, v{vpb}')
            if kind != 'wo': p.ins('s_mov_b32 exec_lo, 0x7f7f7f7f\ns_mov_b32 exec_hi, 0x7f7f7f7f')
            p.ins(f'buffer_load_dword a253, v{vpb}, {sr(srd,4)}, {sr(scnt)} offen ; cond')
            if kind != 'wo': p.ins('s_mov_b64 exec, -1')
            p.label(L)
        return op(f, 6)
    def head_op():
        L = k.lab('TH')
        p.ins(f's_cmp_gt_u32 {sr(sw)}, 1\ns_cbranch_scc1 {L}\ns_cmp_eq_u32 {sr(sw)}, 0\ns_cselect_b64 {sr(sX,2)}, {sr(sWg,2)}, {sr(sWu,2)}')
        p.ins(f's_lshr_b32 {sr(scnt)}, s2, 3\ns_mul_i32 {sr(scnt)}, {sr(scnt)}, {8 * 7168}\ns_and_b32 vcc_lo, s2, 7\ns_mul_i32 vcc_lo, vcc_lo, 896\ns_add_u32 {sr(scnt)}, {sr(scnt)}, vcc_lo')
        p.ins(f'v_lshrrev_b32 v{vpb}, 3, v{vl}\nv_mul_u32_u24 v{vpb}, {7168 - 1024}, v{vpb}\nv_lshl_add_u32 v{vpb}, v{vl}, 7, v{vpb}\ns_mov_b32 exec_lo, 0x7f7f7f7f\ns_mov_b32 exec_hi, 0x7f7f7f7f')
        p.ins(f'buffer_load_dword a253, v{vpb}, {sr(sX,4)}, {sr(scnt)} offen {cfg.get("hfl", "")} ; cond\ns_mov_b64 exec, -1')
        p.label(L)
    if cfg.get('hd', 590): st.at(cfg.get('hd', 590), op(head_op, 6))
    for kind, pos in cfg.get('tp', {}).items():
        for j, s in enumerate(pos): st.at(s, touch_op(kind, j, len(pos)))
    gp = cfg.get('gaps', (4, 5, 3.5, 3, 1.5, 6))
    left = st.vmem(ops + extra, lambda i: gp[0] if i < P[1] else gp[1] if i < P[3] - 60 else gp[2] if i < T0 else gp[3] if i < pls[2] + PD else gp[4] if i < pls[2] + PD + 16 * gp[4] else gp[5])
    k.left = left
    k.vops = [o for o in ops if 't' in o]
    lastw = max(o['t'] for o in ops if o['id'][0][0] in ('q', 'k', 'v', 'h'))
    assert lastw + 1 < su2_beg and max(U_['lr'] for u, U_ in W.units.items() if u[0] in ('k', 'v')) < su2_beg, lastw
    W.bw[min(b_ for b_ in bars if b_ > jtp)].append(('lg', 'jtw'))
    e_ = st.fill(su2v, su2_beg); assert e_ < P[1]
    SC = (32 ** -0.5) * LOG2E
    mf_ = lambda d, a_, b_, c='0': op(lambda: p.ins(f'{MFMA} {vr(d,4)}, {vr(a_,4)}, {vr(b_,4)}, {c}'), 'M')
    for ps in range(4):
        s0_ = (P + [T0])[ps + 1]; L = []; tags = []
        for e in ((0, 1, 2) if ps == 0 else (0, 1)):
            sl = ((2 * ps + e + 1) % 3 if e < 2 else 0) * 6144
            c1, c2 = (acc(ps, 1, e), acc(ps, 2, e)) if e < 2 else (acch(1), acch(2))
            X_ = F(f'v_cvt_pk_bf16_f32 v{c1}, v{c1}, v{c1+1}\nv_cvt_pk_bf16_f32 v{c1+1}, v{c1+2}, v{c1+3}\nv_cvt_pk_bf16_f32 v{c1+2}, v{c2}, v{c2+1}\nv_cvt_pk_bf16_f32 v{c1+3}, v{c2+2}, v{c2+3}')
            X_.append(lambda c1=c1, sl=sl, t=('kw', ps, e): p.lg(f'ds_write_b128 v{vkw}, {vr(c1,4)} offset:{sl+1024}', t, w=(QKV + sl + 1024, QKV + sl + 1025)))
            tags.append(('kw', ps, e))
            if e < 2:
                c0 = acc(ps, 0, e)
                X_ = F(f'v_cvt_pk_bf16_f32 v{c0}, v{c0}, v{c0+1}\nv_cvt_pk_bf16_f32 v{c0+1}, v{c0+2}, v{c0+3}') + [lambda c0=c0, sl=sl: p.lg(f'ds_write_b64 v{vqw}, {vr(c0,2)} offset:{sl}', None, w=(QKV + sl, QKV + sl + 1))] + X_
                L += X_
            else: LH = X_
        if ps == 0:
            for o in LH: st.at(s0_ + 2, o)
        cur = [((2 * ps + e + 1) % 3) * 6144 for e in range(2)]; prv = [((2 * ps + e) % 3) * 6144 for e in range(2)]
        B = ACC + 24 * (ps % 2); vQ, vK, vV, w_, vS = B, B + 4, B + 12, B + 20, TMP
        L.append(f's_bitcmp1_b32 {sr(sw)}, 0\ns_mov_b32 {sr(s0)}, {cur[0]}\ns_cselect_b32 {sr(s0)}, {cur[1]}, {sr(s0)}\ns_mov_b32 {sr(s1)}, {prv[0]}\ns_cselect_b32 {sr(s1)}, {prv[1]}, {sr(s1)}')
        L += F(f'v_add_u32 v{vS}, {sr(s0)}, v{vrd}\nv_add_u32 v{vS+1}, {sr(s1)}, v{vrd}\nv_add_u32 v{vS+2}, {sr(s0)}, v{vvt}\nv_add_u32 v{vS+3}, {sr(s1)}, v{vvt}')
        e_ = st.fit(L, s0_ + 3, ab[ps])
        W.bw[ab[ps]] += [('lg', t) for t in tags]
        R_ = (QKV, QKV + 18432)
        L = [lambda vQ=vQ, vS=vS: p.lg(f'ds_read_b128 {vr(vQ,4)}, v{vS}', None, r=R_),
             lambda vK=vK, vS=vS: p.lg(f'ds_read_b128 {vr(vK,4)}, v{vS+1} offset:1024', None, r=R_),
             lambda vK=vK, vS=vS, ps=ps: p.lg(f'ds_read_b128 {vr(vK+4,4)}, v{vS} offset:1024', ('K', ps), r=R_)]
        for d in range(2):
            for h in range(2):
                L.append(lambda d=d, h=h, vV=vV, vS=vS, ps=ps: p.lg(f'ds_read_b64_tr_b16 {vr(vV+4*d+2*h,2)}, v{vS+3-h} offset:{2048+8*d}', ('V', ps), r=R_))
        L += [('gap', 5), lambda ps=ps: p.wait(lg=[('K', ps), ('V', ps)]), mf_(vS, vK, vQ), mf_(vS + 4, vK + 4, vQ), ('gap', 4)]
        L += [f'v_cndmask_b32 v{w_+r_}, v{vS+r_}, v{vS+4+r_}, {sr(mA+2*r_,2)}' for r_ in range(4)]
        L += F(f'v_cndmask_b32 v{w_}, v{w_}, v{w_+1}, {sr(mA+8,2)}\nv_cndmask_b32 v{w_+1}, v{w_+2}, v{w_+3}, {sr(mA+8,2)}\nv_mul_f32 v{w_}, {f32(SC)}, v{w_}\nv_mul_f32 v{w_+1}, {f32(SC)}, v{w_+1}')
        if ps == 0: L += F(f'v_mov_b32 v{w_+2}, {f32(-1e9)}\nv_cndmask_b32 v{w_}, v{w_}, v{w_+2}, {sr(mA+10,2)}\nv_cndmask_b32 v{w_+1}, v{w_+1}, v{w_+2}, {sr(mA+12,2)}')
        def xred(o_):
            R2 = []
            for sw_ in (16, 32): R2 += [f'v_mov_b32 v{w_+3}, v{w_+2}', ('gap', 1), f'v_permlane{sw_}_swap_b32 v{w_+2}, v{w_+3}', f'{o_} v{w_+2}, v{w_+2}, v{w_+3}']
            return R2
        L += [f'v_max_f32 v{w_+2}, v{w_}, v{w_+1}'] + xred('v_max_f32')
        L += F(f'v_sub_f32 v{w_}, v{w_}, v{w_+2}\nv_sub_f32 v{w_+1}, v{w_+1}, v{w_+2}\nv_exp_f32 v{w_}, v{w_}\nv_exp_f32 v{w_+1}, v{w_+1}') + [('gap', 1), f'v_add_f32 v{w_+2}, v{w_}, v{w_+1}'] + xred('v_add_f32')
        L += [f'v_rcp_f32 v{w_+2}, v{w_+2}', ('gap', 1)] + F(f'v_mul_f32 v{w_}, v{w_}, v{w_+2}\nv_mul_f32 v{w_+1}, v{w_+1}, v{w_+2}\nv_cvt_pk_bf16_f32 v{w_}, v{w_}, v{w_}\nv_cvt_pk_bf16_f32 v{w_+1}, v{w_+1}, v{w_+1}')
        L += [f'v_and_b32 v{vQ+i}, v{vM+i}, v{w_+(i&1)}' for i in range(4)] + [('gap', 1), mf_(vK, vV, vQ), mf_(vK + 4, vV + 4, vQ), ('gap', 4)]
        L += [f'v_cvt_pk_bf16_f32 v{vS+i}, v{vK+2*i}, v{vK+2*i+1}' for i in range(4)]
        L.append(lambda vS=vS, ps=ps: p.vm(f'buffer_store_dwordx4 {vr(vS,4)}, v{vl16}, {sr(sWS,4)}, {sr(soo)} offen sc1', ('os', ps)))
        L.append(f's_add_u32 {sr(soo)}, {sr(soo)}, 65536')
        e_ = st.fill(L, ab[ps] + 1, cap=cfg.get('acap', (2, 2, 3, 7))[ps])
        I[('ae', ps)] = e_
        assert ps > 1 or e_ < P[ps + 2] - 1, (ps, e_)
        if ps == 3: st.at(e_ + cfg.get('opub', (0, 70, 10, 28))[ps], pub_op(k, sWS, vpb, sfl, [('os', ps)], add=ps))
        elif ps: I[('pb', ps)] = pub_at(e_ + cfg.get('opub', (0, 70, 10, 28))[ps], [('os', ps)], sfl, ps)
    assert I[('ae', 0)] + 2 < jp and jp + 7 * JS + 18 < P[2] or I[('ae', 1)] + 2 < jp and jp + 7 * JS + 18 < P[3], (I, jp)
    JB = ACC + 24 * (0 if jp < P[2] else 1)
    st.at(jp - 2, f'v_lshrrev_b32 v{JB+12}, 4, v{vl}\nv_lshlrev_b32 v{JB+12}, 4, v{JB+12}')
    st.at(jp - 1, f'v_add_u32 v{JB+13}, {JT}, v{JB+12}')
    for ks in range(8):
        s = jp + JS * ks
        st.at(s + 2, lambda ks=ks: p.lg(f'ds_read_b128 {vr(JB+4*(ks%2),4)}, v{JB+13} offset:{64*ks}', ('jb', ks), r=(JT, JT + 512)))
        st.at(s + 11, lambda ks=ks: (p.wait(lg=[('jb', ks)]), p.ins(f'{MFMA} {vr(JB+8,4)}, {vr(TMP+4*(ks%2),4)}, {vr(JB+4*(ks%2),4)}, {vr(JB+8,4) if ks else 0}')))
    L = F(f'v_and_b32 v{JB+14}, 15, v{vl}\nv_lshl_add_u32 v{JB+12}, v{JB+14}, 27, v{JB+12}')
    L += F(f's_lshr_b32 {sr(s0)}, s2, 2\ns_lshl_b32 {sr(s2_)}, {sr(s0)}, 7\ns_lshl_b32 {sr(s0)}, {sr(s0)}, 8\ns_and_b32 {sr(s1)}, s2, 3\ns_mul_i32 {sr(sjo+1)}, {sr(s1)}, {6144*4}\ns_add_u32 {sr(s0)}, {sr(s0)}, {sr(sjo+1)}\ns_lshl_b32 {sr(sjo+1)}, {sr(sw)}, 6\ns_add_u32 {sr(s0)}, {sr(s0)}, {sr(sjo+1)}\ns_add_u32 {sr(s0)}, {sr(s0)}, {32*256}')
    L += F(f's_lshl_b32 {sr(s1)}, {sr(s1)}, 2\ns_add_u32 {sr(s2_)}, {sr(s2_)}, {sr(s1)}\ns_add_u32 {sr(s2_)}, {sr(s2_)}, {FL_J}')
    L.append(f's_cmp_eq_u32 {sr(sw)}, 0\ns_cselect_b32 {sr(sjo+1)}, {sr(s2_)}, {OOB}')
    L += [('from', jp + 7 * JS + 15), lambda: p.vm(f'buffer_store_dwordx4 {vr(JB+8,4)}, v{JB+12}, {sr(sWS,4)}, {sr(s0)} offen sc1', 'js')]
    e3 = st.fill(su3, su3_beg); assert e3 < su3_end and I[('ae', 2)] < jc - 62 and su3_beg > I[('ae', 1)] + 2 and su3_beg > max(o['t'] for o in ops if o['id'][0][0] == 'j'), e3
    e_ = st.fill(L, max(jp + 20, e3 + 1) if il else jp + 20)
    jbar = min(b_ for b_ in bars if b_ > e_ + 50)
    W.bw[jbar].append('js'); st.at(jbar + 1, pub_op(k, sWS, vpb, sjo + 1, []))
    L = [lambda: p.wait(vm=[('g', q) for q in range(NPART)])]
    L += F(f'v_add_f32 v{vg}, v{vg}, v{vg+1}\nv_add_f32 v{vg+2}, v{vg+2}, v{vg+3}\nv_add_f32 v{vg}, v{vg}, v{vg+2}') + rb(vg) + F(f'v_cvt_f32_u32 v{vgo}, v{vgo}\nv_add_f32 v{vg}, v{vg}, v{vgo}') + rb(vg)
    L += F(f's_lshl_b32 {sr(s2_)}, {sr(sw)}, 8\ns_add_u32 {sr(s2_)}, {sr(s2_)}, {GL2}\nv_lshl_add_u32 v{vst}, v{vl}, 2, {sr(s2_)}\nv_lshrrev_b32 v{vg+1}, 4, v{vl}\nv_lshl_add_u32 v{vgo}, v{vg+1}, 4, {sr(s2_)}')
    L.append(lambda: p.lg(f'ds_write_b32 v{vst}, v{vg}', None, w=(GL2, GL2 + 1024), priv=True))
    L += F(f'v_bfe_u32 v{vst}, v{vl}, 2, 2\nv_xor_b32 v{vst}, v{vst}, v{vg+1}\nv_lshlrev_b32 v{vst}, 27, v{vst}\nv_and_b32 v{vg+2}, 15, v{vl}\nv_lshl_add_u32 v{vst}, v{vg+2}, 4, v{vst}')
    L += F(f's_and_b32 {sr(s2_)}, {sr(sw)}, 1\ns_lshl_b32 {sr(s2_)}, {sr(s2_)}, 11\nv_add_u32 v{vst+2}, {sr(s2_)}, v{vl16}\ns_and_b32 {sr(s2_)}, {sr(sw)}, 2\ns_lshl_b32 {sr(s2_)}, {sr(s2_)}, 9\ns_add_u32 {sr(s2_)}, {sr(s2_)}, {XST}\nv_add_u32 v{vst+2}, {sr(s2_)}, v{vst+2}')
    L += [lambda i=i: p.lg(f'ds_read_b128 {vr(vg+4*i,4)}, v{vgo} offset:{64*i}', ('gl', i), r=(GL2, GL2 + 1024), priv=True) for i in range(4)]
    L += [f'v_mov_b32 v{vone2+i}, 0x3f803f80' for i in range(4)] + m64(mA + 10, lanemask(lambda l: l & 2))
    e_ = st.fill(L, max(tx + 50, I[('ae', 3)] + 1), cap=3); assert e_ < Q[1] + 25, e_
    dst_ = []
    def epi2(j):
        xa = vxa + 4 * j; y2 = Y2 + 4 * j; d1 = D1 + 2 * j
        ST = (lambda o: L.append(o)) if j == 3 or not cfg.get('defer', 0) else dst_.append
        L = [lambda: p.wait(vm=[('xa', j)], lg=[('gl', 3)])]
        for i in range(4): L += F(f'v_lshlrev_b32 v{f2+2*i}, 16, v{xa+i}\nv_and_b32 v{f2+2*i+1}, 0xffff0000, v{xa+i}')
        L.append(('from', (Q + [N])[j + 1] + 2))
        L += [f'v_fmac_f32 v{f2+i}, v{vg+i}, v{acc2(j,0)+i}' for i in range(8)]
        a2 = acc2(j, 0)
        L += [f'v_mul_f32 v{a2+i}, v{f2+i}, v{vc2+i}' for i in range(8)]
        L += [f'v_cvt_pk_bf16_f32 v{y2+i}, v{a2+2*i}, v{a2+2*i+1}' for i in range(4)]
        ST(op(lambda: (p.ins(f's_add_u32 {sr(s2_)}, {sr(sy)}, {WS_Y + 65536 * j}'), p.vm(f'buffer_store_dwordx4 {vr(y2,4)}, v{vl16}, {sr(sWS,4)}, {sr(s2_)} offen sc1', ('ys', j, 0))), 'sW'))
        L += [f'v_cvt_pk_bf16_f32 v{xa+i}, v{f2+2*i}, v{f2+2*i+1}' for i in range(4)] + [('gap', 1), mf_(d1, vone2, xa), mf_(d2, xa, xa), ('gap', 3)]
        L += F(f'v_cndmask_b32 v{d2}, v{d2}, v{d2+1}, {sr(mA+8,2)}\nv_cndmask_b32 v{d2+2}, v{d2+2}, v{d2+3}, {sr(mA+8,2)}\nv_cndmask_b32 v{d1+1}, v{d2}, v{d2+2}, {sr(mA+10,2)}')
        if j & 1: L.append(lambda: p.vm(f'buffer_store_dwordx4 {vr(d1-2,4)}, v{vst}, {sr(sWS,4)}, {sr(sy+1)} offen offset:{256*(j//2)} sc1', 'y2'))
        k.stash = getattr(k, 'stash', []) + [lambda: p.lg(f'ds_write_b128 v{vst+2}, {vr(xa,4)} offset:{4096*j}', None, w=(XST + 4096 * j, XST + 4096 * j + 4096))]
        return L
    for j in range(3):
        e_ = st.fill(epi2(j), max(e_ + 1, Q[j + 1] - 12), cap=cfg.get('ecap', (3, 5, 3))[j]); assert e_ < (Q + [N])[j + 2] - (10 if j == 2 else 0), (j, e_)
    d0, dstp = cfg.get('dst', (-8, 4))
    for i, o in enumerate(dst_): st.at(max(Q[3] + d0 + dstp * i, e_ + 1 if i >= 2 else 0), o)
    L3 = epi2(3); st.fill(L3[:9], max(e_ + 1, N - 20))
    k.NP = cfg.get('NP', 2)
    if k.NP:
        st.at(T0 + cfg.get('epub', 174) - 1, f's_sub_u32 {sr(soo)}, {sr(sy+2)}, {FL_Y - FL_E}')
        pub_at(T0 + cfg.get('epub', 174), [('ys', j, 0) for j in range(2)], soo)
    k.look = 0
    if k.NP and k.look:
        st.at(N - 40, f's_lshr_b32 {sr(sfl+3)}, s2, 5\ns_lshl_b32 {sr(sfl+3)}, {sr(sfl+3)}, 12\ns_add_u32 {sr(sfl+3)}, {sr(sfl+3)}, {FL_Y}')
        st.at(N - 38, f'v_and_b32 v{vp+1}, 31, v{vl}\nv_lshlrev_b32 v{vp+1}, 7, v{vp+1}')
        st.at(N - k.look, lambda: p.vm(f'buffer_load_dword v{vp}, v{vp+1}, {sr(sWS,4)}, {sr(sfl+3)} offen sc1', 'ple0'))
    p.wait(vm=[('D', u, i) for u in first for i in range(len(W.units[u]['dmas']))], lg='all'); p.bar()
    for s, _, f in early:
        if s > -100: f()
    for i, nm in tuple(cfg.get('marks', ())) + ((1, 'g1_m1'), (P[1], 'g1_p1'), (P[2], 'g1_p2'), (P[3], 'g1_p3'), (T0, 'g2_q0'), (Q[1], 'g2_q1'), (Q[2], 'g2_q2'), (Q[3], 'g2_q3')):
        st.pre.setdefault(i, []).insert(0, f';@T {nm}')
    st.emit()
    p.T('g2_end')
    for o in L3[10:]:
        if not isinstance(o, tuple): p.ins(o) if isinstance(o, str) else o()
    k.st = st; k.I = I
    if nxt:
        k.ypub = pub_op(k, sWS, 9, sy + 2, [('ys', j, 0) for j in range(4)] + ['y2'])
        k.st1 = st; k.vops1 = k.vops; k.bars1 = bars
        S.next = smark
        return nxt(k)
    k.end()
    return k
```

```python
from kernels import *
from eng import *
LN2C = 0.6931471805599453
WS_XC4 = 0x4000000
WSZ = 0x8000000
OOB = 0x40000000
FL_A = WS_FL + 32768
FL_X = 0xE0000
FL_M = WS_FL + 5 * 32768; FL_U = 0xD8000; FL_A2 = 0x30000; FL_E = 0x38000
WS_XA = 0x2800000
WS_ST2 = 0x600000
WS_UT3 = 0x2C00000
FL_O = WS_FL; FL_J = WS_FL + 2 * 32768; FL_Y = WS_FL + 3 * 32768; FL_H = WS_FL + 4 * 32768
WS_MP8 = 0x20000; WS_TOK = WS_FL + 6 * 32768
XST = 132 * 1024
QKV = 128 * 1024; JT = 146 * 1024; GL2 = 147 * 1024; LB = 148 * 1024; LS = 156 * 1024
F = lambda txt: txt.split('\n')
rb = lambda r: F(f'v_cvt_pk_bf16_f32 {vr(r)}, {vr(r)}, {vr(r)}\nv_lshlrev_b32 {vr(r)}, 16, {vr(r)}')

class K4(K):
    def __init__(self, name):
        K.__init__(self, name, 256, 256, 256)
        it = self.p.items
        self.p = Prog2(); self.p.items = it
        self.S = Regs('s', 4, 94)
        self.lds = 160 * 1024
        self.nlab = 0
    def lab(self, s):
        self.nlab += 1
        return f'{s}{self.nlab}_{self.name}'
    def text(self):
        t = self.p.text()
        ev, errs, ep = self.p.events()
        errs += check_lds([ev]) + self.p.check_chains()
        for e in errs[:20]: print('VERIFY:', e)
        assert not errs, f'{len(errs)} verifier errors'
        rep = []
        out, n = fix_hazards(t.split('\n'), rep)
        self.nops = rep
        return '.p2align 8\n' + '\n'.join(out).replace(' ; M\n', '\n').replace(' ; cond\n', '\n')
    def desc(self, minv=0):
        return kdesc(self.name, 512, 102, 256)

def poll_gen(k, ld, tst, tag, scnt, wg, bar=True):
    p = k.p; sw = k.common['sw']
    def issue():
        if not wg: return p.vm(ld, tag)
        soff = ld.split(', ')[3].split(' ')[0]
        p.ins(f's_lshl_b32 {sr(scnt)}, {sr(sw)}, 28' + (f'\ns_add_u32 {sr(scnt)}, {sr(scnt)}, {soff}' if soff != '0' else ''))
        p.vm(ld.replace(f', {soff} offen', f', {sr(scnt)} offen'), tag)
    def check():
        L = k.lab('PL')
        p.wait(vm=[tag])
        if wg: p.ins(f's_cmp_lg_u32 {sr(sw)}, 0\ns_cbranch_scc1 {L}x')
        p.ins(f'{tst}\ns_cbranch_vccz {L}x\ns_mov_b32 {sr(scnt)}, 60000')
        p.label(L)
        p.ins(f'{ld} ; cond\ns_sub_u32 {sr(scnt)}, {sr(scnt)}, 1\ns_cmp_eq_u32 {sr(scnt)}, 0\ns_waitcnt vmcnt(0) ; cond\ns_cbranch_scc1 {L}x\n{tst}\ns_cbranch_vccnz {L}')
        p.label(L + 'x')
        if wg and bar: p.bar()
    return op(issue, 'ssm' if wg else 'm'), op(check, 7)

def poll_ops(k, sWS, vp, soff, tag, scnt, cmp=None, wg=True, va=None, bar=True):
    ld = f'buffer_load_dword {vr(vp)}, {vr(va or vp+1)}, {sr(sWS,4)}, {sr(soff) if soff is not None else 0} offen sc1'
    return poll_gen(k, ld, cmp or f'v_cmp_ne_u32 vcc, {sr(k.tok)}, {vr(vp)}', tag, scnt, wg, bar)

def poll4_ops(k, sWS, vd, va, tag, scnt, bar=True):
    ld = f'buffer_load_dwordx4 {vr(vd,4)}, {vr(va)}, {sr(sWS,4)}, 0 offen sc1'
    tst = f'v_bitop3_b32 v{vd}, v{vd}, v{vd+1}, {sr(k.tok)} bitop3:0x7e\nv_bitop3_b32 v{vd+2}, v{vd+2}, v{vd+3}, {sr(k.tok)} bitop3:0x7e\nv_or_b32 v{vd}, v{vd}, v{vd+2}\nv_cmp_ne_u32 vcc, 0, v{vd}'
    return poll_gen(k, ld, tst, tag, scnt, True, bar)

def pub_op(k, sWS, vt, soff, tags, imm=0, add=0, wg=True):
    p = k.p
    def f():
        p.ins(f'v_add_u32 {vr(vt)}, {sr(k.tok)}, v0' + (f'\nv_add_u32 {vr(vt)}, {add}, {vr(vt)}' if add else ''))
        if tags: p.wait(vm=tags)
        if tags and wg: p.bar()
        p.ins('s_mov_b64 exec, 1')
        p.vm(f'buffer_store_dword {vr(vt)}, v0, {sr(sWS,4)}, {sr(soff)} offen offset:{imm} sc1')
        p.ins('s_mov_b64 exec, -1')
    return op(f, 6)

def code_op(k, vt, vl16, sp):
    p = k.p
    L = k.lab('CT')
    p.ins(f's_getpc_b64 {sr(sp,2)}')
    p.label(L)
    p.ins(f's_min_u32 {sr(sp+2)}, {sr(sp+3)}, code_end-{L}\ns_add_u32 {sr(sp)}, {sr(sp)}, {sr(sp+2)}\ns_addc_u32 {sr(sp+1)}, {sr(sp+1)}, 0')
    p.ins(f'v_and_b32 v{vt}, 0x70, v{vl16}\nv_lshlrev_b32 v{vt}, 3, v{vt}')
    p.vm(f'global_load_dword a253, v{vt}, {sr(sp,2)}', 'dummy')

class WS_:
    def __init__(self, st, pool):
        self.st, self.p = st, st.p
        self.pool = {r: -10**6 for r in pool}; self.until = {}
        self.units = {}; self.nf = 0; self.early = []; self.groups = []
    def unit(self, u, lo, hi, dmas, e=0, wt=1):
        self.units[u] = dict(lo=lo, hi=hi, dmas=dmas, fr=None, lr=None, e=e, wt=wt)
    def rd(self, us, s, lr, text, tag, rng):
        f = lambda: self.p.lg(text, tag, r=rng)
        if s < 0: self.early.append((s, len(self.early), f))
        else: self.st.at(s, f)
        assert min(self.units[u]['lo'] for u in us) <= rng[0] and rng[1] <= max(self.units[u]['hi'] for u in us), (us, rng)
        for u in us:
            U = self.units[u]
            U['fr'] = s if U['fr'] is None else min(U['fr'], s)
            U['lr'] = lr if U['lr'] is None else max(U['lr'], lr)
    def group(self, frags, mf, LA, wait=True, vm=(), lg=(), kind='tr'):
        st, p = self.st, self.p
        s0 = st.n(); ids = [self.nf + i for i in range(len(frags))]; self.nf += len(frags)
        n = len(mf); per = 2 if kind == 'tr' else 1; nr = per * len(frags)
        reg = []
        for i in range(len(frags)):
            s = s0 - LA + per * i * n // nr
            lu = s0 + max(x for x, m in enumerate(mf) if ('f', i) in m[1:])
            c = [r for r in self.pool if self.pool[r] <= s and lu < self.until.get(r, 10**9)]
            assert c, ('fragment pool too small', s0, i)
            r = min(c, key=lambda r: self.pool[r]); self.pool[r] = lu; reg.append(r)
        for c, a, b in mf:
            st.mfma(c, reg[a[1]] if isinstance(a, tuple) else a, reg[b[1]] if isinstance(b, tuple) else b)
        for i, fr in enumerate(frags):
            u, ar, base, off = fr[:4]
            for h in range(per):
                s = s0 - LA + (per * i + h) * n // nr
                o = off + 2048 * h
                assert 0 <= o < 65536
                if kind == 'tr': self.rd([u], s, s0, f'ds_read_b64_tr_b16 {vr(reg[i] + 2 * h,2)}, {vr(ar)} offset:{o}', ('W', ids[i], h), (base + o, base + o + 2048))
                else: self.rd([u], s, s0, f'ds_read_b128 {vr(reg[i],4)}, {vr(ar)} offset:{o}', ('W', ids[i], 1), (base + o, base + o + (fr[4] if len(fr) > 4 else 1024)))
        self.groups.append(dict(s0=s0, ids=ids, wait=wait, vm=list(vm), lg=list(lg)))
        return s0
    def finish_waits(self):
        g = self.groups; i = 0
        while i < len(g):
            j = i + 1
            while j < len(g) and not g[j]['wait']: j += 1
            lg = [('W', f, 1) for x in g[i:j] for f in x['ids']] + [t for x in g[i:j] for t in x['lg']]; vm = [t for x in g[i:j] for t in x['vm']]
            self.st.before(g[i]['s0'], lambda lg=lg, vm=vm: self.p.wait(vm=vm or None, lg=lg))
            i = j
    def dma_ops(self, bars, pre_done=()):
        st, p = self.st, self.p
        ops = []; bw = {b: [] for b in bars}
        order = sorted(self.units, key=lambda u: self.units[u]['fr'])
        for n_, u in enumerate(order):
            U = self.units[u]
            tags = [('D', u, i) for i in range(len(U['dmas']))]
            if U['fr'] < 0 or U.get('vis'): continue
            if U['fr'] >= st.n(): dl = U['fr']
            else:
                dl = max(b for b in bars if b < U['fr'])
                bw[dl] += tags
            if u in pre_done: continue
            e = U['e']
            for v in order[:n_]:
                X = self.units[v]
                if X['lo'] < U['hi'] and U['lo'] < X['hi'] and X['lr'] >= 0:
                    e = max(e, min([b for b in bars if b >= X['lr']] + [st.n()]) + 1)
            for i, (pre, main) in enumerate(U['dmas']):
                ops.append(dict(e=e, dl=dl, pre=pre, main=main, id=(u, i), wt=U['wt']))
        for U in self.units.values():
            if U.get('force'): bw[min(b for b in bars if b >= U['lr'])].append(('lg', U['force']))
        self.bw = bw
        for b in bars:
            def f(b=b):
                x = self.bw[b]
                lgs = [t[1] for t in x if t[0] == 'lg']; vms = [t for t in x if t[0] != 'lg']
                if x: p.wait(vm=vms or None, lg=lgs or None)
                p.bar()
            st.last(b, op(f, 2))
        return ops
    def place_bars(self, bars, pre_done, target):
        bars = set(bars); n = self.st.n()
        order = sorted(self.units, key=lambda u: self.units[u]['fr'])
        for n_, u in enumerate(order):
            U = self.units[u]
            if U['fr'] < 0 or U.get('vis') or U['fr'] >= n: continue
            pl = max([X['lr'] for X in (self.units[v] for v in order[:n_]) if X['lo'] < U['hi'] and U['lo'] < X['hi']] + [-1])
            def win(B):
                e = -20 if u in pre_done else max(U['e'], min([b for b in B if b >= pl] + [10**6]) + 1 if pl >= 0 else 0)
                return max([b for b in B if b < U['fr']] + [-10**6]) - e
            for _ in range(2):
                if win(bars) >= target(U['fr']): break
                c = [x for x in (U['fr'] - 1, pl) if x >= 0 and x not in bars]
                if not c: break
                x = max(c, key=lambda x: win(bars | {x}))
                if win(bars | {x}) >= win(bars) + 8 or win(bars) < 16: bars.add(x)
        return sorted(bars)
    def emit_early(self):
        for _, _, f in sorted(self.early, key=lambda x: x[:2]): f()

def zig(n, nm, flip):
    out = []
    for mi in range(nm):
        m = nm - 1 - mi if flip else mi
        out += [(m, j) for j in (range(n) if mi % 2 == 0 else range(n - 1, -1, -1))]
    return out

def g3_early(k, s0, s1, sv, T):
    p = k.p; C = k.common; sw = C['sw']; vl = 0; vdA, vdB = 16, 11
    L = F(f'v_lshrrev_b32 v{T}, 3, v{vl}\nv_bfe_u32 v{T+1}, v{T}, 1, 2\nv_bfe_u32 v{T+2}, v{vl}, 1, 2\nv_xor_b32 v{T+1}, v{T+1}, v{T+2}')
    L += F(f's_lshl_b32 {sr(s0)}, {sr(sw)}, 3\nv_add_u32 v{T}, {sr(s0)}, v{T}\nv_mul_u32_u24 v{T}, 7168, v{T}\nv_and_b32 v{T+2}, 1, v{vl}\nv_lshl_add_u32 v{T}, v{T+2}, 4, v{T}')
    L += F(f's_and_b32 {sr(s0)}, s2, 7\ns_mul_i32 {sr(s0)}, {sr(s0)}, 896\nv_add_u32 v{T}, {sr(s0)}, v{T}\nv_lshlrev_b32 v{T+2}, 5, v{T+1}')
    L += F(f's_and_b32 {sr(s1)}, s2, 24\ns_lshl_b32 {sr(s0)}, {sr(s1)}, 5\nv_add3_u32 v{vdA}, v{T}, v{T+2}, {sr(s0)}')
    L += F(f's_lshr_b32 {sr(s0)}, 0x0b070602, {sr(s1)}\ns_and_b32 {sr(s0)}, {sr(s0)}, 15\ns_lshl_b32 {sr(s0)}, {sr(s0)}, 6\nv_add_u32 v{T+2}, {sr(s0)}, v{T+2}')
    L += F(f's_lshr_b32 {sr(s0)}, 0x15140706, {sr(s1)}\ns_and_b32 {sr(s0)}, {sr(s0)}, 31\ns_lshl_b32 {sr(s0)}, {sr(s0)}, 5\nv_mov_b32 v{T+3}, {sr(s0)}')
    L += [f'v_cmp_gt_u32 vcc, 2, v{T+1}\nv_cndmask_b32 v{T+2}, v{T+3}, v{T+2}, vcc', f'v_add_u32 v{vdB}, v{T}, v{T+2}']
    def dmas(ts, g):
        u = (3, ts, g); lo = 65536 * g + k.perm[g][ts] * 16384; out = []
        for jq in range(2):
            for mat in range(2):
                dst = lo + mat * 8192 + jq * 4096
                pre = lambda dst=dst, jq=jq: p.ins(f's_mov_b32 {sr(sv)}, {(2 * ts + jq) * 32 * 7168}\ns_add_u32 m0, {sr(C["sWL"])}, {dst}')
                main = lambda dst=dst, mat=mat, i=2 * jq + mat: p.vm(f'buffer_load_dwordx4 v{(vdA, vdB)[g]}, {sr((C["sWg"], C["sWu"])[mat],4)}, {sr(sv)} offen lds', ('D', u, i), w=(dst, dst + 4096))
                out.append((op(pre, 2), main))
        return u, lo, lo + 16384, out
    return L, dmas

def k_g34(cfg, k):
    p, S = k.p, k.S
    sWS, sWg, sWu, sWd, sOut, sw, sWL = (k.common[x] for x in ('sWS', 'sWg', 'sWu', 'sWd', 'sOut', 'sw', 'sWL'))
    sm = S.alloc('mt'); sq = S.alloc('q'); sx = S.alloc('xcd'); s0 = S.alloc('t0'); s1 = S.alloc('t1'); s2_ = S.alloc('t2')
    sLead = S.alloc('lead'); sAb = S.alloc('ab'); sO = S.alloc('so', 3); sv = S.alloc('vm', 2); sst = S.alloc('st')
    NC = 8; sCW = S.alloc('cw', NC); sCA = S.alloc('ca', NC); sfl = S.alloc('fl', 4)
    vl16, wa, vdA, vdB, vub, vt, vs, ut, ACC = 1, 2, 10, 11, 12, 13, 16, 24, 32
    POS = {6: 0, 4: 1, 5: 2, 0: 3, 1: 4, 2: 5, 3: 6}
    accr = lambda s_, g, m: ACC + 32 * POS[s_] + 16 * g + 4 * m
    DAS = 5; AB = A0; WB = A0 + 160; R = 6
    UT = 128 * 1024; GL = UT + 2048; XL = XST
    lf = 'sc1'
    vl = 0
    assert MBS[0] == 32768
    st = Stream(p); W = WS_(st, [WB + 4 * i for i in range(R)])
    n3 = 16; FS = 4
    done3 = set()
    def lead3(ts):
        if ts < 4 or cfg.get('nolead3'): return ts
        return ts + 4 if ts + 4 < n3 else 4 + ts % 4
    def chunk3(ts):
        if ts in done3: return
        done3.add(ts)
        cw, ca = sCW + ts % NC, sCA + ts % NC; lc = lead3(ts)
        if lc == ts: p.ins(f's_mov_b32 {sr(cw)}, {ts * 64 * 7168}\ns_add_u32 {sr(ca)}, {sr(sAb)}, {ts * 2048}')
        else: p.ins(f's_cmp_eq_u32 {sr(sLead)}, {ts % 4}\ns_cselect_b32 {sr(ca)}, {lc}, {ts}\ns_mul_i32 {sr(cw)}, {sr(ca)}, {64 * 7168}\ns_lshl_b32 {sr(ca)}, {sr(ca)}, 11\ns_add_u32 {sr(ca)}, {sr(ca)}, {sr(sAb)}')
    def dma(u, i, chunk, ts, cw, srd, vo, dst, goff):
        def pre():
            chunk(ts)
            p.ins(f's_add_u32 m0, {sr(sWL)}, {dst}')
            if goff: p.ins(f's_add_u32 {sr(sv)}, {sr(cw)}, {goff}')
        main = lambda: p.vm(f'buffer_load_dwordx4 v{vo}, {sr(srd,4)}, {sr(sv if goff else cw)} offen lds', ('D', u, i), w=(dst, dst + 4096))
        return op(pre, 2 if goff else 1), main
    nl = cfg.get('nolate', 1)
    sw3 = lambda g, i: 65536 * g + k.perm[g][i % 4] * 16384
    lo3 = lambda ts, g: sw3(1, 0) if nl and (ts, g) == (n3 - 1, 0) else sw3(g, ts)
    for ts in range(n3):
        for g, (vo, base) in enumerate(((vdA, 0), (vdB, 65536))):
            u = (3, ts, g); lo = lo3(ts, g)
            W.unit(u, lo, lo + 16384, [dma(u, 2 * jq + mat, chunk3, ts, sCW + ts % NC, (sWg, sWu)[mat], vo, lo + mat * 8192 + jq * 4096, jq * 32 * 7168) for jq in range(2) for mat in range(2)])
    ab3 = lambda ts, j, m: (A0 + 188 if nl and ts == n3 - 1 else AB + (ts % DAS) * 32) + (j * 4 + m) * 4
    seenA = set(); firstA = {}; lastA = {}; firstM = {}; NP = k.NP
    LA = cfg.get('LA', 18)
    def grp(ph, ts, u, ar, base, off, acc, ab, ms=(0, 1, 2, 3), la=None):
        fr = [(u, ar, base, off + j * 4096) for j in range(2)]
        mf = [(acc(ms[m]), ('f', j), ab(ts, j, ms[m])) for m, j in zig(2, len(ms), len(W.groups) % 2)]
        vm = [('A', ph, ts, j, m) for j in range(2) for m in ms if (ph, ts, m) not in seenA]
        seenA.update((ph, ts, m) for m in ms)
        s = W.group(fr, mf, la or LA, vm=vm, wait=len(ms) == 4 or len(W.groups) % 2 == 0 or not cfg.get('w2', 1))
        for m in ms: firstM.setdefault((ph, ts, m), s)
        firstA.setdefault((ph, ts), s); lastA[(ph, ts)] = s + len(mf) - 1
        return s
    def grp3(ts, s_, mat, ms=(0, 1, 2, 3), la=None):
        g = 0 if s_ < 4 else 1
        hi = lo3(ts, g) // 65536
        return grp(3, ts, (3, ts, g), wa + 4 * hi + s_ % 4, 65536 * hi, lo3(ts, g) % 65536 + mat * 8192, lambda m: accr(s_, mat, m), ab3, ms, la)
    visit = {}
    def part(ts, slots):
        for s_ in slots:
            for mat in range(2): visit[(ts, s_, mat)] = grp3(ts, s_, mat)
    for r_ in range(6):
        if NP: W.pool[A0 + 188 + 4 * r_] = -10**6; W.until[A0 + 188 + 4 * r_] = 112 * NP + 24
    for ms in ((0, 1), (2, 3)):
        for ts in range(NP):
            for s_ in (4, 5, 6, 0, 1, 2, 3):
                for mat in range(2): grp3(ts, s_, mat, ms, cfg.get('LAh', 16))
    for ts in range(NP, n3 - FS - 2): part(ts, (4, 5, 6, 0, 1, 2, 3))
    if nl: part(n3 - FS - 2, (4, 5, 6)); part(n3 - FS - 1, (4, 5, 6)); zb = st.n(); part(n3 - FS - 2, (0, 1, 2, 3))
    else: part(n3 - FS - 2, (4, 5, 6, 0, 1, 2, 3)); part(n3 - FS - 1, (4, 5, 6))
    Ss = list(range(n3 - FS, n3))
    done = {}
    def pair(s_, sts):
        for ts in sts:
            for mat in range(2): e = grp3(ts, s_, mat)
        done[s_] = e + 7
    def late(a_, b_):
        if nl: pair(a_, Ss); pair(b_, Ss)
        else: pair(a_, Ss[:-1]); pair(b_, Ss[:-1]); pair(a_, Ss[-1:]); pair(b_, Ss[-1:])
    if not cfg.get('mvA', 1): part(n3 - FS - 1, (0, 1, 2, 3))
    z3 = st.n()
    late(6, 4); pair(5, Ss)
    if cfg.get('mvA', 1):
        part(n3 - FS - 1, (0, 1, 2, 3)); late(0, 1)
    else:
        pair(0, Ss); pair(1, Ss)
    pair(2, Ss); pair(3, Ss)
    z4 = st.n()
    n4 = 14; FS4 = cfg.get('FS4', 4); NE = 6
    acc4 = lambda t, m: 64 + (t * 4 + m) * 4
    vd4, vp, vpx, vro, vxa, vgo, vl4, vsel, vg = 32, 36, 38, 40, 42, 46, 47, 52, 240
    sA4 = S.alloc('a4'); sro = S.alloc('ro'); sxo = S.alloc('xo', 2); sg4 = S.alloc('g4'); sst4 = S.alloc('st4'); sxl = S.alloc('xl'); sL4 = S.alloc('l4'); spf = S.alloc('pf')
    E = [7 * g + c for g in range(2) for c in (1, 3, 5)]; Lt = [7 * g + c for g in range(2) for c in (0, 2, 4, 6)]
    def lead4(ts):
        lst, i, P_ = (E, ts, 3) if ts < NE else (Lt, ts - NE, 4)
        if cfg.get('nolead4'): return lst[i], lst[i], 0
        return lst[i], lst[(i + P_) % len(lst)], i % P_
    done4 = set()
    def chunk4(ts):
        if ts in done4: return
        done4.add(ts)
        cw, ca = sCW + ts % NC, sCA + ts % NC; nat, lc, ld = lead4(ts)
        if nat == lc: p.ins(f's_mov_b32 {sr(cw)}, {nat << 17}\ns_add_u32 {sr(ca)}, {sr(sA4)}, {nat << 11}')
        else: p.ins(f's_cmp_eq_u32 {sr(sL4)}, {ld}\ns_cselect_b32 {sr(ca)}, {lc}, {nat}\ns_lshl_b32 {sr(cw)}, {sr(ca)}, 17\ns_lshl_b32 {sr(ca)}, {sr(ca)}, 11\ns_add_u32 {sr(ca)}, {sr(ca)}, {sr(sA4)}')
    s4t = [(1, 1), (1, 2), (1, 3), (0, 3), (0, 0), (0, 1), (0, 2), (1, 0)] if nl else [(1, i) for i in range(4)] + [(0, i) for i in range(4)]
    slot4 = lambda ts: sw3(*s4t[ts % 8])
    for ts in range(n4):
        for g in range(2):
            u = (4, ts, g); lo = slot4(ts) + g * 8192
            W.unit(u, lo, lo + 8192, [dma(u, jq, chunk4, ts, sCW + ts % NC, sWd, vd4 + g, lo + jq * 4096, jq * 32 * 2048) for jq in range(2)])
    bufs = [(A0 + 220, 0)] + [(ab3(ts, 0, 0), lastA[(3, ts)] + 1) for ts in range(n3 - DAS - 1, n3)] if nl else [(A0 + 188, 0), (A0 + 220, 0)] + [(AB + 32 * (ts % DAS), lastA[(3, ts)] + 1) for ts in range(n3 - DAS, n3)]
    NB = len(bufs)
    ab4 = lambda ts, j, m: bufs[ts % NB][0] + (j * 4 + m) * 4
    def grp4(ts, t, ms=(0, 1, 2, 3), la=None):
        g = t // 4; base = slot4(ts) // 65536 * 65536
        return grp(4, ts, (4, ts, g), wa + (4 if base else 0) + t % 4, base, slot4(ts) - base + g * 8192, lambda m: acc4(t, m), ab4, ms, la)
    for r_ in range(64, 192, 4): st.touched.discard(r_)
    for ts in range(n4 - FS4):
        for t in range(8): grp4(ts, t)
    zf = st.n()
    d4 = {}
    for ts in range(n4 - FS4, n4):
        for t in range(4): d4[(0, t)] = grp4(ts, t) + 7
    for r_ in range(16, 32, 4): W.pool[r_] = zf
    for ps, ms in ((1, (2, 3)), (2, (0, 1))):
        for ts in range(n4 - FS4, n4):
            for t in range(4, 8): d4[(ps, t)] = grp4(ts, t, ms, cfg.get('LAh', 16)) + 3
    N = st.n()
    W.finish_waits()
    bars = set()
    fr_ = lambda *u: W.units[u]['fr'] - 1
    if nl:
        for ts in range(1, n3 - FS - 1): bars.add(fr_(3, ts, 1))
        bars |= {zb - 8, fr_(3, n3 - FS, 1), fr_(3, n3 - 2, 1), fr_(3, n3 - FS - 1, 0), done[5] - 7, fr_(3, n3 - 1, 0), z4 - 7}
    else:
        for ts in range(1, n3 - FS): bars.add(fr_(3, ts, 1))
        bars |= {z3, fr_(3, n3 - 1, 1), fr_(3, n3 - 1, 0), done[5] + 1, z4 + 1, lastA[(3, n3 - FS - 1)] + 1}
    for ts in range(NP - 1): bars.add(56 * (NP + ts + 1) - 4)
    for ts in range(0, n4 - FS4, cfg.get('BS4', 2)): bars.add(fr_(4, ts, 0))
    for u in cfg.get('fb4', ((n4 - FS4, 0), (n4 - FS4 + 2, 0), (n4 - FS4, 1))): bars.add(fr_(4, *u))
    bars = sorted(bars)
    k.bars = bars
    extra = []
    def X(e, dl, main, pre=None): extra.append(dict(e=e, dl=dl, main=main, pre=pre, id='x'))
    PD = cfg.get('pd', 40)
    setup = F(f's_lshl_b32 {sr(sO)}, {sr(sq)}, 12\ns_lshl_b32 {sr(s1)}, {sr(sq)}, 3\ns_lshr_b32 {sr(s0)}, 0x0b070602, {sr(s1)}\ns_and_b32 {sr(s0)}, {sr(s0)}, 15\ns_lshl_b32 {sr(sO+1)}, {sr(s0)}, 10')
    setup += F(f's_lshr_b32 {sr(s0)}, {sr(sq)}, 1\ns_mul_i32 {sr(s0)}, {sr(s0)}, {7 * 1024}\ns_and_b32 {sr(s1)}, {sr(s1)}, 8\ns_add_u32 {sr(s0)}, {sr(s0)}, {sr(s1)}\ns_add_u32 {sr(sO+2)}, {sr(s0)}, {3 * 1024}')
    setup += F(f's_mul_i32 {sr(s0)}, {sr(sx)}, {14*1024}\ns_mul_i32 {sr(s1)}, {sr(sst)}, {MBS[1]}\ns_add_u32 {sr(s0)}, {sr(s0)}, {sr(s1)}\ns_add_u32 {sr(s0)}, {sr(s0)}, {WS_ACT}') + [f's_add_u32 {sr(sO+i)}, {sr(sO+i)}, {sr(s0)}' for i in range(3)]
    setup += F(f's_lshl_b32 {sr(sst)}, {sr(sm)}, 2\ns_add_u32 {sr(sst)}, {sr(sst)}, {sr(sw)}\ns_lshl_b32 {sr(sst)}, {sr(sst)}, 14\ns_add_u32 {sr(sst)}, {sr(sst)}, {WS_ST2}\nv_and_b32 v{vub}, 0x300, v{vl16}\nv_add_u32 v{vub}, v{vub}, v{vl16}')
    SA = A0 + 188
    th = cfg.get('th', (115, 430)); tb_ = cfg.get('ub', (70, 170, 280, 385)); UD = cfg.get('ud', 95)
    def stat(hf):
        for i in range(4):
            for h in range(2):
                pre = op(lambda i=i: p.ins(f's_add_u32 {sr(sv+1)}, {sr(sst)}, {8192 * hf + 2048 * i}'), 1)
                X(th[hf], th[hf] + 70, lambda i=i, h=h: p.vm(f'buffer_load_dwordx4 {vr(SA+8*i+4*h,4)}, v{vub}, {sr(sWS,4)}, {sr(sv+1)} offen offset:{256*h} {lf}', ('st', hf, i, h)), pre)
        fl = [lambda: p.wait(vm=[('st', hf, i, h) for i in range(4) for h in range(2)])]
        for i in range(4):
            if hf == 0 and i == 0: fl += [f'v_accvgpr_read_b32 v{vs+x}, {vr(SA+x)}' for x in range(8)]
            else: fl += [f'v_accvgpr_read_b32 v{ut+x}, {vr(SA+8*i+x)}' for x in range(8)] + [f'v_add_f32 v{vs+x}, v{vs+x}, v{ut+x}' for x in range(8)]
        if hf == 0: return fl
        for sw_ in (16, 32):
            fl += [f'v_mov_b32 v{ut+x}, v{vs+x}' for x in range(8)] + [f'v_permlane{sw_}_swap_b32 v{vs+x}, v{ut+x}' for x in range(8)] + [f'v_add_f32 v{vs+x}, v{vs+x}, v{ut+x}' for x in range(8)]
        Ls = []
        for m in range(4):
            b = vs + 2 * m
            Ls.append(F(f'v_mul_f32 v{b}, {f32(1/1024)}, v{b}\nv_mul_f32 v{b+1}, {f32(1/1024)}, v{b+1}\nv_fma_f32 v{b+1}, -v{b}, v{b}, v{b+1}\nv_max_f32 v{b+1}, 0, v{b+1}') + rb(b + 1)
                      + [f'v_add_f32 v{b+1}, {f32(1e-5)}, v{b+1}'] + rb(b + 1) + [f'v_sqrt_f32 v{b+1}, v{b+1}'] + rb(b) + rb(b + 1) + [f'v_sub_f32 v{b}, 0, v{b}'])
        fl += [y for x in zip(*Ls) for y in x]
        return fl + F(f'v_lshrrev_b32 v{vub}, 8, v{vl16}\nv_lshlrev_b32 v{vub}, 4, v{vub}\nv_add_u32 v{vub}, {UT}, v{vub}')
    sJ, sMk, uc, UDR = k.common['dead'][0], k.common['dead'][1], A0 + 184, A0 + 220
    mf_ = lambda d, a_, b_, c='0': op(lambda: p.ins(f'{MFMA} {vr(d,4)}, {vr(a_,4)}, {vr(b_,4)}, {c}'), 'M')
    def burst(bi):
        for i in range(4):
            pre = op(lambda i=i: p.ins(f's_mov_b32 {sr(sv+1)}, {7168 * (4 * bi + i)}'), 1)
            X(tb_[bi], tb_[bi] + 30, lambda i=i: p.vm(f'buffer_load_dwordx4 {vr(UDR+16*(bi&1)+4*i,4)}, v{vt}, {sr(sJ,4)}, {sr(sv+1)} offen {cfg.get("ufl", "")}', ('ud', bi, i)), pre)
            extra[-1]['wt'] = cfg.get('uwt', 6) if i == 3 else 0.4
        L = [lambda: p.lg(f'ds_read_b128 {vr(ut,4)}, v{vt+1} offset:{16*bi}', ('uv', bi), r=(LB, LB + 4096), priv=True), ('gap', 6), lambda: p.wait(vm=[('ud', bi, 3)], lg=[('uv', bi)])]
        for i in range(4):
            L += [f'v_cndmask_b32 v{ut+4+r_}, 0, v{ut+i}, {sr(sMk+2*r_,2)}' for r_ in range(4)] + [('gap', 1), mf_(uc, ut + 4, UDR + 16 * (bi & 1) + 4 * i, vr(uc, 4) if bi or i else '0')]
        return L
    chains = sorted([(th[hf] + cfg.get('sd', 100), stat(hf), f's{hf}') for hf in range(2)] + [(tb_[bi] + UD, burst(bi), f'b{bi}') for bi in range(4)], key=lambda x: x[0])
    ufin = F(f's_bfe_u32 {sr(s0)}, s2, 0x20004\ns_lshl_b32 {sr(s0)}, {sr(s0)}, 9\nv_and_b32 v{vt+1}, 15, v{vl}\nv_lshl_add_u32 v{vt+1}, v{vt+1}, 5, {sr(s0)}')
    ufin += [f'v_cmp_gt_u32 vcc, {448 * 4}, v{vt+1}\nv_mov_b32 v{vt+2}, {WSZ}\nv_bfe_u32 v{vt}, v{vl}, 4, 1\nv_cndmask_b32 v{vt+1}, v{vt+2}, v{vt+1}, vcc']
    ufin += F(f'v_lshl_add_u32 v{vt+1}, v{vt}, 4, v{vt+1}\nv_lshrrev_b32 v{vt}, 5, v{vl}\nv_mul_u32_u24 v{vt}, {FF*4}, v{vt}\nv_add_u32 v{vt+1}, v{vt+1}, v{vt}')
    ufin += F(f's_lshr_b32 {sr(s0)}, s2, 6\ns_lshl_b32 {sr(s0)}, {sr(s0)}, 2\ns_add_u32 {sr(s0)}, {sr(s0)}, {sr(sw)}\ns_lshl_b32 {sr(s0)}, {sr(s0)}, 1\ns_bfe_u32 {sr(s1)}, s2, 0x10003\ns_add_u32 {sr(s0)}, {sr(s0)}, {sr(s1)}\ns_mul_i32 {sr(s0)}, {sr(s0)}, {2*FF*4}\ns_mul_i32 {sr(s1)}, {sr(sx)}, {448*4}\ns_add_u32 {sr(s0)}, {sr(s0)}, {sr(s1)}\ns_add_u32 {sr(s0)}, {sr(s0)}, {WS_UT3}')
    ufin.append(lambda: p.vm(f'buffer_store_dwordx4 {vr(uc,4)}, v{vt+1}, {sr(sWS,4)}, {sr(s0)} offen sc1', 'us'))
    ufin += F(f's_lshl_b32 {sr(s0)}, {sr(sx)}, 7\ns_add_u32 {sr(s0)}, {sr(s0)}, {FL_U}\nv_and_b32 v{vt}, 31, v{vl}\nv_min_u32 v{vt+2}, 27, v{vt}\nv_lshl_add_u32 v{vt}, v{vt}, 10, {sr(s0)}\nv_lshlrev_b32 v{vt+2}, 4, v{vt+2}')
    ufin += F(f's_lshl_b32 {sr(s0)}, {sr(sq)}, 9\nv_mov_b32 v{vt+1}, {sr(s0)}\ns_lshl_b32 {sr(s2_)}, {sr(sq)}, 3\ns_lshr_b32 {sr(s0)}, 0x0b070602, {sr(s2_)}\ns_and_b32 {sr(s0)}, {sr(s0)}, 15\ns_lshl_b32 {sr(s0)}, {sr(s0)}, 7\ns_sub_u32 {sr(s0)}, {sr(s0)}, 256\nv_mov_b32 v{ut}, {sr(s0)}')
    ufin += [f'v_cmp_gt_u32 vcc, 256, v{vt+2}\nv_cndmask_b32 v{vt+1}, v{ut}, v{vt+1}, vcc']
    ufin += F(f's_lshr_b32 {sr(s0)}, 0x15140706, {sr(s2_)}\ns_and_b32 {sr(s0)}, {sr(s0)}, 31\ns_lshl_b32 {sr(s0)}, {sr(s0)}, 6\ns_sub_u32 {sr(s0)}, {sr(s0)}, 384\nv_mov_b32 v{ut}, {sr(s0)}')
    ufin += [f'v_cmp_gt_u32 vcc, 384, v{vt+2}\nv_cndmask_b32 v{vt+1}, v{ut}, v{vt+1}, vcc']
    ufin += F(f'v_lshrrev_b32 v{ut}, 5, v{vl}\nv_mul_u32_u24 v{ut}, {4*FF*4}, v{ut}\nv_add3_u32 v{vt+1}, v{vt+1}, v{vt+2}, v{ut}\ns_mul_i32 {sr(s0)}, {sr(sw)}, {FF*4}\ns_add_u32 {sr(s0)}, {sr(s0)}, {sr(s1)}\ns_add_u32 {sr(s0)}, {sr(s0)}, {WS_UT3}\nv_add_u32 v{vt+1}, {sr(s0)}, v{vt+1}')
    ufin += F(f's_lshl_b32 {sr(s0)}, {sr(sw)}, 9\ns_add_u32 {sr(s0)}, {sr(s0)}, {UT}\nv_add_u32 v{vt+2}, {sr(s0)}, v{vt+2}')
    tu = tb_[3] + UD + cfg.get('tu', 205)
    iu, cu = poll_ops(k, sWS, 9, None, 'plu', sfl + 3, va=vt)
    st.at(tu, iu); st.at(tu + PD, ';@T ua'); st.at(tu + PD, cu); st.at(tu + PD, ';@T ub')
    for i in range(8):
        pre = op(lambda i=i: p.ins(f's_mov_b32 {sr(sv+1)}, {8 * FF * 4 * i}'), 1)
        X(tu + PD + 1, tu + PD + 45, lambda i=i: p.vm(f'buffer_load_dwordx4 {vr(UDR+4*i,4)}, v{vt+1}, {sr(sWS,4)}, {sr(sv+1)} offen {lf}', ('u', i)), pre)
        extra[-1]['wt'] = 0.5
    fl = [lambda: p.wait(vm=[('u', i) for i in range(8)])] + [f'v_accvgpr_read_b32 {vr(ut+i)}, {vr(UDR+i)}' for i in range(4)]
    for h in range(1, 8): fl += [f'v_accvgpr_read_b32 {vr(ut+4+i)}, {vr(UDR+4*h+i)}' for i in range(4)] + [f'v_add_f32 {vr(ut+i)}, {vr(ut+i)}, {vr(ut+4+i)}' for i in range(4)]
    fl += [f'v_mov_b32 v{ut+4+i}, v{ut+i}' for i in range(4)] + [f'v_permlane32_swap_b32 v{ut+i}, v{ut+4+i}' for i in range(4)] + [f'v_add_f32 v{ut+i}, v{ut+i}, v{ut+4+i}' for i in range(4)]
    fl.append(lambda: p.lg(f'ds_write_b128 v{vt+2}, {vr(ut,4)}', 'utw', w=(UT, UT + 2048)))
    utb = tu + PD + cfg.get('auxd', 65) + 62
    bars = sorted(set(bars) | {utb}); k.bars = bars
    sb, sn, skq = sm, sq, sx
    T = 48; l_ = vl
    su4s = F(f's_and_b32 {sr(sb)}, s2, 4\ns_lshr_b32 {sr(s0)}, s2, 6\ns_add_u32 {sr(sb)}, {sr(sb)}, {sr(s0)}\ns_bfe_u32 {sr(sn)}, s2, 0x30003\ns_and_b32 {sr(skq)}, s2, 3')
    su4s += F(f's_add_u32 {sr(sL4)}, {sr(sb)}, {sr(sn)}\ns_and_b32 {sr(sL4)}, {sr(sL4)}, 3')
    su4s += F(f's_lshl_b32 {sr(s0)}, {sr(sb)}, 4\ns_and_b32 {sr(s1)}, {sr(skq)}, 2\ns_mul_i32 {sr(sst4)}, {sr(s1)}, {-8 * MBS[1] & 0xffffffff}\ns_add_u32 {sr(sst4)}, {sr(sst4)}, {7 * MBS[1]}\ns_lshl_b32 {sr(s1)}, {sr(s1)}, 2\ns_add_u32 {sr(s0)}, {sr(s0)}, {sr(s1)}\ns_lshl_b32 {sr(s1)}, {sr(sw)}, 1\ns_add_u32 {sr(s0)}, {sr(s0)}, {sr(s1)}')
    su4s += F(f's_mul_i32 {sr(sA4)}, {sr(s0)}, {MBS[1]}\ns_mul_i32 {sr(s1)}, {sr(skq)}, {28 * 1024}\ns_add_u32 {sr(sA4)}, {sr(sA4)}, {sr(s1)}\ns_add_u32 {sr(sA4)}, {sr(sA4)}, {WS_ACT}')
    su4s += F(f's_lshl_b32 {sr(sro)}, {sr(s0)}, 15\ns_lshl_b32 {sr(sn)}, {sr(sn)}, 1\ns_and_b32 {sr(s1)}, {sr(skq)}, 1\ns_add_u32 {sr(sn)}, {sr(sn)}, {sr(s1)}')
    su4s += F(f's_lshl_b32 {sr(s0)}, {sr(sn)}, 7\ns_add_u32 {sr(sro)}, {sr(sro)}, {sr(s0)}\ns_lshl_b32 {sr(sg4)}, {sr(sn)}, 8\ns_add_u32 {sr(sg4)}, {sr(sg4)}, {WS_MODP + 5 * 4096}')
    su4s += F(f's_lshl_b32 {sr(s0)}, {sr(sb)}, 12\ns_lshl_b32 {sr(s1)}, {sr(skq)}, 8\ns_add_u32 {sr(s0)}, {sr(s0)}, {sr(s1)}\ns_add_u32 {sr(sfl+2)}, {sr(s0)}, {FL_A}')
    su4s += F(f's_lshl_b32 {sr(sxl)}, {sr(sw)}, 12\ns_add_u32 {sr(sxl)}, {sr(sxl)}, {XL}\ns_lshl_b32 {sr(sxo)}, s2, 16\ns_lshl_b32 {sr(s0)}, {sr(sw)}, 14\ns_add_u32 {sr(sxo)}, {sr(sxo)}, {sr(s0)}\ns_add_u32 {sr(sxo)}, {sr(sxo)}, {WS_XC4}')
    su4s += F(f's_lshr_b32 {sr(s0)}, s2, 3\ns_lshl_b32 {sr(s0)}, {sr(s0)}, 2\ns_add_u32 {sr(s0)}, {sr(s0)}, {sr(sw)}\ns_mul_i32 {sr(spf)}, {sr(s0)}, {14 * 1024}\ns_mul_i32 {sr(s0)}, {sr(skq)}, {896 * 2048}\ns_add_u32 {sr(spf)}, {sr(spf)}, {sr(s0)}')
    su4s += F(f's_nop 0')
    pfs = F(f'v_lshrrev_b32 v{vt}, 8, v{vl16}\nv_lshlrev_b32 v{vt}, 28, v{vt}\nv_lshl_add_u32 v{vt}, v{vl16}, 3, v{vt}\nv_xor_b32 v{wa+7}, {3<<5}, v{wa+4}')
    st.fill(pfs, utb - 8, cap=3)
    su4 = F(f'v_lshrrev_b32 v{T}, 3, v{l_}\nv_bfe_u32 v{T+1}, v{T}, 1, 2\nv_bfe_u32 v{T+2}, v{l_}, 1, 2\nv_xor_b32 v{T+1}, v{T+1}, v{T+2}\nv_lshlrev_b32 v{T+1}, 5, v{T+1}\nv_and_b32 v{T+2}, 1, v{l_}\nv_lshl_add_u32 v{T+1}, v{T+2}, 4, v{T+1}')
    su4 += F(f's_lshl_b32 {sr(s0)}, {sr(sw)}, 3\nv_add_u32 v{T}, {sr(s0)}, v{T}\nv_lshl_add_u32 v{T}, v{T}, 11, v{T+1}')
    su4 += F(f's_mul_i32 {sr(s0)}, {sr(skq)}, {896 * 2048}\ns_lshl_b32 {sr(s1)}, {sr(sn)}, 7\ns_add_u32 {sr(s0)}, {sr(s0)}, {sr(s1)}\nv_add_u32 v{vd4+1}, {sr(s0)}, v{T}\nv_xor_b32 v{vd4}, 128, v{vd4+1}')
    su4 += F(f'v_and_b32 v{T}, 3, v{l_}\nv_bfe_u32 v{T+1}, v{l_}, 2, 1\nv_lshl_add_u32 v{T}, v{T}, 3, v{T+1}\nv_lshlrev_b32 v{vp+1}, 7, v{T}')
    su4b = F(f's_lshl_b32 {sr(s0)}, {sr(sw)}, 8\ns_add_u32 {sr(s0)}, {sr(s0)}, {GL}\nv_lshrrev_b32 v{T+1}, 4, v{l_}\nv_lshl_add_u32 v{vgo}, v{T+1}, 4, {sr(s0)}\nv_lshlrev_b32 v{vl4}, 2, v{l_}\nv_add_u32 v{vgo-1}, {sr(s0)}, v{vl4}')
    su4b += F(f'v_lshrrev_b32 v{T}, 3, v{l_}\nv_and_b32 v{T+2}, 7, v{l_}\nv_xor_b32 v{T+3}, v{T+2}, v{T}\nv_lshlrev_b32 v{T+3}, 4, v{T+3}\nv_lshl_add_u32 v{vro}, v{T}, 11, v{T+3}')
    su4b += F(f'v_bfe_u32 v{T}, v{l_}, 4, 1\nv_lshrrev_b32 v{T+3}, 5, v{l_}\nv_lshl_add_u32 v{T}, v{T}, 1, v{T+3}\nv_xor_b32 v{T}, v{T}, v{T+2}\nv_lshlrev_b32 v{T}, 4, v{T}\nv_and_b32 v{T+2}, 15, v{l_}\nv_lshl_add_u32 v{T}, v{T+2}, 7, v{T}\nv_add_u32 v{vxa}, {sr(sxl)}, v{T}\nv_xor_b32 v{vxa+1}, 64, v{vxa}\nv_add_u32 v{vxa+2}, {sr(sxl)}, v{vl16}')
    su4b += F(f'v_bfe_u32 v{T}, v{l_}, 2, 2\nv_lshrrev_b32 v{T+1}, 4, v{l_}\nv_and_b32 v{T+2}, 1, v{l_}\nv_lshlrev_b32 v{T+2}, 4, v{T+2}\nv_mov_b32 v{T+3}, 0xffff\nv_lshlrev_b32 v{T+2}, v{T+2}, v{T+3}') + [f'v_cmp_eq_u32 vcc, v{T}, v{T+1}\nv_mov_b32 v{vsel+8}, 0\nv_mov_b32 v{vsel+9}, 0\nv_cndmask_b32 v{T}, 0, v{T+2}, vcc']
    su4b += [f'v_and_b32 v{T+1}, 2, v{l_}', f'v_cmp_eq_u32 vcc, 0, v{T+1}\nv_mov_b32 v{vsel+2}, 0\nv_mov_b32 v{vsel+3}, 0\nv_cndmask_b32 v{T+2}, 0, v{T}, vcc', f'v_sub_u32 v{T+3}, v{T}, v{T+2}']
    def epi(s_):
        L = []
        for mp in (0, 2):
            ms = [(m, x) for m in (mp, mp + 1) for x in range(4)]
            e = lambda m, x: ut + 4 * (m & 1) + x
            L += [f'v_mul_f32 v{e(m,x)}, v{vs+2*m}, v{accr(s_,0,m)+x}' for m, x in ms]
            ex = [f'v_exp_f32 v{e(m,x)}, v{e(m,x)}' for m, x in ms]
            mu = [f'v_mul_f32 v{accr(s_,1,m)+x}, v{accr(s_,0,m)+x}, v{accr(s_,1,m)+x}' for m, x in ms]
            L += [y for ab in zip(ex, mu) for y in ab]
            vv = [f'v_fma_f32 v{e(m,x)}, v{e(m,x)}, v{vs+2*m+1}, v{vs+2*m+1}' for m, x in ms] + [f'v_mul_f32 v{accr(s_,1,m)+x}, v{accr(s_,1,m)+x}, v{e(m,x)}' for m, x in ms]
            rc = [f'v_rcp_f32 v{e(m,x)}, v{e(m,x)}' for m, x in ms]
            L += vv[:2] + [y for ab in zip(rc, vv[2:10]) for y in ab] + vv[10:]
            for m in (mp, mp + 1):
                u_ = accr(s_, 1, m); o = accr(s_ & ~1, 0, m) + 2 * (s_ & 1)
                L += F(f'v_cvt_pk_bf16_f32 v{o}, v{u_}, v{u_+1}\nv_cvt_pk_bf16_f32 v{o+1}, v{u_+2}, v{u_+3}')
                if s_ & 1 or s_ == 6:
                    so = sO + {1: 0, 3: 0, 5: 1, 6: 2}[s_]
                    def f(m=m, o=o, so=so):
                        if m: p.ins(f's_add_u32 {sr(s2_)}, {sr(so)}, {2 * MBS[1] * m}')
                        so_ = sr(s2_) if m else sr(so)
                        if s_ == 6: p.vm(f'buffer_store_dwordx2 {vr(o,2)}, v{vl16}, {sr(sWS,4)}, {so_} offen sc1', ('as', s_, m))
                        else: p.vm(f'buffer_store_dwordx4 {vr(o-2,4)}, v{vl16}, {sr(sWS,4)}, {so_} offen offset:{1024 if s_ == 3 else 0} sc1', ('as', s_, m))
                    L.append(op(f, 'sW'))
        return L
    order = [6, 4, 5, 0, 1, 2, 3]
    win = {}
    a_ = 0
    wl = cfg.get('wl', (70, 80, 70, 90, 90, 80, 70))
    for i, s_ in enumerate(order):
        a_ = max(a_, done[s_] + 3)
        win[s_] = (a_, a_ + wl[i] - 1); a_ += wl[i]
    k.win = win; k.z = (z3, z4, zf, N)
    assert win[1][1] + 3 < z4 + 32, 'accumulators of G4 (tiles 4..7) overlap pairs 0/1'
    su4_end = win[4][1]
    pre_done = k.early3
    W.units[(3, 0, 0)]['vis'] = True
    for ts in range(n4):
        for g in range(2): W.units[(4, ts, g)]['e'] = su4_end + 1
    ops = W.dma_ops(bars, pre_done)
    def aop(ph, ts, j, m):
        ch, ab, stp = (chunk3, ab3, 65536) if ph == 3 else (chunk4, ab4, sr(sst4) if m == 2 else MBS[1])
        def pre():
            ch(ts)
            if m and j == 0: p.ins(f's_add_u32 {sr(sCA + ts % NC)}, {sr(sCA + ts % NC)}, {stp}')
        main = lambda: p.vm(f'buffer_load_dwordx4 {vr(ab(ts,j,m),4)}, v{vl16}, {sr(sWS,4)}, {sr(sCA + ts % NC)} offen offset:{1024*j} {lf}', ('A', ph, ts, j, m))
        return op(pre, 1 if j == 0 else 0), main
    pl1 = z4 - cfg.get('pl1', 100); pl2 = firstA[(4, NE)] - cfg.get('pl2', 110)
    i1, c1 = poll_ops(k, sWS, vp, sfl + 2, 'pl1', sfl + 3)
    i2, c2 = poll_ops(k, sWS, vp, sfl + 2, 'pl2', sfl + 3)
    assert pl1 > su4_end
    st.at(pl1, i1); st.at(pl1 + PD, c1)
    st.at(pl2 - 1, f's_sub_u32 {sr(sfl+2)}, {sr(sfl+2)}, {FL_A - FL_A2}'); st.at(pl2, i2); st.at(pl2 + PD, c2)
    yb = cfg.get('yb', 70); ne0 = cfg.get('a0', 2)
    iy, cy = poll_ops(k, sWS, 9, sfl + 2, 'ply', sfl + 3, va=vt + 2)
    if NP: st.at(yb, iy); st.at(yb + PD, ';@T y_a'); st.at(yb + PD, cy); st.at(yb + PD, ';@T y_b')
    for ph, n_ in ((3, n3), (4, n4)):
        for ts in range(n_):
            if ph == 3: e = utb if nl and ts == n3 - 1 else lastA[(3, ts - DAS)] + 1 if ts >= DAS else 0
            else: e = max(bufs[ts][1] if ts < NB else lastA[(4, ts - NB)] + 1, (pl1 if ts < NE else pl2) + PD + 1)
            for m in range(4):
                if ph == 3 and ts < ne0 and (m < 2 or not NP): continue
                for j in range(2):
                    pre, main = aop(ph, ts, j, m)
                    ops.append(dict(e=max(e, yb + PD + 1) if ph == 3 and NP and m >= 2 else e, dl=firstM[(ph, ts, m)] - 2, pre=pre, main=main, id=('A', ph, ts), wt=0.5 if ph == 3 and ts < NP and m >= 2 else 1))
    vx1 = 192; vf = 208
    tg = win[3][1] + 110
    for q in range(NPART):
        pre = op(lambda q=q: p.ins(f's_add_u32 {sr(sv+1)}, {sr(sg4)}, {6144 * 4 * q}'), 1)
        X(tg, tg + 60, lambda q=q: p.vm(f'buffer_load_dword v{vg+q}, v{vl4}, {sr(sWS,4)}, {sr(sv+1)} offen {lf}', ('g', q)), pre)
    for i, tp in enumerate(cfg.get('pf', range(500, 1280, 112))):
        pre = op(lambda i=i: p.ins(f's_add_u32 {sr(sv+1)}, {sr(spf)}, {2048 * i}'), 1)
        assert tp > utb
        X(tp, tp + 20, lambda i=i: p.vm(f'buffer_load_dword a253, v{vt}, {sr(sWd,4)}, {sr(sv+1)} offen {cfg.get("pfl", "")}', ('dummy', i)), pre)
        extra[-1]['wt'] = cfg.get('pfw', 2)
    g3gap, g4gap = cfg.get('gap3', 5), cfg.get('gap4', 4.5)
    st.vmem(ops + extra, lambda i: cfg.get('gap0', 4) if i < 112 else g3gap if i < z3 else cfg.get('gapf', 4) if i < z4 else g4gap)
    k.vops = ops
    assert not NP or th[0] > 112 * NP + 24
    e_ = st.fill(setup, 20); assert e_ < th[0], e_
    for t0_, L, nm in chains:
        e_ = st.fill(L, max(t0_, e_ + 1))
        k.dbg = getattr(k, 'dbg', []) + [(nm, t0_, e_)]
        if nm == 'b3':
            st.at(e_ + cfg.get('upub', 80), pub_op(k, sWS, 9, sfl, ['us']))
            st.at(e_ + cfg.get('upub', 80), f's_sub_u32 {sr(sfl)}, {sr(sfl)}, {FL_U - FL_A}')
            assert e_ + cfg.get('upub', 80) < tu
            e_ = st.fill([('gap', 3)] + ufin + su4s, e_ + 1); assert e_ < tu, (e_, tu)
    assert e_ < utb - 62, (e_, utb)
    e_ = st.fit(fl, utb - 62, utb - 2)
    W.bw[utb].append(('lg', 'utw'))
    w = utb + 1; todo = [(s_, mat) for s_ in (6, 4, 5, 0, 1, 2, 3) for mat in range(2)]
    rdu = lambda x, i: (lambda: p.lg(f'ds_read_b128 {vr(ut+4*i,4)}, v{vub} offset:{512*(2*x[1]+i)+64*x[0]}', ('iu', x, i), r=(UT, UT + 2048)))
    allv = {x: [v for key, v in visit.items() if key[1:] == x] for x in todo}
    def pick(w_):
        while True:
            ok = [x for x in todo if all(v + 10 <= w_ or v >= w_ + cfg.get('injw', 34) for v in allv[x])]
            if ok: todo.remove(ok[0]); return ok[0], w_
            w_ += 1
    cur, w2 = pick(w + 8)
    st.fill([rdu(cur, 0), rdu(cur, 1)], w); w = w2
    while cur:
        fm_ = lambda i: [lambda x=cur, i=i: p.wait(lg=[('iu', x, i)])] + [f'v_fmac_f32 v{accr(cur[0],cur[1],m)+x}, v{vs+2*m+i}, v{ut+4*i+x}' for m in range(4) for x in range(4)]
        nx, w2 = pick(w + 30) if todo else (None, 0)
        w = st.fill(fm_(0) + ([rdu(nx, 0)] if nx else []) + fm_(1) + ([rdu(nx, 1)] if nx else []), w, cap=cfg.get('injcap', 2)) + 1
        assert w < (z3 if cur[0] >= 4 else done[6] - 12), (cur, w, z3)
        cur = nx; w = max(w, w2)
    L = [f'v_rcp_f32 v{vs+2*m}, v{vs+2*m+1}' for m in range(4)] + [f'v_mul_f32 v{vs+2*m+1}, v{vs+2*m+1}, v{vs+2*m+1}' for m in range(4)] + [f'v_mul_f32 v{vs+2*m}, {f32(-LOG2E)}, v{vs+2*m}' for m in range(4)]
    st.fill(L, w)
    k.injend = w
    st.at(win[5][1] + cfg.get('pb1', 40), pub_op(k, sWS, vpx, sfl, [('as', 6, m) for m in range(4)] + [('as', 5, m) for m in range(4)]))
    for s_ in order:
        L = epi(s_)
        if s_ == 4: L = L[:20] + su4 + L[20:]
        st.fit(L, *win[s_])
    e_ = st.fill([f's_sub_u32 {sr(sfl)}, {sr(sfl)}, {FL_A - FL_A2}', ('gap', cfg.get('pb2', 40)), pub_op(k, sWS, vpx, sfl, [('as', s_, m) for s_ in (1, 3) for m in range(4)])] + su4b, win[3][1] + 1)
    assert e_ < tg, (e_, tg)
    L = [lambda i=i: p.lg(f'ds_read_b128 {vr(vx1+4*i,4)}, v{vxa+2} offset:{1024*i}', 'x1', r=(XL, XL + 16384), priv=True) for i in range(4)]
    L += [lambda: p.wait(vm=[('g', q) for q in range(NPART)])]
    L += F(f'v_add_f32 v{vg}, v{vg}, v{vg+1}\nv_add_f32 v{vg+2}, v{vg+2}, v{vg+3}\nv_add_f32 v{vg}, v{vg}, v{vg+2}') + rb(vg)
    L += [lambda: p.lg(f'ds_write_b32 v{vgo-1}, v{vg}', None, w=(GL, GL + 1024), priv=True)]
    L += [lambda t=t: p.lg(f'ds_read_b128 {vr(vg+4*t,4)}, v{vgo} offset:{64*t}', ('gl', t), r=(GL, GL + 1024), priv=True) for t in range(4)]
    L += [lambda: p.wait(lg=['x1'])]
    for i in range(16): L += F(f'v_lshlrev_b32 v{vf+2*i}, 16, v{vx1+i}\nv_and_b32 v{vf+2*i+1}, 0xffff0000, v{vx1+i}')
    L += F(f'v_mov_b32 v{vp+1}, 0') + [lambda: p.wait(lg=[('gl', 3)])]
    for t in range(4):
        for h in range(2):
            r_ = vsel + 6 * (t // 2) + 4 * (t & 1) + h
            L += F(f'v_cvt_pk_bf16_f32 v{r_}, v{vg+4*t+2*h}, v{vg+4*t+2*h+1}\nv_and_b32 v{r_}, v{r_}, v{T+2+h}')
    e_ = st.fill(L, max(tg + 130, pl2 + PD + 1)); assert e_ < zf
    XJ = (3, 1, 2); XP = (0, 0, 1); XT = (0, 0, 4); XM = (2, 0, 2)
    tail = []
    def put(slot, o):
        if slot < N: st.at(slot, o)
        else: tail.append((slot, len(tail), o))
    xr = lambda x, i: acc4(XT[x] + 2 * (i & 1) + 1, XM[x] + (i >> 1))
    def addp(x, i):
        return [f'{MFMA} {vr(vf+8*i+4*t,4)}, {vr(vsel+6*(i&1)+2*t,4)}, {vr(xr(x,i),4)}, {vr(vf+8*i+4*t,4)}' for t in range(2)]
    xt = cfg.get('xt', ((75, 130, 165), (75, 132, 167), (50, 90, 97)))
    for ps in range(2):
        L = []
        for t in range(4):
            L.append(('from', d4[(ps, 4 * ps + t)] + 3))
            for x in range(3):
                if XP[x] != ps: continue
                for m in range(2):
                    c = acc4(XT[x] + t, XM[x] + m); o = acc4(XT[x] + (t & ~1), XM[x] + m)
                    L += F(f'v_cvt_pk_bf16_f32 v{o+2*(t&1)}, v{c}, v{c+1}\nv_cvt_pk_bf16_f32 v{o+2*(t&1)+1}, v{c+2}, v{c+3}')
                    if t & 1:
                        L.append(op(lambda x=x, i=2 * m + t // 2, o=o: (p.ins(f's_add_u32 {sr(sxo+1)}, {sr(sxo)}, {4096 * x}'), p.vm(f'buffer_store_dwordx4 {vr(o,4)}, v{vl16}, {sr(sWS,4)}, {sr(sxo+1)} offen offset:{1024 * i} sc1', ('xs', x, i))), 'sW'))
                        L.append(('gap', cfg.get('xgap', (2, 0))[ps]))
        e_ = st.fill(L, d4[(ps, 4 * ps)] + 3, cap=cfg.get('xcap', (2, 5))[ps]); assert e_ < d4[(ps, 4 * ps + 3)] + xt[2 * ps][0]
    for x in range(3):
        e0 = d4[(XP[x], 4 * XP[x] + 3)]; vq_ = (vd4 + 2, vpx + 1, vp)[x]
        if x != 1: put(e0 + xt[x][0], pub_op(k, sWS, vpx, sfl + 1, [('xs', y, i) for y in range(3) if XP[y] == XP[x] for i in range(4)], 16 * XP[x], wg=False))
        sq_ = (sA4, sL4, sfl + 2)[x]
        i3, c3 = poll_ops(k, sWS, vq_, sq_, ('pl3', x), sfl + 3, wg=False, va=vp + 1)
        put(e0 + xt[x][1], op(lambda x=x, i3=i3, sq_=sq_: (p.ins(f's_xor_b32 {sr(sq_)}, {sr(sfl+1)}, {XJ[x] << 9}\ns_add_u32 {sr(sq_)}, {sr(sq_)}, {16 * XP[x]}'), i3()), 3))
        if x == 2:
            lds_ = f's_xor_b32 {sr(s2_)}, {sr(sxo)}, {XJ[x] << 16}\ns_add_u32 {sr(s2_)}, {sr(s2_)}, {4096 * x}\n' + '\n'.join(f'buffer_load_dwordx4 {vr(xr(2,i),4)}, v{vl16}, {sr(sWS,4)}, {sr(s2_)} offen offset:{1024 * i} sc1 ; cond' for i in range(4))
            def look():
                L = k.lab('XL'); p.wait(vm=[('pl3', 2)])
                p.ins(f'v_cmp_ne_u32 vcc, {sr(k.tok)}, v{vp}\ns_mov_b32 {sr(sxo+1)}, 0\ns_cbranch_vccnz {L}\n{lds_}\ns_mov_b32 {sr(sxo+1)}, 1'); p.label(L)
            def again():
                L = k.lab('XA'); p.T('xa2')
                p.ins(f's_cmp_eq_u32 {sr(sxo+1)}, 1\ns_cbranch_scc1 {L}x\ns_mov_b32 {sr(sfl+3)}, 60000'); p.label(L)
                p.ins(f'buffer_load_dword v{vp}, v{vp+1}, {sr(sWS,4)}, {sr(sfl+2)} offen sc1 ; cond\ns_sub_u32 {sr(sfl+3)}, {sr(sfl+3)}, 1\ns_cmp_eq_u32 {sr(sfl+3)}, 0\ns_waitcnt vmcnt(0) ; cond\ns_cbranch_scc1 {L}y\nv_cmp_ne_u32 vcc, {sr(k.tok)}, v{vp}\ns_cbranch_vccnz {L}')
                p.label(L + 'y'); p.ins(lds_); p.label(L + 'x'); p.T('xb2')
            assert d4[(0, 3)] + xt[1][2] + 4 < e0 + xt[x][2] < N and xt[x][0] < xt[x][2]
            put(e0 + xt[x][2], op(look, 8)); put(N, again)
            continue
        put(e0 + xt[x][2], f';@T xa{x}')
        put(e0 + xt[x][2], c3)
        put(e0 + xt[x][2], f';@T xb{x}')
        for i in range(4):
            f = lambda x=x, i=i: (p.ins(f's_xor_b32 {sr(s2_)}, {sr(sxo)}, {XJ[x] << 16}\ns_add_u32 {sr(s2_)}, {sr(s2_)}, {4096 * x}'), p.vm(f'buffer_load_dwordx4 {vr(xr(x,i),4)}, v{vl16}, {sr(sWS,4)}, {sr(s2_)} offen offset:{1024 * i} sc1', ('xc', x, i)))
            put(e0 + xt[x][2] + 1 + i, op(f, 3))
    def add01():
        p.wait(vm=[('xc', x, i) for x in range(2) for i in range(4)])
        for x in range(2):
            for i in range(4):
                for o in addp(x, i): p.ins(o)
    st.at(N - 1, op(add01, 'M'))
    T = ACC
    def aearly():
        for ts in range(ne0):
            for m in range(2 if NP else 4):
                for j in range(2):
                    pre, main = aop(3, ts, j, m); pre(); main()
    def acond(first):
        L = k.lab('AE'); a_ = len(p.items); keep = set(done3)
        aearly(); body = p.items[a_:]; del p.items[a_:]
        if first:
            done3.clear(); done3.update(keep)
            p.wait(vm=['ple0'])
            p.ins(f'v_subrev_u32 v{vt}, {sr(k.tok)}, v{vt}\nv_cmp_lt_u32 vcc, 1, v{vt}\ns_mov_b32 {sr(sO)}, 0\ns_cbranch_vccnz {L}\ns_mov_b32 {sr(sO)}, 1')
        else: p.ins(f's_cmp_eq_u32 {sr(sO)}, 1\ns_cbranch_scc1 {L}')
        for x in body: p.ins(x[1] + (' ; cond' if x[0] == 'vm' else ''))
        p.label(L)
        if not first:
            for x in body:
                if x[0] == 'vm': p.items.append(('vmark', x[2])); p.items.append(('def', x[1], x[2]))
    def rest():
        for o in k.left: o['pre'](); o['main']()
        for f in k.stash: f()
        p.ins(f'v_mov_b32 v{vdA}, v16')
    p.wait(lg='all')
    if not NP:
        p.bar(); rest(); k.ypub(); p.T('y_pub')
        p.ins(f';@WARM {sr(sw)} 1 3\n;@FROM')
    p.ins(f's_and_b32 {sr(sx)}, s2, 7\ns_bfe_u32 {sr(sq)}, s2, 0x20003\ns_lshr_b32 {sr(sm)}, s2, 5\ns_add_u32 {sr(sLead)}, {sr(sq)}, {sr(sm)}\ns_and_b32 {sr(sLead)}, {sr(sLead)}, 3\ns_lshl_b32 {sr(s0)}, {sr(sm)}, 1')
    p.ins(f's_lshr_b32 {sr(s1)}, {sr(sw)}, 1\ns_add_u32 {sr(s0)}, {sr(s0)}, {sr(s1)}\ns_lshl_b32 {sr(sst)}, {sr(s0)}, 3\ns_and_b32 {sr(s2_)}, {sr(sw)}, 1\ns_add_u32 {sr(sst)}, {sr(sst)}, {sr(s2_)}')
    p.ins(f's_lshl_b32 {sr(sAb)}, {sr(sst)}, 15\ns_add_u32 {sr(sAb)}, {sr(sAb)}, {WS_Y}')
    if NP and k.look: acond(True)
    p.ins(f's_lshl_b32 {sr(s0)}, {sr(sm)}, 12\ns_add_u32 {sr(sfl+2)}, {sr(s0)}, {FL_Y}')
    p.ins(f'v_and_b32 v{vt+2}, 31, v{vl}\nv_lshlrev_b32 v{vt+2}, 7, v{vt+2}')
    p.ins(f'v_lshrrev_b32 v{T+1}, 2, v{vl}\nv_bfe_u32 v{T}, v{T+1}, 1, 2\nv_lshlrev_b32 v{T}, 5, v{T}\nv_lshl_add_u32 v{T}, v{T+1}, 7, v{T}\nv_and_b32 v{T+1}, 3, v{vl}\nv_lshl_add_u32 v{wa}, v{T+1}, 3, v{T}')
    for t in range(1, 4): p.ins(f'v_xor_b32 v{wa+t}, {t<<5}, v{wa}')
    for t in range(3): p.ins(f'v_add_u32 v{wa+4+t}, 65536, v{wa+t}')
    p.ins(f's_lshl_b32 {sr(sfl)}, s2, 7\ns_lshl_b32 {sr(s0)}, {sr(sw)}, 28\ns_add_u32 {sr(sfl)}, {sr(sfl)}, {sr(s0)}\ns_add_u32 {sr(sfl)}, {sr(sfl)}, {FL_U}\ns_lshl_b32 {sr(s0)}, s2, 2\ns_add_u32 {sr(s0)}, {sr(s0)}, {sr(sw)}\ns_lshl_b32 {sr(s0)}, {sr(s0)}, 7\ns_add_u32 {sr(sfl+1)}, {sr(s0)}, {FL_X}')
    p.ins(f's_sub_u32 {sr(sO+2)}, {sr(sfl+2)}, {FL_Y - FL_E}')
    ie, ce = poll_ops(k, sWS, vt, sO + 2, 'ple', sfl + 3, va=vt + 2)
    if NP and cfg.get('epos', 0) == 0: ie()
    vtb = k.vtb
    p.wait(vm=[('tb', q) for q in range(NPART)])
    for i in range(2): p.ins(f'v_add_f32 v{vtb+i}, v{vtb+i}, v{vtb+2+i}\nv_add_f32 v{vtb+4+i}, v{vtb+4+i}, v{vtb+6+i}\nv_add_f32 v{vtb+i}, v{vtb+i}, v{vtb+4+i}')
    p.ins(f'v_lshrrev_b32 v{T}, 5, v{vl}\nv_xor_b32 v{T+1}, 1, v{T}\nv_cvt_f32_u32 v{T+1}, v{T+1}')
    for rep in range(2):
        p.ins(f'v_cvt_pk_bf16_f32 v{vtb+2}, v{vtb}, v{vtb+1}\nv_lshlrev_b32 v{vtb}, 16, v{vtb+2}\nv_and_b32 v{vtb+1}, 0xffff0000, v{vtb+2}')
        if rep == 0: p.ins(f'v_add_f32 v{vtb}, v{vtb}, v{T+1}\nv_add_f32 v{vtb+1}, v{vtb+1}, v{T+1}')
    p.ins(f'v_lshrrev_b32 v{vtb+3}, 16, v{vtb+2}\nv_and_b32 v{vtb+2}, 0xffff, v{vtb+2}\ns_add_u32 {sr(s0)}, {sr(sWL)}, {LB}\nv_lshlrev_b32 v{T}, 8, v{T}\nv_lshl_add_u32 v{T}, v{vl}, 3, v{T}\nv_add_u32 v{T}, {sr(s0)}, v{T}')
    p.lg(f'ds_write_b64 v{T}, {vr(vtb+2,2)}', None, w=(LB, LB + 4096), priv=True)
    p.lg(f'ds_write_b64 v{T}, {vr(vtb,2)} offset:256', None, w=(LB, LB + 4096), priv=True)
    p.ins(f's_bitcmp1_b32 s2, 3\ns_cselect_b64 {sr(sJ,2)}, {sr(sWu,2)}, {sr(sWg,2)}\ns_mov_b32 {sr(sJ+2)}, {DM * FF * 2}')
    for r_ in range(4): smov64(p, sMk + 2 * r_, lanemask(lambda l: ((l & 7) >> 1) == r_))
    if NP:
        if k.look:
            p.ins(f's_lshl_b32 {sr(sO+1)}, {sr(sO)}, 2\ns_add_u32 {sr(sO+1)}, {sr(sO+1)}, {sr(sw)}')
            k.common['sw'] = sO + 1
            ie, ce = poll_ops(k, sWS, vt, sfl + 2, 'ple', sfl + 3, va=vt + 2, cmp=f'v_subrev_u32 v{vt}, {sr(k.tok)}, v{vt}\nv_cmp_lt_u32 vcc, 1, v{vt}')
            k.common['sw'] = sw
        if cfg.get('epos', 0) == 1: ie()
        p.wait(vm=[('D', (3, 0, g), i) for g in range(2) for i in range(4)])
        k.ypub(); p.T('y_pub')
        if cfg.get('epos', 0) == 2: ie()
        if cfg.get('rpos', 0) == 0: rest()
        p.T('e_a'); ce(); p.T('e_b'); acond(False) if k.look else aearly()
        if cfg.get('rpos', 0) == 1: rest()
        st.pre.setdefault(cfg.get('from2', 1560), []).append(';@FROM')
    else:
        iy()
        p.wait(vm=[('D', (3, 0, g), i) for g in range(2) for i in range(4)])
        p.T('y_a'); cy(); p.T('y_b'); aearly()
    p.ins(f'v_bfe_u32 v{T}, v{vl}, 3, 1\nv_lshlrev_b32 v{T}, 9, v{T}\nv_and_b32 v{T+1}, 1, v{vl}\nv_lshl_add_u32 v{T}, v{T+1}, 8, v{T}\nv_lshrrev_b32 v{T+1}, 4, v{vl}\nv_lshl_add_u32 v{T}, v{T+1}, 6, v{T}\nv_add_u32 v{vt+1}, {sr(s0)}, v{T}')
    p.ins(f's_bfe_u32 {sr(s0)}, s2, 0x20004\ns_lshl_b32 {sr(s0)}, {sr(s0)}, 8\nv_and_b32 v{T}, 15, v{vl}\nv_lshl_add_u32 v{T}, v{T}, 4, {sr(s0)}\nv_cmp_gt_u32 vcc, 896, v{T}\nv_mov_b32 v{T+2}, {OOB}\nv_mul_u32_u24 v{T+1}, {16 * 7168}, v{T+1}\nv_cndmask_b32 v{T}, v{T+2}, v{T}, vcc')
    p.ins(f's_lshr_b32 {sr(s0)}, s2, 6\ns_lshl_b32 {sr(s0)}, {sr(s0)}, 2\ns_add_u32 {sr(s0)}, {sr(s0)}, {sr(sw)}\ns_mul_i32 {sr(s0)}, {sr(s0)}, {64 * 7168}\ns_mul_i32 {sr(s1)}, {sr(sx)}, 896\ns_add_u32 {sr(s0)}, {sr(s0)}, {sr(s1)}\nv_add3_u32 v{vt}, v{T}, v{T+1}, {sr(s0)}')
    W.emit_early()
    for i, nm in tuple(cfg.get('marks', ())) + ((1, 'g3_m1'), (4 * 112, 'g3_s4'), (z3, 'g3_fin'), (pl1 + PD, 'p1a'), (pl1 + PD + 1, 'p1b'), (z4, 'g4_m1'), (pl2 + PD, 'p2a'), (pl2 + PD + 1, 'p2b'), (z4 + NE * 64, 'g4_L'), (zf, 'g4_fin')):
        st.pre.setdefault(i, []).insert(0, f';@T {nm}')
    st.emit()
    p.T('g4_end')
    def own():
        for i in (0, 2, 1, 3):
            m, q = divmod(i, 2)
            for t in range(2):
                for e in range(4): p.ins(f'v_fmac_f32 v{vf+8*i+4*t+e}, v{vg+8*q+4*t+e}, v{acc4(4+2*q+t,m)+e}')
    tail += [(N - 1, 0, own)]
    for _, _, o in sorted(tail, key=lambda x: x[:2]): p.ins(o) if isinstance(o, str) else o()
    for i in range(4):
        p.ins(f's_waitcnt vmcnt({3 - i})')
        for o in addp(2, i): p.ins(o)
    for i in range(4):
        m, q = divmod(i, 2); f_ = vf + 8 * i; x_ = vx1 + 4 * i
        for d in range(4): p.ins(f'v_cvt_pk_bf16_f32 v{x_+d}, v{f_+2*d}, v{f_+2*d+1}')
        p.ins(f'v_permlane16_swap_b32 v{x_}, v{x_+2}\nv_permlane16_swap_b32 v{x_+1}, v{x_+3}')
        p.lg(f'ds_write_b128 v{vxa+q}, {vr(x_,4)} offset:{2048*m}', None, w=(XL, XL + 16384), priv=True)
        if q:
            for h in range(2): p.lg(f'ds_read_b128 {vr(vf+16*m+4*h,4)}, v{vxa+2} offset:{2048*m+1024*h}', ('o', 2 * m + h), r=(XL, XL + 16384), priv=True)
    for i in range(4):
        if i: p.ins(f's_add_u32 {sr(sro)}, {sr(sro)}, 16384')
        p.wait(lg=[('o', i)])
        p.vm(f'buffer_store_dwordx4 {vr(vf+16*(i>>1)+4*(i&1),4)}, v{vro}, {sr(sOut,4)}, {sr(sro)} offen {cfg.get("ofl", "sc1")}')
    k.st = st
    k.end()
    return k
```

```python
import re
from asmlib import *
MFMA = 'v_mfma_f32_16x16x32_bf16'
A0 = AOFF

def regs(tok):
    tok = tok.strip().lstrip('-')
    m = re.fullmatch(r'([vsa])(\d+)', tok)
    if m: return {(m.group(1), int(m.group(2)))}
    m = re.fullmatch(r'([vsa])\[(\d+):(\d+)\]', tok)
    if m: return {(m.group(1), i) for i in range(int(m.group(2)), int(m.group(3)) + 1)}
    if tok == 'vcc': return {('s', 106), ('s', 107)}
    if tok == 'vcc_lo': return {('s', 106)}
    if tok == 'vcc_hi': return {('s', 107)}
    if tok == 'm0': return {('m', 0)}
    if tok in ('exec', 'exec_lo', 'exec_hi'): return {('e', 0)}
    return set()
TRANS = ('v_exp_f32', 'v_rcp_f32', 'v_sqrt_f32', 'v_rsq_f32', 'v_log_f32')
_pc = {}
def parse(line):
    if line in _pc: return _pc[line]
    I = _parse(line); _pc[line] = I
    return I
def _parse(line):
    line = line.split(';')[0].strip()
    if not line or line.endswith(':') or line.startswith('.'): return None
    op, _, rest = line.partition(' ')
    ops = [o.strip() for o in re.split(r',(?![^\[]*\])', rest)] if rest else []
    if ops:
        last = ops[-1].split(' ')
        ops[-1] = last[0]; mods = last[1:]
    else: mods = []
    I = dict(op=op, txt=line, w=set(), r=set(), kind='other', mods=mods)
    R = [regs(o) for o in ops]
    U = lambda x: set().union(*x) if x else set()
    if op.startswith('v_mfma'):
        I.update(kind='mfma', w=R[0], a=R[1] | R[2], c=R[3], r=R[1] | R[2] | R[3])
    elif op.startswith('v_'):
        I['kind'] = 'valu'
        if op.startswith('v_cmp'): I['w'] = R[0]; I['r'] = U(R[1:])
        elif op.startswith('v_permlane'): I['w'] = R[0] | R[1]; I['r'] = R[0] | R[1]
        elif op in ('v_add_co_u32', 'v_addc_co_u32'): I['w'] = R[0] | R[1]; I['r'] = U(R[2:])
        else:
            I['w'] = R[0]; I['r'] = U(R[1:])
            if op.startswith('v_fmac') or op.startswith('v_writelane') or op.startswith('v_dot2c') or 'dpp' in op: I['r'] |= R[0]
    elif op.startswith('buffer_') or op.startswith('global_'):
        I['kind'] = 'vmem'
        lds = 'lds' in mods
        I['lds'] = lds
        if 'store' in op or 'atomic' in op:
            I['r'] = U(R); I['data'] = R[0] if op.startswith('buffer_') else R[1]
            I['wide'] = 'x4' in op or 'x3' in op
        elif lds: I['r'] = U(R) | {('m', 0)}
        else: I['w'] = R[0]; I['r'] = U(R[1:])
    elif op.startswith('ds_'):
        I['kind'] = 'ds'
        if 'read' in op: I['w'] = R[0]; I['r'] = R[1]
        else: I['r'] = U(R)
    elif op.startswith('s_'):
        I['kind'] = 'salu'
        if op.startswith(('s_cmp', 's_bitcmp', 's_cbranch', 's_branch', 's_waitcnt', 's_barrier', 's_nop', 's_setprio', 's_endpgm', 's_sleep')):
            I['r'] = U(R)
            if op in ('s_cbranch_vccz', 's_cbranch_vccnz'): I['r'] = regs('vcc')
        else:
            I['w'] = R[0] if R else set(); I['r'] = U(R[1:])
    I['ws'] = int(ops[0]) + 1 if op == 's_nop' else 1
    return I

def need(p, c):
    n = 0
    vw = {x for x in p['w'] if x[0] in 'va'}; sw = {x for x in p['w'] if x[0] == 's'}
    if p['kind'] == 'valu':
        if c['kind'] == 'mfma' and vw & c['r']: n = 2
        if c['kind'] == 'valu' and (c['op'].startswith('v_permlane') or 'dpp' in c['op']) and vw & c['r']: n = 2
        if c['op'].startswith(('v_readfirstlane', 'v_readlane')) and vw & c['r']: n = max(n, 1)
        if p['op'] in TRANS and c['kind'] in ('valu',) and c['op'] not in TRANS and vw & c['r']: n = max(n, 1)
        if p['op'].startswith('v_dot2') and c['kind'] in ('valu', 'vmem', 'ds', 'mfma') and c['op'] != p['op'] and vw & (c['r'] | c['w']): n = max(n, 3)
        if sw & c['r']:
            if c['kind'] == 'valu': n = max(n, 4 if c['op'].startswith(('v_readlane', 'v_writelane')) else 2)
            if c['kind'] == 'vmem': n = 5
            if c['kind'] == 'salu': n = max(n, 5 if c['op'].startswith('s_cbranch_vcc') else 1)
    if p['kind'] == 'mfma':
        if c['kind'] == 'mfma':
            if p['w'] & c['a']: n = 8
            elif p['w'] & c['c'] and p['w'] != c['c']: n = 6
            elif p['w'] & c['w'] and p['w'] != c['c']: n = 6
        elif c['kind'] in ('valu', 'vmem', 'ds') and p['w'] & (c['r'] | c['w']): n = 8
        if c['kind'] == 'valu' and p['c'] & c['w']: n = max(n, 3)
    if p['kind'] == 'salu' and ('m', 0) in p['w'] and c['kind'] == 'vmem' and c.get('lds'): n = 1
    if p['kind'] == 'vmem' and p.get('wide') and p['data'] & c['w']: n = 2 if c['kind'] in ('valu', 'mfma') else 1
    return n

def fix_hazards(lines, report=None):
    out = []
    hist = [[]]
    pend = {}
    nins = 0
    for l in lines:
        s = l.strip()
        if s.endswith(':') and not s.startswith(';'):
            hist = hist + pend.pop(s[:-1], [])
            out.append(l); continue
        c = parse(l)
        if c is None:
            out.append(l); continue
        short = 0
        for h in hist:
            d = 0
            for p in reversed(h):
                short = max(short, need(p, c) - d)
                d += p['ws']
                if d >= 8: break
        if short > 0:
            nop = f'  s_nop {short - 1}'
            out.append(nop); nins += short
            if report is not None: report.append((short, s))
            for h in hist: h.append(parse(nop))
        out.append(l)
        for h in hist: h.append(c)
        hist = [h[-9:] for h in hist]
        if len(hist) > 1:
            k = {}
            for h in hist: k[tuple(x['txt'] for x in h)] = h
            hist = list(k.values())
        if c['op'].startswith('s_cbranch') or c['op'] == 's_branch':
            t = s.split()[-1]
            pend.setdefault(t, []).extend([list(h) for h in hist])
            if c['op'] == 's_branch': hist = [[]]
    return out, nins

class Prog2(Prog):
    def vm(self, text, tag=None, w=None, priv=False, grp=None):
        self.items.append(('vm', text, tag, None, w, priv, grp))
    def lg(self, text, tag=None, r=None, w=None, priv=False):
        self.items.append(('lg', text, tag, r, w, priv))
    def bar(self):
        self.ins('s_barrier')
    def T(self, name):
        self.ins(f';@T {name}')
    chains = None
    def check_chains(self):
        errs = []; own = {}; last = {}
        for i, x in enumerate(self.items):
            if x[0] not in ('ins', 'vm', 'lg'): continue
            I = parse(x[1])
            if I is None: continue
            c = (self.chains or {}).get(i)
            R = set(I['r'])
            if I['op'].startswith(('s_cselect', 's_cbranch_scc', 's_addc')): R.add(('c', 0))
            Wr = set(I['w'])
            if I['kind'] == 'salu' and not I['op'].startswith(('s_mov', 's_mul', 's_cselect', 's_cbranch', 's_branch', 's_wait', 's_barrier', 's_nop', 's_load', 's_getpc', 's_bfm')): Wr.add(('c', 0))
            if c is not None:
                for r in R:
                    if (c, r) in own and last[r] != c: errs.append(f'chain {c}: {r} of [{x[1]}] was overwritten by chain {last[r]}')
            if x[1].endswith('; M') and I['c']: continue
            for r in Wr:
                last[r] = c
                if c is not None: own[(c, r)] = i
        return errs
    def events(self):
        ev = []; q = {'vm': [], 'lg': []}; ep = 0
        pendreg = {}; lastw = {}
        errs = []
        extra_q = []; nret = [0]
        def retire(k, n, i):
            if k == 'vm':
                tot = len(q[k]) + nret[0]
                for pos, o in [y for y in extra_q if tot - y[0] >= n]:
                    extra_q.remove((pos, o))
                    for r in o['w']:
                        if pendreg.get(r) is o: del pendreg[r]
                nret[0] += max(0, len(q[k]) - n)
            while len(q[k]) > n:
                o = q[k].pop(0)
                for e in o['ev']: e[5] = ep; e[7] = i
                for r in o['w']:
                    if pendreg.get(r) is o: del pendreg[r]
        for i, x in enumerate(self.items):
            k = x[0]
            if k == 'wait':
                if len(x) > 5: continue
                if x[3] is not None: retire('vm', min(x[3], 63), i)
                if x[4] is not None: retire('lg', min(x[4], 15), i)
                continue
            if k == 'def':
                for r in parse(x[1])['w']:
                    lastw[r] = x[2]
                    o = dict(ev=[], w={r}, t=x[1]); pendreg[r] = o; extra_q.append((len(q['vm']) + nret[0], o))
                continue
            if k not in ('ins', 'vm', 'lg'): continue
            I = parse(x[1])
            if I is None or (k == 'ins' and '; cond' in x[1]): continue
            if I['op'] == 's_waitcnt':
                if 'cond' in x[1]: continue
                m = re.search(r'vmcnt\((\d+)\)', x[1]);  m and retire('vm', int(m.group(1)), i)
                m = re.search(r'lgkmcnt\((\d+)\)', x[1]); m and retire('lg', int(m.group(1)), i)
                continue
            if I['op'] == 's_barrier': ep += 1; continue
            for r in (I['r'] | I['w']):
                if r in pendreg and not (k in ('vm', 'lg') and r in I['w'] and r not in I['r'] and 'dummy' in str(x[2])):
                    errs.append(f'register {r} still pending from [{pendreg[r]["t"]}] at [{x[1]}]')
            if x[1].endswith('; M'):
                for r in I['a']:
                    t = lastw.get(r)
                    if not (isinstance(t, tuple) and t[0] in ('W', 'w', 'wo', 'A')): errs.append(f'operand {r} of [{x[1]}] last written by {t}')
                for r in I['c']:
                    if lastw.get(r) not in ('M', 'v_fmac_f32'): errs.append(f'accumulator {r} of [{x[1]}] last written by {lastw.get(r)}')
            for r in I['w']: lastw[r] = x[2] if k in ('vm', 'lg') else 'M' if x[1].endswith('; M') else I['op']
            if k in ('vm', 'lg'):
                o = dict(ev=[], w=I['w'], t=x[1])
                if len(x) > 3:
                    for kind, rg in (('r', x[3]), ('w', x[4])):
                        if rg:
                            e = [kind, rg[0], rg[1], x[5], ep, None, i, None, x[1], k, x[6] if len(x) > 6 else None]; o['ev'].append(e); ev.append(e)
                for r in I['w']: pendreg[r] = o
                q[k].append(o)
        return ev, errs, ep

def check_lds(evs):
    errs = []
    for pa, A in enumerate(evs):
        for pb, B in enumerate(evs):
            for b in B:
                for a in A:
                    if a is b or (a[0] == 'r' and b[0] == 'r'): continue
                    if a[2] <= b[1] or b[2] <= a[1]: continue
                    if a[3] and b[3]:
                        if pa == pb and a[6] < b[6] and (a[9] == 'vm' or b[9] == 'vm') and not (a[7] is not None and a[7] < b[6]):
                            errs.append(f'private LDS order [{a[8]}] -> [{b[8]}]')
                        continue
                    ok = (a[5] is not None and a[5] < b[4]) or (b[5] is not None and b[5] < a[4])
                    if not ok and a[0] == 'w' and b[0] == 'w' and a[10] is not None and a[10] == b[10]: ok = True
                    if not ok and (pa, a[6]) < (pb, b[6]):
                        errs.append(f'LDS race {a[0]}[{a[1]},{a[2]}) ep {a[4]}..{a[5]} [{a[8]}]  vs {b[0]}[{b[1]},{b[2]}) ep {b[4]}..{b[5]} [{b[8]}]')
    return errs

def kind(t):
    o = t.strip().split(' ')[0]
    if not o or o.startswith(';') or o.endswith(':'): return ''
    if o.startswith('v_mfma'): return 'M'
    if o.startswith('v_'): return 't' if o in TRANS or o.startswith(('v_permlane', 'v_pk_', 'v_dot')) else 'v'
    if o.startswith('ds_read'): return 'd'
    if o.startswith('ds_write'): return 'W' if '128' in o else 'w' if '64' in o else 'd'
    if o.startswith(('buffer_store', 'global_store')): return 'W' if 'x4' in o else 'w' if 'x2' in o else 'd'
    if o.startswith(('buffer_', 'global_')): return 'm'
    if o.startswith(('s_cbranch', 's_branch')): return 'b'
    if o == 's_nop': return 's' * (int(t.split()[1]) // 4 + 1)
    return 's'
MX = [0]
def slot_time(ks):
    t = 4; tot = 0; prev = 'M'
    for c in ks:
        if MX[0] and prev == 'm' and c != 'M': t += 4
        if c == 'M': tot += max(16, t); t = 4
        elif c in 'vt': t = max(t, 8) + (4 if c == 'v' else 8)
        else: t += {'d': 8, 'W': 24, 'w': 16, 'b': 13}.get(c, 4) + (8 if c == 'm' and prev in 'vt' else 0)
        prev = c
    return t, tot + max(16, t)
def op(f, cost=1):
    f.kinds = 's' * cost if isinstance(cost, int) else cost
    return f

class Stream:
    def __init__(self, p):
        self.p = p
        self.m = []
        self.pre = {}
        self.post = {}
        self.end = {}
        self.touched = set()
    def n(self): return len(self.m)
    def kinds(self, o):
        if isinstance(o, str): return ''.join(kind(t) for t in o.split('\n'))
        if not hasattr(o, 'kinds'):
            p = self.p; a = len(p.items); o(); o.kinds = ''.join('s' if x[0] == 'wait' else kind(x[1]) for x in p.items[a:] if x[0] in ('ins', 'vm', 'lg', 'wait')); del p.items[a:]
        return o.kinds
    def mfma(self, c, a, b, zero=None):
        if zero is None:
            zero = c not in self.touched
        self.touched.add(c)
        self.m.append(f'{MFMA} {vr(c,4)}, {vr(a,4)}, {vr(b,4)}, {0 if zero else vr(c,4)} ; M')
        return len(self.m) - 1
    def before(self, i, o):
        if i == 0: self.pre.setdefault(0, []).append(o)
        else: self.post.setdefault(i - 1, []).insert(0, (o, self.kinds(o), None))
    def where(self, i, ks, c):
        L = self.post.get(i, []); j = len(L)
        if ks and ks[0] not in 'vtM':
            while j and L[j - 1][2] is not None and L[j - 1][2] != c and L[j - 1][1] and set(L[j - 1][1]) <= set('vt'): j -= 1
        return j
    def time(self, i, ks='', c=None):
        L = [x[1] for x in self.post.get(i, [])]
        L.insert(self.where(i, ks, c), ks)
        return slot_time(''.join(L) + ''.join(self.kinds(o) for o in self.end.get(i, [])))
    def at(self, i, o, c=None):
        ks = self.kinds(o)
        self.post.setdefault(i, []).insert(self.where(i, ks, c) if c is not None else len(self.post.get(i, [])), (o, ks, c))
    def last(self, i, o):
        self.end.setdefault(i, []).append(o)
    nchain = [0]
    def fill(self, ops, start, cap=2, stop=None, dry=False):
        i = start; last = len(self.m) - 1
        self.nchain[0] += 1; c = self.nchain[0]; placed = []
        bud = lambda j: 8 + 4 * (int(cap * (j + 1)) - int(cap * j))
        for o in ops:
            if isinstance(o, tuple):
                if o[0] == 'gap': i += o[1]
                elif o[0] == 'from': i = max(i, o[1])
                continue
            ks = self.kinds(o); alone = slot_time(ks)[0]; i0 = i
            while i < last:
                t = self.time(i, ks, c)[0]
                if 'M' in ks or t <= bud(i): break
                if alone > 16 and (t <= alone + 4 or i >= i0 + 3): break
                if i >= i0 + 5 and t <= bud(i) + 4 * (1 + (i - i0 - 5) // 3): break
                i += 1
            i = min(i, last)
            self.at(i, o, c); placed.append(i)
        if dry:
            for j in set(placed): self.post[j] = [x for x in self.post[j] if x[2] != c]
        return i
    def fit(self, ops, start, stop):
        cap = 2.0
        while self.fill(ops, start, cap, dry=True) > stop:
            cap += 0.125; assert cap < 30
        return self.fill(ops, start, cap)
    def rw(self, o):
        if isinstance(o, str): T = o.split('\n')
        else:
            p = self.p; a = len(p.items); o(); it = p.items[a:]; del p.items[a:]
            if any(x[0] == 'wait' for x in it): return None
            T = [x[1] for x in it]
        R, W_ = set(), set()
        for t in T:
            I = parse(t)
            if I: R |= I['r']; W_ |= I['w'] | ({('c', 0)} if I['kind'] == 'salu' else set())
        return R, W_
    def pack(self, ops, start, cap, dry=False, look=14):
        ops = [o for o in ops if not isinstance(o, tuple)]
        info = [(o, self.kinds(o), self.rw(o)) for o in ops]
        self.nchain[0] += 1; c = self.nchain[0]; placed = []
        bud = lambda j: 8 + 4 * (int(cap * (j + 1)) - int(cap * j))
        def free(n):
            a = info[n][2]
            for m in range(n):
                b = info[m][2]
                if a is None or b is None or a[0] & b[1] or a[1] & (b[0] | b[1]): return False
            return True
        i = start; lastw = None; head = start
        while info:
            cand = [n for n in range(min(look, len(info))) if free(n)]
            best = None
            for n in cand:
                ks = info[n][1]; t = self.time(i, ks, c)[0]
                big = slot_time(ks)[0] > 16
                if lastw and info[n][2] and lastw & info[n][2][0]: continue
                if t <= bud(i) or (big and (t <= slot_time(ks)[0] + 4 or i >= head + 3)) or (n == 0 and i >= head + 6):
                    key = (0 if big else 1 if ks == 't' else 2, n)
                    if best is None or key < best[0]: best = (key, n)
            if best is None: i += 1; lastw = None; continue
            o, ks, rw = info.pop(best[1])
            if best[1] == 0: head = i
            self.at(i, o, c); placed.append(i); lastw = rw[1] if ks == 't' else None
        if dry:
            for j in set(placed): self.post[j] = [x for x in self.post[j] if x[2] != c]
        return i
    def fitp(self, ops, start, stop):
        cap = 2.0
        while self.pack(ops, start, cap, dry=True) > stop:
            cap += 0.0625; assert cap < 30
        return self.pack(ops, start, cap)
    def vmem(self, ops, gap, start=0):
        pend = sorted(ops, key=lambda o: (o['dl'], o['e']))
        t = float(start); lastu = None; lastm = -1
        while pend:
            i = int(t + 0.999)
            av = [o for o in pend if o['e'] <= i]
            if not av:
                t = min(o['e'] for o in pend); continue
            if i + 2 >= len(self.m):
                assert all(o['dl'] >= len(self.m) for o in pend), 'vmem op after the end of the stream'
                return pend
            same = [x for x in av if x['id'] != 'x' and isinstance(x['id'][0], tuple) and x['id'][0] == lastu]
            o = same[0] if same else av[0]; pend.remove(o)
            if o['id'] != 'x': lastu = o['id'][0]
            self.nchain[0] += 1; c = self.nchain[0]
            j = max(i + 1, lastm)
            if gap(i) * o.get('wt', 1) >= 3 and j + 1 <= o['dl'] and self.time(j + 1)[0] < self.time(j)[0]: j += 1
            assert j <= o['dl'], ('vmem op misses its deadline', i, o)
            o['t'] = j
            if o.get('pre'):
                cand = [x for x in (j - 1, j - 2) if x >= max(lastm, o['e'], 0)] or [j]
                self.at(min(cand, key=lambda x: self.time(x, self.kinds(o['pre']))[0]), o['pre'], -c)
            self.at(j, o['main'], -c); lastm = j
            t = max(t, i - 0.999) + max(gap(i) * o.get('wt', 1), 1)
        return []
    def emit(self, a=0, b=None):
        p = self.p
        if p.chains is None: p.chains = {}
        def run(o, c=None):
            a_ = len(p.items)
            p.ins(o) if isinstance(o, str) else o()
            if c is not None:
                for j in range(a_, len(p.items)): p.chains[j] = c
        self.est = []; lastt = 0
        for i in range(a, len(self.m) if b is None else b):
            for o in self.pre.get(i, []):
                if isinstance(o, str) and o.startswith(';@T t'):
                    o += f'e{sum(self.est[lastt:])}'; lastt = i
                run(o)
            p.ins(self.m[i]); a_ = len(p.items)
            for o, _, c in self.post.get(i, []): run(o, c)
            for o in self.end.get(i, []): run(o)
            self.est.append(slot_time(''.join('s' if x[0] == 'wait' else kind(x[1]) for x in p.items[a_:] if x[0] in ('ins', 'vm', 'lg', 'wait') and 'cond' not in str(x[1])))[1])
```

```python
from n3 import *
def k_g12(cfg, nxt=None):
    k = K4(cfg.get('name', 'k3_qkv_kernel')); p, S = k.p, k.S; MX[0] = cfg.get('mx', 0)
    sX = k.srd('x', A_X, M * DM * 2); sWS = k.srd('ws', WS, WSZ); sWq = k.srd('wq', A_WQKV, DM * 3072 * 2)
    sWo = k.srd('wo', A_WO, DM * DM * 2); sWm = k.srd('wm', W_MOD, 1024 * 6144 * 2); sC = k.srd('c', IN_C, 2048)
    sWg = k.srd('wg', B_WG, DM * FF * 2); sWu = k.srd('wu', B_WU, DM * FF * 2); sWd = k.srd('wd', B_WD, FF * DM * 2); sOut = k.srd('out', OUT, M * DM * 2)
    sw = S.alloc('w'); sWL = S.alloc('wl'); sTok = k.tok = S.alloc('tok')
    k.common = dict(sWS=sWS, sWg=sWg, sWu=sWu, sWd=sWd, sOut=sOut, sw=sw, sWL=sWL, dead=(sWq, sWo))
    assert sWm == sWo + 4
    sy = S.alloc('y', 3)
    smark = S.next
    sm = S.alloc('mt'); sn = S.alloc('nt'); s0 = S.alloc('t0'); s1 = S.alloc('t1'); s2_ = S.alloc('t2'); sv = S.alloc('vm', 2); scnt = S.alloc('cnt')
    sR = S.alloc('R', 4); sR2 = S.alloc('R2', 4); srot = S.alloc('rot', 2); svw = S.alloc('vw'); sva = S.alloc('va'); sW4 = S.alloc('w4', 2); sHalo = S.alloc('halo'); soo = S.alloc('oo'); sfl = S.alloc('fl', 4); sjo = S.alloc('jo', 2); sy2 = sfl + 2
    mA = S.alloc('mask', 14, 2)
    vl16, trA, vdW, vdO, vdJ, vA, vp, vpb, vkw, vqw, vrd, vvt, vt, vM, ACC, RING, TMP = 1, 3, 9, 10, 11, 12, 13, 15, 17, 18, 19, 20, 21, 24, 28, 76, 116
    wreg = lambda b: A0 + 4 * b if b < 63 else 124 + 4 * (b - 63)
    vl = 0
    rtab = lambda T_, r_=srot: F(f's_and_b32 {sr(s0)}, {sr(sw)}, 1\ns_add_u32 {sr(s0)}, {sr(s0)}, {sr(r_)}') + [x for c in range(4) for x in F(f's_add_u32 {sr(T_+c)}, {sr(s0)}, {2*c}\ns_and_b32 {sr(T_+c)}, {sr(T_+c)}, 7\ns_lshl_b32 {sr(T_+c)}, {sr(T_+c)}, 12')]
    curw = [None, None]
    def dmaw(u, srd, vo_, lo_, c, ld, add, fl=''):
        out = []
        for jq in range(4):
            def pre(jq=jq):
                p.ins(f's_add_u32 m0, {sr(sWL)}, {lo_ + jq * 4096}')
                if jq == 0:
                    curw[0] = u
                    if c is None: p.ins(f's_mov_b32 {sr(svw)}, {add}')
                    else: p.ins(f's_add_u32 {sr(svw)}, {sr(srot + (u[0] == "wo"))}, {c}\ns_and_b32 {sr(svw)}, {sr(svw)}, 7\ns_mul_i32 {sr(svw)}, {sr(svw)}, {128 * ld}' + (f'\ns_add_u32 {sr(svw)}, {sr(svw)}, {add}' if add else ''))
                else: p.ins(f's_add_u32 {sr(svw)}, {sr(svw)}, {32 * ld}')
                assert curw[0] == u
            main = lambda jq=jq: p.vm(f'buffer_load_dwordx4 v{vo_}, {sr(srd,4)}, {sr(svw)} offen {fl} lds'.replace('  ', ' '), ('D', u, jq), w=(lo_ + jq * 4096, lo_ + jq * 4096 + 4096))
            out.append((op(pre, 2 if jq else 4), main))
        return out
    lastm0 = [None]
    def dmaa(u, vo_, lo_, n, sbase, add, swl):
        out = []
        for i in range(n):
            def pre(i=i):
                m = f's_add_u32 m0, {sr(swl)}, {lo_}'
                prev = [x[1] for x in p.items if x[0] == 'ins' and ' m0,' in x[1]]
                if prev[-1] != m: p.ins(m)
                if i == 0: curw[1] = u; p.ins(f's_add_u32 {sr(sva)}, {sr(sbase)}, {add}')
                assert curw[1] == u
            main = lambda i=i: p.vm(f'buffer_load_dwordx4 v{vo_}, {sr(sWS,4)}, {sr(sva)} offen offset:{1024 * i} sc1 lds', ('D', u, i), w=(lo_, lo_ + 4096 * n), grp=u)
            out.append((op(pre, 0 if i else 2), main))
        return out
    DBL = [x for c in range(4) for x in ((('q', 2 * c), ('q', 2 * c + 1)), (('k', 2 * c), ('v', 2 * c)), (('k', 2 * c + 1), ('v', 2 * c + 1)))]
    nf = cfg.get('nf', 6)
    LA1, LA2 = cfg.get('LA1', 20), cfg.get('LA2', 16)
    acc = lambda ps, t, e: ACC + 24 * (ps % 2) + (t * 2 + e) * 4
    il = cfg.get('il', 0)
    hx = cfg.get('hx', 0)
    GS = 8 if hx else 12; i2 = cfg.get('i2', 0)
    qs = lambda i: 3 if hx and i == 7 else (i + 1) % 3
    acch = lambda t: TMP + 4 * (t - 1) if il else ACC + 24 + (t * 2) * 4
    acc2 = lambda j, t: 128 + 8 * (j % 2) + 4 * t
    jp = cfg.get('jpos', 545 if il else 358); JS = cfg.get('JS', 10)
    jw, jb, ja = TMP, None, None
    def plan(al):
        st = Stream(p); W = WS_(st, [RING + 4 * i for i in range(10 if il else 12)])
        lo = lambda u: al.get(u, 1 if u[0] == 'v' else 0) * 16384
        def U(u, dm, **kw): W.unit(u, lo(u), lo(u) + 16384, dm, **kw)
        for c in range(8):
            for si, sg in enumerate('qkv'):
                u = (sg, c); U(u, dmaw(u, sWq, vdW, lo(u), c, 6144, si * 2048))
            u = ('wo', c); U(u, dmaw(u, sWo, vdO, lo(u), c, 2048, 0, cfg.get('wofl', '')))
        for ps in range(4):
            for c in range(4):
                u = ('a', ps, c); U(u, dmaa(u, vA, lo(u), 4, sR + c, (2 * ps + 1) * 32768, sW4))
                u = ('o', ps, c); U(u, dmaa(u, vdW, lo(u), 4, sR2 + c, 2 * ps * 32768, sW4))
        for hf in range(2):
            u = ('j', hf); U(u, dmaw(u, sWm, vdJ, lo(u), None, 12288, hf * 128 * 12288, MODNT[1]), wt=cfg.get('jwt', 1))
        HB = [QKV + 8192 * c for c in range(4)]
        for c in range(4):
            u = ('h', c); W.unit(u, HB[c], HB[c] + 8192, dmaa(u, vl16, HB[c], 2, sR + c, sr(sHalo), sW4 + 1))
        def trs(us, t_reg, dst, off, s, lr, tag, span=2048, lim=None):
            b = lo(us[0]) // 65536
            for h in range(2):
                while lim and 0 <= s < lim and 'd' in ''.join(x[1] for x in st.post.get(s, [])): s += 1
                o = lo(us[0]) % 65536 + off + 2048 * h
                W.rd(us, s, lr if lr else s + 6, f'ds_read_b64_tr_b16 {vr(dst + 2 * h,2)}, v{t_reg + 3 * b} offset:{o}', tag + (h,), (65536 * b + o, 65536 * b + o + span))
                s += 1
            return s
        def wreads(d, s):
            a_, b_ = DBL[d]
            L = [([u], 0, 4 * u[1] + jj, jj) for u in (a_, b_) for jj in range(4)] if a_[0] == 'q' else [([a_, b_], t, 4 * a_[1] + jj, jj) for jj in range(4) for t in (1, 2)]
            for i, (us, t, j, jj) in enumerate(L):
                s = trs(us, trA + t, wreg(3 * j + t), jj * 4096, s, None, ('w', j, t), 2048 if t == 0 else 2048 + 16384, 10**6)
                if s >= 0: W.units[us[0]]['force'] = ('w', j, t, 1)
        I = dict(P=[], done={})
        for d in range(nf): wreads(d, -10000 + 100 * d)
        def afr(u, off, areg=vl16, span=1024):
            b = lo(u) // 65536
            return (u, areg + b, 65536 * b, lo(u) % 65536 + off, span)
        need = {}; dead = {}
        def g1q(ps, c):
            for j0 in range(8 * c, 8 * c + 8, 2):
                need.setdefault(j0 // 4, st.n())
                if ps == 3: dead[j0 // 2] = st.n() + GS
                fr = [afr(('a', ps, j0 // 8), e * 8192 + ((j0 + jj) % 8) * 1024) for e in range(2) for jj in range(2)]
                fh = [(('h', j0 // 8), vp, 131072, HB[j0 // 8] - 131072 + ((j0 + jj) % 8) * 1024) for jj in range(2)]
                seq = [(0, 1), (0, 0), (1, 0), (2, 0)] if hx and ps == 3 else [(0, 0), (0, 1), (1, 1), (1, 0), (2, 0), (2, 1)]
                mk = lambda seq, f0: [(acc(ps, t, e) if e < 2 else acch(t), wreg(3 * (j0 + jj) + t), ('f', 2 * e + jj - f0)) for i, (t, e) in enumerate(seq) for jj in ((0, 1) if i % 2 == 0 else (1, 0))]
                lg = [('w', j0 + jj, t, 1) for jj in range(2) for t in range(3)] if ps == 0 else []
                if ps == 0 and il:
                    W.group(fh, mk([(1, 2), (2, 2)], 4), cfg.get('LAi', (14, 18))[0], kind='b', lg=lg)
                    W.group(fr, mk(seq, 0), cfg.get('LAi', (14, 18))[1], kind='b')
                elif ps == 0: W.group(fr + fh, mk(seq + [(2, 2), (1, 2)], 0), LA1, kind='b', lg=lg)
                else: W.group(fr, mk(seq, 0), cfg.get('LA3', 13) if hx and ps == 3 else LA1 if ps > 1 or not il or c > 1 else cfg.get('LAi', (14, 18))[1], kind='b')
        I['P'].append(0)
        for ps, c in ([(0, 0), (1, 0), (0, 1), (1, 1), (0, 2), (0, 3), (1, 2), (1, 3)] if il else [(ps, c) for ps in range(2) for c in range(4)]) + ([(ps, c) for h in (0, 2) for ps in (2, 3) for c in (h, h + 1)] if i2 else [(ps, c) for ps in (2, 3) for c in range(4)]):
            if c == 0:
                I[('st', ps)] = st.n()
                for r_ in range(ACC + 24 * (ps % 2), ACC + 24 * (ps % 2) + 24, 4): st.touched.discard(r_)
                if ps == 1 and not il:
                    for r_ in (RING + 40, RING + 44): W.until[r_] = st.n()
            g1q(ps, c)
            if c == 3 and ps < 3: I['P'].append(st.n())
        T0 = st.n(); I['T0'] = T0
        I['Q'] = []
        for ps in range(4):
            I['Q'].append(st.n())
            for t in range(2): st.touched.discard(acc2(ps, t))
            for j0 in range(0, 32, 2):
                fr = [afr(('o', ps, j0 // 8), ((j0 + jj) % 8) * 1024, vdO2, 1024 + 8192) for jj in range(2)]
                mf = [(acc2(ps, t), wreg(2 * (j0 + jj) + t), ('f', jj)) for t in range(2) for jj in ((0, 1) if t == 0 else (1, 0))]
                W.group(fr, mf, LA2, kind='b', wait=j0 % 4 == 0, lg=[('wo', j0 + jj, t, 1) for jj in range(2) for t in range(2)] if ps == 0 else [])
        for d, s in zip(range(nf, 12), cfg.get('wsl', {8: (0, 44, 92, 140), 6: (0, 44, 76, 108, 140, 188), 7: (0, 44, 92, 140, 182)}.get(nf))):
            assert s + 30 <= need[DBL[d][0][1]], (d, s, need)
            wreads(d, s)
        s = 0
        for c, (s_, dbl) in enumerate(cfg.get('wos', ((24, 0), (53, 0), (84, 1), (84, 1), (115, 1), (115, 1), (145, 1), (145, 1)))):
            s = max(s, s_ + I[('st', 3)])
            for i in range(8):
                b = 8 * c + i; j, t = divmod(b, 2)
                s = max(s, dead[b // 6])
                s = trs([('wo', c)], trA + 1 + t, wreg(b), (j % 4) * 4096, s, None, ('wo', j, t), lim=None if dbl else 10**6)
                if dbl and i % 2: s -= 1
            W.units[('wo', c)]['force'] = ('wo', 4 * c + 3, 1, 1)
        for ks in range(8):
            s = jp + JS * ks
            trs([('j', ks // 4)], trA, TMP + 4 * (ks % 2), (ks % 4) * 4096, s, s + 12, ('jw', ks))
        if nxt:
            for i, (_, ts, g) in enumerate(k.early3):
                u, lo_, hi_, dm = dm3(ts, g); W.unit(u, lo_, hi_, dm); W.units[u].update(fr=st.n() + 10 + i, lr=st.n() + 10 + i)
        W.finish_waits()
        return st, W, I
    k.perm = [[0, 1, 2, 3], [0, 1, 2, 3]]; k.early3 = [(3, ts, g) for ts in range(4) for g in (1, 0)][:cfg.get('ne3', 4)]
    su3, dm3 = g3_early(k, s0, s1, sv, ACC + 40 if il else TMP)
    vdO2 = 22
    st, W, I = plan({})
    P, T0 = I['P'], I['T0']
    ab = [P[1] + 24, P[2] + cfg.get('ab1', 21), P[3] + cfg.get('ab2', 21), T0 + cfg.get('ab3', 8)]
    bars = sorted(set(ab) | set(cfg.get('b0', ((43, 75, 107, 139, 171, 187) if nf == 6 else (43, 91, 139, 181)) + (235, 331, 397, 523, 571, 619))) | {T0 + x for x in cfg.get('b2', (-140, -109, -78, -48, -17, 47, 79, 111, 143, 175, 207))})
    k.bars = bars
    rel = lambda u: min([b_ for b_ in bars if b_ >= W.units[u]['lr']] + [10**6]) + W.units[u]['lr'] * 1e-4
    al = {}; ft = [0] * 8
    for d in range(nf):
        for i, u in enumerate(DBL[d]): al[u] = 2 * (d % 4) + i; ft[al[u]] = -1000 + d
    chk_it = nf - cfg.get('chk', 2)
    front = {}
    rest = sorted((u for u in W.units if u not in al and u[0] not in ('h', 3)), key=lambda u: W.units[u]['fr'])
    for d in range(nf - 3, nf):
        sl = 2 * ((d - 1) % 4)
        if d < chk_it: us = [u for u in rest if u in [x for D_ in DBL for x in D_]][:2]; assert tuple(us) in DBL
        elif d == chk_it: us = [u for u in rest if u[0] == 'a'][:2]
        else: ft[sl] = ft[sl + 1] = -1000; front[d] = []; continue
        for i, u in enumerate(us): al[u] = sl + i; ft[sl + i] = rel(u); rest.remove(u)
        front[d] = us if d < chk_it else [('h', 0), us[0], us[1]] if il else [us[0], ('h', 0), us[1], ('h', 1)]
    for u in rest:
        if u in al: continue
        if u[0] == 'k':
            sl = min((0, 1, 2, 4, 5, 6), key=lambda x: max(ft[x], ft[x + 1])); al[('v', u[1])] = sl + 1; ft[sl + 1] = rel(u)
        elif u[0] == 'o' and u[1] >= cfg.get('oforce', 9): sl = ((4, 0, 5, 1), (6, 2, 7, 3))[u[1] % 2][u[2]]
        else: sl = min(range(8), key=lambda x: ft[x])
        if ft[sl] == -1000 and u[0] in 'qka': front[nf - 1] += [u] + ([('v', u[1])] if u[0] == 'k' else [])
        al[u] = sl; ft[sl] = rel(u)
    k.perm = [sorted(range(4), key=lambda x: ft[4 * g + x]) for g in range(2)]
    st, W, I = plan(al)
    if cfg.get('dbg'):
        for u in sorted(W.units, key=lambda u: W.units[u]['fr']): print(u, al.get(u), W.units[u]['fr'], W.units[u]['lr'])
        print(front)
    k.al = al
    P, Q, T0, N = I['P'], I['Q'], I['T0'], st.n()
    def issue(us):
        for u in us:
            for pre, main in W.units[u]['dmas']: pre(); main()
    lt, vx, vf, vq, vjc = 28, 44, 60, 92, 23
    vo, vpo, vsw, vsr, vpw, vmr, vone, vm_, q0 = lt, lt + 1, lt + 2, lt + 3, lt + 4, lt + 5, lt + 6, lt + 7, lt + 8
    sx_, sfm, smp, sho, sms = sWg + 2, sWg + 3, sWu + 2, sWd + 2, sOut + 2
    late = [x for x in k.srds if x[0] in (sWg, sWu, sWd, sOut)]; k.srds = [x for x in k.srds if x not in late]
    if cfg.get('body', 1) == 0: p.ins(';@BODY\n;@FROM')
    p.ins(f'v_lshrrev_b32 v{vt}, 6, v0\nv_and_b32 v0, 63, v0\nv_readfirstlane_b32 {sr(sw)}, v{vt}\nv_lshrrev_b32 v{vt+1}, 3, v{vl}')
    p.ins(f'v_bfe_u32 v{vdJ}, v{vt+1}, 1, 2\nv_bfe_u32 v{vt+2}, v{vl}, 1, 2\nv_xor_b32 v{vdJ}, v{vdJ}, v{vt+2}\nv_lshlrev_b32 v{vdJ}, 5, v{vdJ}\nv_and_b32 v{vt+2}, 1, v{vl}\nv_lshl_add_u32 v{vdJ}, v{vt+2}, 4, v{vdJ}')
    p.ins(f's_lshl_b32 {sr(sWL)}, {sr(sw)}, 10\ns_lshl_b32 {sr(s0)}, {sr(sw)}, 3\nv_add_u32 v{vdO}, {sr(s0)}, v{vt+1}')
    p.ins(f's_and_b32 {sr(s0)}, s2, 7\ns_lshl_b32 {sr(s0)}, {sr(s0)}, 7\nv_add_u32 v{vm_}, {sr(s0)}, v{vdO}\nv_mul_u32_u24 v{vm_}, 12288, v{vm_}\ns_lshr_b32 {sr(s1)}, s2, 3\ns_lshl_b32 {sr(s1)}, {sr(s1)}, 7\nv_add3_u32 v{vm_}, v{vm_}, v{vdJ}, {sr(s1)}')
    p.ins(f's_and_b32 {sr(s1)}, {sr(sw)}, 1\ns_lshl_b32 {sr(s1)}, {sr(s1)}, 6\ns_add_u32 {sr(s0)}, {sr(s0)}, {sr(s1)}\nv_add_lshl_u32 v{vpb+1}, {sr(s0)}, v{vl}, 1')
    m16 = cfg.get('m16')
    if m16: p.ins(f's_and_b32 {sr(sn)}, s2, 7\ns_lshl_b32 {sr(sn)}, {sr(sn)}, 1\ns_bfe_u32 {sr(s0)}, s2, 0x10003\ns_add_u32 {sr(sn)}, {sr(sn)}, {sr(s0)}\ns_lshr_b32 {sr(sm)}, s2, 4')
    else: tilemap(k, 'g1', sm, sn, s0, s1)
    p.ins(f's_lshl_b32 {sr(s2_)}, {sr(sm)}, 4\ns_add_u32 {sr(s2_)}, {sr(s2_)}, {sr(sn)}')
    p.ins(f'v_and_b32 v{vt}, 7, v{vl}\nv_lshlrev_b32 v{vo}, 11, v{vt}\nv_lshl_add_u32 v{vo}, v{vt+1}, 4, v{vo}\nv_mov_b32 v{vpo}, {WS_TOK}')
    p.ins(f's_lshr_b32 {sr(sho)}, {sr(s2_)}, 1\ns_lshl_b32 {sr(sho)}, {sr(sho)}, 15\ns_and_b32 {sr(s1)}, {sr(s2_)}, 1\ns_lshl_b32 {sr(s1)}, {sr(s1)}, 2\ns_add_u32 {sr(s1)}, {sr(s1)}, {sr(sw)}\ns_lshl_b32 {sr(s0)}, {sr(s1)}, 8\ns_add_u32 {sr(sx_)}, {sr(sho)}, {sr(s0)}')
    k.finish_srds()
    p.T('f_k')
    p.vm(f'buffer_load_ushort v{vpb}, v{vpb+1}, {sr(sC,4)}, 0 offen', 'mc')
    for pre, main in dmaw('m', sWm, vm_, QKV, None, 12288, 0, MODNT[0]): pre(); main()
    p.vm(f'buffer_load_dword v{q0}, v{vpo}, {sr(sWS,4)}, 0 offen sc1', 'tok')
    p.ins(f's_and_b32 {sr(s0)}, s2, 3\ns_lshl_b32 {sr(s0)}, {sr(s0)}, 2\ns_add_u32 {sr(s0)}, {sr(s0)}, {sr(sw)}\ns_lshl_b32 {sr(s0)}, {sr(s0)}, 7\nv_lshlrev_b32 v{vjc}, 1, v{vl}')
    p.vm(f'buffer_load_ushort v{vjc}, v{vjc}, {sr(sC,4)}, {sr(s0)} offen', 'jc')
    def xload(oth):
        for rh in range(2):
            if oth and rh == 0: p.ins(f's_xor_b32 {sr(sx_)}, {sr(sx_)}, 1024')
            p.ins(f's_add_u32 {sr(s0)}, {sr(sx_)}, {16384 * rh}')
            for i in range(2):
                p.vm(f'buffer_load_dwordx4 {vr((vq if oth else vx)+8*rh+4*i,4)}, v{vo}, {sr(sX,4)}, {sr(s0)} offen offset:{128*i} {cfg.get("xfl", "nt")}', ('x', oth))
    xload(0)
    if cfg.get('body', 1) == 1: p.ins(';@BODY\n;@FROM')
    p.ins(f'v_lshlrev_b32 v{vl16}, 4, v{vl}\nv_add_u32 v{vl16+1}, 65536, v{vl16}\nv_add_u32 v{vp}, 131072, v{vl16}')
    p.ins(f's_lshl_b32 {sr(srot)}, {sr(sn)}, {2 if m16 else 1}\ns_add_u32 {sr(srot)}, {sr(srot)}, {sr(sm)}' if cfg.get('rot', 1) == 1 else f's_lshl_b32 {sr(srot)}, {sr(sn)}, 2\ns_add_u32 {sr(srot)}, {sr(srot)}, {sr(sm)}' if cfg.get('rot') == 2 else f's_mov_b32 {sr(srot)}, {sr(sm)}')
    p.ins(f'v_mul_u32_u24 v{vdW}, 6144, v{vdO}\ns_lshl_b32 {sr(s0)}, {sr(sn)}, 7\nv_add3_u32 v{vdW}, v{vdW}, v{vdJ}, {sr(s0)}')
    p.ins(f's_lshl_b32 {sr(s0)}, {sr(s1)}, 12\ns_add_u32 {sr(sho)}, {sr(sho)}, {sr(s0)}\ns_add_u32 {sr(sho+1)}, {sr(sho)}, {WS_XA}\ns_add_u32 {sr(sho)}, {sr(sho)}, {WS_H}\ns_lshl_b32 {sr(smp)}, {sr(s1)}, 9\ns_add_u32 {sr(smp)}, {sr(smp)}, {WS_MP8}\ns_lshl_b32 {sr(smp+1)}, {sr(s1)}, 11\ns_add_u32 {sr(smp+1)}, {sr(smp+1)}, {FL_M}')
    script = cfg.get('script', 'code x1 tqc addr gemv tqd addr2 su su2 stats stats2 sus warm mld D8 mod xa D8 hpub it+8 D8 it+8 it+8 hpoll it+8 it hchk it+8').split()
    early = sorted(W.early, key=lambda x: x[:2])
    avail = [x for d in range(4) for u in DBL[d] for x in W.units[u]['dmas']]; nit = [0]
    def D(n):
        for _ in range(n):
            if avail: pre, main = avail.pop(0); pre(); main()
    def it():
        d = nit[0]; nit[0] += 1
        p.wait(vm=[('D', u, i) for u in DBL[d] for i in range(4)], lg='all'); p.bar()
        if cfg.get('fm'): p.T(f'it{d}')
        for s, _, f in early:
            if -10000 + 100 * d <= s < -10000 + 100 * d + 100: f()
        if d >= 1 and d != chk_it: avail.extend(x for u in (front[d] if d in front else DBL[d + 3]) for x in W.units[u]['dmas'])
    def addr():
        t_ = q0 + 4
        p.ins(f'v_lshrrev_b32 v{t_+1}, 2, v{vl}\nv_bfe_u32 v{t_}, v{t_+1}, 1, 2\nv_lshlrev_b32 v{t_}, 5, v{t_}\nv_lshl_add_u32 v{t_}, v{t_+1}, 7, v{t_}\nv_and_b32 v{t_+1}, 3, v{vl}\nv_lshl_add_u32 v{t_}, v{t_+1}, 3, v{t_}')
        p.ins(f's_lshl_b32 {sr(s0)}, {sr(sw)}, 5\nv_xor_b32 v{trA}, {sr(s0)}, v{t_}\ns_and_b32 {sr(s0)}, {sr(s0)}, 64\ns_and_b32 {sr(s1)}, {sr(sw)}, 1\ns_lshl_b32 {sr(s1)}, {sr(s1)}, 14\ns_add_u32 {sr(s0)}, {sr(s0)}, {sr(s1)}\nv_xor_b32 v{trA+1}, {sr(s0)}, v{t_}\nv_xor_b32 v{trA+2}, 32, v{trA+1}')
        for t in range(3): p.ins(f'v_add_u32 v{trA+3+t}, 65536, v{trA+t}')
        p.ins(f'v_add_u32 v{vm_}, {QKV}, v{trA}')
        p.ins(f'v_lshrrev_b32 v{vsw}, 5, v{vl}\nv_lshlrev_b32 v{vsw}, 6, v{vsw}\nv_bfe_u32 v{t_}, v{vl}, 2, 2\nv_lshl_add_u32 v{vsw}, v{t_}, 4, v{vsw}\nv_bfe_u32 v{t_}, v{vl}, 4, 1\nv_lshl_add_u32 v{vsw}, v{t_}, 3, v{vsw}\nv_lshl_add_u32 v{vsw}, v{t_+1}, 1, v{vsw}\ns_lshl_b32 {sr(s0)}, {sr(sw)}, 7\ns_add_u32 {sr(s0)}, {sr(s0)}, {JT}\nv_add_u32 v{vsw}, {sr(s0)}, v{vsw}')
        p.ins(f'v_lshrrev_b32 v{vpw}, 4, v{vl}\nv_lshlrev_b32 v{vpw}, 4, v{vpw}\nv_add_u32 v{vsr}, {JT}, v{vpw}\nv_and_b32 v{t_}, 15, v{vl}\nv_lshl_add_u32 v{vpw}, v{t_}, 27, v{vpw}')
        p.ins(f's_and_b32 {sr(s0)}, s2, 7\ns_lshl_b32 {sr(s0)}, {sr(s0)}, 13\ns_lshr_b32 {sr(s1)}, s2, 3\ns_lshl_b32 {sr(s1)}, {sr(s1)}, 8\ns_add_u32 {sr(s0)}, {sr(s0)}, {sr(s1)}\ns_lshl_b32 {sr(s1)}, {sr(sw)}, 6\ns_add_u32 {sr(s0)}, {sr(s0)}, {sr(s1)}\ns_add_u32 {sr(sms)}, {sr(s0)}, {WS_MP8}')
        p.ins(f's_lshl_b32 {sr(s1)}, {sr(sw)}, 28\ns_lshl_b32 {sr(sfm)}, s2, 7\ns_add_u32 {sr(sfm)}, {sr(sfm)}, {sr(s1)}\ns_add_u32 {sr(sfm)}, {sr(sfm)}, {FL_M}')
        p.ins(f's_lshl_b32 {sr(sfl)}, {sr(s2_)}, 7\ns_add_u32 {sr(sfl)}, {sr(sfl)}, {sr(s1)}\ns_add_u32 {sr(sfl+1)}, {sr(sfl)}, {FL_H}\ns_add_u32 {sr(sfl)}, {sr(sfl)}, {FL_O}')
    tagm = 'mld' in script; stg = (sv, sv + 1, sva, s2_)
    def gemv():
        g_ = vf
        p.wait(vm=['mc'])
        p.ins(f'v_lshlrev_b32 v{vpb}, 16, v{vpb}\nv_mul_f32 v{vpb+1}, {f32(-LOG2E)}, v{vpb}\nv_exp_f32 v{vpb+1}, v{vpb+1}\nv_add_f32 v{vpb+1}, 1.0, v{vpb+1}\nv_rcp_f32 v{vpb+1}, v{vpb+1}\nv_mul_f32 v{vpb}, v{vpb}, v{vpb+1}\nv_cvt_pk_bf16_f32 v{vpb}, v{vpb}, v{vpb}')
        p.lg(f'ds_write_b16 v{vsw}, v{vpb}', None, w=(JT, JT + 512))
        p.wait(vm=[('D', 'm', i) for i in range(4)], lg='all'); p.bar(); p.T('f_m')
        for ks in range(4):
            for h in range(2): p.lg(f'ds_read_b64_tr_b16 {vr(g_+4*ks+2*h,2)}, v{vm_} offset:{4096*ks+2048*h}', None, r=(QKV, QKV + 16384))
            p.lg(f'ds_read_b128 {vr(g_+16+4*ks,4)}, v{vsr} offset:{64*ks}', ('mr', ks), r=(JT, JT + 512))
        p.wait(vm=['tok']); p.ins(f'v_readfirstlane_b32 {sr(sTok)}, v{q0}\ns_add_u32 {sr(sTok)}, {sr(sTok)}, 8')
        if tagm:
            p.ins(f's_mul_i32 {sr(s0)}, {sr(sTok)}, 0x13c6ef37\nv_mov_b32 v{q0}, 0xff\n' + '\n'.join(f's_bfe_u32 {sr(stg[i])}, {sr(s0)}, {hex(0x80000 + 8 * i)}' for i in range(4)))
        for ks in range(4):
            p.wait(lg=[('mr', ks)])
            p.ins(f'{MFMA} {vr(q0+4,4)}, {vr(g_+4*ks,4)}, {vr(g_+16+4*ks,4)}, {vr(q0+4,4) if ks else 0}')
        if tagm:
            for i in range(4): p.ins(f'v_bfi_b32 v{q0+4+i}, v{q0}, {sr(stg[i])}, v{q0+4+i}')
        p.vm(f'buffer_store_dwordx4 {vr(q0+4,4)}, v{vpw}, {sr(sWS,4)}, {sr(sms)} offen sc1', 'ms'); p.T('f_ms')
    def stats():
        p.ins(f's_lshl_b32 {sr(s1)}, {sr(sw)}, 4\nv_lshlrev_b32 v{vsr}, 6, v{vt}\nv_add_u32 v{vsr}, {LS}, v{vsr}\nv_add_u32 v{vsw}, {sr(s1)}, v{vsr}\nv_mov_b32 v{vone}, 0x3f803f80')
        for i in range(4): p.ins(f'v_mov_b32 v{q0+i}, 0')
        for oth in range(2):
            p.wait(vm=[('x', oth)])
            for d in range(8):
                for rh in range(2):
                    x_ = (vq if oth else vx) + 8 * rh + d
                    p.ins(f'v_dot2c_f32_bf16 v{q0+2*rh}, v{x_}, v{vone}\nv_dot2c_f32_bf16 v{q0+2*rh+1}, v{x_}, v{x_}')
        p.ins('s_nop 2')
        for i in range(4): p.ins(f'v_add_f32_dpp v{q0+i}, v{q0+i}, v{q0+i} row_ror:8 row_mask:0xf bank_mask:0xf')
        for sw_ in (16, 32):
            for i in range(4): p.ins(f'v_mov_b32 v{q0+4+i}, v{q0+i}')
            for i in range(4): p.ins(f'v_permlane{sw_}_swap_b32 v{q0+i}, v{q0+4+i}')
            for i in range(4): p.ins(f'v_add_f32 v{q0+i}, v{q0+i}, v{q0+4+i}')
        p.lg(f'ds_write_b128 v{vsw}, {vr(q0,4)}', None, w=(LS, LS + 512))
    def stats2():
        for d in range(16): p.ins(f'v_lshlrev_b32 v{vf+2*d}, 16, v{vx+d}\nv_and_b32 v{vf+2*d+1}, 0xffff0000, v{vx+d}')
        p.wait(lg='all'); p.bar()
        for i in range(4): p.lg(f'ds_read_b128 {vr(vq+4*i,4)}, v{vsr} offset:{16*i}', None, r=(LS, LS + 512))
        for i in range(0, 16, 4): p.ins(f'v_permlane16_swap_b32 v{vx+i}, v{vx+i+2}\nv_permlane16_swap_b32 v{vx+i+1}, v{vx+i+3}')
        t_ = q0
        p.ins(f'v_bfe_u32 v{t_}, v{vl}, 3, 1\nv_lshlrev_b32 v{vo}, 9, v{t_}\nv_bfe_u32 v{t_}, v{vl}, 4, 1\nv_lshl_add_u32 v{vo}, v{t_}, 8, v{vo}\nv_lshrrev_b32 v{vone}, 5, v{vl}\nv_lshl_add_u32 v{vo}, v{vone}, 10, v{vo}\nv_lshl_add_u32 v{vo}, v{vt}, 4, v{vo}')
        p.ins(f'v_and_b32 v{vpo}, 31, v{vl}\nv_lshlrev_b32 v{vpo}, 4, v{vpo}\nv_lshl_add_u32 v{vpo}, v{vone}, 12, v{vpo}\nv_cvt_f32_u32 v{vone}, v{vone}')
        p.ins(f's_add_u32 {sr(s1)}, {sr(sWL)}, {LB}\nv_add_u32 v{vpw}, {sr(s1)}, v{vl16}\nv_lshl_add_u32 v{vmr}, v{vt+1}, 5, {sr(s1)}')
        p.ins(f'v_lshlrev_b32 v{t_}, 14, v{t_}\nv_and_b32 v{vm_}, 15, v{vl}\nv_lshl_add_u32 v{vm_}, v{vm_}, 7, v{t_}')
        p.wait(lg='all')
        for n_ in (8, 4):
            for x in range(n_): p.ins(f'v_add_f32 v{vq+x}, v{vq+x}, v{vq+n_+x}')
        Ls = []
        for rh in range(2):
            m_, v_ = vq + 2 * rh, vq + 2 * rh + 1
            Ls.append(F(f'v_mul_f32 v{m_}, {f32(1/1024)}, v{m_}\nv_mul_f32 v{v_}, {f32(1/1024)}, v{v_}\nv_fma_f32 v{v_}, -v{m_}, v{m_}, v{v_}\nv_max_f32 v{v_}, 0, v{v_}') + rb(v_) + [f'v_add_f32 v{v_}, {f32(1e-5)}, v{v_}'] + rb(v_)
                      + [f'v_sqrt_f32 v{v_}, v{v_}'] + rb(m_) + rb(v_) + F(f'v_rcp_f32 v{v_}, v{v_}\nv_mul_f32 v{m_}, v{m_}, v{v_}'))
        for x, y in zip(*Ls): p.ins(x + '\n' + y)
        for e in range(32): p.ins(f'v_fma_f32 v{vf+e}, v{vf+e}, v{vq+2*(e//16)+1}, -v{vq+2*(e//16)}')
    def xa():
        for i in range(4): p.vm(f'buffer_store_dwordx4 {vr(vx+4*i,4)}, v{vo}, {sr(sWS,4)}, {sr(sho+1)} offen offset:{2048*(i&1)+128*(i>>1)} sc1')
    im, cm = poll_ops(k, sWS, q0, smp + 1, 'plm', scnt, wg=False, va=vm_)
    def mchk():
        p.T('m_a'); cm(); p.T('m_b')
        for q in range(8):
            if q: p.ins(f's_add_u32 {sr(smp)}, {sr(smp)}, 8192')
            p.vm(f'buffer_load_dwordx4 {vr(vq+4*q,4)}, v{vpo}, {sr(sWS,4)}, {sr(smp)} offen sc1', ('part', q))
    pld = lambda q: f's_add_u32 {sr(s0)}, {sr(smp)}, {8192 * q}\nbuffer_load_dwordx4 {vr(vq+4*q,4)}, v{vpo}, {sr(sWS,4)}, {sr(s0)} offen sc1'.split('\n')
    def mld():
        p.T('m_a')
        for q in range(8): p.ins(pld(q)[0]); p.vm(pld(q)[1], ('part', q))
    def mtest():
        L = k.lab('MT')
        p.ins(f's_mov_b32 {sr(scnt)}, 20000\ns_branch {L}t')
        p.label(L)
        for q in range(8): p.ins(pld(q)[0] + '\n' + pld(q)[1] + ' ; cond')
        p.ins('s_waitcnt vmcnt(0) ; cond')
        p.label(L + 't')
        for q in range(8):
            p.wait(vm=[('part', q)])
            for i in range(4): p.ins(f'v_xor_b32 v{vq+4*q+i}, {sr(stg[i])}, v{vq+4*q+i}')
            p.ins(f'v_or3_b32 v{q0}, v{vq+4*q}, v{vq+4*q+1}, {"v%d" % q0 if q else 0}\nv_or3_b32 v{q0}, v{vq+4*q+2}, v{vq+4*q+3}, v{q0}')
        p.ins(f'v_and_b32 v{q0}, 0xff, v{q0}\nv_cmp_ne_u32 vcc, 0, v{q0}\ns_sub_u32 {sr(scnt)}, {sr(scnt)}, 1\ns_cmp_eq_u32 {sr(scnt)}, 0\ns_cbranch_scc1 {L}x\ns_cbranch_vccnz {L}')
        p.label(L + 'x'); p.T('m_b')
    def mod():
        if tagm: mtest()
        for q in range(1, 8):
            p.wait(vm=[('part', q)])
            for i in (0, 2): p.ins(f'v_pk_add_f32 {vr(vq+i,2)}, {vr(vq+i,2)}, {vr(vq+4*q+i,2)}')
        p.T('f_p')
        for rep in range(2):
            p.ins(f'v_cvt_pk_bf16_f32 v{vq+4}, v{vq}, v{vq+1}\nv_cvt_pk_bf16_f32 v{vq+5}, v{vq+2}, v{vq+3}')
            for i in (0, 2): p.ins(f'v_lshlrev_b32 v{vq+i}, 16, v{vq+4+i//2}\nv_and_b32 v{vq+i+1}, 0xffff0000, v{vq+4+i//2}')
            if rep == 0:
                for i in range(4): p.ins(f'v_add_f32 v{vq+i}, v{vone}, v{vq+i}')
        p.lg(f'ds_write_b128 v{vpw}, {vr(vq,4)}', None, w=(LB, LB + 4096), priv=True)
        for i in range(2):
            for h in range(2):
                p.lg(f'ds_read_b128 {vr(vq+8*i+4*h,4)}, v{vmr} offset:{256*i+16*h+512}', None, r=(LB, LB + 4096), priv=True)
                p.lg(f'ds_read_b128 {vr(vq+16+8*i+4*h,4)}, v{vmr} offset:{256*i+16*h}', ('mv', i), r=(LB, LB + 4096), priv=True)
        for i in range(2):
            p.wait(lg=[('mv', i)])
            for rh in range(2):
                f_ = vf + 16 * rh + 8 * i
                for e in range(0, 8, 2): p.ins(f'v_pk_fma_f32 {vr(f_+e,2)}, {vr(f_+e,2)}, {vr(vq+8*i+e,2)}, {vr(vq+16+8*i+e,2)}')
            for rh in range(2):
                f_ = vf + 16 * rh + 8 * i
                for d in range(4): p.ins(f'v_cvt_pk_bf16_f32 v{f_+d}, v{f_+2*d}, v{f_+2*d+1}')
            for rh in range(2):
                f_ = vf + 16 * rh + 8 * i
                p.ins(f'v_permlane16_swap_b32 v{f_}, v{f_+2}\nv_permlane16_swap_b32 v{f_+1}, v{f_+3}')
                p.vm(f'buffer_store_dwordx4 {vr(f_,4)}, v{vo}, {sr(sWS,4)}, {sr(sho)} offen offset:{2048*i+128*rh} sc1', ('hs', 2 * i + rh))
        p.T('f_hs')
    def addr2():
        p.ins(f's_lshl_b32 {sr(s0)}, {sr(sm)}, 18\ns_add_u32 {sr(s0)}, {sr(s0)}, {WS_H - 32768}\n' + (f's_cmp_eq_u32 {sr(sm)}, 0\ns_cselect_b32 {sr(sHalo)}, {WS_H + 127 * 32768}, {sr(s0)}' if hx else f's_max_u32 {sr(sHalo)}, {sr(s0)}, {WS_H}') + f'\ns_lshr_b32 {sr(s1)}, {sr(sw)}, 1\ns_lshl_b32 {sr(sW4)}, {sr(s1)}, 15\ns_add_u32 {sr(s0)}, {sr(s0)}, {sr(sW4)}\nv_add_u32 v{vA}, {sr(s0)}, v{vl16}')
        p.ins(f's_lshl_b32 {sr(s1)}, {sr(s1)}, 11\ns_add_u32 {sr(sHalo)}, {sr(sHalo)}, {sr(s1)}\ns_lshl_b32 {sr(sW4)}, {sr(sw)}, 12\ns_and_b32 {sr(s0)}, {sr(sW4)}, 4096\ns_add_u32 {sr(sW4+1)}, {sr(s0)}, {sr(s1)}')
        p.ins('\n'.join(rtab(sR)))
        p.ins(f's_lshl_b32 {sr(s0)}, {sr(sm)}, 4\ns_sub_u32 {sr(s0)}, {sr(s0)}, 2\nv_min_u32 v{vp+1}, 17, v{vl}\nv_add_u32 v{vp+1}, {sr(s0)}, v{vp+1}\n{"v_and_b32" if hx else "v_max_i32"} v{vp+1}, {255 if hx else 0}, v{vp+1}\nv_lshlrev_b32 v{vp+1}, 7, v{vp+1}\nv_add_u32 v{vp+1}, {FL_H}, v{vp+1}')
    ih, ch = poll_ops(k, sWS, q0, None, 'plh', scnt, va=vp + 1)
    def hchk():
        assert nit[0] == chk_it + 1 and not avail
        p.T('h_a'); ch(); p.T('h_b'); issue(front[chk_it])
    def code():
        p.ins(f's_lshr_b32 {sr(mA+3)}, s2, 3\ns_lshl_b32 {sr(mA+3)}, {sr(mA+3)}, 2\ns_add_u32 {sr(mA+3)}, {sr(mA+3)}, {sr(sw)}\ns_lshl_b32 {sr(mA+3)}, {sr(mA+3)}, 10')
        code_op(k, vM, vl16, mA)
    T = TMP if False else vt
    q_ = lambda l: l & 15
    gg = lambda l: l >> 4
    vccm = lambda m: f's_mov_b32 vcc_lo, 0x{m & 0xffffffff:08x}\ns_mov_b32 vcc_hi, 0x{m >> 32:08x}'
    m64 = lambda s_, m: F(f's_mov_b32 {sr(s_)}, 0x{m & 0xffffffff:08x}\ns_mov_b32 {sr(s_+1)}, 0x{m >> 32:08x}')
    mpa = lanemask(lambda l: not (4 * gg(l) + (l & 1) <= q_(l))); mpb = lanemask(lambda l: not (4 * gg(l) + 2 + (l & 1) <= q_(l)))
    sb, sn2 = sjo + 1, sms + 1
    su = []
    su += F(f's_and_b32 {sr(s0)}, s2, 3\ns_lshl_b32 {sr(s0)}, {sr(s0)}, 8\nv_add_u32 v{q0+4}, {sr(s0)}, v{vdO}\nv_mul_u32_u24 v{q0+4}, 12288, v{q0+4}\ns_lshr_b32 {sr(s1)}, s2, 2\ns_add_u32 {sr(s1)}, {sr(s1)}, 32\ns_lshl_b32 {sr(s1)}, {sr(s1)}, 7')
    su += F(f'v_lshl_add_u32 v{vdO}, v{vdO}, 11, v{vdJ}\nv_add3_u32 v{vdJ}, v{q0+4}, v{vdJ}, {sr(s1)}')
    su += F(f's_and_b32 {sr(s0)}, {sr(sw)}, 1\ns_lshl_b32 {sr(s1)}, {sr(sm)}, 3\ns_add_u32 {sr(s1)}, {sr(s1)}, {sr(s0)}\ns_lshl_b32 {sr(soo)}, {sr(s1)}, 15\ns_lshl_b32 {sr(s1)}, {sr(sn)}, 1\ns_lshr_b32 {sr(scnt)}, {sr(sw)}, 1\ns_add_u32 {sr(s1)}, {sr(s1)}, {sr(scnt)}\ns_lshl_b32 {sr(s1)}, {sr(s1)}, 10\ns_add_u32 {sr(soo)}, {sr(soo)}, {sr(s1)}\ns_add_u32 {sr(soo)}, {sr(soo)}, {WS_O}')
    su += F(f's_mul_i32 {sr(scnt)}, {sr(scnt)}, 3072\ns_add_u32 {sr(scnt)}, {sr(scnt)}, {QKV}\nv_add_u32 v{vrd}, {sr(scnt)}, v{vl16}\ns_lshl_b32 {sr(s1)}, {sr(s0)}, 3\nv_add_u32 v{vqw}, {sr(s1)}, v{vrd}\ns_lshl_b32 {sr(s1)}, {sr(s0)}, 10\nv_add_u32 v{vkw}, {sr(s1)}, v{vrd}')
    su += F(f'v_lshrrev_b32 v{q0+4}, 2, v{vl}\nv_and_b32 v{vvt}, 3, v{vl}\nv_lshl_add_u32 v{q0+4}, v{vvt}, 4, v{q0+4}\nv_lshl_add_u32 v{vvt}, v{q0+4}, 4, {sr(scnt)}')
    for r_ in range(4): su += m64(mA + 2 * r_, lanemask(lambda l: 4 * gg(l) + r_ <= q_(l)))
    su += m64(mA + 8, lanemask(lambda l: l & 1)) + m64(mA + 10, mpa) + m64(mA + 12, mpb)
    su += F(f'v_mov_b32 v{q0+5}, 0xffff\nv_mov_b32 v{vM}, 0xffff0000\nv_cndmask_b32 v{q0+5}, v{q0+5}, v{vM}, {sr(mA+8,2)}\nv_cndmask_b32 v{vM}, 0, v{q0+5}, {sr(mA+10,2)}\nv_cndmask_b32 v{vM+1}, 0, v{q0+5}, {sr(mA+12,2)}\nv_xor_b32 v{vM+2}, v{vM}, v{q0+5}\nv_xor_b32 v{vM+3}, v{vM+1}, v{q0+5}')
    su.append(f's_or_b32 {sr(s0)}, {sr(s0)}, {sr(sm)}\ns_cmp_eq_u32 {sr(s0)}, 0\ns_cselect_b64 {sr(mA+10,2)}, {sr(mA+10,2)}, 0\ns_cselect_b64 {sr(mA+12,2)}, {sr(mA+12,2)}, 0')
    sus = [lambda: p.wait(vm=['jc'])]
    sus += F(f'v_lshlrev_b32 v{vpb}, 16, v{vjc}\nv_mul_f32 v{vpb+1}, {f32(-LOG2E)}, v{vpb}\nv_exp_f32 v{vpb+1}, v{vpb+1}\nv_lshrrev_b32 v{vt}, 5, v{vl}\nv_add_f32 v{vpb+1}, 1.0, v{vpb+1}\nv_rcp_f32 v{vpb+1}, v{vpb+1}\nv_lshlrev_b32 v{vt}, 6, v{vt}\nv_mul_f32 v{vpb}, v{vpb}, v{vpb+1}\nv_cvt_pk_bf16_f32 v{vpb+1}, v{vpb}, v{vpb}')
    sus += F(f'v_bfe_u32 v{vpb}, v{vl}, 2, 2\nv_lshl_add_u32 v{vt}, v{vpb}, 4, v{vt}\nv_bfe_u32 v{vpb}, v{vl}, 4, 1\nv_lshl_add_u32 v{vt}, v{vpb}, 3, v{vt}\nv_and_b32 v{vpb}, 3, v{vl}\nv_lshl_add_u32 v{vt}, v{vpb}, 1, v{vt}\ns_lshl_b32 {sr(s1)}, {sr(sw)}, 7\ns_add_u32 {sr(s1)}, {sr(s1)}, {JT}\nv_add_u32 v{vt}, {sr(s1)}, v{vt}')
    jtp = min(b_ for b_ in bars if b_ >= W.units[('h', 3)]['lr']) + 1
    st.at(jtp, lambda: p.lg(f'ds_write_b16 v{vt}, v{vpb+1}', 'jtw', w=(JT, JT + 512)))
    su2 = F(f's_bfe_u32 {sr(s1)}, s2, 0x30003\ns_lshl_b32 {sr(sn2)}, {sr(s1)}, 1\ns_and_b32 {sr(s0)}, s2, 1\ns_add_u32 {sr(sn2)}, {sr(sn2)}, {sr(s0)}\ns_and_b32 {sr(sb)}, s2, 4\ns_lshr_b32 {sr(s0)}, s2, 6\ns_add_u32 {sr(sb)}, {sr(sb)}, {sr(s0)}\ns_lshl_b32 {sr(sb)}, {sr(sb)}, 1')
    su2 += F(f's_add_u32 {sr(srot+1)}, {sr(sb)}, {sr(s1)}' if cfg.get('rot2', 1) else f's_mov_b32 {sr(srot+1)}, 0') + F(f's_bfe_u32 {sr(s0)}, s2, 0x10001\ns_add_u32 {sr(sb)}, {sr(sb)}, {sr(s0)}') + rtab(sR2, srot + 1)
    su2 += F(f's_lshl_b32 {sr(s0)}, {sr(sn2)}, 7\nv_add_u32 v{vdO}, {sr(s0)}, v{vdO}')
    su2 += F(f's_lshl_b32 {sr(s0)}, {sr(sb)}, 18\ns_lshr_b32 {sr(s1)}, {sr(sw)}, 1\ns_lshl_b32 {sr(s1)}, {sr(s1)}, 15\ns_add_u32 {sr(s1)}, {sr(s0)}, {sr(s1)}\ns_add_u32 {sr(sjo)}, {sr(s1)}, {WS_O}')
    su2v = [f's_mov_b32 {sr(x[0]+2+i)}, {(x[1], 0x20000)[i]}' for x in late for i in range(2)] + [f'v_add_u32 v{vdW}, {sr(sjo)}, v{vl16}'] + [f'v_and_b32 v{trA+t}, 0xffffbfff, v{trA+t}' for t in (1, 2, 4, 5)]
    su2 += F(f's_and_b32 {sr(s1)}, {sr(sw)}, 1')
    su2v += F(f's_lshl_b32 {sr(s0)}, {sr(sw)}, 13\ns_and_b32 {sr(s0)}, {sr(s0)}, 8192\nv_add_u32 v{vdO2}, {sr(s0)}, v{vl16}\nv_add_u32 v{vdO2+1}, {sr(s0)}, v{vl16+1}')
    su2 += F(f's_lshl_b32 {sr(s1)}, {sr(s1)}, 15\ns_add_u32 {sr(s0)}, {sr(s0)}, {sr(s1)}\ns_lshl_b32 {sr(s1)}, {sr(sn2)}, 1\ns_lshr_b32 {sr(scnt)}, {sr(sw)}, 1\ns_add_u32 {sr(s1)}, {sr(s1)}, {sr(scnt)}\ns_lshl_b32 {sr(sy2)}, {sr(s1)}, 7\ns_lshl_b32 {sr(s1)}, {sr(s1)}, 10\ns_add_u32 {sr(sy)}, {sr(s0)}, {sr(s1)}')
    su2 += F(f's_lshr_b32 {sr(s1)}, {sr(s1)}, 1\ns_lshl_b32 {sr(s0)}, {sr(sb)}, 1\ns_and_b32 {sr(scnt)}, {sr(sw)}, 1\ns_add_u32 {sr(s0)}, {sr(s0)}, {sr(scnt)}\ns_lshl_b32 {sr(s0)}, {sr(s0)}, 14\ns_add_u32 {sr(s0)}, {sr(s0)}, {sr(s1)}\ns_add_u32 {sr(sy+1)}, {sr(s0)}, {WS_ST2}')
    su2 += F(f's_lshl_b32 {sr(s0)}, {sr(sb)}, 11\ns_lshl_b32 {sr(s1)}, {sr(sn2)}, 7\ns_add_u32 {sr(s1)}, {sr(s1)}, {sr(s0)}\ns_lshl_b32 {sr(scnt)}, {sr(sw)}, 28\ns_add_u32 {sr(s1)}, {sr(s1)}, {sr(scnt)}\ns_add_u32 {sr(sy+2)}, {sr(s1)}, {FL_Y}')
    su2 += F(f's_add_u32 {sr(sfl+3)}, {sr(s0)}, {FL_O}')
    opl = F(f'v_and_b32 v{vp+1}, 15, v{vl}\nv_lshlrev_b32 v{vp+1}, 7, v{vp+1}')
    su2v += opl
    if hx:
        su2v += F(f's_lshl_b32 {sr(s0)}, {sr(sm)}, 4\ns_add_u32 {sr(s0)}, {sr(s0)}, {sr(sn)}\ns_lshl_b32 {sr(sHalo)}, {sr(s0)}, 12\ns_add_u32 {sr(sHalo)}, {sr(sHalo)}, {sr(sWL)}\ns_add_u32 {sr(sHalo)}, {sr(sHalo)}, {WS_KV}')
        su2v += F(f's_add_u32 {sr(s0)}, {sr(s0)}, 16\ns_and_b32 {sr(s0)}, {sr(s0)}, 255\ns_lshl_b32 {sr(sm)}, {sr(s0)}, 12\ns_add_u32 {sr(sm)}, {sr(sm)}, {sr(sWL)}\ns_add_u32 {sr(sm)}, {sr(sm)}, {WS_KV}')
        su2v += F(f's_lshl_b32 {sr(s0)}, {sr(s0)}, 7\ns_add_u32 {sr(s0)}, {sr(s0)}, {FL_O + 32768}\ns_sub_u32 {sr(s0)}, {sr(s0)}, {sr(sfl+3)}\ns_sub_u32 {sr(sfl+3)}, {sr(sfl+3)}, 32768\nv_add_u32 v{vp+1}, 32768, v{vp+1}\nv_writelane_b32 v{vp+1}, {sr(s0)}, 16')
        su2v += F(f's_lshr_b32 {sr(s0)}, {sr(sw)}, 1\ns_lshl_b32 {sr(s0)}, {sr(s0)}, 10\ns_add_u32 {sr(sn)}, {sr(s0)}, {sr(sWL)}\ns_add_u32 {sr(sn)}, {sr(sn)}, {QKV + 3 * 6144 + 1024}')
    def run(L):
        for o in L: p.ins(o) if isinstance(o, str) else o()
    def tw(i0, n):
        p.ins(f's_add_u32 {sr(s0)}, {sr(sw)}, {i0}\ns_lshr_b32 {sr(s1)}, {sr(s0)}, 1\ns_lshl_b32 {sr(s1)}, {sr(s1)}, 11\ns_and_b32 {sr(s0)}, {sr(s0)}, 1\ns_and_b32 {sr(scnt)}, {sr(sm if cfg.get("rot", 1) != 1 else srot)}, 7\ns_lshl_b32 {sr(scnt)}, {sr(scnt)}, 1\ns_add_u32 {sr(s0)}, {sr(s0)}, {sr(scnt)}\ns_mul_i32 {sr(s0)}, {sr(s0)}, {64 * 6144}\ns_add_u32 {sr(s0)}, {sr(s0)}, {sr(s1)}')
        p.ins(f's_lshl_b32 {sr(s1)}, {sr(sn)}, 7\ns_add_u32 {sr(s0)}, {sr(s0)}, {sr(s1)}\ns_cmp_lt_u32 {sr(sw)}, {n}\ns_cselect_b32 {sr(s0)}, {sr(s0)}, {OOB}\nv_mul_u32_u24 v{vpb+1}, 6144, v{vl}')
        p.vm(f'buffer_load_dword a252, v{vpb+1}, {sr(sWq,4)}, {sr(s0)} offen {cfg.get("tfl", "")}', 'dummy')
    def tw16():
        p.ins(f's_lshl_b32 {sr(s1)}, {sr(sw)}, 11\ns_mul_i32 {sr(s0)}, {sr(sm)}, {64 * 6144}\ns_add_u32 {sr(s0)}, {sr(s0)}, {sr(s1)}\ns_lshl_b32 {sr(s1)}, {sr(sn)}, 7\ns_add_u32 {sr(s0)}, {sr(s0)}, {sr(s1)}\ns_cmp_lt_u32 {sr(sw)}, 3\ns_cselect_b32 {sr(s0)}, {sr(s0)}, {OOB}\nv_mul_u32_u24 v{vpb+1}, 6144, v{vl}')
        p.vm(f'buffer_load_dword a252, v{vpb+1}, {sr(sWq,4)}, {sr(s0)} offen {cfg.get("tfl", "")}', 'dummy')
    def tq(i0, n):
        p.ins(f's_add_u32 {sr(s0)}, {sr(sw)}, {i0}\ns_sub_u32 {sr(s1)}, 5, {sr(s0)}\ns_bitcmp1_b32 s2, 2\ns_cselect_b32 {sr(s0)}, {sr(s1) if cfg.get("trev", 1) else sr(s0)}, {sr(s0)}')
        p.ins(f's_lshr_b32 {sr(s1)}, {sr(s0)}, 1\ns_lshl_b32 {sr(s1)}, {sr(s1)}, 11\ns_and_b32 {sr(s0)}, {sr(s0)}, 1\ns_lshr_b32 {sr(scnt)}, s2, 3\ns_lshl_b32 {sr(scnt)}, {sr(scnt)}, 1\ns_add_u32 {sr(s0)}, {sr(s0)}, {sr(scnt)}\ns_mul_i32 {sr(s0)}, {sr(s0)}, {16 * 6144}\ns_add_u32 {sr(s0)}, {sr(s0)}, {sr(s1)}')
        p.ins(f's_and_b32 {sr(s1)}, s2, 3\ns_lshl_b32 {sr(s1)}, {sr(s1)}, 9\ns_add_u32 {sr(s0)}, {sr(s0)}, {sr(s1)}\ns_cmp_lt_u32 {sr(sw)}, {n}\ns_cselect_b32 {sr(s0)}, {sr(s0)}, {OOB}\nv_lshrrev_b32 v{vpb+1}, 2, v{vl}\nv_mul_u32_u24 v{vpb+1}, {6144 - 512}, v{vpb+1}\nv_lshl_add_u32 v{vpb+1}, v{vl}, 7, v{vpb+1}')
        p.vm(f'buffer_load_dword a252, v{vpb+1}, {sr(sWq,4)}, {sr(s0)} offen', 'dummy'); p.items.append(('vmark', f'tq{i0}'))
    def tl():
        p.ins(f's_mul_i32 {sr(s0)}, s2, 3\ns_add_u32 {sr(s0)}, {sr(s0)}, {sr(sw)}\ns_lshl_b32 {sr(s0)}, {sr(s0)}, 13\ns_cmp_lt_u32 {sr(sw)}, 3\ns_cselect_b32 {sr(s0)}, {sr(s0)}, {OOB}\nv_lshlrev_b32 v{vpb+1}, 7, v{vl}')
        p.vm(f'buffer_load_dword a252, v{vpb+1}, {sr(sWq,4)}, {sr(s0)} offen', 'dummy')
    def tlb(sh, L=None):
        L = L or ((sWS, 0x5000000), (sWq, DM * 6144), (sWo, DM * 2048), (sWg, DM * FF * 2))
        p.ins(f's_mov_b64 {sr(mA,2)}, {sr(L[0][0],2)}\ns_mov_b32 {sr(mA+2)}, {L[0][1]}')
        for w_ in range(1, 4): p.ins(f's_cmp_eq_u32 {sr(sw)}, {w_}\ns_cselect_b64 {sr(mA,2)}, {sr(L[w_][0],2)}, {sr(mA,2)}\ns_cselect_b32 {sr(mA+2)}, {L[w_][1]}, {sr(mA+2)}')
        p.ins(f's_mov_b32 {sr(mA+3)}, 0x20000\nv_lshlrev_b32 v{vpb+1}, 21, v{vl}\ns_lshr_b32 {sr(s0)}, s2, 3\ns_lshl_b32 {sr(s0)}, {sr(s0)}, {sh}')
        p.vm(f'buffer_load_dword a252, v{vpb+1}, {sr(mA,4)}, {sr(s0)} offen', 'dummy')
    assert mA % 4 == 0
    steps = dict(mld=mld, wt=lambda: p.wait(vm=['tq0']), wu=lambda: p.wait(vm=['tq3']), tlb=lambda: tlb(16), tlb2=lambda: tlb(16, ((sWu, DM * FF * 2), (sWd, DM * FF * 2), (sOut, M * DM * 2), (sWm, DM * 12288))), tlb0=lambda: tlb(7), tqa=lambda: tq(0, 2), tqb=lambda: tq(2, 4), tqc=lambda: tq(0, 3), tqd=lambda: tq(3, 3), tl=tl, tw=tw16, sus=lambda: run(sus), su=lambda: run(su), su2=lambda: run(su2), twa=lambda: tw(0, 2), twb=lambda: tw(2, 4), twc=lambda: tw(0, 4), twd=lambda: tw(4, 2), stats2=stats2, x1=lambda: xload(1), addr=addr, gemv=gemv, stats=stats, xa=xa, mpoll=im, mchk=mchk, mod=mod, addr2=addr2, hpoll=ih, hchk=hchk, it=it, code=code,
                 warm=lambda: p.ins(f';@WARM {sr(sw)} 0 4'),
                 mpub=lambda: (pub_op(k, sWS, vpb, sfm, ['ms'])(), p.T('m_pub')),
                 hpub=lambda: (pub_op(k, sWS, vpb, sfl + 1, [('hs', i) for i in range(4)])(), p.T('h_pub')))
    for x in script:
        if x[0] == 'D': D(int(x[1:]))
        elif '+' in x:
            nm, n_ = x.split('+'); a_ = len(p.items); steps[nm](); body = p.items[a_:]; del p.items[a_:]
            def scc_dead(i):
                for y in body[i:]:
                    if y[0] == 'label': return False
                    if y[0] != 'ins': continue
                    o_ = y[1].split()[0]
                    if o_.startswith(('s_cselect', 's_cbranch', 's_addc')) or 'exec' in y[1]: return False
                    if o_.startswith('s_') and not o_.startswith(('s_mov', 's_mul', 's_wait', 's_barrier', 's_nop')): return True
                return True
            first_ = max([i + 1 for i, y in enumerate(body) if y == ('ins', 's_barrier')] + [0]) if nm == 'it' else 0
            n_ = int(n_); done_ = 0
            for i, y in enumerate(body):
                if i >= first_ and done_ < n_ and (i - first_) * n_ >= done_ * (len(body) - first_) and scc_dead(i): D(1); done_ += 1
                p.items.append(y)
            D(n_ - done_)
        else: steps[x]()
    assert nit[0] == nf and not avail
    first = [u for u in W.units if -100 < W.units[u]['fr'] <= bars[0]]
    for u in first: W.units[u]['vis'] = True
    pre_done = [u for d in front for u in front[d]]
    assert all(u in pre_done for u in first), first
    su2_beg = cfg.get('su2', 322 if il else 222)
    for hf in range(2): W.units[('j', hf)]['e'] = cfg.get('je', (380, 430) if il else (150, 250))[hf]
    PD = cfg.get('pd', 35)
    pls = [T0 + x - PD for x in cfg.get('plo', (-109, 47, 143))]
    for i, s in enumerate(pls):
        assert s + PD in bars
        i_, c_ = poll_ops(k, sWS, vp, sfl + 3, ('plo', i), scnt, cmp=f'v_subrev_u32 v{vp}, {sr(sTok)}, v{vp}\nv_subrev_u32 v{vp}, {i + 1}, v{vp}\nv_cmp_lt_u32 vcc, 3, v{vp}', bar=False)
        st.at(s + PD - cfg.get('pdo', (35, 35, 35))[i], i_); st.last(s + PD, f';@T o{i}a'); st.last(s + PD, c_); st.pre.setdefault(s + PD + 1, []).append(f';@T o{i}b')
    for ps in range(4):
        for c in range(4): W.units[('o', ps, c)]['e'] = pls[max(ps - 1, 0)] + PD + 1
    jc = T0 + cfg.get('jchk', -17); assert jc in bars
    ij, cj = poll4_ops(k, sWS, TMP, vt, 'plj', scnt, bar=False)
    st.at(jc - 62, f'v_lshlrev_b32 v{vt}, 7, v{vl}\nv_add_u32 v{vt}, {FL_J}, v{vt}'); st.at(jc - cfg.get('jpd', 45), ij); st.last(jc, cj)
    st.at(T0 + 105, op(lambda: (p.ins(f's_or_b32 {sr(scnt)}, s2, {sr(sw)}\ns_mov_b32 {sr(scnt)}, {WS_TOK}\ns_cselect_b32 {sr(scnt)}, {OOB}, {sr(scnt)}'), pub_op(k, sWS, vpb, scnt, [])()), 7))
    def pub_at(slot, tags, soff, add=0):
        b_ = min(x for x in bars if x >= slot)
        W.bw[b_] += tags; st.pre.setdefault(b_ + 1, []).append(pub_op(k, sWS, vpb, soff, [], add=add)); return b_
    su3_beg = P[2] + cfg.get('su3', 102); su3_end = P[3]
    for u in W.units:
        if u[0] == 3: W.units[u]['e'] = max(su3_end, T0 + cfg.get('w3e', 150))
    ops = W.dma_ops(bars, pre_done)
    for o in ops:
        if o['id'] in cfg.get('quiet', {}): o['wt'] = cfg['quiet'][o['id']]
        if o['id'][0][0] == 'j' and cfg.get('jdl'): o['dl'] = min(o['dl'], cfg['jdl'])
    extra = []
    def X(e, dl, main, pre=None, wt=1): extra.append(dict(e=e, dl=dl, main=main, pre=pre, id='x', wt=wt))
    vxa, vg, vc2, vone2, vst, vgo, f2, d2, Y2, D1 = 144, 160, 168, 176, 180, 181, 184, 192, 196, 224
    tj = max(jc + 3, T0 - 20)
    tx = T0 + cfg.get('tx', -10)
    st.at(tj - 1, f'v_and_b32 v{vt}, 31, v{vl}\nv_lshlrev_b32 v{vt}, 2, v{vt}\nv_lshrrev_b32 v{vgo}, 5, v{vl}\nv_lshl_add_u32 v{vt}, v{vgo}, 13, v{vt}')
    for q in range(NPART):
        pre = op(lambda q=q: p.ins(f's_add_u32 {sr(sv+1)}, {sr(sy2)}, {6144 * 4 * q + 2 * 4096}'), 1)
        X(tx, tx + 30, lambda q=q: p.vm(f'buffer_load_dword v{vg+q}, v{vt}, {sr(sWS,4)}, {sr(sv+1)} offen sc1', ('g', q)), pre, 0.5)
    assert tj > pls[0] + PD
    for j in range(4):
        pre = op(lambda j=j: p.ins(f's_add_u32 {sr(sv+1)}, {sr(sy)}, {WS_XA + 65536 * j}'), 1)
        X(tx, tx + 30, lambda j=j: p.vm(f'buffer_load_dwordx4 {vr(vxa+4*j,4)}, v{vl16}, {sr(sWS,4)}, {sr(sv+1)} offen sc1', ('xa', j)), pre, 0.6)
    vtb = k.vtb = 212
    st.at(T0 + 2, f's_lshr_b32 {sr(sjo+1)}, s2, 6\ns_lshl_b32 {sr(sjo+1)}, {sr(sjo+1)}, 2\ns_add_u32 {sr(sjo+1)}, {sr(sjo+1)}, {sr(sw)}\ns_lshl_b32 {sr(sjo+1)}, {sr(sjo+1)}, 8')
    st.at(T0 + 60, f'v_lshrrev_b32 v{vtb+8}, 5, v{vl}\nv_xor_b32 v{vtb+8}, 1, v{vtb+8}\nv_lshlrev_b32 v{vtb+8}, 12, v{vtb+8}')
    st.at(T0 + 62, f'v_and_b32 v{vtb+9}, 31, v{vl}\nv_lshl_add_u32 v{vtb+8}, v{vtb+9}, 3, v{vtb+8}')
    for q in range(NPART):
        pre = op(lambda q=q: p.ins(f's_add_u32 {sr(sv+1)}, {sr(sjo+1)}, {6144 * 4 * q + 3 * 4096}'), 1)
        X(T0 + cfg.get('tt', 190), T0 + cfg.get('tt', 190) + 60, lambda q=q: p.vm(f'buffer_load_dwordx2 {vr(vtb+2*q,2)}, v{vtb+8}, {sr(sWS,4)}, {sr(sv+1)} offen sc1', ('tb', q)), pre, 0.5)
    def touch_op(kind, j, nsel):
        def f():
            L = k.lab('TP')
            p.ins(f's_lshr_b32 {sr(scnt)}, s2, 3\ns_add_u32 {sr(scnt)}, {sr(scnt)}, s2\ns_and_b32 {sr(scnt)}, {sr(scnt)}, {nsel - 1}\ns_cmp_lg_u32 {sr(scnt)}, {j}\ns_cbranch_scc1 {L}')
            ld, srd = {'wo': (2048, sWo), 'wg': (7168, sWg), 'wu': (7168, sWu)}[kind]
            p.ins(f's_lshr_b32 {sr(scnt)}, s2, 3\ns_lshl_b32 {sr(scnt)}, {sr(scnt)}, 2\ns_add_u32 {sr(scnt)}, {sr(scnt)}, {sr(sw)}\ns_mul_i32 {sr(scnt)}, {sr(scnt)}, {8 * ld}')
            p.ins(f's_and_b32 vcc_lo, s2, {1 if kind == "wo" else 7}\ns_mul_i32 vcc_lo, vcc_lo, {1024 if kind == "wo" else 896}\ns_add_u32 {sr(scnt)}, {sr(scnt)}, vcc_lo')
            p.ins(f'v_lshrrev_b32 v{vpb}, 3, v{vl}\nv_mul_u32_u24 v{vpb}, {ld - 1024}, v{vpb}\nv_lshl_add_u32 v{vpb}, v{vl}, 7, v{vpb}')
            if kind != 'wo': p.ins('s_mov_b32 exec_lo, 0x7f7f7f7f\ns_mov_b32 exec_hi, 0x7f7f7f7f')
            p.ins(f'buffer_load_dword a253, v{vpb}, {sr(srd,4)}, {sr(scnt)} offen ; cond')
            if kind != 'wo': p.ins('s_mov_b64 exec, -1')
            p.label(L)
        return op(f, 6)
    def head_op():
        L = k.lab('TH')
        p.ins(f's_cmp_gt_u32 {sr(sw)}, 1\ns_cbranch_scc1 {L}\ns_cmp_eq_u32 {sr(sw)}, 0\ns_cselect_b64 {sr(sX,2)}, {sr(sWg,2)}, {sr(sWu,2)}')
        p.ins(f's_lshr_b32 {sr(scnt)}, s2, 3\ns_mul_i32 {sr(scnt)}, {sr(scnt)}, {8 * 7168}\ns_and_b32 vcc_lo, s2, 7\ns_mul_i32 vcc_lo, vcc_lo, 896\ns_add_u32 {sr(scnt)}, {sr(scnt)}, vcc_lo')
        p.ins(f'v_lshrrev_b32 v{vpb}, 3, v{vl}\nv_mul_u32_u24 v{vpb}, {7168 - 1024}, v{vpb}\nv_lshl_add_u32 v{vpb}, v{vl}, 7, v{vpb}\ns_mov_b32 exec_lo, 0x7f7f7f7f\ns_mov_b32 exec_hi, 0x7f7f7f7f')
        p.ins(f'buffer_load_dword a253, v{vpb}, {sr(sX,4)}, {sr(scnt)} offen {cfg.get("hfl", "")} ; cond\ns_mov_b64 exec, -1')
        p.label(L)
    if cfg.get('hd', 590): st.at(cfg.get('hd', 590), op(head_op, 6))
    for kind, pos in cfg.get('tp', {}).items():
        for j, s in enumerate(pos): st.at(s, touch_op(kind, j, len(pos)))
    if hx:
        kb = pls[0] + PD
        st.at(kb + 2, f'v_writelane_b32 v{vp+1}, {sr(scnt)}, 16'.replace('v_writelane', f's_mov_b32 {sr(scnt)}, 32768\nv_writelane'))
        X(kb + 1, kb + 30, lambda: p.vm(f'buffer_load_dwordx4 v{vl16}, {sr(sWS,4)}, {sr(sm)} offen sc1 lds', 'kv', w=(QKV + 3 * 6144 + 1024, QKV + 3 * 6144 + 1025)), op(lambda: p.ins(f's_mov_b32 m0, {sr(sn)}'), 1))
        W.bw[ab[3]].append('kv')
    gp = cfg.get('gaps', (4, 5, 3.5, 3, 1.5, 6))
    left = st.vmem(ops + extra, lambda i: gp[0] if i < P[1] else gp[1] if i < I[('st', 3)] - 60 else gp[2] if i < T0 else gp[3] if i < pls[2] + PD else gp[4] if i < pls[2] + PD + 16 * gp[4] else gp[5])
    k.left = left
    k.vops = [o for o in ops if 't' in o]
    lastw = max(o['t'] for o in ops if o['id'][0][0] in ('q', 'k', 'v', 'h'))
    assert lastw + 1 < su2_beg and max(U_['lr'] for u, U_ in W.units.items() if u[0] in ('k', 'v')) < su2_beg, lastw
    W.bw[min(b_ for b_ in bars if b_ > jtp)].append(('lg', 'jtw'))
    e_ = st.fill(su2v, su2_beg); assert e_ < P[1]
    SC = (32 ** -0.5) * LOG2E
    mf_ = lambda d, a_, b_, c='0': op(lambda: p.ins(f'{MFMA} {vr(d,4)}, {vr(a_,4)}, {vr(b_,4)}, {c}'), 'M')
    for ps in range(4):
        s0_ = (P + [T0])[ps + 1]; L = []; tags = []
        for e in ((0, 1, 2) if ps == 0 else (0, 1)):
            sl = (qs(2 * ps + e) if e < 2 else 0) * 6144
            c1, c2 = (acc(ps, 1, e), acc(ps, 2, e)) if e < 2 else (acch(1), acch(2))
            X_ = F(f'v_cvt_pk_bf16_f32 v{c1}, v{c1}, v{c1+1}\nv_cvt_pk_bf16_f32 v{c1+1}, v{c1+2}, v{c1+3}\nv_cvt_pk_bf16_f32 v{c1+2}, v{c2}, v{c2+1}\nv_cvt_pk_bf16_f32 v{c1+3}, v{c2+2}, v{c2+3}')
            X_.append(lambda c1=c1, sl=sl, t=('kw', ps, e): p.lg(f'ds_write_b128 v{vkw}, {vr(c1,4)} offset:{sl+1024}', t, w=(QKV + sl + 1024, QKV + sl + 1025)))
            if hx and ps == 3 and e == 1: X_ = []
            else: tags.append(('kw', ps, e))
            if e < 2:
                c0 = acc(ps, 0, e)
                X_ = F(f'v_cvt_pk_bf16_f32 v{c0}, v{c0}, v{c0+1}\nv_cvt_pk_bf16_f32 v{c0+1}, v{c0+2}, v{c0+3}') + [lambda c0=c0, sl=sl, ps=ps, e=e: p.lg(f'ds_write_b64 v{vqw}, {vr(c0,2)} offset:{sl}', ('qw', ps, e), w=(QKV + sl, QKV + sl + 1))] + X_
                tags.append(('qw', ps, e))
                L += X_
            else: LH = X_
        if ps == 0:
            for o in LH: st.at(s0_ + 2, o)
            if hx: st.at(s0_ + 3, lambda: p.vm(f'buffer_store_dwordx4 {vr(acch(1),4)}, v{vl16}, {sr(sWS,4)}, {sr(sHalo)} offen sc1'))
        cur = [qs(2 * ps + e) * 6144 for e in range(2)]; prv = [qs(2 * ps + e - 1) * 6144 for e in range(2)]
        B = ACC + 24 * (ps % 2); vQ, vK, vV, w_, vS = B, B + 4, B + 12, B + 20, (236 if i2 and ps == 3 else TMP)
        L.append(f's_bitcmp1_b32 {sr(sw)}, 0\ns_mov_b32 {sr(s0)}, {cur[0]}\ns_cselect_b32 {sr(s0)}, {cur[1]}, {sr(s0)}\ns_mov_b32 {sr(s1)}, {prv[0]}\ns_cselect_b32 {sr(s1)}, {prv[1]}, {sr(s1)}')
        L += F(f'v_add_u32 v{vS}, {sr(s0)}, v{vrd}\nv_add_u32 v{vS+1}, {sr(s1)}, v{vrd}\nv_add_u32 v{vS+2}, {sr(s0)}, v{vvt}\nv_add_u32 v{vS+3}, {sr(s1)}, v{vvt}')
        e_ = st.fit(L, s0_ + 3, ab[ps])
        W.bw[ab[ps]] += [('lg', t) for t in tags]
        R_ = (QKV, QKV + (24576 if ps == 3 else 18432))
        L = [lambda vQ=vQ, vS=vS, R_=R_: p.lg(f'ds_read_b128 {vr(vQ,4)}, v{vS}', None, r=R_),
             lambda vK=vK, vS=vS, R_=R_: p.lg(f'ds_read_b128 {vr(vK,4)}, v{vS+1} offset:1024', None, r=R_),
             lambda vK=vK, vS=vS, ps=ps, R_=R_: p.lg(f'ds_read_b128 {vr(vK+4,4)}, v{vS} offset:1024', ('K', ps), r=R_)]
        for d in range(2):
            for h in range(2):
                L.append(lambda d=d, h=h, vV=vV, vS=vS, ps=ps, R_=R_: p.lg(f'ds_read_b64_tr_b16 {vr(vV+4*d+2*h,2)}, v{vS+3-h} offset:{2048+8*d}', ('V', ps), r=R_))
        L += [('gap', 5), lambda ps=ps: p.wait(lg=[('K', ps), ('V', ps)]), mf_(vS, vK, vQ), mf_(vS + 4, vK + 4, vQ), ('gap', 4)]
        L += [f'v_cndmask_b32 v{w_+r_}, v{vS+r_}, v{vS+4+r_}, {sr(mA+2*r_,2)}' for r_ in range(4)]
        L += F(f'v_cndmask_b32 v{w_}, v{w_}, v{w_+1}, {sr(mA+8,2)}\nv_cndmask_b32 v{w_+1}, v{w_+2}, v{w_+3}, {sr(mA+8,2)}\nv_mul_f32 v{w_}, {f32(SC)}, v{w_}\nv_mul_f32 v{w_+1}, {f32(SC)}, v{w_+1}')
        if ps == 0: L += F(f'v_mov_b32 v{w_+2}, {f32(-1e9)}\nv_cndmask_b32 v{w_}, v{w_}, v{w_+2}, {sr(mA+10,2)}\nv_cndmask_b32 v{w_+1}, v{w_+1}, v{w_+2}, {sr(mA+12,2)}')
        def xred(o_):
            R2 = []
            for sw_ in (16, 32): R2 += [f'v_mov_b32 v{w_+3}, v{w_+2}', ('gap', 1), f'v_permlane{sw_}_swap_b32 v{w_+2}, v{w_+3}', f'{o_} v{w_+2}, v{w_+2}, v{w_+3}']
            return R2
        L += [f'v_max_f32 v{w_+2}, v{w_}, v{w_+1}'] + xred('v_max_f32')
        L += F(f'v_sub_f32 v{w_}, v{w_}, v{w_+2}\nv_sub_f32 v{w_+1}, v{w_+1}, v{w_+2}\nv_exp_f32 v{w_}, v{w_}\nv_exp_f32 v{w_+1}, v{w_+1}') + [('gap', 1), f'v_add_f32 v{w_+2}, v{w_}, v{w_+1}'] + xred('v_add_f32')
        L += [f'v_rcp_f32 v{w_+2}, v{w_+2}', ('gap', 1)] + F(f'v_mul_f32 v{w_}, v{w_}, v{w_+2}\nv_mul_f32 v{w_+1}, v{w_+1}, v{w_+2}\nv_cvt_pk_bf16_f32 v{w_}, v{w_}, v{w_}\nv_cvt_pk_bf16_f32 v{w_+1}, v{w_+1}, v{w_+1}')
        L += [f'v_and_b32 v{vQ+i}, v{vM+i}, v{w_+(i&1)}' for i in range(4)] + [('gap', 1), mf_(vK, vV, vQ), mf_(vK + 4, vV + 4, vQ), ('gap', 4)]
        L += [f'v_cvt_pk_bf16_f32 v{vS+i}, v{vK+2*i}, v{vK+2*i+1}' for i in range(4)]
        L.append(lambda vS=vS, ps=ps: p.vm(f'buffer_store_dwordx4 {vr(vS,4)}, v{vl16}, {sr(sWS,4)}, {sr(soo)} offen sc1', ('os', ps)))
        L.append(f's_add_u32 {sr(soo)}, {sr(soo)}, 65536')
        e_ = st.fill(L, ab[ps] + 1, cap=cfg.get('acap', (2, 2, 3, 7))[ps])
        I[('ae', ps)] = e_
        assert ps > 1 or e_ < I[('st', ps + 2)] - 1, (ps, e_)
        if ps == 3: st.at(e_ + cfg.get('opub', (0, 70, 10, 28))[ps], pub_op(k, sWS, vpb, sfl, [('os', ps)], add=ps))
        elif ps: I[('pb', ps)] = pub_at(e_ + cfg.get('opub', (0, 70, 10, 28))[ps], [('os', ps)], sfl, ps)
    assert I[('ae', 0)] + 2 < jp and jp + 7 * JS + 18 < P[2] or I[('ae', 1)] + 2 < jp and jp + 7 * JS + 18 < P[3], (I, jp)
    JB = ACC + 24 * (0 if jp < P[2] else 1)
    st.at(jp - 2, f'v_lshrrev_b32 v{JB+12}, 4, v{vl}\nv_lshlrev_b32 v{JB+12}, 4, v{JB+12}')
    st.at(jp - 1, f'v_add_u32 v{JB+13}, {JT}, v{JB+12}')
    for ks in range(8):
        s = jp + JS * ks
        st.at(s + 2, lambda ks=ks: p.lg(f'ds_read_b128 {vr(JB+4*(ks%2),4)}, v{JB+13} offset:{64*ks}', ('jb', ks), r=(JT, JT + 512)))
        st.at(s + 11, lambda ks=ks: (p.wait(lg=[('jb', ks)]), p.ins(f'{MFMA} {vr(JB+8,4)}, {vr(TMP+4*(ks%2),4)}, {vr(JB+4*(ks%2),4)}, {vr(JB+8,4) if ks else 0}')))
    L = F(f'v_and_b32 v{JB+14}, 15, v{vl}\nv_lshl_add_u32 v{JB+12}, v{JB+14}, 27, v{JB+12}')
    L += F(f's_lshr_b32 {sr(s0)}, s2, 2\ns_lshl_b32 {sr(s2_)}, {sr(s0)}, 7\ns_lshl_b32 {sr(s0)}, {sr(s0)}, 8\ns_and_b32 {sr(s1)}, s2, 3\ns_mul_i32 {sr(sjo+1)}, {sr(s1)}, {6144*4}\ns_add_u32 {sr(s0)}, {sr(s0)}, {sr(sjo+1)}\ns_lshl_b32 {sr(sjo+1)}, {sr(sw)}, 6\ns_add_u32 {sr(s0)}, {sr(s0)}, {sr(sjo+1)}\ns_add_u32 {sr(s0)}, {sr(s0)}, {32*256}')
    L += F(f's_lshl_b32 {sr(s1)}, {sr(s1)}, 2\ns_add_u32 {sr(s2_)}, {sr(s2_)}, {sr(s1)}\ns_add_u32 {sr(s2_)}, {sr(s2_)}, {FL_J}')
    L.append(f's_cmp_eq_u32 {sr(sw)}, 0\ns_cselect_b32 {sr(sjo+1)}, {sr(s2_)}, {OOB}')
    L += [('from', jp + 7 * JS + 15), lambda: p.vm(f'buffer_store_dwordx4 {vr(JB+8,4)}, v{JB+12}, {sr(sWS,4)}, {sr(s0)} offen sc1', 'js')]
    su3_beg = max(su3_beg, I[('ae', 1)] + 3)
    e3 = st.fill(su3, su3_beg); assert e3 < su3_end and (I[('ae', 2)] + 1 < jc - cfg.get('jpd', 45) or e3 < jc - 62 and jc < P[3]) and su3_beg > I[('ae', 1)] + 2 and su3_beg > max(o['t'] for o in ops if o['id'][0][0] == 'j'), e3
    e_ = st.fill(L, max(jp + 20, e3 + 1) if il else jp + 20)
    jbar = min(b_ for b_ in bars if b_ > e_ + 50)
    W.bw[jbar].append('js'); st.at(jbar + 1, pub_op(k, sWS, vpb, sjo + 1, []))
    L = [lambda: p.wait(vm=[('g', q) for q in range(NPART)])]
    L += F(f'v_add_f32 v{vg}, v{vg}, v{vg+1}\nv_add_f32 v{vg+2}, v{vg+2}, v{vg+3}\nv_add_f32 v{vg}, v{vg}, v{vg+2}') + rb(vg) + F(f'v_cvt_f32_u32 v{vgo}, v{vgo}\nv_add_f32 v{vg}, v{vg}, v{vgo}') + rb(vg)
    L += F(f's_lshl_b32 {sr(s2_)}, {sr(sw)}, 8\ns_add_u32 {sr(s2_)}, {sr(s2_)}, {GL2}\nv_lshl_add_u32 v{vst}, v{vl}, 2, {sr(s2_)}\nv_lshrrev_b32 v{vg+1}, 4, v{vl}\nv_lshl_add_u32 v{vgo}, v{vg+1}, 4, {sr(s2_)}')
    L.append(lambda: p.lg(f'ds_write_b32 v{vst}, v{vg}', None, w=(GL2, GL2 + 1024), priv=True))
    L += F(f'v_bfe_u32 v{vst}, v{vl}, 2, 2\nv_xor_b32 v{vst}, v{vst}, v{vg+1}\nv_lshlrev_b32 v{vst}, 27, v{vst}\nv_and_b32 v{vg+2}, 15, v{vl}\nv_lshl_add_u32 v{vst}, v{vg+2}, 4, v{vst}')
    L += F(f's_and_b32 {sr(s2_)}, {sr(sw)}, 1\ns_lshl_b32 {sr(s2_)}, {sr(s2_)}, 11\nv_add_u32 v{vst+2}, {sr(s2_)}, v{vl16}\ns_and_b32 {sr(s2_)}, {sr(sw)}, 2\ns_lshl_b32 {sr(s2_)}, {sr(s2_)}, 9\ns_add_u32 {sr(s2_)}, {sr(s2_)}, {XST}\nv_add_u32 v{vst+2}, {sr(s2_)}, v{vst+2}')
    L += [lambda i=i: p.lg(f'ds_read_b128 {vr(vg+4*i,4)}, v{vgo} offset:{64*i}', ('gl', i), r=(GL2, GL2 + 1024), priv=True) for i in range(4)]
    L += [f'v_mov_b32 v{vone2+i}, 0x3f803f80' for i in range(4)] + m64(mA + 10, lanemask(lambda l: l & 2))
    e_ = st.fill(L, max(tx + 50, I[('ae', 3)] + 1), cap=3); assert e_ < Q[1] + 25, e_
    dst_ = []
    def epi2(j):
        xa = vxa + 4 * j; y2 = Y2 + 4 * j; d1 = D1 + 2 * j
        ST = (lambda o: L.append(o)) if j == 3 or not cfg.get('defer', 0) else dst_.append
        L = [lambda: p.wait(vm=[('xa', j)], lg=[('gl', 3)])]
        for i in range(4): L += F(f'v_lshlrev_b32 v{f2+2*i}, 16, v{xa+i}\nv_and_b32 v{f2+2*i+1}, 0xffff0000, v{xa+i}')
        L.append(('from', (Q + [N])[j + 1] + 2))
        L += [f'v_fmac_f32 v{f2+i}, v{vg+i}, v{acc2(j,0)+i}' for i in range(8)]
        a2 = acc2(j, 0)
        L += [f'v_mul_f32 v{a2+i}, v{f2+i}, v{vc2+i}' for i in range(8)]
        L += [f'v_cvt_pk_bf16_f32 v{y2+i}, v{a2+2*i}, v{a2+2*i+1}' for i in range(4)]
        ST(op(lambda: (p.ins(f's_add_u32 {sr(s2_)}, {sr(sy)}, {WS_Y + 65536 * j}'), p.vm(f'buffer_store_dwordx4 {vr(y2,4)}, v{vl16}, {sr(sWS,4)}, {sr(s2_)} offen sc1', ('ys', j, 0))), 'sW'))
        L += [f'v_cvt_pk_bf16_f32 v{xa+i}, v{f2+2*i}, v{f2+2*i+1}' for i in range(4)] + [('gap', 1), mf_(d1, vone2, xa), mf_(d2, xa, xa), ('gap', 3)]
        L += F(f'v_cndmask_b32 v{d2}, v{d2}, v{d2+1}, {sr(mA+8,2)}\nv_cndmask_b32 v{d2+2}, v{d2+2}, v{d2+3}, {sr(mA+8,2)}\nv_cndmask_b32 v{d1+1}, v{d2}, v{d2+2}, {sr(mA+10,2)}')
        if j & 1: L.append(lambda: p.vm(f'buffer_store_dwordx4 {vr(d1-2,4)}, v{vst}, {sr(sWS,4)}, {sr(sy+1)} offen offset:{256*(j//2)} sc1', 'y2'))
        k.stash = getattr(k, 'stash', []) + [lambda: p.lg(f'ds_write_b128 v{vst+2}, {vr(xa,4)} offset:{4096*j}', None, w=(XST + 4096 * j, XST + 4096 * j + 4096))]
        return L
    for j in range(3):
        e_ = st.fill(epi2(j), max(e_ + 1, Q[j + 1] - 12), cap=cfg.get('ecap', (3, 5, 3))[j]); assert e_ < (Q + [N])[j + 2] - (10 if j == 2 else 0), (j, e_)
    d0, dstp = cfg.get('dst', (-8, 4))
    for i, o in enumerate(dst_): st.at(max(Q[3] + d0 + dstp * i, e_ + 1 if i >= 2 else 0), o)
    L3 = epi2(3); st.fill(L3[:9], max(e_ + 1, N - 20))
    k.NP = cfg.get('NP', 2)
    if k.NP:
        st.at(T0 + cfg.get('epub', 174) - 1, f's_sub_u32 {sr(soo)}, {sr(sy+2)}, {FL_Y - FL_E}')
        pub_at(T0 + cfg.get('epub', 174), [('ys', j, 0) for j in range(2)], soo)
    k.look = 0
    if k.NP and k.look:
        st.at(N - 40, f's_lshr_b32 {sr(sfl+3)}, s2, 5\ns_lshl_b32 {sr(sfl+3)}, {sr(sfl+3)}, 12\ns_add_u32 {sr(sfl+3)}, {sr(sfl+3)}, {FL_Y}')
        st.at(N - 38, f'v_and_b32 v{vp+1}, 31, v{vl}\nv_lshlrev_b32 v{vp+1}, 7, v{vp+1}')
        st.at(N - k.look, lambda: p.vm(f'buffer_load_dword v{vp}, v{vp+1}, {sr(sWS,4)}, {sr(sfl+3)} offen sc1', 'ple0'))
    p.wait(vm=[('D', u, i) for u in first for i in range(len(W.units[u]['dmas']))], lg='all'); p.bar()
    for s, _, f in early:
        if s > -100: f()
    for i, nm in tuple(cfg.get('marks', ())) + ((1, 'g1_m1'), (P[1], 'g1_p1'), (P[2], 'g1_p2'), (P[3], 'g1_p3'), (T0, 'g2_q0'), (Q[1], 'g2_q1'), (Q[2], 'g2_q2'), (Q[3], 'g2_q3')):
        st.pre.setdefault(i, []).insert(0, f';@T {nm}')
    st.emit()
    p.T('g2_end')
    for o in L3[10:]:
        if not isinstance(o, tuple): p.ins(o) if isinstance(o, str) else o()
    k.st = st; k.I = I
    if nxt:
        k.ypub = pub_op(k, sWS, 9, sy + 2, [('ys', j, 0) for j in range(4)] + ['y2'])
        k.st1 = st; k.vops1 = k.vops; k.bars1 = bars
        S.next = smark
        return nxt(k)
    k.end()
    return k
```

```python
from kernels import *
from eng import *
LN2C = 0.6931471805599453
WS_XC4 = 0x4000000
WSZ = 0x8000000
OOB = 0x40000000
FL_A = WS_FL + 32768
FL_X = 0xE0000
FL_M = WS_FL + 5 * 32768; FL_U = 0xD8000; FL_A2 = 0x30000; FL_E = 0x38000
WS_XA = 0x2800000
WS_ST2 = 0x600000
WS_UT3 = 0x2C00000
FL_O = WS_FL; FL_J = WS_FL + 2 * 32768; FL_Y = WS_FL + 3 * 32768; FL_H = WS_FL + 4 * 32768
WS_KV = 0x500000; WS_MP8 = 0x20000; WS_TOK = WS_FL + 6 * 32768
XST = 132 * 1024
QKV = 128 * 1024; JT = 157 * 1024; GL2 = 158 * 1024; LB = 148 * 1024; LS = 156 * 1024
F = lambda txt: txt.split('\n')
rb = lambda r: F(f'v_cvt_pk_bf16_f32 {vr(r)}, {vr(r)}, {vr(r)}\nv_lshlrev_b32 {vr(r)}, 16, {vr(r)}')

class K4(K):
    def __init__(self, name):
        K.__init__(self, name, 256, 256, 256)
        it = self.p.items
        self.p = Prog2(); self.p.items = it
        self.S = Regs('s', 4, 94)
        self.lds = 160 * 1024
        self.nlab = 0
    def lab(self, s):
        self.nlab += 1
        return f'{s}{self.nlab}_{self.name}'
    def text(self):
        t = self.p.text()
        ev, errs, ep = self.p.events()
        errs += check_lds([ev]) + self.p.check_chains()
        for e in errs[:20]: print('VERIFY:', e)
        assert not errs, f'{len(errs)} verifier errors'
        rep = []
        out, n = fix_hazards(t.split('\n'), rep)
        self.nops = rep
        return '.p2align 8\n' + '\n'.join(out).replace(' ; M\n', '\n').replace(' ; cond\n', '\n')
    def desc(self, minv=0):
        return kdesc(self.name, 512, 102, 256)

def poll_gen(k, ld, tst, tag, scnt, wg, bar=True):
    p = k.p; sw = k.common['sw']
    def issue():
        if not wg: return p.vm(ld, tag)
        soff = ld.split(', ')[3].split(' ')[0]
        p.ins(f's_lshl_b32 {sr(scnt)}, {sr(sw)}, 28' + (f'\ns_add_u32 {sr(scnt)}, {sr(scnt)}, {soff}' if soff != '0' else ''))
        p.vm(ld.replace(f', {soff} offen', f', {sr(scnt)} offen'), tag)
    def check():
        L = k.lab('PL')
        p.wait(vm=[tag])
        if wg: p.ins(f's_cmp_lg_u32 {sr(sw)}, 0\ns_cbranch_scc1 {L}x')
        p.ins(f'{tst}\ns_cbranch_vccz {L}x\ns_mov_b32 {sr(scnt)}, 60000')
        p.label(L)
        p.ins(f'{ld} ; cond\ns_sub_u32 {sr(scnt)}, {sr(scnt)}, 1\ns_cmp_eq_u32 {sr(scnt)}, 0\ns_waitcnt vmcnt(0) ; cond\ns_cbranch_scc1 {L}x\n{tst}\ns_cbranch_vccnz {L}')
        p.label(L + 'x')
        if wg and bar: p.bar()
    return op(issue, 'ssm' if wg else 'm'), op(check, 7)

def poll_ops(k, sWS, vp, soff, tag, scnt, cmp=None, wg=True, va=None, bar=True):
    ld = f'buffer_load_dword {vr(vp)}, {vr(va or vp+1)}, {sr(sWS,4)}, {sr(soff) if soff is not None else 0} offen sc1'
    return poll_gen(k, ld, cmp or f'v_cmp_ne_u32 vcc, {sr(k.tok)}, {vr(vp)}', tag, scnt, wg, bar)

def poll4_ops(k, sWS, vd, va, tag, scnt, bar=True):
    ld = f'buffer_load_dwordx4 {vr(vd,4)}, {vr(va)}, {sr(sWS,4)}, 0 offen sc1'
    tst = f'v_bitop3_b32 v{vd}, v{vd}, v{vd+1}, {sr(k.tok)} bitop3:0x7e\nv_bitop3_b32 v{vd+2}, v{vd+2}, v{vd+3}, {sr(k.tok)} bitop3:0x7e\nv_or_b32 v{vd}, v{vd}, v{vd+2}\nv_cmp_ne_u32 vcc, 0, v{vd}'
    return poll_gen(k, ld, tst, tag, scnt, True, bar)

def pub_op(k, sWS, vt, soff, tags, imm=0, add=0, wg=True):
    p = k.p
    def f():
        p.ins(f'v_add_u32 {vr(vt)}, {sr(k.tok)}, v0' + (f'\nv_add_u32 {vr(vt)}, {add}, {vr(vt)}' if add else ''))
        if tags: p.wait(vm=tags)
        if tags and wg: p.bar()
        p.ins('s_mov_b64 exec, 1')
        p.vm(f'buffer_store_dword {vr(vt)}, v0, {sr(sWS,4)}, {sr(soff)} offen offset:{imm} sc1')
        p.ins('s_mov_b64 exec, -1')
    return op(f, 6)

def code_op(k, vt, vl16, sp):
    p = k.p
    L = k.lab('CT')
    p.ins(f's_getpc_b64 {sr(sp,2)}')
    p.label(L)
    p.ins(f's_min_u32 {sr(sp+2)}, {sr(sp+3)}, code_end-{L}\ns_add_u32 {sr(sp)}, {sr(sp)}, {sr(sp+2)}\ns_addc_u32 {sr(sp+1)}, {sr(sp+1)}, 0')
    p.ins(f'v_and_b32 v{vt}, 0x70, v{vl16}\nv_lshlrev_b32 v{vt}, 3, v{vt}')
    p.vm(f'global_load_dword a253, v{vt}, {sr(sp,2)}', 'dummy')

class WS_:
    def __init__(self, st, pool):
        self.st, self.p = st, st.p
        self.pool = {r: -10**6 for r in pool}; self.until = {}
        self.units = {}; self.nf = 0; self.early = []; self.groups = []
    def unit(self, u, lo, hi, dmas, e=0, wt=1):
        self.units[u] = dict(lo=lo, hi=hi, dmas=dmas, fr=None, lr=None, e=e, wt=wt)
    def rd(self, us, s, lr, text, tag, rng):
        f = lambda: self.p.lg(text, tag, r=rng)
        if s < 0: self.early.append((s, len(self.early), f))
        else: self.st.at(s, f)
        assert min(self.units[u]['lo'] for u in us) <= rng[0] and rng[1] <= max(self.units[u]['hi'] for u in us), (us, rng)
        for u in us:
            U = self.units[u]
            U['fr'] = s if U['fr'] is None else min(U['fr'], s)
            U['lr'] = lr if U['lr'] is None else max(U['lr'], lr)
    def group(self, frags, mf, LA, wait=True, vm=(), lg=(), kind='tr'):
        st, p = self.st, self.p
        s0 = st.n(); ids = [self.nf + i for i in range(len(frags))]; self.nf += len(frags)
        n = len(mf); per = 2 if kind == 'tr' else 1; nr = per * len(frags)
        while True:
            reg = []; pool = dict(self.pool)
            for i in range(len(frags)):
                s = s0 - LA + per * i * n // nr
                lu = s0 + max(x for x, m in enumerate(mf) if ('f', i) in m[1:])
                c = [r for r in pool if pool[r] <= s and lu < self.until.get(r, 10**9)]
                if not c: break
                r = min(c, key=lambda r: pool[r]); pool[r] = lu; reg.append(r)
            if len(reg) == len(frags): break
            LA -= 1; assert LA > (nr - 1) * n // nr + 3, ('fragment pool too small', s0)
        self.pool = pool
        for c, a, b in mf:
            st.mfma(c, reg[a[1]] if isinstance(a, tuple) else a, reg[b[1]] if isinstance(b, tuple) else b)
        for i, fr in enumerate(frags):
            u, ar, base, off = fr[:4]
            for h in range(per):
                s = s0 - LA + (per * i + h) * n // nr
                o = off + 2048 * h
                assert 0 <= o < 65536
                if kind == 'tr': self.rd([u], s, s0, f'ds_read_b64_tr_b16 {vr(reg[i] + 2 * h,2)}, {vr(ar)} offset:{o}', ('W', ids[i], h), (base + o, base + o + 2048))
                else: self.rd([u], s, s0, f'ds_read_b128 {vr(reg[i],4)}, {vr(ar)} offset:{o}', ('W', ids[i], 1), (base + o, base + o + (fr[4] if len(fr) > 4 else 1024)))
        self.groups.append(dict(s0=s0, ids=ids, wait=wait, vm=list(vm), lg=list(lg)))
        return s0
    def finish_waits(self):
        g = self.groups; i = 0
        while i < len(g):
            j = i + 1
            while j < len(g) and not g[j]['wait']: j += 1
            lg = [('W', f, 1) for x in g[i:j] for f in x['ids']] + [t for x in g[i:j] for t in x['lg']]; vm = [t for x in g[i:j] for t in x['vm']]
            self.st.before(g[i]['s0'], lambda lg=lg, vm=vm: self.p.wait(vm=vm or None, lg=lg))
            i = j
    def dma_ops(self, bars, pre_done=()):
        st, p = self.st, self.p
        ops = []; bw = {b: [] for b in bars}
        order = sorted(self.units, key=lambda u: self.units[u]['fr'])
        for n_, u in enumerate(order):
            U = self.units[u]
            tags = [('D', u, i) for i in range(len(U['dmas']))]
            if U['fr'] < 0 or U.get('vis'): continue
            if U['fr'] >= st.n(): dl = U['fr']
            else:
                dl = max(b for b in bars if b < U['fr'])
                bw[dl] += tags
            if u in pre_done: continue
            e = U['e']
            for v in order[:n_]:
                X = self.units[v]
                if X['lo'] < U['hi'] and U['lo'] < X['hi'] and X['lr'] >= 0:
                    e = max(e, min([b for b in bars if b >= X['lr']] + [st.n()]) + 1)
            for i, (pre, main) in enumerate(U['dmas']):
                ops.append(dict(e=e, dl=dl, pre=pre, main=main, id=(u, i), wt=U['wt']))
        for U in self.units.values():
            if U.get('force'): bw[min(b for b in bars if b >= U['lr'])].append(('lg', U['force']))
        self.bw = bw
        for b in bars:
            def f(b=b):
                x = self.bw[b]
                lgs = [t[1] for t in x if t[0] == 'lg']; vms = [t for t in x if t[0] != 'lg']
                if x: p.wait(vm=vms or None, lg=lgs or None)
                p.bar()
            st.last(b, op(f, 2))
        return ops
    def place_bars(self, bars, pre_done, target):
        bars = set(bars); n = self.st.n()
        order = sorted(self.units, key=lambda u: self.units[u]['fr'])
        for n_, u in enumerate(order):
            U = self.units[u]
            if U['fr'] < 0 or U.get('vis') or U['fr'] >= n: continue
            pl = max([X['lr'] for X in (self.units[v] for v in order[:n_]) if X['lo'] < U['hi'] and U['lo'] < X['hi']] + [-1])
            def win(B):
                e = -20 if u in pre_done else max(U['e'], min([b for b in B if b >= pl] + [10**6]) + 1 if pl >= 0 else 0)
                return max([b for b in B if b < U['fr']] + [-10**6]) - e
            for _ in range(2):
                if win(bars) >= target(U['fr']): break
                c = [x for x in (U['fr'] - 1, pl) if x >= 0 and x not in bars]
                if not c: break
                x = max(c, key=lambda x: win(bars | {x}))
                if win(bars | {x}) >= win(bars) + 8 or win(bars) < 16: bars.add(x)
        return sorted(bars)
    def emit_early(self):
        for _, _, f in sorted(self.early, key=lambda x: x[:2]): f()

def zig(n, nm, flip):
    out = []
    for mi in range(nm):
        m = nm - 1 - mi if flip else mi
        out += [(m, j) for j in (range(n) if mi % 2 == 0 else range(n - 1, -1, -1))]
    return out

def g3_early(k, s0, s1, sv, T, oob):
    p = k.p; C = k.common; sw = C['sw']; vl = 0; vdA, vdB = 16, 11
    L = F(f'v_lshrrev_b32 v{T}, 3, v{vl}\nv_bfe_u32 v{T+1}, v{T}, 1, 2\nv_bfe_u32 v{T+2}, v{vl}, 1, 2\nv_xor_b32 v{T+1}, v{T+1}, v{T+2}')
    L += F(f's_lshl_b32 {sr(s0)}, {sr(sw)}, 3\nv_add_u32 v{T}, {sr(s0)}, v{T}\nv_mul_u32_u24 v{T}, 7168, v{T}\nv_and_b32 v{T+2}, 1, v{vl}\nv_lshl_add_u32 v{T}, v{T+2}, 4, v{T}')
    L += F(f's_and_b32 {sr(s0)}, s2, 7\ns_mul_i32 {sr(s0)}, {sr(s0)}, 896\nv_add_u32 v{T}, {sr(s0)}, v{T}\nv_lshlrev_b32 v{T+2}, 5, v{T+1}')
    L += F(f's_and_b32 {sr(s1)}, s2, 24\ns_lshl_b32 {sr(s0)}, {sr(s1)}, 5\nv_add3_u32 v{vdA}, v{T}, v{T+2}, {sr(s0)}')
    L += F(f's_lshr_b32 {sr(s0)}, 0x0b070602, {sr(s1)}\ns_and_b32 {sr(s0)}, {sr(s0)}, 15\ns_lshl_b32 {sr(s0)}, {sr(s0)}, 6\nv_add_u32 v{T+2}, {sr(s0)}, v{T+2}')
    L += F(f's_lshr_b32 {sr(s0)}, 0x15140706, {sr(s1)}\ns_and_b32 {sr(s0)}, {sr(s0)}, 31\ns_lshl_b32 {sr(s0)}, {sr(s0)}, 5\nv_mov_b32 v{T+3}, {sr(s0)}')
    L += [f'v_cmp_gt_u32 vcc, 2, v{T+1}\nv_cndmask_b32 v{T+2}, v{T+3}, v{T+2}, vcc', f'v_add_u32 v{vdB}, v{T}, v{T+2}']
    if oob: L += F(f'v_add_u32 v{T+1}, 1, v{T+1}\nv_lshrrev_b32 v{T+1}, 2, v{T+1}\nv_lshl_add_u32 v{vdB}, v{T+1}, 30, v{vdB}')
    def dmas(ts, g):
        u = (3, ts, g); lo = 65536 * g + k.perm[g][ts] * 16384; out = []
        for jq in range(2):
            for mat in range(2):
                dst = lo + mat * 8192 + jq * 4096
                pre = lambda dst=dst, jq=jq: p.ins(f's_mov_b32 {sr(sv)}, {(2 * ts + jq) * 32 * 7168}\ns_add_u32 m0, {sr(C["sWL"])}, {dst}')
                main = lambda dst=dst, mat=mat, i=2 * jq + mat: p.vm(f'buffer_load_dwordx4 v{(vdA, vdB)[g]}, {sr((C["sWg"], C["sWu"])[mat],4)}, {sr(sv)} offen lds', ('D', u, i), w=(dst, dst + 4096))
                out.append((op(pre, 2), main))
        return u, lo, lo + 16384, out
    return L, dmas

def k_g34(cfg, k):
    p, S = k.p, k.S; MX[0] = cfg.get('mx', 0)
    sWS, sWg, sWu, sWd, sOut, sw, sWL = (k.common[x] for x in ('sWS', 'sWg', 'sWu', 'sWd', 'sOut', 'sw', 'sWL'))
    sm = S.alloc('mt'); sq = S.alloc('q'); sx = S.alloc('xcd'); s0 = S.alloc('t0'); s1 = S.alloc('t1'); s2_ = S.alloc('t2')
    sLead = S.alloc('lead'); sAb = S.alloc('ab'); sO = S.alloc('so', 3); sv = S.alloc('vm', 2); sst = S.alloc('st')
    NC = 8; sCW = S.alloc('cw', NC); sCA = S.alloc('ca', NC); sfl = S.alloc('fl', 4)
    vl16, wa, vdA, vdB, vub, vt, vs, ut, ACC = 1, 2, 10, 11, 12, 13, 16, 24, 32
    POS = {6: 0, 4: 1, 5: 2, 0: 3, 1: 4, 2: 5, 3: 6}
    accr = lambda s_, g, m: ACC + 32 * POS[s_] + 16 * g + 4 * m
    DAS = 5; AB = A0; WB = A0 + 160; R = 6
    UT = 128 * 1024; GL = UT + 2048; XL = XST
    lf = 'sc1'
    vl = 0
    assert MBS[0] == 32768
    st = Stream(p); W = WS_(st, [WB + 4 * i for i in range(R)])
    n3 = 16; FS = 4
    done3 = set()
    def lead3(ts):
        if ts < 4 or cfg.get('nolead3'): return ts
        return ts + 4 if ts + 4 < n3 else 4 + ts % 4
    def chunk3(ts):
        if ts in done3: return
        done3.add(ts)
        cw, ca = sCW + ts % NC, sCA + ts % NC; lc = lead3(ts)
        if lc == ts: p.ins(f's_mov_b32 {sr(cw)}, {ts * 64 * 7168}\ns_add_u32 {sr(ca)}, {sr(sAb)}, {ts * 2048}')
        else: p.ins(f's_cmp_eq_u32 {sr(sLead)}, {ts % 4}\ns_cselect_b32 {sr(ca)}, {lc}, {ts}\ns_mul_i32 {sr(cw)}, {sr(ca)}, {64 * 7168}\ns_lshl_b32 {sr(ca)}, {sr(ca)}, 11\ns_add_u32 {sr(ca)}, {sr(ca)}, {sr(sAb)}')
    def dma(u, i, chunk, ts, cw, srd, vo, dst, goff):
        def pre():
            chunk(ts)
            p.ins(f's_add_u32 m0, {sr(sWL)}, {dst}')
            if goff: p.ins(f's_add_u32 {sr(sv)}, {sr(cw)}, {goff}')
        main = lambda: p.vm(f'buffer_load_dwordx4 v{vo}, {sr(srd,4)}, {sr(sv if goff else cw)} offen lds', ('D', u, i), w=(dst, dst + 4096))
        return op(pre, 2 if goff else 1), main
    nl = cfg.get('nolate', 1)
    sw3 = lambda g, i: 65536 * g + k.perm[g][i % 4] * 16384
    lo3 = lambda ts, g: sw3(1, 0) if nl and (ts, g) == (n3 - 1, 0) else sw3(g, ts)
    for ts in range(n3):
        for g, (vo, base) in enumerate(((vdA, 0), (vdB, 65536))):
            u = (3, ts, g); lo = lo3(ts, g)
            W.unit(u, lo, lo + 16384, [dma(u, 2 * jq + mat, chunk3, ts, sCW + ts % NC, (sWg, sWu)[mat], vo, lo + mat * 8192 + jq * 4096, jq * 32 * 7168) for jq in range(2) for mat in range(2)])
    bl = cfg.get('bl', 0)
    ab3 = lambda ts, j, m: (A0 + 188 if nl and ts == n3 - 1 else A0 + 220 if bl and ts == n3 - 2 else AB + (ts % DAS) * 32) + (j * 4 + m) * 4
    seenA = set(); firstA = {}; lastA = {}; firstM = {}; NP = k.NP
    LA = cfg.get('LA', 18)
    def grp(ph, ts, u, ar, base, off, acc, ab, ms=(0, 1, 2, 3), la=None):
        fr = [(u, ar, base, off + j * 4096) for j in range(2)]
        mf = [(acc(ms[m]), ('f', j), ab(ts, j, ms[m])) for m, j in zig(2, len(ms), len(W.groups) % 2)]
        vm = [('A', ph, ts, j, m) for j in range(2) for m in ms if (ph, ts, m) not in seenA]
        seenA.update((ph, ts, m) for m in ms)
        s = W.group(fr, mf, la or LA, vm=vm, wait=len(ms) == 4 or len(W.groups) % 2 == 0 or not cfg.get('w2', 1))
        for m in ms: firstM.setdefault((ph, ts, m), s)
        firstA.setdefault((ph, ts), s); lastA[(ph, ts)] = s + len(mf) - 1
        return s
    def grp3(ts, s_, mat, ms=(0, 1, 2, 3), la=None):
        g = 0 if s_ < 4 else 1
        hi = lo3(ts, g) // 65536
        return grp(3, ts, (3, ts, g), wa + 4 * hi + s_ % 4, 65536 * hi, lo3(ts, g) % 65536 + mat * 8192, lambda m: accr(s_, mat, m), ab3, ms, la)
    visit = {}
    def part(ts, slots):
        for s_ in slots:
            for mat in range(2): visit[(ts, s_, mat)] = grp3(ts, s_, mat)
    for r_ in range(6):
        if NP: W.pool[A0 + 188 + 4 * r_] = -10**6; W.until[A0 + 188 + 4 * r_] = 112 * NP + 24
    for ms in ((0, 1), (2, 3)):
        for ts in range(NP):
            for s_ in (4, 5, 6, 0, 1, 2, 3):
                for mat in range(2): grp3(ts, s_, mat, ms, cfg.get('LAh', 16))
    B_, A_ = (4, 5, 6), (0, 1, 2, 3); zb0 = None
    for ts in range(NP, n3 - FS - 2 - 2 * bl): part(ts, B_ + A_)
    if bl: part(8, B_); part(9, B_); zb0 = st.n(); part(8, A_); part(10, B_); part(11, B_); zb = st.n(); part(9, A_)
    elif nl: part(n3 - FS - 2, B_); part(n3 - FS - 1, B_); zb = st.n(); part(n3 - FS - 2, A_)
    else: part(n3 - FS - 2, B_ + A_); part(n3 - FS - 1, B_)
    Ss = list(range(n3 - FS, n3))
    done = {}
    def pair(s_, sts):
        for ts in sts:
            for mat in range(2): e = grp3(ts, s_, mat)
        done[s_] = e + 7
    def late(a_, b_):
        if nl: pair(a_, Ss); pair(b_, Ss)
        else: pair(a_, Ss[:-1]); pair(b_, Ss[:-1]); pair(a_, Ss[-1:]); pair(b_, Ss[-1:])
    if not cfg.get('mvA', 1): part(n3 - FS - 1, (0, 1, 2, 3))
    z3 = st.n()
    late(6, 4)
    if bl: part(10, A_)
    pair(5, Ss)
    if cfg.get('mvA', 1):
        part(n3 - FS - 1, (0, 1, 2, 3)); late(0, 1)
    else:
        pair(0, Ss); pair(1, Ss)
    pair(2, Ss); pair(3, Ss)
    z4 = st.n()
    n4 = 14; FS4 = cfg.get('FS4', 4); NE = 6
    acc4 = lambda t, m: 64 + (t * 4 + m) * 4
    vd4, vp, vpx, vro, vxa, vgo, vl4, vsel, vg = 32, 36, 38, 40, 42, 46, 47, 52, 240
    sA4 = S.alloc('a4'); sro = S.alloc('ro'); sxo = S.alloc('xo', 2); sg4 = S.alloc('g4'); sst4 = S.alloc('st4'); sxl = S.alloc('xl'); sL4 = S.alloc('l4'); spf = S.alloc('pf')
    E = [7 * g + c for g in range(2) for c in (1, 3, 5)]; Lt = [7 * g + c for g in range(2) for c in (0, 2, 4, 6)]
    def lead4(ts):
        lst, i, P_ = (E, ts, 3) if ts < NE else (Lt, ts - NE, 4)
        if cfg.get('nolead4'): return lst[i], lst[i], 0
        return lst[i], lst[(i + P_) % len(lst)], i % P_
    done4 = set()
    def chunk4(ts):
        if ts in done4: return
        done4.add(ts)
        cw, ca = sCW + ts % NC, sCA + ts % NC; nat, lc, ld = lead4(ts)
        if nat == lc: p.ins(f's_mov_b32 {sr(cw)}, {nat << 17}\ns_add_u32 {sr(ca)}, {sr(sA4)}, {nat << 11}')
        else: p.ins(f's_cmp_eq_u32 {sr(sL4)}, {ld}\ns_cselect_b32 {sr(ca)}, {lc}, {nat}\ns_lshl_b32 {sr(cw)}, {sr(ca)}, 17\ns_lshl_b32 {sr(ca)}, {sr(ca)}, 11\ns_add_u32 {sr(ca)}, {sr(ca)}, {sr(sA4)}')
    s4t = [(1, 1), (1, 2), (1, 3), (0, 3), (0, 0), (0, 1), (0, 2), (1, 0)] if nl else [(1, i) for i in range(4)] + [(0, i) for i in range(4)]
    slot4 = lambda ts: sw3(*s4t[ts % 8])
    for ts in range(n4):
        for g in range(2):
            u = (4, ts, g); lo = slot4(ts) + g * 8192
            W.unit(u, lo, lo + 8192, [dma(u, jq, chunk4, ts, sCW + ts % NC, sWd, vd4 + g, lo + jq * 4096, jq * 32 * 2048) for jq in range(2)])
    bufs = ([] if bl else [(A0 + 220, 0)]) + [(ab3(ts, 0, 0), lastA[(3, ts)] + 1) for ts in range(n3 - DAS - 1 - bl, n3)] if nl else [(A0 + 188, 0), (A0 + 220, 0)] + [(AB + 32 * (ts % DAS), lastA[(3, ts)] + 1) for ts in range(n3 - DAS, n3)]
    NB = len(bufs)
    ab4 = lambda ts, j, m: bufs[ts % NB][0] + (j * 4 + m) * 4
    def grp4(ts, t, ms=(0, 1, 2, 3), la=None):
        g = t // 4; base = slot4(ts) // 65536 * 65536
        return grp(4, ts, (4, ts, g), wa + (4 if base else 0) + t % 4, base, slot4(ts) - base + g * 8192, lambda m: acc4(t, m), ab4, ms, la)
    for r_ in range(64, 192, 4): st.touched.discard(r_)
    for ts in range(n4 - FS4):
        for t in range(8): grp4(ts, t)
    zf = st.n()
    d4 = {}
    for ts in range(n4 - FS4, n4):
        for t in range(4): d4[(0, t)] = grp4(ts, t) + 7
    for r_ in range(16, 32, 4): W.pool[r_] = zf
    for ps, ms in ((1, (2, 3)), (2, (0, 1))):
        for ts in range(n4 - FS4, n4):
            for t in range(4, 8): d4[(ps, t)] = grp4(ts, t, ms, cfg.get('LAh', 16)) + 3
    N = st.n()
    W.finish_waits()
    bars = set()
    fr_ = lambda *u: W.units[u]['fr'] - 1
    if nl:
        for ts in range(1, n3 - FS - 1):
            if not (bl and ts == 9): bars.add(fr_(3, ts, 1))
        if bl: bars |= {zb0 - 8, fr_(3, 10, 0), lastA[(3, 10)] - 7}
        bars |= {zb - 8, fr_(3, n3 - FS, 1), fr_(3, n3 - 2, 1), fr_(3, n3 - FS - 1, 0), done[5] - 7, fr_(3, n3 - 1, 0), z4 - 7}
    else:
        for ts in range(1, n3 - FS): bars.add(fr_(3, ts, 1))
        bars |= {z3, fr_(3, n3 - 1, 1), fr_(3, n3 - 1, 0), done[5] + 1, z4 + 1, lastA[(3, n3 - FS - 1)] + 1}
    for ts in range(NP - 1): bars.add(56 * (NP + ts + 1) - 4)
    for ts in range(0, n4 - FS4, cfg.get('BS4', 2)): bars.add(fr_(4, ts, 0))
    for u in cfg.get('fb4', ((n4 - FS4, 0), (n4 - FS4 + 2, 0), (n4 - FS4, 1))): bars.add(fr_(4, *u))
    bars = sorted(bars)
    k.bars = bars
    extra = []
    def X(e, dl, main, pre=None): extra.append(dict(e=e, dl=dl, main=main, pre=pre, id='x'))
    PD = cfg.get('pd', 40)
    setup = F(f's_lshl_b32 {sr(sO)}, {sr(sq)}, 12\ns_lshl_b32 {sr(s1)}, {sr(sq)}, 3\ns_lshr_b32 {sr(s0)}, 0x0b070602, {sr(s1)}\ns_and_b32 {sr(s0)}, {sr(s0)}, 15\ns_lshl_b32 {sr(sO+1)}, {sr(s0)}, 10')
    setup += F(f's_lshr_b32 {sr(s0)}, {sr(sq)}, 1\ns_mul_i32 {sr(s0)}, {sr(s0)}, {7 * 1024}\ns_and_b32 {sr(s1)}, {sr(s1)}, 8\ns_add_u32 {sr(s0)}, {sr(s0)}, {sr(s1)}\ns_add_u32 {sr(sO+2)}, {sr(s0)}, {3 * 1024}')
    setup += F(f's_mul_i32 {sr(s0)}, {sr(sx)}, {14*1024}\ns_mul_i32 {sr(s1)}, {sr(sst)}, {MBS[1]}\ns_add_u32 {sr(s0)}, {sr(s0)}, {sr(s1)}\ns_add_u32 {sr(s0)}, {sr(s0)}, {WS_ACT}') + [f's_add_u32 {sr(sO+i)}, {sr(sO+i)}, {sr(s0)}' for i in range(3)]
    setup += F(f's_lshl_b32 {sr(sst)}, {sr(sm)}, 2\ns_add_u32 {sr(sst)}, {sr(sst)}, {sr(sw)}\ns_lshl_b32 {sr(sst)}, {sr(sst)}, 14\ns_add_u32 {sr(sst)}, {sr(sst)}, {WS_ST2}\nv_and_b32 v{vub}, 0x300, v{vl16}\nv_add_u32 v{vub}, v{vub}, v{vl16}')
    SA = A0 + 188
    th = cfg.get('th', (115, 430)); tb_ = cfg.get('ub', (70, 170, 280, 385)); UD = cfg.get('ud', 95)
    def stat(hf):
        for i in range(4):
            for h in range(2):
                pre = op(lambda i=i: p.ins(f's_add_u32 {sr(sv+1)}, {sr(sst)}, {8192 * hf + 2048 * i}'), 1)
                X(th[hf], th[hf] + 70, lambda i=i, h=h: p.vm(f'buffer_load_dwordx4 {vr(SA+8*i+4*h,4)}, v{vub}, {sr(sWS,4)}, {sr(sv+1)} offen offset:{256*h} {lf}', ('st', hf, i, h)), pre)
        fl = [lambda: p.wait(vm=[('st', hf, i, h) for i in range(4) for h in range(2)])]
        for i in range(4):
            if hf == 0 and i == 0: fl += [f'v_accvgpr_read_b32 v{vs+x}, {vr(SA+x)}' for x in range(8)]
            else: fl += [f'v_accvgpr_read_b32 v{ut+x}, {vr(SA+8*i+x)}' for x in range(8)] + [f'v_add_f32 v{vs+x}, v{vs+x}, v{ut+x}' for x in range(8)]
        if hf == 0: return fl
        for sw_, n_ in ((32, 4), (16, 2)):
            fl += [('gap', 1)] + [f'v_permlane{sw_}_swap_b32 v{vs+x}, v{vs+n_+x}' for x in range(n_)] + [f'v_add_f32 v{vs+x}, v{vs+x}, v{vs+n_+x}' for x in range(n_)]
        b = vs
        fl += F(f'v_mul_f32 v{b}, {f32(1/1024)}, v{b}\nv_mul_f32 v{b+1}, {f32(1/1024)}, v{b+1}\nv_fma_f32 v{b+1}, -v{b}, v{b}, v{b+1}\nv_max_f32 v{b+1}, 0, v{b+1}') + rb(b + 1) \
              + [f'v_add_f32 v{b+1}, {f32(1e-5)}, v{b+1}'] + rb(b + 1) + [f'v_sqrt_f32 v{b+1}, v{b+1}'] + rb(b) + rb(b + 1) + [f'v_sub_f32 v{b}, 0, v{b}']
        for sw_, n_ in ((16, 2), (32, 4)):
            fl += [f'v_mov_b32 v{vs+n_+x}, v{vs+x}' for x in range(n_)] + [('gap', 1)] + [f'v_permlane{sw_}_swap_b32 v{vs+x}, v{vs+n_+x}' for x in range(n_)]
        return fl + F(f'v_lshrrev_b32 v{vub}, 8, v{vl16}\nv_lshlrev_b32 v{vub}, 4, v{vub}\nv_add_u32 v{vub}, {UT}, v{vub}')
    sJ, sMk, uc, UDR = k.common['dead'][0], k.common['dead'][1], A0 + 184, A0 + 220
    mf_ = lambda d, a_, b_, c='0': op(lambda: p.ins(f'{MFMA} {vr(d,4)}, {vr(a_,4)}, {vr(b_,4)}, {c}'), 'M')
    def burst(bi):
        for i in range(4):
            pre = op(lambda i=i: p.ins(f's_mov_b32 {sr(sv+1)}, {7168 * (4 * bi + i)}'), 1)
            X(tb_[bi], tb_[bi] + 30, lambda i=i: p.vm(f'buffer_load_dwordx4 {vr(UDR+16*(bi&1)+4*i,4)}, v{vt}, {sr(sJ,4)}, {sr(sv+1)} offen {cfg.get("ufl", "")}', ('ud', bi, i)), pre)
            extra[-1]['wt'] = cfg.get('uwt', 6) if i == 3 else 0.4
        L = [lambda: p.lg(f'ds_read_b128 {vr(ut,4)}, v{vt+1} offset:{16*bi}', ('uv', bi), r=(LB, LB + 4096), priv=True), ('gap', 6), lambda: p.wait(vm=[('ud', bi, 3)], lg=[('uv', bi)])]
        for i in range(4):
            L += [f'v_cndmask_b32 v{ut+4+r_}, 0, v{ut+i}, {sr(sMk+2*r_,2)}' for r_ in range(4)] + [('gap', 1), mf_(uc, ut + 4, UDR + 16 * (bi & 1) + 4 * i, vr(uc, 4) if bi or i else '0')]
        return L
    chains = sorted([(th[hf] + cfg.get('sd', 100), stat(hf), f's{hf}') for hf in range(2)] + [(tb_[bi] + UD, burst(bi), f'b{bi}') for bi in range(4)], key=lambda x: x[0])
    ufin = F(f's_bfe_u32 {sr(s0)}, s2, 0x20004\ns_lshl_b32 {sr(s0)}, {sr(s0)}, 9\nv_and_b32 v{vt+1}, 15, v{vl}\nv_lshl_add_u32 v{vt+1}, v{vt+1}, 5, {sr(s0)}')
    ufin += [f'v_cmp_gt_u32 vcc, {448 * 4}, v{vt+1}\nv_mov_b32 v{vt+2}, {WSZ}\nv_bfe_u32 v{vt}, v{vl}, 4, 1\nv_cndmask_b32 v{vt+1}, v{vt+2}, v{vt+1}, vcc']
    ufin += F(f'v_lshl_add_u32 v{vt+1}, v{vt}, 4, v{vt+1}\nv_lshrrev_b32 v{vt}, 5, v{vl}\nv_mul_u32_u24 v{vt}, {FF*4}, v{vt}\nv_add_u32 v{vt+1}, v{vt+1}, v{vt}')
    ufin += F(f's_lshr_b32 {sr(s0)}, s2, 6\ns_lshl_b32 {sr(s0)}, {sr(s0)}, 2\ns_add_u32 {sr(s0)}, {sr(s0)}, {sr(sw)}\ns_lshl_b32 {sr(s0)}, {sr(s0)}, 1\ns_bfe_u32 {sr(s1)}, s2, 0x10003\ns_add_u32 {sr(s0)}, {sr(s0)}, {sr(s1)}\ns_mul_i32 {sr(s0)}, {sr(s0)}, {2*FF*4}\ns_mul_i32 {sr(s1)}, {sr(sx)}, {448*4}\ns_add_u32 {sr(s0)}, {sr(s0)}, {sr(s1)}\ns_add_u32 {sr(s0)}, {sr(s0)}, {WS_UT3}')
    ufin.append(lambda: p.vm(f'buffer_store_dwordx4 {vr(uc,4)}, v{vt+1}, {sr(sWS,4)}, {sr(s0)} offen sc1', 'us'))
    ufin += F(f's_lshl_b32 {sr(s0)}, {sr(sx)}, 7\ns_add_u32 {sr(s0)}, {sr(s0)}, {FL_U}\nv_and_b32 v{vt}, 31, v{vl}\nv_min_u32 v{vt+2}, 27, v{vt}\nv_lshl_add_u32 v{vt}, v{vt}, 10, {sr(s0)}\nv_lshlrev_b32 v{vt+2}, 4, v{vt+2}')
    ufin += F(f's_lshl_b32 {sr(s0)}, {sr(sq)}, 9\nv_mov_b32 v{vt+1}, {sr(s0)}\ns_lshl_b32 {sr(s2_)}, {sr(sq)}, 3\ns_lshr_b32 {sr(s0)}, 0x0b070602, {sr(s2_)}\ns_and_b32 {sr(s0)}, {sr(s0)}, 15\ns_lshl_b32 {sr(s0)}, {sr(s0)}, 7\ns_sub_u32 {sr(s0)}, {sr(s0)}, 256\nv_mov_b32 v{ut}, {sr(s0)}')
    ufin += [f'v_cmp_gt_u32 vcc, 256, v{vt+2}\nv_cndmask_b32 v{vt+1}, v{ut}, v{vt+1}, vcc']
    ufin += F(f's_lshr_b32 {sr(s0)}, 0x15140706, {sr(s2_)}\ns_and_b32 {sr(s0)}, {sr(s0)}, 31\ns_lshl_b32 {sr(s0)}, {sr(s0)}, 6\ns_sub_u32 {sr(s0)}, {sr(s0)}, 384\nv_mov_b32 v{ut}, {sr(s0)}')
    ufin += [f'v_cmp_gt_u32 vcc, 384, v{vt+2}\nv_cndmask_b32 v{vt+1}, v{ut}, v{vt+1}, vcc']
    ufin += F(f'v_lshrrev_b32 v{ut}, 5, v{vl}\nv_mul_u32_u24 v{ut}, {4*FF*4}, v{ut}\nv_add3_u32 v{vt+1}, v{vt+1}, v{vt+2}, v{ut}\ns_mul_i32 {sr(s0)}, {sr(sw)}, {FF*4}\ns_add_u32 {sr(s0)}, {sr(s0)}, {sr(s1)}\ns_add_u32 {sr(s0)}, {sr(s0)}, {WS_UT3}\nv_add_u32 v{vt+1}, {sr(s0)}, v{vt+1}')
    ufin += F(f's_lshl_b32 {sr(s0)}, {sr(sw)}, 9\ns_add_u32 {sr(s0)}, {sr(s0)}, {UT}\nv_add_u32 v{vt+2}, {sr(s0)}, v{vt+2}')
    tu = tb_[3] + UD + cfg.get('tu', 205)
    iu, cu = poll_ops(k, sWS, 9, None, 'plu', sfl + 3, va=vt)
    st.at(tu, iu); st.at(tu + PD, ';@T ua'); st.at(tu + PD, cu); st.at(tu + PD, ';@T ub')
    for i in range(8):
        pre = op(lambda i=i: p.ins(f's_mov_b32 {sr(sv+1)}, {8 * FF * 4 * i}'), 1)
        X(tu + PD + 1, tu + PD + 45, lambda i=i: p.vm(f'buffer_load_dwordx4 {vr(UDR+4*i,4)}, v{vt+1}, {sr(sWS,4)}, {sr(sv+1)} offen {lf}', ('u', i)), pre)
        extra[-1]['wt'] = 0.5
    fl = [lambda: p.wait(vm=[('u', i) for i in range(8)])] + [f'v_accvgpr_read_b32 {vr(ut+i)}, {vr(UDR+i)}' for i in range(4)]
    for h in range(1, 8): fl += [f'v_accvgpr_read_b32 {vr(ut+4+i)}, {vr(UDR+4*h+i)}' for i in range(4)] + [f'v_add_f32 {vr(ut+i)}, {vr(ut+i)}, {vr(ut+4+i)}' for i in range(4)]
    fl += [f'v_mov_b32 v{ut+4+i}, v{ut+i}' for i in range(4)] + [f'v_permlane32_swap_b32 v{ut+i}, v{ut+4+i}' for i in range(4)] + [f'v_add_f32 v{ut+i}, v{ut+i}, v{ut+4+i}' for i in range(4)]
    fl += [f's_cmp_eq_u32 {sr(sw)}, 1\ns_cselect_b32 {sr(s2_)}, {f32(-LOG2E)}, 1.0'] + [f'v_mul_f32 v{ut+i}, {sr(s2_)}, v{ut+i}' for i in range(4)]
    fl.append(lambda: p.lg(f'ds_write_b128 v{vt+2}, {vr(ut,4)}', 'utw', w=(UT, UT + 2048)))
    utb = tu + PD + cfg.get('auxd', 65) + 62
    bars = sorted(set(bars) | {utb}); k.bars = bars
    sb, sn, skq = sm, sq, sx
    T = 48; l_ = vl
    su4s = F(f's_and_b32 {sr(sb)}, s2, 4\ns_lshr_b32 {sr(s0)}, s2, 6\ns_add_u32 {sr(sb)}, {sr(sb)}, {sr(s0)}\ns_bfe_u32 {sr(sn)}, s2, 0x30003\ns_and_b32 {sr(skq)}, s2, 3')
    su4s += F(f's_add_u32 {sr(sL4)}, {sr(sb)}, {sr(sn)}\ns_and_b32 {sr(sL4)}, {sr(sL4)}, 3')
    su4s += F(f's_lshl_b32 {sr(s0)}, {sr(sb)}, 4\ns_and_b32 {sr(s1)}, {sr(skq)}, 2\ns_mul_i32 {sr(sst4)}, {sr(s1)}, {-8 * MBS[1] & 0xffffffff}\ns_add_u32 {sr(sst4)}, {sr(sst4)}, {7 * MBS[1]}\ns_lshl_b32 {sr(s1)}, {sr(s1)}, 2\ns_add_u32 {sr(s0)}, {sr(s0)}, {sr(s1)}\ns_lshl_b32 {sr(s1)}, {sr(sw)}, 1\ns_add_u32 {sr(s0)}, {sr(s0)}, {sr(s1)}')
    su4s += F(f's_mul_i32 {sr(sA4)}, {sr(s0)}, {MBS[1]}\ns_mul_i32 {sr(s1)}, {sr(skq)}, {28 * 1024}\ns_add_u32 {sr(sA4)}, {sr(sA4)}, {sr(s1)}\ns_add_u32 {sr(sA4)}, {sr(sA4)}, {WS_ACT}')
    su4s += F(f's_lshl_b32 {sr(sro)}, {sr(s0)}, 15\ns_lshl_b32 {sr(sn)}, {sr(sn)}, 1\ns_and_b32 {sr(s1)}, {sr(skq)}, 1\ns_add_u32 {sr(sn)}, {sr(sn)}, {sr(s1)}')
    su4s += F(f's_lshl_b32 {sr(s0)}, {sr(sn)}, 7\ns_add_u32 {sr(sro)}, {sr(sro)}, {sr(s0)}\ns_lshl_b32 {sr(sg4)}, {sr(sn)}, 8\ns_add_u32 {sr(sg4)}, {sr(sg4)}, {WS_MODP + 5 * 4096}')
    su4s += F(f's_lshl_b32 {sr(s0)}, {sr(sb)}, 12\ns_lshl_b32 {sr(s1)}, {sr(skq)}, 8\ns_add_u32 {sr(s0)}, {sr(s0)}, {sr(s1)}\ns_add_u32 {sr(sfl+2)}, {sr(s0)}, {FL_A}')
    su4s += F(f's_lshl_b32 {sr(sxl)}, {sr(sw)}, 12\ns_add_u32 {sr(sxl)}, {sr(sxl)}, {XL}\ns_lshl_b32 {sr(sxo)}, s2, 16\ns_lshl_b32 {sr(s0)}, {sr(sw)}, 14\ns_add_u32 {sr(sxo)}, {sr(sxo)}, {sr(s0)}\ns_add_u32 {sr(sxo)}, {sr(sxo)}, {WS_XC4}')
    su4s += F(f's_lshr_b32 {sr(s0)}, s2, 3\ns_lshl_b32 {sr(s0)}, {sr(s0)}, 2\ns_add_u32 {sr(s0)}, {sr(s0)}, {sr(sw)}\ns_mul_i32 {sr(spf)}, {sr(s0)}, {14 * 1024}\ns_mul_i32 {sr(s0)}, {sr(skq)}, {896 * 2048}\ns_add_u32 {sr(spf)}, {sr(spf)}, {sr(s0)}')
    su4s += F(f's_nop 0')
    pfs = F(f'v_lshrrev_b32 v{vt}, 8, v{vl16}\nv_lshlrev_b32 v{vt}, 28, v{vt}\nv_lshl_add_u32 v{vt}, v{vl16}, 3, v{vt}\nv_xor_b32 v{wa+7}, {3<<5}, v{wa+4}')
    st.fill(pfs, utb - 8, cap=3)
    su4 = F(f'v_lshrrev_b32 v{T}, 3, v{l_}\nv_bfe_u32 v{T+1}, v{T}, 1, 2\nv_bfe_u32 v{T+2}, v{l_}, 1, 2\nv_xor_b32 v{T+1}, v{T+1}, v{T+2}\nv_lshlrev_b32 v{T+1}, 5, v{T+1}\nv_and_b32 v{T+2}, 1, v{l_}\nv_lshl_add_u32 v{T+1}, v{T+2}, 4, v{T+1}')
    su4 += F(f's_lshl_b32 {sr(s0)}, {sr(sw)}, 3\nv_add_u32 v{T}, {sr(s0)}, v{T}\nv_lshl_add_u32 v{T}, v{T}, 11, v{T+1}')
    su4 += F(f's_mul_i32 {sr(s0)}, {sr(skq)}, {896 * 2048}\ns_lshl_b32 {sr(s1)}, {sr(sn)}, 7\ns_add_u32 {sr(s0)}, {sr(s0)}, {sr(s1)}\nv_add_u32 v{vd4+1}, {sr(s0)}, v{T}\nv_xor_b32 v{vd4}, 128, v{vd4+1}')
    su4 += F(f'v_and_b32 v{T}, 3, v{l_}\nv_bfe_u32 v{T+1}, v{l_}, 2, 1\nv_lshl_add_u32 v{T}, v{T}, 3, v{T+1}\nv_lshlrev_b32 v{vp+1}, 7, v{T}')
    su4b = F(f's_lshl_b32 {sr(s0)}, {sr(sw)}, 8\ns_add_u32 {sr(s0)}, {sr(s0)}, {GL}\nv_lshrrev_b32 v{T+1}, 4, v{l_}\nv_lshl_add_u32 v{vgo}, v{T+1}, 4, {sr(s0)}\nv_lshlrev_b32 v{vl4}, 2, v{l_}\nv_add_u32 v{vgo-1}, {sr(s0)}, v{vl4}')
    su4b += F(f'v_lshrrev_b32 v{T}, 3, v{l_}\nv_and_b32 v{T+2}, 7, v{l_}\nv_xor_b32 v{T+3}, v{T+2}, v{T}\nv_lshlrev_b32 v{T+3}, 4, v{T+3}\nv_lshl_add_u32 v{vro}, v{T}, 11, v{T+3}')
    su4b += F(f'v_bfe_u32 v{T}, v{l_}, 4, 1\nv_lshrrev_b32 v{T+3}, 5, v{l_}\nv_lshl_add_u32 v{T}, v{T}, 1, v{T+3}\nv_xor_b32 v{T}, v{T}, v{T+2}\nv_lshlrev_b32 v{T}, 4, v{T}\nv_and_b32 v{T+2}, 15, v{l_}\nv_lshl_add_u32 v{T}, v{T+2}, 7, v{T}\nv_add_u32 v{vxa}, {sr(sxl)}, v{T}\nv_xor_b32 v{vxa+1}, 64, v{vxa}\nv_add_u32 v{vxa+2}, {sr(sxl)}, v{vl16}')
    su4b += F(f'v_bfe_u32 v{T}, v{l_}, 2, 2\nv_lshrrev_b32 v{T+1}, 4, v{l_}\nv_and_b32 v{T+2}, 1, v{l_}\nv_lshlrev_b32 v{T+2}, 4, v{T+2}\nv_mov_b32 v{T+3}, 0xffff\nv_lshlrev_b32 v{T+2}, v{T+2}, v{T+3}') + [f'v_cmp_eq_u32 vcc, v{T}, v{T+1}\nv_mov_b32 v{vsel+8}, 0\nv_mov_b32 v{vsel+9}, 0\nv_cndmask_b32 v{T}, 0, v{T+2}, vcc']
    su4b += [f'v_and_b32 v{T+1}, 2, v{l_}', f'v_cmp_eq_u32 vcc, 0, v{T+1}\nv_mov_b32 v{vsel+2}, 0\nv_mov_b32 v{vsel+3}, 0\nv_cndmask_b32 v{T+2}, 0, v{T}, vcc', f'v_sub_u32 v{T+3}, v{T}, v{T+2}']
    order = [6, 4, 5, 0, 1, 2, 3]
    rdg = lambda s_: (lambda: p.lg(f'ds_read_b128 {vr(ut + 4 if s_ == 6 else 60,4)}, v{vub} offset:{512+64*s_}', ('eg', s_), r=(UT, UT + 2048)))
    def epi(s_):
        tg_ = ut + 4 if s_ == 6 else 60
        L = [lambda: p.wait(lg=[('eg', s_)])]
        for gi, mg in enumerate(((0,), (1,), (2,), (3,)) if s_ == 6 else ((0, 1), (2, 3))):
            ms = [(m, x) for m in mg for x in range(4)]
            e = lambda m, x: ut + (0 if s_ == 6 else 4 * (m & 1)) + x
            L += [f'v_fma_f32 v{accr(s_,0,m)+x}, v{accr(s_,0,m)+x}, v{vs+2*m}, v{tg_+x}' for m, x in ms]
            if s_ not in (6, 3) and gi == 1: L.append(rdg(order[order.index(s_) + 1]))
            ex = [f'v_exp_f32 v{e(m,x)}, v{accr(s_,0,m)+x}' for m, x in ms]
            mu = [f'v_mul_f32 v{accr(s_,1,m)+x}, v{accr(s_,0,m)+x}, v{accr(s_,1,m)+x}' for m, x in ms]
            L += [y for ab in zip(ex, mu) for y in ab]
            vv = [f'v_fma_f32 v{e(m,x)}, v{e(m,x)}, v{vs+2*m+1}, v{vs+2*m+1}' for m, x in ms] + [f'v_mul_f32 v{accr(s_,1,m)+x}, v{accr(s_,1,m)+x}, v{e(m,x)}' for m, x in ms]
            rc = [f'v_rcp_f32 v{e(m,x)}, v{e(m,x)}' for m, x in ms]
            n_ = len(ms); L += vv[:2] + [y for ab in zip(rc, vv[2:n_ + 2]) for y in ab] + vv[n_ + 2:]
            for m in mg:
                u_ = accr(s_, 1, m); o = accr(s_ & ~1, 0, m) + 2 * (s_ & 1)
                L += F(f'v_cvt_pk_bf16_f32 v{o}, v{u_}, v{u_+1}\nv_cvt_pk_bf16_f32 v{o+1}, v{u_+2}, v{u_+3}')
                if s_ & 1 or s_ == 6:
                    so = sO + {1: 0, 3: 0, 5: 1, 6: 2}[s_]
                    def f(m=m, o=o, so=so):
                        if m: p.ins(f's_add_u32 {sr(s2_)}, {sr(so)}, {2 * MBS[1] * m}')
                        so_ = sr(s2_) if m else sr(so)
                        if s_ == 6: p.vm(f'buffer_store_dwordx2 {vr(o,2)}, v{vl16}, {sr(sWS,4)}, {so_} offen sc1', ('as', s_, m))
                        else: p.vm(f'buffer_store_dwordx4 {vr(o-2,4)}, v{vl16}, {sr(sWS,4)}, {so_} offen offset:{1024 if s_ == 3 else 0} sc1', ('as', s_, m))
                    L.append(op(f, 'sW'))
        if s_ == 6: L += [rdg(4), ('gap', 5)]
        return L
    win = {}
    a_ = 0
    wl = cfg.get('wl', (70, 80, 70, 90, 90, 80, 70))
    for i, s_ in enumerate(order):
        a_ = max(a_, done[s_] + 3)
        win[s_] = (a_, a_ + wl[i] - 1); a_ += wl[i]
    k.win = win; k.z = (z3, z4, zf, N)
    assert win[1][1] + 3 < z4 + 32, 'accumulators of G4 (tiles 4..7) overlap pairs 0/1'
    su4_end = win[4][1]
    pre_done = k.early3
    W.units[(3, 0, 0)]['vis'] = True
    for ts in range(n4):
        for g in range(2): W.units[(4, ts, g)]['e'] = su4_end + 1
    ops = W.dma_ops(bars, pre_done)
    def aop(ph, ts, j, m):
        ch, ab, stp = (chunk3, ab3, 65536) if ph == 3 else (chunk4, ab4, sr(sst4) if m == 2 else MBS[1])
        def pre():
            ch(ts)
            if m and j == 0: p.ins(f's_add_u32 {sr(sCA + ts % NC)}, {sr(sCA + ts % NC)}, {stp}')
        main = lambda: p.vm(f'buffer_load_dwordx4 {vr(ab(ts,j,m),4)}, v{vl16}, {sr(sWS,4)}, {sr(sCA + ts % NC)} offen offset:{1024*j} {lf}', ('A', ph, ts, j, m))
        return op(pre, 1 if j == 0 else 0), main
    pl1 = z4 - cfg.get('pl1', 100); pl2 = firstA[(4, NE)] - cfg.get('pl2', 110)
    i1, c1 = poll_ops(k, sWS, vp, sfl + 2, 'pl1', sfl + 3)
    i2, c2 = poll_ops(k, sWS, vp, sfl + 2, 'pl2', sfl + 3)
    assert pl1 > su4_end
    st.at(pl1, i1); st.at(pl1 + PD, c1)
    st.at(pl2 - 1, f's_sub_u32 {sr(sfl+2)}, {sr(sfl+2)}, {FL_A - FL_A2}'); st.at(pl2, i2); st.at(pl2 + PD, c2)
    yb = cfg.get('yb', 70); ne0 = cfg.get('a0', 2)
    iy, cy = poll_ops(k, sWS, 9, sfl + 2, 'ply', sfl + 3, va=vt + 2)
    if NP: st.at(yb, iy); st.at(yb + PD, ';@T y_a'); st.at(yb + PD, cy); st.at(yb + PD, ';@T y_b')
    for ph, n_ in ((3, n3), (4, n4)):
        for ts in range(n_):
            if ph == 3: e = utb if nl and ts >= n3 - 1 - bl else lastA[(3, ts - DAS)] + 1 if ts >= DAS else 0
            else: e = max(bufs[ts][1] if ts < NB else lastA[(4, ts - NB)] + 1, (pl1 if ts < NE else pl2) + PD + 1)
            for m in range(4):
                if ph == 3 and ts < ne0 and (m < 2 or not NP): continue
                for j in range(2):
                    pre, main = aop(ph, ts, j, m)
                    ops.append(dict(e=max(e, yb + PD + 1) if ph == 3 and NP and m >= 2 else e, dl=firstM[(ph, ts, m)] - 2, pre=pre, main=main, id=('A', ph, ts), wt=0.5 if ph == 3 and ts < NP and m >= 2 else 1))
    vx1 = 192; vf = 208
    tg = win[3][1] + 110
    for q in range(NPART):
        pre = op(lambda q=q: p.ins(f's_add_u32 {sr(sv+1)}, {sr(sg4)}, {6144 * 4 * q}'), 1)
        X(tg, tg + 60, lambda q=q: p.vm(f'buffer_load_dword v{vg+q}, v{vl4}, {sr(sWS,4)}, {sr(sv+1)} offen {lf}', ('g', q)), pre)
    for i, tp in enumerate(cfg.get('pf', range(500, 1280, 112))):
        pre = op(lambda i=i: p.ins(f's_add_u32 {sr(sv+1)}, {sr(spf)}, {2048 * i}'), 1)
        assert tp > utb
        X(tp, tp + 20, lambda i=i: p.vm(f'buffer_load_dword a253, v{vt}, {sr(sWd,4)}, {sr(sv+1)} offen {cfg.get("pfl", "")}', ('dummy', i)), pre)
        extra[-1]['wt'] = cfg.get('pfw', 2)
    g3gap, g4gap = cfg.get('gap3', 5), cfg.get('gap4', 4.5)
    st.vmem(ops + extra, lambda i: cfg.get('gap0', 4) if i < 112 else g3gap if i < z3 else cfg.get('gapf', 4) if i < z4 else g4gap)
    k.vops = ops
    assert not NP or th[0] > 112 * NP + 24
    e_ = st.fill(setup, 20); assert e_ < th[0], e_
    for t0_, L, nm in chains:
        e_ = st.fill(L, max(t0_, e_ + 1))
        k.dbg = getattr(k, 'dbg', []) + [(nm, t0_, e_)]
        if nm == 'b3':
            st.at(e_ + cfg.get('upub', 80), pub_op(k, sWS, 9, sfl, ['us']))
            st.at(e_ + cfg.get('upub', 80), f's_sub_u32 {sr(sfl)}, {sr(sfl)}, {FL_U - FL_A}')
            assert e_ + cfg.get('upub', 80) < tu
            e_ = st.fill([('gap', 3)] + ufin, e_ + 1); assert e_ < tu, (e_, tu)
            st.fill(su4s, e_ + 1)
    assert e_ < utb - 62, (e_, utb)
    e_ = st.fit(fl, utb - 62, utb - 2)
    W.bw[utb].append(('lg', 'utw'))
    w = utb + 1; todo = [(s_, mat) for s_ in (6, 4, 5, 0, 1, 2, 3) for mat in range(2)]
    todo = [(s_, mat, i) for s_, mat in todo for i in range(1 + mat)]
    rdu = lambda x, b_: (lambda: p.lg(f'ds_read_b128 {vr(ut+4*b_,4)}, v{vub} offset:{512*(2*x[1]+x[2])+64*x[0]}', ('iu', x), r=(UT, UT + 2048)))
    allv = {x: [v for key, v in visit.items() if key[1:] == x[:2]] for x in todo}
    def pick(w_):
        while True:
            ok = [x for x in todo if all(v + 10 <= w_ or v >= w_ + cfg.get('injw', 20) for v in allv[x])]
            if ok: todo.remove(ok[0]); return ok[0], w_
            w_ += 1
    cur, w2 = pick(w + 8); b_ = 0
    st.fill([rdu(cur, 0)], w); w = w2
    while cur:
        nx, w2 = pick(w + 13) if todo else (None, 0)
        L = ([rdu(nx, 1 - b_)] if nx else []) + [lambda x=cur: p.wait(lg=[('iu', x)])] + [f'v_fmac_f32 v{accr(cur[0],cur[1],m)+x}, v{vs+2*m+cur[2]}, v{ut+4*b_+x}' for m in range(4) for x in range(4)]
        w = st.fill(L, w, cap=cfg.get('injcap', 2))
        assert w < (z3 if cur[0] >= 4 else done[6] - 12), (cur, w, z3)
        cur = nx; w = max(w + 1, w2); b_ = 1 - b_
    L = [rdg(6)] + [f'v_rcp_f32 v{vs+2*m}, v{vs+2*m+1}' for m in range(4)] + [f'v_mul_f32 v{vs+x}, {f32(-LOG2E)}, v{vs+x}' for x in (1, 3, 5, 7, 0, 2, 4, 6)]
    e_ = st.fill(L, w); assert e_ < win[6][0], e_
    k.injend = w
    st.at(win[5][1] + cfg.get('pb1', 40), pub_op(k, sWS, vpx, sfl, [('as', 6, m) for m in range(4)] + [('as', 5, m) for m in range(4)]))
    for s_ in order:
        L = epi(s_)
        if s_ == 4: L = L[:20] + su4 + L[20:]
        (st.fitp if cfg.get('pack', 1) else st.fit)(L, win[s_][0], win[s_][1] - (4 if s_ == 6 else 0))
    e_ = st.fill([f's_sub_u32 {sr(sfl)}, {sr(sfl)}, {FL_A - FL_A2}', ('gap', cfg.get('pb2', 40)), pub_op(k, sWS, vpx, sfl, [('as', s_, m) for s_ in (1, 3) for m in range(4)])] + su4b, win[3][1] + 1)
    assert e_ < tg, (e_, tg)
    L = [lambda i=i: p.lg(f'ds_read_b128 {vr(vx1+4*i,4)}, v{vxa+2} offset:{1024*i}', 'x1', r=(XL, XL + 16384), priv=True) for i in range(4)]
    L += [lambda: p.wait(vm=[('g', q) for q in range(NPART)])]
    L += F(f'v_add_f32 v{vg}, v{vg}, v{vg+1}\nv_add_f32 v{vg+2}, v{vg+2}, v{vg+3}\nv_add_f32 v{vg}, v{vg}, v{vg+2}') + rb(vg)
    L += [lambda: p.lg(f'ds_write_b32 v{vgo-1}, v{vg}', None, w=(GL, GL + 1024), priv=True)]
    L += [lambda t=t: p.lg(f'ds_read_b128 {vr(vg+4*t,4)}, v{vgo} offset:{64*t}', ('gl', t), r=(GL, GL + 1024), priv=True) for t in range(4)]
    L += [lambda: p.wait(lg=['x1'])]
    for i in range(16): L += F(f'v_lshlrev_b32 v{vf+2*i}, 16, v{vx1+i}\nv_and_b32 v{vf+2*i+1}, 0xffff0000, v{vx1+i}')
    L += F(f'v_mov_b32 v{vp+1}, 0') + [lambda: p.wait(lg=[('gl', 3)])]
    for t in range(4):
        for h in range(2):
            r_ = vsel + 6 * (t // 2) + 4 * (t & 1) + h
            L += F(f'v_cvt_pk_bf16_f32 v{r_}, v{vg+4*t+2*h}, v{vg+4*t+2*h+1}\nv_and_b32 v{r_}, v{r_}, v{T+2+h}')
    e_ = st.fill(L, max(tg + 110, pl2 + PD + 1)); assert e_ < zf + 150
    XJ = (3, 1, 2); XP = (0, 0, 1); XT = (0, 0, 4); XM = (2, 0, 2)
    tail = []
    def put(slot, o):
        if slot < N: st.at(slot, o)
        else: tail.append((slot, len(tail), o))
    xr = lambda x, i: acc4(XT[x] + 2 * (i & 1) + 1, XM[x] + (i >> 1))
    def addp(x, i):
        return [f'{MFMA} {vr(vf+8*i+4*t,4)}, {vr(vsel+6*(i&1)+2*t,4)}, {vr(xr(x,i),4)}, {vr(vf+8*i+4*t,4)}' for t in range(2)]
    xt = cfg.get('xt', ((75, 130, 165), (75, 132, 167), (50, 90, 97)))
    for ps in range(2):
        L = []
        for t in range(4):
            L.append(('from', d4[(ps, 4 * ps + t)] + 3))
            for x in range(3):
                if XP[x] != ps: continue
                for m in range(2):
                    c = acc4(XT[x] + t, XM[x] + m); o = acc4(XT[x] + (t & ~1), XM[x] + m)
                    L += F(f'v_cvt_pk_bf16_f32 v{o+2*(t&1)}, v{c}, v{c+1}\nv_cvt_pk_bf16_f32 v{o+2*(t&1)+1}, v{c+2}, v{c+3}')
                    if t & 1:
                        L.append(op(lambda x=x, i=2 * m + t // 2, o=o: (p.ins(f's_add_u32 {sr(sxo+1)}, {sr(sxo)}, {4096 * x}'), p.vm(f'buffer_store_dwordx4 {vr(o,4)}, v{vl16}, {sr(sWS,4)}, {sr(sxo+1)} offen offset:{1024 * i} sc1', ('xs', x, i))), 'sW'))
                        L.append(('gap', cfg.get('xgap', (2, 0))[ps]))
        e_ = st.fill(L, d4[(ps, 4 * ps)] + 3, cap=cfg.get('xcap', (2, 5))[ps]); assert e_ < d4[(ps, 4 * ps + 3)] + xt[2 * ps][0]
    for x in range(3):
        e0 = d4[(XP[x], 4 * XP[x] + 3)]; vq_ = (vd4 + 2, vpx + 1, vp)[x]
        if x != 1: put(e0 + xt[x][0], pub_op(k, sWS, vpx, sfl + 1, [('xs', y, i) for y in range(3) if XP[y] == XP[x] for i in range(4)], 16 * XP[x], wg=False))
        sq_ = (sA4, sL4, sfl + 2)[x]
        i3, c3 = poll_ops(k, sWS, vq_, sq_, ('pl3', x), sfl + 3, wg=False, va=vp + 1)
        put(e0 + xt[x][1], op(lambda x=x, i3=i3, sq_=sq_: (p.ins(f's_xor_b32 {sr(sq_)}, {sr(sfl+1)}, {XJ[x] << 9}\ns_add_u32 {sr(sq_)}, {sr(sq_)}, {16 * XP[x]}'), i3()), 3))
        if x == 2:
            lds_ = f's_xor_b32 {sr(s2_)}, {sr(sxo)}, {XJ[x] << 16}\ns_add_u32 {sr(s2_)}, {sr(s2_)}, {4096 * x}\n' + '\n'.join(f'buffer_load_dwordx4 {vr(xr(2,i),4)}, v{vl16}, {sr(sWS,4)}, {sr(s2_)} offen offset:{1024 * i} sc1 ; cond' for i in range(4))
            def look():
                L = k.lab('XL'); p.wait(vm=[('pl3', 2)])
                p.ins(f'v_cmp_ne_u32 vcc, {sr(k.tok)}, v{vp}\ns_mov_b32 {sr(sxo+1)}, 0\ns_cbranch_vccnz {L}\n{lds_}\ns_mov_b32 {sr(sxo+1)}, 1'); p.label(L)
            def again():
                L = k.lab('XA'); p.T('xa2')
                p.ins(f's_cmp_eq_u32 {sr(sxo+1)}, 1\ns_cbranch_scc1 {L}x\ns_mov_b32 {sr(sfl+3)}, 60000'); p.label(L)
                p.ins(f'buffer_load_dword v{vp}, v{vp+1}, {sr(sWS,4)}, {sr(sfl+2)} offen sc1 ; cond\ns_sub_u32 {sr(sfl+3)}, {sr(sfl+3)}, 1\ns_cmp_eq_u32 {sr(sfl+3)}, 0\ns_waitcnt vmcnt(0) ; cond\ns_cbranch_scc1 {L}y\nv_cmp_ne_u32 vcc, {sr(k.tok)}, v{vp}\ns_cbranch_vccnz {L}')
                p.label(L + 'y'); p.ins(lds_); p.label(L + 'x'); p.T('xb2')
            assert d4[(0, 3)] + xt[1][2] + 4 < e0 + xt[x][2] < N and xt[x][0] < xt[x][2]
            put(e0 + xt[x][2], op(look, 8)); put(N, again)
            continue
        put(e0 + xt[x][2], f';@T xa{x}')
        put(e0 + xt[x][2], c3)
        put(e0 + xt[x][2], f';@T xb{x}')
        for i in range(4):
            f = lambda x=x, i=i: (p.ins(f's_xor_b32 {sr(s2_)}, {sr(sxo)}, {XJ[x] << 16}\ns_add_u32 {sr(s2_)}, {sr(s2_)}, {4096 * x}'), p.vm(f'buffer_load_dwordx4 {vr(xr(x,i),4)}, v{vl16}, {sr(sWS,4)}, {sr(s2_)} offen offset:{1024 * i} sc1', ('xc', x, i)))
            put(e0 + xt[x][2] + 1 + i, op(f, 3))
    def add01():
        p.wait(vm=[('xc', x, i) for x in range(2) for i in range(4)])
        for x in range(2):
            for i in range(4):
                for o in addp(x, i): p.ins(o)
    st.at(N - 1, op(add01, 'M'))
    T = ACC
    def aearly():
        for ts in range(ne0):
            for m in range(2 if NP else 4):
                for j in range(2):
                    pre, main = aop(3, ts, j, m); pre(); main()
    def acond(first):
        L = k.lab('AE'); a_ = len(p.items); keep = set(done3)
        aearly(); body = p.items[a_:]; del p.items[a_:]
        if first:
            done3.clear(); done3.update(keep)
            p.wait(vm=['ple0'])
            p.ins(f'v_subrev_u32 v{vt}, {sr(k.tok)}, v{vt}\nv_cmp_lt_u32 vcc, 1, v{vt}\ns_mov_b32 {sr(sO)}, 0\ns_cbranch_vccnz {L}\ns_mov_b32 {sr(sO)}, 1')
        else: p.ins(f's_cmp_eq_u32 {sr(sO)}, 1\ns_cbranch_scc1 {L}')
        for x in body: p.ins(x[1] + (' ; cond' if x[0] == 'vm' else ''))
        p.label(L)
        if not first:
            for x in body:
                if x[0] == 'vm': p.items.append(('vmark', x[2])); p.items.append(('def', x[1], x[2]))
    def rest():
        for o in k.left: o['pre'](); o['main']()
        for f in k.stash: f()
        p.ins(f'v_mov_b32 v{vdA}, v16')
    p.wait(lg='all')
    if not NP:
        p.bar(); rest(); k.ypub(); p.T('y_pub')
        p.ins(f';@WARM {sr(sw)} 1 3\n;@FROM')
    p.ins(f's_and_b32 {sr(sx)}, s2, 7\ns_bfe_u32 {sr(sq)}, s2, 0x20003\ns_lshr_b32 {sr(sm)}, s2, 5\ns_add_u32 {sr(sLead)}, {sr(sq)}, {sr(sm)}\ns_and_b32 {sr(sLead)}, {sr(sLead)}, 3\ns_lshl_b32 {sr(s0)}, {sr(sm)}, 1')
    p.ins(f's_lshr_b32 {sr(s1)}, {sr(sw)}, 1\ns_add_u32 {sr(s0)}, {sr(s0)}, {sr(s1)}\ns_lshl_b32 {sr(sst)}, {sr(s0)}, 3\ns_and_b32 {sr(s2_)}, {sr(sw)}, 1\ns_add_u32 {sr(sst)}, {sr(sst)}, {sr(s2_)}')
    p.ins(f's_lshl_b32 {sr(sAb)}, {sr(sst)}, 15\ns_add_u32 {sr(sAb)}, {sr(sAb)}, {WS_Y}')
    if NP and k.look: acond(True)
    p.ins(f's_lshl_b32 {sr(s0)}, {sr(sm)}, 12\ns_add_u32 {sr(sfl+2)}, {sr(s0)}, {FL_Y}')
    p.ins(f'v_and_b32 v{vt+2}, 31, v{vl}\nv_lshlrev_b32 v{vt+2}, 7, v{vt+2}')
    p.ins(f'v_lshrrev_b32 v{T+1}, 2, v{vl}\nv_bfe_u32 v{T}, v{T+1}, 1, 2\nv_lshlrev_b32 v{T}, 5, v{T}\nv_lshl_add_u32 v{T}, v{T+1}, 7, v{T}\nv_and_b32 v{T+1}, 3, v{vl}\nv_lshl_add_u32 v{wa}, v{T+1}, 3, v{T}')
    for t in range(1, 4): p.ins(f'v_xor_b32 v{wa+t}, {t<<5}, v{wa}')
    for t in range(3): p.ins(f'v_add_u32 v{wa+4+t}, 65536, v{wa+t}')
    p.ins(f's_lshl_b32 {sr(sfl)}, s2, 7\ns_lshl_b32 {sr(s0)}, {sr(sw)}, 28\ns_add_u32 {sr(sfl)}, {sr(sfl)}, {sr(s0)}\ns_add_u32 {sr(sfl)}, {sr(sfl)}, {FL_U}\ns_lshl_b32 {sr(s0)}, s2, 2\ns_add_u32 {sr(s0)}, {sr(s0)}, {sr(sw)}\ns_lshl_b32 {sr(s0)}, {sr(s0)}, 7\ns_add_u32 {sr(sfl+1)}, {sr(s0)}, {FL_X}')
    p.ins(f's_sub_u32 {sr(sO+2)}, {sr(sfl+2)}, {FL_Y - FL_E}')
    ie, ce = poll_ops(k, sWS, vt, sO + 2, 'ple', sfl + 3, va=vt + 2)
    if NP and cfg.get('epos', 0) == 0: ie()
    vtb = k.vtb
    p.wait(vm=[('tb', q) for q in range(NPART)])
    for i in range(2): p.ins(f'v_add_f32 v{vtb+i}, v{vtb+i}, v{vtb+2+i}\nv_add_f32 v{vtb+4+i}, v{vtb+4+i}, v{vtb+6+i}\nv_add_f32 v{vtb+i}, v{vtb+i}, v{vtb+4+i}')
    p.ins(f'v_lshrrev_b32 v{T}, 5, v{vl}\nv_xor_b32 v{T+1}, 1, v{T}\nv_cvt_f32_u32 v{T+1}, v{T+1}')
    for rep in range(2):
        p.ins(f'v_cvt_pk_bf16_f32 v{vtb+2}, v{vtb}, v{vtb+1}\nv_lshlrev_b32 v{vtb}, 16, v{vtb+2}\nv_and_b32 v{vtb+1}, 0xffff0000, v{vtb+2}')
        if rep == 0: p.ins(f'v_add_f32 v{vtb}, v{vtb}, v{T+1}\nv_add_f32 v{vtb+1}, v{vtb+1}, v{T+1}')
    p.ins(f'v_lshrrev_b32 v{vtb+3}, 16, v{vtb+2}\nv_and_b32 v{vtb+2}, 0xffff, v{vtb+2}\ns_add_u32 {sr(s0)}, {sr(sWL)}, {LB}\nv_lshlrev_b32 v{T}, 8, v{T}\nv_lshl_add_u32 v{T}, v{vl}, 3, v{T}\nv_add_u32 v{T}, {sr(s0)}, v{T}')
    p.lg(f'ds_write_b64 v{T}, {vr(vtb+2,2)}', None, w=(LB, LB + 4096), priv=True)
    p.lg(f'ds_write_b64 v{T}, {vr(vtb,2)} offset:256', None, w=(LB, LB + 4096), priv=True)
    p.ins(f's_bitcmp1_b32 s2, 3\ns_cselect_b64 {sr(sJ,2)}, {sr(sWu,2)}, {sr(sWg,2)}\ns_mov_b32 {sr(sJ+2)}, {DM * FF * 2}')
    for r_ in range(4): smov64(p, sMk + 2 * r_, lanemask(lambda l: ((l & 7) >> 1) == r_))
    if NP:
        if k.look:
            p.ins(f's_lshl_b32 {sr(sO+1)}, {sr(sO)}, 2\ns_add_u32 {sr(sO+1)}, {sr(sO+1)}, {sr(sw)}')
            k.common['sw'] = sO + 1
            ie, ce = poll_ops(k, sWS, vt, sfl + 2, 'ple', sfl + 3, va=vt + 2, cmp=f'v_subrev_u32 v{vt}, {sr(k.tok)}, v{vt}\nv_cmp_lt_u32 vcc, 1, v{vt}')
            k.common['sw'] = sw
        if cfg.get('epos', 0) == 1: ie()
        p.wait(vm=[('D', (3, 0, g), i) for g in range(2) for i in range(4)])
        k.ypub(); p.T('y_pub')
        if cfg.get('epos', 0) == 2: ie()
        if cfg.get('rpos', 0) == 0: rest()
        p.T('e_a'); ce(); p.T('e_b'); acond(False) if k.look else aearly()
        if cfg.get('rpos', 0) == 1: rest()
        st.pre.setdefault(cfg.get('from2', 1560), []).append(';@FROM')
    else:
        iy()
        p.wait(vm=[('D', (3, 0, g), i) for g in range(2) for i in range(4)])
        p.T('y_a'); cy(); p.T('y_b'); aearly()
    p.ins(f'v_bfe_u32 v{T}, v{vl}, 3, 1\nv_lshlrev_b32 v{T}, 9, v{T}\nv_and_b32 v{T+1}, 1, v{vl}\nv_lshl_add_u32 v{T}, v{T+1}, 8, v{T}\nv_lshrrev_b32 v{T+1}, 4, v{vl}\nv_lshl_add_u32 v{T}, v{T+1}, 6, v{T}\nv_add_u32 v{vt+1}, {sr(s0)}, v{T}')
    p.ins(f's_bfe_u32 {sr(s0)}, s2, 0x20004\ns_lshl_b32 {sr(s0)}, {sr(s0)}, 8\nv_and_b32 v{T}, 15, v{vl}\nv_lshl_add_u32 v{T}, v{T}, 4, {sr(s0)}\nv_cmp_gt_u32 vcc, 896, v{T}\nv_mov_b32 v{T+2}, {OOB}\nv_mul_u32_u24 v{T+1}, {16 * 7168}, v{T+1}\nv_cndmask_b32 v{T}, v{T+2}, v{T}, vcc')
    p.ins(f's_lshr_b32 {sr(s0)}, s2, 6\ns_lshl_b32 {sr(s0)}, {sr(s0)}, 2\ns_add_u32 {sr(s0)}, {sr(s0)}, {sr(sw)}\ns_mul_i32 {sr(s0)}, {sr(s0)}, {64 * 7168}\ns_mul_i32 {sr(s1)}, {sr(sx)}, 896\ns_add_u32 {sr(s0)}, {sr(s0)}, {sr(s1)}\nv_add3_u32 v{vt}, v{T}, v{T+1}, {sr(s0)}')
    W.emit_early()
    for i, nm in tuple(cfg.get('marks', ())) + ((1, 'g3_m1'), (4 * 112, 'g3_s4'), (z3, 'g3_fin'), (pl1 + PD, 'p1a'), (pl1 + PD + 1, 'p1b'), (z4, 'g4_m1'), (pl2 + PD, 'p2a'), (pl2 + PD + 1, 'p2b'), (z4 + NE * 64, 'g4_L'), (zf, 'g4_fin')):
        st.pre.setdefault(i, []).insert(0, f';@T {nm}')
    st.emit()
    p.T('g4_end')
    def own():
        for i in (0, 2, 1, 3):
            m, q = divmod(i, 2)
            for t in range(2):
                for e in range(4): p.ins(f'v_fmac_f32 v{vf+8*i+4*t+e}, v{vg+8*q+4*t+e}, v{acc4(4+2*q+t,m)+e}')
    tail += [(N - 1, 0, own)]
    for _, _, o in sorted(tail, key=lambda x: x[:2]): p.ins(o) if isinstance(o, str) else o()
    for i in range(4):
        p.ins(f's_waitcnt vmcnt({3 - i})')
        for o in addp(2, i): p.ins(o)
    for i in range(4):
        m, q = divmod(i, 2); f_ = vf + 8 * i; x_ = vx1 + 4 * i
        for d in range(4): p.ins(f'v_cvt_pk_bf16_f32 v{x_+d}, v{f_+2*d}, v{f_+2*d+1}')
        p.ins(f'v_permlane16_swap_b32 v{x_}, v{x_+2}\nv_permlane16_swap_b32 v{x_+1}, v{x_+3}')
        p.lg(f'ds_write_b128 v{vxa+q}, {vr(x_,4)} offset:{2048*m}', None, w=(XL, XL + 16384), priv=True)
        if q:
            for h in range(2): p.lg(f'ds_read_b128 {vr(vf+16*m+4*h,4)}, v{vxa+2} offset:{2048*m+1024*h}', ('o', 2 * m + h), r=(XL, XL + 16384), priv=True)
    for i in range(4):
        if i: p.ins(f's_add_u32 {sr(sro)}, {sr(sro)}, 16384')
        p.wait(lg=[('o', i)])
        p.vm(f'buffer_store_dwordx4 {vr(vf+16*(i>>1)+4*(i&1),4)}, v{vro}, {sr(sOut,4)}, {sr(sro)} offen {cfg.get("ofl", "sc1")}')
    k.st = st
    k.end()
    return k
```

```python
from n3 import *
def k_g12(cfg, nxt=None):
    k = K4(cfg.get('name', 'k3_qkv_kernel')); p, S = k.p, k.S; MX[0] = cfg.get('mx', 0)
    sX = k.srd('x', A_X, M * DM * 2); sWS = k.srd('ws', WS, WSZ); sWq = k.srd('wq', A_WQKV, DM * 3072 * 2)
    sWo = k.srd('wo', A_WO, DM * DM * 2); sWm = k.srd('wm', W_MOD, 1024 * 6144 * 2); sC = k.srd('c', IN_C, 2048)
    sWg = k.srd('wg', B_WG, DM * FF * 2); sWu = k.srd('wu', B_WU, DM * FF * 2); sWd = k.srd('wd', B_WD, FF * DM * 2); sOut = k.srd('out', OUT, M * DM * 2)
    sw = S.alloc('w'); sWL = S.alloc('wl'); sTok = k.tok = S.alloc('tok')
    k.common = dict(sWS=sWS, sWg=sWg, sWu=sWu, sWd=sWd, sOut=sOut, sw=sw, sWL=sWL, dead=(sWq, sWo))
    assert sWm == sWo + 4
    sy = S.alloc('y', 3)
    smark = S.next
    sm = S.alloc('mt'); sn = S.alloc('nt'); s0 = S.alloc('t0'); s1 = S.alloc('t1'); s2_ = S.alloc('t2'); sv = S.alloc('vm', 2); scnt = S.alloc('cnt')
    sR = S.alloc('R', 4); sR2 = S.alloc('R2', 4); srot = S.alloc('rot', 2); svw = S.alloc('vw'); sva = S.alloc('va'); sW4 = S.alloc('w4', 2); sHalo = S.alloc('halo'); soo = S.alloc('oo'); sfl = S.alloc('fl', 4); sjo = S.alloc('jo', 2); sy2 = sfl + 2
    mA = S.alloc('mask', 14, 2)
    vl16, trA, vdW, vdO, vdJ, vA, vp, vpb, vkw, vqw, vrd, vvt, vt, vM, ACC, RING, TMP = 1, 3, 9, 10, 11, 12, 13, 15, 17, 18, 19, 20, 21, 24, 28, 76, 116
    wreg = lambda b: A0 + 4 * b if b < 63 else 124 + 4 * (b - 63)
    vl = 0
    rtab = lambda T_, r_=srot: F(f's_and_b32 {sr(s0)}, {sr(sw)}, 1\ns_add_u32 {sr(s0)}, {sr(s0)}, {sr(r_)}') + [x for c in range(4) for x in F(f's_add_u32 {sr(T_+c)}, {sr(s0)}, {2*c}\ns_and_b32 {sr(T_+c)}, {sr(T_+c)}, 7\ns_lshl_b32 {sr(T_+c)}, {sr(T_+c)}, 12')]
    curw = [None, None]
    def dmaw(u, srd, vo_, lo_, c, ld, add, fl=''):
        out = []
        for jq in range(4):
            def pre(jq=jq):
                p.ins(f's_add_u32 m0, {sr(sWL)}, {lo_ + jq * 4096}')
                if jq == 0:
                    curw[0] = u
                    if c is None: p.ins(f's_mov_b32 {sr(svw)}, {add}')
                    else: p.ins(f's_add_u32 {sr(svw)}, {sr(srot + (u[0] == "wo"))}, {c}\ns_and_b32 {sr(svw)}, {sr(svw)}, 7\ns_mul_i32 {sr(svw)}, {sr(svw)}, {128 * ld}' + (f'\ns_add_u32 {sr(svw)}, {sr(svw)}, {add}' if add else ''))
                else: p.ins(f's_add_u32 {sr(svw)}, {sr(svw)}, {32 * ld}')
                assert curw[0] == u
            main = lambda jq=jq: p.vm(f'buffer_load_dwordx4 v{vo_}, {sr(srd,4)}, {sr(svw)} offen {fl} lds'.replace('  ', ' '), ('D', u, jq), w=(lo_ + jq * 4096, lo_ + jq * 4096 + 4096))
            out.append((op(pre, 2 if jq else 4), main))
        return out
    lastm0 = [None]
    def dmaa(u, vo_, lo_, n, sbase, add, swl):
        out = []
        for i in range(n):
            def pre(i=i):
                m = f's_add_u32 m0, {sr(swl)}, {lo_}'
                prev = [x[1] for x in p.items if x[0] == 'ins' and ' m0,' in x[1]]
                if prev[-1] != m: p.ins(m)
                if i == 0: curw[1] = u; p.ins(f's_add_u32 {sr(sva)}, {sr(sbase)}, {add}')
                assert curw[1] == u
            main = lambda i=i: p.vm(f'buffer_load_dwordx4 v{vo_}, {sr(sWS,4)}, {sr(sva)} offen offset:{1024 * i} sc1 lds', ('D', u, i), w=(lo_, lo_ + 4096 * n), grp=u)
            out.append((op(pre, 0 if i else 2), main))
        return out
    DBL = [x for c in range(4) for x in ((('q', 2 * c), ('q', 2 * c + 1)), (('k', 2 * c), ('v', 2 * c)), (('k', 2 * c + 1), ('v', 2 * c + 1)))]
    nf = cfg.get('nf', 6)
    LA1, LA2 = cfg.get('LA1', 20), cfg.get('LA2', 16)
    acc = lambda ps, t, e: ACC + 24 * (ps % 2) + (t * 2 + e) * 4
    il = cfg.get('il', 0)
    hx = cfg.get('hx', 0)
    GS = 8 if hx else 12; i2 = cfg.get('i2', 0)
    qs = lambda i: 3 if hx and i == 7 else (i + 1) % 3
    acch = lambda t: TMP + 4 * (t - 1) if il else ACC + 24 + (t * 2) * 4
    acc2 = lambda j, t: 128 + 8 * (j % 2) + 4 * t
    jp = cfg.get('jpos', 545 if il else 358); JS = cfg.get('JS', 10)
    jw, jb, ja = TMP, None, None
    def plan(al):
        st = Stream(p); W = WS_(st, [RING + 4 * i for i in range(10 if il else 12)])
        lo = lambda u: al.get(u, 1 if u[0] == 'v' else 0) * 16384
        def U(u, dm, **kw): W.unit(u, lo(u), lo(u) + 16384, dm, **kw)
        for c in range(8):
            for si, sg in enumerate('qkv'):
                u = (sg, c); U(u, dmaw(u, sWq, vdW, lo(u), c, 6144, si * 2048))
            u = ('wo', c); U(u, dmaw(u, sWo, vdO, lo(u), c, 2048, 0, cfg.get('wofl', '')))
        for ps in range(4):
            for c in range(4):
                u = ('a', ps, c); U(u, dmaa(u, vA, lo(u), 4, sR + c, (2 * ps + 1) * 32768, sW4))
                u = ('o', ps, c); U(u, dmaa(u, vdW, lo(u), 4, sR2 + c, 2 * ps * 32768, sW4))
        for hf in range(2):
            u = ('j', hf); U(u, dmaw(u, sWm, vdJ, lo(u), None, 12288, hf * 128 * 12288, MODNT[1]), wt=cfg.get('jwt', 1))
        HB = [QKV + 8192 * c for c in range(4)]
        for c in range(4):
            u = ('h', c); W.unit(u, HB[c], HB[c] + 8192, dmaa(u, vl16, HB[c], 2, sR + c, sr(sHalo), sW4 + 1))
        def trs(us, t_reg, dst, off, s, lr, tag, span=2048, lim=None):
            b = lo(us[0]) // 65536
            for h in range(2):
                while lim and 0 <= s < lim and 'd' in ''.join(x[1] for x in st.post.get(s, [])): s += 1
                o = lo(us[0]) % 65536 + off + 2048 * h
                W.rd(us, s, lr if lr else s + 6, f'ds_read_b64_tr_b16 {vr(dst + 2 * h,2)}, v{t_reg + 3 * b} offset:{o}', tag + (h,), (65536 * b + o, 65536 * b + o + span))
                s += 1
            return s
        def wreads(d, s):
            a_, b_ = DBL[d]
            L = [([u], 0, 4 * u[1] + jj, jj) for u in (a_, b_) for jj in range(4)] if a_[0] == 'q' else [([a_, b_], t, 4 * a_[1] + jj, jj) for jj in range(4) for t in (1, 2)]
            for i, (us, t, j, jj) in enumerate(L):
                s = trs(us, trA + t, wreg(3 * j + t), jj * 4096, s, None, ('w', j, t), 2048 if t == 0 else 2048 + 16384, 10**6)
                if s >= 0: W.units[us[0]]['force'] = ('w', j, t, 1)
        I = dict(P=[], done={})
        for d in range(nf): wreads(d, -10000 + 100 * d)
        def afr(u, off, areg=vl16, span=1024):
            b = lo(u) // 65536
            return (u, areg + b, 65536 * b, lo(u) % 65536 + off, span)
        need = {}; dead = {}
        def g1q(ps, c):
            for j0 in range(8 * c, 8 * c + 8, 2):
                need.setdefault(j0 // 4, st.n())
                if ps == 3: dead[j0 // 2] = st.n() + GS
                fr = [afr(('a', ps, j0 // 8), e * 8192 + ((j0 + jj) % 8) * 1024) for e in range(2) for jj in range(2)]
                fh = [(('h', j0 // 8), vp, 131072, HB[j0 // 8] - 131072 + ((j0 + jj) % 8) * 1024) for jj in range(2)]
                seq = [(0, 1), (0, 0), (1, 0), (2, 0)] if hx and ps == 3 else [(0, 0), (0, 1), (1, 1), (1, 0), (2, 0), (2, 1)]
                mk = lambda seq, f0: [(acc(ps, t, e) if e < 2 else acch(t), wreg(3 * (j0 + jj) + t), ('f', 2 * e + jj - f0)) for i, (t, e) in enumerate(seq) for jj in ((0, 1) if i % 2 == 0 else (1, 0))]
                lg = [('w', j0 + jj, t, 1) for jj in range(2) for t in range(3)] if ps == 0 else []
                if ps == 0 and il:
                    W.group(fh, mk([(1, 2), (2, 2)], 4), cfg.get('LAi', (14, 18))[0], kind='b', lg=lg)
                    W.group(fr, mk(seq, 0), cfg.get('LAi', (14, 18))[1], kind='b')
                elif ps == 0: W.group(fr + fh, mk(seq + [(2, 2), (1, 2)], 0), LA1, kind='b', lg=lg)
                else: W.group(fr, mk(seq, 0), cfg.get('LA3', 13) if hx and ps == 3 else LA1 if ps > 1 or not il or c > 1 else cfg.get('LAi', (14, 18))[1], kind='b')
        I['P'].append(0)
        for ps, c in ([(0, 0), (1, 0), (0, 1), (1, 1), (0, 2), (0, 3), (1, 2), (1, 3)] if il else [(ps, c) for ps in range(2) for c in range(4)]) + ([(ps, c) for h in (0, 2) for ps in (2, 3) for c in (h, h + 1)] if i2 else [(ps, c) for ps in (2, 3) for c in range(4)]):
            if c == 0:
                I[('st', ps)] = st.n()
                for r_ in range(ACC + 24 * (ps % 2), ACC + 24 * (ps % 2) + 24, 4): st.touched.discard(r_)
                if ps == 1 and not il:
                    for r_ in (RING + 40, RING + 44): W.until[r_] = st.n()
            g1q(ps, c)
            if c == 3 and ps < 3: I['P'].append(st.n())
        T0 = st.n(); I['T0'] = T0
        I['Q'] = []
        for ps in range(4):
            I['Q'].append(st.n())
            for t in range(2): st.touched.discard(acc2(ps, t))
            for j0 in range(0, 32, 2):
                fr = [afr(('o', ps, j0 // 8), ((j0 + jj) % 8) * 1024, vdO2, 1024 + 8192) for jj in range(2)]
                mf = [(acc2(ps, t), wreg(2 * (j0 + jj) + t), ('f', jj)) for t in range(2) for jj in ((0, 1) if t == 0 else (1, 0))]
                W.group(fr, mf, LA2, kind='b', wait=j0 % 4 == 0, lg=[('wo', j0 + jj, t, 1) for jj in range(2) for t in range(2)] if ps == 0 else [])
        for d, s in zip(range(nf, 12), cfg.get('wsl', {8: (0, 44, 92, 140), 6: (0, 44, 76, 108, 140, 188), 7: (0, 44, 92, 140, 182)}.get(nf))):
            assert s + 30 <= need[DBL[d][0][1]], (d, s, need)
            wreads(d, s)
        s = 0
        for c, (s_, dbl) in enumerate(cfg.get('wos', ((24, 0), (53, 0), (84, 1), (84, 1), (115, 1), (115, 1), (145, 1), (145, 1)))):
            s = max(s, s_ + I[('st', 3)])
            for i in range(8):
                b = 8 * c + i; j, t = divmod(b, 2)
                s = max(s, dead[b // 6])
                s = trs([('wo', c)], trA + 1 + t, wreg(b), (j % 4) * 4096, s, None, ('wo', j, t), lim=None if dbl else 10**6)
                if dbl and i % 2: s -= 1
            W.units[('wo', c)]['force'] = ('wo', 4 * c + 3, 1, 1)
        for ks in range(8):
            s = jp + JS * ks
            trs([('j', ks // 4)], trA, TMP + 4 * (ks % 2), (ks % 4) * 4096, s, s + 12, ('jw', ks))
        if nxt:
            for i, (_, ts, g) in enumerate(k.early3):
                u, lo_, hi_, dm = dm3(ts, g); W.unit(u, lo_, hi_, dm); W.units[u].update(fr=st.n() + 10 + i, lr=st.n() + 10 + i)
        W.finish_waits()
        return st, W, I
    k.perm = [[0, 1, 2, 3], [0, 1, 2, 3]]; k.early3 = [(3, ts, g) for ts in range(4) for g in (1, 0)][:cfg.get('ne3', 4)]
    su3, dm3 = g3_early(k, s0, s1, sv, ACC + 40 if il else TMP, cfg.get('oobB', 1))
    vdO2 = 22
    st, W, I = plan({})
    P, T0 = I['P'], I['T0']
    ab = [P[1] + 24, P[2] + cfg.get('ab1', 21), P[3] + cfg.get('ab2', 21), T0 + cfg.get('ab3', 8)]
    bars = sorted(set(ab) | set(cfg.get('b0', ((43, 75, 107, 139, 171, 187) if nf == 6 else (43, 91, 139, 181)) + (235, 331, 397, 523, 571, 619))) | {T0 + x for x in cfg.get('b2', (-140, -109, -78, -48, -17, 47, 79, 111, 143, 175, 207))})
    k.bars = bars
    rel = lambda u: min([b_ for b_ in bars if b_ >= W.units[u]['lr']] + [10**6]) + W.units[u]['lr'] * 1e-4
    al = {}; ft = [0] * 8
    for d in range(nf):
        for i, u in enumerate(DBL[d]): al[u] = 2 * (d % 4) + i; ft[al[u]] = -1000 + d
    chk_it = nf - cfg.get('chk', 2)
    front = {}
    rest = sorted((u for u in W.units if u not in al and u[0] not in ('h', 3)), key=lambda u: W.units[u]['fr'])
    for d in range(nf - 3, nf):
        sl = 2 * ((d - 1) % 4)
        if d < chk_it: us = [u for u in rest if u in [x for D_ in DBL for x in D_]][:2]; assert tuple(us) in DBL
        elif d == chk_it: us = [u for u in rest if u[0] == 'a'][:2]
        else: ft[sl] = ft[sl + 1] = -1000; front[d] = []; continue
        for i, u in enumerate(us): al[u] = sl + i; ft[sl + i] = rel(u); rest.remove(u)
        front[d] = us if d < chk_it else [('h', 0), us[0], us[1]] if il else [us[0], ('h', 0), us[1], ('h', 1)]
    for u in rest:
        if u in al: continue
        if u[0] == 'k':
            sl = min((0, 1, 2, 4, 5, 6), key=lambda x: max(ft[x], ft[x + 1])); al[('v', u[1])] = sl + 1; ft[sl + 1] = rel(u)
        elif u[0] == 'o' and u[1] >= cfg.get('oforce', 9): sl = ((4, 0, 5, 1), (6, 2, 7, 3))[u[1] % 2][u[2]]
        else: sl = min(range(8), key=lambda x: ft[x])
        if ft[sl] == -1000 and u[0] in 'qka': front[nf - 1] += [u] + ([('v', u[1])] if u[0] == 'k' else [])
        al[u] = sl; ft[sl] = rel(u)
    k.perm = [sorted(range(4), key=lambda x: ft[4 * g + x]) for g in range(2)]
    st, W, I = plan(al)
    if cfg.get('dbg'):
        for u in sorted(W.units, key=lambda u: W.units[u]['fr']): print(u, al.get(u), W.units[u]['fr'], W.units[u]['lr'])
        print(front)
    k.al = al
    P, Q, T0, N = I['P'], I['Q'], I['T0'], st.n()
    def issue(us):
        for u in us:
            for pre, main in W.units[u]['dmas']: pre(); main()
    lt, vx, vf, vq, vjc = 28, 44, 60, 92, 23
    vo, vpo, vsw, vsr, vpw, vmr, vone, vm_, q0 = lt, lt + 1, lt + 2, lt + 3, lt + 4, lt + 5, lt + 6, lt + 7, lt + 8
    sx_, sfm, smp, sho, sms = sWg + 2, sWg + 3, sWu + 2, sWd + 2, sOut + 2
    late = [x for x in k.srds if x[0] in (sWg, sWu, sWd, sOut)]; k.srds = [x for x in k.srds if x not in late]
    if cfg.get('body', 1) == 0: p.ins(';@BODY\n;@FROM')
    p.ins(f'v_lshrrev_b32 v{vt}, 6, v0\nv_and_b32 v0, 63, v0\nv_readfirstlane_b32 {sr(sw)}, v{vt}\nv_lshrrev_b32 v{vt+1}, 3, v{vl}')
    p.ins(f'v_bfe_u32 v{vdJ}, v{vt+1}, 1, 2\nv_bfe_u32 v{vt+2}, v{vl}, 1, 2\nv_xor_b32 v{vdJ}, v{vdJ}, v{vt+2}\nv_lshlrev_b32 v{vdJ}, 5, v{vdJ}\nv_and_b32 v{vt+2}, 1, v{vl}\nv_lshl_add_u32 v{vdJ}, v{vt+2}, 4, v{vdJ}')
    p.ins(f's_lshl_b32 {sr(sWL)}, {sr(sw)}, 10\ns_lshl_b32 {sr(s0)}, {sr(sw)}, 3\nv_add_u32 v{vdO}, {sr(s0)}, v{vt+1}')
    p.ins(f's_and_b32 {sr(s0)}, s2, 7\ns_lshl_b32 {sr(s0)}, {sr(s0)}, 7\nv_add_u32 v{vm_}, {sr(s0)}, v{vdO}\nv_mul_u32_u24 v{vm_}, 12288, v{vm_}\ns_lshr_b32 {sr(s1)}, s2, 3\ns_lshl_b32 {sr(s1)}, {sr(s1)}, 7\nv_add3_u32 v{vm_}, v{vm_}, v{vdJ}, {sr(s1)}')
    p.ins(f's_and_b32 {sr(s1)}, {sr(sw)}, 1\ns_lshl_b32 {sr(s1)}, {sr(s1)}, 6\ns_add_u32 {sr(s0)}, {sr(s0)}, {sr(s1)}\nv_add_lshl_u32 v{vpb+1}, {sr(s0)}, v{vl}, 1')
    m16 = cfg.get('m16')
    if m16: p.ins(f's_and_b32 {sr(sn)}, s2, 7\ns_lshl_b32 {sr(sn)}, {sr(sn)}, 1\ns_bfe_u32 {sr(s0)}, s2, 0x10003\ns_add_u32 {sr(sn)}, {sr(sn)}, {sr(s0)}\ns_lshr_b32 {sr(sm)}, s2, 4')
    else: tilemap(k, 'g1', sm, sn, s0, s1)
    p.ins(f's_lshl_b32 {sr(s2_)}, {sr(sm)}, 4\ns_add_u32 {sr(s2_)}, {sr(s2_)}, {sr(sn)}')
    p.ins(f'v_and_b32 v{vt}, 7, v{vl}\nv_lshlrev_b32 v{vo}, 11, v{vt}\nv_lshl_add_u32 v{vo}, v{vt+1}, 4, v{vo}\nv_mov_b32 v{vpo}, {WS_TOK}')
    p.ins(f's_lshr_b32 {sr(sho)}, {sr(s2_)}, 1\ns_lshl_b32 {sr(sho)}, {sr(sho)}, 15\ns_and_b32 {sr(s1)}, {sr(s2_)}, 1\ns_lshl_b32 {sr(s1)}, {sr(s1)}, 2\ns_add_u32 {sr(s1)}, {sr(s1)}, {sr(sw)}\ns_lshl_b32 {sr(s0)}, {sr(s1)}, 8\ns_add_u32 {sr(sx_)}, {sr(sho)}, {sr(s0)}')
    k.finish_srds()
    p.T('f_k')
    p.vm(f'buffer_load_ushort v{vpb}, v{vpb+1}, {sr(sC,4)}, 0 offen', 'mc')
    for pre, main in dmaw('m', sWm, vm_, QKV, None, 12288, 0, MODNT[0]): pre(); main()
    p.vm(f'buffer_load_dword v{q0}, v{vpo}, {sr(sWS,4)}, 0 offen sc1', 'tok')
    p.ins(f's_and_b32 {sr(s0)}, s2, 3\ns_lshl_b32 {sr(s0)}, {sr(s0)}, 2\ns_add_u32 {sr(s0)}, {sr(s0)}, {sr(sw)}\ns_lshl_b32 {sr(s0)}, {sr(s0)}, 7\nv_lshlrev_b32 v{vjc}, 1, v{vl}')
    p.vm(f'buffer_load_ushort v{vjc}, v{vjc}, {sr(sC,4)}, {sr(s0)} offen', 'jc')
    def xload(oth):
        for rh in range(2):
            if oth and rh == 0: p.ins(f's_xor_b32 {sr(sx_)}, {sr(sx_)}, 1024')
            p.ins(f's_add_u32 {sr(s0)}, {sr(sx_)}, {16384 * rh}')
            for i in range(2):
                p.vm(f'buffer_load_dwordx4 {vr((vq if oth else vx)+8*rh+4*i,4)}, v{vo}, {sr(sX,4)}, {sr(s0)} offen offset:{128*i} {cfg.get("xfl", "nt")}', ('x', oth))
    xload(0)
    if cfg.get('body', 1) == 1: p.ins(';@BODY\n;@FROM')
    p.ins(f'v_lshlrev_b32 v{vl16}, 4, v{vl}\nv_add_u32 v{vl16+1}, 65536, v{vl16}\nv_add_u32 v{vp}, 131072, v{vl16}')
    p.ins(f's_lshl_b32 {sr(srot)}, {sr(sn)}, {2 if m16 else 1}\ns_add_u32 {sr(srot)}, {sr(srot)}, {sr(sm)}' if cfg.get('rot', 1) == 1 else f's_lshl_b32 {sr(srot)}, {sr(sn)}, 2\ns_add_u32 {sr(srot)}, {sr(srot)}, {sr(sm)}' if cfg.get('rot') == 2 else f's_and_b32 {sr(srot)}, {sr(sn)}, {cfg["rot"] - 10}' if cfg.get('rot') >= 10 else f's_mov_b32 {sr(srot)}, {sr(sm)}')
    p.ins(f'v_mul_u32_u24 v{vdW}, 6144, v{vdO}\ns_lshl_b32 {sr(s0)}, {sr(sn)}, 7\nv_add3_u32 v{vdW}, v{vdW}, v{vdJ}, {sr(s0)}')
    p.ins(f's_lshl_b32 {sr(s0)}, {sr(s1)}, 12\ns_add_u32 {sr(sho)}, {sr(sho)}, {sr(s0)}\ns_add_u32 {sr(sho+1)}, {sr(sho)}, {WS_XA}\ns_add_u32 {sr(sho)}, {sr(sho)}, {WS_H}\ns_lshl_b32 {sr(smp)}, {sr(s1)}, 9\ns_add_u32 {sr(smp)}, {sr(smp)}, {WS_MP8}\ns_lshl_b32 {sr(smp+1)}, {sr(s1)}, 11\ns_add_u32 {sr(smp+1)}, {sr(smp+1)}, {FL_M}')
    script = cfg.get('script', 'code x1 R0_512 addr gemv R512_512 addr2 su su2 stats stats2 sus warm D8 mld D8 mod xa D8 hpub it+8 it+8 it+8 hpoll it+8 it hchk it+8').split()
    early = sorted(W.early, key=lambda x: x[:2])
    avail = [x for d in range(4) for u in DBL[d] for x in W.units[u]['dmas']]; nit = [0]
    def D(n):
        for _ in range(n):
            if avail: pre, main = avail.pop(0); pre(); main()
    def it():
        d = nit[0]; nit[0] += 1
        p.wait(vm=[('D', u, i) for u in DBL[d] for i in range(4)], lg='all'); p.bar()
        if cfg.get('fm'): p.T(f'it{d}')
        for s, _, f in early:
            if -10000 + 100 * d <= s < -10000 + 100 * d + 100: f()
        if d >= 1 and d != chk_it: avail.extend(x for u in (front[d] if d in front else DBL[d + 3]) for x in W.units[u]['dmas'])
    def addr():
        t_ = q0 + 4
        p.ins(f'v_lshrrev_b32 v{t_+1}, 2, v{vl}\nv_bfe_u32 v{t_}, v{t_+1}, 1, 2\nv_lshlrev_b32 v{t_}, 5, v{t_}\nv_lshl_add_u32 v{t_}, v{t_+1}, 7, v{t_}\nv_and_b32 v{t_+1}, 3, v{vl}\nv_lshl_add_u32 v{t_}, v{t_+1}, 3, v{t_}')
        p.ins(f's_lshl_b32 {sr(s0)}, {sr(sw)}, 5\nv_xor_b32 v{trA}, {sr(s0)}, v{t_}\ns_and_b32 {sr(s0)}, {sr(s0)}, 64\ns_and_b32 {sr(s1)}, {sr(sw)}, 1\ns_lshl_b32 {sr(s1)}, {sr(s1)}, 14\ns_add_u32 {sr(s0)}, {sr(s0)}, {sr(s1)}\nv_xor_b32 v{trA+1}, {sr(s0)}, v{t_}\nv_xor_b32 v{trA+2}, 32, v{trA+1}')
        for t in range(3): p.ins(f'v_add_u32 v{trA+3+t}, 65536, v{trA+t}')
        p.ins(f'v_add_u32 v{vm_}, {QKV}, v{trA}')
        p.ins(f'v_lshrrev_b32 v{vsw}, 5, v{vl}\nv_lshlrev_b32 v{vsw}, 6, v{vsw}\nv_bfe_u32 v{t_}, v{vl}, 2, 2\nv_lshl_add_u32 v{vsw}, v{t_}, 4, v{vsw}\nv_bfe_u32 v{t_}, v{vl}, 4, 1\nv_lshl_add_u32 v{vsw}, v{t_}, 3, v{vsw}\nv_lshl_add_u32 v{vsw}, v{t_+1}, 1, v{vsw}\ns_lshl_b32 {sr(s0)}, {sr(sw)}, 7\ns_add_u32 {sr(s0)}, {sr(s0)}, {JT}\nv_add_u32 v{vsw}, {sr(s0)}, v{vsw}')
        p.ins(f'v_lshrrev_b32 v{vpw}, 4, v{vl}\nv_lshlrev_b32 v{vpw}, 4, v{vpw}\nv_add_u32 v{vsr}, {JT}, v{vpw}\nv_and_b32 v{t_}, 15, v{vl}\nv_lshl_add_u32 v{vpw}, v{t_}, 27, v{vpw}')
        p.ins(f's_and_b32 {sr(s0)}, s2, 7\ns_lshl_b32 {sr(s0)}, {sr(s0)}, 13\ns_lshr_b32 {sr(s1)}, s2, 3\ns_lshl_b32 {sr(s1)}, {sr(s1)}, 8\ns_add_u32 {sr(s0)}, {sr(s0)}, {sr(s1)}\ns_lshl_b32 {sr(s1)}, {sr(sw)}, 6\ns_add_u32 {sr(s0)}, {sr(s0)}, {sr(s1)}\ns_add_u32 {sr(sms)}, {sr(s0)}, {WS_MP8}')
        p.ins(f's_lshl_b32 {sr(s1)}, {sr(sw)}, 28\ns_lshl_b32 {sr(sfm)}, s2, 7\ns_add_u32 {sr(sfm)}, {sr(sfm)}, {sr(s1)}\ns_add_u32 {sr(sfm)}, {sr(sfm)}, {FL_M}')
        p.ins(f's_lshl_b32 {sr(sfl)}, {sr(s2_)}, 7\ns_add_u32 {sr(sfl)}, {sr(sfl)}, {sr(s1)}\ns_add_u32 {sr(sfl+1)}, {sr(sfl)}, {FL_H}\ns_add_u32 {sr(sfl)}, {sr(sfl)}, {FL_O}')
    tagm = 'mld' in script; stg = (sv, sv + 1, sva, s2_)
    def gemv():
        g_ = vf
        p.wait(vm=['mc'])
        p.ins(f'v_lshlrev_b32 v{vpb}, 16, v{vpb}\nv_mul_f32 v{vpb+1}, {f32(-LOG2E)}, v{vpb}\nv_exp_f32 v{vpb+1}, v{vpb+1}\nv_add_f32 v{vpb+1}, 1.0, v{vpb+1}\nv_rcp_f32 v{vpb+1}, v{vpb+1}\nv_mul_f32 v{vpb}, v{vpb}, v{vpb+1}\nv_cvt_pk_bf16_f32 v{vpb}, v{vpb}, v{vpb}')
        p.lg(f'ds_write_b16 v{vsw}, v{vpb}', None, w=(JT, JT + 512))
        p.wait(vm=[('D', 'm', i) for i in range(4)], lg='all'); p.bar(); p.T('f_m')
        for ks in range(4):
            for h in range(2): p.lg(f'ds_read_b64_tr_b16 {vr(g_+4*ks+2*h,2)}, v{vm_} offset:{4096*ks+2048*h}', None, r=(QKV, QKV + 16384))
            p.lg(f'ds_read_b128 {vr(g_+16+4*ks,4)}, v{vsr} offset:{64*ks}', ('mr', ks), r=(JT, JT + 512))
        p.wait(vm=['tok']); p.ins(f'v_readfirstlane_b32 {sr(sTok)}, v{q0}\ns_add_u32 {sr(sTok)}, {sr(sTok)}, 8')
        if tagm:
            p.ins(f's_mul_i32 {sr(s0)}, {sr(sTok)}, 0x13c6ef37\nv_mov_b32 v{q0}, 0xff\n' + '\n'.join(f's_bfe_u32 {sr(stg[i])}, {sr(s0)}, {hex(0x80000 + 8 * i)}' for i in range(4)))
        for ks in range(4):
            p.wait(lg=[('mr', ks)])
            p.ins(f'{MFMA} {vr(q0+4,4)}, {vr(g_+4*ks,4)}, {vr(g_+16+4*ks,4)}, {vr(q0+4,4) if ks else 0}')
        if tagm:
            for i in range(4): p.ins(f'v_bfi_b32 v{q0+4+i}, v{q0}, {sr(stg[i])}, v{q0+4+i}')
        p.vm(f'buffer_store_dwordx4 {vr(q0+4,4)}, v{vpw}, {sr(sWS,4)}, {sr(sms)} offen sc1', 'ms'); p.T('f_ms')
    def stats():
        p.ins(f's_lshl_b32 {sr(s1)}, {sr(sw)}, 4\nv_lshlrev_b32 v{vsr}, 6, v{vt}\nv_add_u32 v{vsr}, {LS}, v{vsr}\nv_add_u32 v{vsw}, {sr(s1)}, v{vsr}\nv_mov_b32 v{vone}, 0x3f803f80')
        for i in range(4): p.ins(f'v_mov_b32 v{q0+i}, 0')
        for oth in range(2):
            p.wait(vm=[('x', oth)])
            for d in range(8):
                for rh in range(2):
                    x_ = (vq if oth else vx) + 8 * rh + d
                    p.ins(f'v_dot2c_f32_bf16 v{q0+2*rh}, v{x_}, v{vone}\nv_dot2c_f32_bf16 v{q0+2*rh+1}, v{x_}, v{x_}')
        p.ins('s_nop 2')
        for i in range(4): p.ins(f'v_add_f32_dpp v{q0+i}, v{q0+i}, v{q0+i} row_ror:8 row_mask:0xf bank_mask:0xf')
        for sw_ in (16, 32):
            for i in range(4): p.ins(f'v_mov_b32 v{q0+4+i}, v{q0+i}')
            for i in range(4): p.ins(f'v_permlane{sw_}_swap_b32 v{q0+i}, v{q0+4+i}')
            for i in range(4): p.ins(f'v_add_f32 v{q0+i}, v{q0+i}, v{q0+4+i}')
        p.lg(f'ds_write_b128 v{vsw}, {vr(q0,4)}', None, w=(LS, LS + 512))
    def stats2():
        for d in range(16): p.ins(f'v_lshlrev_b32 v{vf+2*d}, 16, v{vx+d}\nv_and_b32 v{vf+2*d+1}, 0xffff0000, v{vx+d}')
        p.wait(lg='all'); p.bar()
        for i in range(4): p.lg(f'ds_read_b128 {vr(vq+4*i,4)}, v{vsr} offset:{16*i}', None, r=(LS, LS + 512))
        for i in range(0, 16, 4): p.ins(f'v_permlane16_swap_b32 v{vx+i}, v{vx+i+2}\nv_permlane16_swap_b32 v{vx+i+1}, v{vx+i+3}')
        t_ = q0
        p.ins(f'v_bfe_u32 v{t_}, v{vl}, 3, 1\nv_lshlrev_b32 v{vo}, 9, v{t_}\nv_bfe_u32 v{t_}, v{vl}, 4, 1\nv_lshl_add_u32 v{vo}, v{t_}, 8, v{vo}\nv_lshrrev_b32 v{vone}, 5, v{vl}\nv_lshl_add_u32 v{vo}, v{vone}, 10, v{vo}\nv_lshl_add_u32 v{vo}, v{vt}, 4, v{vo}')
        p.ins(f'v_and_b32 v{vpo}, 31, v{vl}\nv_lshlrev_b32 v{vpo}, 4, v{vpo}\nv_lshl_add_u32 v{vpo}, v{vone}, 12, v{vpo}\nv_cvt_f32_u32 v{vone}, v{vone}')
        p.ins(f's_add_u32 {sr(s1)}, {sr(sWL)}, {LB}\nv_add_u32 v{vpw}, {sr(s1)}, v{vl16}\nv_lshl_add_u32 v{vmr}, v{vt+1}, 5, {sr(s1)}')
        p.ins(f'v_lshlrev_b32 v{t_}, 14, v{t_}\nv_and_b32 v{vm_}, 15, v{vl}\nv_lshl_add_u32 v{vm_}, v{vm_}, 7, v{t_}')
        p.wait(lg='all')
        for n_ in (8, 4):
            for x in range(n_): p.ins(f'v_add_f32 v{vq+x}, v{vq+x}, v{vq+n_+x}')
        Ls = []
        for rh in range(2):
            m_, v_ = vq + 2 * rh, vq + 2 * rh + 1
            Ls.append(F(f'v_mul_f32 v{m_}, {f32(1/1024)}, v{m_}\nv_mul_f32 v{v_}, {f32(1/1024)}, v{v_}\nv_fma_f32 v{v_}, -v{m_}, v{m_}, v{v_}\nv_max_f32 v{v_}, 0, v{v_}') + rb(v_) + [f'v_add_f32 v{v_}, {f32(1e-5)}, v{v_}'] + rb(v_)
                      + [f'v_sqrt_f32 v{v_}, v{v_}'] + rb(m_) + rb(v_) + F(f'v_rcp_f32 v{v_}, v{v_}\nv_mul_f32 v{m_}, v{m_}, v{v_}'))
        for x, y in zip(*Ls): p.ins(x + '\n' + y)
        for e in range(32): p.ins(f'v_fma_f32 v{vf+e}, v{vf+e}, v{vq+2*(e//16)+1}, -v{vq+2*(e//16)}')
    def xa():
        for i in range(4): p.vm(f'buffer_store_dwordx4 {vr(vx+4*i,4)}, v{vo}, {sr(sWS,4)}, {sr(sho+1)} offen offset:{2048*(i&1)+128*(i>>1)} sc1')
    im, cm = poll_ops(k, sWS, q0, smp + 1, 'plm', scnt, wg=False, va=vm_)
    def mchk():
        p.T('m_a'); cm(); p.T('m_b')
        for q in range(8):
            if q: p.ins(f's_add_u32 {sr(smp)}, {sr(smp)}, 8192')
            p.vm(f'buffer_load_dwordx4 {vr(vq+4*q,4)}, v{vpo}, {sr(sWS,4)}, {sr(smp)} offen sc1', ('part', q))
    pld = lambda q: f's_add_u32 {sr(s0)}, {sr(smp)}, {8192 * q}\nbuffer_load_dwordx4 {vr(vq+4*q,4)}, v{vpo}, {sr(sWS,4)}, {sr(s0)} offen sc1'.split('\n')
    def mld():
        p.T('m_a')
        for q in range(8): p.ins(pld(q)[0]); p.vm(pld(q)[1], ('part', q))
    def mtest():
        L = k.lab('MT')
        p.ins(f's_mov_b32 {sr(scnt)}, 20000\ns_branch {L}t')
        p.label(L)
        for q in range(8): p.ins(pld(q)[0] + '\n' + pld(q)[1] + ' ; cond')
        p.ins('s_waitcnt vmcnt(0) ; cond')
        p.label(L + 't')
        for q in range(8):
            p.wait(vm=[('part', q)])
            for i in range(4): p.ins(f'v_xor_b32 v{vq+4*q+i}, {sr(stg[i])}, v{vq+4*q+i}')
            p.ins(f'v_or3_b32 v{q0}, v{vq+4*q}, v{vq+4*q+1}, {"v%d" % q0 if q else 0}\nv_or3_b32 v{q0}, v{vq+4*q+2}, v{vq+4*q+3}, v{q0}')
        p.ins(f'v_and_b32 v{q0}, 0xff, v{q0}\nv_cmp_ne_u32 vcc, 0, v{q0}\ns_sub_u32 {sr(scnt)}, {sr(scnt)}, 1\ns_cmp_eq_u32 {sr(scnt)}, 0\ns_cbranch_scc1 {L}x\ns_cbranch_vccnz {L}')
        p.label(L + 'x'); p.T('m_b')
    def mod():
        if tagm: mtest()
        for q in range(1, 8):
            p.wait(vm=[('part', q)])
            for i in (0, 2): p.ins(f'v_pk_add_f32 {vr(vq+i,2)}, {vr(vq+i,2)}, {vr(vq+4*q+i,2)}')
        p.T('f_p')
        for rep in range(2):
            p.ins(f'v_cvt_pk_bf16_f32 v{vq+4}, v{vq}, v{vq+1}\nv_cvt_pk_bf16_f32 v{vq+5}, v{vq+2}, v{vq+3}')
            for i in (0, 2): p.ins(f'v_lshlrev_b32 v{vq+i}, 16, v{vq+4+i//2}\nv_and_b32 v{vq+i+1}, 0xffff0000, v{vq+4+i//2}')
            if rep == 0:
                for i in range(4): p.ins(f'v_add_f32 v{vq+i}, v{vone}, v{vq+i}')
        p.lg(f'ds_write_b128 v{vpw}, {vr(vq,4)}', None, w=(LB, LB + 4096), priv=True)
        for i in range(2):
            for h in range(2):
                p.lg(f'ds_read_b128 {vr(vq+8*i+4*h,4)}, v{vmr} offset:{256*i+16*h+512}', None, r=(LB, LB + 4096), priv=True)
                p.lg(f'ds_read_b128 {vr(vq+16+8*i+4*h,4)}, v{vmr} offset:{256*i+16*h}', ('mv', i), r=(LB, LB + 4096), priv=True)
        for i in range(2):
            p.wait(lg=[('mv', i)])
            for rh in range(2):
                f_ = vf + 16 * rh + 8 * i
                for e in range(0, 8, 2): p.ins(f'v_pk_fma_f32 {vr(f_+e,2)}, {vr(f_+e,2)}, {vr(vq+8*i+e,2)}, {vr(vq+16+8*i+e,2)}')
            for rh in range(2):
                f_ = vf + 16 * rh + 8 * i
                for d in range(4): p.ins(f'v_cvt_pk_bf16_f32 v{f_+d}, v{f_+2*d}, v{f_+2*d+1}')
            for rh in range(2):
                f_ = vf + 16 * rh + 8 * i
                p.ins(f'v_permlane16_swap_b32 v{f_}, v{f_+2}\nv_permlane16_swap_b32 v{f_+1}, v{f_+3}')
                p.vm(f'buffer_store_dwordx4 {vr(f_,4)}, v{vo}, {sr(sWS,4)}, {sr(sho)} offen offset:{2048*i+128*rh} sc1', ('hs', 2 * i + rh))
        p.T('f_hs')
    def addr2():
        p.ins(f's_lshl_b32 {sr(s0)}, {sr(sm)}, 18\ns_add_u32 {sr(s0)}, {sr(s0)}, {WS_H - 32768}\n' + (f's_cmp_eq_u32 {sr(sm)}, 0\ns_cselect_b32 {sr(sHalo)}, {WS_H + 127 * 32768}, {sr(s0)}' if hx else f's_max_u32 {sr(sHalo)}, {sr(s0)}, {WS_H}') + f'\ns_lshr_b32 {sr(s1)}, {sr(sw)}, 1\ns_lshl_b32 {sr(sW4)}, {sr(s1)}, 15\ns_add_u32 {sr(s0)}, {sr(s0)}, {sr(sW4)}\nv_add_u32 v{vA}, {sr(s0)}, v{vl16}')
        p.ins(f's_lshl_b32 {sr(s1)}, {sr(s1)}, 11\ns_add_u32 {sr(sHalo)}, {sr(sHalo)}, {sr(s1)}\ns_lshl_b32 {sr(sW4)}, {sr(sw)}, 12\ns_and_b32 {sr(s0)}, {sr(sW4)}, 4096\ns_add_u32 {sr(sW4+1)}, {sr(s0)}, {sr(s1)}')
        p.ins('\n'.join(rtab(sR)))
        p.ins(f's_lshl_b32 {sr(s0)}, {sr(sm)}, 4\ns_sub_u32 {sr(s0)}, {sr(s0)}, 2\nv_min_u32 v{vp+1}, 17, v{vl}\nv_add_u32 v{vp+1}, {sr(s0)}, v{vp+1}\n{"v_and_b32" if hx else "v_max_i32"} v{vp+1}, {255 if hx else 0}, v{vp+1}\nv_lshlrev_b32 v{vp+1}, 7, v{vp+1}\nv_add_u32 v{vp+1}, {FL_H}, v{vp+1}')
    ih, ch = poll_ops(k, sWS, q0, None, 'plh', scnt, va=vp + 1)
    def hchk():
        assert nit[0] == chk_it + 1 and not avail
        p.T('h_a'); ch(); p.T('h_b'); issue(front[chk_it])
    def code():
        p.ins(f's_lshr_b32 {sr(mA+3)}, s2, 3\ns_lshl_b32 {sr(mA+3)}, {sr(mA+3)}, 2\ns_add_u32 {sr(mA+3)}, {sr(mA+3)}, {sr(sw)}\ns_lshl_b32 {sr(mA+3)}, {sr(mA+3)}, 10')
        code_op(k, vM, vl16, mA)
    T = TMP if False else vt
    q_ = lambda l: l & 15
    gg = lambda l: l >> 4
    vccm = lambda m: f's_mov_b32 vcc_lo, 0x{m & 0xffffffff:08x}\ns_mov_b32 vcc_hi, 0x{m >> 32:08x}'
    m64 = lambda s_, m: F(f's_mov_b32 {sr(s_)}, 0x{m & 0xffffffff:08x}\ns_mov_b32 {sr(s_+1)}, 0x{m >> 32:08x}')
    mpa = lanemask(lambda l: not (4 * gg(l) + (l & 1) <= q_(l))); mpb = lanemask(lambda l: not (4 * gg(l) + 2 + (l & 1) <= q_(l)))
    sb, sn2 = sjo + 1, sms + 1
    su = []
    su += F(f's_and_b32 {sr(s0)}, s2, 3\ns_lshl_b32 {sr(s0)}, {sr(s0)}, 8\nv_add_u32 v{q0+4}, {sr(s0)}, v{vdO}\nv_mul_u32_u24 v{q0+4}, 12288, v{q0+4}\ns_lshr_b32 {sr(s1)}, s2, 2\ns_add_u32 {sr(s1)}, {sr(s1)}, 32\ns_lshl_b32 {sr(s1)}, {sr(s1)}, 7')
    su += F(f'v_lshl_add_u32 v{vdO}, v{vdO}, 11, v{vdJ}\nv_add3_u32 v{vdJ}, v{q0+4}, v{vdJ}, {sr(s1)}')
    su += F(f's_and_b32 {sr(s0)}, {sr(sw)}, 1\ns_lshl_b32 {sr(s1)}, {sr(sm)}, 3\ns_add_u32 {sr(s1)}, {sr(s1)}, {sr(s0)}\ns_lshl_b32 {sr(soo)}, {sr(s1)}, 15\ns_lshl_b32 {sr(s1)}, {sr(sn)}, 1\ns_lshr_b32 {sr(scnt)}, {sr(sw)}, 1\ns_add_u32 {sr(s1)}, {sr(s1)}, {sr(scnt)}\ns_lshl_b32 {sr(s1)}, {sr(s1)}, 10\ns_add_u32 {sr(soo)}, {sr(soo)}, {sr(s1)}\ns_add_u32 {sr(soo)}, {sr(soo)}, {WS_O}')
    su += F(f's_mul_i32 {sr(scnt)}, {sr(scnt)}, 3072\ns_add_u32 {sr(scnt)}, {sr(scnt)}, {QKV}\nv_add_u32 v{vrd}, {sr(scnt)}, v{vl16}\ns_lshl_b32 {sr(s1)}, {sr(s0)}, 3\nv_add_u32 v{vqw}, {sr(s1)}, v{vrd}\ns_lshl_b32 {sr(s1)}, {sr(s0)}, 10\nv_add_u32 v{vkw}, {sr(s1)}, v{vrd}')
    su += F(f'v_lshrrev_b32 v{q0+4}, 2, v{vl}\nv_and_b32 v{vvt}, 3, v{vl}\nv_lshl_add_u32 v{q0+4}, v{vvt}, 4, v{q0+4}\nv_lshl_add_u32 v{vvt}, v{q0+4}, 4, {sr(scnt)}')
    for r_ in range(4): su += m64(mA + 2 * r_, lanemask(lambda l: 4 * gg(l) + r_ <= q_(l)))
    su += m64(mA + 8, lanemask(lambda l: l & 1)) + m64(mA + 10, mpa) + m64(mA + 12, mpb)
    su += F(f'v_mov_b32 v{q0+5}, 0xffff\nv_mov_b32 v{vM}, 0xffff0000\nv_cndmask_b32 v{q0+5}, v{q0+5}, v{vM}, {sr(mA+8,2)}\nv_cndmask_b32 v{vM}, 0, v{q0+5}, {sr(mA+10,2)}\nv_cndmask_b32 v{vM+1}, 0, v{q0+5}, {sr(mA+12,2)}\nv_xor_b32 v{vM+2}, v{vM}, v{q0+5}\nv_xor_b32 v{vM+3}, v{vM+1}, v{q0+5}')
    su.append(f's_or_b32 {sr(s0)}, {sr(s0)}, {sr(sm)}\ns_cmp_eq_u32 {sr(s0)}, 0\ns_cselect_b64 {sr(mA+10,2)}, {sr(mA+10,2)}, 0\ns_cselect_b64 {sr(mA+12,2)}, {sr(mA+12,2)}, 0')
    sus = [lambda: p.wait(vm=['jc'])]
    sus += F(f'v_lshlrev_b32 v{vpb}, 16, v{vjc}\nv_mul_f32 v{vpb+1}, {f32(-LOG2E)}, v{vpb}\nv_exp_f32 v{vpb+1}, v{vpb+1}\nv_lshrrev_b32 v{vt}, 5, v{vl}\nv_add_f32 v{vpb+1}, 1.0, v{vpb+1}\nv_rcp_f32 v{vpb+1}, v{vpb+1}\nv_lshlrev_b32 v{vt}, 6, v{vt}\nv_mul_f32 v{vpb}, v{vpb}, v{vpb+1}\nv_cvt_pk_bf16_f32 v{vpb+1}, v{vpb}, v{vpb}')
    sus += F(f'v_bfe_u32 v{vpb}, v{vl}, 2, 2\nv_lshl_add_u32 v{vt}, v{vpb}, 4, v{vt}\nv_bfe_u32 v{vpb}, v{vl}, 4, 1\nv_lshl_add_u32 v{vt}, v{vpb}, 3, v{vt}\nv_and_b32 v{vpb}, 3, v{vl}\nv_lshl_add_u32 v{vt}, v{vpb}, 1, v{vt}\ns_lshl_b32 {sr(s1)}, {sr(sw)}, 7\ns_add_u32 {sr(s1)}, {sr(s1)}, {JT}\nv_add_u32 v{vt}, {sr(s1)}, v{vt}')
    jtp = min(b_ for b_ in bars if b_ >= W.units[('h', 3)]['lr']) + 1
    st.at(jtp, lambda: p.lg(f'ds_write_b16 v{vt}, v{vpb+1}', 'jtw', w=(JT, JT + 512)))
    su2 = F(f's_bfe_u32 {sr(s1)}, s2, 0x30003\ns_lshl_b32 {sr(sn2)}, {sr(s1)}, 1\ns_and_b32 {sr(s0)}, s2, 1\ns_add_u32 {sr(sn2)}, {sr(sn2)}, {sr(s0)}\ns_and_b32 {sr(sb)}, s2, 4\ns_lshr_b32 {sr(s0)}, s2, 6\ns_add_u32 {sr(sb)}, {sr(sb)}, {sr(s0)}\ns_lshl_b32 {sr(sb)}, {sr(sb)}, 1')
    su2 += F(f's_add_u32 {sr(srot+1)}, {sr(sb)}, {sr(s1)}' if cfg.get('rot2', 1) else f's_mov_b32 {sr(srot+1)}, 0') + F(f's_bfe_u32 {sr(s0)}, s2, 0x10001\ns_add_u32 {sr(sb)}, {sr(sb)}, {sr(s0)}') + rtab(sR2, srot + 1)
    su2 += F(f's_lshl_b32 {sr(s0)}, {sr(sn2)}, 7\nv_add_u32 v{vdO}, {sr(s0)}, v{vdO}')
    su2 += F(f's_lshl_b32 {sr(s0)}, {sr(sb)}, 18\ns_lshr_b32 {sr(s1)}, {sr(sw)}, 1\ns_lshl_b32 {sr(s1)}, {sr(s1)}, 15\ns_add_u32 {sr(s1)}, {sr(s0)}, {sr(s1)}\ns_add_u32 {sr(sjo)}, {sr(s1)}, {WS_O}')
    su2v = [f's_mov_b32 {sr(x[0]+2+i)}, {(x[1], 0x20000)[i]}' for x in late for i in range(2)] + [f'v_add_u32 v{vdW}, {sr(sjo)}, v{vl16}'] + [f'v_and_b32 v{trA+t}, 0xffffbfff, v{trA+t}' for t in (1, 2, 4, 5)]
    su2 += F(f's_and_b32 {sr(s1)}, {sr(sw)}, 1')
    su2v += F(f's_lshl_b32 {sr(s0)}, {sr(sw)}, 13\ns_and_b32 {sr(s0)}, {sr(s0)}, 8192\nv_add_u32 v{vdO2}, {sr(s0)}, v{vl16}\nv_add_u32 v{vdO2+1}, {sr(s0)}, v{vl16+1}')
    su2 += F(f's_lshl_b32 {sr(s1)}, {sr(s1)}, 15\ns_add_u32 {sr(s0)}, {sr(s0)}, {sr(s1)}\ns_lshl_b32 {sr(s1)}, {sr(sn2)}, 1\ns_lshr_b32 {sr(scnt)}, {sr(sw)}, 1\ns_add_u32 {sr(s1)}, {sr(s1)}, {sr(scnt)}\ns_lshl_b32 {sr(sy2)}, {sr(s1)}, 7\ns_lshl_b32 {sr(s1)}, {sr(s1)}, 10\ns_add_u32 {sr(sy)}, {sr(s0)}, {sr(s1)}')
    su2 += F(f's_lshr_b32 {sr(s1)}, {sr(s1)}, 1\ns_lshl_b32 {sr(s0)}, {sr(sb)}, 1\ns_and_b32 {sr(scnt)}, {sr(sw)}, 1\ns_add_u32 {sr(s0)}, {sr(s0)}, {sr(scnt)}\ns_lshl_b32 {sr(s0)}, {sr(s0)}, 14\ns_add_u32 {sr(s0)}, {sr(s0)}, {sr(s1)}\ns_add_u32 {sr(sy+1)}, {sr(s0)}, {WS_ST2}')
    su2 += F(f's_lshl_b32 {sr(s0)}, {sr(sb)}, 11\ns_lshl_b32 {sr(s1)}, {sr(sn2)}, 7\ns_add_u32 {sr(s1)}, {sr(s1)}, {sr(s0)}\ns_lshl_b32 {sr(scnt)}, {sr(sw)}, 28\ns_add_u32 {sr(s1)}, {sr(s1)}, {sr(scnt)}\ns_add_u32 {sr(sy+2)}, {sr(s1)}, {FL_Y}')
    su2 += F(f's_add_u32 {sr(sfl+3)}, {sr(s0)}, {FL_O}')
    opl = F(f'v_and_b32 v{vp+1}, 15, v{vl}\nv_lshlrev_b32 v{vp+1}, 7, v{vp+1}')
    su2v += opl
    if hx:
        su2v += F(f's_lshl_b32 {sr(s0)}, {sr(sm)}, 4\ns_add_u32 {sr(s0)}, {sr(s0)}, {sr(sn)}\ns_lshl_b32 {sr(sHalo)}, {sr(s0)}, 12\ns_add_u32 {sr(sHalo)}, {sr(sHalo)}, {sr(sWL)}\ns_add_u32 {sr(sHalo)}, {sr(sHalo)}, {WS_KV}')
        su2v += F(f's_add_u32 {sr(s0)}, {sr(s0)}, 16\ns_and_b32 {sr(s0)}, {sr(s0)}, 255\ns_lshl_b32 {sr(sm)}, {sr(s0)}, 12\ns_add_u32 {sr(sm)}, {sr(sm)}, {sr(sWL)}\ns_add_u32 {sr(sm)}, {sr(sm)}, {WS_KV}')
        su2v += F(f's_lshl_b32 {sr(s0)}, {sr(s0)}, 7\ns_add_u32 {sr(s0)}, {sr(s0)}, {FL_O + 32768}\ns_sub_u32 {sr(s0)}, {sr(s0)}, {sr(sfl+3)}\ns_sub_u32 {sr(sfl+3)}, {sr(sfl+3)}, 32768\nv_add_u32 v{vp+1}, 32768, v{vp+1}\nv_writelane_b32 v{vp+1}, {sr(s0)}, 16')
        su2v += F(f's_lshr_b32 {sr(s0)}, {sr(sw)}, 1\ns_lshl_b32 {sr(s0)}, {sr(s0)}, 10\ns_add_u32 {sr(sn)}, {sr(s0)}, {sr(sWL)}\ns_add_u32 {sr(sn)}, {sr(sn)}, {QKV + 3 * 6144 + 1024}')
    def run(L):
        for o in L: p.ins(o) if isinstance(o, str) else o()
    def tw(i0, n):
        p.ins(f's_add_u32 {sr(s0)}, {sr(sw)}, {i0}\ns_lshr_b32 {sr(s1)}, {sr(s0)}, 1\ns_lshl_b32 {sr(s1)}, {sr(s1)}, 11\ns_and_b32 {sr(s0)}, {sr(s0)}, 1\ns_and_b32 {sr(scnt)}, {sr(sm if cfg.get("rot", 1) != 1 else srot)}, 7\ns_lshl_b32 {sr(scnt)}, {sr(scnt)}, 1\ns_add_u32 {sr(s0)}, {sr(s0)}, {sr(scnt)}\ns_mul_i32 {sr(s0)}, {sr(s0)}, {64 * 6144}\ns_add_u32 {sr(s0)}, {sr(s0)}, {sr(s1)}')
        p.ins(f's_lshl_b32 {sr(s1)}, {sr(sn)}, 7\ns_add_u32 {sr(s0)}, {sr(s0)}, {sr(s1)}\ns_cmp_lt_u32 {sr(sw)}, {n}\ns_cselect_b32 {sr(s0)}, {sr(s0)}, {OOB}\nv_mul_u32_u24 v{vpb+1}, 6144, v{vl}')
        p.vm(f'buffer_load_dword a252, v{vpb+1}, {sr(sWq,4)}, {sr(s0)} offen {cfg.get("tfl", "")}', 'dummy')
    def tw16():
        p.ins(f's_lshl_b32 {sr(s1)}, {sr(sw)}, 11\ns_mul_i32 {sr(s0)}, {sr(sm)}, {64 * 6144}\ns_add_u32 {sr(s0)}, {sr(s0)}, {sr(s1)}\ns_lshl_b32 {sr(s1)}, {sr(sn)}, 7\ns_add_u32 {sr(s0)}, {sr(s0)}, {sr(s1)}\ns_cmp_lt_u32 {sr(sw)}, 3\ns_cselect_b32 {sr(s0)}, {sr(s0)}, {OOB}\nv_mul_u32_u24 v{vpb+1}, 6144, v{vl}')
        p.vm(f'buffer_load_dword a252, v{vpb+1}, {sr(sWq,4)}, {sr(s0)} offen {cfg.get("tfl", "")}', 'dummy')
    def tq(i0, n):
        p.ins(f's_add_u32 {sr(s0)}, {sr(sw)}, {i0}\ns_sub_u32 {sr(s1)}, 5, {sr(s0)}\ns_bitcmp1_b32 s2, 2\ns_cselect_b32 {sr(s0)}, {sr(s1) if cfg.get("trev", 1) else sr(s0)}, {sr(s0)}')
        p.ins(f's_lshr_b32 {sr(s1)}, {sr(s0)}, 1\ns_lshl_b32 {sr(s1)}, {sr(s1)}, 11\ns_and_b32 {sr(s0)}, {sr(s0)}, 1\ns_lshr_b32 {sr(scnt)}, s2, 3\ns_lshl_b32 {sr(scnt)}, {sr(scnt)}, 1\ns_add_u32 {sr(s0)}, {sr(s0)}, {sr(scnt)}\ns_mul_i32 {sr(s0)}, {sr(s0)}, {16 * 6144}\ns_add_u32 {sr(s0)}, {sr(s0)}, {sr(s1)}')
        p.ins(f's_and_b32 {sr(s1)}, s2, 3\ns_lshl_b32 {sr(s1)}, {sr(s1)}, 9\ns_add_u32 {sr(s0)}, {sr(s0)}, {sr(s1)}\ns_cmp_lt_u32 {sr(sw)}, {n}\ns_cselect_b32 {sr(s0)}, {sr(s0)}, {OOB}\nv_lshrrev_b32 v{vpb+1}, 2, v{vl}\nv_mul_u32_u24 v{vpb+1}, {6144 - 512}, v{vpb+1}\nv_lshl_add_u32 v{vpb+1}, v{vl}, 7, v{vpb+1}')
        p.vm(f'buffer_load_dword a252, v{vpb+1}, {sr(sWq,4)}, {sr(s0)} offen', 'dummy'); p.items.append(('vmark', f'tq{i0}'))
    def tr(r0, n):
        t_ = q0 + 7
        p.ins(f's_lshr_b32 {sr(s0)}, s2, 3\ns_mul_i32 {sr(s0)}, {sr(s0)}, {n // 32 * 6144}\ns_lshl_b32 {sr(s1)}, {sr(sw)}, 11\ns_add_u32 {sr(s0)}, {sr(s0)}, {sr(s1)}\ns_and_b32 {sr(s1)}, s2, 3\ns_lshl_b32 {sr(s1)}, {sr(s1)}, 9\ns_add_u32 {sr(s0)}, {sr(s0)}, {sr(s1)}\ns_add_u32 {sr(s0)}, {sr(s0)}, {r0 * 6144}')
        p.ins(f's_cmp_lt_u32 {sr(sw)}, 3\ns_cselect_b32 {sr(s0)}, {sr(s0)}, {OOB}\nv_lshrrev_b32 v{t_}, 2, v{vl}\nv_mul_u32_u24 v{t_}, {6144 - 512}, v{t_}\nv_lshl_add_u32 v{t_}, v{vl}, 7, v{t_}')
        if n < 512: p.ins(f's_bfm_b64 exec, {n // 8}, 0')
        p.vm(f'buffer_load_dword a252, v{t_}, {sr(sWq,4)}, {sr(s0)} offen', 'dummy')
        if n < 512: p.ins('s_mov_b64 exec, -1')
    def tl():
        p.ins(f's_mul_i32 {sr(s0)}, s2, 3\ns_add_u32 {sr(s0)}, {sr(s0)}, {sr(sw)}\ns_lshl_b32 {sr(s0)}, {sr(s0)}, 13\ns_cmp_lt_u32 {sr(sw)}, 3\ns_cselect_b32 {sr(s0)}, {sr(s0)}, {OOB}\nv_lshlrev_b32 v{vpb+1}, 7, v{vl}')
        p.vm(f'buffer_load_dword a252, v{vpb+1}, {sr(sWq,4)}, {sr(s0)} offen', 'dummy')
    def tlb(sh, L=None):
        L = L or ((sWS, 0x5000000), (sWq, DM * 6144), (sWo, DM * 2048), (sWg, DM * FF * 2))
        p.ins(f's_mov_b64 {sr(mA,2)}, {sr(L[0][0],2)}\ns_mov_b32 {sr(mA+2)}, {L[0][1]}')
        for w_ in range(1, 4): p.ins(f's_cmp_eq_u32 {sr(sw)}, {w_}\ns_cselect_b64 {sr(mA,2)}, {sr(L[w_][0],2)}, {sr(mA,2)}\ns_cselect_b32 {sr(mA+2)}, {L[w_][1]}, {sr(mA+2)}')
        p.ins(f's_mov_b32 {sr(mA+3)}, 0x20000\nv_lshlrev_b32 v{vpb+1}, 21, v{vl}\ns_lshr_b32 {sr(s0)}, s2, 3\ns_lshl_b32 {sr(s0)}, {sr(s0)}, {sh}')
        p.vm(f'buffer_load_dword a252, v{vpb+1}, {sr(mA,4)}, {sr(s0)} offen', 'dummy')
    assert mA % 4 == 0
    steps = dict(mld=mld, wt=lambda: p.wait(vm=['tq0']), wu=lambda: p.wait(vm=['tq3']), tlb=lambda: tlb(16), tlb2=lambda: tlb(16, ((sWu, DM * FF * 2), (sWd, DM * FF * 2), (sOut, M * DM * 2), (sWm, DM * 12288))), tlb0=lambda: tlb(7), tqa=lambda: tq(0, 2), tqb=lambda: tq(2, 4), tqc=lambda: tq(0, 3), tqd=lambda: tq(3, 3), tl=tl, tw=tw16, sus=lambda: run(sus), su=lambda: run(su), su2=lambda: run(su2), twa=lambda: tw(0, 2), twb=lambda: tw(2, 4), twc=lambda: tw(0, 4), twd=lambda: tw(4, 2), stats2=stats2, x1=lambda: xload(1), addr=addr, gemv=gemv, stats=stats, xa=xa, mpoll=im, mchk=mchk, mod=mod, addr2=addr2, hpoll=ih, hchk=hchk, it=it, code=code,
                 warm=lambda: p.ins(f';@WARM {sr(sw)} 0 4'),
                 mpub=lambda: (pub_op(k, sWS, vpb, sfm, ['ms'])(), p.T('m_pub')),
                 hpub=lambda: (pub_op(k, sWS, vpb, sfl + 1, [('hs', i) for i in range(4)])(), p.T('h_pub')))
    for x in script:
        if x[0] == 'D': D(int(x[1:]))
        elif x[0] == 'R': tr(*map(int, x[1:].split('_')))
        elif '+' in x:
            nm, n_ = x.split('+'); a_ = len(p.items); steps[nm](); body = p.items[a_:]; del p.items[a_:]
            def scc_dead(i):
                for y in body[i:]:
                    if y[0] == 'label': return False
                    if y[0] != 'ins': continue
                    o_ = y[1].split()[0]
                    if o_.startswith(('s_cselect', 's_cbranch', 's_addc')) or 'exec' in y[1]: return False
                    if o_.startswith('s_') and not o_.startswith(('s_mov', 's_mul', 's_wait', 's_barrier', 's_nop')): return True
                return True
            first_ = max([i + 1 for i, y in enumerate(body) if y == ('ins', 's_barrier')] + [0]) if nm == 'it' else 0
            n_ = int(n_); done_ = 0
            for i, y in enumerate(body):
                if i >= first_ and done_ < n_ and (i - first_) * n_ >= done_ * (len(body) - first_) and scc_dead(i): D(1); done_ += 1
                p.items.append(y)
            D(n_ - done_)
        else: steps[x]()
    assert nit[0] == nf and not avail
    first = [u for u in W.units if -100 < W.units[u]['fr'] <= bars[0]]
    for u in first: W.units[u]['vis'] = True
    pre_done = [u for d in front for u in front[d]]
    assert all(u in pre_done for u in first), first
    su2_beg = cfg.get('su2', 322 if il else 222)
    for hf in range(2): W.units[('j', hf)]['e'] = cfg.get('je', (380, 430) if il else (150, 250))[hf]
    PD = cfg.get('pd', 35)
    pls = [T0 + x - PD for x in cfg.get('plo', (-109, 47, 143))]
    for i, s in enumerate(pls):
        assert s + PD in bars
        i_, c_ = poll_ops(k, sWS, vp, sfl + 3, ('plo', i), scnt, cmp=f'v_subrev_u32 v{vp}, {sr(sTok)}, v{vp}\nv_subrev_u32 v{vp}, {i + 1}, v{vp}\nv_cmp_lt_u32 vcc, 3, v{vp}', bar=False)
        st.at(s + PD - cfg.get('pdo', (35, 35, 35))[i], i_); st.last(s + PD, f';@T o{i}a'); st.last(s + PD, c_); st.pre.setdefault(s + PD + 1, []).append(f';@T o{i}b')
    for ps in range(4):
        for c in range(4): W.units[('o', ps, c)]['e'] = pls[max(ps - 1, 0)] + PD + 1
    jc = T0 + cfg.get('jchk', -17); assert jc in bars
    ij, cj = poll4_ops(k, sWS, TMP, vt, 'plj', scnt, bar=False)
    st.at(jc - 62, f'v_lshlrev_b32 v{vt}, 7, v{vl}\nv_add_u32 v{vt}, {FL_J}, v{vt}'); st.at(jc - cfg.get('jpd', 45), ij); st.last(jc, cj)
    st.at(T0 + 105, op(lambda: (p.ins(f's_or_b32 {sr(scnt)}, s2, {sr(sw)}\ns_mov_b32 {sr(scnt)}, {WS_TOK}\ns_cselect_b32 {sr(scnt)}, {OOB}, {sr(scnt)}'), pub_op(k, sWS, vpb, scnt, [])()), 7))
    def pub_at(slot, tags, soff, add=0):
        b_ = min(x for x in bars if x >= slot)
        W.bw[b_] += tags; st.pre.setdefault(b_ + 1, []).append(pub_op(k, sWS, vpb, soff, [], add=add)); return b_
    su3_beg = P[2] + cfg.get('su3', 102); su3_end = P[3]
    for u in W.units:
        if u[0] == 3: W.units[u]['e'] = max(su3_end, T0 + cfg.get('w3e', 150))
    ops = W.dma_ops(bars, pre_done)
    for o in ops:
        if o['id'] in cfg.get('quiet', {}): o['wt'] = cfg['quiet'][o['id']]
        if o['id'][0][0] == 'j' and cfg.get('jdl'): o['dl'] = min(o['dl'], cfg['jdl'])
    extra = []
    def X(e, dl, main, pre=None, wt=1): extra.append(dict(e=e, dl=dl, main=main, pre=pre, id='x', wt=wt))
    vxa, vg, vc2, vone2, vst, vgo, f2, d2, Y2, D1 = 144, 160, 168, 176, 180, 181, 184, 192, 196, 224
    tj = max(jc + 3, T0 - 20)
    tx = T0 + cfg.get('tx', -10)
    st.at(tj - 1, f'v_and_b32 v{vt}, 31, v{vl}\nv_lshlrev_b32 v{vt}, 2, v{vt}\nv_lshrrev_b32 v{vgo}, 5, v{vl}\nv_lshl_add_u32 v{vt}, v{vgo}, 13, v{vt}')
    for q in range(NPART):
        pre = op(lambda q=q: p.ins(f's_add_u32 {sr(sv+1)}, {sr(sy2)}, {6144 * 4 * q + 2 * 4096}'), 1)
        X(tx, tx + 30, lambda q=q: p.vm(f'buffer_load_dword v{vg+q}, v{vt}, {sr(sWS,4)}, {sr(sv+1)} offen sc1', ('g', q)), pre, 0.5)
    assert tj > pls[0] + PD
    for j in range(4):
        pre = op(lambda j=j: p.ins(f's_add_u32 {sr(sv+1)}, {sr(sy)}, {WS_XA + 65536 * j}'), 1)
        X(tx, tx + 30, lambda j=j: p.vm(f'buffer_load_dwordx4 {vr(vxa+4*j,4)}, v{vl16}, {sr(sWS,4)}, {sr(sv+1)} offen sc1', ('xa', j)), pre, 0.6)
    vtb = k.vtb = 212
    st.at(T0 + 2, f's_lshr_b32 {sr(sjo+1)}, s2, 6\ns_lshl_b32 {sr(sjo+1)}, {sr(sjo+1)}, 2\ns_add_u32 {sr(sjo+1)}, {sr(sjo+1)}, {sr(sw)}\ns_lshl_b32 {sr(sjo+1)}, {sr(sjo+1)}, 8')
    st.at(T0 + 60, f'v_lshrrev_b32 v{vtb+8}, 5, v{vl}\nv_xor_b32 v{vtb+8}, 1, v{vtb+8}\nv_lshlrev_b32 v{vtb+8}, 12, v{vtb+8}')
    st.at(T0 + 62, f'v_and_b32 v{vtb+9}, 31, v{vl}\nv_lshl_add_u32 v{vtb+8}, v{vtb+9}, 3, v{vtb+8}')
    for q in range(NPART):
        pre = op(lambda q=q: p.ins(f's_add_u32 {sr(sv+1)}, {sr(sjo+1)}, {6144 * 4 * q + 3 * 4096}'), 1)
        X(T0 + cfg.get('tt', 190), T0 + cfg.get('tt', 190) + 60, lambda q=q: p.vm(f'buffer_load_dwordx2 {vr(vtb+2*q,2)}, v{vtb+8}, {sr(sWS,4)}, {sr(sv+1)} offen sc1', ('tb', q)), pre, 0.5)
    def touch_op(kind, j, nsel):
        def f():
            L = k.lab('TP')
            p.ins(f's_lshr_b32 {sr(scnt)}, s2, 3\ns_add_u32 {sr(scnt)}, {sr(scnt)}, s2\ns_and_b32 {sr(scnt)}, {sr(scnt)}, {nsel - 1}\ns_cmp_lg_u32 {sr(scnt)}, {j}\ns_cbranch_scc1 {L}')
            ld, srd = {'wo': (2048, sWo), 'wg': (7168, sWg), 'wu': (7168, sWu)}[kind]
            p.ins(f's_lshr_b32 {sr(scnt)}, s2, 3\ns_lshl_b32 {sr(scnt)}, {sr(scnt)}, 2\ns_add_u32 {sr(scnt)}, {sr(scnt)}, {sr(sw)}\ns_mul_i32 {sr(scnt)}, {sr(scnt)}, {8 * ld}')
            p.ins(f's_and_b32 vcc_lo, s2, {1 if kind == "wo" else 7}\ns_mul_i32 vcc_lo, vcc_lo, {1024 if kind == "wo" else 896}\ns_add_u32 {sr(scnt)}, {sr(scnt)}, vcc_lo')
            p.ins(f'v_lshrrev_b32 v{vpb}, 3, v{vl}\nv_mul_u32_u24 v{vpb}, {ld - 1024}, v{vpb}\nv_lshl_add_u32 v{vpb}, v{vl}, 7, v{vpb}')
            if kind != 'wo': p.ins('s_mov_b32 exec_lo, 0x7f7f7f7f\ns_mov_b32 exec_hi, 0x7f7f7f7f')
            p.ins(f'buffer_load_dword a253, v{vpb}, {sr(srd,4)}, {sr(scnt)} offen ; cond')
            if kind != 'wo': p.ins('s_mov_b64 exec, -1')
            p.label(L)
        return op(f, 6)
    def head_op():
        L = k.lab('TH')
        p.ins(f's_cmp_gt_u32 {sr(sw)}, 1\ns_cbranch_scc1 {L}\ns_cmp_eq_u32 {sr(sw)}, 0\ns_cselect_b64 {sr(sX,2)}, {sr(sWg,2)}, {sr(sWu,2)}')
        p.ins(f's_lshr_b32 {sr(scnt)}, s2, 3\ns_mul_i32 {sr(scnt)}, {sr(scnt)}, {8 * 7168}\ns_and_b32 vcc_lo, s2, 7\ns_mul_i32 vcc_lo, vcc_lo, 896\ns_add_u32 {sr(scnt)}, {sr(scnt)}, vcc_lo')
        p.ins(f'v_lshrrev_b32 v{vpb}, 3, v{vl}\nv_mul_u32_u24 v{vpb}, {7168 - 1024}, v{vpb}\nv_lshl_add_u32 v{vpb}, v{vl}, 7, v{vpb}\ns_mov_b32 exec_lo, 0x7f7f7f7f\ns_mov_b32 exec_hi, 0x7f7f7f7f')
        p.ins(f'buffer_load_dword a253, v{vpb}, {sr(sX,4)}, {sr(scnt)} offen {cfg.get("hfl", "")} ; cond\ns_mov_b64 exec, -1')
        p.label(L)
    if cfg.get('hd', 590): st.at(cfg.get('hd', 590), op(head_op, 6))
    for kind, pos in cfg.get('tp', {}).items():
        for j, s in enumerate(pos): st.at(s, touch_op(kind, j, len(pos)))
    if hx:
        kb = pls[0] + PD
        st.at(kb + 2, f'v_writelane_b32 v{vp+1}, {sr(scnt)}, 16'.replace('v_writelane', f's_mov_b32 {sr(scnt)}, 32768\nv_writelane'))
        X(kb + 1, kb + 30, lambda: p.vm(f'buffer_load_dwordx4 v{vl16}, {sr(sWS,4)}, {sr(sm)} offen sc1 lds', 'kv', w=(QKV + 3 * 6144 + 1024, QKV + 3 * 6144 + 1025)), op(lambda: p.ins(f's_mov_b32 m0, {sr(sn)}'), 1))
        W.bw[ab[3]].append('kv')
    gp = cfg.get('gaps', (4, 5, 3.5, 3, 1.5, 6))
    left = st.vmem(ops + extra, lambda i: gp[0] if i < P[1] else gp[1] if i < I[('st', 3)] - 60 else gp[2] if i < T0 else gp[3] if i < pls[2] + PD else gp[4] if i < pls[2] + PD + 16 * gp[4] else gp[5])
    k.left = left
    k.vops = [o for o in ops if 't' in o]
    lastw = max(o['t'] for o in ops if o['id'][0][0] in ('q', 'k', 'v', 'h'))
    assert lastw + 1 < su2_beg and max(U_['lr'] for u, U_ in W.units.items() if u[0] in ('k', 'v')) < su2_beg, lastw
    W.bw[min(b_ for b_ in bars if b_ > jtp)].append(('lg', 'jtw'))
    e_ = st.fill(su2v, su2_beg); assert e_ < P[1]
    SC = (32 ** -0.5) * LOG2E
    mf_ = lambda d, a_, b_, c='0': op(lambda: p.ins(f'{MFMA} {vr(d,4)}, {vr(a_,4)}, {vr(b_,4)}, {c}'), 'M')
    for ps in range(4):
        s0_ = (P + [T0])[ps + 1]; L = []; tags = []
        for e in ((0, 1, 2) if ps == 0 else (0, 1)):
            sl = (qs(2 * ps + e) if e < 2 else 0) * 6144
            c1, c2 = (acc(ps, 1, e), acc(ps, 2, e)) if e < 2 else (acch(1), acch(2))
            X_ = F(f'v_cvt_pk_bf16_f32 v{c1}, v{c1}, v{c1+1}\nv_cvt_pk_bf16_f32 v{c1+1}, v{c1+2}, v{c1+3}\nv_cvt_pk_bf16_f32 v{c1+2}, v{c2}, v{c2+1}\nv_cvt_pk_bf16_f32 v{c1+3}, v{c2+2}, v{c2+3}')
            X_.append(lambda c1=c1, sl=sl, t=('kw', ps, e): p.lg(f'ds_write_b128 v{vkw}, {vr(c1,4)} offset:{sl+1024}', t, w=(QKV + sl + 1024, QKV + sl + 1025)))
            if hx and ps == 3 and e == 1: X_ = []
            else: tags.append(('kw', ps, e))
            if e < 2:
                c0 = acc(ps, 0, e)
                X_ = F(f'v_cvt_pk_bf16_f32 v{c0}, v{c0}, v{c0+1}\nv_cvt_pk_bf16_f32 v{c0+1}, v{c0+2}, v{c0+3}') + [lambda c0=c0, sl=sl, ps=ps, e=e: p.lg(f'ds_write_b64 v{vqw}, {vr(c0,2)} offset:{sl}', ('qw', ps, e), w=(QKV + sl, QKV + sl + 1))] + X_
                tags.append(('qw', ps, e))
                L += X_
            else: LH = X_
        if ps == 0:
            for o in LH: st.at(s0_ + 2, o)
            if hx: st.at(s0_ + 3, lambda: p.vm(f'buffer_store_dwordx4 {vr(acch(1),4)}, v{vl16}, {sr(sWS,4)}, {sr(sHalo)} offen sc1'))
        cur = [qs(2 * ps + e) * 6144 for e in range(2)]; prv = [qs(2 * ps + e - 1) * 6144 for e in range(2)]
        B = ACC + 24 * (ps % 2); vQ, vK, vV, w_, vS = B, B + 4, B + 12, B + 20, (236 if i2 and ps == 3 else TMP)
        L.append(f's_bitcmp1_b32 {sr(sw)}, 0\ns_mov_b32 {sr(s0)}, {cur[0]}\ns_cselect_b32 {sr(s0)}, {cur[1]}, {sr(s0)}\ns_mov_b32 {sr(s1)}, {prv[0]}\ns_cselect_b32 {sr(s1)}, {prv[1]}, {sr(s1)}')
        L += F(f'v_add_u32 v{vS}, {sr(s0)}, v{vrd}\nv_add_u32 v{vS+1}, {sr(s1)}, v{vrd}\nv_add_u32 v{vS+2}, {sr(s0)}, v{vvt}\nv_add_u32 v{vS+3}, {sr(s1)}, v{vvt}')
        e_ = st.fit(L, s0_ + 3, ab[ps])
        W.bw[ab[ps]] += [('lg', t) for t in tags]
        R_ = (QKV, QKV + (24576 if ps == 3 else 18432))
        L = [lambda vQ=vQ, vS=vS, R_=R_: p.lg(f'ds_read_b128 {vr(vQ,4)}, v{vS}', None, r=R_),
             lambda vK=vK, vS=vS, R_=R_: p.lg(f'ds_read_b128 {vr(vK,4)}, v{vS+1} offset:1024', None, r=R_),
             lambda vK=vK, vS=vS, ps=ps, R_=R_: p.lg(f'ds_read_b128 {vr(vK+4,4)}, v{vS} offset:1024', ('K', ps), r=R_)]
        for d in range(2):
            for h in range(2):
                L.append(lambda d=d, h=h, vV=vV, vS=vS, ps=ps, R_=R_: p.lg(f'ds_read_b64_tr_b16 {vr(vV+4*d+2*h,2)}, v{vS+3-h} offset:{2048+8*d}', ('V', ps), r=R_))
        L += [('gap', 5), lambda ps=ps: p.wait(lg=[('K', ps), ('V', ps)]), mf_(vS, vK, vQ), mf_(vS + 4, vK + 4, vQ), ('gap', 4)]
        L += [f'v_cndmask_b32 v{w_+r_}, v{vS+r_}, v{vS+4+r_}, {sr(mA+2*r_,2)}' for r_ in range(4)]
        L += F(f'v_cndmask_b32 v{w_}, v{w_}, v{w_+1}, {sr(mA+8,2)}\nv_cndmask_b32 v{w_+1}, v{w_+2}, v{w_+3}, {sr(mA+8,2)}\nv_mul_f32 v{w_}, {f32(SC)}, v{w_}\nv_mul_f32 v{w_+1}, {f32(SC)}, v{w_+1}')
        if ps == 0: L += F(f'v_mov_b32 v{w_+2}, {f32(-1e9)}\nv_cndmask_b32 v{w_}, v{w_}, v{w_+2}, {sr(mA+10,2)}\nv_cndmask_b32 v{w_+1}, v{w_+1}, v{w_+2}, {sr(mA+12,2)}')
        def xred(o_):
            R2 = []
            for sw_ in (16, 32): R2 += [f'v_mov_b32 v{w_+3}, v{w_+2}', ('gap', 1), f'v_permlane{sw_}_swap_b32 v{w_+2}, v{w_+3}', f'{o_} v{w_+2}, v{w_+2}, v{w_+3}']
            return R2
        L += [f'v_max_f32 v{w_+2}, v{w_}, v{w_+1}'] + xred('v_max_f32')
        L += F(f'v_sub_f32 v{w_}, v{w_}, v{w_+2}\nv_sub_f32 v{w_+1}, v{w_+1}, v{w_+2}\nv_exp_f32 v{w_}, v{w_}\nv_exp_f32 v{w_+1}, v{w_+1}') + [('gap', 1), f'v_add_f32 v{w_+2}, v{w_}, v{w_+1}'] + xred('v_add_f32')
        L += [f'v_rcp_f32 v{w_+2}, v{w_+2}', ('gap', 1)] + F(f'v_mul_f32 v{w_}, v{w_}, v{w_+2}\nv_mul_f32 v{w_+1}, v{w_+1}, v{w_+2}\nv_cvt_pk_bf16_f32 v{w_}, v{w_}, v{w_}\nv_cvt_pk_bf16_f32 v{w_+1}, v{w_+1}, v{w_+1}')
        L += [f'v_and_b32 v{vQ+i}, v{vM+i}, v{w_+(i&1)}' for i in range(4)] + [('gap', 1), mf_(vK, vV, vQ), mf_(vK + 4, vV + 4, vQ), ('gap', 4)]
        L += [f'v_cvt_pk_bf16_f32 v{vS+i}, v{vK+2*i}, v{vK+2*i+1}' for i in range(4)]
        L.append(lambda vS=vS, ps=ps: p.vm(f'buffer_store_dwordx4 {vr(vS,4)}, v{vl16}, {sr(sWS,4)}, {sr(soo)} offen sc1', ('os', ps)))
        L.append(f's_add_u32 {sr(soo)}, {sr(soo)}, 65536')
        e_ = st.fill(L, ab[ps] + 1, cap=cfg.get('acap', (2, 2, 3, 7))[ps])
        I[('ae', ps)] = e_
        assert ps > 1 or e_ < I[('st', ps + 2)] - 1, (ps, e_)
        if ps == 3: st.at(e_ + cfg.get('opub', (0, 70, 10, 28))[ps], pub_op(k, sWS, vpb, sfl, [('os', ps)], add=ps))
        elif ps: I[('pb', ps)] = pub_at(e_ + cfg.get('opub', (0, 70, 10, 28))[ps], [('os', ps)], sfl, ps)
    assert I[('ae', 0)] + 2 < jp and jp + 7 * JS + 18 < P[2] or I[('ae', 1)] + 2 < jp and jp + 7 * JS + 18 < P[3], (I, jp)
    JB = ACC + 24 * (0 if jp < P[2] else 1)
    st.at(jp - 2, f'v_lshrrev_b32 v{JB+12}, 4, v{vl}\nv_lshlrev_b32 v{JB+12}, 4, v{JB+12}')
    st.at(jp - 1, f'v_add_u32 v{JB+13}, {JT}, v{JB+12}')
    for ks in range(8):
        s = jp + JS * ks
        st.at(s + 2, lambda ks=ks: p.lg(f'ds_read_b128 {vr(JB+4*(ks%2),4)}, v{JB+13} offset:{64*ks}', ('jb', ks), r=(JT, JT + 512)))
        st.at(s + 11, lambda ks=ks: (p.wait(lg=[('jb', ks)]), p.ins(f'{MFMA} {vr(JB+8,4)}, {vr(TMP+4*(ks%2),4)}, {vr(JB+4*(ks%2),4)}, {vr(JB+8,4) if ks else 0}')))
    L = F(f'v_and_b32 v{JB+14}, 15, v{vl}\nv_lshl_add_u32 v{JB+12}, v{JB+14}, 27, v{JB+12}')
    L += F(f's_lshr_b32 {sr(s0)}, s2, 2\ns_lshl_b32 {sr(s2_)}, {sr(s0)}, 7\ns_lshl_b32 {sr(s0)}, {sr(s0)}, 8\ns_and_b32 {sr(s1)}, s2, 3\ns_mul_i32 {sr(sjo+1)}, {sr(s1)}, {6144*4}\ns_add_u32 {sr(s0)}, {sr(s0)}, {sr(sjo+1)}\ns_lshl_b32 {sr(sjo+1)}, {sr(sw)}, 6\ns_add_u32 {sr(s0)}, {sr(s0)}, {sr(sjo+1)}\ns_add_u32 {sr(s0)}, {sr(s0)}, {32*256}')
    L += F(f's_lshl_b32 {sr(s1)}, {sr(s1)}, 2\ns_add_u32 {sr(s2_)}, {sr(s2_)}, {sr(s1)}\ns_add_u32 {sr(s2_)}, {sr(s2_)}, {FL_J}')
    L.append(f's_cmp_eq_u32 {sr(sw)}, 0\ns_cselect_b32 {sr(sjo+1)}, {sr(s2_)}, {OOB}')
    L += [('from', jp + 7 * JS + 15), lambda: p.vm(f'buffer_store_dwordx4 {vr(JB+8,4)}, v{JB+12}, {sr(sWS,4)}, {sr(s0)} offen sc1', 'js')]
    su3_beg = max(su3_beg, I[('ae', 1)] + 3)
    e3 = st.fill(su3, su3_beg); assert e3 < su3_end and (I[('ae', 2)] + 1 < jc - cfg.get('jpd', 45) or e3 < jc - 62 and jc < P[3]) and su3_beg > I[('ae', 1)] + 2 and su3_beg > max(o['t'] for o in ops if o['id'][0][0] == 'j'), e3
    e_ = st.fill(L, max(jp + 20, e3 + 1) if il else jp + 20)
    jbar = min(b_ for b_ in bars if b_ > e_ + 50)
    W.bw[jbar].append('js'); st.at(jbar + 1, pub_op(k, sWS, vpb, sjo + 1, []))
    L = [lambda: p.wait(vm=[('g', q) for q in range(NPART)])]
    L += F(f'v_add_f32 v{vg}, v{vg}, v{vg+1}\nv_add_f32 v{vg+2}, v{vg+2}, v{vg+3}\nv_add_f32 v{vg}, v{vg}, v{vg+2}') + rb(vg) + F(f'v_cvt_f32_u32 v{vgo}, v{vgo}\nv_add_f32 v{vg}, v{vg}, v{vgo}') + rb(vg)
    L += F(f's_lshl_b32 {sr(s2_)}, {sr(sw)}, 8\ns_add_u32 {sr(s2_)}, {sr(s2_)}, {GL2}\nv_lshl_add_u32 v{vst}, v{vl}, 2, {sr(s2_)}\nv_lshrrev_b32 v{vg+1}, 4, v{vl}\nv_lshl_add_u32 v{vgo}, v{vg+1}, 4, {sr(s2_)}')
    L.append(lambda: p.lg(f'ds_write_b32 v{vst}, v{vg}', None, w=(GL2, GL2 + 1024), priv=True))
    L += F(f'v_bfe_u32 v{vst}, v{vl}, 2, 2\nv_xor_b32 v{vst}, v{vst}, v{vg+1}\nv_lshlrev_b32 v{vst}, 27, v{vst}\nv_and_b32 v{vg+2}, 15, v{vl}\nv_lshl_add_u32 v{vst}, v{vg+2}, 4, v{vst}')
    L += F(f's_and_b32 {sr(s2_)}, {sr(sw)}, 1\ns_lshl_b32 {sr(s2_)}, {sr(s2_)}, 11\nv_add_u32 v{vst+2}, {sr(s2_)}, v{vl16}\ns_and_b32 {sr(s2_)}, {sr(sw)}, 2\ns_lshl_b32 {sr(s2_)}, {sr(s2_)}, 9\ns_add_u32 {sr(s2_)}, {sr(s2_)}, {XST}\nv_add_u32 v{vst+2}, {sr(s2_)}, v{vst+2}')
    L += [lambda i=i: p.lg(f'ds_read_b128 {vr(vg+4*i,4)}, v{vgo} offset:{64*i}', ('gl', i), r=(GL2, GL2 + 1024), priv=True) for i in range(4)]
    L += [f'v_mov_b32 v{vone2+i}, 0x3f803f80' for i in range(4)] + m64(mA + 10, lanemask(lambda l: l & 2))
    e_ = st.fill(L, max(tx + 50, I[('ae', 3)] + 1), cap=3); assert e_ < Q[1] + 25, e_
    dst_ = []
    def epi2(j):
        xa = vxa + 4 * j; y2 = Y2 + 4 * j; d1 = D1 + 2 * j
        ST = (lambda o: L.append(o)) if j == 3 or not cfg.get('defer', 0) else dst_.append
        L = [lambda: p.wait(vm=[('xa', j)], lg=[('gl', 3)])]
        for i in range(4): L += F(f'v_lshlrev_b32 v{f2+2*i}, 16, v{xa+i}\nv_and_b32 v{f2+2*i+1}, 0xffff0000, v{xa+i}')
        L.append(('from', (Q + [N])[j + 1] + 2))
        L += [f'v_fmac_f32 v{f2+i}, v{vg+i}, v{acc2(j,0)+i}' for i in range(8)]
        a2 = acc2(j, 0)
        L += [f'v_mul_f32 v{a2+i}, v{f2+i}, v{vc2+i}' for i in range(8)]
        L += [f'v_cvt_pk_bf16_f32 v{y2+i}, v{a2+2*i}, v{a2+2*i+1}' for i in range(4)]
        ST(op(lambda: (p.ins(f's_add_u32 {sr(s2_)}, {sr(sy)}, {WS_Y + 65536 * j}'), p.vm(f'buffer_store_dwordx4 {vr(y2,4)}, v{vl16}, {sr(sWS,4)}, {sr(s2_)} offen sc1', ('ys', j, 0))), 'sW'))
        L += [f'v_cvt_pk_bf16_f32 v{xa+i}, v{f2+2*i}, v{f2+2*i+1}' for i in range(4)] + [('gap', 1), mf_(d1, vone2, xa), mf_(d2, xa, xa), ('gap', 3)]
        L += F(f'v_cndmask_b32 v{d2}, v{d2}, v{d2+1}, {sr(mA+8,2)}\nv_cndmask_b32 v{d2+2}, v{d2+2}, v{d2+3}, {sr(mA+8,2)}\nv_cndmask_b32 v{d1+1}, v{d2}, v{d2+2}, {sr(mA+10,2)}')
        if j & 1: L.append(lambda: p.vm(f'buffer_store_dwordx4 {vr(d1-2,4)}, v{vst}, {sr(sWS,4)}, {sr(sy+1)} offen offset:{256*(j//2)} sc1', 'y2'))
        k.stash = getattr(k, 'stash', []) + [lambda: p.lg(f'ds_write_b128 v{vst+2}, {vr(xa,4)} offset:{4096*j}', None, w=(XST + 4096 * j, XST + 4096 * j + 4096))]
        return L
    for j in range(3):
        e_ = st.fill(epi2(j), max(e_ + 1, Q[j + 1] - 12), cap=cfg.get('ecap', (3, 5, 3))[j]); assert e_ < (Q + [N])[j + 2] - (10 if j == 2 else 0), (j, e_)
    d0, dstp = cfg.get('dst', (-8, 4))
    for i, o in enumerate(dst_): st.at(max(Q[3] + d0 + dstp * i, e_ + 1 if i >= 2 else 0), o)
    L3 = epi2(3); st.fill(L3[:9], max(e_ + 1, N - 20))
    k.NP = cfg.get('NP', 2)
    if k.NP:
        st.at(T0 + cfg.get('epub', 174) - 1, f's_sub_u32 {sr(soo)}, {sr(sy+2)}, {FL_Y - FL_E}')
        pub_at(T0 + cfg.get('epub', 174), [('ys', j, 0) for j in range(2)], soo)
    k.look = 0
    if k.NP and k.look:
        st.at(N - 40, f's_lshr_b32 {sr(sfl+3)}, s2, 5\ns_lshl_b32 {sr(sfl+3)}, {sr(sfl+3)}, 12\ns_add_u32 {sr(sfl+3)}, {sr(sfl+3)}, {FL_Y}')
        st.at(N - 38, f'v_and_b32 v{vp+1}, 31, v{vl}\nv_lshlrev_b32 v{vp+1}, 7, v{vp+1}')
        st.at(N - k.look, lambda: p.vm(f'buffer_load_dword v{vp}, v{vp+1}, {sr(sWS,4)}, {sr(sfl+3)} offen sc1', 'ple0'))
    p.wait(vm=[('D', u, i) for u in first for i in range(len(W.units[u]['dmas']))], lg='all'); p.bar()
    for s, _, f in early:
        if s > -100: f()
    for i, nm in tuple(cfg.get('marks', ())) + ((1, 'g1_m1'), (P[1], 'g1_p1'), (P[2], 'g1_p2'), (P[3], 'g1_p3'), (T0, 'g2_q0'), (Q[1], 'g2_q1'), (Q[2], 'g2_q2'), (Q[3], 'g2_q3')):
        st.pre.setdefault(i, []).insert(0, f';@T {nm}')
    st.emit()
    p.T('g2_end')
    for o in L3[10:]:
        if not isinstance(o, tuple): p.ins(o) if isinstance(o, str) else o()
    k.st = st; k.I = I
    if nxt:
        k.ypub = pub_op(k, sWS, 9, sy + 2, [('ys', j, 0) for j in range(4)] + ['y2'])
        k.st1 = st; k.vops1 = k.vops; k.bars1 = bars
        S.next = smark
        return nxt(k)
    k.end()
    return k
```

```python
from n3 import *
def k_g12(cfg, nxt=None):
    k = K4(cfg.get('name', 'k3_qkv_kernel')); p, S = k.p, k.S; MX[0] = cfg.get('mx', 0)
    sX = k.srd('x', A_X, M * DM * 2); sWS = k.srd('ws', WS, WSZ); sWq = k.srd('wq', A_WQKV, DM * 3072 * 2)
    sWo = k.srd('wo', A_WO, DM * DM * 2); sWm = k.srd('wm', W_MOD, 1024 * 6144 * 2); sC = k.srd('c', IN_C, 2048)
    sWg = k.srd('wg', B_WG, DM * FF * 2); sWu = k.srd('wu', B_WU, DM * FF * 2); sWd = k.srd('wd', B_WD, FF * DM * 2); sOut = k.srd('out', OUT, M * DM * 2)
    sw = S.alloc('w'); sWL = S.alloc('wl'); sTok = k.tok = S.alloc('tok')
    k.common = dict(sWS=sWS, sWg=sWg, sWu=sWu, sWd=sWd, sOut=sOut, sw=sw, sWL=sWL, dead=(sWq, sWo), sAb=sC)
    assert sWm == sWo + 4
    sy = S.alloc('y', 3)
    smark = S.next
    sm = S.alloc('mt'); sn = S.alloc('nt'); s0 = S.alloc('t0'); s1 = S.alloc('t1'); s2_ = S.alloc('t2'); sv = S.alloc('vm', 2); scnt = S.alloc('cnt')
    sR = S.alloc('R', 4); sR2 = S.alloc('R2', 4); srot = S.alloc('rot', 2); svw = S.alloc('vw'); sva = S.alloc('va'); sW4 = S.alloc('w4', 2); sHalo = S.alloc('halo'); soo = S.alloc('oo'); sfl = S.alloc('fl', 4); sjo = S.alloc('jo', 2); sy2 = sfl + 2
    mA = S.alloc('mask', 14, 2)
    vl16, trA, vdW, vdO, vdJ, vA, vp, vpb, vkw, vqw, vrd, vvt, vt, vM, ACC, RING, TMP = 1, 3, 9, 10, 11, 12, 13, 15, 17, 18, 19, 20, 21, 24, 28, 76, 116
    wreg = lambda b: A0 + 4 * b if b < 63 else 124 + 4 * (b - 63)
    vl = 0
    rtab = lambda T_, r_=srot: F(f's_and_b32 {sr(s0)}, {sr(sw)}, 1\ns_add_u32 {sr(s0)}, {sr(s0)}, {sr(r_)}') + [x for c in range(4) for x in F(f's_add_u32 {sr(T_+c)}, {sr(s0)}, {2*c}\ns_and_b32 {sr(T_+c)}, {sr(T_+c)}, 7\ns_lshl_b32 {sr(T_+c)}, {sr(T_+c)}, 12')]
    curw = [None, None]
    def dmaw(u, srd, vo_, lo_, c, ld, add, fl=''):
        out = []
        for jq in range(4):
            def pre(jq=jq):
                p.ins(f's_add_u32 m0, {sr(sWL)}, {lo_ + jq * 4096}')
                if jq == 0:
                    curw[0] = u
                    if c is None: p.ins(f's_mov_b32 {sr(svw)}, {add}')
                    else: p.ins(f's_add_u32 {sr(svw)}, {sr(srot + (u[0] == "wo"))}, {c}\ns_and_b32 {sr(svw)}, {sr(svw)}, 7\ns_mul_i32 {sr(svw)}, {sr(svw)}, {128 * ld}' + (f'\ns_add_u32 {sr(svw)}, {sr(svw)}, {add}' if add else ''))
                else: p.ins(f's_add_u32 {sr(svw)}, {sr(svw)}, {32 * ld}')
                assert curw[0] == u
            main = lambda jq=jq: p.vm(f'buffer_load_dwordx4 v{vo_}, {sr(srd,4)}, {sr(svw)} offen {fl} lds'.replace('  ', ' '), ('D', u, jq), w=(lo_ + jq * 4096, lo_ + jq * 4096 + 4096))
            out.append((op(pre, 2 if jq else 4), main))
        return out
    lastm0 = [None]
    def dmaa(u, vo_, lo_, n, sbase, add, swl):
        out = []
        for i in range(n):
            def pre(i=i):
                m = f's_add_u32 m0, {sr(swl)}, {lo_}'
                prev = [x[1] for x in p.items if x[0] == 'ins' and ' m0,' in x[1]]
                if prev[-1] != m: p.ins(m)
                if i == 0: curw[1] = u; p.ins(f's_add_u32 {sr(sva)}, {sr(sbase)}, {add}')
                assert curw[1] == u
            main = lambda i=i: p.vm(f'buffer_load_dwordx4 v{vo_}, {sr(sWS,4)}, {sr(sva)} offen offset:{1024 * i} sc1 lds', ('D', u, i), w=(lo_, lo_ + 4096 * n), grp=u)
            out.append((op(pre, 0 if i else 2), main))
        return out
    DBL = [x for c in range(4) for x in ((('q', 2 * c), ('q', 2 * c + 1)), (('k', 2 * c), ('v', 2 * c)), (('k', 2 * c + 1), ('v', 2 * c + 1)))]
    nf = cfg.get('nf', 6)
    LA1, LA2 = cfg.get('LA1', 20), cfg.get('LA2', 16)
    acc = lambda ps, t, e: ACC + 24 * (ps % 2) + (t * 2 + e) * 4
    il = cfg.get('il', 0)
    hx = cfg.get('hx', 0)
    GS = 8 if hx else 12; i2 = cfg.get('i2', 0)
    qs = lambda i: 3 if hx and i == 7 else (i + 1) % 3
    acch = lambda t: TMP + 4 * (t - 1) if il else ACC + 24 + (t * 2) * 4
    acc2 = lambda j, t: 128 + 8 * (j % 2) + 4 * t
    jp = cfg.get('jpos', 545 if il else 358); JS = cfg.get('JS', 10)
    jw, jb, ja = TMP, None, None
    def plan(al):
        st = Stream(p); W = WS_(st, [RING + 4 * i for i in range(10 if il else 12)])
        lo = lambda u: al.get(u, 1 if u[0] == 'v' else 0) * 16384
        def U(u, dm, **kw): W.unit(u, lo(u), lo(u) + 16384, dm, **kw)
        for c in range(8):
            for si, sg in enumerate('qkv'):
                u = (sg, c); U(u, dmaw(u, sWq, vdW, lo(u), c, 6144, si * 2048))
            u = ('wo', c); U(u, dmaw(u, sWo, vdO, lo(u), c, 2048, 0, cfg.get('wofl', '')))
        for ps in range(4):
            for c in range(4):
                u = ('a', ps, c); U(u, dmaa(u, vA, lo(u), 4, sR + c, (2 * ps + 1) * 32768, sW4))
                u = ('o', ps, c); U(u, dmaa(u, vdW, lo(u), 4, sR2 + c, 2 * ps * 32768, sW4))
        for hf in range(2):
            u = ('j', hf); U(u, dmaw(u, sWm, vdJ, lo(u), None, 12288, hf * 128 * 12288, MODNT[1]), wt=cfg.get('jwt', 1))
        HB = [QKV + 8192 * c for c in range(4)]
        for c in range(4):
            u = ('h', c); W.unit(u, HB[c], HB[c] + 8192, dmaa(u, vl16, HB[c], 2, sR + c, sr(sHalo), sW4 + 1))
        def trs(us, t_reg, dst, off, s, lr, tag, span=2048, lim=None):
            b = lo(us[0]) // 65536
            for h in range(2):
                while lim and 0 <= s < lim and 'd' in ''.join(x[1] for x in st.post.get(s, [])): s += 1
                o = lo(us[0]) % 65536 + off + 2048 * h
                W.rd(us, s, lr if lr else s + 6, f'ds_read_b64_tr_b16 {vr(dst + 2 * h,2)}, v{t_reg + 3 * b} offset:{o}', tag + (h,), (65536 * b + o, 65536 * b + o + span))
                s += 1
            return s
        def wreads(d, s):
            a_, b_ = DBL[d]
            L = [([u], 0, 4 * u[1] + jj, jj) for u in (a_, b_) for jj in range(4)] if a_[0] == 'q' else [([a_, b_], t, 4 * a_[1] + jj, jj) for jj in range(4) for t in (1, 2)]
            for i, (us, t, j, jj) in enumerate(L):
                s = trs(us, trA + t, wreg(3 * j + t), jj * 4096, s, None, ('w', j, t), 2048 if t == 0 else 2048 + 16384, 10**6)
                if s >= 0: W.units[us[0]]['force'] = ('w', j, t, 1)
        I = dict(P=[], done={})
        for d in range(nf): wreads(d, -10000 + 100 * d)
        def afr(u, off, areg=vl16, span=1024):
            b = lo(u) // 65536
            return (u, areg + b, 65536 * b, lo(u) % 65536 + off, span)
        need = {}; dead = {}
        def g1q(ps, c):
            for j0 in range(8 * c, 8 * c + 8, 2):
                need.setdefault(j0 // 4, st.n())
                if ps == 3: dead[j0 // 2] = st.n() + GS
                fr = [afr(('a', ps, j0 // 8), e * 8192 + ((j0 + jj) % 8) * 1024) for e in range(2) for jj in range(2)]
                fh = [(('h', j0 // 8), vp, 131072, HB[j0 // 8] - 131072 + ((j0 + jj) % 8) * 1024) for jj in range(2)]
                seq = [(0, 1), (0, 0), (1, 0), (2, 0)] if hx and ps == 3 else [(0, 0), (0, 1), (1, 1), (1, 0), (2, 0), (2, 1)]
                mk = lambda seq, f0: [(acc(ps, t, e) if e < 2 else acch(t), wreg(3 * (j0 + jj) + t), ('f', 2 * e + jj - f0)) for i, (t, e) in enumerate(seq) for jj in ((0, 1) if i % 2 == 0 else (1, 0))]
                lg = [('w', j0 + jj, t, 1) for jj in range(2) for t in range(3)] if ps == 0 else []
                if ps == 0 and il:
                    W.group(fh, mk([(1, 2), (2, 2)], 4), cfg.get('LAi', (14, 18))[0], kind='b', lg=lg)
                    W.group(fr, mk(seq, 0), cfg.get('LAi', (14, 18))[1], kind='b')
                elif ps == 0: W.group(fr + fh, mk(seq + [(2, 2), (1, 2)], 0), LA1, kind='b', lg=lg)
                else: W.group(fr, mk(seq, 0), cfg.get('LA3', 13) if hx and ps == 3 else LA1 if ps > 1 or not il or c > 1 else cfg.get('LAi', (14, 18))[1], kind='b')
        I['P'].append(0)
        for ps, c in ([(0, 0), (1, 0), (0, 1), (1, 1), (0, 2), (0, 3), (1, 2), (1, 3)] if il else [(ps, c) for ps in range(2) for c in range(4)]) + ([(ps, c) for h in (0, 2) for ps in (2, 3) for c in (h, h + 1)] if i2 else [(ps, c) for ps in (2, 3) for c in range(4)]):
            if c == 0:
                I[('st', ps)] = st.n()
                for r_ in range(ACC + 24 * (ps % 2), ACC + 24 * (ps % 2) + 24, 4): st.touched.discard(r_)
                if ps == 1 and not il:
                    for r_ in (RING + 40, RING + 44): W.until[r_] = st.n()
            g1q(ps, c)
            if c == 3 and ps < 3: I['P'].append(st.n())
        T0 = st.n(); I['T0'] = T0
        I['Q'] = []
        for ps in range(4):
            I['Q'].append(st.n())
            for t in range(2): st.touched.discard(acc2(ps, t))
            for j0 in range(0, 32, 2):
                fr = [afr(('o', ps, j0 // 8), ((j0 + jj) % 8) * 1024, vdO2, 1024 + 8192) for jj in range(2)]
                mf = [(acc2(ps, t), wreg(2 * (j0 + jj) + t), ('f', jj)) for t in range(2) for jj in ((0, 1) if t == 0 else (1, 0))]
                W.group(fr, mf, LA2, kind='b', wait=j0 % 4 == 0, lg=[('wo', j0 + jj, t, 1) for jj in range(2) for t in range(2)] if ps == 0 else [])
        for d, s in zip(range(nf, 12), cfg.get('wsl', {8: (0, 44, 92, 140), 6: (0, 44, 76, 108, 140, 188), 7: (0, 44, 92, 140, 182)}.get(nf))):
            assert s + 30 <= need[DBL[d][0][1]], (d, s, need)
            wreads(d, s)
        s = 0
        for c, (s_, dbl) in enumerate(cfg.get('wos', ((24, 0), (53, 0), (84, 1), (84, 1), (115, 1), (115, 1), (145, 1), (145, 1)))):
            s = max(s, s_ + I[('st', 3)])
            for i in range(8):
                b = 8 * c + i; j, t = divmod(b, 2)
                s = max(s, dead[b // 6])
                s = trs([('wo', c)], trA + 1 + t, wreg(b), (j % 4) * 4096, s, None, ('wo', j, t), lim=None if dbl else 10**6)
                if dbl and i % 2: s -= 1
            W.units[('wo', c)]['force'] = ('wo', 4 * c + 3, 1, 1)
        for ks in range(8):
            s = jp + JS * ks
            trs([('j', ks // 4)], trA, TMP + 4 * (ks % 2), (ks % 4) * 4096, s, s + 12, ('jw', ks))
        if nxt:
            for i, (_, ts, g) in enumerate(k.early3):
                u, lo_, hi_, dm = dm3(ts, g); W.unit(u, lo_, hi_, dm); W.units[u].update(fr=st.n() + 10 + i, lr=st.n() + 10 + i)
        W.finish_waits()
        return st, W, I
    k.perm = [[0, 1, 2, 3], [0, 1, 2, 3]]; k.early3 = [(3, ts, g) for ts in range(4) for g in (1, 0)][:cfg.get('ne3', 4)]
    su3, dm3 = g3_early(k, s0, s1, sv, ACC + 40 if il else TMP, cfg.get('oobB', 1))
    vdO2 = 22
    st, W, I = plan({})
    P, T0 = I['P'], I['T0']
    ab = [P[1] + 24, P[2] + cfg.get('ab1', 21), P[3] + cfg.get('ab2', 21), T0 + cfg.get('ab3', 8)]
    bars = sorted(set(ab) | set(cfg.get('b0', ((43, 75, 107, 139, 171, 187) if nf == 6 else (43, 91, 139, 181)) + (235, 331, 397, 523, 571, 619))) | {T0 + x for x in cfg.get('b2', (-140, -109, -78, -48, -17, 47, 79, 111, 143, 175, 207))})
    k.bars = bars
    rel = lambda u: min([b_ for b_ in bars if b_ >= W.units[u]['lr']] + [10**6]) + W.units[u]['lr'] * 1e-4
    al = {}; ft = [0] * 8
    for d in range(nf):
        for i, u in enumerate(DBL[d]): al[u] = 2 * (d % 4) + i; ft[al[u]] = -1000 + d
    chk_it = nf - cfg.get('chk', 2)
    front = {}
    rest = sorted((u for u in W.units if u not in al and u[0] not in ('h', 3)), key=lambda u: W.units[u]['fr'])
    for d in range(nf - 3, nf):
        sl = 2 * ((d - 1) % 4)
        if d < chk_it: us = [u for u in rest if u in [x for D_ in DBL for x in D_]][:2]; assert tuple(us) in DBL
        elif d == chk_it: us = [u for u in rest if u[0] == 'a'][:2]
        else: ft[sl] = ft[sl + 1] = -1000; front[d] = []; continue
        for i, u in enumerate(us): al[u] = sl + i; ft[sl + i] = rel(u); rest.remove(u)
        front[d] = us if d < chk_it else [('h', 0), us[0], us[1]] if il else [us[0], ('h', 0), us[1], ('h', 1)]
    for u in rest:
        if u in al: continue
        if u[0] == 'k':
            sl = min((0, 1, 2, 4, 5, 6), key=lambda x: max(ft[x], ft[x + 1])); al[('v', u[1])] = sl + 1; ft[sl + 1] = rel(u)
        elif u[0] == 'o' and u[1] >= cfg.get('oforce', 9): sl = ((4, 0, 5, 1), (6, 2, 7, 3))[u[1] % 2][u[2]]
        else: sl = min(range(8), key=lambda x: ft[x])
        if ft[sl] == -1000 and u[0] in 'qka': front[nf - 1] += [u] + ([('v', u[1])] if u[0] == 'k' else [])
        al[u] = sl; ft[sl] = rel(u)
    if cfg.get('lean', 0) >= 1: front[nf - 1] = []
    if cfg.get('lean', 0) >= 2: front[chk_it] = front[chk_it][:2]
    k.perm = [sorted(range(4), key=lambda x: ft[4 * g + x]) for g in range(2)]
    st, W, I = plan(al)
    if cfg.get('dbg'):
        for u in sorted(W.units, key=lambda u: W.units[u]['fr']): print(u, al.get(u), W.units[u]['fr'], W.units[u]['lr'])
        print(front)
    k.al = al
    P, Q, T0, N = I['P'], I['Q'], I['T0'], st.n()
    def issue(us):
        for u in us:
            for pre, main in W.units[u]['dmas']: pre(); main()
    lt, vx, vf, vq, vjc = 28, 44, 60, 92, 23
    vo, vpo, vsw, vsr, vpw, vmr, vone, vm_, q0 = lt, lt + 1, lt + 2, lt + 3, lt + 4, lt + 5, lt + 6, lt + 7, lt + 8
    sx_, sfm, smp, sho, sms = sWg + 2, sWg + 3, sWu + 2, sWd + 2, sOut + 2
    late = [x for x in k.srds if x[0] in (sWg, sWu, sWd, sOut)]; k.srds = [x for x in k.srds if x not in late]
    if cfg.get('body', 1) == 0: p.ins(';@BODY\n;@FROM')
    p.ins(f'v_lshrrev_b32 v{vt}, 6, v0\nv_and_b32 v0, 63, v0\nv_readfirstlane_b32 {sr(sw)}, v{vt}\nv_lshrrev_b32 v{vt+1}, 3, v{vl}')
    if cfg.get('code0', 1):
        p.ins(f'v_lshlrev_b32 v{vl16}, 4, v{vl}\ns_lshr_b32 {sr(mA+3)}, s2, 3\ns_lshl_b32 {sr(mA+3)}, {sr(mA+3)}, 2\ns_add_u32 {sr(mA+3)}, {sr(mA+3)}, {sr(sw)}\ns_lshl_b32 {sr(mA+3)}, {sr(mA+3)}, 10')
        code_op(k, vM, vl16, mA, 'CB0')
    p.ins(f'v_bfe_u32 v{vdJ}, v{vt+1}, 1, 2\nv_bfe_u32 v{vt+2}, v{vl}, 1, 2\nv_xor_b32 v{vdJ}, v{vdJ}, v{vt+2}\nv_lshlrev_b32 v{vdJ}, 5, v{vdJ}\nv_and_b32 v{vt+2}, 1, v{vl}\nv_lshl_add_u32 v{vdJ}, v{vt+2}, 4, v{vdJ}')
    p.ins(f's_lshl_b32 {sr(sWL)}, {sr(sw)}, 10\ns_lshl_b32 {sr(s0)}, {sr(sw)}, 3\nv_add_u32 v{vdO}, {sr(s0)}, v{vt+1}')
    p.ins(f's_and_b32 {sr(s0)}, s2, 7\ns_lshl_b32 {sr(s0)}, {sr(s0)}, 7\nv_add_u32 v{vm_}, {sr(s0)}, v{vdO}\nv_mul_u32_u24 v{vm_}, 12288, v{vm_}\ns_lshr_b32 {sr(s1)}, s2, 3\ns_lshl_b32 {sr(s1)}, {sr(s1)}, 7\nv_add3_u32 v{vm_}, v{vm_}, v{vdJ}, {sr(s1)}')
    p.ins(f's_and_b32 {sr(s1)}, {sr(sw)}, 1\ns_lshl_b32 {sr(s1)}, {sr(s1)}, 6\ns_add_u32 {sr(s0)}, {sr(s0)}, {sr(s1)}\nv_add_lshl_u32 v{vpb+1}, {sr(s0)}, v{vl}, 1')
    m16 = cfg.get('m16')
    if m16: p.ins(f's_and_b32 {sr(sn)}, s2, 7\ns_lshl_b32 {sr(sn)}, {sr(sn)}, 1\ns_bfe_u32 {sr(s0)}, s2, 0x10003\ns_add_u32 {sr(sn)}, {sr(sn)}, {sr(s0)}\ns_lshr_b32 {sr(sm)}, s2, 4')
    else: tilemap(k, 'g1', sm, sn, s0, s1)
    p.ins(f's_lshl_b32 {sr(s2_)}, {sr(sm)}, 4\ns_add_u32 {sr(s2_)}, {sr(s2_)}, {sr(sn)}')
    p.ins(f'v_and_b32 v{vt}, 7, v{vl}\nv_lshlrev_b32 v{vo}, 11, v{vt}\nv_lshl_add_u32 v{vo}, v{vt+1}, 4, v{vo}\nv_mov_b32 v{vpo}, {WS_TOK}')
    p.ins(f's_lshr_b32 {sr(sho)}, {sr(s2_)}, 1\ns_lshl_b32 {sr(sho)}, {sr(sho)}, 15\ns_and_b32 {sr(s1)}, {sr(s2_)}, 1\ns_lshl_b32 {sr(s1)}, {sr(s1)}, 2\ns_add_u32 {sr(s1)}, {sr(s1)}, {sr(sw)}\ns_lshl_b32 {sr(s0)}, {sr(s1)}, 8\ns_add_u32 {sr(sx_)}, {sr(sho)}, {sr(s0)}')
    k.finish_srds()
    p.T('f_k')
    p.vm(f'buffer_load_ushort v{vpb}, v{vpb+1}, {sr(sC,4)}, 0 offen', 'mc')
    for pre, main in dmaw('m', sWm, vm_, QKV, None, 12288, 0, MODNT[0]): pre(); main()
    p.vm(f'buffer_load_dword v{q0}, v{vpo}, {sr(sWS,4)}, 0 offen sc1', 'tok')
    p.ins(f's_and_b32 {sr(s0)}, s2, 3\ns_lshl_b32 {sr(s0)}, {sr(s0)}, 2\ns_add_u32 {sr(s0)}, {sr(s0)}, {sr(sw)}\ns_lshl_b32 {sr(s0)}, {sr(s0)}, 7\nv_lshlrev_b32 v{vjc}, 1, v{vl}')
    p.vm(f'buffer_load_ushort v{vjc}, v{vjc}, {sr(sC,4)}, {sr(s0)} offen', 'jc')
    def xload(oth):
        for rh in range(2):
            if oth and rh == 0: p.ins(f's_xor_b32 {sr(sx_)}, {sr(sx_)}, 1024')
            p.ins(f's_add_u32 {sr(s0)}, {sr(sx_)}, {16384 * rh}')
            for i in range(2):
                p.vm(f'buffer_load_dwordx4 {vr((vq if oth else vx)+8*rh+4*i,4)}, v{vo}, {sr(sX,4)}, {sr(s0)} offen offset:{128*i} {cfg.get("xfl", "")}', ('x', oth))
    xload(0)
    body = lambda: (p.ins(';@BODY\n;@FROM'), p.label('CB0'))
    if cfg.get('body', 1) == 1: body()
    p.ins(f'v_lshlrev_b32 v{vl16}, 4, v{vl}\nv_add_u32 v{vl16+1}, 65536, v{vl16}\nv_add_u32 v{vp}, 131072, v{vl16}')
    p.ins(f's_lshl_b32 {sr(srot)}, {sr(sn)}, {2 if m16 else 1}\ns_add_u32 {sr(srot)}, {sr(srot)}, {sr(sm)}' if cfg.get('rot', 1) == 1 else f's_lshl_b32 {sr(srot)}, {sr(sn)}, 2\ns_add_u32 {sr(srot)}, {sr(srot)}, {sr(sm)}' if cfg.get('rot') == 2 else f's_and_b32 {sr(srot)}, {sr(sn)}, {cfg["rot"] - 10}' if cfg.get('rot') >= 10 else f's_mov_b32 {sr(srot)}, {sr(sm)}')
    p.ins(f'v_mul_u32_u24 v{vdW}, 6144, v{vdO}\ns_lshl_b32 {sr(s0)}, {sr(sn)}, 7\nv_add3_u32 v{vdW}, v{vdW}, v{vdJ}, {sr(s0)}')
    p.ins(f's_lshl_b32 {sr(s0)}, {sr(s1)}, 12\ns_add_u32 {sr(sho)}, {sr(sho)}, {sr(s0)}\ns_add_u32 {sr(sho+1)}, {sr(sho)}, {WS_XA}\ns_add_u32 {sr(sho)}, {sr(sho)}, {WS_H}\ns_lshl_b32 {sr(smp)}, {sr(s1)}, 9\ns_add_u32 {sr(smp)}, {sr(smp)}, {WS_MP8}\ns_lshl_b32 {sr(smp+1)}, {sr(s1)}, 11\ns_add_u32 {sr(smp+1)}, {sr(smp+1)}, {FL_M}')
    script = cfg.get('script', 'x1 R0_512 addr addr2 su gemv R512_512 warm stats stats2+12 mld su2+8 mod xa sus+4 hpub it+8 it+8 it+8 hpoll it+8 it hchk it+8').split()
    early = sorted(W.early, key=lambda x: x[:2])
    avail = [x for d in range(4) for u in DBL[d] for x in W.units[u]['dmas']]; nit = [0]
    def D(n):
        for _ in range(n):
            if avail: pre, main = avail.pop(0); pre(); main()
    def it():
        d = nit[0]; nit[0] += 1
        p.wait(vm=[('D', u, i) for u in DBL[d] for i in range(4)], lg='all'); p.bar()
        if cfg.get('fm'): p.T(f'it{d}')
        for s, _, f in early:
            if -10000 + 100 * d <= s < -10000 + 100 * d + 100: f()
        if d >= 1 and d != chk_it: avail.extend(x for u in (front[d] if d in front else DBL[d + 3]) for x in W.units[u]['dmas'])
    def addr():
        t_ = q0 + 4
        p.ins(f'v_lshrrev_b32 v{t_+1}, 2, v{vl}\nv_bfe_u32 v{t_}, v{t_+1}, 1, 2\nv_lshlrev_b32 v{t_}, 5, v{t_}\nv_lshl_add_u32 v{t_}, v{t_+1}, 7, v{t_}\nv_and_b32 v{t_+1}, 3, v{vl}\nv_lshl_add_u32 v{t_}, v{t_+1}, 3, v{t_}')
        p.ins(f's_lshl_b32 {sr(s0)}, {sr(sw)}, 5\nv_xor_b32 v{trA}, {sr(s0)}, v{t_}\ns_and_b32 {sr(s0)}, {sr(s0)}, 64\ns_and_b32 {sr(s1)}, {sr(sw)}, 1\ns_lshl_b32 {sr(s1)}, {sr(s1)}, 14\ns_add_u32 {sr(s0)}, {sr(s0)}, {sr(s1)}\nv_xor_b32 v{trA+1}, {sr(s0)}, v{t_}\nv_xor_b32 v{trA+2}, 32, v{trA+1}')
        for t in range(3): p.ins(f'v_add_u32 v{trA+3+t}, 65536, v{trA+t}')
        p.ins(f'v_add_u32 v{vm_}, {QKV}, v{trA}')
        p.ins(f'v_lshrrev_b32 v{vsw}, 5, v{vl}\nv_lshlrev_b32 v{vsw}, 6, v{vsw}\nv_bfe_u32 v{t_}, v{vl}, 2, 2\nv_lshl_add_u32 v{vsw}, v{t_}, 4, v{vsw}\nv_bfe_u32 v{t_}, v{vl}, 4, 1\nv_lshl_add_u32 v{vsw}, v{t_}, 3, v{vsw}\nv_lshl_add_u32 v{vsw}, v{t_+1}, 1, v{vsw}\ns_lshl_b32 {sr(s0)}, {sr(sw)}, 7\ns_add_u32 {sr(s0)}, {sr(s0)}, {JT}\nv_add_u32 v{vsw}, {sr(s0)}, v{vsw}')
        p.ins(f'v_lshrrev_b32 v{vpw}, 4, v{vl}\nv_lshlrev_b32 v{vpw}, 4, v{vpw}\nv_add_u32 v{vsr}, {JT}, v{vpw}\nv_and_b32 v{t_}, 15, v{vl}\nv_lshl_add_u32 v{vpw}, v{t_}, 27, v{vpw}')
        p.ins(f's_and_b32 {sr(s0)}, s2, 7\ns_lshl_b32 {sr(s0)}, {sr(s0)}, 13\ns_lshr_b32 {sr(s1)}, s2, 3\ns_lshl_b32 {sr(s1)}, {sr(s1)}, 8\ns_add_u32 {sr(s0)}, {sr(s0)}, {sr(s1)}\ns_lshl_b32 {sr(s1)}, {sr(sw)}, 6\ns_add_u32 {sr(s0)}, {sr(s0)}, {sr(s1)}\ns_add_u32 {sr(sms)}, {sr(s0)}, {WS_MP8}')
        p.ins(f's_lshl_b32 {sr(s1)}, {sr(sw)}, 28\ns_lshl_b32 {sr(sfm)}, s2, 7\ns_add_u32 {sr(sfm)}, {sr(sfm)}, {sr(s1)}\ns_add_u32 {sr(sfm)}, {sr(sfm)}, {FL_M}')
        p.ins(f's_lshl_b32 {sr(sfl)}, {sr(s2_)}, 7\ns_add_u32 {sr(sfl)}, {sr(sfl)}, {sr(s1)}\ns_add_u32 {sr(sfl+1)}, {sr(sfl)}, {FL_H}\ns_add_u32 {sr(sfl)}, {sr(sfl)}, {FL_O}')
    tagm = 'mld' in script; stg = (sv, sv + 1, sva, s2_)
    def gemv():
        g_ = vf
        p.wait(vm=['mc'])
        p.ins(f'v_lshlrev_b32 v{vpb}, 16, v{vpb}\nv_mul_f32 v{vpb+1}, {f32(-LOG2E)}, v{vpb}\nv_exp_f32 v{vpb+1}, v{vpb+1}\nv_add_f32 v{vpb+1}, 1.0, v{vpb+1}\nv_rcp_f32 v{vpb+1}, v{vpb+1}\nv_mul_f32 v{vpb}, v{vpb}, v{vpb+1}\nv_cvt_pk_bf16_f32 v{vpb}, v{vpb}, v{vpb}')
        p.lg(f'ds_write_b16 v{vsw}, v{vpb}', None, w=(JT, JT + 512))
        p.wait(vm=[('D', 'm', i) for i in range(4)], lg='all'); p.bar(); p.T('f_m')
        for ks in range(4):
            for h in range(2): p.lg(f'ds_read_b64_tr_b16 {vr(g_+4*ks+2*h,2)}, v{vm_} offset:{4096*ks+2048*h}', None, r=(QKV, QKV + 16384))
            p.lg(f'ds_read_b128 {vr(g_+16+4*ks,4)}, v{vsr} offset:{64*ks}', ('mr', ks), r=(JT, JT + 512))
        p.wait(vm=['tok']); p.ins(f'v_readfirstlane_b32 {sr(sTok)}, v{q0}\ns_add_u32 {sr(sTok)}, {sr(sTok)}, 8')
        if tagm:
            p.ins(f's_mul_i32 {sr(s0)}, {sr(sTok)}, 0x13c6ef37\nv_mov_b32 v{q0}, 0xff\n' + '\n'.join(f's_bfe_u32 {sr(stg[i])}, {sr(s0)}, {hex(0x80000 + 8 * i)}' for i in range(4)))
        for ks in range(4):
            p.wait(lg=[('mr', ks)])
            p.ins(f'{MFMA} {vr(q0+4,4)}, {vr(g_+4*ks,4)}, {vr(g_+16+4*ks,4)}, {vr(q0+4,4) if ks else 0}')
        if tagm:
            for i in range(4): p.ins(f'v_bfi_b32 v{q0+4+i}, v{q0}, {sr(stg[i])}, v{q0+4+i}')
        p.vm(f'buffer_store_dwordx4 {vr(q0+4,4)}, v{vpw}, {sr(sWS,4)}, {sr(sms)} offen sc1', 'ms'); p.T('f_ms')
    def stats():
        o_, d_ = vq + 16, vf
        p.ins(f's_lshl_b32 {sr(s1)}, {sr(sw)}, 5\nv_lshlrev_b32 v{vsr}, 7, v{vt}\nv_add_u32 v{vsr}, {LS}, v{vsr}\nv_and_b32 v{vsw}, 8, v{vl}\nv_lshl_add_u32 v{vsw}, v{vsw}, 1, v{vsr}\nv_add_u32 v{vsw}, {sr(s1)}, v{vsw}')
        for i in range(4): p.ins(f'v_mov_b32 v{o_+i}, 0x3f803f80')
        p.ins('s_mov_b32 vcc_lo, 0xaaaaaaaa\ns_mov_b32 vcc_hi, 0xaaaaaaaa')
        for oth in range(2):
            p.wait(vm=[('x', oth)])
            for i in range(2):
                for rh in range(2):
                    x_ = (vq if oth else vx) + 8 * rh + 4 * i
                    for j, a_ in enumerate((o_, x_)):
                        c = d_ + 8 * rh + 4 * j; p.ins(f'{MFMA} {vr(c,4)}, {vr(a_,4)}, {vr(x_,4)}, {vr(c,4) if oth or i else 0}')
        for rh in range(2):
            c = d_ + 8 * rh + 4
            p.ins(f'v_mov_b32 v{q0+2*rh}, v{c-4}\nv_cndmask_b32 v{c}, v{c}, v{c+1}, vcc\nv_cndmask_b32 v{c+2}, v{c+2}, v{c+3}, vcc')
        p.ins('s_mov_b32 vcc_lo, 0xcccccccc\ns_mov_b32 vcc_hi, 0xcccccccc')
        for rh in range(2): p.ins(f'v_cndmask_b32 v{q0+2*rh+1}, v{d_+8*rh+4}, v{d_+8*rh+6}, vcc')
        p.ins('s_mov_b32 exec_lo, 0x00f0000f\ns_mov_b32 exec_hi, 0xf0000f00')
        p.lg(f'ds_write_b128 v{vsw}, {vr(q0,4)}', None, w=(LS, LS + 1024))
        p.ins('s_mov_b64 exec, -1')
    def stats2():
        for d in range(16): p.ins(f'v_lshlrev_b32 v{vf+2*d}, 16, v{vx+d}\nv_and_b32 v{vf+2*d+1}, 0xffff0000, v{vx+d}')
        p.wait(lg='all'); p.bar()
        for i in range(8): p.lg(f'ds_read_b128 {vr(vq+4*i,4)}, v{vsr} offset:{16*i}', None, r=(LS, LS + 1024))
        for i in range(0, 16, 4): p.ins(f'v_permlane16_swap_b32 v{vx+i}, v{vx+i+2}\nv_permlane16_swap_b32 v{vx+i+1}, v{vx+i+3}')
        t_ = q0
        p.ins(f'v_bfe_u32 v{t_}, v{vl}, 3, 1\nv_lshlrev_b32 v{vo}, 9, v{t_}\nv_bfe_u32 v{t_}, v{vl}, 4, 1\nv_lshl_add_u32 v{vo}, v{t_}, 8, v{vo}\nv_lshrrev_b32 v{vone}, 5, v{vl}\nv_lshl_add_u32 v{vo}, v{vone}, 10, v{vo}\nv_lshl_add_u32 v{vo}, v{vt}, 4, v{vo}')
        p.ins(f'v_and_b32 v{vpo}, 31, v{vl}\nv_lshlrev_b32 v{vpo}, 4, v{vpo}\nv_lshl_add_u32 v{vpo}, v{vone}, 12, v{vpo}\nv_cvt_f32_u32 v{vone}, v{vone}')
        p.ins(f's_add_u32 {sr(s1)}, {sr(sWL)}, {LB}\nv_add_u32 v{vpw}, {sr(s1)}, v{vl16}\nv_lshl_add_u32 v{vmr}, v{vt+1}, 5, {sr(s1)}')
        p.ins(f'v_lshlrev_b32 v{t_}, 14, v{t_}\nv_and_b32 v{vm_}, 15, v{vl}\nv_lshl_add_u32 v{vm_}, v{vm_}, 7, v{t_}')
        p.wait(lg='all')
        for n_ in (16, 8, 4):
            for x in range(0, n_, 2): p.ins(f'v_pk_add_f32 {vr(vq+x,2)}, {vr(vq+x,2)}, {vr(vq+n_+x,2)}')
        Ls = []
        for rh in range(2):
            m_, v_ = vq + 2 * rh, vq + 2 * rh + 1
            Ls.append(F(f'v_mul_f32 v{m_}, {f32(1/1024)}, v{m_}\nv_mul_f32 v{v_}, {f32(1/1024)}, v{v_}\nv_fma_f32 v{v_}, -v{m_}, v{m_}, v{v_}\nv_max_f32 v{v_}, 0, v{v_}') + rb(v_) + [f'v_add_f32 v{v_}, {f32(1e-5)}, v{v_}'] + rb(v_)
                      + [f'v_sqrt_f32 v{v_}, v{v_}'] + rb(m_) + rb(v_) + F(f'v_rcp_f32 v{v_}, v{v_}\nv_mul_f32 v{m_}, v{m_}, v{v_}'))
        for x, y in zip(*Ls): p.ins(x + '\n' + y)
        for e in range(32): p.ins(f'v_fma_f32 v{vf+e}, v{vf+e}, v{vq+2*(e//16)+1}, -v{vq+2*(e//16)}')
    def xa():
        for i in range(4): p.vm(f'buffer_store_dwordx4 {vr(vx+4*i,4)}, v{vo}, {sr(sWS,4)}, {sr(sho+1)} offen offset:{2048*(i&1)+128*(i>>1)} sc1')
    im, cm = poll_ops(k, sWS, q0, smp + 1, 'plm', scnt, wg=False, va=vm_)
    def mchk():
        p.T('m_a'); cm(); p.T('m_b')
        for q in range(8):
            if q: p.ins(f's_add_u32 {sr(smp)}, {sr(smp)}, 8192')
            p.vm(f'buffer_load_dwordx4 {vr(vq+4*q,4)}, v{vpo}, {sr(sWS,4)}, {sr(smp)} offen sc1', ('part', q))
    pld = lambda q: f's_add_u32 {sr(s0)}, {sr(smp)}, {8192 * q}\nbuffer_load_dwordx4 {vr(vq+4*q,4)}, v{vpo}, {sr(sWS,4)}, {sr(s0)} offen sc1'.split('\n')
    def mld():
        p.T('m_a')
        for q in range(8): p.ins(pld(q)[0]); p.vm(pld(q)[1], ('part', q))
    def mtest():
        L = k.lab('MT')
        p.ins(f's_mov_b32 {sr(scnt)}, 20000\ns_branch {L}t')
        p.label(L)
        for q in range(8): p.ins(pld(q)[0] + '\n' + pld(q)[1] + ' ; cond')
        p.ins('s_waitcnt vmcnt(0) ; cond')
        p.label(L + 't')
        for q in range(8):
            p.wait(vm=[('part', q)])
            for i in range(4): p.ins(f'v_xor_b32 v{vq+4*q+i}, {sr(stg[i])}, v{vq+4*q+i}')
            p.ins(f'v_or3_b32 v{q0}, v{vq+4*q}, v{vq+4*q+1}, {"v%d" % q0 if q else 0}\nv_or3_b32 v{q0}, v{vq+4*q+2}, v{vq+4*q+3}, v{q0}')
        p.ins(f'v_and_b32 v{q0}, 0xff, v{q0}\nv_cmp_ne_u32 vcc, 0, v{q0}\ns_sub_u32 {sr(scnt)}, {sr(scnt)}, 1\ns_cmp_eq_u32 {sr(scnt)}, 0\ns_cbranch_scc1 {L}x\ns_cbranch_vccnz {L}')
        p.label(L + 'x'); p.T('m_b')
    def mod():
        if tagm: mtest()
        for q in range(1, 8):
            p.wait(vm=[('part', q)])
            for i in (0, 2): p.ins(f'v_pk_add_f32 {vr(vq+i,2)}, {vr(vq+i,2)}, {vr(vq+4*q+i,2)}')
        p.T('f_p')
        for rep in range(2):
            p.ins(f'v_cvt_pk_bf16_f32 v{vq+4}, v{vq}, v{vq+1}\nv_cvt_pk_bf16_f32 v{vq+5}, v{vq+2}, v{vq+3}')
            for i in (0, 2): p.ins(f'v_lshlrev_b32 v{vq+i}, 16, v{vq+4+i//2}\nv_and_b32 v{vq+i+1}, 0xffff0000, v{vq+4+i//2}')
            if rep == 0:
                for i in range(4): p.ins(f'v_add_f32 v{vq+i}, v{vone}, v{vq+i}')
        p.lg(f'ds_write_b128 v{vpw}, {vr(vq,4)}', None, w=(LB, LB + 4096), priv=True)
        for i in range(2):
            for h in range(2):
                p.lg(f'ds_read_b128 {vr(vq+8*i+4*h,4)}, v{vmr} offset:{256*i+16*h+512}', None, r=(LB, LB + 4096), priv=True)
                p.lg(f'ds_read_b128 {vr(vq+16+8*i+4*h,4)}, v{vmr} offset:{256*i+16*h}', ('mv', i), r=(LB, LB + 4096), priv=True)
        for i in range(2):
            p.wait(lg=[('mv', i)])
            for rh in range(2):
                f_ = vf + 16 * rh + 8 * i
                for e in range(0, 8, 2): p.ins(f'v_pk_fma_f32 {vr(f_+e,2)}, {vr(f_+e,2)}, {vr(vq+8*i+e,2)}, {vr(vq+16+8*i+e,2)}')
            for rh in range(2):
                f_ = vf + 16 * rh + 8 * i
                for d in range(4): p.ins(f'v_cvt_pk_bf16_f32 v{f_+d}, v{f_+2*d}, v{f_+2*d+1}')
            for rh in range(2):
                f_ = vf + 16 * rh + 8 * i
                p.ins(f'v_permlane16_swap_b32 v{f_}, v{f_+2}\nv_permlane16_swap_b32 v{f_+1}, v{f_+3}')
                p.vm(f'buffer_store_dwordx4 {vr(f_,4)}, v{vo}, {sr(sWS,4)}, {sr(sho)} offen offset:{2048*i+128*rh} sc1', ('hs', 2 * i + rh))
        p.T('f_hs')
    def addr2():
        p.ins(f's_lshl_b32 {sr(s0)}, {sr(sm)}, 18\ns_add_u32 {sr(s0)}, {sr(s0)}, {WS_H - 32768}\n' + (f's_cmp_eq_u32 {sr(sm)}, 0\ns_cselect_b32 {sr(sHalo)}, {WS_H + 127 * 32768}, {sr(s0)}' if hx else f's_max_u32 {sr(sHalo)}, {sr(s0)}, {WS_H}') + f'\ns_lshr_b32 {sr(s1)}, {sr(sw)}, 1\ns_lshl_b32 {sr(sW4)}, {sr(s1)}, 15\ns_add_u32 {sr(s0)}, {sr(s0)}, {sr(sW4)}\nv_add_u32 v{vA}, {sr(s0)}, v{vl16}')
        p.ins(f's_lshl_b32 {sr(s1)}, {sr(s1)}, 11\ns_add_u32 {sr(sHalo)}, {sr(sHalo)}, {sr(s1)}\ns_lshl_b32 {sr(sW4)}, {sr(sw)}, 12\ns_and_b32 {sr(s0)}, {sr(sW4)}, 4096\ns_add_u32 {sr(sW4+1)}, {sr(s0)}, {sr(s1)}')
        p.ins('\n'.join(rtab(sR)))
        p.ins(f's_lshl_b32 {sr(s0)}, {sr(sm)}, 4\ns_sub_u32 {sr(s0)}, {sr(s0)}, 2\nv_min_u32 v{vp+1}, 17, v{vl}\nv_add_u32 v{vp+1}, {sr(s0)}, v{vp+1}\n{"v_and_b32" if hx else "v_max_i32"} v{vp+1}, {255 if hx else 0}, v{vp+1}\nv_lshlrev_b32 v{vp+1}, 7, v{vp+1}\nv_add_u32 v{vp+1}, {FL_H}, v{vp+1}')
    ih, ch = poll_ops(k, sWS, q0, None, 'plh', scnt, va=vp + 1)
    def hchk():
        assert nit[0] == chk_it + 1 and not avail
        p.T('h_a'); ch(); p.T('h_b'); issue(front[chk_it])
    def code():
        p.ins(f's_lshr_b32 {sr(mA+3)}, s2, 3\ns_lshl_b32 {sr(mA+3)}, {sr(mA+3)}, 2\ns_add_u32 {sr(mA+3)}, {sr(mA+3)}, {sr(sw)}\ns_lshl_b32 {sr(mA+3)}, {sr(mA+3)}, 10')
        code_op(k, vM, vl16, mA)
    T = TMP if False else vt
    q_ = lambda l: l & 15
    gg = lambda l: l >> 4
    vccm = lambda m: f's_mov_b32 vcc_lo, 0x{m & 0xffffffff:08x}\ns_mov_b32 vcc_hi, 0x{m >> 32:08x}'
    m64 = lambda s_, m: F(f's_mov_b32 {sr(s_)}, 0x{m & 0xffffffff:08x}\ns_mov_b32 {sr(s_+1)}, 0x{m >> 32:08x}')
    mpa = lanemask(lambda l: not (4 * gg(l) + (l & 1) <= q_(l))); mpb = lanemask(lambda l: not (4 * gg(l) + 2 + (l & 1) <= q_(l)))
    sb, sn2 = sjo + 1, sms + 1
    su = []
    su += F(f's_and_b32 {sr(s0)}, s2, 3\ns_lshl_b32 {sr(s0)}, {sr(s0)}, 8\nv_add_u32 v{q0+4}, {sr(s0)}, v{vdO}\nv_mul_u32_u24 v{q0+4}, 12288, v{q0+4}\ns_lshr_b32 {sr(s1)}, s2, 2\ns_add_u32 {sr(s1)}, {sr(s1)}, 32\ns_lshl_b32 {sr(s1)}, {sr(s1)}, 7')
    su += F(f'v_lshl_add_u32 v{vdO}, v{vdO}, 11, v{vdJ}\nv_add3_u32 v{vdJ}, v{q0+4}, v{vdJ}, {sr(s1)}')
    su += F(f's_and_b32 {sr(s0)}, {sr(sw)}, 1\ns_lshl_b32 {sr(s1)}, {sr(sm)}, 3\ns_add_u32 {sr(s1)}, {sr(s1)}, {sr(s0)}\ns_lshl_b32 {sr(soo)}, {sr(s1)}, 15\ns_lshl_b32 {sr(s1)}, {sr(sn)}, 1\ns_lshr_b32 {sr(scnt)}, {sr(sw)}, 1\ns_add_u32 {sr(s1)}, {sr(s1)}, {sr(scnt)}\ns_lshl_b32 {sr(s1)}, {sr(s1)}, 10\ns_add_u32 {sr(soo)}, {sr(soo)}, {sr(s1)}\ns_add_u32 {sr(soo)}, {sr(soo)}, {WS_O}')
    su += F(f's_mul_i32 {sr(scnt)}, {sr(scnt)}, 3072\ns_add_u32 {sr(scnt)}, {sr(scnt)}, {QKV}\nv_add_u32 v{vrd}, {sr(scnt)}, v{vl16}\ns_lshl_b32 {sr(s1)}, {sr(s0)}, 3\nv_add_u32 v{vqw}, {sr(s1)}, v{vrd}\ns_lshl_b32 {sr(s1)}, {sr(s0)}, 10\nv_add_u32 v{vkw}, {sr(s1)}, v{vrd}')
    su += F(f'v_lshrrev_b32 v{q0+4}, 2, v{vl}\nv_and_b32 v{vvt}, 3, v{vl}\nv_lshl_add_u32 v{q0+4}, v{vvt}, 4, v{q0+4}\nv_lshl_add_u32 v{vvt}, v{q0+4}, 4, {sr(scnt)}')
    for r_ in range(4): su += m64(mA + 2 * r_, lanemask(lambda l: 4 * gg(l) + r_ <= q_(l)))
    su += m64(mA + 8, lanemask(lambda l: l & 1)) + m64(mA + 10, mpa) + m64(mA + 12, mpb)
    su += F(f'v_mov_b32 v{q0+5}, 0xffff\nv_mov_b32 v{vM}, 0xffff0000\nv_cndmask_b32 v{q0+5}, v{q0+5}, v{vM}, {sr(mA+8,2)}\nv_cndmask_b32 v{vM}, 0, v{q0+5}, {sr(mA+10,2)}\nv_cndmask_b32 v{vM+1}, 0, v{q0+5}, {sr(mA+12,2)}\nv_xor_b32 v{vM+2}, v{vM}, v{q0+5}\nv_xor_b32 v{vM+3}, v{vM+1}, v{q0+5}')
    su.append(f's_or_b32 {sr(s0)}, {sr(s0)}, {sr(sm)}\ns_cmp_eq_u32 {sr(s0)}, 0\ns_cselect_b64 {sr(mA+10,2)}, {sr(mA+10,2)}, 0\ns_cselect_b64 {sr(mA+12,2)}, {sr(mA+12,2)}, 0')
    sus = [lambda: p.wait(vm=['jc'])]
    sus += F(f'v_lshlrev_b32 v{vpb}, 16, v{vjc}\nv_mul_f32 v{vpb+1}, {f32(-LOG2E)}, v{vpb}\nv_exp_f32 v{vpb+1}, v{vpb+1}\nv_lshrrev_b32 v{vt}, 5, v{vl}\nv_add_f32 v{vpb+1}, 1.0, v{vpb+1}\nv_rcp_f32 v{vpb+1}, v{vpb+1}\nv_lshlrev_b32 v{vt}, 6, v{vt}\nv_mul_f32 v{vpb}, v{vpb}, v{vpb+1}\nv_cvt_pk_bf16_f32 v{vpb+1}, v{vpb}, v{vpb}')
    sus += F(f'v_bfe_u32 v{vpb}, v{vl}, 2, 2\nv_lshl_add_u32 v{vt}, v{vpb}, 4, v{vt}\nv_bfe_u32 v{vpb}, v{vl}, 4, 1\nv_lshl_add_u32 v{vt}, v{vpb}, 3, v{vt}\nv_and_b32 v{vpb}, 3, v{vl}\nv_lshl_add_u32 v{vt}, v{vpb}, 1, v{vt}\ns_lshl_b32 {sr(s1)}, {sr(sw)}, 7\ns_add_u32 {sr(s1)}, {sr(s1)}, {JT}\nv_add_u32 v{vt}, {sr(s1)}, v{vt}')
    jtp = min(b_ for b_ in bars if b_ >= W.units[('h', 3)]['lr']) + 1
    st.at(jtp, lambda: p.lg(f'ds_write_b16 v{vt}, v{vpb+1}', 'jtw', w=(JT, JT + 512)))
    su2 = F(f's_bfe_u32 {sr(s1)}, s2, 0x30003\ns_lshl_b32 {sr(sn2)}, {sr(s1)}, 1\ns_and_b32 {sr(s0)}, s2, 1\ns_add_u32 {sr(sn2)}, {sr(sn2)}, {sr(s0)}\ns_and_b32 {sr(sb)}, s2, 4\ns_lshr_b32 {sr(s0)}, s2, 6\ns_add_u32 {sr(sb)}, {sr(sb)}, {sr(s0)}\ns_lshl_b32 {sr(sb)}, {sr(sb)}, 1')
    su2 += F(f's_add_u32 {sr(srot+1)}, {sr(sb)}, {sr(s1)}' if cfg.get('rot2', 1) else f's_mov_b32 {sr(srot+1)}, 0') + F(f's_bfe_u32 {sr(s0)}, s2, 0x10001\ns_add_u32 {sr(sb)}, {sr(sb)}, {sr(s0)}') + rtab(sR2, srot + 1)
    su2 += F(f's_lshl_b32 {sr(s0)}, {sr(sn2)}, 7\nv_add_u32 v{vdO}, {sr(s0)}, v{vdO}')
    su2 += F(f's_lshl_b32 {sr(s0)}, {sr(sb)}, 18\ns_lshr_b32 {sr(s1)}, {sr(sw)}, 1\ns_lshl_b32 {sr(s1)}, {sr(s1)}, 15\ns_add_u32 {sr(s1)}, {sr(s0)}, {sr(s1)}\ns_add_u32 {sr(sjo)}, {sr(s1)}, {WS_O}')
    su2v = [f's_mov_b32 {sr(x[0]+2+i)}, {(x[1], 0x20000)[i]}' for x in late for i in range(2)] + [f'v_add_u32 v{vdW}, {sr(sjo)}, v{vl16}'] + [f'v_and_b32 v{trA+t}, 0xffffbfff, v{trA+t}' for t in (1, 2, 4, 5)]
    su2 += F(f's_and_b32 {sr(s1)}, {sr(sw)}, 1')
    su2v += F(f's_lshl_b32 {sr(s0)}, {sr(sw)}, 13\ns_and_b32 {sr(s0)}, {sr(s0)}, 8192\nv_add_u32 v{vdO2}, {sr(s0)}, v{vl16}\nv_add_u32 v{vdO2+1}, {sr(s0)}, v{vl16+1}')
    su2 += F(f's_lshl_b32 {sr(s1)}, {sr(s1)}, 15\ns_add_u32 {sr(s0)}, {sr(s0)}, {sr(s1)}\ns_lshl_b32 {sr(s1)}, {sr(sn2)}, 1\ns_lshr_b32 {sr(scnt)}, {sr(sw)}, 1\ns_add_u32 {sr(s1)}, {sr(s1)}, {sr(scnt)}\ns_lshl_b32 {sr(sy2)}, {sr(s1)}, 7\ns_lshl_b32 {sr(s1)}, {sr(s1)}, 10\ns_add_u32 {sr(sy)}, {sr(s0)}, {sr(s1)}')
    su2 += F(f's_lshr_b32 {sr(s1)}, {sr(s1)}, 1\ns_lshl_b32 {sr(s0)}, {sr(sb)}, 1\ns_and_b32 {sr(scnt)}, {sr(sw)}, 1\ns_add_u32 {sr(s0)}, {sr(s0)}, {sr(scnt)}\ns_lshl_b32 {sr(s0)}, {sr(s0)}, 14\ns_add_u32 {sr(s0)}, {sr(s0)}, {sr(s1)}\ns_add_u32 {sr(sy+1)}, {sr(s0)}, {WS_ST2}')
    su2 += F(f's_lshl_b32 {sr(s0)}, {sr(sb)}, 11\ns_lshl_b32 {sr(s1)}, {sr(sn2)}, 7\ns_add_u32 {sr(s1)}, {sr(s1)}, {sr(s0)}\ns_lshl_b32 {sr(scnt)}, {sr(sw)}, 28\ns_add_u32 {sr(s1)}, {sr(s1)}, {sr(scnt)}\ns_add_u32 {sr(sy+2)}, {sr(s1)}, {FL_Y}')
    su2 += F(f's_add_u32 {sr(sfl+3)}, {sr(s0)}, {FL_O}')
    opl = F(f'v_and_b32 v{vp+1}, 15, v{vl}\nv_lshlrev_b32 v{vp+1}, 7, v{vp+1}')
    su2v += opl
    if hx:
        su2v += F(f's_lshl_b32 {sr(s0)}, {sr(sm)}, 4\ns_add_u32 {sr(s0)}, {sr(s0)}, {sr(sn)}\ns_lshl_b32 {sr(sHalo)}, {sr(s0)}, 12\ns_add_u32 {sr(sHalo)}, {sr(sHalo)}, {sr(sWL)}\ns_add_u32 {sr(sHalo)}, {sr(sHalo)}, {WS_KV}')
        su2v += F(f's_add_u32 {sr(s0)}, {sr(s0)}, 16\ns_and_b32 {sr(s0)}, {sr(s0)}, 255\ns_lshl_b32 {sr(sm)}, {sr(s0)}, 12\ns_add_u32 {sr(sm)}, {sr(sm)}, {sr(sWL)}\ns_add_u32 {sr(sm)}, {sr(sm)}, {WS_KV}')
        su2v += F(f's_lshl_b32 {sr(s0)}, {sr(s0)}, 7\ns_add_u32 {sr(s0)}, {sr(s0)}, {FL_O + 32768}\ns_sub_u32 {sr(s0)}, {sr(s0)}, {sr(sfl+3)}\ns_sub_u32 {sr(sfl+3)}, {sr(sfl+3)}, 32768\nv_add_u32 v{vp+1}, 32768, v{vp+1}\nv_writelane_b32 v{vp+1}, {sr(s0)}, 16')
        su2v += F(f's_lshr_b32 {sr(s0)}, {sr(sw)}, 1\ns_lshl_b32 {sr(s0)}, {sr(s0)}, 10\ns_add_u32 {sr(sn)}, {sr(s0)}, {sr(sWL)}\ns_add_u32 {sr(sn)}, {sr(sn)}, {QKV + 3 * 6144 + 1024}')
    def run(L):
        for o in L: p.ins(o) if isinstance(o, str) else o()
    def tw(i0, n):
        p.ins(f's_add_u32 {sr(s0)}, {sr(sw)}, {i0}\ns_lshr_b32 {sr(s1)}, {sr(s0)}, 1\ns_lshl_b32 {sr(s1)}, {sr(s1)}, 11\ns_and_b32 {sr(s0)}, {sr(s0)}, 1\ns_and_b32 {sr(scnt)}, {sr(sm if cfg.get("rot", 1) != 1 else srot)}, 7\ns_lshl_b32 {sr(scnt)}, {sr(scnt)}, 1\ns_add_u32 {sr(s0)}, {sr(s0)}, {sr(scnt)}\ns_mul_i32 {sr(s0)}, {sr(s0)}, {64 * 6144}\ns_add_u32 {sr(s0)}, {sr(s0)}, {sr(s1)}')
        p.ins(f's_lshl_b32 {sr(s1)}, {sr(sn)}, 7\ns_add_u32 {sr(s0)}, {sr(s0)}, {sr(s1)}\ns_cmp_lt_u32 {sr(sw)}, {n}\ns_cselect_b32 {sr(s0)}, {sr(s0)}, {OOB}\nv_mul_u32_u24 v{vpb+1}, 6144, v{vl}')
        p.vm(f'buffer_load_dword a252, v{vpb+1}, {sr(sWq,4)}, {sr(s0)} offen {cfg.get("tfl", "")}', 'dummy')
    def tw16():
        p.ins(f's_lshl_b32 {sr(s1)}, {sr(sw)}, 11\ns_mul_i32 {sr(s0)}, {sr(sm)}, {64 * 6144}\ns_add_u32 {sr(s0)}, {sr(s0)}, {sr(s1)}\ns_lshl_b32 {sr(s1)}, {sr(sn)}, 7\ns_add_u32 {sr(s0)}, {sr(s0)}, {sr(s1)}\ns_cmp_lt_u32 {sr(sw)}, 3\ns_cselect_b32 {sr(s0)}, {sr(s0)}, {OOB}\nv_mul_u32_u24 v{vpb+1}, 6144, v{vl}')
        p.vm(f'buffer_load_dword a252, v{vpb+1}, {sr(sWq,4)}, {sr(s0)} offen {cfg.get("tfl", "")}', 'dummy')
    def tq(i0, n):
        p.ins(f's_add_u32 {sr(s0)}, {sr(sw)}, {i0}\ns_sub_u32 {sr(s1)}, 5, {sr(s0)}\ns_bitcmp1_b32 s2, 2\ns_cselect_b32 {sr(s0)}, {sr(s1) if cfg.get("trev", 1) else sr(s0)}, {sr(s0)}')
        p.ins(f's_lshr_b32 {sr(s1)}, {sr(s0)}, 1\ns_lshl_b32 {sr(s1)}, {sr(s1)}, 11\ns_and_b32 {sr(s0)}, {sr(s0)}, 1\ns_lshr_b32 {sr(scnt)}, s2, 3\ns_lshl_b32 {sr(scnt)}, {sr(scnt)}, 1\ns_add_u32 {sr(s0)}, {sr(s0)}, {sr(scnt)}\ns_mul_i32 {sr(s0)}, {sr(s0)}, {16 * 6144}\ns_add_u32 {sr(s0)}, {sr(s0)}, {sr(s1)}')
        p.ins(f's_and_b32 {sr(s1)}, s2, 3\ns_lshl_b32 {sr(s1)}, {sr(s1)}, 9\ns_add_u32 {sr(s0)}, {sr(s0)}, {sr(s1)}\ns_cmp_lt_u32 {sr(sw)}, {n}\ns_cselect_b32 {sr(s0)}, {sr(s0)}, {OOB}\nv_lshrrev_b32 v{vpb+1}, 2, v{vl}\nv_mul_u32_u24 v{vpb+1}, {6144 - 512}, v{vpb+1}\nv_lshl_add_u32 v{vpb+1}, v{vl}, 7, v{vpb+1}')
        p.vm(f'buffer_load_dword a252, v{vpb+1}, {sr(sWq,4)}, {sr(s0)} offen', 'dummy'); p.items.append(('vmark', f'tq{i0}'))
    def tr(r0, n):
        t_ = q0 + 7
        p.ins(f's_lshr_b32 {sr(s0)}, s2, 3\ns_mul_i32 {sr(s0)}, {sr(s0)}, {n // 32 * 6144}\ns_lshl_b32 {sr(s1)}, {sr(sw)}, 11\ns_add_u32 {sr(s0)}, {sr(s0)}, {sr(s1)}\ns_and_b32 {sr(s1)}, s2, 3\ns_lshl_b32 {sr(s1)}, {sr(s1)}, 9\ns_add_u32 {sr(s0)}, {sr(s0)}, {sr(s1)}\ns_add_u32 {sr(s0)}, {sr(s0)}, {r0 * 6144}')
        p.ins(f's_cmp_lt_u32 {sr(sw)}, 3\ns_cselect_b32 {sr(s0)}, {sr(s0)}, {OOB}\nv_lshrrev_b32 v{t_}, 2, v{vl}\nv_mul_u32_u24 v{t_}, {6144 - 512}, v{t_}\nv_lshl_add_u32 v{t_}, v{vl}, 7, v{t_}')
        if n < 512: p.ins(f's_bfm_b64 exec, {n // 8}, 0')
        p.vm(f'buffer_load_dword a252, v{t_}, {sr(sWq,4)}, {sr(s0)} offen', 'dummy')
        if n < 512: p.ins('s_mov_b64 exec, -1')
    def tl():
        p.ins(f's_mul_i32 {sr(s0)}, s2, 3\ns_add_u32 {sr(s0)}, {sr(s0)}, {sr(sw)}\ns_lshl_b32 {sr(s0)}, {sr(s0)}, 13\ns_cmp_lt_u32 {sr(sw)}, 3\ns_cselect_b32 {sr(s0)}, {sr(s0)}, {OOB}\nv_lshlrev_b32 v{vpb+1}, 7, v{vl}')
        p.vm(f'buffer_load_dword a252, v{vpb+1}, {sr(sWq,4)}, {sr(s0)} offen', 'dummy')
    def tlb(sh, L=None):
        L = L or ((sWS, 0x5000000), (sWq, DM * 6144), (sWo, DM * 2048), (sWg, DM * FF * 2))
        p.ins(f's_mov_b64 {sr(mA,2)}, {sr(L[0][0],2)}\ns_mov_b32 {sr(mA+2)}, {L[0][1]}')
        for w_ in range(1, 4): p.ins(f's_cmp_eq_u32 {sr(sw)}, {w_}\ns_cselect_b64 {sr(mA,2)}, {sr(L[w_][0],2)}, {sr(mA,2)}\ns_cselect_b32 {sr(mA+2)}, {L[w_][1]}, {sr(mA+2)}')
        p.ins(f's_mov_b32 {sr(mA+3)}, 0x20000\nv_lshlrev_b32 v{vpb+1}, 21, v{vl}\ns_lshr_b32 {sr(s0)}, s2, 3\ns_lshl_b32 {sr(s0)}, {sr(s0)}, {sh}')
        p.vm(f'buffer_load_dword a252, v{vpb+1}, {sr(mA,4)}, {sr(s0)} offen', 'dummy')
    assert mA % 4 == 0
    steps = dict(body=body, mld=mld, wt=lambda: p.wait(vm=['tq0']), wu=lambda: p.wait(vm=['tq3']), tlb=lambda: tlb(16), tlb2=lambda: tlb(16, ((sWu, DM * FF * 2), (sWd, DM * FF * 2), (sOut, M * DM * 2), (sWm, DM * 12288))), tlb0=lambda: tlb(7), tqa=lambda: tq(0, 2), tqb=lambda: tq(2, 4), tqc=lambda: tq(0, 3), tqd=lambda: tq(3, 3), tl=tl, tw=tw16, sus=lambda: run(sus), su=lambda: run(su), su2=lambda: run(su2), twa=lambda: tw(0, 2), twb=lambda: tw(2, 4), twc=lambda: tw(0, 4), twd=lambda: tw(4, 2), stats2=stats2, x1=lambda: xload(1), addr=addr, gemv=gemv, stats=stats, xa=xa, mpoll=im, mchk=mchk, mod=mod, addr2=addr2, hpoll=ih, hchk=hchk, it=it, code=code,
                 warm=lambda: p.ins(f';@WARM {sr(sw)} 0 4'),
                 mpub=lambda: (pub_op(k, sWS, vpb, sfm, ['ms'])(), p.T('m_pub')),
                 hpub=lambda: (pub_op(k, sWS, vpb, sfl + 1, [('hs', i) for i in range(4)])(), p.T('h_pub')))
    for x in script:
        if x[0] == 'D': D(int(x[1:]))
        elif x[0] == 'R': tr(*map(int, x[1:].split('_')))
        elif '+' in x:
            nm, n_ = x.split('+'); a_ = len(p.items); steps[nm](); bd = p.items[a_:]; del p.items[a_:]
            def scc_dead(i):
                for y in bd[i:]:
                    if y[0] == 'label': return False
                    if y[0] != 'ins': continue
                    o_ = y[1].split()[0]
                    if o_.startswith(('s_cselect', 's_cbranch', 's_addc')) or 'exec' in y[1]: return False
                    if o_.startswith('s_') and not o_.startswith(('s_mov', 's_mul', 's_wait', 's_barrier', 's_nop')): return True
                return True
            first_ = max([i + 1 for i, y in enumerate(bd) if y == ('ins', 's_barrier')] + [0]) if nm == 'it' else 0
            n_ = int(n_); done_ = 0
            for i, y in enumerate(bd):
                if i >= first_ and done_ < n_ and (i - first_) * n_ >= done_ * (len(bd) - first_) and scc_dead(i): D(1); done_ += 1
                p.items.append(y)
            D(n_ - done_)
        else: steps[x]()
    assert nit[0] == nf and not avail
    first = [u for u in W.units if -100 < W.units[u]['fr'] <= bars[0]]
    for u in first: W.units[u]['vis'] = True
    pre_done = [u for d in front for u in front[d]]
    assert all(u in pre_done for u in first), first
    su2_beg = cfg.get('su2', 322 if il else 222)
    for hf in range(2): W.units[('j', hf)]['e'] = cfg.get('je', (380, 430) if il else (150, 250))[hf]
    PD = cfg.get('pd', 35)
    pls = [T0 + x - PD for x in cfg.get('plo', (-109, 47, 143))]
    for i, s in enumerate(pls):
        assert s + PD in bars
        i_, c_ = poll_ops(k, sWS, vp, sfl + 3, ('plo', i), scnt, cmp=f'v_subrev_u32 v{vp}, {sr(sTok)}, v{vp}\nv_subrev_u32 v{vp}, {i + 1}, v{vp}\nv_cmp_lt_u32 vcc, 3, v{vp}', bar=False)
        st.at(s + PD - cfg.get('pdo', (35, 35, 35))[i], i_); st.last(s + PD, f';@T o{i}a'); st.last(s + PD, c_); st.pre.setdefault(s + PD + 1, []).append(f';@T o{i}b')
    for ps in range(4):
        for c in range(4): W.units[('o', ps, c)]['e'] = pls[max(ps - 1, 0)] + PD + 1
    jc = T0 + cfg.get('jchk', -17); assert jc in bars
    ij, cj = poll4_ops(k, sWS, TMP, vt, 'plj', scnt, bar=False)
    st.at(jc - 62, f'v_lshlrev_b32 v{vt}, 7, v{vl}\nv_add_u32 v{vt}, {FL_J}, v{vt}'); st.at(jc - cfg.get('jpd', 45), ij); st.last(jc, cj)
    st.at(T0 + 105, op(lambda: (p.ins(f's_or_b32 {sr(scnt)}, s2, {sr(sw)}\ns_mov_b32 {sr(scnt)}, {WS_TOK}\ns_cselect_b32 {sr(scnt)}, {OOB}, {sr(scnt)}'), pub_op(k, sWS, vpb, scnt, [])()), 7))
    def pub_at(slot, tags, soff, add=0):
        b_ = min(x for x in bars if x >= slot)
        W.bw[b_] += tags; st.pre.setdefault(b_ + 1, []).append(pub_op(k, sWS, vpb, soff, [], add=add)); return b_
    su3_beg = P[2] + cfg.get('su3', 102); su3_end = P[3]
    for u in W.units:
        if u[0] == 3: W.units[u]['e'] = max(su3_end, T0 + cfg.get('w3e', 150))
    ops = W.dma_ops(bars, pre_done)
    for o in ops:
        if o['id'] in cfg.get('quiet', {}): o['wt'] = cfg['quiet'][o['id']]
        if o['id'][0][0] == 'j' and cfg.get('jdl'): o['dl'] = min(o['dl'], cfg['jdl'])
    extra = []
    def X(e, dl, main, pre=None, wt=1): extra.append(dict(e=e, dl=dl, main=main, pre=pre, id='x', wt=wt))
    vxa, vg, vc2, vone2, vst, vgo, f2, d2, Y2, D1 = 144, 160, 168, 176, 180, 181, 184, 192, 196, 224
    tj = max(jc + 3, T0 - 20)
    tx = T0 + cfg.get('tx', -10)
    st.at(tj - 1, f'v_and_b32 v{vt}, 31, v{vl}\nv_lshlrev_b32 v{vt}, 2, v{vt}\nv_lshrrev_b32 v{vgo}, 5, v{vl}\nv_lshl_add_u32 v{vt}, v{vgo}, 13, v{vt}')
    for q in range(NPART):
        pre = op(lambda q=q: p.ins(f's_add_u32 {sr(sv+1)}, {sr(sy2)}, {6144 * 4 * q + 2 * 4096}'), 1)
        X(tx, tx + 30, lambda q=q: p.vm(f'buffer_load_dword v{vg+q}, v{vt}, {sr(sWS,4)}, {sr(sv+1)} offen sc1', ('g', q)), pre, 0.5)
    assert tj > pls[0] + PD
    for j in range(4):
        pre = op(lambda j=j: p.ins(f's_add_u32 {sr(sv+1)}, {sr(sy)}, {WS_XA + 65536 * j}'), 1)
        X(tx, tx + 30, lambda j=j: p.vm(f'buffer_load_dwordx4 {vr(vxa+4*j,4)}, v{vl16}, {sr(sWS,4)}, {sr(sv+1)} offen sc1', ('xa', j)), pre, 0.6)
    vtb = k.vtb = 212
    st.at(T0 + 2, f's_lshr_b32 {sr(sjo+1)}, s2, 6\ns_lshl_b32 {sr(sjo+1)}, {sr(sjo+1)}, 2\ns_add_u32 {sr(sjo+1)}, {sr(sjo+1)}, {sr(sw)}\ns_lshl_b32 {sr(sjo+1)}, {sr(sjo+1)}, 8')
    st.at(T0 + 60, f'v_lshrrev_b32 v{vtb+8}, 5, v{vl}\nv_xor_b32 v{vtb+8}, 1, v{vtb+8}\nv_lshlrev_b32 v{vtb+8}, 12, v{vtb+8}')
    st.at(T0 + 62, f'v_and_b32 v{vtb+9}, 31, v{vl}\nv_lshl_add_u32 v{vtb+8}, v{vtb+9}, 3, v{vtb+8}')
    for q in range(NPART):
        pre = op(lambda q=q: p.ins(f's_add_u32 {sr(sv+1)}, {sr(sjo+1)}, {6144 * 4 * q + 3 * 4096}'), 1)
        X(T0 + cfg.get('tt', 105), T0 + cfg.get('tt', 105) + 60, lambda q=q: p.vm(f'buffer_load_dwordx2 {vr(vtb+2*q,2)}, v{vtb+8}, {sr(sWS,4)}, {sr(sv+1)} offen sc1', ('tb', q)), pre, 0.5)
    def touch_op(kind, j, nsel):
        def f():
            L = k.lab('TP')
            p.ins(f's_lshr_b32 {sr(scnt)}, s2, 3\ns_add_u32 {sr(scnt)}, {sr(scnt)}, s2\ns_and_b32 {sr(scnt)}, {sr(scnt)}, {nsel - 1}\ns_cmp_lg_u32 {sr(scnt)}, {j}\ns_cbranch_scc1 {L}')
            ld, srd = {'wo': (2048, sWo), 'wg': (7168, sWg), 'wu': (7168, sWu)}[kind]
            p.ins(f's_lshr_b32 {sr(scnt)}, s2, 3\ns_lshl_b32 {sr(scnt)}, {sr(scnt)}, 2\ns_add_u32 {sr(scnt)}, {sr(scnt)}, {sr(sw)}\ns_mul_i32 {sr(scnt)}, {sr(scnt)}, {8 * ld}')
            p.ins(f's_and_b32 vcc_lo, s2, {1 if kind == "wo" else 7}\ns_mul_i32 vcc_lo, vcc_lo, {1024 if kind == "wo" else 896}\ns_add_u32 {sr(scnt)}, {sr(scnt)}, vcc_lo')
            p.ins(f'v_lshrrev_b32 v{vpb}, 3, v{vl}\nv_mul_u32_u24 v{vpb}, {ld - 1024}, v{vpb}\nv_lshl_add_u32 v{vpb}, v{vl}, 7, v{vpb}')
            if kind != 'wo': p.ins('s_mov_b32 exec_lo, 0x7f7f7f7f\ns_mov_b32 exec_hi, 0x7f7f7f7f')
            p.ins(f'buffer_load_dword a253, v{vpb}, {sr(srd,4)}, {sr(scnt)} offen ; cond')
            if kind != 'wo': p.ins('s_mov_b64 exec, -1')
            p.label(L)
        return op(f, 6)
    def head_op():
        L = k.lab('TH')
        p.ins(f's_cmp_gt_u32 {sr(sw)}, 1\ns_cbranch_scc1 {L}\ns_cmp_eq_u32 {sr(sw)}, 0\ns_cselect_b64 {sr(sX,2)}, {sr(sWg,2)}, {sr(sWu,2)}')
        p.ins(f's_lshr_b32 {sr(scnt)}, s2, 3\ns_mul_i32 {sr(scnt)}, {sr(scnt)}, {8 * 7168}\ns_and_b32 vcc_lo, s2, 7\ns_mul_i32 vcc_lo, vcc_lo, 896\ns_add_u32 {sr(scnt)}, {sr(scnt)}, vcc_lo')
        p.ins(f'v_lshrrev_b32 v{vpb}, 3, v{vl}\nv_mul_u32_u24 v{vpb}, {7168 - 1024}, v{vpb}\nv_lshl_add_u32 v{vpb}, v{vl}, 7, v{vpb}\ns_mov_b32 exec_lo, 0x7f7f7f7f\ns_mov_b32 exec_hi, 0x7f7f7f7f')
        p.ins(f'buffer_load_dword a253, v{vpb}, {sr(sX,4)}, {sr(scnt)} offen {cfg.get("hfl", "")} ; cond\ns_mov_b64 exec, -1')
        p.label(L)
    if cfg.get('hd', 590): st.at(cfg.get('hd', 590), op(head_op, 6))
    for kind, pos in cfg.get('tp', {}).items():
        for j, s in enumerate(pos): st.at(s, touch_op(kind, j, len(pos)))
    if hx:
        kb = pls[0] + PD
        st.at(kb + 2, f'v_writelane_b32 v{vp+1}, {sr(scnt)}, 16'.replace('v_writelane', f's_mov_b32 {sr(scnt)}, 32768\nv_writelane'))
        X(kb + 1, kb + 30, lambda: p.vm(f'buffer_load_dwordx4 v{vl16}, {sr(sWS,4)}, {sr(sm)} offen sc1 lds', 'kv', w=(QKV + 3 * 6144 + 1024, QKV + 3 * 6144 + 1025)), op(lambda: p.ins(f's_mov_b32 m0, {sr(sn)}'), 1))
        W.bw[ab[3]].append('kv')
    k.ein = cfg.get('ein', 0); epl = N - cfg.get('epl', 15)
    st.at(epl - 4, f's_lshr_b32 {sr(sfl+3)}, s2, 5\ns_lshl_b32 {sr(sfl+3)}, {sr(sfl+3)}, 12\ns_add_u32 {sr(sfl+3)}, {sr(sfl+3)}, {FL_E}')
    st.at(epl - 2, f'v_and_b32 v{vp+1}, 31, v{vl}\nv_lshlrev_b32 v{vp+1}, 7, v{vp+1}')
    assert epl - 4 > pls[2] + PD
    ie, k.echk = poll_ops(k, sWS, vp, sfl + 3, 'ple', scnt)
    st.at(epl, ie)
    if k.ein:
        ec = N - cfg.get('ec', 22); st.at(ec, ';@T e_a'); st.at(ec, k.echk); st.at(ec, ';@T e_b')
        for ts in range(k.ein):
            for m in range(2):
                for j in range(2):
                    r_ = 32 * ts + (4 * j + m) * 4; assert Q[3] + 4 * (r_ // 16) + 4 <= ec + 1
                    st.at(ec + 1 + int((4 * ts + 2 * m + j) * cfg.get('est', 1.5)), op(lambda ts=ts, m=m, j=j, r_=r_: (p.ins(f's_add_u32 {sr(scnt)}, {sr(sC)}, {2048 * ts + 65536 * m}'),
                          p.vm(f'buffer_load_dwordx4 {vr(A0 + r_,4)}, v{vl16}, {sr(sWS,4)}, {sr(scnt)} offen offset:{1024*j} sc1', ('A', 3, ts, j, m))), 'sm'))
    gp = cfg.get('gaps', (4, 5, 3.5, 3, 1.5, 6))
    left = st.vmem(ops + extra, lambda i: gp[0] if i < P[1] else gp[1] if i < I[('st', 3)] - 60 else gp[2] if i < T0 else gp[3] if i < pls[2] + PD else gp[4] if i < pls[2] + PD + 16 * gp[4] else gp[5])
    k.left = left
    k.vops = [o for o in ops if 't' in o]
    lastw = max(o['t'] for o in ops if o['id'][0][0] in ('q', 'k', 'v', 'h'))
    assert lastw + 1 < su2_beg and max(U_['lr'] for u, U_ in W.units.items() if u[0] in ('k', 'v')) < su2_beg, lastw
    W.bw[min(b_ for b_ in bars if b_ > jtp)].append(('lg', 'jtw'))
    e_ = st.fill(su2v, su2_beg); assert e_ < P[1]
    SC = (32 ** -0.5) * LOG2E
    mf_ = lambda d, a_, b_, c='0': op(lambda: p.ins(f'{MFMA} {vr(d,4)}, {vr(a_,4)}, {vr(b_,4)}, {c}'), 'M')
    for ps in range(4):
        s0_ = (P + [T0])[ps + 1]; L = []; tags = []
        for e in ((0, 1, 2) if ps == 0 else (0, 1)):
            sl = (qs(2 * ps + e) if e < 2 else 0) * 6144
            c1, c2 = (acc(ps, 1, e), acc(ps, 2, e)) if e < 2 else (acch(1), acch(2))
            X_ = F(f'v_cvt_pk_bf16_f32 v{c1}, v{c1}, v{c1+1}\nv_cvt_pk_bf16_f32 v{c1+1}, v{c1+2}, v{c1+3}\nv_cvt_pk_bf16_f32 v{c1+2}, v{c2}, v{c2+1}\nv_cvt_pk_bf16_f32 v{c1+3}, v{c2+2}, v{c2+3}')
            X_.append(lambda c1=c1, sl=sl, t=('kw', ps, e): p.lg(f'ds_write_b128 v{vkw}, {vr(c1,4)} offset:{sl+1024}', t, w=(QKV + sl + 1024, QKV + sl + 1025)))
            if hx and ps == 3 and e == 1: X_ = []
            else: tags.append(('kw', ps, e))
            if e < 2:
                c0 = acc(ps, 0, e)
                X_ = F(f'v_cvt_pk_bf16_f32 v{c0}, v{c0}, v{c0+1}\nv_cvt_pk_bf16_f32 v{c0+1}, v{c0+2}, v{c0+3}') + [lambda c0=c0, sl=sl, ps=ps, e=e: p.lg(f'ds_write_b64 v{vqw}, {vr(c0,2)} offset:{sl}', ('qw', ps, e), w=(QKV + sl, QKV + sl + 1))] + X_
                tags.append(('qw', ps, e))
                L += X_
            else: LH = X_
        if ps == 0:
            for o in LH: st.at(s0_ + 2, o)
            if hx: st.at(s0_ + 3, lambda: p.vm(f'buffer_store_dwordx4 {vr(acch(1),4)}, v{vl16}, {sr(sWS,4)}, {sr(sHalo)} offen sc1'))
        cur = [qs(2 * ps + e) * 6144 for e in range(2)]; prv = [qs(2 * ps + e - 1) * 6144 for e in range(2)]
        B = ACC + 24 * (ps % 2); vQ, vK, vV, w_, vS = B, B + 4, B + 12, B + 20, (236 if i2 and ps == 3 else TMP)
        L.append(f's_bitcmp1_b32 {sr(sw)}, 0\ns_mov_b32 {sr(s0)}, {cur[0]}\ns_cselect_b32 {sr(s0)}, {cur[1]}, {sr(s0)}\ns_mov_b32 {sr(s1)}, {prv[0]}\ns_cselect_b32 {sr(s1)}, {prv[1]}, {sr(s1)}')
        L += F(f'v_add_u32 v{vS}, {sr(s0)}, v{vrd}\nv_add_u32 v{vS+1}, {sr(s1)}, v{vrd}\nv_add_u32 v{vS+2}, {sr(s0)}, v{vvt}\nv_add_u32 v{vS+3}, {sr(s1)}, v{vvt}')
        e_ = st.fit(L, s0_ + 3, ab[ps])
        W.bw[ab[ps]] += [('lg', t) for t in tags]
        R_ = (QKV, QKV + (24576 if ps == 3 else 18432))
        L = [lambda vQ=vQ, vS=vS, R_=R_: p.lg(f'ds_read_b128 {vr(vQ,4)}, v{vS}', None, r=R_),
             lambda vK=vK, vS=vS, R_=R_: p.lg(f'ds_read_b128 {vr(vK,4)}, v{vS+1} offset:1024', None, r=R_),
             lambda vK=vK, vS=vS, ps=ps, R_=R_: p.lg(f'ds_read_b128 {vr(vK+4,4)}, v{vS} offset:1024', ('K', ps), r=R_)]
        for d in range(2):
            for h in range(2):
                L.append(lambda d=d, h=h, vV=vV, vS=vS, ps=ps, R_=R_: p.lg(f'ds_read_b64_tr_b16 {vr(vV+4*d+2*h,2)}, v{vS+3-h} offset:{2048+8*d}', ('V', ps), r=R_))
        L += [('gap', 5), lambda ps=ps: p.wait(lg=[('K', ps), ('V', ps)]), mf_(vS, vK, vQ), mf_(vS + 4, vK + 4, vQ), ('gap', 4)]
        L += [f'v_cndmask_b32 v{w_+r_}, v{vS+r_}, v{vS+4+r_}, {sr(mA+2*r_,2)}' for r_ in range(4)]
        L += F(f'v_cndmask_b32 v{w_}, v{w_}, v{w_+1}, {sr(mA+8,2)}\nv_cndmask_b32 v{w_+1}, v{w_+2}, v{w_+3}, {sr(mA+8,2)}\nv_mul_f32 v{w_}, {f32(SC)}, v{w_}\nv_mul_f32 v{w_+1}, {f32(SC)}, v{w_+1}')
        if ps == 0: L += F(f'v_mov_b32 v{w_+2}, {f32(-1e9)}\nv_cndmask_b32 v{w_}, v{w_}, v{w_+2}, {sr(mA+10,2)}\nv_cndmask_b32 v{w_+1}, v{w_+1}, v{w_+2}, {sr(mA+12,2)}')
        def xred(o_):
            R2 = []
            for sw_ in (16, 32): R2 += [f'v_mov_b32 v{w_+3}, v{w_+2}', ('gap', 1), f'v_permlane{sw_}_swap_b32 v{w_+2}, v{w_+3}', f'{o_} v{w_+2}, v{w_+2}, v{w_+3}']
            return R2
        L += [f'v_max_f32 v{w_+2}, v{w_}, v{w_+1}'] + xred('v_max_f32')
        L += F(f'v_sub_f32 v{w_}, v{w_}, v{w_+2}\nv_sub_f32 v{w_+1}, v{w_+1}, v{w_+2}\nv_exp_f32 v{w_}, v{w_}\nv_exp_f32 v{w_+1}, v{w_+1}') + [('gap', 1), f'v_add_f32 v{w_+2}, v{w_}, v{w_+1}'] + xred('v_add_f32')
        L += [f'v_rcp_f32 v{w_+2}, v{w_+2}', ('gap', 1)] + F(f'v_mul_f32 v{w_}, v{w_}, v{w_+2}\nv_mul_f32 v{w_+1}, v{w_+1}, v{w_+2}\nv_cvt_pk_bf16_f32 v{w_}, v{w_}, v{w_}\nv_cvt_pk_bf16_f32 v{w_+1}, v{w_+1}, v{w_+1}')
        L += [f'v_and_b32 v{vQ+i}, v{vM+i}, v{w_+(i&1)}' for i in range(4)] + [('gap', 1), mf_(vK, vV, vQ), mf_(vK + 4, vV + 4, vQ), ('gap', 4)]
        L += [f'v_cvt_pk_bf16_f32 v{vS+i}, v{vK+2*i}, v{vK+2*i+1}' for i in range(4)]
        L.append(lambda vS=vS, ps=ps: p.vm(f'buffer_store_dwordx4 {vr(vS,4)}, v{vl16}, {sr(sWS,4)}, {sr(soo)} offen sc1', ('os', ps)))
        L.append(f's_add_u32 {sr(soo)}, {sr(soo)}, 65536')
        e_ = st.fill(L, ab[ps] + 1, cap=cfg.get('acap', (2, 2, 3, 7))[ps])
        I[('ae', ps)] = e_
        assert ps > 1 or e_ < I[('st', ps + 2)] - 1, (ps, e_)
        if ps == 3: st.at(e_ + cfg.get('opub', (0, 70, 10, 28))[ps], pub_op(k, sWS, vpb, sfl, [('os', ps)], add=ps))
        elif ps: I[('pb', ps)] = pub_at(e_ + cfg.get('opub', (0, 70, 10, 28))[ps], [('os', ps)], sfl, ps)
    assert I[('ae', 0)] + 2 < jp and jp + 7 * JS + 18 < P[2] or I[('ae', 1)] + 2 < jp and jp + 7 * JS + 18 < P[3], (I, jp)
    JB = ACC + 24 * (0 if jp < P[2] else 1)
    st.at(jp - 2, f'v_lshrrev_b32 v{JB+12}, 4, v{vl}\nv_lshlrev_b32 v{JB+12}, 4, v{JB+12}')
    st.at(jp - 1, f'v_add_u32 v{JB+13}, {JT}, v{JB+12}')
    for ks in range(8):
        s = jp + JS * ks
        st.at(s + 2, lambda ks=ks: p.lg(f'ds_read_b128 {vr(JB+4*(ks%2),4)}, v{JB+13} offset:{64*ks}', ('jb', ks), r=(JT, JT + 512)))
        st.at(s + 11, lambda ks=ks: (p.wait(lg=[('jb', ks)]), p.ins(f'{MFMA} {vr(JB+8,4)}, {vr(TMP+4*(ks%2),4)}, {vr(JB+4*(ks%2),4)}, {vr(JB+8,4) if ks else 0}')))
    L = F(f'v_and_b32 v{JB+14}, 15, v{vl}\nv_lshl_add_u32 v{JB+12}, v{JB+14}, 27, v{JB+12}')
    L += F(f's_lshr_b32 {sr(s0)}, s2, 2\ns_lshl_b32 {sr(s2_)}, {sr(s0)}, 7\ns_lshl_b32 {sr(s0)}, {sr(s0)}, 8\ns_and_b32 {sr(s1)}, s2, 3\ns_mul_i32 {sr(sjo+1)}, {sr(s1)}, {6144*4}\ns_add_u32 {sr(s0)}, {sr(s0)}, {sr(sjo+1)}\ns_lshl_b32 {sr(sjo+1)}, {sr(sw)}, 6\ns_add_u32 {sr(s0)}, {sr(s0)}, {sr(sjo+1)}\ns_add_u32 {sr(s0)}, {sr(s0)}, {32*256}')
    L += F(f's_lshl_b32 {sr(s1)}, {sr(s1)}, 2\ns_add_u32 {sr(s2_)}, {sr(s2_)}, {sr(s1)}\ns_add_u32 {sr(s2_)}, {sr(s2_)}, {FL_J}')
    L.append(f's_cmp_eq_u32 {sr(sw)}, 0\ns_cselect_b32 {sr(sjo+1)}, {sr(s2_)}, {OOB}')
    L += [('from', jp + 7 * JS + 15), lambda: p.vm(f'buffer_store_dwordx4 {vr(JB+8,4)}, v{JB+12}, {sr(sWS,4)}, {sr(s0)} offen sc1', 'js')]
    su3_beg = max(su3_beg, I[('ae', 1)] + 3)
    e3 = st.fill(su3, su3_beg); assert e3 < su3_end and (I[('ae', 2)] + 1 < jc - cfg.get('jpd', 45) or e3 < jc - 62 and jc < P[3]) and su3_beg > I[('ae', 1)] + 2 and su3_beg > max(o['t'] for o in ops if o['id'][0][0] == 'j'), e3
    e_ = st.fill(L, max(jp + 20, e3 + 1) if il else jp + 20)
    jbar = min(b_ for b_ in bars if b_ > e_ + 50)
    W.bw[jbar].append('js'); st.at(jbar + 1, pub_op(k, sWS, vpb, sjo + 1, []))
    L = [lambda: p.wait(vm=[('g', q) for q in range(NPART)])]
    L += F(f'v_add_f32 v{vg}, v{vg}, v{vg+1}\nv_add_f32 v{vg+2}, v{vg+2}, v{vg+3}\nv_add_f32 v{vg}, v{vg}, v{vg+2}') + rb(vg) + F(f'v_cvt_f32_u32 v{vgo}, v{vgo}\nv_add_f32 v{vg}, v{vg}, v{vgo}') + rb(vg)
    L += F(f's_lshl_b32 {sr(s2_)}, {sr(sw)}, 8\ns_add_u32 {sr(s2_)}, {sr(s2_)}, {GL2}\nv_lshl_add_u32 v{vst}, v{vl}, 2, {sr(s2_)}\nv_lshrrev_b32 v{vg+1}, 4, v{vl}\nv_lshl_add_u32 v{vgo}, v{vg+1}, 4, {sr(s2_)}')
    L.append(lambda: p.lg(f'ds_write_b32 v{vst}, v{vg}', None, w=(GL2, GL2 + 1024), priv=True))
    L += F(f'v_bfe_u32 v{vst}, v{vl}, 2, 2\nv_xor_b32 v{vst}, v{vst}, v{vg+1}\nv_lshlrev_b32 v{vst}, 27, v{vst}\nv_and_b32 v{vg+2}, 15, v{vl}\nv_lshl_add_u32 v{vst}, v{vg+2}, 4, v{vst}')
    L += F(f's_and_b32 {sr(s2_)}, {sr(sw)}, 1\ns_lshl_b32 {sr(s2_)}, {sr(s2_)}, 11\nv_add_u32 v{vst+2}, {sr(s2_)}, v{vl16}\ns_and_b32 {sr(s2_)}, {sr(sw)}, 2\ns_lshl_b32 {sr(s2_)}, {sr(s2_)}, 9\ns_add_u32 {sr(s2_)}, {sr(s2_)}, {XST}\nv_add_u32 v{vst+2}, {sr(s2_)}, v{vst+2}')
    L += [lambda i=i: p.lg(f'ds_read_b128 {vr(vg+4*i,4)}, v{vgo} offset:{64*i}', ('gl', i), r=(GL2, GL2 + 1024), priv=True) for i in range(4)]
    L += [f'v_mov_b32 v{vone2+i}, 0x3f803f80' for i in range(4)] + m64(mA + 10, lanemask(lambda l: l & 2))
    e_ = st.fill(L, max(tx + 50, I[('ae', 3)] + 1), cap=3); assert e_ < Q[1] + 25, e_
    dst_ = []
    def epi2(j):
        xa = vxa + 4 * j; y2 = Y2 + 4 * j; d1 = D1 + 2 * j
        ST = (lambda o: L.append(o)) if j == 3 or not cfg.get('defer', 0) else dst_.append
        L = [lambda: p.wait(vm=[('xa', j)], lg=[('gl', 3)])]
        for i in range(4): L += F(f'v_lshlrev_b32 v{f2+2*i}, 16, v{xa+i}\nv_and_b32 v{f2+2*i+1}, 0xffff0000, v{xa+i}')
        L.append(('from', (Q + [N])[j + 1] + 2))
        L += [f'v_fmac_f32 v{f2+i}, v{vg+i}, v{acc2(j,0)+i}' for i in range(8)]
        a2 = acc2(j, 0)
        L += [f'v_mul_f32 v{a2+i}, v{f2+i}, v{vc2+i}' for i in range(8)]
        L += [f'v_cvt_pk_bf16_f32 v{y2+i}, v{a2+2*i}, v{a2+2*i+1}' for i in range(4)]
        ST(op(lambda: (p.ins(f's_add_u32 {sr(s2_)}, {sr(sy)}, {WS_Y + 65536 * j}'), p.vm(f'buffer_store_dwordx4 {vr(y2,4)}, v{vl16}, {sr(sWS,4)}, {sr(s2_)} offen sc1', ('ys', j, 0))), 'sW'))
        L += [f'v_cvt_pk_bf16_f32 v{xa+i}, v{f2+2*i}, v{f2+2*i+1}' for i in range(4)] + [('gap', 1), mf_(d1, vone2, xa), mf_(d2, xa, xa), ('gap', 3)]
        L += F(f'v_cndmask_b32 v{d2}, v{d2}, v{d2+1}, {sr(mA+8,2)}\nv_cndmask_b32 v{d2+2}, v{d2+2}, v{d2+3}, {sr(mA+8,2)}\nv_cndmask_b32 v{d1+1}, v{d2}, v{d2+2}, {sr(mA+10,2)}')
        if j & 1: L.append(lambda: p.vm(f'buffer_store_dwordx4 {vr(d1-2,4)}, v{vst}, {sr(sWS,4)}, {sr(sy+1)} offen offset:{256*(j//2)} sc1', 'y2'))
        L.append(lambda: p.lg(f'ds_write_b128 v{vst+2}, {vr(xa,4)} offset:{4096*j}', None, w=(XST + 4096 * j, XST + 4096 * j + 4096)))
        return L
    for j in range(3):
        e_ = st.fill(epi2(j), max(e_ + 1, Q[j + 1] - 12), cap=cfg.get('ecap', (3, 5, 3))[j]); assert e_ < (Q + [N])[j + 2] - (10 if j == 2 else 0), (j, e_)
    d0, dstp = cfg.get('dst', (-8, 4))
    for i, o in enumerate(dst_): st.at(max(Q[3] + d0 + dstp * i, e_ + 1 if i >= 2 else 0), o)
    L3 = epi2(3); st.fill(L3[:9], max(e_ + 1, N - 20))
    L5, M5 = g3_mid(k, s0, s1, ACC)
    e5 = st.fill(L5, Q[1] + cfg.get('mid', 28)); e5 = st.fill(M5, max(e5 + 1, Q[2] + cfg.get('mid2', 44))); assert e5 < N - 2
    k.NP = cfg.get('NP', 2)
    if k.NP:
        st.at(T0 + cfg.get('epub', 174) - 1, f's_sub_u32 {sr(soo)}, {sr(sy+2)}, {FL_Y - FL_E}')
        pub_at(T0 + cfg.get('epub', 174), [('ys', j, 0) for j in range(2)], soo)
    p.wait(vm=[('D', u, i) for u in first for i in range(len(W.units[u]['dmas']))], lg='all'); p.bar()
    for s, _, f in early:
        if s > -100: f()
    for i, nm in tuple(cfg.get('marks', ())) + ((1, 'g1_m1'), (P[1], 'g1_p1'), (P[2], 'g1_p2'), (P[3], 'g1_p3'), (T0, 'g2_q0'), (Q[1], 'g2_q1'), (Q[2], 'g2_q2'), (Q[3], 'g2_q3')):
        st.pre.setdefault(i, []).insert(0, f';@T {nm}')
    st.emit()
    p.T('g2_end')
    L3 = [o for o in L3[10:] if not isinstance(o, tuple)]
    run(L3[:21]); k.tail2 = lambda: run(L3[21:])
    assert p.items[-1][0] == 'vm'
    k.st = st; k.I = I
    if nxt:
        k.ypub = pub_op(k, sWS, 9, sy + 2, [('ys', j, 0) for j in range(4)] + ['y2'])
        k.st1 = st; k.vops1 = k.vops; k.bars1 = bars
        S.next = smark
        return nxt(k)
    k.end()
    return k
```

```python
from kernels import *
from eng import *
LN2C = 0.6931471805599453
WS_XC4 = 0x4000000
WSZ = 0x8000000
OOB = 0x40000000
FL_A = WS_FL + 32768
FL_X = 0xE0000
FL_M = WS_FL + 5 * 32768; FL_U = 0xD8000; FL_A2 = 0x30000; FL_E = 0x38000
WS_XA = 0x2800000
WS_ST2 = 0x600000
WS_UT3 = 0x2C00000
FL_O = WS_FL; FL_J = WS_FL + 2 * 32768; FL_Y = WS_FL + 3 * 32768; FL_H = WS_FL + 4 * 32768
WS_KV = 0x500000; WS_MP8 = 0x20000; WS_TOK = WS_FL + 6 * 32768
XST = 132 * 1024
QKV = 128 * 1024; JT = 157 * 1024; GL2 = 158 * 1024; LB = 148 * 1024; LS = 156 * 1024
F = lambda txt: txt.split('\n')
rb = lambda r: F(f'v_cvt_pk_bf16_f32 {vr(r)}, {vr(r)}, {vr(r)}\nv_lshlrev_b32 {vr(r)}, 16, {vr(r)}')

class K4(K):
    def __init__(self, name):
        K.__init__(self, name, 256, 256, 256)
        it = self.p.items
        self.p = Prog2(); self.p.items = it
        self.S = Regs('s', 4, 94)
        self.lds = 160 * 1024
        self.nlab = 0
    def lab(self, s):
        self.nlab += 1
        return f'{s}{self.nlab}_{self.name}'
    def text(self):
        t = self.p.text()
        ev, errs, ep = self.p.events()
        errs += check_lds([ev]) + self.p.check_chains()
        for e in errs[:20]: print('VERIFY:', e)
        assert not errs, f'{len(errs)} verifier errors'
        rep = []
        out, n = fix_hazards(t.split('\n'), rep)
        self.nops = rep
        return '.p2align 8\n' + '\n'.join(out).replace(' ; M\n', '\n').replace(' ; cond\n', '\n')
    def desc(self, minv=0):
        return kdesc(self.name, 512, 102, 256)

def poll_gen(k, ld, tst, tag, scnt, wg, bar=True):
    p = k.p; sw = k.common['sw']
    def issue():
        if not wg: return p.vm(ld, tag)
        soff = ld.split(', ')[3].split(' ')[0]
        p.ins(f's_lshl_b32 {sr(scnt)}, {sr(sw)}, 28' + (f'\ns_add_u32 {sr(scnt)}, {sr(scnt)}, {soff}' if soff != '0' else ''))
        p.vm(ld.replace(f', {soff} offen', f', {sr(scnt)} offen'), tag)
    def check():
        L = k.lab('PL')
        p.wait(vm=[tag])
        if wg: p.ins(f's_cmp_lg_u32 {sr(sw)}, 0\ns_cbranch_scc1 {L}x')
        p.ins(f'{tst}\ns_cbranch_vccz {L}x\ns_mov_b32 {sr(scnt)}, 60000')
        p.label(L)
        p.ins(f'{ld} ; cond\ns_sub_u32 {sr(scnt)}, {sr(scnt)}, 1\ns_cmp_eq_u32 {sr(scnt)}, 0\ns_waitcnt vmcnt(0) ; cond\ns_cbranch_scc1 {L}x\n{tst}\ns_cbranch_vccnz {L}')
        p.label(L + 'x')
        if wg and bar: p.bar()
    return op(issue, 'ssm' if wg else 'm'), op(check, 7)

def poll_ops(k, sWS, vp, soff, tag, scnt, cmp=None, wg=True, va=None, bar=True):
    ld = f'buffer_load_dword {vr(vp)}, {vr(va or vp+1)}, {sr(sWS,4)}, {sr(soff) if soff is not None else 0} offen sc1'
    return poll_gen(k, ld, cmp or f'v_cmp_ne_u32 vcc, {sr(k.tok)}, {vr(vp)}', tag, scnt, wg, bar)

def poll4_ops(k, sWS, vd, va, tag, scnt, bar=True):
    ld = f'buffer_load_dwordx4 {vr(vd,4)}, {vr(va)}, {sr(sWS,4)}, 0 offen sc1'
    tst = f'v_bitop3_b32 v{vd}, v{vd}, v{vd+1}, {sr(k.tok)} bitop3:0x7e\nv_bitop3_b32 v{vd+2}, v{vd+2}, v{vd+3}, {sr(k.tok)} bitop3:0x7e\nv_or_b32 v{vd}, v{vd}, v{vd+2}\nv_cmp_ne_u32 vcc, 0, v{vd}'
    return poll_gen(k, ld, tst, tag, scnt, True, bar)

def pub_op(k, sWS, vt, soff, tags, imm=0, add=0, wg=True):
    p = k.p
    def f():
        p.ins(f'v_add_u32 {vr(vt)}, {sr(k.tok)}, v0' + (f'\nv_add_u32 {vr(vt)}, {add}, {vr(vt)}' if add else ''))
        if tags: p.wait(vm=tags)
        if tags and wg: p.bar()
        p.ins('s_mov_b64 exec, 1')
        p.vm(f'buffer_store_dword {vr(vt)}, v0, {sr(sWS,4)}, {sr(soff)} offen offset:{imm} sc1')
        p.ins('s_mov_b64 exec, -1')
    return op(f, 6)

def code_op(k, vt, vl16, sp, first=None):
    p = k.p
    L = k.lab('CT')
    p.ins(f's_getpc_b64 {sr(sp,2)}')
    p.label(L)
    p.ins(f's_min_u32 {sr(sp+2)}, {sr(sp+3)}, code_end-{first or L}' + (f'\ns_add_u32 {sr(sp+2)}, {sr(sp+2)}, {first}-{L}' if first else ''))
    p.ins(f's_add_u32 {sr(sp)}, {sr(sp)}, {sr(sp+2)}\ns_addc_u32 {sr(sp+1)}, {sr(sp+1)}, 0')
    p.ins(f'v_and_b32 v{vt}, 0x70, v{vl16}\nv_lshlrev_b32 v{vt}, 3, v{vt}')
    p.vm(f'global_load_dword a253, v{vt}, {sr(sp,2)}', 'dummy')

class WS_:
    def __init__(self, st, pool):
        self.st, self.p = st, st.p
        self.pool = {r: -10**6 for r in pool}; self.until = {}
        self.units = {}; self.nf = 0; self.early = []; self.groups = []
    def unit(self, u, lo, hi, dmas, e=0, wt=1):
        self.units[u] = dict(lo=lo, hi=hi, dmas=dmas, fr=None, lr=None, e=e, wt=wt)
    def rd(self, us, s, lr, text, tag, rng):
        f = lambda: self.p.lg(text, tag, r=rng)
        if s < 0: self.early.append((s, len(self.early), f))
        else: self.st.at(s, f)
        assert min(self.units[u]['lo'] for u in us) <= rng[0] and rng[1] <= max(self.units[u]['hi'] for u in us), (us, rng)
        for u in us:
            U = self.units[u]
            U['fr'] = s if U['fr'] is None else min(U['fr'], s)
            U['lr'] = lr if U['lr'] is None else max(U['lr'], lr)
    def group(self, frags, mf, LA, wait=True, vm=(), lg=(), kind='tr'):
        st, p = self.st, self.p
        s0 = st.n(); ids = [self.nf + i for i in range(len(frags))]; self.nf += len(frags)
        n = len(mf); per = 2 if kind == 'tr' else 1; nr = per * len(frags)
        while True:
            reg = []; pool = dict(self.pool)
            for i in range(len(frags)):
                s = s0 - LA + per * i * n // nr
                lu = s0 + max(x for x, m in enumerate(mf) if ('f', i) in m[1:])
                c = [r for r in pool if pool[r] <= s and lu < self.until.get(r, 10**9)]
                if not c: break
                r = min(c, key=lambda r: pool[r]); pool[r] = lu; reg.append(r)
            if len(reg) == len(frags): break
            LA -= 1; assert LA > (nr - 1) * n // nr + 3, ('fragment pool too small', s0)
        self.pool = pool
        for c, a, b in mf:
            st.mfma(c, reg[a[1]] if isinstance(a, tuple) else a, reg[b[1]] if isinstance(b, tuple) else b)
        for i, fr in enumerate(frags):
            u, ar, base, off = fr[:4]
            for h in range(per):
                s = s0 - LA + (per * i + h) * n // nr
                o = off + 2048 * h
                assert 0 <= o < 65536
                if kind == 'tr': self.rd([u], s, s0, f'ds_read_b64_tr_b16 {vr(reg[i] + 2 * h,2)}, {vr(ar)} offset:{o}', ('W', ids[i], h), (base + o, base + o + 2048))
                else: self.rd([u], s, s0, f'ds_read_b128 {vr(reg[i],4)}, {vr(ar)} offset:{o}', ('W', ids[i], 1), (base + o, base + o + (fr[4] if len(fr) > 4 else 1024)))
        self.groups.append(dict(s0=s0, ids=ids, wait=wait, vm=list(vm), lg=list(lg)))
        return s0
    def finish_waits(self):
        g = self.groups; i = 0
        while i < len(g):
            j = i + 1
            while j < len(g) and not g[j]['wait']: j += 1
            lg = [('W', f, 1) for x in g[i:j] for f in x['ids']] + [t for x in g[i:j] for t in x['lg']]; vm = [t for x in g[i:j] for t in x['vm']]
            self.st.before(g[i]['s0'], lambda lg=lg, vm=vm: self.p.wait(vm=vm or None, lg=lg))
            i = j
    def dma_ops(self, bars, pre_done=()):
        st, p = self.st, self.p
        ops = []; bw = {b: [] for b in bars}
        order = sorted(self.units, key=lambda u: self.units[u]['fr'])
        for n_, u in enumerate(order):
            U = self.units[u]
            tags = [('D', u, i) for i in range(len(U['dmas']))]
            if U['fr'] < 0 or U.get('vis'): continue
            if U['fr'] >= st.n(): dl = U['fr']
            else:
                dl = max(b for b in bars if b < U['fr'])
                bw[dl] += tags
            if u in pre_done: continue
            e = U['e']
            for v in order[:n_]:
                X = self.units[v]
                if X['lo'] < U['hi'] and U['lo'] < X['hi'] and X['lr'] >= 0:
                    e = max(e, min([b for b in bars if b >= X['lr']] + [st.n()]) + 1)
            for i, (pre, main) in enumerate(U['dmas']):
                ops.append(dict(e=e, dl=dl, pre=pre, main=main, id=(u, i), wt=U['wt']))
        for U in self.units.values():
            if U.get('force'): bw[min(b for b in bars if b >= U['lr'])].append(('lg', U['force']))
        self.bw = bw
        for b in bars:
            def f(b=b):
                x = self.bw[b]
                lgs = [t[1] for t in x if t[0] == 'lg']; vms = [t for t in x if t[0] != 'lg']
                if x: p.wait(vm=vms or None, lg=lgs or None)
                p.bar()
            st.last(b, op(f, 2))
        return ops
    def place_bars(self, bars, pre_done, target):
        bars = set(bars); n = self.st.n()
        order = sorted(self.units, key=lambda u: self.units[u]['fr'])
        for n_, u in enumerate(order):
            U = self.units[u]
            if U['fr'] < 0 or U.get('vis') or U['fr'] >= n: continue
            pl = max([X['lr'] for X in (self.units[v] for v in order[:n_]) if X['lo'] < U['hi'] and U['lo'] < X['hi']] + [-1])
            def win(B):
                e = -20 if u in pre_done else max(U['e'], min([b for b in B if b >= pl] + [10**6]) + 1 if pl >= 0 else 0)
                return max([b for b in B if b < U['fr']] + [-10**6]) - e
            for _ in range(2):
                if win(bars) >= target(U['fr']): break
                c = [x for x in (U['fr'] - 1, pl) if x >= 0 and x not in bars]
                if not c: break
                x = max(c, key=lambda x: win(bars | {x}))
                if win(bars | {x}) >= win(bars) + 8 or win(bars) < 16: bars.add(x)
        return sorted(bars)
    def emit_early(self):
        for _, _, f in sorted(self.early, key=lambda x: x[:2]): f()

def zig(n, nm, flip):
    out = []
    for mi in range(nm):
        m = nm - 1 - mi if flip else mi
        out += [(m, j) for j in (range(n) if mi % 2 == 0 else range(n - 1, -1, -1))]
    return out

def g3_early(k, s0, s1, sv, T, oob):
    p = k.p; C = k.common; sw = C['sw']; vl = 0; vdA, vdB = 16, 11
    L = F(f'v_lshrrev_b32 v{T}, 3, v{vl}\nv_bfe_u32 v{T+1}, v{T}, 1, 2\nv_bfe_u32 v{T+2}, v{vl}, 1, 2\nv_xor_b32 v{T+1}, v{T+1}, v{T+2}')
    L += F(f's_lshl_b32 {sr(s0)}, {sr(sw)}, 3\nv_add_u32 v{T}, {sr(s0)}, v{T}\nv_mul_u32_u24 v{T}, 7168, v{T}\nv_and_b32 v{T+2}, 1, v{vl}\nv_lshl_add_u32 v{T}, v{T+2}, 4, v{T}')
    L += F(f's_and_b32 {sr(s0)}, s2, 7\ns_mul_i32 {sr(s0)}, {sr(s0)}, 896\nv_add_u32 v{T}, {sr(s0)}, v{T}\nv_lshlrev_b32 v{T+2}, 5, v{T+1}')
    L += F(f's_and_b32 {sr(s1)}, s2, 24\ns_lshl_b32 {sr(s0)}, {sr(s1)}, 5\nv_add3_u32 v{vdA}, v{T}, v{T+2}, {sr(s0)}')
    L += F(f's_lshr_b32 {sr(s0)}, 0x0b070602, {sr(s1)}\ns_and_b32 {sr(s0)}, {sr(s0)}, 15\ns_lshl_b32 {sr(s0)}, {sr(s0)}, 6\nv_add_u32 v{T+2}, {sr(s0)}, v{T+2}')
    L += F(f's_lshr_b32 {sr(s0)}, 0x15140706, {sr(s1)}\ns_and_b32 {sr(s0)}, {sr(s0)}, 31\ns_lshl_b32 {sr(s0)}, {sr(s0)}, 5\nv_mov_b32 v{T+3}, {sr(s0)}')
    L += [f'v_cmp_gt_u32 vcc, 2, v{T+1}\nv_cndmask_b32 v{T+2}, v{T+3}, v{T+2}, vcc', f'v_add_u32 v{vdB}, v{T}, v{T+2}']
    if oob: L += F(f'v_add_u32 v{T+1}, 1, v{T+1}\nv_lshrrev_b32 v{T+1}, 2, v{T+1}\nv_lshl_add_u32 v{vdB}, v{T+1}, 30, v{vdB}')
    def dmas(ts, g):
        u = (3, ts, g); lo = 65536 * g + k.perm[g][ts] * 16384; out = []
        for jq in range(2):
            for mat in range(2):
                dst = lo + mat * 8192 + jq * 4096
                pre = lambda dst=dst, jq=jq: p.ins(f's_mov_b32 {sr(sv)}, {(2 * ts + jq) * 32 * 7168}\ns_add_u32 m0, {sr(C["sWL"])}, {dst}')
                main = lambda dst=dst, mat=mat, i=2 * jq + mat: p.vm(f'buffer_load_dwordx4 v{(vdA, vdB)[g]}, {sr((C["sWg"], C["sWu"])[mat],4)}, {sr(sv)} offen lds', ('D', u, i), w=(dst, dst + 4096))
                out.append((op(pre, 2), main))
        return u, lo, lo + 16384, out
    return L, dmas

def g3_mid(k, s0, s1, T):
    p = k.p; C = k.common; sw, sWL, sWg, sWu, sAb = C['sw'], C['sWL'], C['sWg'], C['sWu'], C['sAb']; sJ, sMk = C['dead']; vl = 0; wa = 2; vtb = k.vtb
    L = F(f'v_lshrrev_b32 v{T+1}, 2, v{vl}\nv_bfe_u32 v{T}, v{T+1}, 1, 2\nv_lshlrev_b32 v{T}, 5, v{T}\nv_lshl_add_u32 v{T}, v{T+1}, 7, v{T}\nv_and_b32 v{T+1}, 3, v{vl}\nv_lshl_add_u32 v{wa}, v{T+1}, 3, v{T}') + [f'v_xor_b32 v{wa+t}, {t<<5}, v{wa}' for t in range(1, 4)] + [f'v_add_u32 v{wa+4+t}, 65536, v{wa+t}' for t in range(3)]
    L += F(f's_lshr_b32 {sr(s0)}, s2, 5\ns_lshl_b32 {sr(s0)}, {sr(s0)}, 19\ns_lshr_b32 {sr(s1)}, {sr(sw)}, 1\ns_lshl_b32 {sr(s1)}, {sr(s1)}, 18\ns_add_u32 {sr(s0)}, {sr(s0)}, {sr(s1)}\ns_and_b32 {sr(s1)}, {sr(sw)}, 1\ns_lshl_b32 {sr(s1)}, {sr(s1)}, 15\ns_add_u32 {sr(s0)}, {sr(s0)}, {sr(s1)}\ns_add_u32 {sr(sAb)}, {sr(s0)}, {WS_Y}')
    L += [f's_bitcmp1_b32 s2, 3\ns_cselect_b64 {sr(sJ,2)}, {sr(sWu,2)}, {sr(sWg,2)}', f's_mov_b32 {sr(sJ+2)}, {DM * FF * 2}']
    for r_ in range(4):
        m = lanemask(lambda l: ((l & 7) >> 1) == r_); L += F(f's_mov_b32 {sr(sMk+2*r_)}, 0x{m & 0xffffffff:08x}\ns_mov_b32 {sr(sMk+2*r_+1)}, 0x{m >> 32:08x}')
    M_ = [lambda: p.wait(vm=[('tb', q) for q in range(NPART)])]
    for i in range(2): M_ += F(f'v_add_f32 v{vtb+i}, v{vtb+i}, v{vtb+2+i}\nv_add_f32 v{vtb+4+i}, v{vtb+4+i}, v{vtb+6+i}\nv_add_f32 v{vtb+i}, v{vtb+i}, v{vtb+4+i}')
    M_ += F(f'v_lshrrev_b32 v{T}, 5, v{vl}\nv_xor_b32 v{T+1}, 1, v{T}\nv_cvt_f32_u32 v{T+1}, v{T+1}')
    for rep in range(2):
        M_ += F(f'v_cvt_pk_bf16_f32 v{vtb+2}, v{vtb}, v{vtb+1}\nv_lshlrev_b32 v{vtb}, 16, v{vtb+2}\nv_and_b32 v{vtb+1}, 0xffff0000, v{vtb+2}')
        if rep == 0: M_ += F(f'v_add_f32 v{vtb}, v{vtb}, v{T+1}\nv_add_f32 v{vtb+1}, v{vtb+1}, v{T+1}')
    M_ += F(f'v_lshrrev_b32 v{vtb+3}, 16, v{vtb+2}\nv_and_b32 v{vtb+2}, 0xffff, v{vtb+2}\ns_add_u32 {sr(s0)}, {sr(sWL)}, {LB}\nv_lshlrev_b32 v{T}, 8, v{T}\nv_lshl_add_u32 v{T}, v{vl}, 3, v{T}\nv_add_u32 v{T}, {sr(s0)}, v{T}')
    M_ += [lambda: p.lg(f'ds_write_b64 v{T}, {vr(vtb+2,2)}', None, w=(LB, LB + 4096), priv=True), lambda: p.lg(f'ds_write_b64 v{T}, {vr(vtb,2)} offset:256', None, w=(LB, LB + 4096), priv=True)]
    return L, M_

def k_g34(cfg, k):
    p, S = k.p, k.S; MX[0] = cfg.get('mx', 0)
    sWS, sWg, sWu, sWd, sOut, sw, sWL = (k.common[x] for x in ('sWS', 'sWg', 'sWu', 'sWd', 'sOut', 'sw', 'sWL'))
    sm = S.alloc('mt'); sq = S.alloc('q'); sx = S.alloc('xcd'); s0 = S.alloc('t0'); s1 = S.alloc('t1'); s2_ = S.alloc('t2')
    sLead = S.alloc('lead'); sAb = k.common['sAb']; sO = S.alloc('so', 3); sv = S.alloc('vm', 2); sst = S.alloc('st')
    NC = 8; sCW = S.alloc('cw', NC); sCA = S.alloc('ca', NC); sfl = S.alloc('fl', 4)
    vl16, wa, vdA, vdB, vub, vt, vs, ut, ACC = 1, 2, 10, 11, 12, 13, 16, 24, 32
    POS = {6: 0, 4: 1, 5: 2, 0: 3, 1: 4, 2: 5, 3: 6}
    accr = lambda s_, g, m: ACC + 32 * POS[s_] + 16 * g + 4 * m
    DAS = 5; AB = A0; WB = A0 + 160; R = 6
    UT = 128 * 1024; GL = UT + 2048; XL = XST
    lf = 'sc1'
    vl = 0
    assert MBS[0] == 32768
    st = Stream(p); W = WS_(st, [WB + 4 * i for i in range(R)])
    n3 = 16; FS = 4
    done3 = set()
    def lead3(ts):
        if ts < 4 or cfg.get('nolead3'): return ts
        return ts + 4 if ts + 4 < n3 else 4 + ts % 4
    def chunk3(ts):
        if ts in done3: return
        done3.add(ts)
        cw, ca = sCW + ts % NC, sCA + ts % NC; lc = lead3(ts)
        if lc == ts: p.ins(f's_mov_b32 {sr(cw)}, {ts * 64 * 7168}\ns_add_u32 {sr(ca)}, {sr(sAb)}, {ts * 2048}')
        else: p.ins(f's_cmp_eq_u32 {sr(sLead)}, {ts % 4}\ns_cselect_b32 {sr(ca)}, {lc}, {ts}\ns_mul_i32 {sr(cw)}, {sr(ca)}, {64 * 7168}\ns_lshl_b32 {sr(ca)}, {sr(ca)}, 11\ns_add_u32 {sr(ca)}, {sr(ca)}, {sr(sAb)}')
    def dma(u, i, chunk, ts, cw, srd, vo, dst, goff):
        def pre():
            chunk(ts)
            p.ins(f's_add_u32 m0, {sr(sWL)}, {dst}')
            if goff: p.ins(f's_add_u32 {sr(sv)}, {sr(cw)}, {goff}')
        main = lambda: p.vm(f'buffer_load_dwordx4 v{vo}, {sr(srd,4)}, {sr(sv if goff else cw)} offen lds', ('D', u, i), w=(dst, dst + 4096))
        return op(pre, 2 if goff else 1), main
    nl = cfg.get('nolate', 1)
    sw3 = lambda g, i: 65536 * g + k.perm[g][i % 4] * 16384
    lo3 = lambda ts, g: sw3(1, 0) if nl and (ts, g) == (n3 - 1, 0) else sw3(g, ts)
    for ts in range(n3):
        for g, (vo, base) in enumerate(((vdA, 0), (vdB, 65536))):
            u = (3, ts, g); lo = lo3(ts, g)
            W.unit(u, lo, lo + 16384, [dma(u, 2 * jq + mat, chunk3, ts, sCW + ts % NC, (sWg, sWu)[mat], vo, lo + mat * 8192 + jq * 4096, jq * 32 * 7168) for jq in range(2) for mat in range(2)])
    bl = cfg.get('bl', 0)
    ab3 = lambda ts, j, m: (A0 + 188 if nl and ts == n3 - 1 else A0 + 220 if bl and ts == n3 - 2 else AB + (ts % DAS) * 32) + (j * 4 + m) * 4
    seenA = set(); firstA = {}; lastA = {}; firstM = {}; NP = k.NP
    LA = cfg.get('LA', 18)
    def grp(ph, ts, u, ar, base, off, acc, ab, ms=(0, 1, 2, 3), la=None):
        fr = [(u, ar, base, off + j * 4096) for j in range(2)]
        mf = [(acc(ms[m]), ('f', j), ab(ts, j, ms[m])) for m, j in zig(2, len(ms), len(W.groups) % 2)]
        vm = [('A', ph, ts, j, m) for j in range(2) for m in ms if (ph, ts, m) not in seenA]
        seenA.update((ph, ts, m) for m in ms)
        s = W.group(fr, mf, la or LA, vm=vm, wait=len(ms) == 4 or len(W.groups) % 2 == 0 or not cfg.get('w2', 1))
        for m in ms: firstM.setdefault((ph, ts, m), s)
        firstA.setdefault((ph, ts), s); lastA[(ph, ts)] = s + len(mf) - 1
        return s
    def grp3(ts, s_, mat, ms=(0, 1, 2, 3), la=None):
        g = 0 if s_ < 4 else 1
        hi = lo3(ts, g) // 65536
        return grp(3, ts, (3, ts, g), wa + 4 * hi + s_ % 4, 65536 * hi, lo3(ts, g) % 65536 + mat * 8192, lambda m: accr(s_, mat, m), ab3, ms, la)
    visit = {}
    def part(ts, slots):
        for s_ in slots:
            for mat in range(2): visit[(ts, s_, mat)] = grp3(ts, s_, mat)
    for r_ in range(6):
        if NP: W.pool[A0 + 188 + 4 * r_] = -10**6; W.until[A0 + 188 + 4 * r_] = 112 * NP + 24
    for ms in ((0, 1), (2, 3)):
        for ts in range(NP):
            for s_ in (4, 5, 6, 0, 1, 2, 3):
                for mat in range(2): grp3(ts, s_, mat, ms, cfg.get('LAh', 16))
    B_, A_ = (4, 5, 6), (0, 1, 2, 3); zb0 = None
    for ts in range(NP, n3 - FS - 2 - 2 * bl): part(ts, B_ + A_)
    if bl: part(8, B_); part(9, B_); zb0 = st.n(); part(8, A_); part(10, B_); part(11, B_); zb = st.n(); part(9, A_)
    elif nl: part(n3 - FS - 2, B_); part(n3 - FS - 1, B_); zb = st.n(); part(n3 - FS - 2, A_)
    else: part(n3 - FS - 2, B_ + A_); part(n3 - FS - 1, B_)
    Ss = list(range(n3 - FS, n3))
    done = {}
    def pair(s_, sts):
        for ts in sts:
            for mat in range(2): e = grp3(ts, s_, mat)
        done[s_] = e + 7
    def late(a_, b_):
        if nl: pair(a_, Ss); pair(b_, Ss)
        else: pair(a_, Ss[:-1]); pair(b_, Ss[:-1]); pair(a_, Ss[-1:]); pair(b_, Ss[-1:])
    if not cfg.get('mvA', 1): part(n3 - FS - 1, (0, 1, 2, 3))
    z3 = st.n()
    late(6, 4)
    if bl: part(10, A_)
    pair(5, Ss)
    if cfg.get('mvA', 1):
        part(n3 - FS - 1, (0, 1, 2, 3)); late(0, 1)
    else:
        pair(0, Ss); pair(1, Ss)
    pair(2, Ss); pair(3, Ss)
    z4 = st.n()
    n4 = 14; FS4 = cfg.get('FS4', 4); NE = 6
    acc4 = lambda t, m: 64 + (t * 4 + m) * 4
    vd4, vp, vpx, vro, vxa, vgo, vl4, vsel, vg = 32, 36, 38, 40, 42, 46, 47, 52, 240
    sA4 = S.alloc('a4'); sro = S.alloc('ro'); sxo = S.alloc('xo', 2); sg4 = S.alloc('g4'); sst4 = S.alloc('st4'); sxl = S.alloc('xl'); sL4 = S.alloc('l4'); spf = S.alloc('pf')
    E = [7 * g + c for g in range(2) for c in (1, 3, 5)]; Lt = [7 * g + c for g in range(2) for c in (0, 2, 4, 6)]
    def lead4(ts):
        lst, i, P_ = (E, ts, 3) if ts < NE else (Lt, ts - NE, 4)
        if cfg.get('nolead4'): return lst[i], lst[i], 0
        return lst[i], lst[(i + P_) % len(lst)], i % P_
    done4 = set()
    def chunk4(ts):
        if ts in done4: return
        done4.add(ts)
        cw, ca = sCW + ts % NC, sCA + ts % NC; nat, lc, ld = lead4(ts)
        if nat == lc: p.ins(f's_mov_b32 {sr(cw)}, {nat << 17}\ns_add_u32 {sr(ca)}, {sr(sA4)}, {nat << 11}')
        else: p.ins(f's_cmp_eq_u32 {sr(sL4)}, {ld}\ns_cselect_b32 {sr(ca)}, {lc}, {nat}\ns_lshl_b32 {sr(cw)}, {sr(ca)}, 17\ns_lshl_b32 {sr(ca)}, {sr(ca)}, 11\ns_add_u32 {sr(ca)}, {sr(ca)}, {sr(sA4)}')
    s4t = [(1, 1), (1, 2), (1, 3), (0, 3), (0, 0), (0, 1), (0, 2), (1, 0)] if nl else [(1, i) for i in range(4)] + [(0, i) for i in range(4)]
    slot4 = lambda ts: sw3(*s4t[ts % 8])
    for ts in range(n4):
        for g in range(2):
            u = (4, ts, g); lo = slot4(ts) + g * 8192
            W.unit(u, lo, lo + 8192, [dma(u, jq, chunk4, ts, sCW + ts % NC, sWd, vd4 + g, lo + jq * 4096, jq * 32 * 2048) for jq in range(2)])
    bufs = ([] if bl else [(A0 + 220, 0)]) + [(ab3(ts, 0, 0), lastA[(3, ts)] + 1) for ts in range(n3 - DAS - 1 - bl, n3)] if nl else [(A0 + 188, 0), (A0 + 220, 0)] + [(AB + 32 * (ts % DAS), lastA[(3, ts)] + 1) for ts in range(n3 - DAS, n3)]
    NB = len(bufs)
    ab4 = lambda ts, j, m: bufs[ts % NB][0] + (j * 4 + m) * 4
    def grp4(ts, t, ms=(0, 1, 2, 3), la=None):
        g = t // 4; base = slot4(ts) // 65536 * 65536
        return grp(4, ts, (4, ts, g), wa + (4 if base else 0) + t % 4, base, slot4(ts) - base + g * 8192, lambda m: acc4(t, m), ab4, ms, la)
    for r_ in range(64, 192, 4): st.touched.discard(r_)
    for ts in range(n4 - FS4):
        for t in range(8): grp4(ts, t)
    zf = st.n()
    d4 = {}
    for ts in range(n4 - FS4, n4):
        for t in range(4): d4[(0, t)] = grp4(ts, t) + 7
    for r_ in range(16, 32, 4): W.pool[r_] = zf
    for ps, ms in ((1, (2, 3)), (2, (0, 1))):
        for ts in range(n4 - FS4, n4):
            for t in range(4, 8): d4[(ps, t)] = grp4(ts, t, ms, cfg.get('LAh', 16)) + 3
    N = st.n()
    W.finish_waits()
    bars = set()
    fr_ = lambda *u: W.units[u]['fr'] - 1
    if nl:
        for ts in range(1, n3 - FS - 1):
            if not (bl and ts == 9): bars.add(fr_(3, ts, 1))
        if bl: bars |= {zb0 - 8, fr_(3, 10, 0), lastA[(3, 10)] - 7}
        bars |= {zb - 8, fr_(3, n3 - FS, 1), fr_(3, n3 - 2, 1), fr_(3, n3 - FS - 1, 0), done[5] - 7, fr_(3, n3 - 1, 0), z4 - 7}
    else:
        for ts in range(1, n3 - FS): bars.add(fr_(3, ts, 1))
        bars |= {z3, fr_(3, n3 - 1, 1), fr_(3, n3 - 1, 0), done[5] + 1, z4 + 1, lastA[(3, n3 - FS - 1)] + 1}
    for ts in range(NP - 1): bars.add(56 * (NP + ts + 1) - 4)
    for ts in range(0, n4 - FS4, cfg.get('BS4', 2)): bars.add(fr_(4, ts, 0))
    for u in cfg.get('fb4', ((n4 - FS4, 0), (n4 - FS4 + 2, 0), (n4 - FS4, 1))): bars.add(fr_(4, *u))
    bars = sorted(bars)
    k.bars = bars
    extra = []
    def X(e, dl, main, pre=None): extra.append(dict(e=e, dl=dl, main=main, pre=pre, id='x'))
    PD = cfg.get('pd', 40)
    T = ut
    set0 = F(f's_lshr_b32 {sr(s0)}, s2, 5\ns_lshl_b32 {sr(s0)}, {sr(s0)}, 12\ns_add_u32 {sr(sfl+2)}, {sr(s0)}, {FL_Y}\nv_and_b32 v{vt+2}, 31, v{vl}\nv_lshlrev_b32 v{vt+2}, 7, v{vt+2}')
    set1 = F(f's_and_b32 {sr(sx)}, s2, 7\ns_bfe_u32 {sr(sq)}, s2, 0x20003\ns_lshr_b32 {sr(sm)}, s2, 5\ns_add_u32 {sr(sLead)}, {sr(sq)}, {sr(sm)}\ns_and_b32 {sr(sLead)}, {sr(sLead)}, 3\ns_lshl_b32 {sr(s0)}, {sr(sm)}, 1') + F(f's_lshr_b32 {sr(s1)}, {sr(sw)}, 1\ns_add_u32 {sr(s0)}, {sr(s0)}, {sr(s1)}\ns_lshl_b32 {sr(sst)}, {sr(s0)}, 3\ns_and_b32 {sr(s2_)}, {sr(sw)}, 1\ns_add_u32 {sr(sst)}, {sr(sst)}, {sr(s2_)}') + F(f's_lshl_b32 {sr(sfl)}, s2, 7\ns_lshl_b32 {sr(s0)}, {sr(sw)}, 28\ns_add_u32 {sr(sfl)}, {sr(sfl)}, {sr(s0)}\ns_add_u32 {sr(sfl)}, {sr(sfl)}, {FL_U}\ns_lshl_b32 {sr(s0)}, s2, 2\ns_add_u32 {sr(s0)}, {sr(s0)}, {sr(sw)}\ns_lshl_b32 {sr(s0)}, {sr(s0)}, 7\ns_add_u32 {sr(sfl+1)}, {sr(s0)}, {FL_X}')
    set1 += F(f's_add_u32 {sr(s0)}, {sr(sWL)}, {LB}') + F(f'v_bfe_u32 v{T}, v{vl}, 3, 1\nv_lshlrev_b32 v{T}, 9, v{T}\nv_and_b32 v{T+1}, 1, v{vl}\nv_lshl_add_u32 v{T}, v{T+1}, 8, v{T}\nv_lshrrev_b32 v{T+1}, 4, v{vl}\nv_lshl_add_u32 v{T}, v{T+1}, 6, v{T}\nv_add_u32 v{vt+1}, {sr(s0)}, v{T}') + F(f's_bfe_u32 {sr(s0)}, s2, 0x20004\ns_lshl_b32 {sr(s0)}, {sr(s0)}, 8\nv_and_b32 v{T}, 15, v{vl}\nv_lshl_add_u32 v{T}, v{T}, 4, {sr(s0)}') + [f'v_cmp_gt_u32 vcc, 896, v{T}\nv_mov_b32 v{T+2}, {OOB}\nv_mul_u32_u24 v{T+1}, {16 * 7168}, v{T+1}\nv_cndmask_b32 v{T}, v{T+2}, v{T}, vcc'] + F(f's_lshr_b32 {sr(s0)}, s2, 6\ns_lshl_b32 {sr(s0)}, {sr(s0)}, 2\ns_add_u32 {sr(s0)}, {sr(s0)}, {sr(sw)}\ns_mul_i32 {sr(s0)}, {sr(s0)}, {64 * 7168}\ns_mul_i32 {sr(s1)}, {sr(sx)}, 896\ns_add_u32 {sr(s0)}, {sr(s0)}, {sr(s1)}\nv_add3_u32 v{vt}, v{T}, v{T+1}, {sr(s0)}')
    setup = F(f's_lshl_b32 {sr(sO)}, {sr(sq)}, 12\ns_lshl_b32 {sr(s1)}, {sr(sq)}, 3\ns_lshr_b32 {sr(s0)}, 0x0b070602, {sr(s1)}\ns_and_b32 {sr(s0)}, {sr(s0)}, 15\ns_lshl_b32 {sr(sO+1)}, {sr(s0)}, 10')
    setup += F(f's_lshr_b32 {sr(s0)}, {sr(sq)}, 1\ns_mul_i32 {sr(s0)}, {sr(s0)}, {7 * 1024}\ns_and_b32 {sr(s1)}, {sr(s1)}, 8\ns_add_u32 {sr(s0)}, {sr(s0)}, {sr(s1)}\ns_add_u32 {sr(sO+2)}, {sr(s0)}, {3 * 1024}')
    setup += F(f's_mul_i32 {sr(s0)}, {sr(sx)}, {14*1024}\ns_mul_i32 {sr(s1)}, {sr(sst)}, {MBS[1]}\ns_add_u32 {sr(s0)}, {sr(s0)}, {sr(s1)}\ns_add_u32 {sr(s0)}, {sr(s0)}, {WS_ACT}') + [f's_add_u32 {sr(sO+i)}, {sr(sO+i)}, {sr(s0)}' for i in range(3)]
    setup += F(f's_lshl_b32 {sr(sst)}, {sr(sm)}, 2\ns_add_u32 {sr(sst)}, {sr(sst)}, {sr(sw)}\ns_lshl_b32 {sr(sst)}, {sr(sst)}, 14\ns_add_u32 {sr(sst)}, {sr(sst)}, {WS_ST2}\nv_and_b32 v{vub}, 0x300, v{vl16}\nv_add_u32 v{vub}, v{vub}, v{vl16}')
    SA = A0 + 188
    th = cfg.get('th', (115, 430)); tb_ = cfg.get('ub', (70, 170, 280, 385)); UD = cfg.get('ud', 95)
    def stat(hf):
        for i in range(4):
            for h in range(2):
                pre = op(lambda i=i: p.ins(f's_add_u32 {sr(sv+1)}, {sr(sst)}, {8192 * hf + 2048 * i}'), 1)
                X(th[hf], th[hf] + 70, lambda i=i, h=h: p.vm(f'buffer_load_dwordx4 {vr(SA+8*i+4*h,4)}, v{vub}, {sr(sWS,4)}, {sr(sv+1)} offen offset:{256*h} {lf}', ('st', hf, i, h)), pre)
        fl = [lambda: p.wait(vm=[('st', hf, i, h) for i in range(4) for h in range(2)])]
        for i in range(4):
            if hf == 0 and i == 0: fl += [f'v_accvgpr_read_b32 v{vs+x}, {vr(SA+x)}' for x in range(8)]
            else: fl += [f'v_accvgpr_read_b32 v{ut+x}, {vr(SA+8*i+x)}' for x in range(8)] + [f'v_add_f32 v{vs+x}, v{vs+x}, v{ut+x}' for x in range(8)]
        if hf == 0: return fl
        for sw_, n_ in ((32, 4), (16, 2)):
            fl += [('gap', 1)] + [f'v_permlane{sw_}_swap_b32 v{vs+x}, v{vs+n_+x}' for x in range(n_)] + [f'v_add_f32 v{vs+x}, v{vs+x}, v{vs+n_+x}' for x in range(n_)]
        b = vs
        fl += F(f'v_mul_f32 v{b}, {f32(1/1024)}, v{b}\nv_mul_f32 v{b+1}, {f32(1/1024)}, v{b+1}\nv_fma_f32 v{b+1}, -v{b}, v{b}, v{b+1}\nv_max_f32 v{b+1}, 0, v{b+1}') + rb(b + 1) \
              + [f'v_add_f32 v{b+1}, {f32(1e-5)}, v{b+1}'] + rb(b + 1) + [f'v_sqrt_f32 v{b+1}, v{b+1}'] + rb(b) + rb(b + 1) + [f'v_sub_f32 v{b}, 0, v{b}']
        for sw_, n_ in ((16, 2), (32, 4)):
            fl += [f'v_mov_b32 v{vs+n_+x}, v{vs+x}' for x in range(n_)] + [('gap', 1)] + [f'v_permlane{sw_}_swap_b32 v{vs+x}, v{vs+n_+x}' for x in range(n_)]
        return fl + F(f'v_lshrrev_b32 v{vub}, 8, v{vl16}\nv_lshlrev_b32 v{vub}, 4, v{vub}\nv_add_u32 v{vub}, {UT}, v{vub}')
    sJ, sMk, uc, UDR = k.common['dead'][0], k.common['dead'][1], A0 + 184, A0 + 220
    mf_ = lambda d, a_, b_, c='0': op(lambda: p.ins(f'{MFMA} {vr(d,4)}, {vr(a_,4)}, {vr(b_,4)}, {c}'), 'M')
    def burst(bi):
        for i in range(4):
            pre = op(lambda i=i: p.ins(f's_mov_b32 {sr(sv+1)}, {7168 * (4 * bi + i)}'), 1)
            X(tb_[bi], tb_[bi] + 30, lambda i=i: p.vm(f'buffer_load_dwordx4 {vr(UDR+16*(bi&1)+4*i,4)}, v{vt}, {sr(sJ,4)}, {sr(sv+1)} offen {cfg.get("ufl", "")}', ('ud', bi, i)), pre)
            extra[-1]['wt'] = cfg.get('uwt', 6) if i == 3 else 0.4
        L = [lambda: p.lg(f'ds_read_b128 {vr(ut,4)}, v{vt+1} offset:{16*bi}', ('uv', bi), r=(LB, LB + 4096), priv=True), ('gap', 6), lambda: p.wait(vm=[('ud', bi, 3)], lg=[('uv', bi)])]
        for i in range(4):
            L += [f'v_cndmask_b32 v{ut+4+r_}, 0, v{ut+i}, {sr(sMk+2*r_,2)}' for r_ in range(4)] + [('gap', 1), mf_(uc, ut + 4, UDR + 16 * (bi & 1) + 4 * i, vr(uc, 4) if bi or i else '0')]
        return L
    chains = sorted([(th[hf] + cfg.get('sd', 100), stat(hf), f's{hf}') for hf in range(2)] + [(tb_[bi] + UD, burst(bi), f'b{bi}') for bi in range(4)], key=lambda x: x[0])
    ufin = F(f's_bfe_u32 {sr(s0)}, s2, 0x20004\ns_lshl_b32 {sr(s0)}, {sr(s0)}, 9\nv_and_b32 v{vt+1}, 15, v{vl}\nv_lshl_add_u32 v{vt+1}, v{vt+1}, 5, {sr(s0)}')
    ufin += [f'v_cmp_gt_u32 vcc, {448 * 4}, v{vt+1}\nv_mov_b32 v{vt+2}, {WSZ}\nv_bfe_u32 v{vt}, v{vl}, 4, 1\nv_cndmask_b32 v{vt+1}, v{vt+2}, v{vt+1}, vcc']
    ufin += F(f'v_lshl_add_u32 v{vt+1}, v{vt}, 4, v{vt+1}\nv_lshrrev_b32 v{vt}, 5, v{vl}\nv_mul_u32_u24 v{vt}, {FF*4}, v{vt}\nv_add_u32 v{vt+1}, v{vt+1}, v{vt}')
    ufin += F(f's_lshr_b32 {sr(s0)}, s2, 6\ns_lshl_b32 {sr(s0)}, {sr(s0)}, 2\ns_add_u32 {sr(s0)}, {sr(s0)}, {sr(sw)}\ns_lshl_b32 {sr(s0)}, {sr(s0)}, 1\ns_bfe_u32 {sr(s1)}, s2, 0x10003\ns_add_u32 {sr(s0)}, {sr(s0)}, {sr(s1)}\ns_mul_i32 {sr(s0)}, {sr(s0)}, {2*FF*4}\ns_mul_i32 {sr(s1)}, {sr(sx)}, {448*4}\ns_add_u32 {sr(s0)}, {sr(s0)}, {sr(s1)}\ns_add_u32 {sr(s0)}, {sr(s0)}, {WS_UT3}')
    ufin.append(lambda: p.vm(f'buffer_store_dwordx4 {vr(uc,4)}, v{vt+1}, {sr(sWS,4)}, {sr(s0)} offen sc1', 'us'))
    ufin += F(f's_lshl_b32 {sr(s0)}, {sr(sx)}, 7\ns_add_u32 {sr(s0)}, {sr(s0)}, {FL_U}\nv_and_b32 v{vt}, 31, v{vl}\nv_min_u32 v{vt+2}, 27, v{vt}\nv_lshl_add_u32 v{vt}, v{vt}, 10, {sr(s0)}\nv_lshlrev_b32 v{vt+2}, 4, v{vt+2}')
    ufin += F(f's_lshl_b32 {sr(s0)}, {sr(sq)}, 9\nv_mov_b32 v{vt+1}, {sr(s0)}\ns_lshl_b32 {sr(s2_)}, {sr(sq)}, 3\ns_lshr_b32 {sr(s0)}, 0x0b070602, {sr(s2_)}\ns_and_b32 {sr(s0)}, {sr(s0)}, 15\ns_lshl_b32 {sr(s0)}, {sr(s0)}, 7\ns_sub_u32 {sr(s0)}, {sr(s0)}, 256\nv_mov_b32 v{ut}, {sr(s0)}')
    ufin += [f'v_cmp_gt_u32 vcc, 256, v{vt+2}\nv_cndmask_b32 v{vt+1}, v{ut}, v{vt+1}, vcc']
    ufin += F(f's_lshr_b32 {sr(s0)}, 0x15140706, {sr(s2_)}\ns_and_b32 {sr(s0)}, {sr(s0)}, 31\ns_lshl_b32 {sr(s0)}, {sr(s0)}, 6\ns_sub_u32 {sr(s0)}, {sr(s0)}, 384\nv_mov_b32 v{ut}, {sr(s0)}')
    ufin += [f'v_cmp_gt_u32 vcc, 384, v{vt+2}\nv_cndmask_b32 v{vt+1}, v{ut}, v{vt+1}, vcc']
    ufin += F(f'v_lshrrev_b32 v{ut}, 5, v{vl}\nv_mul_u32_u24 v{ut}, {4*FF*4}, v{ut}\nv_add3_u32 v{vt+1}, v{vt+1}, v{vt+2}, v{ut}\ns_mul_i32 {sr(s0)}, {sr(sw)}, {FF*4}\ns_add_u32 {sr(s0)}, {sr(s0)}, {sr(s1)}\ns_add_u32 {sr(s0)}, {sr(s0)}, {WS_UT3}\nv_add_u32 v{vt+1}, {sr(s0)}, v{vt+1}')
    ufin += F(f's_lshl_b32 {sr(s0)}, {sr(sw)}, 9\ns_add_u32 {sr(s0)}, {sr(s0)}, {UT}\nv_add_u32 v{vt+2}, {sr(s0)}, v{vt+2}')
    tu = tb_[3] + UD + cfg.get('tu', 205)
    iu, cu = poll_ops(k, sWS, 9, None, 'plu', sfl + 3, va=vt)
    st.at(tu, iu); st.at(tu + PD, ';@T ua'); st.at(tu + PD, cu); st.at(tu + PD, ';@T ub')
    for i in range(8):
        pre = op(lambda i=i: p.ins(f's_mov_b32 {sr(sv+1)}, {8 * FF * 4 * i}'), 1)
        X(tu + PD + 1, tu + PD + 45, lambda i=i: p.vm(f'buffer_load_dwordx4 {vr(UDR+4*i,4)}, v{vt+1}, {sr(sWS,4)}, {sr(sv+1)} offen {lf}', ('u', i)), pre)
        extra[-1]['wt'] = 0.5
    fl = [lambda: p.wait(vm=[('u', i) for i in range(8)])] + [f'v_accvgpr_read_b32 {vr(ut+i)}, {vr(UDR+i)}' for i in range(4)]
    for h in range(1, 8): fl += [f'v_accvgpr_read_b32 {vr(ut+4+i)}, {vr(UDR+4*h+i)}' for i in range(4)] + [f'v_add_f32 {vr(ut+i)}, {vr(ut+i)}, {vr(ut+4+i)}' for i in range(4)]
    fl += [f'v_mov_b32 v{ut+4+i}, v{ut+i}' for i in range(4)] + [f'v_permlane32_swap_b32 v{ut+i}, v{ut+4+i}' for i in range(4)] + [f'v_add_f32 v{ut+i}, v{ut+i}, v{ut+4+i}' for i in range(4)]
    fl += [f's_cmp_eq_u32 {sr(sw)}, 1\ns_cselect_b32 {sr(s2_)}, {f32(-LOG2E)}, 1.0'] + [f'v_mul_f32 v{ut+i}, {sr(s2_)}, v{ut+i}' for i in range(4)]
    fl.append(lambda: p.lg(f'ds_write_b128 v{vt+2}, {vr(ut,4)}', 'utw', w=(UT, UT + 2048)))
    utb = tu + PD + cfg.get('auxd', 65) + 62
    bars = sorted(set(bars) | {utb}); k.bars = bars
    sb, sn, skq = sm, sq, sx
    T = 48; l_ = vl
    su4s = F(f's_and_b32 {sr(sb)}, s2, 4\ns_lshr_b32 {sr(s0)}, s2, 6\ns_add_u32 {sr(sb)}, {sr(sb)}, {sr(s0)}\ns_bfe_u32 {sr(sn)}, s2, 0x30003\ns_and_b32 {sr(skq)}, s2, 3')
    su4s += F(f's_add_u32 {sr(sL4)}, {sr(sb)}, {sr(sn)}\ns_and_b32 {sr(sL4)}, {sr(sL4)}, 3')
    su4s += F(f's_lshl_b32 {sr(s0)}, {sr(sb)}, 4\ns_and_b32 {sr(s1)}, {sr(skq)}, 2\ns_mul_i32 {sr(sst4)}, {sr(s1)}, {-8 * MBS[1] & 0xffffffff}\ns_add_u32 {sr(sst4)}, {sr(sst4)}, {7 * MBS[1]}\ns_lshl_b32 {sr(s1)}, {sr(s1)}, 2\ns_add_u32 {sr(s0)}, {sr(s0)}, {sr(s1)}\ns_lshl_b32 {sr(s1)}, {sr(sw)}, 1\ns_add_u32 {sr(s0)}, {sr(s0)}, {sr(s1)}')
    su4s += F(f's_mul_i32 {sr(sA4)}, {sr(s0)}, {MBS[1]}\ns_mul_i32 {sr(s1)}, {sr(skq)}, {28 * 1024}\ns_add_u32 {sr(sA4)}, {sr(sA4)}, {sr(s1)}\ns_add_u32 {sr(sA4)}, {sr(sA4)}, {WS_ACT}')
    su4s += F(f's_lshl_b32 {sr(sro)}, {sr(s0)}, 15\ns_lshl_b32 {sr(sn)}, {sr(sn)}, 1\ns_and_b32 {sr(s1)}, {sr(skq)}, 1\ns_add_u32 {sr(sn)}, {sr(sn)}, {sr(s1)}')
    su4s += F(f's_lshl_b32 {sr(s0)}, {sr(sn)}, 7\ns_add_u32 {sr(sro)}, {sr(sro)}, {sr(s0)}\ns_lshl_b32 {sr(sg4)}, {sr(sn)}, 8\ns_add_u32 {sr(sg4)}, {sr(sg4)}, {WS_MODP + 5 * 4096}')
    su4s += F(f's_lshl_b32 {sr(s0)}, {sr(sb)}, 12\ns_lshl_b32 {sr(s1)}, {sr(skq)}, 8\ns_add_u32 {sr(s0)}, {sr(s0)}, {sr(s1)}\ns_add_u32 {sr(sfl+2)}, {sr(s0)}, {FL_A}')
    su4s += F(f's_lshl_b32 {sr(sxl)}, {sr(sw)}, 12\ns_add_u32 {sr(sxl)}, {sr(sxl)}, {XL}\ns_lshl_b32 {sr(sxo)}, s2, 16\ns_lshl_b32 {sr(s0)}, {sr(sw)}, 14\ns_add_u32 {sr(sxo)}, {sr(sxo)}, {sr(s0)}\ns_add_u32 {sr(sxo)}, {sr(sxo)}, {WS_XC4}')
    su4s += F(f's_lshr_b32 {sr(s0)}, s2, 3\ns_lshl_b32 {sr(s0)}, {sr(s0)}, 2\ns_add_u32 {sr(s0)}, {sr(s0)}, {sr(sw)}\ns_mul_i32 {sr(spf)}, {sr(s0)}, {14 * 1024}\ns_mul_i32 {sr(s0)}, {sr(skq)}, {896 * 2048}\ns_add_u32 {sr(spf)}, {sr(spf)}, {sr(s0)}')
    su4s += F(f's_nop 0')
    pfs = F(f'v_lshrrev_b32 v{vt}, 8, v{vl16}\nv_lshlrev_b32 v{vt}, 28, v{vt}\nv_lshl_add_u32 v{vt}, v{vl16}, 3, v{vt}\nv_xor_b32 v{wa+7}, {3<<5}, v{wa+4}')
    st.fill(pfs, utb - 8, cap=3)
    su4 = F(f'v_lshrrev_b32 v{T}, 3, v{l_}\nv_bfe_u32 v{T+1}, v{T}, 1, 2\nv_bfe_u32 v{T+2}, v{l_}, 1, 2\nv_xor_b32 v{T+1}, v{T+1}, v{T+2}\nv_lshlrev_b32 v{T+1}, 5, v{T+1}\nv_and_b32 v{T+2}, 1, v{l_}\nv_lshl_add_u32 v{T+1}, v{T+2}, 4, v{T+1}')
    su4 += F(f's_lshl_b32 {sr(s0)}, {sr(sw)}, 3\nv_add_u32 v{T}, {sr(s0)}, v{T}\nv_lshl_add_u32 v{T}, v{T}, 11, v{T+1}')
    su4 += F(f's_mul_i32 {sr(s0)}, {sr(skq)}, {896 * 2048}\ns_lshl_b32 {sr(s1)}, {sr(sn)}, 7\ns_add_u32 {sr(s0)}, {sr(s0)}, {sr(s1)}\nv_add_u32 v{vd4+1}, {sr(s0)}, v{T}\nv_xor_b32 v{vd4}, 128, v{vd4+1}')
    su4 += F(f'v_and_b32 v{T}, 3, v{l_}\nv_bfe_u32 v{T+1}, v{l_}, 2, 1\nv_lshl_add_u32 v{T}, v{T}, 3, v{T+1}\nv_lshlrev_b32 v{vp+1}, 7, v{T}')
    su4b = F(f's_lshl_b32 {sr(s0)}, {sr(sw)}, 8\ns_add_u32 {sr(s0)}, {sr(s0)}, {GL}\nv_lshrrev_b32 v{T+1}, 4, v{l_}\nv_lshl_add_u32 v{vgo}, v{T+1}, 4, {sr(s0)}\nv_lshlrev_b32 v{vl4}, 2, v{l_}\nv_add_u32 v{vgo-1}, {sr(s0)}, v{vl4}')
    su4b += F(f'v_lshrrev_b32 v{T}, 3, v{l_}\nv_and_b32 v{T+2}, 7, v{l_}\nv_xor_b32 v{T+3}, v{T+2}, v{T}\nv_lshlrev_b32 v{T+3}, 4, v{T+3}\nv_lshl_add_u32 v{vro}, v{T}, 11, v{T+3}')
    su4b += F(f'v_bfe_u32 v{T}, v{l_}, 4, 1\nv_lshrrev_b32 v{T+3}, 5, v{l_}\nv_lshl_add_u32 v{T}, v{T}, 1, v{T+3}\nv_xor_b32 v{T}, v{T}, v{T+2}\nv_lshlrev_b32 v{T}, 4, v{T}\nv_and_b32 v{T+2}, 15, v{l_}\nv_lshl_add_u32 v{T}, v{T+2}, 7, v{T}\nv_add_u32 v{vxa}, {sr(sxl)}, v{T}\nv_xor_b32 v{vxa+1}, 64, v{vxa}\nv_add_u32 v{vxa+2}, {sr(sxl)}, v{vl16}')
    su4b += F(f'v_bfe_u32 v{T}, v{l_}, 2, 2\nv_lshrrev_b32 v{T+1}, 4, v{l_}\nv_and_b32 v{T+2}, 1, v{l_}\nv_lshlrev_b32 v{T+2}, 4, v{T+2}\nv_mov_b32 v{T+3}, 0xffff\nv_lshlrev_b32 v{T+2}, v{T+2}, v{T+3}') + [f'v_cmp_eq_u32 vcc, v{T}, v{T+1}\nv_mov_b32 v{vsel+8}, 0\nv_mov_b32 v{vsel+9}, 0\nv_cndmask_b32 v{T}, 0, v{T+2}, vcc']
    su4b += [f'v_and_b32 v{T+1}, 2, v{l_}', f'v_cmp_eq_u32 vcc, 0, v{T+1}\nv_mov_b32 v{vsel+2}, 0\nv_mov_b32 v{vsel+3}, 0\nv_cndmask_b32 v{T+2}, 0, v{T}, vcc', f'v_sub_u32 v{T+3}, v{T}, v{T+2}']
    order = [6, 4, 5, 0, 1, 2, 3]
    rdg = lambda s_: (lambda: p.lg(f'ds_read_b128 {vr(ut + 4 if s_ == 6 else 60,4)}, v{vub} offset:{512+64*s_}', ('eg', s_), r=(UT, UT + 2048)))
    def epi(s_):
        tg_ = ut + 4 if s_ == 6 else 60
        L = [lambda: p.wait(lg=[('eg', s_)])]
        for gi, mg in enumerate(((0,), (1,), (2,), (3,)) if s_ == 6 else ((0, 1), (2, 3))):
            ms = [(m, x) for m in mg for x in range(4)]
            e = lambda m, x: ut + (0 if s_ == 6 else 4 * (m & 1)) + x
            L += [f'v_fma_f32 v{accr(s_,0,m)+x}, v{accr(s_,0,m)+x}, v{vs+2*m}, v{tg_+x}' for m, x in ms]
            if s_ not in (6, 3) and gi == 1: L.append(rdg(order[order.index(s_) + 1]))
            ex = [f'v_exp_f32 v{e(m,x)}, v{accr(s_,0,m)+x}' for m, x in ms]
            mu = [f'v_mul_f32 v{accr(s_,1,m)+x}, v{accr(s_,0,m)+x}, v{accr(s_,1,m)+x}' for m, x in ms]
            L += [y for ab in zip(ex, mu) for y in ab]
            vv = [f'v_fma_f32 v{e(m,x)}, v{e(m,x)}, v{vs+2*m+1}, v{vs+2*m+1}' for m, x in ms] + [f'v_mul_f32 v{accr(s_,1,m)+x}, v{accr(s_,1,m)+x}, v{e(m,x)}' for m, x in ms]
            rc = [f'v_rcp_f32 v{e(m,x)}, v{e(m,x)}' for m, x in ms]
            n_ = len(ms); L += vv[:2] + [y for ab in zip(rc, vv[2:n_ + 2]) for y in ab] + vv[n_ + 2:]
            for m in mg:
                u_ = accr(s_, 1, m); o = accr(s_ & ~1, 0, m) + 2 * (s_ & 1)
                L += F(f'v_cvt_pk_bf16_f32 v{o}, v{u_}, v{u_+1}\nv_cvt_pk_bf16_f32 v{o+1}, v{u_+2}, v{u_+3}')
                if s_ & 1 or s_ == 6:
                    so = sO + {1: 0, 3: 0, 5: 1, 6: 2}[s_]
                    def f(m=m, o=o, so=so):
                        if m: p.ins(f's_add_u32 {sr(s2_)}, {sr(so)}, {2 * MBS[1] * m}')
                        so_ = sr(s2_) if m else sr(so)
                        if s_ == 6: p.vm(f'buffer_store_dwordx2 {vr(o,2)}, v{vl16}, {sr(sWS,4)}, {so_} offen sc1', ('as', s_, m))
                        else: p.vm(f'buffer_store_dwordx4 {vr(o-2,4)}, v{vl16}, {sr(sWS,4)}, {so_} offen offset:{1024 if s_ == 3 else 0} sc1', ('as', s_, m))
                    L.append(op(f, 'sW'))
        if s_ == 6: L += [rdg(4), ('gap', 5)]
        return L
    win = {}
    a_ = 0
    wl = cfg.get('wl', (70, 80, 70, 90, 90, 80, 70))
    for i, s_ in enumerate(order):
        a_ = max(a_, done[s_] + 3)
        win[s_] = (a_, a_ + wl[i] - 1); a_ += wl[i]
    k.win = win; k.z = (z3, z4, zf, N)
    assert win[1][1] + 3 < z4 + 32, 'accumulators of G4 (tiles 4..7) overlap pairs 0/1'
    su4_end = win[4][1]
    pre_done = k.early3
    W.units[(3, 0, 0)]['vis'] = True
    for ts in range(n4):
        for g in range(2): W.units[(4, ts, g)]['e'] = su4_end + 1
    ops = W.dma_ops(bars, pre_done)
    def aop(ph, ts, j, m):
        ch, ab, stp = (chunk3, ab3, 65536) if ph == 3 else (chunk4, ab4, sr(sst4) if m == 2 else MBS[1])
        def pre():
            ch(ts)
            if m and j == 0: p.ins(f's_add_u32 {sr(sCA + ts % NC)}, {sr(sCA + ts % NC)}, {stp}')
        main = lambda: p.vm(f'buffer_load_dwordx4 {vr(ab(ts,j,m),4)}, v{vl16}, {sr(sWS,4)}, {sr(sCA + ts % NC)} offen offset:{1024*j} {lf}', ('A', ph, ts, j, m))
        return op(pre, 1 if j == 0 else 0), main
    pl1 = z4 - cfg.get('pl1', 100); pl2 = firstA[(4, NE)] - cfg.get('pl2', 110)
    i1, c1 = poll_ops(k, sWS, vp, sfl + 2, 'pl1', sfl + 3)
    i2, c2 = poll_ops(k, sWS, vp, sfl + 2, 'pl2', sfl + 3)
    assert pl1 > su4_end
    st.at(pl1, i1); st.at(pl1 + PD, c1)
    st.at(pl2 - 1, f's_sub_u32 {sr(sfl+2)}, {sr(sfl+2)}, {FL_A - FL_A2}'); st.at(pl2, i2); st.at(pl2 + PD, c2)
    yb = cfg.get('yb', 70); ne0 = k.ein or cfg.get('a0', 2)
    iy, cy = poll_ops(k, sWS, 9, sfl + 2, 'ply', sfl + 3, va=vt + 2)
    if NP: st.at(yb, iy); st.at(yb + PD, ';@T y_a'); st.at(yb + PD, cy); st.at(yb + PD, ';@T y_b')
    for ph, n_ in ((3, n3), (4, n4)):
        for ts in range(n_):
            if ph == 3: e = utb if nl and ts >= n3 - 1 - bl else lastA[(3, ts - DAS)] + 1 if ts >= DAS else 0
            else: e = max(bufs[ts][1] if ts < NB else lastA[(4, ts - NB)] + 1, (pl1 if ts < NE else pl2) + PD + 1)
            for m in range(4):
                if ph == 3 and ts < ne0 and (m < 2 or not NP): continue
                for j in range(2):
                    pre, main = aop(ph, ts, j, m)
                    ops.append(dict(e=max(e, yb + PD + 1) if ph == 3 and NP and m >= 2 else e, dl=firstM[(ph, ts, m)] - 2, pre=pre, main=main, id=('A', ph, ts), wt=0.5 if ph == 3 and ts < NP and m >= 2 else 1))
    vx1 = 192; vf = 208
    tg = win[3][1] + 110
    for q in range(NPART):
        pre = op(lambda q=q: p.ins(f's_add_u32 {sr(sv+1)}, {sr(sg4)}, {6144 * 4 * q}'), 1)
        X(tg, tg + 60, lambda q=q: p.vm(f'buffer_load_dword v{vg+q}, v{vl4}, {sr(sWS,4)}, {sr(sv+1)} offen {lf}', ('g', q)), pre)
    for i, tp in enumerate(cfg.get('pf', range(500, 1280, 112))):
        pre = op(lambda i=i: p.ins(f's_add_u32 {sr(sv+1)}, {sr(spf)}, {2048 * i}'), 1)
        assert tp > utb
        X(tp, tp + 20, lambda i=i: p.vm(f'buffer_load_dword a253, v{vt}, {sr(sWd,4)}, {sr(sv+1)} offen {cfg.get("pfl", "")}', ('dummy', i)), pre)
        extra[-1]['wt'] = cfg.get('pfw', 2)
    g3gap, g4gap = cfg.get('gap3', 5), cfg.get('gap4', 4.5)
    st.vmem(ops + extra, lambda i: cfg.get('gap0', 4) if i < 112 else g3gap if i < z3 else cfg.get('gapf', 4) if i < z4 else g4gap)
    k.vops = ops
    assert not NP or th[0] > 112 * NP + 24
    e_ = st.fill(set0, 1); assert e_ < yb
    e_ = st.fill(set1, e_ + 1); assert e_ < tb_[0], e_
    e_ = st.fill(setup, e_ + 1); assert e_ < th[0], e_
    for t0_, L, nm in chains:
        e_ = st.fill(L, max(t0_, e_ + 1))
        k.dbg = getattr(k, 'dbg', []) + [(nm, t0_, e_)]
        if nm == 'b3':
            st.at(e_ + cfg.get('upub', 80), pub_op(k, sWS, 9, sfl, ['us']))
            st.at(e_ + cfg.get('upub', 80), f's_sub_u32 {sr(sfl)}, {sr(sfl)}, {FL_U - FL_A}')
            assert e_ + cfg.get('upub', 80) < tu
            e_ = st.fill([('gap', 3)] + ufin, e_ + 1); assert e_ < tu, (e_, tu)
            st.fill(su4s, e_ + 1)
    assert e_ < utb - 62, (e_, utb)
    e_ = st.fit(fl, utb - 62, utb - 2)
    W.bw[utb].append(('lg', 'utw'))
    w = utb + 1; todo = [(s_, mat) for s_ in (6, 4, 5, 0, 1, 2, 3) for mat in range(2)]
    todo = [(s_, mat, i) for s_, mat in todo for i in range(1 + mat)]
    rdu = lambda x, b_: (lambda: p.lg(f'ds_read_b128 {vr(ut+4*b_,4)}, v{vub} offset:{512*(2*x[1]+x[2])+64*x[0]}', ('iu', x), r=(UT, UT + 2048)))
    allv = {x: [v for key, v in visit.items() if key[1:] == x[:2]] for x in todo}
    def pick(w_):
        while True:
            ok = [x for x in todo if all(v + 10 <= w_ or v >= w_ + cfg.get('injw', 20) for v in allv[x])]
            if ok: todo.remove(ok[0]); return ok[0], w_
            w_ += 1
    cur, w2 = pick(w + 8); b_ = 0
    st.fill([rdu(cur, 0)], w); w = w2
    while cur:
        nx, w2 = pick(w + 13) if todo else (None, 0)
        L = ([rdu(nx, 1 - b_)] if nx else []) + [lambda x=cur: p.wait(lg=[('iu', x)])] + [f'v_fmac_f32 v{accr(cur[0],cur[1],m)+x}, v{vs+2*m+cur[2]}, v{ut+4*b_+x}' for m in range(4) for x in range(4)]
        w = st.fill(L, w, cap=cfg.get('injcap', 2))
        assert w < (z3 if cur[0] >= 4 else done[6] - 12), (cur, w, z3)
        cur = nx; w = max(w + 1, w2); b_ = 1 - b_
    L = [rdg(6)] + [f'v_rcp_f32 v{vs+2*m}, v{vs+2*m+1}' for m in range(4)] + [f'v_mul_f32 v{vs+x}, {f32(-LOG2E)}, v{vs+x}' for x in (1, 3, 5, 7, 0, 2, 4, 6)]
    e_ = st.fill(L, w); assert e_ < win[6][0], e_
    k.injend = w
    st.at(win[5][1] + cfg.get('pb1', 40), pub_op(k, sWS, vpx, sfl, [('as', 6, m) for m in range(4)] + [('as', 5, m) for m in range(4)]))
    for s_ in order:
        L = epi(s_)
        if s_ == 4: L = L[:20] + su4 + L[20:]
        (st.fitp if cfg.get('pack', 1) else st.fit)(L, win[s_][0], win[s_][1] - (4 if s_ == 6 else 0))
    e_ = st.fill([f's_sub_u32 {sr(sfl)}, {sr(sfl)}, {FL_A - FL_A2}', ('gap', cfg.get('pb2', 40)), pub_op(k, sWS, vpx, sfl, [('as', s_, m) for s_ in (1, 3) for m in range(4)])] + su4b, win[3][1] + 1)
    assert e_ < tg, (e_, tg)
    L = [lambda i=i: p.lg(f'ds_read_b128 {vr(vx1+4*i,4)}, v{vxa+2} offset:{1024*i}', 'x1', r=(XL, XL + 16384), priv=True) for i in range(4)]
    L += [lambda: p.wait(vm=[('g', q) for q in range(NPART)])]
    L += F(f'v_add_f32 v{vg}, v{vg}, v{vg+1}\nv_add_f32 v{vg+2}, v{vg+2}, v{vg+3}\nv_add_f32 v{vg}, v{vg}, v{vg+2}') + rb(vg)
    L += [lambda: p.lg(f'ds_write_b32 v{vgo-1}, v{vg}', None, w=(GL, GL + 1024), priv=True)]
    L += [lambda t=t: p.lg(f'ds_read_b128 {vr(vg+4*t,4)}, v{vgo} offset:{64*t}', ('gl', t), r=(GL, GL + 1024), priv=True) for t in range(4)]
    L += [lambda: p.wait(lg=['x1'])]
    for i in range(16): L += F(f'v_lshlrev_b32 v{vf+2*i}, 16, v{vx1+i}\nv_and_b32 v{vf+2*i+1}, 0xffff0000, v{vx1+i}')
    L += F(f'v_mov_b32 v{vp+1}, 0') + [lambda: p.wait(lg=[('gl', 3)])]
    for t in range(4):
        for h in range(2):
            r_ = vsel + 6 * (t // 2) + 4 * (t & 1) + h
            L += F(f'v_cvt_pk_bf16_f32 v{r_}, v{vg+4*t+2*h}, v{vg+4*t+2*h+1}\nv_and_b32 v{r_}, v{r_}, v{T+2+h}')
    e_ = st.fill(L, max(tg + 110, pl2 + PD + 1)); assert e_ < zf + 150
    XJ = (3, 1, 2); XP = (0, 0, 1); XT = (0, 0, 4); XM = (2, 0, 2)
    tail = []
    def put(slot, o):
        if slot < N: st.at(slot, o)
        else: tail.append((slot, len(tail), o))
    xr = lambda x, i: acc4(XT[x] + 2 * (i & 1) + 1, XM[x] + (i >> 1))
    def addp(x, i):
        return [f'{MFMA} {vr(vf+8*i+4*t,4)}, {vr(vsel+6*(i&1)+2*t,4)}, {vr(xr(x,i),4)}, {vr(vf+8*i+4*t,4)}' for t in range(2)]
    xt = cfg.get('xt', ((75, 130, 165), (75, 132, 167), (50, 90, 97)))
    for ps in range(2):
        L = []
        for t in range(4):
            L.append(('from', d4[(ps, 4 * ps + t)] + 3))
            for x in range(3):
                if XP[x] != ps: continue
                for m in range(2):
                    c = acc4(XT[x] + t, XM[x] + m); o = acc4(XT[x] + (t & ~1), XM[x] + m)
                    L += F(f'v_cvt_pk_bf16_f32 v{o+2*(t&1)}, v{c}, v{c+1}\nv_cvt_pk_bf16_f32 v{o+2*(t&1)+1}, v{c+2}, v{c+3}')
                    if t & 1:
                        L.append(op(lambda x=x, i=2 * m + t // 2, o=o: (p.ins(f's_add_u32 {sr(sxo+1)}, {sr(sxo)}, {4096 * x}'), p.vm(f'buffer_store_dwordx4 {vr(o,4)}, v{vl16}, {sr(sWS,4)}, {sr(sxo+1)} offen offset:{1024 * i} sc1', ('xs', x, i))), 'sW'))
                        L.append(('gap', cfg.get('xgap', (2, 0))[ps]))
        e_ = st.fill(L, d4[(ps, 4 * ps)] + 3, cap=cfg.get('xcap', (2, 5))[ps]); assert e_ < d4[(ps, 4 * ps + 3)] + xt[2 * ps][0]
    for x in range(3):
        e0 = d4[(XP[x], 4 * XP[x] + 3)]; vq_ = (vd4 + 2, vpx + 1, vp)[x]
        if x != 1: put(e0 + xt[x][0], pub_op(k, sWS, vpx, sfl + 1, [('xs', y, i) for y in range(3) if XP[y] == XP[x] for i in range(4)], 16 * XP[x], wg=False))
        sq_ = (sA4, sL4, sfl + 2)[x]
        i3, c3 = poll_ops(k, sWS, vq_, sq_, ('pl3', x), sfl + 3, wg=False, va=vp + 1)
        put(e0 + xt[x][1], op(lambda x=x, i3=i3, sq_=sq_: (p.ins(f's_xor_b32 {sr(sq_)}, {sr(sfl+1)}, {XJ[x] << 9}\ns_add_u32 {sr(sq_)}, {sr(sq_)}, {16 * XP[x]}'), i3()), 3))
        if x == 2:
            lds_ = f's_xor_b32 {sr(s2_)}, {sr(sxo)}, {XJ[x] << 16}\ns_add_u32 {sr(s2_)}, {sr(s2_)}, {4096 * x}\n' + '\n'.join(f'buffer_load_dwordx4 {vr(xr(2,i),4)}, v{vl16}, {sr(sWS,4)}, {sr(s2_)} offen offset:{1024 * i} sc1 ; cond' for i in range(4))
            def look():
                L = k.lab('XL'); p.wait(vm=[('pl3', 2)])
                p.ins(f'v_cmp_ne_u32 vcc, {sr(k.tok)}, v{vp}\ns_mov_b32 {sr(sxo+1)}, 0\ns_cbranch_vccnz {L}\n{lds_}\ns_mov_b32 {sr(sxo+1)}, 1'); p.label(L)
            def again():
                L = k.lab('XA'); p.T('xa2')
                p.ins(f's_cmp_eq_u32 {sr(sxo+1)}, 1\ns_cbranch_scc1 {L}x\ns_mov_b32 {sr(sfl+3)}, 60000'); p.label(L)
                p.ins(f'buffer_load_dword v{vp}, v{vp+1}, {sr(sWS,4)}, {sr(sfl+2)} offen sc1 ; cond\ns_sub_u32 {sr(sfl+3)}, {sr(sfl+3)}, 1\ns_cmp_eq_u32 {sr(sfl+3)}, 0\ns_waitcnt vmcnt(0) ; cond\ns_cbranch_scc1 {L}y\nv_cmp_ne_u32 vcc, {sr(k.tok)}, v{vp}\ns_cbranch_vccnz {L}')
                p.label(L + 'y'); p.ins(lds_); p.label(L + 'x'); p.T('xb2')
            assert d4[(0, 3)] + xt[1][2] + 4 < e0 + xt[x][2] < N and xt[x][0] < xt[x][2]
            put(e0 + xt[x][2], op(look, 8)); put(N, again)
            continue
        put(e0 + xt[x][2], f';@T xa{x}')
        put(e0 + xt[x][2], c3)
        put(e0 + xt[x][2], f';@T xb{x}')
        for i in range(4):
            f = lambda x=x, i=i: (p.ins(f's_xor_b32 {sr(s2_)}, {sr(sxo)}, {XJ[x] << 16}\ns_add_u32 {sr(s2_)}, {sr(s2_)}, {4096 * x}'), p.vm(f'buffer_load_dwordx4 {vr(xr(x,i),4)}, v{vl16}, {sr(sWS,4)}, {sr(s2_)} offen offset:{1024 * i} sc1', ('xc', x, i)))
            put(e0 + xt[x][2] + 1 + i, op(f, 3))
    def add01():
        p.wait(vm=[('xc', x, i) for x in range(2) for i in range(4)])
        for x in range(2):
            for i in range(4):
                for o in addp(x, i): p.ins(o)
    st.at(N - 1, op(add01, 'M'))
    def aearly():
        for ts in range(ne0):
            for m in range(2):
                for j in range(2):
                    pre, main = aop(3, ts, j, m); pre(); main()
    def left():
        for o in k.left: o['pre'](); o['main']()
        p.ins(f'v_mov_b32 v{vdA}, v16')
    if k.ein:
        def aearly():
            for ts in range(ne0): chunk3(ts); p.ins(f's_add_u32 {sr(sCA + ts % NC)}, {sr(sCA + ts % NC)}, 65536')
        k.echk = p.bar
    dw = lambda: p.wait(vm=[('D', (3, 0, g), i) for g in range(2) for i in range(4)], lg='all')
    sm_ = dict(t=k.tail2, e=lambda: (dw(), p.T('e_a'), k.echk(), p.T('e_b')), a=aearly, l=left, w=lambda: p.ins(f';@WARM {sr(sw)} 0 4'), y=lambda: (dw(), k.ypub(), p.T('y_pub')))
    for c_ in cfg.get('seam', 'tweayl'): sm_[c_]()
    if 'y' not in cfg.get('seam', 'tweayl'): st.at(cfg.get('ys', 3), k.ypub)
    for x in cfg.get('from2', (1560,)): st.pre.setdefault(x, []).append(';@FROM')
    for x in cfg.get('warms', ()): st.pre.setdefault(x, []).append(f';@WARM {sr(sw)} 0 4')
    W.emit_early()
    for i, nm in tuple(cfg.get('marks', ())) + ((1, 'g3_m1'), (4 * 112, 'g3_s4'), (z3, 'g3_fin'), (pl1 + PD, 'p1a'), (pl1 + PD + 1, 'p1b'), (z4, 'g4_m1'), (pl2 + PD, 'p2a'), (pl2 + PD + 1, 'p2b'), (z4 + NE * 64, 'g4_L'), (zf, 'g4_fin')):
        st.pre.setdefault(i, []).insert(0, f';@T {nm}')
    st.emit()
    p.T('g4_end')
    def own():
        for i in (0, 2, 1, 3):
            m, q = divmod(i, 2)
            for t in range(2):
                for e in range(4): p.ins(f'v_fmac_f32 v{vf+8*i+4*t+e}, v{vg+8*q+4*t+e}, v{acc4(4+2*q+t,m)+e}')
    tail += [(N - 1, 0, own)]
    for _, _, o in sorted(tail, key=lambda x: x[:2]): p.ins(o) if isinstance(o, str) else o()
    for i in range(4):
        p.ins(f's_waitcnt vmcnt({3 - i})')
        for o in addp(2, i): p.ins(o)
    for i in range(4):
        m, q = divmod(i, 2); f_ = vf + 8 * i; x_ = vx1 + 4 * i
        for d in range(4): p.ins(f'v_cvt_pk_bf16_f32 v{x_+d}, v{f_+2*d}, v{f_+2*d+1}')
        p.ins(f'v_permlane16_swap_b32 v{x_}, v{x_+2}\nv_permlane16_swap_b32 v{x_+1}, v{x_+3}')
        p.lg(f'ds_write_b128 v{vxa+q}, {vr(x_,4)} offset:{2048*m}', None, w=(XL, XL + 16384), priv=True)
        if q:
            for h in range(2): p.lg(f'ds_read_b128 {vr(vf+16*m+4*h,4)}, v{vxa+2} offset:{2048*m+1024*h}', ('o', 2 * m + h), r=(XL, XL + 16384), priv=True)
    for i in range(4):
        if i: p.ins(f's_add_u32 {sr(sro)}, {sr(sro)}, 16384')
        p.wait(lg=[('o', i)])
        p.vm(f'buffer_store_dwordx4 {vr(vf+16*(i>>1)+4*(i&1),4)}, v{vro}, {sr(sOut,4)}, {sr(sro)} offen {cfg.get("ofl", "sc1")}')
    k.st = st
    k.end()
    return k
```

```python
from kernels import *
from eng import *
LN2C = 0.6931471805599453
WS_XC4 = 0x4000000
WSZ = 0x8000000
OOB = 0x40000000
FL_A = WS_FL + 32768
FL_X = 0xE0000
FL_M = WS_FL + 5 * 32768; FL_U = 0xD8000; FL_A2 = 0x30000; FL_E = 0x38000
WS_XA = 0x2800000
WS_ST2 = 0x600000
WS_UT3 = 0x2C00000
FL_O = WS_FL; FL_J = WS_FL + 2 * 32768; FL_Y = WS_FL + 3 * 32768; FL_H = WS_FL + 4 * 32768
WS_KV = 0x500000; WS_MP8 = 0x20000; WS_TOK = WS_FL + 6 * 32768
XST = 132 * 1024
QKV = 128 * 1024; JT = 157 * 1024; GL2 = 158 * 1024; LB = 148 * 1024; LS = 156 * 1024
F = lambda txt: txt.split('\n')
rb = lambda r: F(f'v_cvt_pk_bf16_f32 {vr(r)}, {vr(r)}, {vr(r)}\nv_lshlrev_b32 {vr(r)}, 16, {vr(r)}')

class K4(K):
    def __init__(self, name):
        K.__init__(self, name, 256, 256, 256)
        it = self.p.items
        self.p = Prog2(); self.p.items = it
        self.S = Regs('s', 4, 94)
        self.lds = 160 * 1024
        self.nlab = 0
    def lab(self, s):
        self.nlab += 1
        return f'{s}{self.nlab}_{self.name}'
    def text(self):
        t = self.p.text()
        ev, errs, ep = self.p.events()
        errs += check_lds([ev]) + self.p.check_chains()
        for e in errs[:20]: print('VERIFY:', e)
        assert not errs, f'{len(errs)} verifier errors'
        rep = []
        out, n = fix_hazards(t.split('\n'), rep)
        self.nops = rep
        return '.p2align 8\n' + '\n'.join(out).replace(' ; M\n', '\n').replace(' ; cond\n', '\n')
    def desc(self, minv=0):
        return kdesc(self.name, 512, 102, 256)

def poll_gen(k, ld, tst, tag, scnt, wg, bar=True):
    p = k.p; sw = k.common['sw']
    def issue():
        if not wg: return p.vm(ld, tag)
        soff = ld.split(', ')[3].split(' ')[0]
        p.ins(f's_lshl_b32 {sr(scnt)}, {sr(sw)}, 28' + (f'\ns_add_u32 {sr(scnt)}, {sr(scnt)}, {soff}' if soff != '0' else ''))
        p.vm(ld.replace(f', {soff} offen', f', {sr(scnt)} offen'), tag)
    def check():
        L = k.lab('PL')
        p.wait(vm=[tag])
        if wg: p.ins(f's_cmp_lg_u32 {sr(sw)}, 0\ns_cbranch_scc1 {L}x')
        p.ins(f'{tst}\ns_cbranch_vccz {L}x\ns_mov_b32 {sr(scnt)}, 60000')
        p.label(L)
        p.ins(f'{ld} ; cond\ns_sub_u32 {sr(scnt)}, {sr(scnt)}, 1\ns_cmp_eq_u32 {sr(scnt)}, 0\ns_waitcnt vmcnt(0) ; cond\ns_cbranch_scc1 {L}x\n{tst}\ns_cbranch_vccnz {L}')
        p.label(L + 'x')
        if wg and bar: p.bar()
    return op(issue, 'ssm' if wg else 'm'), op(check, 7)

def poll_ops(k, sWS, vp, soff, tag, scnt, cmp=None, wg=True, va=None, bar=True):
    ld = f'buffer_load_dword {vr(vp)}, {vr(va or vp+1)}, {sr(sWS,4)}, {sr(soff) if soff is not None else 0} offen sc1'
    return poll_gen(k, ld, cmp or f'v_cmp_ne_u32 vcc, {sr(k.tok)}, {vr(vp)}', tag, scnt, wg, bar)

def poll4_ops(k, sWS, vd, va, tag, scnt, bar=True):
    ld = f'buffer_load_dwordx4 {vr(vd,4)}, {vr(va)}, {sr(sWS,4)}, 0 offen sc1'
    tst = f'v_bitop3_b32 v{vd}, v{vd}, v{vd+1}, {sr(k.tok)} bitop3:0x7e\nv_bitop3_b32 v{vd+2}, v{vd+2}, v{vd+3}, {sr(k.tok)} bitop3:0x7e\nv_or_b32 v{vd}, v{vd}, v{vd+2}\nv_cmp_ne_u32 vcc, 0, v{vd}'
    return poll_gen(k, ld, tst, tag, scnt, True, bar)

def pub_op(k, sWS, vt, soff, tags, imm=0, add=0, wg=True):
    p = k.p
    def f():
        p.ins(f'v_add_u32 {vr(vt)}, {sr(k.tok)}, v0' + (f'\nv_add_u32 {vr(vt)}, {add}, {vr(vt)}' if add else ''))
        if tags: p.wait(vm=tags)
        if tags and wg: p.bar()
        p.ins('s_mov_b64 exec, 1')
        p.vm(f'buffer_store_dword {vr(vt)}, v0, {sr(sWS,4)}, {sr(soff)} offen offset:{imm} sc1')
        p.ins('s_mov_b64 exec, -1')
    return op(f, 6)

def code_op(k, vt, vl16, sp, first=None):
    p = k.p
    L = k.lab('CT')
    p.ins(f's_getpc_b64 {sr(sp,2)}')
    p.label(L)
    p.ins(f's_min_u32 {sr(sp+2)}, {sr(sp+3)}, code_end-{first or L}' + (f'\ns_add_u32 {sr(sp+2)}, {sr(sp+2)}, {first}-{L}' if first else ''))
    p.ins(f's_add_u32 {sr(sp)}, {sr(sp)}, {sr(sp+2)}\ns_addc_u32 {sr(sp+1)}, {sr(sp+1)}, 0')
    p.ins(f'v_and_b32 v{vt}, 0x70, v{vl16}\nv_lshlrev_b32 v{vt}, 3, v{vt}')
    p.vm(f'global_load_dword a253, v{vt}, {sr(sp,2)}', 'dummy')

class WS_:
    def __init__(self, st, pool):
        self.st, self.p = st, st.p
        self.pool = {r: -10**6 for r in pool}; self.until = {}
        self.units = {}; self.nf = 0; self.early = []; self.groups = []
    def unit(self, u, lo, hi, dmas, e=0, wt=1):
        self.units[u] = dict(lo=lo, hi=hi, dmas=dmas, fr=None, lr=None, e=e, wt=wt)
    def rd(self, us, s, lr, text, tag, rng):
        f = lambda: self.p.lg(text, tag, r=rng)
        if s < 0: self.early.append((s, len(self.early), f))
        else: self.st.at(s, f)
        assert min(self.units[u]['lo'] for u in us) <= rng[0] and rng[1] <= max(self.units[u]['hi'] for u in us), (us, rng)
        for u in us:
            U = self.units[u]
            U['fr'] = s if U['fr'] is None else min(U['fr'], s)
            U['lr'] = lr if U['lr'] is None else max(U['lr'], lr)
    def group(self, frags, mf, LA, wait=True, vm=(), lg=(), kind='tr'):
        st, p = self.st, self.p
        s0 = st.n(); ids = [self.nf + i for i in range(len(frags))]; self.nf += len(frags)
        n = len(mf); per = 2 if kind == 'tr' else 1; nr = per * len(frags)
        while True:
            reg = []; pool = dict(self.pool)
            for i in range(len(frags)):
                s = s0 - LA + per * i * n // nr
                lu = s0 + max(x for x, m in enumerate(mf) if ('f', i) in m[1:])
                c = [r for r in pool if pool[r] <= s and lu < self.until.get(r, 10**9)]
                if not c: break
                r = min(c, key=lambda r: pool[r]); pool[r] = lu; reg.append(r)
            if len(reg) == len(frags): break
            LA -= 1; assert LA > (nr - 1) * n // nr + 3, ('fragment pool too small', s0)
        self.pool = pool
        for c, a, b in mf:
            st.mfma(c, reg[a[1]] if isinstance(a, tuple) else a, reg[b[1]] if isinstance(b, tuple) else b)
        for i, fr in enumerate(frags):
            u, ar, base, off = fr[:4]
            for h in range(per):
                s = s0 - LA + (per * i + h) * n // nr
                o = off + 2048 * h
                assert 0 <= o < 65536
                if kind == 'tr': self.rd([u], s, s0, f'ds_read_b64_tr_b16 {vr(reg[i] + 2 * h,2)}, {vr(ar)} offset:{o}', ('W', ids[i], h), (base + o, base + o + 2048))
                else: self.rd([u], s, s0, f'ds_read_b128 {vr(reg[i],4)}, {vr(ar)} offset:{o}', ('W', ids[i], 1), (base + o, base + o + (fr[4] if len(fr) > 4 else 1024)))
        self.groups.append(dict(s0=s0, ids=ids, wait=wait, vm=list(vm), lg=list(lg)))
        return s0
    def finish_waits(self):
        g = self.groups; i = 0
        while i < len(g):
            j = i + 1
            while j < len(g) and not g[j]['wait']: j += 1
            lg = [('W', f, 1) for x in g[i:j] for f in x['ids']] + [t for x in g[i:j] for t in x['lg']]; vm = [t for x in g[i:j] for t in x['vm']]
            self.st.before(g[i]['s0'], lambda lg=lg, vm=vm: self.p.wait(vm=vm or None, lg=lg))
            i = j
    def dma_ops(self, bars, pre_done=()):
        st, p = self.st, self.p
        ops = []; bw = {b: [] for b in bars}
        order = sorted(self.units, key=lambda u: self.units[u]['fr'])
        for n_, u in enumerate(order):
            U = self.units[u]
            tags = [('D', u, i) for i in range(len(U['dmas']))]
            if U['fr'] < 0 or U.get('vis'): continue
            if U['fr'] >= st.n(): dl = U['fr']
            else:
                dl = max(b for b in bars if b < U['fr'])
                bw[dl] += tags
            if u in pre_done: continue
            e = U['e']
            for v in order[:n_]:
                X = self.units[v]
                if X['lo'] < U['hi'] and U['lo'] < X['hi'] and X['lr'] >= 0:
                    e = max(e, min([b for b in bars if b >= X['lr']] + [st.n()]) + 1)
            for i, (pre, main) in enumerate(U['dmas']):
                ops.append(dict(e=e, dl=dl, pre=pre, main=main, id=(u, i), wt=U['wt']))
        for U in self.units.values():
            if U.get('force'): bw[min(b for b in bars if b >= U['lr'])].append(('lg', U['force']))
        self.bw = bw
        for b in bars:
            def f(b=b):
                x = self.bw[b]
                lgs = [t[1] for t in x if t[0] == 'lg']; vms = [t for t in x if t[0] != 'lg']
                if x: p.wait(vm=vms or None, lg=lgs or None)
                p.bar()
            st.last(b, op(f, 2))
        return ops
    def place_bars(self, bars, pre_done, target):
        bars = set(bars); n = self.st.n()
        order = sorted(self.units, key=lambda u: self.units[u]['fr'])
        for n_, u in enumerate(order):
            U = self.units[u]
            if U['fr'] < 0 or U.get('vis') or U['fr'] >= n: continue
            pl = max([X['lr'] for X in (self.units[v] for v in order[:n_]) if X['lo'] < U['hi'] and U['lo'] < X['hi']] + [-1])
            def win(B):
                e = -20 if u in pre_done else max(U['e'], min([b for b in B if b >= pl] + [10**6]) + 1 if pl >= 0 else 0)
                return max([b for b in B if b < U['fr']] + [-10**6]) - e
            for _ in range(2):
                if win(bars) >= target(U['fr']): break
                c = [x for x in (U['fr'] - 1, pl) if x >= 0 and x not in bars]
                if not c: break
                x = max(c, key=lambda x: win(bars | {x}))
                if win(bars | {x}) >= win(bars) + 8 or win(bars) < 16: bars.add(x)
        return sorted(bars)
    def emit_early(self):
        for _, _, f in sorted(self.early, key=lambda x: x[:2]): f()

def zig(n, nm, flip):
    out = []
    for mi in range(nm):
        m = nm - 1 - mi if flip else mi
        out += [(m, j) for j in (range(n) if mi % 2 == 0 else range(n - 1, -1, -1))]
    return out

def g3_early(k, s0, s1, sv, T, oob):
    p = k.p; C = k.common; sw = C['sw']; vl = 0; vdA, vdB = 16, 11
    L = F(f'v_lshrrev_b32 v{T}, 3, v{vl}\nv_bfe_u32 v{T+1}, v{T}, 1, 2\nv_bfe_u32 v{T+2}, v{vl}, 1, 2\nv_xor_b32 v{T+1}, v{T+1}, v{T+2}')
    L += F(f's_lshl_b32 {sr(s0)}, {sr(sw)}, 3\nv_add_u32 v{T}, {sr(s0)}, v{T}\nv_mul_u32_u24 v{T}, 7168, v{T}\nv_and_b32 v{T+2}, 1, v{vl}\nv_lshl_add_u32 v{T}, v{T+2}, 4, v{T}')
    L += F(f's_and_b32 {sr(s0)}, s2, 7\ns_mul_i32 {sr(s0)}, {sr(s0)}, 896\nv_add_u32 v{T}, {sr(s0)}, v{T}\nv_lshlrev_b32 v{T+2}, 5, v{T+1}')
    L += F(f's_and_b32 {sr(s1)}, s2, 24\ns_lshl_b32 {sr(s0)}, {sr(s1)}, 5\nv_add3_u32 v{vdA}, v{T}, v{T+2}, {sr(s0)}')
    L += F(f's_lshr_b32 {sr(s0)}, 0x0b070602, {sr(s1)}\ns_and_b32 {sr(s0)}, {sr(s0)}, 15\ns_lshl_b32 {sr(s0)}, {sr(s0)}, 6\nv_add_u32 v{T+2}, {sr(s0)}, v{T+2}')
    L += F(f's_lshr_b32 {sr(s0)}, 0x15140706, {sr(s1)}\ns_and_b32 {sr(s0)}, {sr(s0)}, 31\ns_lshl_b32 {sr(s0)}, {sr(s0)}, 5\nv_mov_b32 v{T+3}, {sr(s0)}')
    L += [f'v_cmp_gt_u32 vcc, 2, v{T+1}\nv_cndmask_b32 v{T+2}, v{T+3}, v{T+2}, vcc', f'v_add_u32 v{vdB}, v{T}, v{T+2}']
    if oob: L += F(f'v_add_u32 v{T+1}, 1, v{T+1}\nv_lshrrev_b32 v{T+1}, 2, v{T+1}\nv_lshl_add_u32 v{vdB}, v{T+1}, 30, v{vdB}')
    def dmas(ts, g):
        u = (3, ts, g); lo = 65536 * g + k.perm[g][ts] * 16384; out = []
        for jq in range(2):
            for mat in range(2):
                dst = lo + mat * 8192 + jq * 4096
                pre = lambda dst=dst, jq=jq: p.ins(f's_mov_b32 {sr(sv)}, {(2 * ts + jq) * 32 * 7168}\ns_add_u32 m0, {sr(C["sWL"])}, {dst}')
                main = lambda dst=dst, mat=mat, i=2 * jq + mat: p.vm(f'buffer_load_dwordx4 v{(vdA, vdB)[g]}, {sr((C["sWg"], C["sWu"])[mat],4)}, {sr(sv)} offen lds', ('D', u, i), w=(dst, dst + 4096))
                out.append((op(pre, 2), main))
        return u, lo, lo + 16384, out
    return L, dmas

def g3_mid(k, s0, s1, T):
    p = k.p; C = k.common; sw, sWL, sWg, sWu, sAb = C['sw'], C['sWL'], C['sWg'], C['sWu'], C['sAb']; sJ, sMk = C['dead']; vl = 0; wa = 2; vtb = k.vtb
    L = F(f'v_lshrrev_b32 v{T+1}, 2, v{vl}\nv_bfe_u32 v{T}, v{T+1}, 1, 2\nv_lshlrev_b32 v{T}, 5, v{T}\nv_lshl_add_u32 v{T}, v{T+1}, 7, v{T}\nv_and_b32 v{T+1}, 3, v{vl}\nv_lshl_add_u32 v{wa}, v{T+1}, 3, v{T}') + [f'v_xor_b32 v{wa+t}, {t<<5}, v{wa}' for t in range(1, 4)] + [f'v_add_u32 v{wa+4+t}, 65536, v{wa+t}' for t in range(3)]
    L += F(f's_lshr_b32 {sr(s0)}, s2, 5\ns_lshl_b32 {sr(s0)}, {sr(s0)}, 19\ns_lshr_b32 {sr(s1)}, {sr(sw)}, 1\ns_lshl_b32 {sr(s1)}, {sr(s1)}, 18\ns_add_u32 {sr(s0)}, {sr(s0)}, {sr(s1)}\ns_and_b32 {sr(s1)}, {sr(sw)}, 1\ns_lshl_b32 {sr(s1)}, {sr(s1)}, 15\ns_add_u32 {sr(s0)}, {sr(s0)}, {sr(s1)}\ns_add_u32 {sr(sAb)}, {sr(s0)}, {WS_Y}')
    L += [f's_bitcmp1_b32 s2, 3\ns_cselect_b64 {sr(sJ,2)}, {sr(sWu,2)}, {sr(sWg,2)}', f's_mov_b32 {sr(sJ+2)}, {DM * FF * 2}']
    for r_ in range(4):
        m = lanemask(lambda l: ((l & 7) >> 1) == r_); L += F(f's_mov_b32 {sr(sMk+2*r_)}, 0x{m & 0xffffffff:08x}\ns_mov_b32 {sr(sMk+2*r_+1)}, 0x{m >> 32:08x}')
    M_ = [lambda: p.wait(vm=[('tb', q) for q in range(NPART)])]
    for i in range(2): M_ += F(f'v_add_f32 v{vtb+i}, v{vtb+i}, v{vtb+2+i}\nv_add_f32 v{vtb+4+i}, v{vtb+4+i}, v{vtb+6+i}\nv_add_f32 v{vtb+i}, v{vtb+i}, v{vtb+4+i}')
    M_ += F(f'v_lshrrev_b32 v{T}, 5, v{vl}\nv_xor_b32 v{T+1}, 1, v{T}\nv_cvt_f32_u32 v{T+1}, v{T+1}')
    for rep in range(2):
        M_ += F(f'v_cvt_pk_bf16_f32 v{vtb+2}, v{vtb}, v{vtb+1}\nv_lshlrev_b32 v{vtb}, 16, v{vtb+2}\nv_and_b32 v{vtb+1}, 0xffff0000, v{vtb+2}')
        if rep == 0: M_ += F(f'v_add_f32 v{vtb}, v{vtb}, v{T+1}\nv_add_f32 v{vtb+1}, v{vtb+1}, v{T+1}')
    M_ += F(f'v_lshrrev_b32 v{vtb+3}, 16, v{vtb+2}\nv_and_b32 v{vtb+2}, 0xffff, v{vtb+2}\ns_add_u32 {sr(s0)}, {sr(sWL)}, {LB}\nv_lshlrev_b32 v{T}, 8, v{T}\nv_lshl_add_u32 v{T}, v{vl}, 3, v{T}\nv_add_u32 v{T}, {sr(s0)}, v{T}')
    M_ += [lambda: p.lg(f'ds_write_b64 v{T}, {vr(vtb+2,2)}', None, w=(LB, LB + 4096), priv=True), lambda: p.lg(f'ds_write_b64 v{T}, {vr(vtb,2)} offset:256', None, w=(LB, LB + 4096), priv=True)]
    return L, M_

def k_g34(cfg, k):
    p, S = k.p, k.S; MX[0] = cfg.get('mx', 0)
    sWS, sWg, sWu, sWd, sOut, sw, sWL = (k.common[x] for x in ('sWS', 'sWg', 'sWu', 'sWd', 'sOut', 'sw', 'sWL'))
    sm = S.alloc('mt'); sq = S.alloc('q'); sx = S.alloc('xcd'); s0 = S.alloc('t0'); s1 = S.alloc('t1'); s2_ = S.alloc('t2')
    sLead = S.alloc('lead'); sAb = k.common['sAb']; sO = S.alloc('so', 3); sv = S.alloc('vm', 2); sst = S.alloc('st')
    NC = 8; sCW = S.alloc('cw', NC); sCA = S.alloc('ca', NC); sfl = S.alloc('fl', 4)
    vl16, wa, vdA, vdB, vub, vt, vs, ut, ACC = 1, 2, 10, 11, 12, 13, 16, 24, 32
    POS = {6: 0, 4: 1, 5: 2, 0: 3, 1: 4, 2: 5, 3: 6}
    accr = lambda s_, g, m: ACC + 32 * POS[s_] + 16 * g + 4 * m
    DAS = 5; AB = A0; WB = A0 + 160; R = 6
    UT = 128 * 1024; GL = UT + 2048; XL = XST
    lf = 'sc1'
    vl = 0
    assert MBS[0] == 32768
    st = Stream(p); W = WS_(st, [WB + 4 * i for i in range(R)])
    n3 = 16; FS = 4
    done3 = set()
    def lead3(ts):
        if ts < 4 or cfg.get('nolead3'): return ts
        return ts + 4 if ts + 4 < n3 else 4 + ts % 4
    def chunk3(ts):
        if ts in done3: return
        done3.add(ts)
        cw, ca = sCW + ts % NC, sCA + ts % NC; lc = lead3(ts)
        if lc == ts: p.ins(f's_mov_b32 {sr(cw)}, {ts * 64 * 7168}\ns_add_u32 {sr(ca)}, {sr(sAb)}, {ts * 2048}')
        else: p.ins(f's_cmp_eq_u32 {sr(sLead)}, {ts % 4}\ns_cselect_b32 {sr(ca)}, {lc}, {ts}\ns_mul_i32 {sr(cw)}, {sr(ca)}, {64 * 7168}\ns_lshl_b32 {sr(ca)}, {sr(ca)}, 11\ns_add_u32 {sr(ca)}, {sr(ca)}, {sr(sAb)}')
    def dma(u, i, chunk, ts, cw, srd, vo, dst, goff):
        def pre():
            chunk(ts)
            p.ins(f's_add_u32 m0, {sr(sWL)}, {dst}')
            if goff: p.ins(f's_add_u32 {sr(sv)}, {sr(cw)}, {goff}')
        main = lambda: p.vm(f'buffer_load_dwordx4 v{vo}, {sr(srd,4)}, {sr(sv if goff else cw)} offen lds', ('D', u, i), w=(dst, dst + 4096))
        return op(pre, 2 if goff else 1), main
    nl = cfg.get('nolate', 1)
    sw3 = lambda g, i: 65536 * g + k.perm[g][i % 4] * 16384
    lo3 = lambda ts, g: sw3(1, 0) if nl and (ts, g) == (n3 - 1, 0) else sw3(g, ts)
    for ts in range(n3):
        for g, (vo, base) in enumerate(((vdA, 0), (vdB, 65536))):
            u = (3, ts, g); lo = lo3(ts, g)
            W.unit(u, lo, lo + 16384, [dma(u, 2 * jq + mat, chunk3, ts, sCW + ts % NC, (sWg, sWu)[mat], vo, lo + mat * 8192 + jq * 4096, jq * 32 * 7168) for jq in range(2) for mat in range(2)])
    bl = cfg.get('bl', 0)
    ab3 = lambda ts, j, m: (A0 + 188 if nl and ts == n3 - 1 else A0 + 220 if bl and ts == n3 - 2 else AB + (ts % DAS) * 32) + (j * 4 + m) * 4
    seenA = set(); firstA = {}; lastA = {}; firstM = {}; NP = k.NP
    LA = cfg.get('LA', 18)
    def grp(ph, ts, u, ar, base, off, acc, ab, ms=(0, 1, 2, 3), la=None):
        fr = [(u, ar, base, off + j * 4096) for j in range(2)]
        mf = [(acc(ms[m]), ('f', j), ab(ts, j, ms[m])) for m, j in zig(2, len(ms), len(W.groups) % 2)]
        vm = [('A', ph, ts, j, m) for j in range(2) for m in ms if (ph, ts, m) not in seenA]
        seenA.update((ph, ts, m) for m in ms)
        s = W.group(fr, mf, la or LA, vm=vm, wait=len(ms) == 4 or len(W.groups) % 2 == 0 or not cfg.get('w2', 1))
        for m in ms: firstM.setdefault((ph, ts, m), s)
        firstA.setdefault((ph, ts), s); lastA[(ph, ts)] = s + len(mf) - 1
        return s
    def grp3(ts, s_, mat, ms=(0, 1, 2, 3), la=None):
        g = 0 if s_ < 4 else 1
        hi = lo3(ts, g) // 65536
        return grp(3, ts, (3, ts, g), wa + 4 * hi + s_ % 4, 65536 * hi, lo3(ts, g) % 65536 + mat * 8192, lambda m: accr(s_, mat, m), ab3, ms, la)
    visit = {}
    def part(ts, slots):
        for s_ in slots:
            for mat in range(2): visit[(ts, s_, mat)] = grp3(ts, s_, mat)
    for r_ in range(6):
        if NP: W.pool[A0 + 188 + 4 * r_] = -10**6; W.until[A0 + 188 + 4 * r_] = 112 * NP + 24
    for ms in ((0, 1), (2, 3)):
        for ts in range(NP):
            for s_ in (4, 5, 6, 0, 1, 2, 3):
                for mat in range(2): grp3(ts, s_, mat, ms, cfg.get('LAh', 16))
    B_, A_ = (4, 5, 6), (0, 1, 2, 3); zb0 = None
    for ts in range(NP, n3 - FS - 2 - 2 * bl): part(ts, B_ + A_)
    if bl: part(8, B_); part(9, B_); zb0 = st.n(); part(8, A_); part(10, B_); part(11, B_); zb = st.n(); part(9, A_)
    elif nl: part(n3 - FS - 2, B_); part(n3 - FS - 1, B_); zb = st.n(); part(n3 - FS - 2, A_)
    else: part(n3 - FS - 2, B_ + A_); part(n3 - FS - 1, B_)
    Ss = list(range(n3 - FS, n3))
    done = {}
    def pair(s_, sts):
        for ts in sts:
            for mat in range(2): e = grp3(ts, s_, mat)
        done[s_] = e + 7
    def late(a_, b_):
        if nl: pair(a_, Ss); pair(b_, Ss)
        else: pair(a_, Ss[:-1]); pair(b_, Ss[:-1]); pair(a_, Ss[-1:]); pair(b_, Ss[-1:])
    if not cfg.get('mvA', 1): part(n3 - FS - 1, (0, 1, 2, 3))
    z3 = st.n()
    late(6, 4)
    if bl: part(10, A_)
    pair(5, Ss)
    if cfg.get('mvA', 1):
        part(n3 - FS - 1, (0, 1, 2, 3)); late(0, 1)
    else:
        pair(0, Ss); pair(1, Ss)
    pair(2, Ss); pair(3, Ss)
    z4 = st.n()
    n4 = 14; FS4 = cfg.get('FS4', 4); NE = 6
    acc4 = lambda t, m: 64 + (t * 4 + m) * 4
    vd4, vp, vpx, vro, vxa, vgo, vl4, vsel, vg = 32, 36, 38, 40, 42, 46, 47, 52, 240
    sA4 = S.alloc('a4'); sro = S.alloc('ro'); sxo = S.alloc('xo', 2); sg4 = S.alloc('g4'); sst4 = S.alloc('st4'); sxl = S.alloc('xl'); sL4 = S.alloc('l4'); spf = S.alloc('pf')
    E = [7 * g + c for g in range(2) for c in (1, 3, 5)]; Lt = [7 * g + c for g in range(2) for c in (0, 2, 4, 6)]
    def lead4(ts):
        lst, i, P_ = (E, ts, 3) if ts < NE else (Lt, ts - NE, 4)
        if cfg.get('nolead4'): return lst[i], lst[i], 0
        return lst[i], lst[(i + P_) % len(lst)], i % P_
    done4 = set()
    def chunk4(ts):
        if ts in done4: return
        done4.add(ts)
        cw, ca = sCW + ts % NC, sCA + ts % NC; nat, lc, ld = lead4(ts)
        if nat == lc: p.ins(f's_mov_b32 {sr(cw)}, {nat << 17}\ns_add_u32 {sr(ca)}, {sr(sA4)}, {nat << 11}')
        else: p.ins(f's_cmp_eq_u32 {sr(sL4)}, {ld}\ns_cselect_b32 {sr(ca)}, {lc}, {nat}\ns_lshl_b32 {sr(cw)}, {sr(ca)}, 17\ns_lshl_b32 {sr(ca)}, {sr(ca)}, 11\ns_add_u32 {sr(ca)}, {sr(ca)}, {sr(sA4)}')
    s4t = [(1, 1), (1, 2), (1, 3), (0, 3), (0, 0), (0, 1), (0, 2), (1, 0)] if nl else [(1, i) for i in range(4)] + [(0, i) for i in range(4)]
    slot4 = lambda ts: sw3(*s4t[ts % 8])
    for ts in range(n4):
        for g in range(2):
            u = (4, ts, g); lo = slot4(ts) + g * 8192
            W.unit(u, lo, lo + 8192, [dma(u, jq, chunk4, ts, sCW + ts % NC, sWd, vd4 + g, lo + jq * 4096, jq * 32 * 2048) for jq in range(2)])
    bufs = ([] if bl else [(A0 + 220, 0)]) + [(ab3(ts, 0, 0), lastA[(3, ts)] + 1) for ts in range(n3 - DAS - 1 - bl, n3)] if nl else [(A0 + 188, 0), (A0 + 220, 0)] + [(AB + 32 * (ts % DAS), lastA[(3, ts)] + 1) for ts in range(n3 - DAS, n3)]
    NB = len(bufs)
    ab4 = lambda ts, j, m: bufs[ts % NB][0] + (j * 4 + m) * 4
    def grp4(ts, t, ms=(0, 1, 2, 3), la=None):
        g = t // 4; base = slot4(ts) // 65536 * 65536
        return grp(4, ts, (4, ts, g), wa + (4 if base else 0) + t % 4, base, slot4(ts) - base + g * 8192, lambda m: acc4(t, m), ab4, ms, la)
    for r_ in range(64, 192, 4): st.touched.discard(r_)
    for ts in range(n4 - FS4):
        for t in range(8): grp4(ts, t)
    zf = st.n()
    d4 = {}
    for ts in range(n4 - FS4, n4):
        for t in range(4): d4[(0, t)] = grp4(ts, t) + 7
    for r_ in range(16, 32, 4): W.pool[r_] = zf
    for ps, ms in ((1, (2, 3)), (2, (0, 1))):
        for ts in range(n4 - FS4, n4):
            for t in range(4, 8): d4[(ps, t)] = grp4(ts, t, ms, cfg.get('LAh', 16)) + 3
    N = st.n()
    W.finish_waits()
    bars = set()
    fr_ = lambda *u: W.units[u]['fr'] - 1
    if nl:
        for ts in range(1, n3 - FS - 1):
            if not (bl and ts == 9): bars.add(fr_(3, ts, 1))
        if bl: bars |= {zb0 - 8, fr_(3, 10, 0), lastA[(3, 10)] - 7}
        bars |= {zb - 8, fr_(3, n3 - FS, 1), fr_(3, n3 - 2, 1), fr_(3, n3 - FS - 1, 0), done[5] - 7, fr_(3, n3 - 1, 0), z4 - 7}
    else:
        for ts in range(1, n3 - FS): bars.add(fr_(3, ts, 1))
        bars |= {z3, fr_(3, n3 - 1, 1), fr_(3, n3 - 1, 0), done[5] + 1, z4 + 1, lastA[(3, n3 - FS - 1)] + 1}
    for ts in range(NP - 1): bars.add(56 * (NP + ts + 1) - 4)
    for ts in range(0, n4 - FS4, cfg.get('BS4', 2)): bars.add(fr_(4, ts, 0))
    for u in cfg.get('fb4', ((n4 - FS4, 0), (n4 - FS4 + 2, 0), (n4 - FS4, 1))): bars.add(fr_(4, *u))
    bars = sorted(bars)
    k.bars = bars
    extra = []
    def X(e, dl, main, pre=None): extra.append(dict(e=e, dl=dl, main=main, pre=pre, id='x'))
    PD = cfg.get('pd', 40)
    T = ut
    set0 = F(f's_lshr_b32 {sr(s0)}, s2, 5\ns_lshl_b32 {sr(s0)}, {sr(s0)}, 12\ns_add_u32 {sr(sfl+2)}, {sr(s0)}, {FL_Y}\nv_and_b32 v{vt+2}, 31, v{vl}\nv_lshlrev_b32 v{vt+2}, 7, v{vt+2}')
    set1 = F(f's_and_b32 {sr(sx)}, s2, 7\ns_bfe_u32 {sr(sq)}, s2, 0x20003\ns_lshr_b32 {sr(sm)}, s2, 5\ns_add_u32 {sr(sLead)}, {sr(sq)}, {sr(sm)}\ns_and_b32 {sr(sLead)}, {sr(sLead)}, 3\ns_lshl_b32 {sr(s0)}, {sr(sm)}, 1') + F(f's_lshr_b32 {sr(s1)}, {sr(sw)}, 1\ns_add_u32 {sr(s0)}, {sr(s0)}, {sr(s1)}\ns_lshl_b32 {sr(sst)}, {sr(s0)}, 3\ns_and_b32 {sr(s2_)}, {sr(sw)}, 1\ns_add_u32 {sr(sst)}, {sr(sst)}, {sr(s2_)}') + F(f's_lshl_b32 {sr(sfl)}, s2, 7\ns_lshl_b32 {sr(s0)}, {sr(sw)}, 28\ns_add_u32 {sr(sfl)}, {sr(sfl)}, {sr(s0)}\ns_add_u32 {sr(sfl)}, {sr(sfl)}, {FL_U}\ns_lshl_b32 {sr(s0)}, s2, 2\ns_add_u32 {sr(s0)}, {sr(s0)}, {sr(sw)}\ns_lshl_b32 {sr(s0)}, {sr(s0)}, 7\ns_add_u32 {sr(sfl+1)}, {sr(s0)}, {FL_X}')
    set1 += F(f's_add_u32 {sr(s0)}, {sr(sWL)}, {LB}') + F(f'v_bfe_u32 v{T}, v{vl}, 3, 1\nv_lshlrev_b32 v{T}, 9, v{T}\nv_and_b32 v{T+1}, 1, v{vl}\nv_lshl_add_u32 v{T}, v{T+1}, 8, v{T}\nv_lshrrev_b32 v{T+1}, 4, v{vl}\nv_lshl_add_u32 v{T}, v{T+1}, 6, v{T}\nv_add_u32 v{vt+1}, {sr(s0)}, v{T}') + F(f's_bfe_u32 {sr(s0)}, s2, 0x20004\ns_lshl_b32 {sr(s0)}, {sr(s0)}, 8\nv_and_b32 v{T}, 15, v{vl}\nv_lshl_add_u32 v{T}, v{T}, 4, {sr(s0)}') + [f'v_cmp_gt_u32 vcc, 896, v{T}\nv_mov_b32 v{T+2}, {OOB}\nv_mul_u32_u24 v{T+1}, {16 * 7168}, v{T+1}\nv_cndmask_b32 v{T}, v{T+2}, v{T}, vcc'] + F(f's_lshr_b32 {sr(s0)}, s2, 6\ns_lshl_b32 {sr(s0)}, {sr(s0)}, 2\ns_add_u32 {sr(s0)}, {sr(s0)}, {sr(sw)}\ns_mul_i32 {sr(s0)}, {sr(s0)}, {64 * 7168}\ns_mul_i32 {sr(s1)}, {sr(sx)}, 896\ns_add_u32 {sr(s0)}, {sr(s0)}, {sr(s1)}\nv_add3_u32 v{vt}, v{T}, v{T+1}, {sr(s0)}')
    setup = F(f's_lshl_b32 {sr(sO)}, {sr(sq)}, 12\ns_lshl_b32 {sr(s1)}, {sr(sq)}, 3\ns_lshr_b32 {sr(s0)}, 0x0b070602, {sr(s1)}\ns_and_b32 {sr(s0)}, {sr(s0)}, 15\ns_lshl_b32 {sr(sO+1)}, {sr(s0)}, 10')
    setup += F(f's_lshr_b32 {sr(s0)}, {sr(sq)}, 1\ns_mul_i32 {sr(s0)}, {sr(s0)}, {7 * 1024}\ns_and_b32 {sr(s1)}, {sr(s1)}, 8\ns_add_u32 {sr(s0)}, {sr(s0)}, {sr(s1)}\ns_add_u32 {sr(sO+2)}, {sr(s0)}, {3 * 1024}')
    setup += F(f's_mul_i32 {sr(s0)}, {sr(sx)}, {14*1024}\ns_mul_i32 {sr(s1)}, {sr(sst)}, {MBS[1]}\ns_add_u32 {sr(s0)}, {sr(s0)}, {sr(s1)}\ns_add_u32 {sr(s0)}, {sr(s0)}, {WS_ACT}') + [f's_add_u32 {sr(sO+i)}, {sr(sO+i)}, {sr(s0)}' for i in range(3)]
    setup += F(f's_lshl_b32 {sr(sst)}, {sr(sm)}, 2\ns_add_u32 {sr(sst)}, {sr(sst)}, {sr(sw)}\ns_lshl_b32 {sr(sst)}, {sr(sst)}, 14\ns_add_u32 {sr(sst)}, {sr(sst)}, {WS_ST2}\nv_and_b32 v{vub}, 0x300, v{vl16}\nv_add_u32 v{vub}, v{vub}, v{vl16}')
    SA = A0 + 188
    th = cfg.get('th', (115, 430)); tb_ = cfg.get('ub', (70, 170, 280, 385)); UD = cfg.get('ud', 95)
    def stat(hf):
        for i in range(4):
            for h in range(2):
                pre = op(lambda i=i: p.ins(f's_add_u32 {sr(sv+1)}, {sr(sst)}, {8192 * hf + 2048 * i}'), 1)
                X(th[hf], th[hf] + 70, lambda i=i, h=h: p.vm(f'buffer_load_dwordx4 {vr(SA+8*i+4*h,4)}, v{vub}, {sr(sWS,4)}, {sr(sv+1)} offen offset:{256*h} {lf}', ('st', hf, i, h)), pre)
        fl = [lambda: p.wait(vm=[('st', hf, i, h) for i in range(4) for h in range(2)])]
        for i in range(4):
            if hf == 0 and i == 0: fl += [f'v_accvgpr_read_b32 v{vs+x}, {vr(SA+x)}' for x in range(8)]
            else: fl += [f'v_accvgpr_read_b32 v{ut+x}, {vr(SA+8*i+x)}' for x in range(8)] + [f'v_add_f32 v{vs+x}, v{vs+x}, v{ut+x}' for x in range(8)]
        if hf == 0: return fl
        for sw_, n_ in ((32, 4), (16, 2)):
            fl += [('gap', 1)] + [f'v_permlane{sw_}_swap_b32 v{vs+x}, v{vs+n_+x}' for x in range(n_)] + [f'v_add_f32 v{vs+x}, v{vs+x}, v{vs+n_+x}' for x in range(n_)]
        b = vs
        fl += F(f'v_mul_f32 v{b}, {f32(1/1024)}, v{b}\nv_mul_f32 v{b+1}, {f32(1/1024)}, v{b+1}\nv_fma_f32 v{b+1}, -v{b}, v{b}, v{b+1}\nv_max_f32 v{b+1}, 0, v{b+1}') + rb(b + 1) \
              + [f'v_add_f32 v{b+1}, {f32(1e-5)}, v{b+1}'] + rb(b + 1) + [f'v_sqrt_f32 v{b+1}, v{b+1}'] + rb(b) + rb(b + 1) + [f'v_sub_f32 v{b}, 0, v{b}']
        for sw_, n_ in ((16, 2), (32, 4)):
            fl += [f'v_mov_b32 v{vs+n_+x}, v{vs+x}' for x in range(n_)] + [('gap', 1)] + [f'v_permlane{sw_}_swap_b32 v{vs+x}, v{vs+n_+x}' for x in range(n_)]
        return fl + F(f'v_lshrrev_b32 v{vub}, 8, v{vl16}\nv_lshlrev_b32 v{vub}, 4, v{vub}\nv_add_u32 v{vub}, {UT}, v{vub}')
    sJ, sMk, uc, UDR = k.common['dead'][0], k.common['dead'][1], A0 + 184, A0 + 220
    mf_ = lambda d, a_, b_, c='0': op(lambda: p.ins(f'{MFMA} {vr(d,4)}, {vr(a_,4)}, {vr(b_,4)}, {c}'), 'M')
    def burst(bi):
        for i in range(4):
            pre = op(lambda i=i: p.ins(f's_mov_b32 {sr(sv+1)}, {7168 * (4 * bi + i)}'), 1)
            X(tb_[bi], tb_[bi] + 30, lambda i=i: p.vm(f'buffer_load_dwordx4 {vr(UDR+16*(bi&1)+4*i,4)}, v{vt}, {sr(sJ,4)}, {sr(sv+1)} offen {cfg.get("ufl", "")}', ('ud', bi, i)), pre)
            extra[-1]['wt'] = cfg.get('uwt', 6) if i == 3 else 0.4
        L = [lambda: p.lg(f'ds_read_b128 {vr(ut,4)}, v{vt+1} offset:{16*bi}', ('uv', bi), r=(LB, LB + 4096), priv=True), ('gap', 6), lambda: p.wait(vm=[('ud', bi, 3)], lg=[('uv', bi)])]
        for i in range(4):
            L += [f'v_cndmask_b32 v{ut+4+r_}, 0, v{ut+i}, {sr(sMk+2*r_,2)}' for r_ in range(4)] + [('gap', 1), mf_(uc, ut + 4, UDR + 16 * (bi & 1) + 4 * i, vr(uc, 4) if bi or i else '0')]
        return L
    chains = sorted([(th[hf] + cfg.get('sd', 100), stat(hf), f's{hf}') for hf in range(2)] + [(tb_[bi] + UD, burst(bi), f'b{bi}') for bi in range(4)], key=lambda x: x[0])
    ufin = F(f's_bfe_u32 {sr(s0)}, s2, 0x20004\ns_lshl_b32 {sr(s0)}, {sr(s0)}, 9\nv_and_b32 v{vt+1}, 15, v{vl}\nv_lshl_add_u32 v{vt+1}, v{vt+1}, 5, {sr(s0)}')
    ufin += [f'v_cmp_gt_u32 vcc, {448 * 4}, v{vt+1}\nv_mov_b32 v{vt+2}, {WSZ}\nv_bfe_u32 v{vt}, v{vl}, 4, 1\nv_cndmask_b32 v{vt+1}, v{vt+2}, v{vt+1}, vcc']
    ufin += F(f'v_lshl_add_u32 v{vt+1}, v{vt}, 4, v{vt+1}\nv_lshrrev_b32 v{vt}, 5, v{vl}\nv_mul_u32_u24 v{vt}, {FF*4}, v{vt}\nv_add_u32 v{vt+1}, v{vt+1}, v{vt}')
    ufin += F(f's_lshr_b32 {sr(s0)}, s2, 6\ns_lshl_b32 {sr(s0)}, {sr(s0)}, 2\ns_add_u32 {sr(s0)}, {sr(s0)}, {sr(sw)}\ns_lshl_b32 {sr(s0)}, {sr(s0)}, 1\ns_bfe_u32 {sr(s1)}, s2, 0x10003\ns_add_u32 {sr(s0)}, {sr(s0)}, {sr(s1)}\ns_mul_i32 {sr(s0)}, {sr(s0)}, {2*FF*4}\ns_mul_i32 {sr(s1)}, {sr(sx)}, {448*4}\ns_add_u32 {sr(s0)}, {sr(s0)}, {sr(s1)}\ns_add_u32 {sr(s0)}, {sr(s0)}, {WS_UT3}')
    ufin.append(lambda: p.vm(f'buffer_store_dwordx4 {vr(uc,4)}, v{vt+1}, {sr(sWS,4)}, {sr(s0)} offen sc1', 'us'))
    ufin += F(f's_lshl_b32 {sr(s0)}, {sr(sx)}, 7\ns_add_u32 {sr(s0)}, {sr(s0)}, {FL_U}\nv_and_b32 v{vt}, 31, v{vl}\nv_min_u32 v{vt+2}, 27, v{vt}\nv_lshl_add_u32 v{vt}, v{vt}, 10, {sr(s0)}\nv_lshlrev_b32 v{vt+2}, 4, v{vt+2}')
    ufin += F(f's_lshl_b32 {sr(s0)}, {sr(sq)}, 9\nv_mov_b32 v{vt+1}, {sr(s0)}\ns_lshl_b32 {sr(s2_)}, {sr(sq)}, 3\ns_lshr_b32 {sr(s0)}, 0x0b070602, {sr(s2_)}\ns_and_b32 {sr(s0)}, {sr(s0)}, 15\ns_lshl_b32 {sr(s0)}, {sr(s0)}, 7\ns_sub_u32 {sr(s0)}, {sr(s0)}, 256\nv_mov_b32 v{ut}, {sr(s0)}')
    ufin += [f'v_cmp_gt_u32 vcc, 256, v{vt+2}\nv_cndmask_b32 v{vt+1}, v{ut}, v{vt+1}, vcc']
    ufin += F(f's_lshr_b32 {sr(s0)}, 0x15140706, {sr(s2_)}\ns_and_b32 {sr(s0)}, {sr(s0)}, 31\ns_lshl_b32 {sr(s0)}, {sr(s0)}, 6\ns_sub_u32 {sr(s0)}, {sr(s0)}, 384\nv_mov_b32 v{ut}, {sr(s0)}')
    ufin += [f'v_cmp_gt_u32 vcc, 384, v{vt+2}\nv_cndmask_b32 v{vt+1}, v{ut}, v{vt+1}, vcc']
    ufin += F(f'v_lshrrev_b32 v{ut}, 5, v{vl}\nv_mul_u32_u24 v{ut}, {4*FF*4}, v{ut}\nv_add3_u32 v{vt+1}, v{vt+1}, v{vt+2}, v{ut}\ns_mul_i32 {sr(s0)}, {sr(sw)}, {FF*4}\ns_add_u32 {sr(s0)}, {sr(s0)}, {sr(s1)}\ns_add_u32 {sr(s0)}, {sr(s0)}, {WS_UT3}\nv_add_u32 v{vt+1}, {sr(s0)}, v{vt+1}')
    ufin += F(f's_lshl_b32 {sr(s0)}, {sr(sw)}, 9\ns_add_u32 {sr(s0)}, {sr(s0)}, {UT}\nv_add_u32 v{vt+2}, {sr(s0)}, v{vt+2}')
    tu = tb_[3] + UD + cfg.get('tu', 205)
    iu, cu = poll_ops(k, sWS, 9, None, 'plu', sfl + 3, va=vt)
    st.at(tu, iu); st.at(tu + PD, ';@T ua'); st.at(tu + PD, cu); st.at(tu + PD, ';@T ub')
    for i in range(8):
        pre = op(lambda i=i: p.ins(f's_mov_b32 {sr(sv+1)}, {8 * FF * 4 * i}'), 1)
        X(tu + PD + 1, tu + PD + 45, lambda i=i: p.vm(f'buffer_load_dwordx4 {vr(UDR+4*i,4)}, v{vt+1}, {sr(sWS,4)}, {sr(sv+1)} offen {lf}', ('u', i)), pre)
        extra[-1]['wt'] = 0.5
    fl = [lambda: p.wait(vm=[('u', i) for i in range(8)])] + [f'v_accvgpr_read_b32 {vr(ut+i)}, {vr(UDR+i)}' for i in range(4)]
    for h in range(1, 8): fl += [f'v_accvgpr_read_b32 {vr(ut+4+i)}, {vr(UDR+4*h+i)}' for i in range(4)] + [f'v_add_f32 {vr(ut+i)}, {vr(ut+i)}, {vr(ut+4+i)}' for i in range(4)]
    fl += [f'v_mov_b32 v{ut+4+i}, v{ut+i}' for i in range(4)] + [f'v_permlane32_swap_b32 v{ut+i}, v{ut+4+i}' for i in range(4)] + [f'v_add_f32 v{ut+i}, v{ut+i}, v{ut+4+i}' for i in range(4)]
    fl += [f's_cmp_eq_u32 {sr(sw)}, 1\ns_cselect_b32 {sr(s2_)}, {f32(-LOG2E)}, 1.0'] + [f'v_mul_f32 v{ut+i}, {sr(s2_)}, v{ut+i}' for i in range(4)]
    fl.append(lambda: p.lg(f'ds_write_b128 v{vt+2}, {vr(ut,4)}', 'utw', w=(UT, UT + 2048)))
    utb = tu + PD + cfg.get('auxd', 65) + 62
    bars = sorted(set(bars) | {utb}); k.bars = bars
    sb, sn, skq = sm, sq, sx
    T = 48; l_ = vl
    su4s = F(f's_and_b32 {sr(sb)}, s2, 4\ns_lshr_b32 {sr(s0)}, s2, 6\ns_add_u32 {sr(sb)}, {sr(sb)}, {sr(s0)}\ns_bfe_u32 {sr(sn)}, s2, 0x30003\ns_and_b32 {sr(skq)}, s2, 3')
    su4s += F(f's_add_u32 {sr(sL4)}, {sr(sb)}, {sr(sn)}\ns_and_b32 {sr(sL4)}, {sr(sL4)}, 3')
    su4s += F(f's_lshl_b32 {sr(s0)}, {sr(sb)}, 4\ns_and_b32 {sr(s1)}, {sr(skq)}, 2\ns_mul_i32 {sr(sst4)}, {sr(s1)}, {-8 * MBS[1] & 0xffffffff}\ns_add_u32 {sr(sst4)}, {sr(sst4)}, {7 * MBS[1]}\ns_lshl_b32 {sr(s1)}, {sr(s1)}, 2\ns_add_u32 {sr(s0)}, {sr(s0)}, {sr(s1)}\ns_lshl_b32 {sr(s1)}, {sr(sw)}, 1\ns_add_u32 {sr(s0)}, {sr(s0)}, {sr(s1)}')
    su4s += F(f's_mul_i32 {sr(sA4)}, {sr(s0)}, {MBS[1]}\ns_mul_i32 {sr(s1)}, {sr(skq)}, {28 * 1024}\ns_add_u32 {sr(sA4)}, {sr(sA4)}, {sr(s1)}\ns_add_u32 {sr(sA4)}, {sr(sA4)}, {WS_ACT}')
    su4s += F(f's_lshl_b32 {sr(sro)}, {sr(s0)}, 15\ns_lshl_b32 {sr(sn)}, {sr(sn)}, 1\ns_and_b32 {sr(s1)}, {sr(skq)}, 1\ns_add_u32 {sr(sn)}, {sr(sn)}, {sr(s1)}')
    su4s += F(f's_lshl_b32 {sr(s0)}, {sr(sn)}, 7\ns_add_u32 {sr(sro)}, {sr(sro)}, {sr(s0)}\ns_lshl_b32 {sr(sg4)}, {sr(sn)}, 8\ns_add_u32 {sr(sg4)}, {sr(sg4)}, {WS_MODP + 5 * 4096}')
    su4s += F(f's_lshl_b32 {sr(s0)}, {sr(sb)}, 12\ns_lshl_b32 {sr(s1)}, {sr(skq)}, 8\ns_add_u32 {sr(s0)}, {sr(s0)}, {sr(s1)}\ns_add_u32 {sr(sfl+2)}, {sr(s0)}, {FL_A}')
    su4s += F(f's_lshl_b32 {sr(sxl)}, {sr(sw)}, 12\ns_add_u32 {sr(sxl)}, {sr(sxl)}, {XL}\ns_lshl_b32 {sr(sxo)}, s2, 16\ns_lshl_b32 {sr(s0)}, {sr(sw)}, 14\ns_add_u32 {sr(sxo)}, {sr(sxo)}, {sr(s0)}\ns_add_u32 {sr(sxo)}, {sr(sxo)}, {WS_XC4}')
    su4s += F(f's_lshr_b32 {sr(s0)}, s2, 3\ns_lshl_b32 {sr(s0)}, {sr(s0)}, 2\ns_add_u32 {sr(s0)}, {sr(s0)}, {sr(sw)}\ns_mul_i32 {sr(spf)}, {sr(s0)}, {14 * 1024}\ns_mul_i32 {sr(s0)}, {sr(skq)}, {896 * 2048}\ns_add_u32 {sr(spf)}, {sr(spf)}, {sr(s0)}')
    su4s += F(f's_nop 0')
    pfs = F(f'v_lshrrev_b32 v{vt}, 8, v{vl16}\nv_lshlrev_b32 v{vt}, 28, v{vt}\nv_lshl_add_u32 v{vt}, v{vl16}, 3, v{vt}\nv_xor_b32 v{wa+7}, {3<<5}, v{wa+4}')
    st.fill(pfs, utb - 8, cap=3)
    su4 = F(f'v_lshrrev_b32 v{T}, 3, v{l_}\nv_bfe_u32 v{T+1}, v{T}, 1, 2\nv_bfe_u32 v{T+2}, v{l_}, 1, 2\nv_xor_b32 v{T+1}, v{T+1}, v{T+2}\nv_lshlrev_b32 v{T+1}, 5, v{T+1}\nv_and_b32 v{T+2}, 1, v{l_}\nv_lshl_add_u32 v{T+1}, v{T+2}, 4, v{T+1}')
    su4 += F(f's_lshl_b32 {sr(s0)}, {sr(sw)}, 3\nv_add_u32 v{T}, {sr(s0)}, v{T}\nv_lshl_add_u32 v{T}, v{T}, 11, v{T+1}')
    su4 += F(f's_mul_i32 {sr(s0)}, {sr(skq)}, {896 * 2048}\ns_lshl_b32 {sr(s1)}, {sr(sn)}, 7\ns_add_u32 {sr(s0)}, {sr(s0)}, {sr(s1)}\nv_add_u32 v{vd4+1}, {sr(s0)}, v{T}\nv_xor_b32 v{vd4}, 128, v{vd4+1}')
    su4 += F(f'v_and_b32 v{T}, 3, v{l_}\nv_bfe_u32 v{T+1}, v{l_}, 2, 1\nv_lshl_add_u32 v{T}, v{T}, 3, v{T+1}\nv_lshlrev_b32 v{vp+1}, 7, v{T}')
    su4b = F(f's_lshl_b32 {sr(s0)}, {sr(sw)}, 8\ns_add_u32 {sr(s0)}, {sr(s0)}, {GL}\nv_lshrrev_b32 v{T+1}, 4, v{l_}\nv_lshl_add_u32 v{vgo}, v{T+1}, 4, {sr(s0)}\nv_lshlrev_b32 v{vl4}, 2, v{l_}\nv_add_u32 v{vgo-1}, {sr(s0)}, v{vl4}')
    su4b += F(f'v_lshrrev_b32 v{T}, 3, v{l_}\nv_and_b32 v{T+2}, 7, v{l_}\nv_xor_b32 v{T+3}, v{T+2}, v{T}\nv_lshlrev_b32 v{T+3}, 4, v{T+3}\nv_lshl_add_u32 v{vro}, v{T}, 11, v{T+3}')
    su4b += F(f'v_bfe_u32 v{T}, v{l_}, 4, 1\nv_lshrrev_b32 v{T+3}, 5, v{l_}\nv_lshl_add_u32 v{T}, v{T}, 1, v{T+3}\nv_xor_b32 v{T}, v{T}, v{T+2}\nv_lshlrev_b32 v{T}, 4, v{T}\nv_and_b32 v{T+2}, 15, v{l_}\nv_lshl_add_u32 v{T}, v{T+2}, 7, v{T}\nv_add_u32 v{vxa}, {sr(sxl)}, v{T}\nv_xor_b32 v{vxa+1}, 64, v{vxa}\nv_add_u32 v{vxa+2}, {sr(sxl)}, v{vl16}')
    su4b += F(f'v_bfe_u32 v{T}, v{l_}, 2, 2\nv_lshrrev_b32 v{T+1}, 4, v{l_}\nv_and_b32 v{T+2}, 1, v{l_}\nv_lshlrev_b32 v{T+2}, 4, v{T+2}\nv_mov_b32 v{T+3}, 0xffff\nv_lshlrev_b32 v{T+2}, v{T+2}, v{T+3}') + [f'v_cmp_eq_u32 vcc, v{T}, v{T+1}\nv_mov_b32 v{vsel+8}, 0\nv_mov_b32 v{vsel+9}, 0\nv_cndmask_b32 v{T}, 0, v{T+2}, vcc']
    su4b += [f'v_and_b32 v{T+1}, 2, v{l_}', f'v_cmp_eq_u32 vcc, 0, v{T+1}\nv_mov_b32 v{vsel+2}, 0\nv_mov_b32 v{vsel+3}, 0\nv_cndmask_b32 v{T+2}, 0, v{T}, vcc', f'v_sub_u32 v{T+3}, v{T}, v{T+2}']
    order = [6, 4, 5, 0, 1, 2, 3]
    rdg = lambda s_: (lambda: p.lg(f'ds_read_b128 {vr(ut + 4 if s_ == 6 else 60,4)}, v{vub} offset:{512+64*s_}', ('eg', s_), r=(UT, UT + 2048)))
    def epi(s_):
        tg_ = ut + 4 if s_ == 6 else 60
        L = [lambda: p.wait(lg=[('eg', s_)])]
        for gi, mg in enumerate(((0,), (1,), (2,), (3,)) if s_ == 6 else ((0, 1), (2, 3))):
            ms = [(m, x) for m in mg for x in range(4)]
            e = lambda m, x: ut + (0 if s_ == 6 else 4 * (m & 1)) + x
            L += [f'v_fma_f32 v{accr(s_,0,m)+x}, v{accr(s_,0,m)+x}, v{vs+2*m}, v{tg_+x}' for m, x in ms]
            if s_ not in (6, 3) and gi == 1: L.append(rdg(order[order.index(s_) + 1]))
            ex = [f'v_exp_f32 v{e(m,x)}, v{accr(s_,0,m)+x}' for m, x in ms]
            mu = [f'v_mul_f32 v{accr(s_,1,m)+x}, v{accr(s_,0,m)+x}, v{accr(s_,1,m)+x}' for m, x in ms]
            L += [y for ab in zip(ex, mu) for y in ab]
            vv = [f'v_fma_f32 v{e(m,x)}, v{e(m,x)}, v{vs+2*m+1}, v{vs+2*m+1}' for m, x in ms] + [f'v_mul_f32 v{accr(s_,1,m)+x}, v{accr(s_,1,m)+x}, v{e(m,x)}' for m, x in ms]
            rc = [f'v_rcp_f32 v{e(m,x)}, v{e(m,x)}' for m, x in ms]
            n_ = len(ms); L += vv[:2] + [y for ab in zip(rc, vv[2:n_ + 2]) for y in ab] + vv[n_ + 2:]
            for m in mg:
                u_ = accr(s_, 1, m); o = accr(s_ & ~1, 0, m) + 2 * (s_ & 1)
                L += F(f'v_cvt_pk_bf16_f32 v{o}, v{u_}, v{u_+1}\nv_cvt_pk_bf16_f32 v{o+1}, v{u_+2}, v{u_+3}')
                if s_ & 1 or s_ == 6:
                    so = sO + {1: 0, 3: 0, 5: 1, 6: 2}[s_]
                    def f(m=m, o=o, so=so):
                        if m: p.ins(f's_add_u32 {sr(s2_)}, {sr(so)}, {2 * MBS[1] * m}')
                        so_ = sr(s2_) if m else sr(so)
                        if s_ == 6: p.vm(f'buffer_store_dwordx2 {vr(o,2)}, v{vl16}, {sr(sWS,4)}, {so_} offen sc1', ('as', s_, m))
                        else: p.vm(f'buffer_store_dwordx4 {vr(o-2,4)}, v{vl16}, {sr(sWS,4)}, {so_} offen offset:{1024 if s_ == 3 else 0} sc1', ('as', s_, m))
                    L.append(op(f, 'sW'))
        if s_ == 6: L += [rdg(4), ('gap', 5)]
        return L
    win = {}
    a_ = 0
    wl = cfg.get('wl', (70, 80, 70, 90, 90, 80, 70))
    for i, s_ in enumerate(order):
        a_ = max(a_, done[s_] + 3)
        win[s_] = (a_, a_ + wl[i] - 1); a_ += wl[i]
    k.win = win; k.z = (z3, z4, zf, N)
    assert win[1][1] + 3 < z4 + 32, 'accumulators of G4 (tiles 4..7) overlap pairs 0/1'
    su4_end = win[4][1]
    pre_done = k.early3
    W.units[(3, 0, 0)]['vis'] = True
    for ts in range(n4):
        for g in range(2): W.units[(4, ts, g)]['e'] = su4_end + 1
    ops = W.dma_ops(bars, pre_done)
    def aop(ph, ts, j, m):
        ch, ab, stp = (chunk3, ab3, 65536) if ph == 3 else (chunk4, ab4, sr(sst4) if m == 2 else MBS[1])
        def pre():
            ch(ts)
            if m and j == 0: p.ins(f's_add_u32 {sr(sCA + ts % NC)}, {sr(sCA + ts % NC)}, {stp}')
        main = lambda: p.vm(f'buffer_load_dwordx4 {vr(ab(ts,j,m),4)}, v{vl16}, {sr(sWS,4)}, {sr(sCA + ts % NC)} offen offset:{1024*j} {lf}', ('A', ph, ts, j, m))
        return op(pre, 1 if j == 0 else 0), main
    pl1 = z4 - cfg.get('pl1', 100); pl2 = firstA[(4, NE)] - cfg.get('pl2', 110)
    i1, c1 = poll_ops(k, sWS, vp, sfl + 2, 'pl1', sfl + 3)
    i2, c2 = poll_ops(k, sWS, vp, sfl + 2, 'pl2', sfl + 3)
    assert pl1 > su4_end
    st.at(pl1, i1); st.at(pl1 + PD, c1)
    st.at(pl2 - 1, f's_sub_u32 {sr(sfl+2)}, {sr(sfl+2)}, {FL_A - FL_A2}'); st.at(pl2, i2); st.at(pl2 + PD, c2)
    yb = cfg.get('yb', 70); ne0 = k.ein or cfg.get('a0', 2)
    iy, cy = poll_ops(k, sWS, 9, sfl + 2, 'ply', sfl + 3, va=vt + 2)
    if NP: st.at(yb, iy); st.at(yb + PD, ';@T y_a'); st.at(yb + PD, cy); st.at(yb + PD, ';@T y_b')
    for ph, n_ in ((3, n3), (4, n4)):
        for ts in range(n_):
            if ph == 3: e = utb if nl and ts >= n3 - 1 - bl else lastA[(3, ts - DAS)] + 1 if ts >= DAS else 0
            else: e = max(bufs[ts][1] if ts < NB else lastA[(4, ts - NB)] + 1, (pl1 if ts < NE else pl2) + PD + 1)
            for m in range(4):
                if ph == 3 and ts < ne0 and (m < 2 or not NP): continue
                for j in range(2):
                    pre, main = aop(ph, ts, j, m)
                    ops.append(dict(e=max(e, yb + PD + 1) if ph == 3 and NP and m >= 2 else e, dl=firstM[(ph, ts, m)] - 2, pre=pre, main=main, id=('A', ph, ts), wt=0.5 if ph == 3 and ts < NP and m >= 2 else 1))
    vx1 = 192; vf = 208
    tg = win[3][1] + 110
    for q in range(NPART):
        pre = op(lambda q=q: p.ins(f's_add_u32 {sr(sv+1)}, {sr(sg4)}, {6144 * 4 * q}'), 1)
        X(tg, tg + 60, lambda q=q: p.vm(f'buffer_load_dword v{vg+q}, v{vl4}, {sr(sWS,4)}, {sr(sv+1)} offen {lf}', ('g', q)), pre)
    for i, tp in enumerate(cfg.get('pf', range(500, 1280, 112))):
        pre = op(lambda i=i: p.ins(f's_add_u32 {sr(sv+1)}, {sr(spf)}, {2048 * i}'), 1)
        assert tp > utb
        X(tp, tp + 20, lambda i=i: p.vm(f'buffer_load_dword a253, v{vt}, {sr(sWd,4)}, {sr(sv+1)} offen {cfg.get("pfl", "")}', ('dummy', i)), pre)
        extra[-1]['wt'] = cfg.get('pfw', 2)
    g3gap, g4gap = cfg.get('gap3', 5), cfg.get('gap4', 4.5)
    st.vmem(ops + extra, lambda i: cfg.get('gap0', 4) if i < 112 else g3gap if i < z3 else cfg.get('gapf', 4) if i < z4 else g4gap)
    k.vops = ops
    assert not NP or th[0] > 112 * NP + 24
    e_ = st.fill(set0, 1); assert e_ < yb
    e_ = st.fill(set1, e_ + 1); assert e_ < tb_[0], e_
    e_ = st.fill(setup, e_ + 1); assert e_ < th[0], e_
    for t0_, L, nm in chains:
        e_ = st.fill(L, max(t0_, e_ + 1))
        k.dbg = getattr(k, 'dbg', []) + [(nm, t0_, e_)]
        if nm == 'b3':
            st.at(e_ + cfg.get('upub', 80), pub_op(k, sWS, 9, sfl, ['us']))
            st.at(e_ + cfg.get('upub', 80), f's_sub_u32 {sr(sfl)}, {sr(sfl)}, {FL_U - FL_A}')
            assert e_ + cfg.get('upub', 80) < tu
            e_ = st.fill([('gap', 3)] + ufin, e_ + 1); assert e_ < tu, (e_, tu)
            st.fill(su4s, e_ + 1)
    assert e_ < utb - 62, (e_, utb)
    e_ = st.fit(fl, utb - 62, utb - 2)
    W.bw[utb].append(('lg', 'utw'))
    w = utb + 1; todo = [(s_, mat) for s_ in (6, 4, 5, 0, 1, 2, 3) for mat in range(2)]
    todo = [(s_, mat, i) for s_, mat in todo for i in range(1 + mat)]
    rdu = lambda x, b_: (lambda: p.lg(f'ds_read_b128 {vr(ut+4*b_,4)}, v{vub} offset:{512*(2*x[1]+x[2])+64*x[0]}', ('iu', x), r=(UT, UT + 2048)))
    allv = {x: [v for key, v in visit.items() if key[1:] == x[:2]] for x in todo}
    def pick(w_):
        while True:
            ok = [x for x in todo if all(v + 10 <= w_ or v >= w_ + cfg.get('injw', 20) for v in allv[x])]
            if ok: todo.remove(ok[0]); return ok[0], w_
            w_ += 1
    cur, w2 = pick(w + 8); b_ = 0
    st.fill([rdu(cur, 0)], w); w = w2
    while cur:
        nx, w2 = pick(w + 13) if todo else (None, 0)
        L = ([rdu(nx, 1 - b_)] if nx else []) + [lambda x=cur: p.wait(lg=[('iu', x)])] + [f'v_fmac_f32 v{accr(cur[0],cur[1],m)+x}, v{vs+2*m+cur[2]}, v{ut+4*b_+x}' for m in range(4) for x in range(4)]
        w = st.fill(L, w, cap=cfg.get('injcap', 2))
        assert w < (z3 if cur[0] >= 4 else done[6] - 12), (cur, w, z3)
        cur = nx; w = max(w + 1, w2); b_ = 1 - b_
    L = [rdg(6)] + [f'v_rcp_f32 v{vs+2*m}, v{vs+2*m+1}' for m in range(4)] + [f'v_mul_f32 v{vs+x}, {f32(-LOG2E)}, v{vs+x}' for x in (1, 3, 5, 7, 0, 2, 4, 6)]
    e_ = st.fill(L, w); assert e_ < win[6][0], e_
    k.injend = w
    st.at(win[5][1] + cfg.get('pb1', 40), pub_op(k, sWS, vpx, sfl, [('as', 6, m) for m in range(4)] + [('as', 5, m) for m in range(4)]))
    for s_ in order:
        L = epi(s_)
        if s_ == 4: L = L[:20] + su4 + L[20:]
        (st.fitp if cfg.get('pack', 1) else st.fit)(L, win[s_][0], win[s_][1] - (4 if s_ == 6 else 0))
    e_ = st.fill([f's_sub_u32 {sr(sfl)}, {sr(sfl)}, {FL_A - FL_A2}', ('gap', cfg.get('pb2', 40)), pub_op(k, sWS, vpx, sfl, [('as', s_, m) for s_ in (1, 3) for m in range(4)])] + su4b, win[3][1] + 1)
    assert e_ < tg, (e_, tg)
    L = [lambda i=i: p.lg(f'ds_read_b128 {vr(vx1+4*i,4)}, v{vxa+2} offset:{1024*i}', 'x1', r=(XL, XL + 16384), priv=True) for i in range(4)]
    L += [lambda: p.wait(vm=[('g', q) for q in range(NPART)])]
    L += F(f'v_add_f32 v{vg}, v{vg}, v{vg+1}\nv_add_f32 v{vg+2}, v{vg+2}, v{vg+3}\nv_add_f32 v{vg}, v{vg}, v{vg+2}') + rb(vg)
    L += [lambda: p.lg(f'ds_write_b32 v{vgo-1}, v{vg}', None, w=(GL, GL + 1024), priv=True)]
    L += [lambda t=t: p.lg(f'ds_read_b128 {vr(vg+4*t,4)}, v{vgo} offset:{64*t}', ('gl', t), r=(GL, GL + 1024), priv=True) for t in range(4)]
    L += [lambda: p.wait(lg=['x1'])]
    for i in range(16): L += F(f'v_lshlrev_b32 v{vf+2*i}, 16, v{vx1+i}\nv_and_b32 v{vf+2*i+1}, 0xffff0000, v{vx1+i}')
    L += F(f'v_mov_b32 v{vp+1}, 0') + [lambda: p.wait(lg=[('gl', 3)])]
    for t in range(4):
        for h in range(2):
            r_ = vsel + 6 * (t // 2) + 4 * (t & 1) + h
            L += F(f'v_cvt_pk_bf16_f32 v{r_}, v{vg+4*t+2*h}, v{vg+4*t+2*h+1}\nv_and_b32 v{r_}, v{r_}, v{T+2+h}')
    e_ = st.fill(L, max(tg + 110, pl2 + PD + 1)); assert e_ < zf + 150
    XJ = (3, 1, 2); XP = (0, 0, 1); XT = (0, 0, 4); XM = (2, 0, 2)
    tail = []
    def put(slot, o):
        if slot < N: st.at(slot, o)
        else: tail.append((slot, len(tail), o))
    xr = lambda x, i: acc4(XT[x] + 2 * (i & 1) + 1, XM[x] + (i >> 1))
    def addp(x, i):
        return [f'{MFMA} {vr(vf+8*i+4*t,4)}, {vr(vsel+6*(i&1)+2*t,4)}, {vr(xr(x,i),4)}, {vr(vf+8*i+4*t,4)}' for t in range(2)]
    xt = cfg.get('xt', ((75, 130, 165), (75, 132, 167), (50, 90, 97)))
    hint = cfg.get('hint', 0); ck = vd4 + 3
    X3 = lambda a_, b_: f'v_bitop3_b32 v{ck}, {a_}, v{b_}, v{b_+1} bitop3:0x96'
    for ps in range(2):
        L = []
        for t in range(4):
            L.append(('from', d4[(ps, 4 * ps + t)] + 3))
            for x in range(3):
                if XP[x] != ps: continue
                for m in range(2):
                    c = acc4(XT[x] + t, XM[x] + m); o = acc4(XT[x] + (t & ~1), XM[x] + m)
                    L += F(f'v_cvt_pk_bf16_f32 v{o+2*(t&1)}, v{c}, v{c+1}\nv_cvt_pk_bf16_f32 v{o+2*(t&1)+1}, v{c+2}, v{c+3}')
                    if t & 1:
                        L.append(op(lambda x=x, i=2 * m + t // 2, o=o: (p.ins(f's_add_u32 {sr(sxo+1)}, {sr(sxo)}, {4096 * x}'), p.vm(f'buffer_store_dwordx4 {vr(o,4)}, v{vl16}, {sr(sWS,4)}, {sr(sxo+1)} offen offset:{1024 * i} sc1', ('xs', x, i))), 'sW'))
                        L.append(('gap', cfg.get('xgap', (2, 0))[ps]))
                    if hint and x == 2: L.append(X3(sr(k.tok) if t == 0 and m == 0 else f'v{ck}', o + 2 * (t & 1)))
        if hint and ps == 1: L.append(op(lambda: (p.ins(f's_add_u32 {sr(sxo+1)}, {sr(sxo)}, 12288'), p.vm(f'buffer_store_dword v{ck}, v{vl4}, {sr(sWS,4)}, {sr(sxo+1)} offen sc1')), 'sd'))
        e_ = st.fill(L, d4[(ps, 4 * ps)] + 3, cap=cfg.get('xcap', (2, 5))[ps]); assert e_ < d4[(ps, 4 * ps + 3)] + xt[2 * ps][0]
    for x in range(3):
        e0 = d4[(XP[x], 4 * XP[x] + 3)]; vq_ = (vd4 + 2, vpx + 1, vp)[x]
        if x != 1: put(e0 + xt[x][0], pub_op(k, sWS, vpx, sfl + 1, [] if hint and x == 2 else [('xs', y, i) for y in range(3) if XP[y] == XP[x] for i in range(4)], 16 * XP[x], wg=False))
        sq_ = (sA4, sL4, sfl + 2)[x]
        i3, c3 = poll_ops(k, sWS, vq_, sq_, ('pl3', x), sfl + 3, wg=False, va=vp + 1)
        put(e0 + xt[x][1], op(lambda x=x, i3=i3, sq_=sq_: (p.ins(f's_xor_b32 {sr(sq_)}, {sr(sfl+1)}, {XJ[x] << 9}\ns_add_u32 {sr(sq_)}, {sr(sq_)}, {16 * XP[x]}'), i3()), 3))
        if x == 2:
            lds_ = f's_xor_b32 {sr(s2_)}, {sr(sxo)}, {XJ[x] << 16}\ns_add_u32 {sr(s2_)}, {sr(s2_)}, {4096 * x}\n' + '\n'.join(f'buffer_load_dwordx4 {vr(xr(2,i),4)}, v{vl16}, {sr(sWS,4)}, {sr(s2_)} offen offset:{1024 * i} sc1 ; cond' for i in range(4))
            if hint: lds_ += f'\ns_add_u32 {sr(s2_)}, {sr(s2_)}, 4096\nbuffer_load_dword v{ck}, v{vl4}, {sr(sWS,4)}, {sr(s2_)} offen sc1 ; cond'
            def look():
                L = k.lab('XL'); p.wait(vm=[('pl3', 2)])
                p.ins(f'v_cmp_ne_u32 vcc, {sr(k.tok)}, v{vp}\ns_mov_b32 {sr(sxo+1)}, 0\ns_cbranch_vccnz {L}\n{lds_}\ns_mov_b32 {sr(sxo+1)}, 1'); p.label(L)
            def again():
                L = k.lab('XA'); p.T('xa2')
                p.ins(f's_cmp_eq_u32 {sr(sxo+1)}, 1\ns_cbranch_scc1 {L}x\ns_mov_b32 {sr(sfl+3)}, 60000'); p.label(L)
                p.ins(f'buffer_load_dword v{vp}, v{vp+1}, {sr(sWS,4)}, {sr(sfl+2)} offen sc1 ; cond\ns_sub_u32 {sr(sfl+3)}, {sr(sfl+3)}, 1\ns_cmp_eq_u32 {sr(sfl+3)}, 0\ns_waitcnt vmcnt(0) ; cond\ns_cbranch_scc1 {L}y\nv_cmp_ne_u32 vcc, {sr(k.tok)}, v{vp}\ns_cbranch_vccnz {L}')
                p.label(L + 'y'); p.ins(lds_); p.label(L + 'x')
                if hint:
                    p.ins('s_waitcnt vmcnt(0)\n' + '\n'.join(X3(f'v{ck}', xr(2, i) + 2 * h) for i in range(4) for h in range(2)))
                    p.ins(f'v_cmp_ne_u32 vcc, {sr(k.tok)}, v{ck}\ns_add_u32 {sr(sxo+1)}, {sr(sxo+1)}, 2\ns_cmp_gt_u32 {sr(sxo+1)}, 60000\ns_cbranch_scc1 {L}z\ns_cbranch_vccnz {L}y')
                    p.label(L + 'z')
                p.T('xb2')
            assert d4[(0, 3)] + xt[1][2] + 4 < e0 + xt[x][2] < N and xt[x][0] < xt[x][2]
            put(e0 + xt[x][2], op(look, 8)); put(N, again)
            continue
        put(e0 + xt[x][2], f';@T xa{x}')
        put(e0 + xt[x][2], c3)
        put(e0 + xt[x][2], f';@T xb{x}')
        for i in range(4):
            f = lambda x=x, i=i: (p.ins(f's_xor_b32 {sr(s2_)}, {sr(sxo)}, {XJ[x] << 16}\ns_add_u32 {sr(s2_)}, {sr(s2_)}, {4096 * x}'), p.vm(f'buffer_load_dwordx4 {vr(xr(x,i),4)}, v{vl16}, {sr(sWS,4)}, {sr(s2_)} offen offset:{1024 * i} sc1', ('xc', x, i)))
            put(e0 + xt[x][2] + 1 + i, op(f, 3))
    ownf = lambda t, m: [f'v_fmac_f32 v{vf+16*m+4*t+e}, v{vg+4*t+e}, v{acc4(4+t,m)+e}' for e in range(4)]
    if cfg.get('tl2', 0):
        L = []
        for t in range(3): L += [('from', d4[(2, 4 + t)] + 3)] + ownf(t, 0) + ownf(t, 1)
        st.fill(L, d4[(2, 4)] + 3)
    def add01():
        p.wait(vm=[('xc', x, i) for x in range(2) for i in range(4)])
        if cfg.get('tl2', 0):
            mm = [addp(x, i)[t] for i, t in ((0, 0), (2, 0), (0, 1), (2, 1), (1, 0), (3, 0), (1, 1), (3, 1)) for x in range(2)]
            vv = ownf(3, 0) + ownf(3, 1)
            for n_, o in enumerate(mm):
                p.ins(o)
                if 3 <= n_ < 7: p.ins('\n'.join(vv[2 * (n_ - 3):2 * (n_ - 3) + 2]))
            return
        for x in range(2):
            for i in range(4):
                for o in addp(x, i): p.ins(o)
    st.last(N - 1, op(add01, 'M'))
    def aearly():
        for ts in range(ne0):
            for m in range(2):
                for j in range(2):
                    pre, main = aop(3, ts, j, m); pre(); main()
    def left():
        for o in k.left: o['pre'](); o['main']()
        p.ins(f'v_mov_b32 v{vdA}, v16')
    if k.ein:
        def aearly():
            for ts in range(ne0): chunk3(ts); p.ins(f's_add_u32 {sr(sCA + ts % NC)}, {sr(sCA + ts % NC)}, 65536')
        k.echk = p.bar
    dw = lambda: p.wait(vm=[('D', (3, 0, g), i) for g in range(2) for i in range(4)], lg='all')
    sm_ = dict(t=k.tail2, e=lambda: (dw(), p.T('e_a'), k.echk(), p.T('e_b')), a=aearly, l=left, w=lambda: p.ins(f';@WARM {sr(sw)} 0 4'), y=lambda: (dw(), k.ypub(), p.T('y_pub')))
    for c_ in cfg.get('seam', 'tweayl'): sm_[c_]()
    if 'y' not in cfg.get('seam', 'tweayl'): st.at(cfg.get('ys', 3), k.ypub)
    for x in cfg.get('from2', (1560,)): st.pre.setdefault(x, []).append(';@FROM')
    for x in cfg.get('warms', ()): st.pre.setdefault(x, []).append(f';@WARM {sr(sw)} 0 4')
    W.emit_early()
    for i, nm in tuple(cfg.get('marks', ())) + ((1, 'g3_m1'), (4 * 112, 'g3_s4'), (z3, 'g3_fin'), (pl1 + PD, 'p1a'), (pl1 + PD + 1, 'p1b'), (z4, 'g4_m1'), (pl2 + PD, 'p2a'), (pl2 + PD + 1, 'p2b'), (z4 + NE * 64, 'g4_L'), (zf, 'g4_fin')):
        st.pre.setdefault(i, []).insert(0, f';@T {nm}')
    st.emit()
    p.T('g4_end')
    def own():
        for i in (0, 2, 1, 3):
            m, q = divmod(i, 2)
            for t in range(2):
                for e in range(4): p.ins(f'v_fmac_f32 v{vf+8*i+4*t+e}, v{vg+8*q+4*t+e}, v{acc4(4+2*q+t,m)+e}')
    if not cfg.get('tl2', 0): tail += [(N - 1, 0, own)]
    for _, _, o in sorted(tail, key=lambda x: x[:2]): p.ins(o) if isinstance(o, str) else o()
    for i in range(4):
        p.ins(f's_waitcnt vmcnt({3 - i})')
        for o in addp(2, i): p.ins(o)
    def ost(i):
        if i: p.ins(f's_add_u32 {sr(sro)}, {sr(sro)}, 16384')
        p.wait(lg=[('o', i)])
        p.vm(f'buffer_store_dwordx4 {vr(vf+16*(i>>1)+4*(i&1),4)}, v{vro}, {sr(sOut,4)}, {sr(sro)} offen {cfg.get("ofl", "sc1")}')
    for i in range(4):
        m, q = divmod(i, 2); f_ = vf + 8 * i; x_ = vx1 + 4 * i
        for d in range(4): p.ins(f'v_cvt_pk_bf16_f32 v{x_+d}, v{f_+2*d}, v{f_+2*d+1}')
        p.ins(f'v_permlane16_swap_b32 v{x_}, v{x_+2}\nv_permlane16_swap_b32 v{x_+1}, v{x_+3}')
        p.lg(f'ds_write_b128 v{vxa+q}, {vr(x_,4)} offset:{2048*m}', None, w=(XL, XL + 16384), priv=True)
        if q:
            for h in range(2): p.lg(f'ds_read_b128 {vr(vf+16*m+4*h,4)}, v{vxa+2} offset:{2048*m+1024*h}', ('o', 2 * m + h), r=(XL, XL + 16384), priv=True)
        if i == 2 and cfg.get('tl2', 0): ost(0); ost(1)
    for i in range(2 if cfg.get('tl2', 0) else 0, 4): ost(i)
    k.st = st
    k.end()
    return k
```

```python
from kernels import *
from eng import *
LN2C = 0.6931471805599453
WS_XC4 = 0x4000000
WSZ = 0x8000000
OOB = 0x40000000
FL_A = WS_FL + 32768
FL_X = 0xE0000
FL_M = WS_FL + 5 * 32768; FL_U = 0xD8000; FL_A2 = 0x30000; FL_E = 0x38000
WS_XA = 0x2800000
WS_ST2 = 0x600000
WS_UT3 = 0x2C00000
FL_O = WS_FL; FL_J = WS_FL + 2 * 32768; FL_Y = WS_FL + 3 * 32768; FL_H = WS_FL + 4 * 32768
WS_KV = 0x500000; WS_MP8 = 0x20000; WS_TOK = WS_FL + 6 * 32768
XST = 132 * 1024
QKV = 128 * 1024; JT = 157 * 1024; GL2 = 158 * 1024; LB = 148 * 1024; LS = 156 * 1024
F = lambda txt: txt.split('\n')
rb = lambda r: F(f'v_cvt_pk_bf16_f32 {vr(r)}, {vr(r)}, {vr(r)}\nv_lshlrev_b32 {vr(r)}, 16, {vr(r)}')

class K4(K):
    def __init__(self, name):
        K.__init__(self, name, 256, 256, 256)
        it = self.p.items
        self.p = Prog2(); self.p.items = it
        self.S = Regs('s', 4, 94)
        self.lds = 160 * 1024
        self.nlab = 0
    def lab(self, s):
        self.nlab += 1
        return f'{s}{self.nlab}_{self.name}'
    def text(self):
        t = self.p.text()
        ev, errs, ep = self.p.events()
        errs += check_lds([ev]) + self.p.check_chains()
        for e in errs[:20]: print('VERIFY:', e)
        assert not errs, f'{len(errs)} verifier errors'
        rep = []
        out, n = fix_hazards(t.split('\n'), rep)
        self.nops = rep
        return '.p2align 8\n' + '\n'.join(out).replace(' ; M\n', '\n').replace(' ; cond\n', '\n')
    def desc(self, minv=0):
        return kdesc(self.name, 512, 102, 256)

def poll_gen(k, ld, tst, tag, scnt, wg, bar=True):
    p = k.p; sw = k.common['sw']
    def issue():
        if not wg: return p.vm(ld, tag)
        soff = ld.split(', ')[3].split(' ')[0]
        p.ins(f's_lshl_b32 {sr(scnt)}, {sr(sw)}, 28' + (f'\ns_add_u32 {sr(scnt)}, {sr(scnt)}, {soff}' if soff != '0' else ''))
        p.vm(ld.replace(f', {soff} offen', f', {sr(scnt)} offen'), tag)
    def check():
        L = k.lab('PL')
        p.wait(vm=[tag])
        if wg: p.ins(f's_cmp_lg_u32 {sr(sw)}, 0\ns_cbranch_scc1 {L}x')
        p.ins(f'{tst}\ns_cbranch_vccz {L}x\ns_mov_b32 {sr(scnt)}, 60000')
        p.label(L)
        p.ins(f'{ld} ; cond\ns_sub_u32 {sr(scnt)}, {sr(scnt)}, 1\ns_cmp_eq_u32 {sr(scnt)}, 0\ns_waitcnt vmcnt(0) ; cond\ns_cbranch_scc1 {L}x\n{tst}\ns_cbranch_vccnz {L}')
        p.label(L + 'x')
        if wg and bar: p.bar()
    return op(issue, 'ssm' if wg else 'm'), op(check, 7)

def poll_ops(k, sWS, vp, soff, tag, scnt, cmp=None, wg=True, va=None, bar=True):
    ld = f'buffer_load_dword {vr(vp)}, {vr(va or vp+1)}, {sr(sWS,4)}, {sr(soff) if soff is not None else 0} offen sc1'
    return poll_gen(k, ld, cmp or f'v_cmp_ne_u32 vcc, {sr(k.tok)}, {vr(vp)}', tag, scnt, wg, bar)

def poll4_ops(k, sWS, vd, va, tag, scnt, bar=True):
    ld = f'buffer_load_dwordx4 {vr(vd,4)}, {vr(va)}, {sr(sWS,4)}, 0 offen sc1'
    tst = f'v_bitop3_b32 v{vd}, v{vd}, v{vd+1}, {sr(k.tok)} bitop3:0x7e\nv_bitop3_b32 v{vd+2}, v{vd+2}, v{vd+3}, {sr(k.tok)} bitop3:0x7e\nv_or_b32 v{vd}, v{vd}, v{vd+2}\nv_cmp_ne_u32 vcc, 0, v{vd}'
    return poll_gen(k, ld, tst, tag, scnt, True, bar)

def pub_op(k, sWS, vt, soff, tags, imm=0, add=0, wg=True):
    p = k.p
    def f():
        p.ins(f'v_add_u32 {vr(vt)}, {sr(k.tok)}, v0' + (f'\nv_add_u32 {vr(vt)}, {add}, {vr(vt)}' if add else ''))
        if tags: p.wait(vm=tags)
        if tags and wg: p.bar()
        p.ins('s_mov_b64 exec, 1')
        p.vm(f'buffer_store_dword {vr(vt)}, v0, {sr(sWS,4)}, {sr(soff)} offen offset:{imm} sc1')
        p.ins('s_mov_b64 exec, -1')
    return op(f, 6)

def code_op(k, vt, vl16, sp, first=None):
    p = k.p
    L = k.lab('CT')
    p.ins(f's_getpc_b64 {sr(sp,2)}')
    p.label(L)
    p.ins(f's_min_u32 {sr(sp+2)}, {sr(sp+3)}, code_end-{first or L}' + (f'\ns_add_u32 {sr(sp+2)}, {sr(sp+2)}, {first}-{L}' if first else ''))
    p.ins(f's_add_u32 {sr(sp)}, {sr(sp)}, {sr(sp+2)}\ns_addc_u32 {sr(sp+1)}, {sr(sp+1)}, 0')
    p.ins(f'v_and_b32 v{vt}, 0x70, v{vl16}\nv_lshlrev_b32 v{vt}, 3, v{vt}')
    p.vm(f'global_load_dword a253, v{vt}, {sr(sp,2)}', 'dummy')

class WS_:
    def __init__(self, st, pool):
        self.st, self.p = st, st.p
        self.pool = {r: -10**6 for r in pool}; self.until = {}
        self.units = {}; self.nf = 0; self.early = []; self.groups = []
    def unit(self, u, lo, hi, dmas, e=0, wt=1):
        self.units[u] = dict(lo=lo, hi=hi, dmas=dmas, fr=None, lr=None, e=e, wt=wt)
    def rd(self, us, s, lr, text, tag, rng):
        f = lambda: self.p.lg(text, tag, r=rng)
        if s < 0: self.early.append((s, len(self.early), f))
        else: self.st.at(s, f)
        assert min(self.units[u]['lo'] for u in us) <= rng[0] and rng[1] <= max(self.units[u]['hi'] for u in us), (us, rng)
        for u in us:
            U = self.units[u]
            U['fr'] = s if U['fr'] is None else min(U['fr'], s)
            U['lr'] = lr if U['lr'] is None else max(U['lr'], lr)
    def group(self, frags, mf, LA, wait=True, vm=(), lg=(), kind='tr'):
        st, p = self.st, self.p
        s0 = st.n(); ids = [self.nf + i for i in range(len(frags))]; self.nf += len(frags)
        n = len(mf); per = 2 if kind == 'tr' else 1; nr = per * len(frags)
        while True:
            reg = []; pool = dict(self.pool)
            for i in range(len(frags)):
                s = s0 - LA + per * i * n // nr
                lu = s0 + max(x for x, m in enumerate(mf) if ('f', i) in m[1:])
                c = [r for r in pool if pool[r] <= s and lu < self.until.get(r, 10**9)]
                if not c: break
                r = min(c, key=lambda r: pool[r]); pool[r] = lu; reg.append(r)
            if len(reg) == len(frags): break
            LA -= 1; assert LA > (nr - 1) * n // nr + 3, ('fragment pool too small', s0)
        self.pool = pool
        for c, a, b in mf:
            st.mfma(c, reg[a[1]] if isinstance(a, tuple) else a, reg[b[1]] if isinstance(b, tuple) else b)
        for i, fr in enumerate(frags):
            u, ar, base, off = fr[:4]
            for h in range(per):
                s = s0 - LA + (per * i + h) * n // nr
                o = off + 2048 * h
                assert 0 <= o < 65536
                if kind == 'tr': self.rd([u], s, s0, f'ds_read_b64_tr_b16 {vr(reg[i] + 2 * h,2)}, {vr(ar)} offset:{o}', ('W', ids[i], h), (base + o, base + o + 2048))
                else: self.rd([u], s, s0, f'ds_read_b128 {vr(reg[i],4)}, {vr(ar)} offset:{o}', ('W', ids[i], 1), (base + o, base + o + (fr[4] if len(fr) > 4 else 1024)))
        self.groups.append(dict(s0=s0, ids=ids, wait=wait, vm=list(vm), lg=list(lg)))
        return s0
    def finish_waits(self):
        g = self.groups; i = 0
        while i < len(g):
            j = i + 1
            while j < len(g) and not g[j]['wait']: j += 1
            lg = [('W', f, 1) for x in g[i:j] for f in x['ids']] + [t for x in g[i:j] for t in x['lg']]; vm = [t for x in g[i:j] for t in x['vm']]
            self.st.before(g[i]['s0'], lambda lg=lg, vm=vm: self.p.wait(vm=vm or None, lg=lg))
            i = j
    def dma_ops(self, bars, pre_done=()):
        st, p = self.st, self.p
        ops = []; bw = {b: [] for b in bars}
        order = sorted(self.units, key=lambda u: self.units[u]['fr'])
        for n_, u in enumerate(order):
            U = self.units[u]
            tags = [('D', u, i) for i in range(len(U['dmas']))]
            if U['fr'] < 0 or U.get('vis'): continue
            if U['fr'] >= st.n(): dl = U['fr']
            else:
                dl = max(b for b in bars if b < U['fr'])
                bw[dl] += tags
            if u in pre_done: continue
            e = U['e']
            for v in order[:n_]:
                X = self.units[v]
                if X['lo'] < U['hi'] and U['lo'] < X['hi'] and X['lr'] >= 0:
                    e = max(e, min([b for b in bars if b >= X['lr']] + [st.n()]) + 1)
            for i, (pre, main) in enumerate(U['dmas']):
                ops.append(dict(e=e, dl=dl, pre=pre, main=main, id=(u, i), wt=U['wt']))
        for U in self.units.values():
            if U.get('force'): bw[min(b for b in bars if b >= U['lr'])].append(('lg', U['force']))
        self.bw = bw
        for b in bars:
            def f(b=b):
                x = self.bw[b]
                lgs = [t[1] for t in x if t[0] == 'lg']; vms = [t for t in x if t[0] != 'lg']
                if x: p.wait(vm=vms or None, lg=lgs or None)
                p.bar()
            st.last(b, op(f, 2))
        return ops
    def place_bars(self, bars, pre_done, target):
        bars = set(bars); n = self.st.n()
        order = sorted(self.units, key=lambda u: self.units[u]['fr'])
        for n_, u in enumerate(order):
            U = self.units[u]
            if U['fr'] < 0 or U.get('vis') or U['fr'] >= n: continue
            pl = max([X['lr'] for X in (self.units[v] for v in order[:n_]) if X['lo'] < U['hi'] and U['lo'] < X['hi']] + [-1])
            def win(B):
                e = -20 if u in pre_done else max(U['e'], min([b for b in B if b >= pl] + [10**6]) + 1 if pl >= 0 else 0)
                return max([b for b in B if b < U['fr']] + [-10**6]) - e
            for _ in range(2):
                if win(bars) >= target(U['fr']): break
                c = [x for x in (U['fr'] - 1, pl) if x >= 0 and x not in bars]
                if not c: break
                x = max(c, key=lambda x: win(bars | {x}))
                if win(bars | {x}) >= win(bars) + 8 or win(bars) < 16: bars.add(x)
        return sorted(bars)
    def emit_early(self):
        for _, _, f in sorted(self.early, key=lambda x: x[:2]): f()

def zig(n, nm, flip):
    out = []
    for mi in range(nm):
        m = nm - 1 - mi if flip else mi
        out += [(m, j) for j in (range(n) if mi % 2 == 0 else range(n - 1, -1, -1))]
    return out

def g3_early(k, s0, s1, sv, T, oob):
    p = k.p; C = k.common; sw = C['sw']; vl = 0; vdA, vdB = 16, 11
    L = F(f'v_lshrrev_b32 v{T}, 3, v{vl}\nv_bfe_u32 v{T+1}, v{T}, 1, 2\nv_bfe_u32 v{T+2}, v{vl}, 1, 2\nv_xor_b32 v{T+1}, v{T+1}, v{T+2}')
    L += F(f's_lshl_b32 {sr(s0)}, {sr(sw)}, 3\nv_add_u32 v{T}, {sr(s0)}, v{T}\nv_mul_u32_u24 v{T}, 7168, v{T}\nv_and_b32 v{T+2}, 1, v{vl}\nv_lshl_add_u32 v{T}, v{T+2}, 4, v{T}')
    L += F(f's_and_b32 {sr(s0)}, s2, 7\ns_mul_i32 {sr(s0)}, {sr(s0)}, 896\nv_add_u32 v{T}, {sr(s0)}, v{T}\nv_lshlrev_b32 v{T+2}, 5, v{T+1}')
    L += F(f's_and_b32 {sr(s1)}, s2, 24\ns_lshl_b32 {sr(s0)}, {sr(s1)}, 5\nv_add3_u32 v{vdA}, v{T}, v{T+2}, {sr(s0)}')
    L += F(f's_lshr_b32 {sr(s0)}, 0x0b070602, {sr(s1)}\ns_and_b32 {sr(s0)}, {sr(s0)}, 15\ns_lshl_b32 {sr(s0)}, {sr(s0)}, 6\nv_add_u32 v{T+2}, {sr(s0)}, v{T+2}')
    L += F(f's_lshr_b32 {sr(s0)}, 0x15140706, {sr(s1)}\ns_and_b32 {sr(s0)}, {sr(s0)}, 31\ns_lshl_b32 {sr(s0)}, {sr(s0)}, 5\nv_mov_b32 v{T+3}, {sr(s0)}')
    L += [f'v_cmp_gt_u32 vcc, 2, v{T+1}\nv_cndmask_b32 v{T+2}, v{T+3}, v{T+2}, vcc', f'v_add_u32 v{vdB}, v{T}, v{T+2}']
    if oob: L += F(f'v_add_u32 v{T+1}, 1, v{T+1}\nv_lshrrev_b32 v{T+1}, 2, v{T+1}\nv_lshl_add_u32 v{vdB}, v{T+1}, 30, v{vdB}')
    def dmas(ts, g):
        u = (3, ts, g); lo = 65536 * g + k.perm[g][ts] * 16384; out = []
        for jq in range(2):
            for mat in range(2):
                dst = lo + mat * 8192 + jq * 4096
                pre = lambda dst=dst, jq=jq: p.ins(f's_mov_b32 {sr(sv)}, {(2 * ts + jq) * 32 * 7168}\ns_add_u32 m0, {sr(C["sWL"])}, {dst}')
                main = lambda dst=dst, mat=mat, i=2 * jq + mat: p.vm(f'buffer_load_dwordx4 v{(vdA, vdB)[g]}, {sr((C["sWg"], C["sWu"])[mat],4)}, {sr(sv)} offen lds', ('D', u, i), w=(dst, dst + 4096))
                out.append((op(pre, 2), main))
        return u, lo, lo + 16384, out
    return L, dmas

def g3_mid(k, s0, s1, T):
    p = k.p; C = k.common; sw, sWL, sWg, sWu, sAb = C['sw'], C['sWL'], C['sWg'], C['sWu'], C['sAb']; sJ, sMk = C['dead']; vl = 0; wa = 2; vtb = k.vtb
    L = F(f'v_lshrrev_b32 v{T+1}, 2, v{vl}\nv_bfe_u32 v{T}, v{T+1}, 1, 2\nv_lshlrev_b32 v{T}, 5, v{T}\nv_lshl_add_u32 v{T}, v{T+1}, 7, v{T}\nv_and_b32 v{T+1}, 3, v{vl}\nv_lshl_add_u32 v{wa}, v{T+1}, 3, v{T}') + [f'v_xor_b32 v{wa+t}, {t<<5}, v{wa}' for t in range(1, 4)] + [f'v_add_u32 v{wa+4+t}, 65536, v{wa+t}' for t in range(3)]
    L += F(f's_lshr_b32 {sr(s0)}, s2, 5\ns_lshl_b32 {sr(s0)}, {sr(s0)}, 19\ns_lshr_b32 {sr(s1)}, {sr(sw)}, 1\ns_lshl_b32 {sr(s1)}, {sr(s1)}, 18\ns_add_u32 {sr(s0)}, {sr(s0)}, {sr(s1)}\ns_and_b32 {sr(s1)}, {sr(sw)}, 1\ns_lshl_b32 {sr(s1)}, {sr(s1)}, 15\ns_add_u32 {sr(s0)}, {sr(s0)}, {sr(s1)}\ns_add_u32 {sr(sAb)}, {sr(s0)}, {WS_Y}')
    L += [f's_bitcmp1_b32 s2, 3\ns_cselect_b64 {sr(sJ,2)}, {sr(sWu,2)}, {sr(sWg,2)}', f's_mov_b32 {sr(sJ+2)}, {DM * FF * 2}']
    for r_ in range(4):
        m = lanemask(lambda l: ((l & 7) >> 1) == r_); L += F(f's_mov_b32 {sr(sMk+2*r_)}, 0x{m & 0xffffffff:08x}\ns_mov_b32 {sr(sMk+2*r_+1)}, 0x{m >> 32:08x}')
    M_ = [lambda: p.wait(vm=[('tb', q) for q in range(NPART)])]
    for i in range(2): M_ += F(f'v_add_f32 v{vtb+i}, v{vtb+i}, v{vtb+2+i}\nv_add_f32 v{vtb+4+i}, v{vtb+4+i}, v{vtb+6+i}\nv_add_f32 v{vtb+i}, v{vtb+i}, v{vtb+4+i}')
    M_ += F(f'v_lshrrev_b32 v{T}, 5, v{vl}\nv_xor_b32 v{T+1}, 1, v{T}\nv_cvt_f32_u32 v{T+1}, v{T+1}')
    for rep in range(2):
        M_ += F(f'v_cvt_pk_bf16_f32 v{vtb+2}, v{vtb}, v{vtb+1}\nv_lshlrev_b32 v{vtb}, 16, v{vtb+2}\nv_and_b32 v{vtb+1}, 0xffff0000, v{vtb+2}')
        if rep == 0: M_ += F(f'v_add_f32 v{vtb}, v{vtb}, v{T+1}\nv_add_f32 v{vtb+1}, v{vtb+1}, v{T+1}')
    M_ += F(f'v_lshrrev_b32 v{vtb+3}, 16, v{vtb+2}\nv_and_b32 v{vtb+2}, 0xffff, v{vtb+2}\ns_add_u32 {sr(s0)}, {sr(sWL)}, {LB}\nv_lshlrev_b32 v{T}, 8, v{T}\nv_lshl_add_u32 v{T}, v{vl}, 3, v{T}\nv_add_u32 v{T}, {sr(s0)}, v{T}')
    M_ += [lambda: p.lg(f'ds_write_b64 v{T}, {vr(vtb+2,2)}', None, w=(LB, LB + 4096), priv=True), lambda: p.lg(f'ds_write_b64 v{T}, {vr(vtb,2)} offset:256', None, w=(LB, LB + 4096), priv=True)]
    return L, M_

def k_g34(cfg, k):
    p, S = k.p, k.S; MX[0] = cfg.get('mx', 0)
    sWS, sWg, sWu, sWd, sOut, sw, sWL = (k.common[x] for x in ('sWS', 'sWg', 'sWu', 'sWd', 'sOut', 'sw', 'sWL'))
    sm = S.alloc('mt'); sq = S.alloc('q'); sx = S.alloc('xcd'); s0 = S.alloc('t0'); s1 = S.alloc('t1'); s2_ = S.alloc('t2')
    sLead = S.alloc('lead'); sAb = k.common['sAb']; sO = S.alloc('so', 3); sv = S.alloc('vm', 2); sst = S.alloc('st')
    NC = 8; sCW = S.alloc('cw', NC); sCA = S.alloc('ca', NC); sfl = S.alloc('fl', 4)
    vl16, wa, vdA, vdB, vub, vt, vs, ut, ACC = 1, 2, 10, 11, 12, 13, 16, 24, 32
    POS = {6: 0, 4: 1, 5: 2, 0: 3, 1: 4, 2: 5, 3: 6}
    accr = lambda s_, g, m: ACC + 32 * POS[s_] + 16 * g + 4 * m
    DAS = 5; AB = A0; WB = A0 + 160; R = 6
    UT = 128 * 1024; GL = UT + 2048; XL = XST
    lf = 'sc1'
    vl = 0
    assert MBS[0] == 32768
    st = Stream(p); W = WS_(st, [WB + 4 * i for i in range(R)])
    n3 = 16; FS = 4
    done3 = set()
    def lead3(ts):
        if ts < 4 or cfg.get('nolead3'): return ts
        return ts + 4 if ts + 4 < n3 else 4 + ts % 4
    def chunk3(ts):
        if ts in done3: return
        done3.add(ts)
        cw, ca = sCW + ts % NC, sCA + ts % NC; lc = lead3(ts)
        if lc == ts: p.ins(f's_mov_b32 {sr(cw)}, {ts * 64 * 7168}\ns_add_u32 {sr(ca)}, {sr(sAb)}, {ts * 2048}')
        else: p.ins(f's_cmp_eq_u32 {sr(sLead)}, {ts % 4}\ns_cselect_b32 {sr(ca)}, {lc}, {ts}\ns_mul_i32 {sr(cw)}, {sr(ca)}, {64 * 7168}\ns_lshl_b32 {sr(ca)}, {sr(ca)}, 11\ns_add_u32 {sr(ca)}, {sr(ca)}, {sr(sAb)}')
    def dma(u, i, chunk, ts, cw, srd, vo, dst, goff):
        def pre():
            chunk(ts)
            p.ins(f's_add_u32 m0, {sr(sWL)}, {dst}')
            if goff: p.ins(f's_add_u32 {sr(sv)}, {sr(cw)}, {goff}')
        main = lambda: p.vm(f'buffer_load_dwordx4 v{vo}, {sr(srd,4)}, {sr(sv if goff else cw)} offen lds', ('D', u, i), w=(dst, dst + 4096))
        return op(pre, 2 if goff else 1), main
    nl = cfg.get('nolate', 1)
    sw3 = lambda g, i: 65536 * g + k.perm[g][i % 4] * 16384
    lo3 = lambda ts, g: sw3(1, 0) if nl and (ts, g) == (n3 - 1, 0) else sw3(g, ts)
    for ts in range(n3):
        for g, (vo, base) in enumerate(((vdA, 0), (vdB, 65536))):
            u = (3, ts, g); lo = lo3(ts, g)
            W.unit(u, lo, lo + 16384, [dma(u, 2 * jq + mat, chunk3, ts, sCW + ts % NC, (sWg, sWu)[mat], vo, lo + mat * 8192 + jq * 4096, jq * 32 * 7168) for jq in range(2) for mat in range(2)])
    bl = cfg.get('bl', 0)
    ab3 = lambda ts, j, m: (A0 + 188 if nl and ts == n3 - 1 else A0 + 220 if bl and ts == n3 - 2 else AB + (ts % DAS) * 32) + (j * 4 + m) * 4
    seenA = set(); firstA = {}; lastA = {}; firstM = {}; NP = k.NP
    LA = cfg.get('LA', 18)
    def grp(ph, ts, u, ar, base, off, acc, ab, ms=(0, 1, 2, 3), la=None):
        fr = [(u, ar, base, off + j * 4096) for j in range(2)]
        mf = [(acc(ms[m]), ('f', j), ab(ts, j, ms[m])) for m, j in zig(2, len(ms), len(W.groups) % 2)]
        vm = [('A', ph, ts, j, m) for j in range(2) for m in ms if (ph, ts, m) not in seenA]
        seenA.update((ph, ts, m) for m in ms)
        s = W.group(fr, mf, la or LA, vm=vm, wait=len(ms) == 4 or len(W.groups) % 2 == 0 or not cfg.get('w2', 1))
        for m in ms: firstM.setdefault((ph, ts, m), s)
        firstA.setdefault((ph, ts), s); lastA[(ph, ts)] = s + len(mf) - 1
        return s
    def grp3(ts, s_, mat, ms=(0, 1, 2, 3), la=None):
        g = 0 if s_ < 4 else 1
        hi = lo3(ts, g) // 65536
        return grp(3, ts, (3, ts, g), wa + 4 * hi + s_ % 4, 65536 * hi, lo3(ts, g) % 65536 + mat * 8192, lambda m: accr(s_, mat, m), ab3, ms, la)
    visit = {}
    def part(ts, slots):
        for s_ in slots:
            for mat in range(2): visit[(ts, s_, mat)] = grp3(ts, s_, mat)
    for r_ in range(6):
        if NP: W.pool[A0 + 188 + 4 * r_] = -10**6; W.until[A0 + 188 + 4 * r_] = 112 * NP + 24
    for ms in ((0, 1), (2, 3)):
        for ts in range(NP):
            for s_ in (4, 5, 6, 0, 1, 2, 3):
                for mat in range(2): grp3(ts, s_, mat, ms, cfg.get('LAh', 16))
    B_, A_ = (4, 5, 6), (0, 1, 2, 3); zb0 = None
    for ts in range(NP, n3 - FS - 2 - 2 * bl): part(ts, B_ + A_)
    if bl: part(8, B_); part(9, B_); zb0 = st.n(); part(8, A_); part(10, B_); part(11, B_); zb = st.n(); part(9, A_)
    elif nl: part(n3 - FS - 2, B_); part(n3 - FS - 1, B_); zb = st.n(); part(n3 - FS - 2, A_)
    else: part(n3 - FS - 2, B_ + A_); part(n3 - FS - 1, B_)
    Ss = list(range(n3 - FS, n3))
    done = {}
    def pair(s_, sts):
        for ts in sts:
            for mat in range(2): e = grp3(ts, s_, mat)
        done[s_] = e + 7
    def late(a_, b_):
        if nl: pair(a_, Ss); pair(b_, Ss)
        else: pair(a_, Ss[:-1]); pair(b_, Ss[:-1]); pair(a_, Ss[-1:]); pair(b_, Ss[-1:])
    if not cfg.get('mvA', 1): part(n3 - FS - 1, (0, 1, 2, 3))
    z3 = st.n()
    late(6, 4)
    if bl: part(10, A_)
    pair(5, Ss)
    if cfg.get('mvA', 1):
        part(n3 - FS - 1, (0, 1, 2, 3)); late(0, 1)
    else:
        pair(0, Ss); pair(1, Ss)
    pair(2, Ss); pair(3, Ss)
    z4 = st.n()
    n4 = 14; FS4 = cfg.get('FS4', 4); NE = 6
    acc4 = lambda t, m: 64 + (t * 4 + m) * 4
    vd4, vp, vpx, vro, vxa, vgo, vl4, vsel, vg = 32, 36, 38, 40, 42, 46, 47, 52, 240
    sA4 = S.alloc('a4'); sro = S.alloc('ro'); sxo = S.alloc('xo', 2); sg4 = S.alloc('g4'); sst4 = S.alloc('st4'); sxl = S.alloc('xl'); sL4 = S.alloc('l4'); spf = S.alloc('pf')
    E = [7 * g + c for g in range(2) for c in (1, 3, 5)]; Lt = [7 * g + c for g in range(2) for c in (0, 2, 4, 6)]
    def lead4(ts):
        lst, i, P_ = (E, ts, 3) if ts < NE else (Lt, ts - NE, 4)
        if cfg.get('nolead4'): return lst[i], lst[i], 0
        return lst[i], lst[(i + P_) % len(lst)], i % P_
    done4 = set()
    def chunk4(ts):
        if ts in done4: return
        done4.add(ts)
        cw, ca = sCW + ts % NC, sCA + ts % NC; nat, lc, ld = lead4(ts)
        if nat == lc: p.ins(f's_mov_b32 {sr(cw)}, {nat << 17}\ns_add_u32 {sr(ca)}, {sr(sA4)}, {nat << 11}')
        else: p.ins(f's_cmp_eq_u32 {sr(sL4)}, {ld}\ns_cselect_b32 {sr(ca)}, {lc}, {nat}\ns_lshl_b32 {sr(cw)}, {sr(ca)}, 17\ns_lshl_b32 {sr(ca)}, {sr(ca)}, 11\ns_add_u32 {sr(ca)}, {sr(ca)}, {sr(sA4)}')
    s4t = [(1, 1), (1, 2), (1, 3), (0, 3), (0, 0), (0, 1), (0, 2), (1, 0)] if nl else [(1, i) for i in range(4)] + [(0, i) for i in range(4)]
    slot4 = lambda ts: sw3(*s4t[ts % 8])
    for ts in range(n4):
        for g in range(2):
            u = (4, ts, g); lo = slot4(ts) + g * 8192
            W.unit(u, lo, lo + 8192, [dma(u, jq, chunk4, ts, sCW + ts % NC, sWd, vd4 + g, lo + jq * 4096, jq * 32 * 2048) for jq in range(2)])
    bufs = ([] if bl else [(A0 + 220, 0)]) + [(ab3(ts, 0, 0), lastA[(3, ts)] + 1) for ts in range(n3 - DAS - 1 - bl, n3)] if nl else [(A0 + 188, 0), (A0 + 220, 0)] + [(AB + 32 * (ts % DAS), lastA[(3, ts)] + 1) for ts in range(n3 - DAS, n3)]
    NB = len(bufs)
    ab4 = lambda ts, j, m: bufs[ts % NB][0] + (j * 4 + m) * 4
    def grp4(ts, t, ms=(0, 1, 2, 3), la=None):
        g = t // 4; base = slot4(ts) // 65536 * 65536
        return grp(4, ts, (4, ts, g), wa + (4 if base else 0) + t % 4, base, slot4(ts) - base + g * 8192, lambda m: acc4(t, m), ab4, ms, la)
    for r_ in range(64, 192, 4): st.touched.discard(r_)
    for ts in range(n4 - FS4):
        for t in range(8): grp4(ts, t)
    zf = st.n()
    d4 = {}
    for ts in range(n4 - FS4, n4):
        for t in range(4): d4[(0, t)] = grp4(ts, t) + 7
    for r_ in range(16, 32, 4): W.pool[r_] = zf
    for ps, ms in ((1, (2, 3)), (2, (0, 1))):
        for ts in range(n4 - FS4, n4):
            for t in range(4, 8): d4[(ps, t)] = grp4(ts, t, ms, cfg.get('LAh', 16)) + 3
    N = st.n()
    W.finish_waits()
    bars = set()
    fr_ = lambda *u: W.units[u]['fr'] - 1
    if nl:
        for ts in range(1, n3 - FS - 1):
            if not (bl and ts == 9): bars.add(fr_(3, ts, 1))
        if bl: bars |= {zb0 - 8, fr_(3, 10, 0), lastA[(3, 10)] - 7}
        bars |= {zb - 8, fr_(3, n3 - FS, 1), fr_(3, n3 - 2, 1), fr_(3, n3 - FS - 1, 0), done[5] - 7, fr_(3, n3 - 1, 0), z4 - 7}
    else:
        for ts in range(1, n3 - FS): bars.add(fr_(3, ts, 1))
        bars |= {z3, fr_(3, n3 - 1, 1), fr_(3, n3 - 1, 0), done[5] + 1, z4 + 1, lastA[(3, n3 - FS - 1)] + 1}
    for ts in range(NP - 1): bars.add(56 * (NP + ts + 1) - 4)
    for ts in range(0, n4 - FS4, cfg.get('BS4', 2)): bars.add(fr_(4, ts, 0))
    for u in cfg.get('fb4', ((n4 - FS4, 0), (n4 - FS4 + 2, 0), (n4 - FS4, 1))): bars.add(fr_(4, *u))
    bars = sorted(bars)
    k.bars = bars
    extra = []
    def X(e, dl, main, pre=None): extra.append(dict(e=e, dl=dl, main=main, pre=pre, id='x'))
    PD = cfg.get('pd', 40)
    T = ut
    set0 = F(f's_lshr_b32 {sr(s0)}, s2, 5\ns_lshl_b32 {sr(s0)}, {sr(s0)}, 12\ns_add_u32 {sr(sfl+2)}, {sr(s0)}, {FL_Y}\nv_and_b32 v{vt+2}, 31, v{vl}\nv_lshlrev_b32 v{vt+2}, 7, v{vt+2}')
    set1 = F(f's_and_b32 {sr(sx)}, s2, 7\ns_bfe_u32 {sr(sq)}, s2, 0x20003\ns_lshr_b32 {sr(sm)}, s2, 5\ns_add_u32 {sr(sLead)}, {sr(sq)}, {sr(sm)}\ns_and_b32 {sr(sLead)}, {sr(sLead)}, 3\ns_lshl_b32 {sr(s0)}, {sr(sm)}, 1') + F(f's_lshr_b32 {sr(s1)}, {sr(sw)}, 1\ns_add_u32 {sr(s0)}, {sr(s0)}, {sr(s1)}\ns_lshl_b32 {sr(sst)}, {sr(s0)}, 3\ns_and_b32 {sr(s2_)}, {sr(sw)}, 1\ns_add_u32 {sr(sst)}, {sr(sst)}, {sr(s2_)}') + F(f's_lshl_b32 {sr(sfl)}, s2, 7\ns_lshl_b32 {sr(s0)}, {sr(sw)}, 28\ns_add_u32 {sr(sfl)}, {sr(sfl)}, {sr(s0)}\ns_add_u32 {sr(sfl)}, {sr(sfl)}, {FL_U}\ns_lshl_b32 {sr(s0)}, s2, 2\ns_add_u32 {sr(s0)}, {sr(s0)}, {sr(sw)}\ns_lshl_b32 {sr(s0)}, {sr(s0)}, 7\ns_add_u32 {sr(sfl+1)}, {sr(s0)}, {FL_X}')
    set1 += F(f's_add_u32 {sr(s0)}, {sr(sWL)}, {LB}') + F(f'v_bfe_u32 v{T}, v{vl}, 3, 1\nv_lshlrev_b32 v{T}, 9, v{T}\nv_and_b32 v{T+1}, 1, v{vl}\nv_lshl_add_u32 v{T}, v{T+1}, 8, v{T}\nv_lshrrev_b32 v{T+1}, 4, v{vl}\nv_lshl_add_u32 v{T}, v{T+1}, 6, v{T}\nv_add_u32 v{vt+1}, {sr(s0)}, v{T}') + F(f's_bfe_u32 {sr(s0)}, s2, 0x20004\ns_lshl_b32 {sr(s0)}, {sr(s0)}, 8\nv_and_b32 v{T}, 15, v{vl}\nv_lshl_add_u32 v{T}, v{T}, 4, {sr(s0)}') + [f'v_cmp_gt_u32 vcc, 896, v{T}\nv_mov_b32 v{T+2}, {OOB}\nv_mul_u32_u24 v{T+1}, {16 * 7168}, v{T+1}\nv_cndmask_b32 v{T}, v{T+2}, v{T}, vcc'] + F(f's_lshr_b32 {sr(s0)}, s2, 6\ns_lshl_b32 {sr(s0)}, {sr(s0)}, 2\ns_add_u32 {sr(s0)}, {sr(s0)}, {sr(sw)}\ns_mul_i32 {sr(s0)}, {sr(s0)}, {64 * 7168}\ns_mul_i32 {sr(s1)}, {sr(sx)}, 896\ns_add_u32 {sr(s0)}, {sr(s0)}, {sr(s1)}\nv_add3_u32 v{vt}, v{T}, v{T+1}, {sr(s0)}')
    setup = F(f's_lshl_b32 {sr(sO)}, {sr(sq)}, 12\ns_lshl_b32 {sr(s1)}, {sr(sq)}, 3\ns_lshr_b32 {sr(s0)}, 0x0b070602, {sr(s1)}\ns_and_b32 {sr(s0)}, {sr(s0)}, 15\ns_lshl_b32 {sr(sO+1)}, {sr(s0)}, 10')
    setup += F(f's_lshr_b32 {sr(s0)}, {sr(sq)}, 1\ns_mul_i32 {sr(s0)}, {sr(s0)}, {7 * 1024}\ns_and_b32 {sr(s1)}, {sr(s1)}, 8\ns_add_u32 {sr(s0)}, {sr(s0)}, {sr(s1)}\ns_add_u32 {sr(sO+2)}, {sr(s0)}, {3 * 1024}')
    setup += F(f's_mul_i32 {sr(s0)}, {sr(sx)}, {14*1024}\ns_mul_i32 {sr(s1)}, {sr(sst)}, {MBS[1]}\ns_add_u32 {sr(s0)}, {sr(s0)}, {sr(s1)}\ns_add_u32 {sr(s0)}, {sr(s0)}, {WS_ACT}') + [f's_add_u32 {sr(sO+i)}, {sr(sO+i)}, {sr(s0)}' for i in range(3)]
    setup += F(f's_lshl_b32 {sr(sst)}, {sr(sm)}, 2\ns_add_u32 {sr(sst)}, {sr(sst)}, {sr(sw)}\ns_lshl_b32 {sr(sst)}, {sr(sst)}, 14\ns_add_u32 {sr(sst)}, {sr(sst)}, {WS_ST2}\nv_and_b32 v{vub}, 0x300, v{vl16}\nv_add_u32 v{vub}, v{vub}, v{vl16}')
    SA = A0 + 188
    th = cfg.get('th', (115, 430)); tb_ = cfg.get('ub', (70, 170, 280, 385)); UD = cfg.get('ud', 95)
    def stat(hf):
        for i in range(4):
            for h in range(2):
                pre = op(lambda i=i: p.ins(f's_add_u32 {sr(sv+1)}, {sr(sst)}, {8192 * hf + 2048 * i}'), 1)
                X(th[hf], th[hf] + 70, lambda i=i, h=h: p.vm(f'buffer_load_dwordx4 {vr(SA+8*i+4*h,4)}, v{vub}, {sr(sWS,4)}, {sr(sv+1)} offen offset:{256*h} {lf}', ('st', hf, i, h)), pre)
        fl = [lambda: p.wait(vm=[('st', hf, i, h) for i in range(4) for h in range(2)])]
        for i in range(4):
            if hf == 0 and i == 0: fl += [f'v_accvgpr_read_b32 v{vs+x}, {vr(SA+x)}' for x in range(8)]
            else: fl += [f'v_accvgpr_read_b32 v{ut+x}, {vr(SA+8*i+x)}' for x in range(8)] + [f'v_add_f32 v{vs+x}, v{vs+x}, v{ut+x}' for x in range(8)]
        if hf == 0: return fl
        for sw_, n_ in ((32, 4), (16, 2)):
            fl += [('gap', 1)] + [f'v_permlane{sw_}_swap_b32 v{vs+x}, v{vs+n_+x}' for x in range(n_)] + [f'v_add_f32 v{vs+x}, v{vs+x}, v{vs+n_+x}' for x in range(n_)]
        b = vs
        fl += F(f'v_mul_f32 v{b}, {f32(1/1024)}, v{b}\nv_mul_f32 v{b+1}, {f32(1/1024)}, v{b+1}\nv_fma_f32 v{b+1}, -v{b}, v{b}, v{b+1}\nv_max_f32 v{b+1}, 0, v{b+1}') + rb(b + 1) \
              + [f'v_add_f32 v{b+1}, {f32(1e-5)}, v{b+1}'] + rb(b + 1) + [f'v_sqrt_f32 v{b+1}, v{b+1}'] + rb(b) + rb(b + 1) + [f'v_sub_f32 v{b}, 0, v{b}']
        for sw_, n_ in ((16, 2), (32, 4)):
            fl += [f'v_mov_b32 v{vs+n_+x}, v{vs+x}' for x in range(n_)] + [('gap', 1)] + [f'v_permlane{sw_}_swap_b32 v{vs+x}, v{vs+n_+x}' for x in range(n_)]
        return fl + F(f'v_lshrrev_b32 v{vub}, 8, v{vl16}\nv_lshlrev_b32 v{vub}, 4, v{vub}\nv_add_u32 v{vub}, {UT}, v{vub}')
    sJ, sMk, uc, UDR = k.common['dead'][0], k.common['dead'][1], A0 + 184, A0 + 220
    mf_ = lambda d, a_, b_, c='0': op(lambda: p.ins(f'{MFMA} {vr(d,4)}, {vr(a_,4)}, {vr(b_,4)}, {c}'), 'M')
    def burst(bi):
        for i in range(4):
            pre = op(lambda i=i: p.ins(f's_mov_b32 {sr(sv+1)}, {7168 * (4 * bi + i)}'), 1)
            X(tb_[bi], tb_[bi] + 30, lambda i=i: p.vm(f'buffer_load_dwordx4 {vr(UDR+16*(bi&1)+4*i,4)}, v{vt}, {sr(sJ,4)}, {sr(sv+1)} offen {cfg.get("ufl", "")}', ('ud', bi, i)), pre)
            extra[-1]['wt'] = cfg.get('uwt', 6) if i == 3 else 0.4
        L = [lambda: p.lg(f'ds_read_b128 {vr(ut,4)}, v{vt+1} offset:{16*bi}', ('uv', bi), r=(LB, LB + 4096), priv=True), ('gap', 6), lambda: p.wait(vm=[('ud', bi, 3)], lg=[('uv', bi)])]
        for i in range(4):
            L += [f'v_cndmask_b32 v{ut+4+r_}, 0, v{ut+i}, {sr(sMk+2*r_,2)}' for r_ in range(4)] + [('gap', 1), mf_(uc, ut + 4, UDR + 16 * (bi & 1) + 4 * i, vr(uc, 4) if bi or i else '0')]
        return L
    chains = sorted([(th[hf] + cfg.get('sd', 100), stat(hf), f's{hf}') for hf in range(2)] + [(tb_[bi] + UD, burst(bi), f'b{bi}') for bi in range(4)], key=lambda x: x[0])
    ufin = F(f's_bfe_u32 {sr(s0)}, s2, 0x20004\ns_lshl_b32 {sr(s0)}, {sr(s0)}, 9\nv_and_b32 v{vt+1}, 15, v{vl}\nv_lshl_add_u32 v{vt+1}, v{vt+1}, 5, {sr(s0)}')
    ufin += [f'v_cmp_gt_u32 vcc, {448 * 4}, v{vt+1}\nv_mov_b32 v{vt+2}, {WSZ}\nv_bfe_u32 v{vt}, v{vl}, 4, 1\nv_cndmask_b32 v{vt+1}, v{vt+2}, v{vt+1}, vcc']
    ufin += F(f'v_lshl_add_u32 v{vt+1}, v{vt}, 4, v{vt+1}\nv_lshrrev_b32 v{vt}, 5, v{vl}\nv_mul_u32_u24 v{vt}, {FF*4}, v{vt}\nv_add_u32 v{vt+1}, v{vt+1}, v{vt}')
    ufin += F(f's_lshr_b32 {sr(s0)}, s2, 6\ns_lshl_b32 {sr(s0)}, {sr(s0)}, 2\ns_add_u32 {sr(s0)}, {sr(s0)}, {sr(sw)}\ns_lshl_b32 {sr(s0)}, {sr(s0)}, 1\ns_bfe_u32 {sr(s1)}, s2, 0x10003\ns_add_u32 {sr(s0)}, {sr(s0)}, {sr(s1)}\ns_mul_i32 {sr(s0)}, {sr(s0)}, {2*FF*4}\ns_mul_i32 {sr(s1)}, {sr(sx)}, {448*4}\ns_add_u32 {sr(s0)}, {sr(s0)}, {sr(s1)}\ns_add_u32 {sr(s0)}, {sr(s0)}, {WS_UT3}')
    ufin.append(lambda: p.vm(f'buffer_store_dwordx4 {vr(uc,4)}, v{vt+1}, {sr(sWS,4)}, {sr(s0)} offen sc1', 'us'))
    ufin += F(f's_lshl_b32 {sr(s0)}, {sr(sx)}, 7\ns_add_u32 {sr(s0)}, {sr(s0)}, {FL_U}\nv_and_b32 v{vt}, 31, v{vl}\nv_min_u32 v{vt+2}, 27, v{vt}\nv_lshl_add_u32 v{vt}, v{vt}, 10, {sr(s0)}\nv_lshlrev_b32 v{vt+2}, 4, v{vt+2}')
    ufin += F(f's_lshl_b32 {sr(s0)}, {sr(sq)}, 9\nv_mov_b32 v{vt+1}, {sr(s0)}\ns_lshl_b32 {sr(s2_)}, {sr(sq)}, 3\ns_lshr_b32 {sr(s0)}, 0x0b070602, {sr(s2_)}\ns_and_b32 {sr(s0)}, {sr(s0)}, 15\ns_lshl_b32 {sr(s0)}, {sr(s0)}, 7\ns_sub_u32 {sr(s0)}, {sr(s0)}, 256\nv_mov_b32 v{ut}, {sr(s0)}')
    ufin += [f'v_cmp_gt_u32 vcc, 256, v{vt+2}\nv_cndmask_b32 v{vt+1}, v{ut}, v{vt+1}, vcc']
    ufin += F(f's_lshr_b32 {sr(s0)}, 0x15140706, {sr(s2_)}\ns_and_b32 {sr(s0)}, {sr(s0)}, 31\ns_lshl_b32 {sr(s0)}, {sr(s0)}, 6\ns_sub_u32 {sr(s0)}, {sr(s0)}, 384\nv_mov_b32 v{ut}, {sr(s0)}')
    ufin += [f'v_cmp_gt_u32 vcc, 384, v{vt+2}\nv_cndmask_b32 v{vt+1}, v{ut}, v{vt+1}, vcc']
    ufin += F(f'v_lshrrev_b32 v{ut}, 5, v{vl}\nv_mul_u32_u24 v{ut}, {4*FF*4}, v{ut}\nv_add3_u32 v{vt+1}, v{vt+1}, v{vt+2}, v{ut}\ns_mul_i32 {sr(s0)}, {sr(sw)}, {FF*4}\ns_add_u32 {sr(s0)}, {sr(s0)}, {sr(s1)}\ns_add_u32 {sr(s0)}, {sr(s0)}, {WS_UT3}\nv_add_u32 v{vt+1}, {sr(s0)}, v{vt+1}')
    ufin += F(f's_lshl_b32 {sr(s0)}, {sr(sw)}, 9\ns_add_u32 {sr(s0)}, {sr(s0)}, {UT}\nv_add_u32 v{vt+2}, {sr(s0)}, v{vt+2}')
    tu = tb_[3] + UD + cfg.get('tu', 205)
    iu, cu = poll_ops(k, sWS, 9, None, 'plu', sfl + 3, va=vt)
    st.at(tu, iu); st.at(tu + PD, ';@T ua'); st.at(tu + PD, cu); st.at(tu + PD, ';@T ub')
    for i in range(8):
        pre = op(lambda i=i: p.ins(f's_mov_b32 {sr(sv+1)}, {8 * FF * 4 * i}'), 1)
        X(tu + PD + 1, tu + PD + 45, lambda i=i: p.vm(f'buffer_load_dwordx4 {vr(UDR+4*i,4)}, v{vt+1}, {sr(sWS,4)}, {sr(sv+1)} offen {lf}', ('u', i)), pre)
        extra[-1]['wt'] = 0.5
    fl = [lambda: p.wait(vm=[('u', i) for i in range(8)])] + [f'v_accvgpr_read_b32 {vr(ut+i)}, {vr(UDR+i)}' for i in range(4)]
    for h in range(1, 8): fl += [f'v_accvgpr_read_b32 {vr(ut+4+i)}, {vr(UDR+4*h+i)}' for i in range(4)] + [f'v_add_f32 {vr(ut+i)}, {vr(ut+i)}, {vr(ut+4+i)}' for i in range(4)]
    fl += [f'v_mov_b32 v{ut+4+i}, v{ut+i}' for i in range(4)] + [f'v_permlane32_swap_b32 v{ut+i}, v{ut+4+i}' for i in range(4)] + [f'v_add_f32 v{ut+i}, v{ut+i}, v{ut+4+i}' for i in range(4)]
    fl += [f's_cmp_eq_u32 {sr(sw)}, 1\ns_cselect_b32 {sr(s2_)}, {f32(-LOG2E)}, 1.0'] + [f'v_mul_f32 v{ut+i}, {sr(s2_)}, v{ut+i}' for i in range(4)]
    fl.append(lambda: p.lg(f'ds_write_b128 v{vt+2}, {vr(ut,4)}', 'utw', w=(UT, UT + 2048)))
    utb = tu + PD + cfg.get('auxd', 65) + 62
    bars = sorted(set(bars) | {utb}); k.bars = bars
    sb, sn, skq = sm, sq, sx
    T = 48; l_ = vl
    su4s = F(f's_and_b32 {sr(sb)}, s2, 4\ns_lshr_b32 {sr(s0)}, s2, 6\ns_add_u32 {sr(sb)}, {sr(sb)}, {sr(s0)}\ns_bfe_u32 {sr(sn)}, s2, 0x30003\ns_and_b32 {sr(skq)}, s2, 3')
    su4s += F(f's_add_u32 {sr(sL4)}, {sr(sb)}, {sr(sn)}\ns_and_b32 {sr(sL4)}, {sr(sL4)}, 3')
    su4s += F(f's_lshl_b32 {sr(s0)}, {sr(sb)}, 4\ns_and_b32 {sr(s1)}, {sr(skq)}, 2\ns_mul_i32 {sr(sst4)}, {sr(s1)}, {-8 * MBS[1] & 0xffffffff}\ns_add_u32 {sr(sst4)}, {sr(sst4)}, {7 * MBS[1]}\ns_lshl_b32 {sr(s1)}, {sr(s1)}, 2\ns_add_u32 {sr(s0)}, {sr(s0)}, {sr(s1)}\ns_lshl_b32 {sr(s1)}, {sr(sw)}, 1\ns_add_u32 {sr(s0)}, {sr(s0)}, {sr(s1)}')
    su4s += F(f's_mul_i32 {sr(sA4)}, {sr(s0)}, {MBS[1]}\ns_mul_i32 {sr(s1)}, {sr(skq)}, {28 * 1024}\ns_add_u32 {sr(sA4)}, {sr(sA4)}, {sr(s1)}\ns_add_u32 {sr(sA4)}, {sr(sA4)}, {WS_ACT}')
    su4s += F(f's_lshl_b32 {sr(sro)}, {sr(s0)}, 15\ns_lshl_b32 {sr(sn)}, {sr(sn)}, 1\ns_and_b32 {sr(s1)}, {sr(skq)}, 1\ns_add_u32 {sr(sn)}, {sr(sn)}, {sr(s1)}')
    su4s += F(f's_lshl_b32 {sr(s0)}, {sr(sn)}, 7\ns_add_u32 {sr(sro)}, {sr(sro)}, {sr(s0)}\ns_lshl_b32 {sr(sg4)}, {sr(sn)}, 8\ns_add_u32 {sr(sg4)}, {sr(sg4)}, {WS_MODP + 5 * 4096}')
    su4s += F(f's_lshl_b32 {sr(s0)}, {sr(sb)}, 12\ns_lshl_b32 {sr(s1)}, {sr(skq)}, 8\ns_add_u32 {sr(s0)}, {sr(s0)}, {sr(s1)}\ns_add_u32 {sr(sfl+2)}, {sr(s0)}, {FL_A}')
    su4s += F(f's_lshl_b32 {sr(sxl)}, {sr(sw)}, 12\ns_add_u32 {sr(sxl)}, {sr(sxl)}, {XL}\ns_lshl_b32 {sr(sxo)}, s2, 16\ns_lshl_b32 {sr(s0)}, {sr(sw)}, 14\ns_add_u32 {sr(sxo)}, {sr(sxo)}, {sr(s0)}\ns_add_u32 {sr(sxo)}, {sr(sxo)}, {WS_XC4}')
    su4s += F(f's_lshr_b32 {sr(s0)}, s2, 3\ns_lshl_b32 {sr(s0)}, {sr(s0)}, 2\ns_add_u32 {sr(s0)}, {sr(s0)}, {sr(sw)}\ns_mul_i32 {sr(spf)}, {sr(s0)}, {1024 if cfg.get("pc") else 14 * 1024}\ns_mul_i32 {sr(s0)}, {sr(skq)}, {896 * 2048}\ns_add_u32 {sr(spf)}, {sr(spf)}, {sr(s0)}')
    su4s += F(f's_nop 0')
    pfs = F(f'v_lshrrev_b32 v{vt}, 8, v{vl16}\nv_lshlrev_b32 v{vt}, 28, v{vt}\nv_lshl_add_u32 v{vt}, v{vl16}, 3, v{vt}\nv_xor_b32 v{wa+7}, {3<<5}, v{wa+4}')
    if cfg.get('pc'):
        pfs = pfs[-1:]
        pc2 = F(f'v_lshrrev_b32 v{vt+2}, 3, v{vl}\nv_and_b32 v{vt}, 7, v{vl}\nv_lshlrev_b32 v{vt}, 7, v{vt}\nv_lshl_add_u32 v{vt}, v{vt+2}, 18, v{vt}\nv_lshrrev_b32 v{vt+1}, 2, v{vt+2}\nv_lshlrev_b32 v{vt+1}, 17, v{vt+1}\nv_sub_u32 v{vt+1}, v{vt}, v{vt+1}')
        pc2 += F(f'v_add_u32 v{vt+2}, 5, v{vt+2}\nv_lshrrev_b32 v{vt+2}, 3, v{vt+2}\nv_add_u32 v{vt+2}, 1, v{vt+2}\nv_lshl_add_u32 v{vt}, v{vt+2}, 17, v{vt}')
        st.fill(pc2, utb + 1, cap=3)
    st.fill(pfs, utb - 8, cap=3)
    su4 = F(f'v_lshrrev_b32 v{T}, 3, v{l_}\nv_bfe_u32 v{T+1}, v{T}, 1, 2\nv_bfe_u32 v{T+2}, v{l_}, 1, 2\nv_xor_b32 v{T+1}, v{T+1}, v{T+2}\nv_lshlrev_b32 v{T+1}, 5, v{T+1}\nv_and_b32 v{T+2}, 1, v{l_}\nv_lshl_add_u32 v{T+1}, v{T+2}, 4, v{T+1}')
    su4 += F(f's_lshl_b32 {sr(s0)}, {sr(sw)}, 3\nv_add_u32 v{T}, {sr(s0)}, v{T}\nv_lshl_add_u32 v{T}, v{T}, 11, v{T+1}')
    su4 += F(f's_mul_i32 {sr(s0)}, {sr(skq)}, {896 * 2048}\ns_lshl_b32 {sr(s1)}, {sr(sn)}, 7\ns_add_u32 {sr(s0)}, {sr(s0)}, {sr(s1)}\nv_add_u32 v{vd4+1}, {sr(s0)}, v{T}\nv_xor_b32 v{vd4}, 128, v{vd4+1}')
    su4 += F(f'v_and_b32 v{T}, 3, v{l_}\nv_bfe_u32 v{T+1}, v{l_}, 2, 1\nv_lshl_add_u32 v{T}, v{T}, 3, v{T+1}\nv_lshlrev_b32 v{vp+1}, 7, v{T}')
    su4b = F(f's_lshl_b32 {sr(s0)}, {sr(sw)}, 8\ns_add_u32 {sr(s0)}, {sr(s0)}, {GL}\nv_lshrrev_b32 v{T+1}, 4, v{l_}\nv_lshl_add_u32 v{vgo}, v{T+1}, 4, {sr(s0)}\nv_lshlrev_b32 v{vl4}, 2, v{l_}\nv_add_u32 v{vgo-1}, {sr(s0)}, v{vl4}')
    su4b += F(f'v_lshrrev_b32 v{T}, 3, v{l_}\nv_and_b32 v{T+2}, 7, v{l_}\nv_xor_b32 v{T+3}, v{T+2}, v{T}\nv_lshlrev_b32 v{T+3}, 4, v{T+3}\nv_lshl_add_u32 v{vro}, v{T}, 11, v{T+3}')
    su4b += F(f'v_bfe_u32 v{T}, v{l_}, 4, 1\nv_lshrrev_b32 v{T+3}, 5, v{l_}\nv_lshl_add_u32 v{T}, v{T}, 1, v{T+3}\nv_xor_b32 v{T}, v{T}, v{T+2}\nv_lshlrev_b32 v{T}, 4, v{T}\nv_and_b32 v{T+2}, 15, v{l_}\nv_lshl_add_u32 v{T}, v{T+2}, 7, v{T}\nv_add_u32 v{vxa}, {sr(sxl)}, v{T}\nv_xor_b32 v{vxa+1}, 64, v{vxa}\nv_add_u32 v{vxa+2}, {sr(sxl)}, v{vl16}')
    su4b += F(f'v_bfe_u32 v{T}, v{l_}, 2, 2\nv_lshrrev_b32 v{T+1}, 4, v{l_}\nv_and_b32 v{T+2}, 1, v{l_}\nv_lshlrev_b32 v{T+2}, 4, v{T+2}\nv_mov_b32 v{T+3}, 0xffff\nv_lshlrev_b32 v{T+2}, v{T+2}, v{T+3}') + [f'v_cmp_eq_u32 vcc, v{T}, v{T+1}\nv_mov_b32 v{vsel+8}, 0\nv_mov_b32 v{vsel+9}, 0\nv_cndmask_b32 v{T}, 0, v{T+2}, vcc']
    su4b += [f'v_and_b32 v{T+1}, 2, v{l_}', f'v_cmp_eq_u32 vcc, 0, v{T+1}\nv_mov_b32 v{vsel+2}, 0\nv_mov_b32 v{vsel+3}, 0\nv_cndmask_b32 v{T+2}, 0, v{T}, vcc', f'v_sub_u32 v{T+3}, v{T}, v{T+2}']
    order = [6, 4, 5, 0, 1, 2, 3]
    rdg = lambda s_: (lambda: p.lg(f'ds_read_b128 {vr(ut + 4 if s_ == 6 else 60,4)}, v{vub} offset:{512+64*s_}', ('eg', s_), r=(UT, UT + 2048)))
    def epi(s_):
        tg_ = ut + 4 if s_ == 6 else 60
        L = [lambda: p.wait(lg=[('eg', s_)])]
        for gi, mg in enumerate(((0,), (1,), (2,), (3,)) if s_ == 6 else ((0, 1), (2, 3))):
            ms = [(m, x) for m in mg for x in range(4)]
            e = lambda m, x: ut + (0 if s_ == 6 else 4 * (m & 1)) + x
            L += [f'v_fma_f32 v{accr(s_,0,m)+x}, v{accr(s_,0,m)+x}, v{vs+2*m}, v{tg_+x}' for m, x in ms]
            if s_ not in (6, 3) and gi == 1: L.append(rdg(order[order.index(s_) + 1]))
            ex = [f'v_exp_f32 v{e(m,x)}, v{accr(s_,0,m)+x}' for m, x in ms]
            mu = [f'v_mul_f32 v{accr(s_,1,m)+x}, v{accr(s_,0,m)+x}, v{accr(s_,1,m)+x}' for m, x in ms]
            L += [y for ab in zip(ex, mu) for y in ab]
            vv = [f'v_fma_f32 v{e(m,x)}, v{e(m,x)}, v{vs+2*m+1}, v{vs+2*m+1}' for m, x in ms] + [f'v_mul_f32 v{accr(s_,1,m)+x}, v{accr(s_,1,m)+x}, v{e(m,x)}' for m, x in ms]
            rc = [f'v_rcp_f32 v{e(m,x)}, v{e(m,x)}' for m, x in ms]
            n_ = len(ms); L += vv[:2] + [y for ab in zip(rc, vv[2:n_ + 2]) for y in ab] + vv[n_ + 2:]
            for m in mg:
                u_ = accr(s_, 1, m); o = accr(s_ & ~1, 0, m) + 2 * (s_ & 1)
                L += F(f'v_cvt_pk_bf16_f32 v{o}, v{u_}, v{u_+1}\nv_cvt_pk_bf16_f32 v{o+1}, v{u_+2}, v{u_+3}')
                if s_ & 1 or s_ == 6:
                    so = sO + {1: 0, 3: 0, 5: 1, 6: 2}[s_]
                    def f(m=m, o=o, so=so):
                        if m: p.ins(f's_add_u32 {sr(s2_)}, {sr(so)}, {2 * MBS[1] * m}')
                        so_ = sr(s2_) if m else sr(so)
                        if s_ == 6: p.vm(f'buffer_store_dwordx2 {vr(o,2)}, v{vl16}, {sr(sWS,4)}, {so_} offen sc1', ('as', s_, m))
                        else: p.vm(f'buffer_store_dwordx4 {vr(o-2,4)}, v{vl16}, {sr(sWS,4)}, {so_} offen offset:{1024 if s_ == 3 else 0} sc1', ('as', s_, m))
                    L.append(op(f, 'sW'))
        if s_ == 6: L += [rdg(4), ('gap', 5)]
        return L
    win = {}
    a_ = 0
    wl = cfg.get('wl', (70, 80, 70, 90, 90, 80, 70))
    for i, s_ in enumerate(order):
        a_ = max(a_, done[s_] + 3)
        win[s_] = (a_, a_ + wl[i] - 1); a_ += wl[i]
    k.win = win; k.z = (z3, z4, zf, N)
    assert win[1][1] + 3 < z4 + 32, 'accumulators of G4 (tiles 4..7) overlap pairs 0/1'
    su4_end = win[4][1]
    pre_done = k.early3
    W.units[(3, 0, 0)]['vis'] = True
    for ts in range(n4):
        for g in range(2): W.units[(4, ts, g)]['e'] = su4_end + 1
    ops = W.dma_ops(bars, pre_done)
    def aop(ph, ts, j, m):
        ch, ab, stp = (chunk3, ab3, 65536) if ph == 3 else (chunk4, ab4, sr(sst4) if m == 2 else MBS[1])
        def pre():
            ch(ts)
            if m and j == 0: p.ins(f's_add_u32 {sr(sCA + ts % NC)}, {sr(sCA + ts % NC)}, {stp}')
        main = lambda: p.vm(f'buffer_load_dwordx4 {vr(ab(ts,j,m),4)}, v{vl16}, {sr(sWS,4)}, {sr(sCA + ts % NC)} offen offset:{1024*j} {lf}', ('A', ph, ts, j, m))
        return op(pre, 1 if j == 0 else 0), main
    pl1 = z4 - cfg.get('pl1', 100); pl2 = firstA[(4, NE)] - cfg.get('pl2', 110)
    i1, c1 = poll_ops(k, sWS, vp, sfl + 2, 'pl1', sfl + 3)
    i2, c2 = poll_ops(k, sWS, vp, sfl + 2, 'pl2', sfl + 3)
    assert pl1 > su4_end
    st.at(pl1, i1); st.at(pl1 + PD, c1)
    st.at(pl2 - 1, f's_sub_u32 {sr(sfl+2)}, {sr(sfl+2)}, {FL_A - FL_A2}'); st.at(pl2, i2); st.at(pl2 + PD, c2)
    yb = cfg.get('yb', 70); ne0 = k.ein or cfg.get('a0', 2)
    iy, cy = poll_ops(k, sWS, 9, sfl + 2, 'ply', sfl + 3, va=vt + 2)
    if NP: st.at(yb, iy); st.at(yb + PD, ';@T y_a'); st.at(yb + PD, cy); st.at(yb + PD, ';@T y_b')
    for ph, n_ in ((3, n3), (4, n4)):
        for ts in range(n_):
            if ph == 3: e = utb if nl and ts >= n3 - 1 - bl else lastA[(3, ts - DAS)] + 1 if ts >= DAS else 0
            else: e = max(bufs[ts][1] if ts < NB else lastA[(4, ts - NB)] + 1, (pl1 if ts < NE else pl2) + PD + 1)
            for m in range(4):
                if ph == 3 and ts < ne0 and (m < 2 or not NP): continue
                for j in range(2):
                    pre, main = aop(ph, ts, j, m)
                    ops.append(dict(e=max(e, yb + PD + 1) if ph == 3 and NP and m >= 2 else e, dl=firstM[(ph, ts, m)] - 2, pre=pre, main=main, id=('A', ph, ts), wt=0.5 if ph == 3 and ts < NP and m >= 2 else 1))
    vx1 = 192; vf = 208
    tg = win[3][1] + 110
    for q in range(NPART):
        pre = op(lambda q=q: p.ins(f's_add_u32 {sr(sv+1)}, {sr(sg4)}, {6144 * 4 * q}'), 1)
        X(tg, tg + 60, lambda q=q: p.vm(f'buffer_load_dword v{vg+q}, v{vl4}, {sr(sWS,4)}, {sr(sv+1)} offen {lf}', ('g', q)), pre)
    for i, tp in enumerate(() if cfg.get('pc') else cfg.get('pf', ())):
        pre = op(lambda i=i: p.ins(f's_add_u32 {sr(sv+1)}, {sr(spf)}, {2048 * i}'), 1)
        assert tp > utb
        X(tp, tp + 20, lambda i=i: p.vm(f'buffer_load_dword a253, v{vt}, {sr(sWd,4)}, {sr(sv+1)} offen {cfg.get("pfl", "")}', ('dummy', i)), pre)
        extra[-1]['wt'] = cfg.get('pfw', 2)
    for tp, cl, c0, nc in cfg.get('pc', ()):
        assert tp > utb + 10
        def f(cl=cl, c0=c0, nc=nc):
            if nc < 8: p.ins(f's_bfm_b64 exec, {8 * nc}, {8 * c0}')
            p.vm(f'buffer_load_dword a253, v{vt + cl}, {sr(sWd,4)}, {sr(spf)} offen', 'dummy')
            if nc < 8: p.ins('s_mov_b64 exec, -1')
        st.at(tp, op(f, 'sms'))
    g3gap, g4gap = cfg.get('gap3', 5), cfg.get('gap4', 4.5)
    st.vmem(ops + extra, lambda i: cfg.get('gap0', 4) if i < 112 else g3gap if i < z3 else cfg.get('gapf', 4) if i < z4 else g4gap)
    k.vops = ops
    assert not NP or th[0] > 112 * NP + 24
    e_ = st.fill(set0, 1); assert e_ < yb
    e_ = st.fill(set1, e_ + 1); assert e_ < tb_[0], e_
    e_ = st.fill(setup, e_ + 1); assert e_ < th[0], e_
    for t0_, L, nm in chains:
        e_ = st.fill(L, max(t0_, e_ + 1))
        k.dbg = getattr(k, 'dbg', []) + [(nm, t0_, e_)]
        if nm == 'b3':
            st.at(e_ + cfg.get('upub', 80), pub_op(k, sWS, 9, sfl, ['us']))
            st.at(e_ + cfg.get('upub', 80), f's_sub_u32 {sr(sfl)}, {sr(sfl)}, {FL_U - FL_A}')
            assert e_ + cfg.get('upub', 80) < tu
            e_ = st.fill([('gap', 3)] + ufin, e_ + 1); assert e_ < tu, (e_, tu)
            st.fill(su4s, e_ + 1)
    assert e_ < utb - 62, (e_, utb)
    e_ = st.fit(fl, utb - 62, utb - 2)
    W.bw[utb].append(('lg', 'utw'))
    w = utb + 1; todo = [(s_, mat) for s_ in (6, 4, 5, 0, 1, 2, 3) for mat in range(2)]
    todo = [(s_, mat, i) for s_, mat in todo for i in range(1 + mat)]
    rdu = lambda x, b_: (lambda: p.lg(f'ds_read_b128 {vr(ut+4*b_,4)}, v{vub} offset:{512*(2*x[1]+x[2])+64*x[0]}', ('iu', x), r=(UT, UT + 2048)))
    allv = {x: [v for key, v in visit.items() if key[1:] == x[:2]] for x in todo}
    def pick(w_):
        while True:
            ok = [x for x in todo if all(v + 10 <= w_ or v >= w_ + cfg.get('injw', 20) for v in allv[x])]
            if ok: todo.remove(ok[0]); return ok[0], w_
            w_ += 1
    cur, w2 = pick(w + 8); b_ = 0
    st.fill([rdu(cur, 0)], w); w = w2
    while cur:
        nx, w2 = pick(w + 13) if todo else (None, 0)
        L = ([rdu(nx, 1 - b_)] if nx else []) + [lambda x=cur: p.wait(lg=[('iu', x)])] + [f'v_fmac_f32 v{accr(cur[0],cur[1],m)+x}, v{vs+2*m+cur[2]}, v{ut+4*b_+x}' for m in range(4) for x in range(4)]
        w = st.fill(L, w, cap=cfg.get('injcap', 2))
        assert w < (z3 if cur[0] >= 4 else done[6] - 12), (cur, w, z3)
        cur = nx; w = max(w + 1, w2); b_ = 1 - b_
    L = [rdg(6)] + [f'v_rcp_f32 v{vs+2*m}, v{vs+2*m+1}' for m in range(4)] + [f'v_mul_f32 v{vs+x}, {f32(-LOG2E)}, v{vs+x}' for x in (1, 3, 5, 7, 0, 2, 4, 6)]
    e_ = st.fill(L, w); assert e_ < win[6][0], e_
    k.injend = w
    st.at(win[5][1] + cfg.get('pb1', 40), pub_op(k, sWS, vpx, sfl, [('as', 6, m) for m in range(4)] + [('as', 5, m) for m in range(4)]))
    for s_ in order:
        L = epi(s_)
        if s_ == 4: L = L[:20] + su4 + L[20:]
        (st.fitp if cfg.get('pack', 1) else st.fit)(L, win[s_][0], win[s_][1] - (4 if s_ == 6 else 0))
    e_ = st.fill([f's_sub_u32 {sr(sfl)}, {sr(sfl)}, {FL_A - FL_A2}', ('gap', cfg.get('pb2', 40)), pub_op(k, sWS, vpx, sfl, [('as', s_, m) for s_ in (1, 3) for m in range(4)])] + su4b, win[3][1] + 1)
    assert e_ < tg, (e_, tg)
    L = [lambda i=i: p.lg(f'ds_read_b128 {vr(vx1+4*i,4)}, v{vxa+2} offset:{1024*i}', 'x1', r=(XL, XL + 16384), priv=True) for i in range(4)]
    L += [lambda: p.wait(vm=[('g', q) for q in range(NPART)])]
    L += F(f'v_add_f32 v{vg}, v{vg}, v{vg+1}\nv_add_f32 v{vg+2}, v{vg+2}, v{vg+3}\nv_add_f32 v{vg}, v{vg}, v{vg+2}') + rb(vg)
    L += [lambda: p.lg(f'ds_write_b32 v{vgo-1}, v{vg}', None, w=(GL, GL + 1024), priv=True)]
    L += [lambda t=t: p.lg(f'ds_read_b128 {vr(vg+4*t,4)}, v{vgo} offset:{64*t}', ('gl', t), r=(GL, GL + 1024), priv=True) for t in range(4)]
    L += [lambda: p.wait(lg=['x1'])]
    for i in range(16): L += F(f'v_lshlrev_b32 v{vf+2*i}, 16, v{vx1+i}\nv_and_b32 v{vf+2*i+1}, 0xffff0000, v{vx1+i}')
    L += F(f'v_mov_b32 v{vp+1}, 0') + [lambda: p.wait(lg=[('gl', 3)])]
    for t in range(4):
        for h in range(2):
            r_ = vsel + 6 * (t // 2) + 4 * (t & 1) + h
            L += F(f'v_cvt_pk_bf16_f32 v{r_}, v{vg+4*t+2*h}, v{vg+4*t+2*h+1}\nv_and_b32 v{r_}, v{r_}, v{T+2+h}')
    e_ = st.fill(L, max(tg + 110, pl2 + PD + 1)); assert e_ < zf + 150
    XJ = (3, 1, 2); XP = (0, 0, 1); XT = (0, 0, 4); XM = (2, 0, 2)
    tail = []
    def put(slot, o):
        if slot < N: st.at(slot, o)
        else: tail.append((slot, len(tail), o))
    xr = lambda x, i: acc4(XT[x] + 2 * (i & 1) + 1, XM[x] + (i >> 1))
    def addp(x, i):
        return [f'{MFMA} {vr(vf+8*i+4*t,4)}, {vr(vsel+6*(i&1)+2*t,4)}, {vr(xr(x,i),4)}, {vr(vf+8*i+4*t,4)}' for t in range(2)]
    xt = cfg.get('xt', ((75, 130, 165), (75, 132, 167), (50, 90, 97)))
    hint = cfg.get('hint', 0); ck = vd4 + 3
    X3 = lambda a_, b_: f'v_bitop3_b32 v{ck}, {a_}, v{b_}, v{b_+1} bitop3:0x96'
    for ps in range(2):
        L = []
        for t in range(4):
            L.append(('from', d4[(ps, 4 * ps + t)] + 3))
            for x in range(3):
                if XP[x] != ps: continue
                for m in range(2):
                    c = acc4(XT[x] + t, XM[x] + m); o = acc4(XT[x] + (t & ~1), XM[x] + m)
                    L += F(f'v_cvt_pk_bf16_f32 v{o+2*(t&1)}, v{c}, v{c+1}\nv_cvt_pk_bf16_f32 v{o+2*(t&1)+1}, v{c+2}, v{c+3}')
                    if t & 1:
                        L.append(op(lambda x=x, i=2 * m + t // 2, o=o: (p.ins(f's_add_u32 {sr(sxo+1)}, {sr(sxo)}, {4096 * x}'), p.vm(f'buffer_store_dwordx4 {vr(o,4)}, v{vl16}, {sr(sWS,4)}, {sr(sxo+1)} offen offset:{1024 * i} sc1', ('xs', x, i))), 'sW'))
                        L.append(('gap', cfg.get('xgap', (2, 0))[ps]))
                    if hint and x == 2: L.append(X3(sr(k.tok) if t == 0 and m == 0 else f'v{ck}', o + 2 * (t & 1)))
        if hint and ps == 1: L.append(op(lambda: (p.ins(f's_add_u32 {sr(sxo+1)}, {sr(sxo)}, 12288'), p.vm(f'buffer_store_dword v{ck}, v{vl4}, {sr(sWS,4)}, {sr(sxo+1)} offen sc1')), 'sd'))
        e_ = st.fill(L, d4[(ps, 4 * ps)] + 3, cap=cfg.get('xcap', (2, 5))[ps]); assert e_ < d4[(ps, 4 * ps + 3)] + xt[2 * ps][0]
    for x in range(3):
        e0 = d4[(XP[x], 4 * XP[x] + 3)]; vq_ = (vd4 + 2, vpx + 1, vp)[x]
        if x != 1: put(e0 + xt[x][0], pub_op(k, sWS, vpx, sfl + 1, [] if hint and x == 2 else [('xs', y, i) for y in range(3) if XP[y] == XP[x] for i in range(4)], 16 * XP[x], wg=False))
        sq_ = (sA4, sL4, sfl + 2)[x]
        i3, c3 = poll_ops(k, sWS, vq_, sq_, ('pl3', x), sfl + 3, wg=False, va=vp + 1)
        put(e0 + xt[x][1], op(lambda x=x, i3=i3, sq_=sq_: (p.ins(f's_xor_b32 {sr(sq_)}, {sr(sfl+1)}, {XJ[x] << 9}\ns_add_u32 {sr(sq_)}, {sr(sq_)}, {16 * XP[x]}'), i3()), 3))
        if x == 2:
            lds_ = f's_xor_b32 {sr(s2_)}, {sr(sxo)}, {XJ[x] << 16}\ns_add_u32 {sr(s2_)}, {sr(s2_)}, {4096 * x}\n' + '\n'.join(f'buffer_load_dwordx4 {vr(xr(2,i),4)}, v{vl16}, {sr(sWS,4)}, {sr(s2_)} offen offset:{1024 * i} sc1 ; cond' for i in range(4))
            if hint: lds_ += f'\ns_add_u32 {sr(s2_)}, {sr(s2_)}, 4096\nbuffer_load_dword v{ck}, v{vl4}, {sr(sWS,4)}, {sr(s2_)} offen sc1 ; cond'
            def look():
                L = k.lab('XL'); p.wait(vm=[('pl3', 2)])
                p.ins(f'v_cmp_ne_u32 vcc, {sr(k.tok)}, v{vp}\ns_mov_b32 {sr(sxo+1)}, 0\ns_cbranch_vccnz {L}\n{lds_}\ns_mov_b32 {sr(sxo+1)}, 1'); p.label(L)
            def again():
                L = k.lab('XA'); p.T('xa2')
                p.ins(f's_cmp_eq_u32 {sr(sxo+1)}, 1\ns_cbranch_scc1 {L}x\ns_mov_b32 {sr(sfl+3)}, 60000'); p.label(L)
                p.ins(f'buffer_load_dword v{vp}, v{vp+1}, {sr(sWS,4)}, {sr(sfl+2)} offen sc1 ; cond\ns_sub_u32 {sr(sfl+3)}, {sr(sfl+3)}, 1\ns_cmp_eq_u32 {sr(sfl+3)}, 0\ns_waitcnt vmcnt(0) ; cond\ns_cbranch_scc1 {L}y\nv_cmp_ne_u32 vcc, {sr(k.tok)}, v{vp}\ns_cbranch_vccnz {L}')
                p.label(L + 'y'); p.ins(lds_); p.label(L + 'x')
                if hint:
                    p.ins('s_waitcnt vmcnt(0)\n' + '\n'.join(X3(f'v{ck}', xr(2, i) + 2 * h) for i in range(4) for h in range(2)))
                    p.ins(f'v_cmp_ne_u32 vcc, {sr(k.tok)}, v{ck}\ns_add_u32 {sr(sxo+1)}, {sr(sxo+1)}, 2\ns_cmp_gt_u32 {sr(sxo+1)}, 60000\ns_cbranch_scc1 {L}z\ns_cbranch_vccnz {L}y')
                    p.label(L + 'z')
                p.T('xb2')
            assert d4[(0, 3)] + xt[1][2] + 4 < e0 + xt[x][2] < N and xt[x][0] < xt[x][2]
            put(e0 + xt[x][2], op(look, 8)); put(N, again)
            continue
        put(e0 + xt[x][2], f';@T xa{x}')
        put(e0 + xt[x][2], c3)
        put(e0 + xt[x][2], f';@T xb{x}')
        for i in range(4):
            f = lambda x=x, i=i: (p.ins(f's_xor_b32 {sr(s2_)}, {sr(sxo)}, {XJ[x] << 16}\ns_add_u32 {sr(s2_)}, {sr(s2_)}, {4096 * x}'), p.vm(f'buffer_load_dwordx4 {vr(xr(x,i),4)}, v{vl16}, {sr(sWS,4)}, {sr(s2_)} offen offset:{1024 * i} sc1', ('xc', x, i)))
            put(e0 + xt[x][2] + 1 + i, op(f, 3))
    ownf = lambda t, m: [f'v_fmac_f32 v{vf+16*m+4*t+e}, v{vg+4*t+e}, v{acc4(4+t,m)+e}' for e in range(4)]
    if cfg.get('tl2', 0):
        L = []
        for t in range(3): L += [('from', d4[(2, 4 + t)] + 3)] + ownf(t, 0) + ownf(t, 1)
        st.fill(L, d4[(2, 4)] + 3)
    def add01():
        p.wait(vm=[('xc', x, i) for x in range(2) for i in range(4)])
        if cfg.get('tl2', 0):
            mm = [addp(x, i)[t] for i, t in ((0, 0), (2, 0), (0, 1), (2, 1), (1, 0), (3, 0), (1, 1), (3, 1)) for x in range(2)]
            vv = ownf(3, 0) + ownf(3, 1)
            for n_, o in enumerate(mm):
                p.ins(o)
                if 3 <= n_ < 7: p.ins('\n'.join(vv[2 * (n_ - 3):2 * (n_ - 3) + 2]))
            return
        for x in range(2):
            for i in range(4):
                for o in addp(x, i): p.ins(o)
    st.last(N - 1, op(add01, 'M'))
    def aearly():
        for ts in range(ne0):
            for m in range(2):
                for j in range(2):
                    pre, main = aop(3, ts, j, m); pre(); main()
    def left():
        for o in k.left: o['pre'](); o['main']()
        p.ins(f'v_mov_b32 v{vdA}, v16')
    if k.ein:
        def aearly():
            for ts in range(ne0): chunk3(ts); p.ins(f's_add_u32 {sr(sCA + ts % NC)}, {sr(sCA + ts % NC)}, 65536')
        k.echk = p.bar
    dw = lambda: p.wait(vm=[('D', (3, 0, g), i) for g in range(2) for i in range(4)], lg='all')
    sm_ = dict(t=k.tail2, e=lambda: (dw(), p.T('e_a'), k.echk(), p.T('e_b')), a=aearly, l=left, w=lambda: p.ins(f';@WARM {sr(sw)} 0 4'), y=lambda: (dw(), k.ypub(), p.T('y_pub')))
    for c_ in cfg.get('seam', 'tweayl'): sm_[c_]()
    if 'y' not in cfg.get('seam', 'tweayl'): st.at(cfg.get('ys', 3), k.ypub)
    for x in cfg.get('from2', (1560,)): st.pre.setdefault(x, []).append(';@FROM')
    for x in cfg.get('warms', ()): st.pre.setdefault(x, []).append(f';@WARM {sr(sw)} 0 4')
    W.emit_early()
    for i, nm in tuple(cfg.get('marks', ())) + ((1, 'g3_m1'), (4 * 112, 'g3_s4'), (z3, 'g3_fin'), (pl1 + PD, 'p1a'), (pl1 + PD + 1, 'p1b'), (z4, 'g4_m1'), (pl2 + PD, 'p2a'), (pl2 + PD + 1, 'p2b'), (z4 + NE * 64, 'g4_L'), (zf, 'g4_fin')):
        st.pre.setdefault(i, []).insert(0, f';@T {nm}')
    st.emit()
    p.T('g4_end')
    def own():
        for i in (0, 2, 1, 3):
            m, q = divmod(i, 2)
            for t in range(2):
                for e in range(4): p.ins(f'v_fmac_f32 v{vf+8*i+4*t+e}, v{vg+8*q+4*t+e}, v{acc4(4+2*q+t,m)+e}')
    if not cfg.get('tl2', 0): tail += [(N - 1, 0, own)]
    for _, _, o in sorted(tail, key=lambda x: x[:2]): p.ins(o) if isinstance(o, str) else o()
    for i in range(4):
        p.ins(f's_waitcnt vmcnt({3 - i})')
        for o in addp(2, i): p.ins(o)
    def ost(i):
        if i: p.ins(f's_add_u32 {sr(sro)}, {sr(sro)}, 16384')
        p.wait(lg=[('o', i)])
        p.vm(f'buffer_store_dwordx4 {vr(vf+16*(i>>1)+4*(i&1),4)}, v{vro}, {sr(sOut,4)}, {sr(sro)} offen {cfg.get("ofl", "sc1")}')
    for i in range(4):
        m, q = divmod(i, 2); f_ = vf + 8 * i; x_ = vx1 + 4 * i
        for d in range(4): p.ins(f'v_cvt_pk_bf16_f32 v{x_+d}, v{f_+2*d}, v{f_+2*d+1}')
        p.ins(f'v_permlane16_swap_b32 v{x_}, v{x_+2}\nv_permlane16_swap_b32 v{x_+1}, v{x_+3}')
        p.lg(f'ds_write_b128 v{vxa+q}, {vr(x_,4)} offset:{2048*m}', None, w=(XL, XL + 16384), priv=True)
        if q:
            for h in range(2): p.lg(f'ds_read_b128 {vr(vf+16*m+4*h,4)}, v{vxa+2} offset:{2048*m+1024*h}', ('o', 2 * m + h), r=(XL, XL + 16384), priv=True)
        if i == 2 and cfg.get('tl2', 0): ost(0); ost(1)
    for i in range(2 if cfg.get('tl2', 0) else 0, 4): ost(i)
    k.st = st
    k.end()
    return k
```
